```python
import torch

def _softmax(x, axis=-1):
    return torch.softmax(x, dim=axis)

def _gelu(x):
    return torch.nn.functional.gelu(x, approximate='tanh')

def _silu(x):
    return torch.nn.functional.silu(x)

def _sigmoid(x):
    return torch.sigmoid(x)

def _layernorm(x, axis=-1, eps=1e-05):
    m = x.mean(dim=axis, keepdim=True)
    v = x.var(dim=axis, keepdim=True, unbiased=False)
    return (x - m) / torch.sqrt(v + eps)

def _scatter_add(tgt, idx, src, axis=0):
    return tgt.clone().index_add_(axis, idx, src)

def _segment_sum(src, seg, n):
    out = torch.zeros((n,) + src.shape[1:], dtype=src.dtype)
    return out.index_add_(0, seg, src)

def _pad(x, pw):
    flat = tuple((v for pair in reversed(pw) for v in pair))
    return torch.nn.functional.pad(x, flat)
kernel_name = 'sequential_preLN__memory_aug_recurrent_mem_tr__dense_activation_gelu__prompt'

def setup_inputs():

    _w = lambda a: (lambda t: t.to(torch.bfloat16) if t.is_floating_point() else t)(torch.as_tensor(a))

    def _A_setup():
        B, S, Dm = (1, 2048, 448)
        H, Dh = (16, 256)
        M, seg = (8, 32)
        seg = min(seg, S)
        S = S // seg * seg
        return {'x': _w((lambda *s: torch.randn(*s, dtype=torch.bfloat16) * 0.05)(B, S, Dm)), 'mem0': _w((lambda *s: torch.randn(*s, dtype=torch.bfloat16) * 0.2)(B, M, Dm)), 'Wq': _w((lambda *s: torch.randn(*s, dtype=torch.bfloat16) * 1.6)(Dm, H, Dh) * Dm ** (-0.5)), 'Wk': _w((lambda *s: torch.randn(*s, dtype=torch.bfloat16) * 1.6)(Dm, H, Dh) * Dm ** (-0.5)), 'Wv': _w((lambda *s: torch.randn(*s, dtype=torch.bfloat16) * 0.2)(Dm, H, Dh) * Dm ** (-0.5)), 'Wo': _w((lambda *s: torch.randn(*s, dtype=torch.bfloat16) * 0.2)(H, Dh, Dm) * (H * Dh) ** (-0.5)), 'seg_len': seg}
    _A_in = _A_setup()

    def _B_setup():
        B, S, D, F = (1, 2048, 448, 1792)
        return {'x': _w((lambda *s: torch.randn(*s, dtype=torch.bfloat16) * 0.05)(B, S, D)), 'w1': _w((lambda *s: torch.randn(*s, dtype=torch.bfloat16) * 0.4)(D, F) * D ** (-0.5)), 'b1': _w((lambda *s: torch.randn(*s, dtype=torch.bfloat16) * 12.8)(F) * 0.01), 'w2': _w((lambda *s: torch.randn(*s, dtype=torch.bfloat16) * 0.2)(F, D) * F ** (-0.5)), 'b2': _w((lambda *s: torch.randn(*s, dtype=torch.bfloat16) * 1.6)(D) * 0.01)}
    _B_in = _B_setup()
    return {'A_x': _A_in['x'], 'A_mem0': _A_in['mem0'], 'A_Wq': _A_in['Wq'], 'A_Wk': _A_in['Wk'], 'A_Wv': _A_in['Wv'], 'A_Wo': _A_in['Wo'], 'A_seg_len': _A_in['seg_len'], 'B_x': _B_in['x'], 'B_w1': _B_in['w1'], 'B_b1': _B_in['b1'], 'B_w2': _B_in['w2'], 'B_b2': _B_in['b2']}

def reference(A_x, A_mem0, A_Wq, A_Wk, A_Wv, A_Wo, A_seg_len, B_x, B_w1, B_b1, B_w2, B_b2):

    def _A_ref(x, mem0, Wq, Wk, Wv, Wo, seg_len):
        B, S, Dm = x.shape
        H, Dh = (Wq.shape[1], Wq.shape[2])
        M = mem0.shape[1]
        scale = Dh ** (-0.5)
        n_seg = S // seg_len
        L = M + seg_len
        idx = torch.arange(L)
        mask = (idx[:, None] < M) | (idx[:, None] >= idx[None, :])
        mem = mem0
        outs = []
        for s in range(n_seg):
            xs = x[:, s * seg_len:(s + 1) * seg_len, :].clone()
            h = torch.concatenate([mem, xs], axis=1)
            q = torch.einsum('btd,dhe->bhte', h, Wq)
            k = torch.einsum('btd,dhe->bhte', h, Wk)
            v = torch.einsum('btd,dhe->bhte', h, Wv)
            scores = torch.einsum('bhqe,bhke->bhqk', q, k) * scale
            scores = torch.where(mask[None, None], scores, -1000000000.0)
            p = _softmax(scores, axis=-1)
            o = torch.einsum('bhqk,bhke->bhqe', p, v)
            o = torch.einsum('bhte,hed->btd', o, Wo)
            mem = o[:, :M, :].clone()
            outs.append(o[:, M:, :])
        return torch.concatenate(outs, axis=1)

    def _B_ref(x, w1, b1, w2, b2):
        h = torch.einsum('bsd,df->bsf', x, w1) + b1
        h = _gelu(h)
        return torch.einsum('bsf,fd->bsd', h, w2) + b2
    x = A_x
    h = x + _A_ref(_layernorm(x, axis=-1), A_mem0, A_Wq, A_Wk, A_Wv, A_Wo, A_seg_len)
    h2 = h + _B_ref(_layernorm(h, axis=-1), B_w1, B_b1, B_w2, B_b2)
    return h2
```

```python
import re

TRANS = ("v_exp_f32", "v_log_f32", "v_rcp_f32", "v_rsq_f32", "v_sqrt_f32", "v_sin_f32", "v_cos_f32")


def v(n, c=1):
    return f"v{n}" if c == 1 else f"v[{n}:{n + c - 1}]"


def a(n, c=1):
    return f"a{n}" if c == 1 else f"a[{n}:{n + c - 1}]"


def s(n, c=1):
    return f"s{n}" if c == 1 else f"s[{n}:{n + c - 1}]"


_REG = re.compile(r"^-?\|?(?:abs\()?([vas])(?:(\d+)|\[(\d+):(\d+)\])\)?\|?$")


def regs_of(tok):
    tok = tok.strip()
    if tok == "vcc":
        return {("s", "vcc_lo"), ("s", "vcc_hi")}
    if tok in ("vcc_lo", "vcc_hi"):
        return {("s", tok)}
    if tok == "m0":
        return {("s", "m0")}
    if tok == "exec":
        return {("s", "exec")}
    m = _REG.match(tok)
    if not m:
        return set()
    k = m.group(1)
    if m.group(2) is not None:
        return {(k, int(m.group(2)))}
    return {(k, i) for i in range(int(m.group(3)), int(m.group(4)) + 1)}


class Ins:
    def __init__(self, text):
        self.text = text
        t = text.split(";")[0].strip()
        parts = t.split(None, 1)
        self.op = parts[0]
        rest = parts[1] if len(parts) > 1 else ""
        toks = [x.strip() for x in rest.split(",")] if rest else []
        mods = ""
        if toks:
            last = toks[-1].split(None, 1)
            toks[-1] = last[0]
            mods = last[1] if len(last) > 1 else ""
        self.toks, self.mods = toks, mods
        op = self.op
        R = regs_of
        self.kind = "other"
        self.wr, self.rd = set(), set()
        self.states = 1
        self.passes = 0
        self.A = self.B = self.C = self.D = set()
        self.dpp = False
        self.target = None
        if op == "s_nop":
            self.states = int(toks[0], 0) + 1
            self.kind = "salu"
        elif op.startswith("v_mfma") or op.startswith("v_smfmac"):
            self.kind = "mfma"
            self.passes = 8 if "32x32" in op else 4
            self.D = R(toks[0])
            self.A, self.B = R(toks[1]), R(toks[2])
            if op.startswith("v_smfmac"):
                self.C = set(self.D)
                self.B = self.B | R(toks[3])
            else:
                self.C = R(toks[3])
            self.wr = set(self.D)
            self.rd = self.A | self.B | self.C
        elif op.startswith("v_"):
            self.kind = "valu"
            self.dpp = "_dpp" in op or "row_" in mods or "quad_perm" in mods
            if not toks:
                pass
            elif "swap" in op:
                self.wr = R(toks[0]) | R(toks[1])
                self.rd = set(self.wr)
            else:
                self.wr = R(toks[0])
                srcs = toks[1:]
                if re.match(r"v_(add|sub|subrev|addc|subb|subbrev)_co", op):
                    self.wr |= R(toks[1])
                    srcs = toks[2:]
                for x in srcs:
                    self.rd |= R(x)
                if "fmac" in op or self.dpp or "writelane" in op or "dot2c" in op:
                    self.rd |= R(toks[0])
        elif op.startswith("ds_"):
            self.kind = "ds"
            if op.startswith("ds_read") or "permute" in op or "swizzle" in op:
                self.wr = R(toks[0])
                for x in toks[1:]:
                    self.rd |= R(x)
            else:
                for x in toks:
                    self.rd |= R(x)
        elif op.startswith("buffer_") or op.startswith("global_"):
            self.kind = "vmem"
            self.lds = " lds" in (" " + mods) or "_lds_" in op
            if not toks or op in ("buffer_wbl2", "buffer_inv"):
                pass
            elif self.lds:
                for x in toks:
                    self.rd |= R(x)
                self.rd |= {("s", "m0")}
            elif "_load" in op:
                self.wr = R(toks[0])
                for x in toks[1:]:
                    self.rd |= R(x)
            else:
                for x in toks:
                    self.rd |= R(x)
                if "atomic" in op and "sc0" in mods:
                    self.wr = R(toks[0])
            self.wide_store = "_store" in op and ("x3" in op or "x4" in op)
            if self.wide_store:
                self.data = R(toks[0]) if op.startswith("buffer_") else R(toks[1])
        elif op.startswith("s_"):
            self.kind = "salu"
            if op.startswith("s_cbranch") or op == "s_branch":
                self.target = toks[0]
            elif op.startswith("s_cmp") or op.startswith("s_bitcmp") or op in (
                "s_waitcnt", "s_barrier", "s_endpgm", "s_sleep", "s_setprio"):
                for x in toks:
                    self.rd |= R(x)
            else:
                if toks:
                    self.wr = R(toks[0])
                for x in toks[1:]:
                    self.rd |= R(x)


def vg(rs):
    return {r for r in rs if r[0] in "va"}


def sg(rs):
    return {r for r in rs if r[0] == "s"}


def need(p, c):
    n = 0
    if p.kind == "valu":
        pw, ps = vg(p.wr), sg(p.wr)
        if c.kind == "mfma" and pw & c.rd:
            n = max(n, 2)
        if c.kind == "valu":
            if "permlane" in c.op and pw & c.rd:
                n = max(n, 2)
            if c.dpp and pw & c.rd:
                n = max(n, 2)
            if ("readlane" in c.op or "readfirstlane" in c.op) and pw & c.rd:
                n = max(n, 1)
            if p.op.startswith(TRANS) and not c.op.startswith(TRANS) and pw & c.rd:
                n = max(n, 1)
            if ps & c.rd:
                n = max(n, 4 if ("readlane" in c.op or "writelane" in c.op) else 2)
        if c.kind == "vmem" and ps & c.rd:
            n = max(n, 5)
    elif p.kind == "mfma":
        big = 8 if p.passes == 4 else 12
        ov = 6 if p.passes == 4 else 10
        if c.kind == "mfma":
            if p.D & (c.A | c.B):
                n = max(n, big)
            if p.D & c.C and not (p.D == c.C and p.passes == c.passes):
                n = max(n, ov)
            if p.D & c.D and not (p.D & c.C):
                n = max(n, ov)
        elif c.kind in ("valu", "ds", "vmem"):
            if p.D & (c.rd | c.wr):
                n = max(n, big)
            if c.kind == "valu" and p.C & c.wr:
                n = max(n, 3 if p.passes == 4 else 7)
    elif p.kind == "salu":
        if ("s", "m0") in p.wr and c.kind == "vmem" and getattr(c, "lds", False):
            n = max(n, 1)
    elif p.kind == "vmem" and p.wide_store:
        if p.data & c.wr:
            n = max(n, 2 if c.kind in ("valu", "mfma") else 1)
    return n


class Asm:
    def __init__(self):
        self.items = []
        self.uid = 0

    def __call__(self, text):
        for ln in text.split("\n"):
            ln = ln.strip()
            if not ln:
                continue
            if ln.startswith(";"):
                self.items.append(("c", ln))
            elif ln.endswith(":"):
                self.items.append(("l", ln[:-1]))
            elif ln.startswith("."):
                self.items.append(("d", ln))
            else:
                self.items.append(("i", Ins(ln)))

    def label(self, name):
        self.items.append(("l", name))

    def new(self, stem):
        self.uid += 1
        return f"L_{stem}_{self.uid}"

    def fix_hazards(self):
        idx = [i for i, it in enumerate(self.items) if it[0] == "i"]
        ins = [self.items[i][1] for i in idx]
        pos_of_label = {}
        k = 0
        for it in self.items:
            if it[0] == "l":
                pos_of_label[it[1]] = k
            elif it[0] == "i":
                k += 1
        preds = [[] for _ in ins]
        for j, x in enumerate(ins):
            if x.op not in ("s_branch", "s_endpgm") and j + 1 < len(ins):
                preds[j + 1].append(j)
            if x.target is not None:
                t = pos_of_label[x.target]
                if t < len(ins):
                    preds[t].append(j)
        extra = [0] * len(ins)
        for j, c in enumerate(ins):
            if c.kind not in ("valu", "mfma", "ds", "vmem"):
                continue
            worst = 0
            stack = [(p, 0) for p in preds[j]]
            seen = {}
            while stack:
                p, d = stack.pop()
                if d >= 12 or seen.get(p, 99) <= d:
                    continue
                seen[p] = d
                worst = max(worst, need(ins[p], c) - d)
                nd = d + ins[p].states + extra[p]
                for q in preds[p]:
                    stack.append((q, nd))
            extra[j] = worst
        total = 0
        for j in reversed(range(len(ins))):
            if extra[j] > 0:
                self.items.insert(idx[j], ("i", Ins(f"s_nop {extra[j] - 1}")))
                total += 1
        return total

    def text(self):
        out = []
        for k, x in self.items:
            if k == "i":
                out.append("  " + x.text)
            elif k == "l":
                out.append(x + ":")
            else:
                out.append(x)
        return "\n".join(out) + "\n"
```

```python
from asmlib import v, a, s
from layout import *

WS, DB = 8, 12
S_W, S_ID, S_FOREIGN, S_POLL = 3, 4, 5, 6
POLL_MAX = 0x40000
OOB = 0x40000000
WV0 = 120


def wreg(idx, n, nacc=256, v0=WV0):
    return a(idx, n) if idx < nacc else v(v0 + idx - nacc, n)


class Cnt:
    def __init__(self, A, name, cap):
        self.A, self.name, self.cap, self.q = A, name, cap, []

    def op(self, text, tag=None):
        self.A(text)
        self.q.append(tag)

    def wait(self, *tags):
        last = -1
        for i, t in enumerate(self.q):
            if t in tags:
                last = i
        if last < 0:
            return
        n = min(len(self.q) - 1 - last, self.cap)
        self.A(f"s_waitcnt {self.name}({n})")
        self.q = self.q[len(self.q) - n:] if n else []

    def drain(self):
        self.A(f"s_waitcnt {self.name}(0)")
        self.q = []

    def room(self, n):
        if len(self.q) + n > self.cap:
            keep = self.cap - n
            self.A(f"s_waitcnt {self.name}({keep})")
            self.q = self.q[len(self.q) - keep:] if keep else []


def poll_guard(A):
    A(f"s_add_u32 {s(S_POLL)}, {s(S_POLL)}, 1\ns_cmp_gt_u32 {s(S_POLL)}, {POLL_MAX}\ns_cbranch_scc1 L_timeout")


def interleave(A, stream, fill):
    def em(x):
        if callable(x):
            x()
        else:
            A(x)
    for x in fill.get(-1, []):
        em(x)
    for i, m in enumerate(stream):
        em(m)
        for x in fill.get(i, []):
            em(x)


def spread(fill, start, items, per=2):
    g = start
    for it in items:
        while len(fill.setdefault(g, [])) >= per:
            g += 1
        fill[g].append(it)
    return g


def load_weights(A, vm, vaddr, tiles, sreg, n_ks=14, base_idx=0, nacc=256, v0=WV0, flags=""):
    idx = base_idx
    for setter in tiles:
        setter()
        for ks in range(n_ks):
            vm.room(1)
            vm.op(f"buffer_load_dwordx4 {wreg(idx, 4, nacc, v0)}, {v(vaddr)}, {s(WS, 4)}, {s(sreg)} offen offset:{(ks % 4) * 1024}{flags}", "w")
            if ks % 4 == 3:
                A(f"s_add_u32 {s(sreg)}, {s(sreg)}, 4096")
            idx += 4


def sentinel_check(A, regs, t, retry):
    regs = list(regs)
    A(f"v_max3_u32 {v(t)}, {v(regs[0])}, {v(regs[1])}, {v(regs[2])}")
    rest = regs[3:]
    while len(rest) >= 2:
        A(f"v_max3_u32 {v(t)}, {v(t)}, {v(rest[0])}, {v(rest[1])}")
        rest = rest[2:]
    if rest:
        A(f"v_max_u32 {v(t)}, {v(t)}, {v(rest[0])}")
    A(f"v_cmp_eq_u32 vcc, -1, {v(t)}\ns_cbranch_vccnz {retry}")


def stamp(A, opts, slot):
    if opts.get("stamps", 0) == 2:
        A(f"s_memtime {s(60 + 2 * slot, 2)}")
        if slot == 0:
            A("s_memrealtime s[74:75]")


def collect(A, opts, vb, sstep=44):
    if opts.get("stamps", 0) == 2:
        A(f"s_waitcnt lgkmcnt(0)\ns_mov_b32 m0, {s(sstep)}")
        for k in range(5):
            A(f"v_writelane_b32 {v(vb + k)}, {s(60 + 2 * k)}, m0")
        A(f"v_writelane_b32 {v(vb + 5)}, s74, m0")


def collect_lds(A, opts, sbase, off, t, sstep=44):
    if opts.get("stamps", 0) == 2:
        A(f"s_waitcnt lgkmcnt(0)\ns_lshl_b32 s78, {s(sstep)}, 2\ns_add_u32 s78, s78, {s(sbase)}\nv_mov_b32 {v(t + 1)}, s78")
        for k, r in enumerate([60, 62, 64, 66, 68, 74]):
            A(f"v_mov_b32 {v(t)}, {s(r)}\nds_write_b32 {v(t + 1)}, {v(t)} offset:{off + 256 * k}")


def fetch_lds(A, opts, sbase, off, vb):
    if opts.get("stamps"):
        A(f"v_lshrrev_b32 v0, 4, v3\nv_lshlrev_b32 v4, 2, v0\nv_add_u32 v4, {s(sbase)}, v4")
        for k in range(6):
            A(f"ds_read_b32 {v(vb + k)}, v4 offset:{off + 256 * k}")
        A("s_waitcnt lgkmcnt(0)")


def mark(A, opts, k):
    if opts.get("stamps"):
        A(f"s_memtime s[78:79]\ns_memrealtime s[76:77]\ns_waitcnt lgkmcnt(0)\ns_mov_b32 {s(80 + 2 * k)}, s78\ns_mov_b32 {s(81 + 2 * k)}, s76")


def flush_stamps(A, opts, vb=114):
    if opts.get("stamps"):
        mark(A, opts, 7)
        A(f"s_lshl_b32 s78, {s(S_ID)}, 2\ns_add_u32 s78, s78, {s(S_W)}\ns_lshl_b32 s78, s78, 11\ns_add_u32 s78, s78, {DBG}")
        A("v_lshlrev_b32 v4, 2, v0")
        for k in range(6):
            A(f"buffer_store_dword {v(vb + k)}, v4, {s(WS, 4)}, s78 offen offset:{256 * k}")
        A("v_mov_b32 v4, 0")
        for k in range(16):
            A(f"v_mov_b32 v5, {s(80 + k)}\nbuffer_store_dword v5, v4, {s(WS, 4)}, s78 offen offset:{1536 + 4 * k}")
```

```python
from asmlib import v, a, s
from layout import *
from common import *

SMF = "v_smfmac_f32_16x16x64_bf16"
MF = "v_mfma_f32_16x16x32_bf16"
N_CHAIN = 31


def chain_mode(A, opts, vm, lab):
    lp = A.new("reg")
    A(f"s_mov_b32 s33, {FC + 17 * 256}\nv_mov_b32 v5, 0")
    A(f"{lp}:")
    A(f"buffer_load_dword v4, v5, {s(WS, 4)}, s33 offen sc1")
    poll_guard(A)
    vm.drain()
    A(f"v_readfirstlane_b32 s34, v4\ns_and_b32 s35, s34, 0xff\ns_cmp_eq_u32 s35, {N_CHAIN}\ns_cbranch_scc0 {lp}")
    mark(A, opts, 1)
    dbg_time(A, opts, 5, 16)
    if lab:
        A(f"s_waitcnt lgkmcnt(0)\ns_lshr_b32 s34, s34, 8\ns_cmp_eq_u32 s34, 0\ns_cbranch_scc0 {lab}")


def gather_addr(A, ga0, ga1):
    A(f"s_mul_i32 s33, {s(S_W)}, {112 * 16}\nv_add_u32 {v(ga0)}, s33, v3")
    A(f"v_min_u32 {v(ga1)}, 47, v0\nv_lshlrev_b32 {v(ga1)}, 4, {v(ga1)}\ns_add_u32 s33, s33, 1024\nv_add_u32 {v(ga1)}, s33, {v(ga1)}")


def mem_loads(A, G, ga0, ga1, scm):
    A(f"buffer_load_dwordx4 {v(G, 4)}, {v(ga0)}, {s(WS, 4)}, {s(scm)} offen sc1")
    A(f"buffer_load_dwordx4 {v(G + 4, 4)}, {v(ga1)}, {s(WS, 4)}, {s(scm)} offen sc1")


def check8(A, G, t):
    A(f"v_max3_u32 {v(t)}, {v(G)}, {v(G + 1)}, {v(G + 2)}\nv_max3_u32 {v(t + 1)}, {v(G + 3)}, {v(G + 4)}, {v(G + 5)}")
    A(f"v_max3_u32 {v(t)}, {v(t)}, {v(G + 6)}, {v(G + 7)}\nv_max_u32 {v(t)}, {v(t)}, {v(t + 1)}\nv_cmp_eq_u32 vcc, -1, {v(t)}")


def gather_mem(A, opts, G0, G1, ga0, ga1, scm, t, memb, shadow, ka=""):
    lp, ok = A.new("poll"), A.new("ok")
    mem_loads(A, G0, ga0, ga1, scm)
    for x in shadow:
        A(x)
    A(f"{lp}:")
    for cur, other in ((G0, G1), (G1, G0)):
        mem_loads(A, other, ga0, ga1, scm)
        poll_guard(A)
        A(ka)
        A("s_waitcnt vmcnt(2)")
        A(f"ds_write_b128 {v(ga0)}, {v(cur, 4)} offset:{memb}\nds_write_b128 {v(ga1)}, {v(cur + 4, 4)} offset:{memb}")
        check8(A, cur, t)
        if opts.get("solo"):
            A(f"s_cbranch_vccz {ok}\ns_branch {ok}")
        A(f"s_cbranch_vccz {ok}" if cur == G0 else f"s_cbranch_vccnz {lp}")
    A(f"{ok}:")
    stamp(A, opts, 0)
    A("s_waitcnt lgkmcnt(0)\ns_barrier")


def notice_wait(A, opts, F, fa, sreg, off, shadow, sstep=None):
    if opts.get("solo"):
        for x in shadow:
            A(x)
        return
    depth = opts.get("nd", 3)
    lp, ok = A.new("nw"), A.new("nok")
    ld = lambda k: A(f"buffer_load_dword {v(F + k)}, {v(fa)}, {s(WS, 4)}, {s(sreg)} offen offset:{off} sc1")
    for k in range(depth - 1):
        ld(k)
    for x in shadow:
        A(x)
    if sstep is not None:
        A(f"s_cmp_eq_u32 {s(sstep)}, 0\ns_cbranch_scc1 {ok}")
    A(f"{lp}:")
    poll_guard(A)
    for k in range(depth):
        ld((k + depth - 1) % depth)
        A(f"s_waitcnt vmcnt({depth - 1})\nv_cmp_eq_u32 vcc, -1, {v(F + k)}")
        A(f"s_cbranch_vccz {ok}" if k < depth - 1 else f"s_cbranch_vccnz {lp}")
    A(f"{ok}:")


def fetch_mem(A, opts, G, ga0, ga1, scm, t, memb, ka=""):
    lp = A.new("fm")
    A(f"{lp}:")
    mem_loads(A, G, ga0, ga1, scm)
    poll_guard(A)
    A(ka)
    A("s_waitcnt vmcnt(0)")
    A(f"ds_write_b128 {v(ga0)}, {v(G, 4)} offset:{memb}\nds_write_b128 {v(ga1)}, {v(G + 4, 4)} offset:{memb}")
    check8(A, G, t)
    if opts.get("stamps") == 2:
        A("s_add_u32 s53, s53, 1")
    if not opts.get("solo"):
        A(f"s_cbranch_vccnz {lp}")
    stamp(A, opts, 0)
    A("s_waitcnt lgkmcnt(0)\ns_barrier")


def notice(A, val, addr, sreg, off, sc):
    A(f"buffer_store_dword {v(val)}, {v(addr)}, {s(WS, 4)}, {s(sreg)} offen offset:{off}{sc}")


def idx_reg(A, r):
    A(f"v_mov_b32 {v(r)}, 0x44444444\nv_mov_b32 v4, 0xeeeeeeee\nv_cmp_gt_u32 vcc, 8, v1\nv_cndmask_b32 {v(r)}, v4, {v(r)}, vcc")


def zero(r, n):
    return [f"v_mov_b64 {v(r + 2 * k, 2)}, 0" for k in range(n // 2)]


def emit_stream(A, stream, fill):
    for i, m_ in enumerate(stream):
        m_() if callable(m_) else A(m_)
        items = fill.get(i, [])
        for x in items:
            x() if callable(x) else A(x)
        if not items and i + 1 < len(stream):
            A("s_nop 1")


def gen_chain_a(A, opts):
    MEM, ACC, KEY, TSP, SC, PK, IDX = 4, 32, 60, 84, 92, 104, 108
    GA0, GA1, SR2, FA, MK, MK3, TW0, TW1, TWS, TR0, TR1 = range(109, 120)
    XR, SW, SR, PX, PM = 0, 1, 2, 106, 107
    T = 104
    REG = 32768
    XK, TB, SB, MEMB = 0, 16384, 20480, 24576
    sS, sCM, sCP, sXA, sXB, sM0, sP0, sODD, sREG, sEF = 44, 45, 46, 47, 48, 49, 50, 51, 52, 54
    vm = Cnt(A, "vmcnt", 63)
    A(f"s_and_b32 {s(sODD)}, {s(S_W)}, 1\ns_mul_i32 s33, {s(S_W)}, 7\ns_add_u32 {s(sP0)}, s33, {s(sODD)}\ns_lshr_b32 {s(sP0)}, {s(sP0)}, 1")
    A(f"s_lshl_b32 {s(sREG)}, {s(S_W)}, 15\ns_mov_b32 {s(sM0)}, {s(sREG)}")
    A(f"s_lshl_b32 {s(sXA)}, {s(sP0)}, 10\ns_add_u32 {s(sXA)}, {s(sXA)}, {XS}\ns_lshl_b32 s33, {s(sODD)}, 12\ns_sub_u32 {s(sXB)}, {s(sXA)}, s33")

    def dma(k):
        aa, b = k // 4, k % 4
        pre = f"s_add_u32 s33, {s(sM0)}, {aa * 4096}\ns_mov_b32 m0, s33\n" if b == 0 else ""
        if b in (0, 3):
            pre += f"s_add_u32 s34, {s(sXB if b == 3 else sXA)}, {aa * 14336}\n"
        return pre + f"buffer_load_dwordx4 v3, {s(WS, 4)}, s34 offen offset:{b * 1024} lds"

    for k in range(8):
        vm.op(dma(k), "x")
    A(f"s_mul_i32 s34, {s(S_ID)}, {FRAG_H}\ns_mul_i32 s33, {s(S_W)}, {7 * 14 * KB}\ns_add_u32 s34, s34, s33")
    if AF:
        A(f"s_add_u32 s34, s34, {AF}")
    A(f"s_mul_i32 s35, {s(sODD)}, {14 * KB}\ns_add_u32 s35, s35, s34\ns_add_u32 s36, s34, {6 * 14 * KB}\ns_cmp_eq_u32 {s(sODD)}, 0\ns_cselect_b32 s36, s36, s34")
    tiles = [(lambda i=i: A(f"s_add_u32 s37, s35, {i * 14 * KB}")) for i in range(6)] + [lambda: A("s_mov_b32 s37, s36")]
    load_weights(A, vm, 3, tiles, 37)
    gather_addr(A, GA0, GA1)
    idx_reg(A, IDX)
    A(f"v_and_b32 v4, 7, v1\nv_lshlrev_b32 v4, 4, v4\nv_lshl_add_u32 v4, v2, 7, v4\ns_lshl_b32 s33, {s(sP0)}, 9\nv_add_u32 {v(MK)}, s33, v4")
    A(f"s_lshl_b32 s34, {s(sODD)}, 11\ns_sub_u32 s34, 1536, s34\nv_add_u32 {v(MK3)}, s34, {v(MK)}")
    A(f"v_lshrrev_b32 v4, 1, v2\nv_lshlrev_b32 v4, 3, v4\nv_xor_b32 v4, v4, v1\nv_lshlrev_b32 v4, 3, v4\nv_lshl_add_u32 v4, v2, 7, v4")
    A(f"v_add_u32 {v(TW0)}, {s(sREG)}, v4\nv_xor_b32 {v(TW1)}, 32, {v(TW0)}\nv_add_u32 {v(TW1)}, 512, {v(TW1)}")
    A(f"s_cmp_eq_u32 {s(sODD)}, 0\ns_cselect_b64 vcc, -1, 0\nv_cndmask_b32 {v(TWS)}, {v(TW1)}, {v(TW0)}, vcc")
    A("v_lshrrev_b32 v4, 2, v1\nv_and_b32 v5, 3, v1")
    A("v_lshrrev_b32 v6, 1, v2\nv_lshrrev_b32 v7, 1, v5\nv_xor_b32 v6, v6, v7\nv_lshlrev_b32 v6, 3, v6")
    A("v_and_b32 v7, 1, v2\nv_lshl_add_u32 v6, v7, 1, v6\nv_and_b32 v7, 1, v4\nv_add_u32 v6, v6, v7")
    A("v_lshrrev_b32 v7, 1, v4\nv_lshl_add_u32 v6, v7, 2, v6\nv_lshlrev_b32 v6, 3, v6\nv_lshl_add_u32 v6, v7, 9, v6\nv_lshl_add_u32 v6, v5, 7, v6")
    A(f"v_add_u32 {v(TR0)}, {s(sREG)}, v6\nv_xor_b32 {v(TR1)}, 32, {v(TR0)}")
    A(f"v_add_u32 v12, {s(sREG)}, v3")
    for r in range(4):
        A(f"v_mov_b32 {v(8 + r)}, 0")
    A(f"ds_write_b128 v12, v[8:11] offset:{TB + 3072}")
    A(f"s_lshl_b32 s33, {s(sODD)}, 2\nv_add_u32 v4, s33, v2")
    A("v_bfe_u32 v5, v1, 2, 1\nv_lshlrev_b32 v5, 5, v5\nv_and_b32 v6, 1, v1\nv_lshl_add_u32 v5, v6, 4, v5\nv_bfe_u32 v6, v1, 1, 1\nv_lshl_add_u32 v5, v6, 3, v5\nv_lshrrev_b32 v6, 3, v1\nv_lshl_add_u32 v5, v6, 2, v5")
    A(f"v_lshl_add_u32 {v(PX)}, v4, 6, v5")
    A(f"v_lshlrev_b32 v4, 4, v4\nv_lshl_add_u32 v4, v1, 1, v4\nv_add_u32 v4, 512, v4\nv_and_b32 v5, 9, v1\nv_cmp_eq_u32 vcc, 0, v5\nv_mov_b32 v5, {OOB}\nv_cndmask_b32 {v(PM)}, v5, v4, vcc")
    A(f"v_lshrrev_b32 v4, 1, v2\nv_lshlrev_b32 v4, 5, v4\nv_add_u32 v4, v4, v1\ns_lshl_b32 s33, {s(sODD)}, 4\nv_add_u32 v4, s33, v4\nv_lshlrev_b32 v4, 3, v4")
    A(f"v_and_b32 v5, 1, v2\nv_lshl_add_u32 v4, v5, 2, v4\nv_add_u32 v13, {SB}, v4\nv_lshlrev_b32 v14, 3, v0\nv_add_u32 v14, {s(sREG)}, v14")
    A(f"v_min_u32 {v(FA)}, {55 if opts.get('pw', 1) else 13}, v0\nv_lshlrev_b32 {v(FA)}, 2, {v(FA)}\ns_lshl_b32 s33, {s(S_ID)}, 8\nv_add_u32 {v(FA)}, s33, {v(FA)}\ns_mov_b32 {s(sEF)}, {EF}\ns_mov_b32 s53, 0")
    A(f"v_mov_b32 {v(XR)}, v12\nv_mov_b32 {v(SW)}, v14\nv_mov_b32 {v(SR)}, v13\nv_add_u32 {v(SR2)}, {2 * REG}, v13")
    A(f"s_mov_b32 {s(sS)}, 0\ns_mov_b32 {s(sCM)}, {CM}\ns_mul_i32 {s(sCP)}, {s(S_ID)}, 640\ns_add_u32 {s(sCP)}, {s(sCP)}, {CP}")
    slow = A.new("a_slow")
    chain_mode(A, opts, vm, slow)
    ka = lambda n, r=ACC: "".join(f"{MF} {v(r, 4)}, {v(TSP, 4)}, {v(TSP, 4)}, {v(r, 4)}\n" for _ in range(n))

    def loop(sc):
        top, nxt, done, lp, ok, idle = (A.new(x) for x in ("a_top", "a_next", "a_done", "a_poll", "a_ok", "a_idle"))
        G0, G1 = KEY, KEY + 8
        A(f"{top}:")
        notice_wait(A, opts, G1, FA, sEF, 0, zero(ACC, 28), sS)
        fetch_mem(A, opts, G0, GA0, GA1, sCM, T, MEMB, ka(opts.get('ka_m', 0), SC))
        stamp(A, opts, 1)
        lg = Cnt(A, "lgkmcnt", 15)
        for kk in range(7):
            lg.op(f"ds_read_b128 {v(MEM + 4 * kk, 4)}, v3 offset:{MEMB + kk * 1024}", f"m{kk}")

        def tile(i):
            out = []
            for kk in range(7):
                txt = f"{SMF} {v(ACC + 4 * i, 4)}, {v(MEM + 4 * kk, 4)}, {wreg((i * 7 + kk) * 8, 8)}, {v(IDX)}"
                out.append((lambda txt=txt, kk=kk: (lg.wait(f"m{kk}"), A(txt))) if i == 0 else txt)
            return out

        def score(b):
            out = []
            for tau in range(3):
                c = "0" if b == 0 else v(SC + 4 * tau, 4)
                txt = f"{MF} {v(SC + 4 * tau, 4)}, {v(TSP + 4 * (b % 2), 4)}, {v(KEY + 12 * (b % 2) + 4 * tau, 4)}, {c}"
                out.append((lambda txt=txt: (lg.wait(f"tr{b}", f"k{b}"), A(txt))) if tau == 0 else txt)
            return out

        def keys(b):
            K = KEY + 12 * (b % 2)
            out = [lambda aa=aa: lg.op(f"ds_read_b128 {v(K + 4 * aa, 4)}, {v(XR)} offset:{XK + aa * 4096 + b * 1024}", f"k{b}") for aa in range(2)]
            reg, o = (MK3, 0) if b == 3 else (MK, b * 512)
            out.append(lambda: lg.op(f"ds_read_b128 {v(K + 8, 4)}, {v(reg)} offset:{MEMB + o}", f"k{b}"))
            return out

        def epi(i):
            D = ACC + 4 * i
            addr, off = (TWS, 3072) if i == 6 else ((TW0, TW1)[i % 2], (i // 2) * 1024)
            return [f"v_cvt_pk_bf16_f32 {v(PK)}, {v(D)}, {v(D + 1)}", f"v_cvt_pk_bf16_f32 {v(PK + 1)}, {v(D + 2)}, {v(D + 3)}",
                    lambda: lg.op(f"ds_write_b64 {v(addr)}, {v(PK, 2)} offset:{TB + off}", f"t{i}")]

        def trs(b):
            return [lambda x=x: lg.op(f"ds_read_b64_tr_b16 {v(TSP + 4 * (b % 2) + 2 * x, 2)}, {v((TR0, TR1)[x])} offset:{TB + b * 1024}", f"tr{b}") for x in range(2)]

        stream = tile(0) + tile(1) + tile(2) + tile(3) + score(0) + tile(4) + tile(5) + score(1) + tile(6) + score(2)
        fill = {}

        def put(g, items):
            for k, it in enumerate(items):
                assert g + k not in fill, g + k
                fill[g + k] = [it]

        put(7, keys(0))
        put(11, epi(0))
        put(15, keys(1))
        put(18, epi(1))
        put(21, trs(0))
        put(25, epi(2))
        k2 = keys(2)
        put(31, k2[:1])
        put(32, epi(3))
        put(35, trs(1))
        put(38, k2[1:])
        put(41, epi(4))
        put(47, epi(5))
        put(50, trs(2))
        put(52, keys(3))
        emit_stream(A, stream, fill)
        stamp(A, opts, 2)
        for x in epi(6) + trs(3):
            x() if callable(x) else A(x)
        if opts.get("ka_tr"):
            A(ka(opts["ka_tr"]))
        for x in score(3):
            x() if callable(x) else A(x)
            A("s_nop 1")
        X = MEM
        A(f"s_cmp_ge_u32 {s(S_W)}, 2")
        for tau in range(3):
            D = SC + 4 * tau
            A(f"v_permlane32_swap_b32 {v(D)}, {v(D + 2)}\nv_permlane32_swap_b32 {v(D + 1)}, {v(D + 3)}")
            if opts.get("pk", 1):
                A(f"v_pk_add_f32 {v(X + 2 * tau, 2)}, {v(D, 2)}, {v(D + 2, 2)}")
            else:
                A(f"v_add_f32 {v(X + 2 * tau)}, {v(D)}, {v(D + 2)}\nv_add_f32 {v(X + 2 * tau + 1)}, {v(D + 1)}, {v(D + 3)}")
            A(f"ds_write_b64 {v(SW)}, {v(X + 2 * tau, 2)} offset:{SB + 512 * tau}")
        if opts.get("ka_x"):
            A(ka(opts["ka_x"]))
        A("s_waitcnt lgkmcnt(0)\ns_barrier")
        stamp(A, opts, 3)
        A(f"s_cbranch_scc1 {idle}")
        R = MEM + 8
        for tau in range(3):
            A(f"ds_read2st64_b32 {v(R + 4 + 4 * tau, 2)}, {v(SR)} offset0:{2 * tau} offset1:{2 * tau + 128}")
            A(f"ds_read2st64_b32 {v(R + 6 + 4 * tau, 2)}, {v(SR2)} offset0:{2 * tau} offset1:{2 * tau + 128}")
        for tau in range(3):
            A(f"s_waitcnt lgkmcnt({4 - 2 * tau})")
            A(f"v_pk_add_f32 {v(R + 4 + 4 * tau, 2)}, {v(R + 4 + 4 * tau, 2)}, {v(R + 6 + 4 * tau, 2)}")
            A(f"v_add_f32 {v(R + tau)}, {v(R + 4 + 4 * tau)}, {v(R + 5 + 4 * tau)}")
        mx, sm = T, T + 1
        A(f"v_max3_f32 {v(mx)}, {v(R)}, {v(R + 1)}, {v(R + 2)}")
        for rot in (8, 4, 2, 1):
            A(f"v_max_f32_dpp {v(mx)}, {v(mx)}, {v(mx)} row_ror:{rot} row_mask:0xf bank_mask:0xf")
        for tau in (2, 0, 1):
            A(f"v_sub_f32 {v(R + tau)}, {v(R + tau)}, {v(mx)}")
        for tau in (2, 0, 1):
            A(f"v_exp_f32 {v(R + tau)}, {v(R + tau)}")
        A(f"v_fma_f32 {v(sm)}, 0.5, {v(R + 2)}, {v(R)}")
        A(f"v_mov_b32_dpp {v(R + 3)}, {v(R + 2)} quad_perm:[1,0,3,2] row_mask:0xf bank_mask:0xf")
        A(f"v_add_f32 {v(sm)}, {v(sm)}, {v(R + 1)}")
        for rot in (8, 4, 2, 1):
            A(f"v_add_f32_dpp {v(sm)}, {v(sm)}, {v(sm)} row_ror:{rot} row_mask:0xf bank_mask:0xf")
        A(f"v_rcp_f32 {v(sm)}, {v(sm)}")
        for k in range(4):
            A(f"v_mul_f32 {v(R + k)}, {v(R + k)}, {v(sm)}")
        A(f"v_cvt_pk_bf16_f32 {v(R)}, {v(R)}, {v(R + 1)}\nv_cvt_pk_bf16_f32 {v(R + 2)}, {v(R + 2)}, {v(R + 3)}")
        A(f"v_min_u32 {v(R)}, -2, {v(R)}")
        A(f"buffer_store_dword {v(R)}, {v(PX)}, {s(WS, 4)}, {s(sCP)} offen{sc}")
        A(f"v_min_u32 {v(R + 2)}, -2, {v(R + 2)}")
        A(f"buffer_store_dword {v(R + 2)}, {v(PM)}, {s(WS, 4)}, {s(sCP)} offen{sc}")
        A(f"{nxt}:")
        stamp(A, opts, 4)
        collect_lds(A, opts, sREG, 22528, T)
        A(f"s_add_u32 {s(sS)}, {s(sS)}, 1\ns_add_u32 {s(sCM)}, {s(sCM)}, {0 if opts.get('solo') else 8192}\ns_add_u32 {s(sCP)}, {s(sCP)}, {0 if opts.get('solo') else 10240}")
        adv = 0 if opts.get("solo") else EF_STEP
        A(f"s_add_u32 {s(sEF)}, {s(sEF)}, {adv}\ns_add_u32 {s(sXA)}, {s(sXA)}, {28 * KB}\ns_add_u32 {s(sXB)}, {s(sXB)}, {28 * KB}")
        A("s_barrier")
        if not opts.get("nodma"):
            for k in range(8):
                A(dma(k))
        A(f"s_cmp_eq_u32 {s(sS)}, 63\ns_cbranch_scc0 {top}")
        A("s_waitcnt vmcnt(0)")
        A("s_mov_b32 s84, s53" if opts.get("stamps") == 2 else "")
        fetch_lds(A, opts, sREG, 22528, 10)
        flush_stamps(A, opts, 10)
        A("s_endpgm")
        A(f"{idle}:")
        A(f"v_lshrrev_b32 {v(T + 1)}, 4, v3\nv_min_u32 {v(T + 1)}, 13, {v(T + 1)}\ns_lshl_b32 s33, {s(S_ID)}, 2\ns_add_u32 s33, s33, {EF_P}")
        A(f"v_lshl_add_u32 {v(T + 1)}, {v(T + 1)}, 7, s33\nv_mov_b32 {v(T)}, 0")
        A(ka(opts.get("la", 6)))
        w3 = A.new("a_w3")
        A(f"s_cmp_eq_u32 {s(S_W)}, 2\ns_cbranch_scc0 {w3}")
        notice(A, T, T + 1, sEF, 0, sc)
        A(f"s_branch {nxt}\n{w3}:")
        A(ka(opts.get("ka_sm", 0)))
        A(f"s_branch {nxt}")

    loop("")
    A(f"{slow}:")
    loop(" sc1")


def gen_chain_b(A, opts):
    MEM, ZACC, ZOP, Y, OACC, IDX = 4, 32, 60, 76, 108, 132
    GA0, GA1, PXA, PMA, RW, RR0, RR1, MO, WR, FA, FV = range(133, 144)
    FM, NZ, NA, FP = 128, 129, 130, 131
    T, WST, V0 = 116, 144, 176
    RED, WL = 8192, 12288
    sS, sCM, sCP, sY, sEF, sC, sFY = 44, 45, 46, 47, 48, 50, 51
    vm = Cnt(A, "vmcnt", 63)
    A(f"s_sub_u32 {s(sC)}, {s(S_ID)}, 16")
    A(f"s_mul_i32 s34, {s(S_W)}, {4 * FRAG_H}\ns_mul_i32 s33, {s(sC)}, {28 * KB}\ns_add_u32 s34, s34, s33\ns_add_u32 s34, s34, {BF}")
    A(f"s_mul_i32 s36, {s(S_W)}, {28 * KB}\ns_add_u32 s36, s36, {WL}\nv_add_u32 {v(WR)}, s36, v3\ns_add_u32 s37, s34, {3 * FRAG_H}")
    for q in range(7):
        A("s_mov_b32 m0, s36\ns_add_u32 s36, s36, 4096")
        for k in range(4):
            vm.op(f"buffer_load_dwordx4 v3, {s(WS, 4)}, s37 offen offset:{k * 1024} lds", "w")
        A("s_add_u32 s37, s37, 4096")
    tiles = [(lambda t=t: A(f"s_add_u32 s37, s34, {(t // 2) * FRAG_H + (t % 2) * 14 * KB}")) for t in range(6)]
    load_weights(A, vm, 3, tiles, 37, v0=V0)
    gather_addr(A, GA0, GA1)
    idx_reg(A, IDX)
    A("v_and_b32 v4, 7, v1\nv_lshrrev_b32 v5, 3, v1\nv_lshrrev_b32 v6, 1, v2\nv_and_b32 v7, 1, v2")
    A(f"s_mul_i32 s33, {s(S_W)}, 2560")
    A(f"v_mul_u32_u24 v8, 640, v6\nv_lshl_add_u32 v8, v4, 6, v8\nv_lshl_add_u32 v8, v7, 5, v8\nv_lshl_add_u32 v8, v5, 4, v8\nv_add_u32 {v(PXA)}, s33, v8")
    A(f"v_lshl_add_u32 v8, v6, 1, v5\nv_mul_u32_u24 v8, 640, v8\nv_lshl_add_u32 v8, v4, 4, v8\ns_add_u32 s33, s33, 512\nv_add_u32 {v(PMA)}, s33, v8")
    A(f"v_lshl_add_u32 v8, v6, 1, v7\nv_xor_b32 v8, v0, v8\nv_lshlrev_b32 v8, 4, v8\ns_lshl_b32 s33, {s(S_W)}, 10\ns_add_u32 s33, s33, {RED}\nv_add_u32 {v(RW)}, s33, v8")
    A("v_lshrrev_b32 v4, 5, v0\nv_bfe_u32 v5, v0, 2, 3\nv_and_b32 v6, 3, v0")
    A("v_and_b32 v7, 1, v6\nv_lshrrev_b32 v8, 2, v5")
    A(f"v_lshlrev_b32 v9, 5, v7\nv_lshl_add_u32 v9, v8, 4, v9\ns_and_b32 s33, {s(S_W)}, 1\ns_lshl_b32 s33, s33, 3\nv_add_u32 v9, s33, v9")
    A("v_lshrrev_b32 v10, 1, v6\nv_lshl_add_u32 v9, v10, 2, v9\nv_lshl_add_u32 v9, v4, 1, v9")
    A("v_lshl_add_u32 v10, v7, 1, v8\nv_xor_b32 v9, v9, v10\nv_lshlrev_b32 v9, 4, v9\nv_and_b32 v10, 3, v5\nv_lshl_add_u32 v9, v10, 2, v9")
    A(f"v_add_u32 {v(RR0)}, {RED}, v9\nv_xor_b32 {v(RR1)}, 16, {v(RR0)}")
    A(f"s_lshl_b32 s33, {s(sC)}, 9\ns_and_b32 s35, {s(S_W)}, 1\ns_lshl_b32 s35, s35, 8\ns_add_u32 s33, s33, s35\nv_lshl_add_u32 {v(MO)}, v0, 2, s33")
    A(f"v_lshlrev_b32 {v(FA)}, 2, v1\nv_mov_b32 {v(FV)}, 0")
    A(f"s_mov_b32 {s(sS)}, 0\ns_mov_b32 {s(sCM)}, {CM}\ns_mov_b32 {s(sCP)}, {CP}")
    A(f"s_mul_i32 s33, {s(S_W)}, {4 * 28 * KB}\ns_lshl_b32 s35, {s(sC)}, 11\ns_add_u32 {s(sY)}, s33, s35\ns_add_u32 {s(sY)}, {s(sY)}, {YF}")
    A(f"s_mov_b32 {s(sFY)}, {FY}\ns_mov_b32 {s(sEF)}, {EF}\ns_mov_b32 s53, 0\ns_mov_b32 s55, 0")
    pw = opts.get("pw", 1)
    A(f"v_min_u32 {v(FM)}, {55 if pw else 13}, v0\nv_lshlrev_b32 {v(FM)}, 2, {v(FM)}\ns_lshl_b32 s33, {s(S_ID)}, 8\nv_add_u32 {v(FM)}, s33, {v(FM)}")
    A(f"s_lshl_b32 s33, {s(sC)}, 7\ns_add_u32 s33, s33, {EF_P}\nv_add_u32 {v(FP)}, s33, {v(FA)}")
    if pw:
        A(f"s_lshl_b32 s33, {s(sC)}, 2\ns_add_u32 s33, s33, {s(S_W)}\ns_lshl_b32 s33, s33, 2")
    else:
        A(f"s_lshl_b32 s33, {s(sC)}, 2")
    A(f"s_add_u32 s33, s33, {EF_STEP}\nv_min_u32 {v(NA)}, 29, v0\nv_lshl_add_u32 {v(NA)}, {v(NA)}, 8, s33\nv_mov_b32 {v(NZ)}, 0")
    slow = A.new("b_slow")
    chain_mode(A, opts, vm, slow)
    ka = lambda n: "".join(f"{MF} {v(ZACC + 8, 4)}, {v(ZOP, 4)}, {v(ZOP, 4)}, {v(ZACC + 8, 4)}\n" for _ in range(n))

    def loop(sc):
        top, nxt, last, noy, yok, ypoll, noflag, gm, gp, idle, noz = (A.new("b_" + x) for x in ("top", "next", "last", "noy", "yok", "ypoll", "nofl", "gm", "gp", "idle", "noz"))
        A(f"{top}:")
        if opts.get("ndb", 1):
            notice_wait(A, dict(opts, nd=opts.get('ndb', 1)), WST + 8, FM, sEF, 0, zero(ZACC, 28) + zero(OACC, 8), sS)
        else:
            for x in zero(ZACC, 28) + zero(OACC, 8):
                A(x)
        fetch_mem(A, opts, WST, GA0, GA1, sCM, T, 0)
        lg = Cnt(A, "lgkmcnt", 15)
        for kk in range(7):
            lg.op(f"ds_read_b128 {v(MEM + 4 * kk, 4)}, v3 offset:{kk * 1024}", f"m{kk}")
        A(f"v_cmp_eq_u32 vcc, 0, {v(FV)}\ns_cbranch_vccz {yok}")
        A(f"{ypoll}:")
        A(f"buffer_load_dword {v(FV)}, {v(FA)}, {s(WS, 4)}, {s(sFY)} offen sc1")
        poll_guard(A)
        A(f"s_waitcnt vmcnt(0)\nv_cmp_eq_u32 vcc, 0, {v(FV)}\ns_cbranch_vccnz {ypoll}")
        A(f"{yok}:")
        bulk = []
        for hh in range(4):
            for vv in range(0 if opts.get("noy") else 2):
                pre = f"s_add_u32 s33, {s(sY)}, {hh * 28 * KB}\n" if vv == 0 else ""
                bulk.append(pre + f"buffer_load_dwordx4 {v(Y + 16 * (hh // 2) + 8 * vv + 4 * (hh % 2), 4)}, v3, {s(WS, 4)}, s33 offen offset:{vv * 1024} sc1")
        bulk.append(f"buffer_load_dword {v(FV)}, {v(FA)}, {s(WS, 4)}, {s(sFY)} offen offset:128 sc1")
        order = []
        regs = [(t, kk) for t in range(6) for kk in range(7)]
        for n in range(14):
            order += regs[3 * n:3 * n + 3] + [(6 + n // 7, n % 7)]
        accof = lambda t: ZACC + 4 * (t if t < 7 else 0)
        stream, pos, seen = [], {}, set()
        for t, kk in order:
            pos[(t, kk)] = len(stream)
            n = (t - 6) * 7 + kk
            w = wreg((t * 7 + kk) * 8, 8, 256, V0) if t < 6 else v(WST + 8 * (n % 4), 8)
            txt = f"{SMF} {v(accof(t), 4)}, {v(MEM + 4 * kk, 4)}, {w}, {v(IDX)}"
            tags = ([f"m{kk}"] if kk not in seen else []) + ([f"w{n}"] if t >= 6 else [])
            seen.add(kk)
            stream.append((lambda txt=txt, tags=tags: (lg.wait(*tags), A(txt))) if tags else txt)

        def wread(n):
            return [lambda u=u: lg.op(f"ds_read_b128 {v(WST + 8 * (n % 4) + 4 * u, 4)}, {v(WR)} offset:{(n // 7) * 14 * KB + (2 * (n % 7) + u) * KB}", f"w{n}") for u in range(2)]

        def epi(t):
            hh, vv = t // 2, t % 2
            D = accof(t)
            out = [f"v_cvt_pk_bf16_f32 {v(ZOP + 8 * vv + 4 * (hh // 2) + 2 * b + hh % 2)}, {v(D + 2 * b)}, {v(D + 2 * b + 1)}" for b in range(2)]
            return out + (zero(D, 4) if t == 0 else [])

        y = bulk + ["s_nop 0"] * (9 - len(bulk))
        for x in wread(0) + wread(1):
            x()
        npre = opts.get("ypre", 2)
        for x in y[:npre]:
            A(x)
        fill = {}
        for n in range(2, 14):
            spread(fill, 4 * (n - 2), wread(n), per=1)
        g = 2
        for x in y[npre:]:
            while g in fill:
                g += 1
            fill[g] = [x]
            g += opts.get("ygap", 1)
        late = []
        for t in sorted(range(8), key=lambda t: pos[(t, 6)]):
            g = pos[(t, 6)] + 4
            for x in epi(t):
                while g in fill:
                    g += 1
                if g < len(stream):
                    fill[g] = [x]
                    assert t != 0 or g < pos[(7, 0)] - 1
                else:
                    late.append(x)
        emit_stream(A, stream, fill)
        for x in late:
            A(x)
        stamp(A, opts, 1)

        def p_loads(P):
            A(f"buffer_load_dwordx4 {v(P, 4)}, {v(PXA)}, {s(WS, 4)}, {s(sCP)} offen sc1")
            A(f"buffer_load_dwordx4 {v(P + 4, 4)}, {v(PXA)}, {s(WS, 4)}, {s(sCP)} offen offset:1280 sc1")
            A(f"buffer_load_dwordx4 {v(P + 8, 4)}, {v(PMA)}, {s(WS, 4)}, {s(sCP)} offen sc1")

        cur = MEM
        ok = A.new("b_ok")
        notice_wait(A, opts, MEM + 12, FP, sEF, 0, [])
        A(f"{gp}:")
        p_loads(cur)
        poll_guard(A)
        A(ka(opts.get("ka_p", 0)))
        if opts.get("stamps") == 2:
            A("s_add_u32 s55, s55, 1")
        mx3 = lambda d, x, y, z: f"v_max3_u32 {v(d)}, {v(x)}, {v(y)}, {v(z)}"
        chk = ["s_nop 0", mx3(T, cur, cur + 1, cur + 2), mx3(T, T, cur + 3, cur + 4), mx3(T + 1, cur + 5, cur + 6, cur + 7), mx3(T + 2, cur + 8, cur + 9, cur + 10),
               mx3(T, T, T + 1, cur + 11) + f"\nv_max_u32 {v(T)}, {v(T)}, {v(T + 2)}\nv_cmp_eq_u32 vcc, -1, {v(T)}"]
        k = 0
        for kap in range(3):
            A(f"s_waitcnt vmcnt({2 - kap})")
            if kap == 0:
                stamp(A, opts, 2)
            for vv in range(2):
                b = v(Y + 16 * kap + 8 * vv, 8) if kap < 2 else v(ZOP + 8 * vv, 8)
                A(f"{SMF} {v(OACC + 4 * vv, 4)}, {v(cur + 4 * kap, 4)}, {b}, {v(IDX)}")
                A(chk[k])
                k += 1
        A(f"s_cbranch_vccz {ok}")
        if opts.get("solo"):
            A(f"s_branch {ok}")
        for x in zero(OACC, 8):
            A(x)
        A(f"s_branch {gp}")
        A(f"{ok}:")
        lb = opts.get("lb", 2) if pw else -1
        if lb == 0:
            notice(A, NZ, NA, sEF, 0, sc)
        for q in range(4):
            A(f"v_permlane32_swap_b32 {v(OACC + q)}, {v(OACC + 4 + q)}")
        if lb == 1:
            notice(A, NZ, NA, sEF, 0, sc)
        for q in range(4):
            A(f"v_add_f32 {v(OACC + q)}, {v(OACC + q)}, {v(OACC + 4 + q)}")
        A(f"ds_write_b128 {v(RW)}, {v(OACC, 4)}")
        if lb >= 2:
            A(ka(lb - 2))
            notice(A, NZ, NA, sEF, 0, sc)
        A("s_waitcnt lgkmcnt(0)\ns_barrier")
        stamp(A, opts, 3)
        A(f"s_cmp_ge_u32 {s(S_W)}, 2\ns_cbranch_scc1 {idle}")
        R = ZACC
        if not pw:
            A(f"s_cmp_eq_u32 {s(S_W)}, 0\ns_cbranch_scc0 {noflag}")
            notice(A, NZ, NA, sEF, 0, sc)
            A(f"{noflag}:")
        A(f"ds_read2st64_b32 {v(R, 2)}, {v(RR0)} offset0:0 offset1:4\nds_read2st64_b32 {v(R + 2, 2)}, {v(RR1)} offset0:0 offset1:4")
        A(f"ds_read2st64_b32 {v(R + 4, 2)}, {v(RR0)} offset0:8 offset1:12\nds_read2st64_b32 {v(R + 6, 2)}, {v(RR1)} offset0:8 offset1:12")
        A(f"s_add_u32 s33, {s(sCM)}, 8192")
        A("s_waitcnt lgkmcnt(2)")
        A(f"v_add_f32 {v(R)}, {v(R)}, {v(R + 1)}\nv_add_f32 {v(R + 2)}, {v(R + 2)}, {v(R + 3)}")
        A("s_waitcnt lgkmcnt(0)")
        A(f"v_add_f32 {v(R + 4)}, {v(R + 4)}, {v(R + 5)}\nv_add_f32 {v(R + 6)}, {v(R + 6)}, {v(R + 7)}")
        A(f"v_add_f32 {v(R)}, {v(R)}, {v(R + 4)}\nv_add_f32 {v(R + 2)}, {v(R + 2)}, {v(R + 6)}")
        A(f"v_cvt_pk_bf16_f32 {v(R)}, {v(R)}, {v(R + 2)}\nv_min_u32 {v(R)}, -2, {v(R)}")
        A(f"buffer_store_dword {v(R)}, {v(MO)}, {s(WS, 4)}, s33 offen{sc}")
        A(f"{nxt}:")
        stamp(A, opts, 4)
        collect(A, opts, 120)
        A(f"s_add_u32 {s(sS)}, {s(sS)}, 1\ns_add_u32 {s(sCM)}, {s(sCM)}, {0 if opts.get('solo') else 8192}\ns_add_u32 {s(sCP)}, {s(sCP)}, {0 if opts.get('solo') else 10240}")
        A(f"s_add_u32 {s(sY)}, {s(sY)}, {16 * 28 * KB}\ns_add_u32 {s(sFY)}, {s(sFY)}, 128\ns_add_u32 {s(sEF)}, {s(sEF)}, {0 if opts.get('solo') else EF_STEP}")
        A(f"s_cmp_eq_u32 {s(sS)}, 63\ns_cbranch_scc0 {top}")
        A("s_waitcnt vmcnt(0)")
        A("s_mov_b32 s84, s53\ns_mov_b32 s85, s55" if opts.get("stamps") == 2 else "")
        dbg_time(A, opts, 6, 16)
        flush_stamps(A, opts, 120)
        A("s_endpgm")
        A(f"{idle}:")
        A(ka(opts.get("ka_f", 0)))
        A(f"s_branch {nxt}")

    loop("")
    A(f"{slow}:")
    loop(" sc1")


def gen_chain_f(A, opts):
    G, GA0, GA1, T, WA = 4, 12, 13, 14, 20
    sS, sCM, sXM = 44, 45, 46
    gather_addr(A, GA0, GA1)
    A(f"s_lshl_b32 s33, {s(S_W)}, 10\nv_add_u32 {v(WA)}, s33, v3")

    def touch(base, stride, nbytes, ahead, last):
        A(f"s_add_u32 s33, {s(sS)}, {ahead}\ns_min_u32 s33, s33, {last}\ns_mul_i32 s33, s33, {stride}\ns_add_u32 s33, s33, {base}")
        for k in range(0, nbytes, 4096):
            A(f"buffer_load_dwordx4 v[16:19], {v(WA)}, {s(WS, 4)}, s33 offen sc1\ns_add_u32 s33, s33, 4096")

    def touch_all():
        if not opts.get("nopf"):
            touch(CP, 10240, 12288, 1, 62)
            touch(CM, 8192, 8192, 2, 63)
            touch(EF, EF_STEP, 12288, 2, 62)
            touch(XS, 28 * KB, 28 * KB, 2, 63)

    for first in (-1, 0):
        A(f"s_mov_b32 {s(sS)}, {first}")
        touch_all()
    A(f"s_mov_b32 {s(sS)}, 1\ns_mov_b32 {s(sCM)}, {CM + 8192}\ns_mov_b32 {s(sXM)}, {XM + 8192}")
    lp = A.new("f_poll")
    A(f"{lp}:")
    mem_loads(A, G, GA0, GA1, sCM)
    poll_guard(A)
    A("s_waitcnt vmcnt(0)")
    check8(A, G, T)
    A(f"s_cbranch_vccnz {lp}")
    A(f"buffer_store_dwordx4 {v(G, 4)}, {v(GA0)}, {s(WS, 4)}, {s(sXM)} offen sc1")
    A(f"buffer_store_dwordx4 {v(G + 4, 4)}, {v(GA1)}, {s(WS, 4)}, {s(sXM)} offen sc1")
    touch_all()
    A(f"s_add_u32 {s(sS)}, {s(sS)}, 1\ns_add_u32 {s(sCM)}, {s(sCM)}, 8192\ns_add_u32 {s(sXM)}, {s(sXM)}, 8192")
    A(f"s_cmp_lt_u32 {s(sS)}, 64\ns_cbranch_scc1 {lp}\ns_endpgm")
```

```python
from asmlib import v, a, s
from layout import *
from common import *
from gen_prep import load_srd
from gen_chain import gen_chain_a, gen_chain_b, gen_chain_f
import gen_work

MAIN_LDS = 131072
LDS_ROLE = MAIN_LDS - 16


def gen_main(A, name, opts):
    A(f".p2align 8\n.type {name},@function\n{name}:")
    A("s_cmp_ge_u32 s2, 256\ns_cbranch_scc1 L_exit")
    mark(A, opts, 0)
    b = [load_srd(A, WS, "ws", 40), load_srd(A, DB, "dbg", 42)]
    A(f"v_lshrrev_b32 v1, 6, v0\nv_and_b32 v0, 63, v0\nv_readfirstlane_b32 {s(S_W)}, v1")
    if opts.get("fake"):
        A("s_mul_i32 s29, s2, 43\ns_lshr_b32 s29, s29, 8\ns_mul_i32 s29, s29, 6\ns_sub_u32 s28, s2, s29\ns_add_u32 s28, s28, 1\ns_and_b32 s28, s28, 15")
    else:
        A("s_getreg_b32 s28, hwreg(HW_REG_XCC_ID, 0, 4)")
    A(f"s_mov_b32 {s(S_POLL)}, 0\ns_mov_b32 {s(S_FOREIGN)}, 0")
    A(f"v_mov_b32 v3, {LDS_ROLE}")
    A("s_waitcnt lgkmcnt(0)")
    for f in b:
        f()
    dbg_time(A, opts, 4, 0, 2)
    A(f"s_cmp_eq_u32 {s(S_W)}, 0\ns_cbranch_scc0 L_role_wait")
    A("v_mov_b32 v1, 1\nv_mov_b32 v2, 0\ns_mov_b64 exec, 1")
    A(f"s_lshl_b32 s29, s28, 8\ns_add_u32 s29, s29, {FC}")
    A(f"buffer_atomic_add v1, v2, {s(WS, 4)}, s29 offen sc0 sc1")
    A("s_waitcnt vmcnt(0)\nv_readfirstlane_b32 s30, v1\ns_mov_b64 exec, -1")
    A(f"s_lshl_b32 {s(S_ID)}, s28, 5\ns_add_u32 {s(S_ID)}, {s(S_ID)}, s30")
    A("s_cmp_ge_u32 s28, 8\ns_cbranch_scc1 L_overflow\ns_cmp_ge_u32 s30, 32\ns_cbranch_scc0 L_role_known")
    A("L_overflow:")
    A("v_mov_b32 v1, 1\ns_mov_b64 exec, 1")
    A(f"s_mov_b32 s29, {FC + 16 * 256}")
    A(f"buffer_atomic_add v1, v2, {s(WS, 4)}, s29 offen sc0 sc1")
    A("s_waitcnt vmcnt(0)\nv_readfirstlane_b32 s31, v1\ns_mov_b64 exec, -1")
    A(f"v_and_b32 v4, 15, v0\nv_lshlrev_b32 v4, 8, v4\ns_mov_b32 s29, {FC}")
    A("L_ov_poll:")
    A(f"buffer_load_dword v5, v4, {s(WS, 4)}, s29 offen sc1")
    poll_guard(A)
    A("s_waitcnt vmcnt(0)\ns_mov_b32 s32, 0")
    for k in range(16):
        A(f"v_readlane_b32 {s(44 + k)}, v5, {k}")
    for k in range(16):
        A(f"s_add_u32 s32, s32, {s(44 + k)}")
    A("s_cmp_lt_u32 s32, 256\ns_cbranch_scc1 L_ov_poll")
    A(f"s_mov_b32 {s(S_FOREIGN)}, 1")
    for k in range(8):
        A(f"s_min_u32 s33, {s(44 + k)}, 32\ns_sub_u32 s34, 32, s33")
        A(f"s_add_u32 {s(S_ID)}, s33, s31\ns_add_u32 {s(S_ID)}, {s(S_ID)}, {32 * k}")
        A("s_cmp_lt_u32 s31, s34\ns_cbranch_scc1 L_role_known\ns_sub_u32 s31, s31, s34")
    A("s_branch L_timeout")
    A("L_role_known:")
    A(f"s_lshl_b32 s29, {s(S_FOREIGN)}, 8\ns_or_b32 s30, s29, {s(S_ID)}\nv_mov_b32 v1, s30\nds_write_b32 v3, v1")
    A(f"s_cmp_lt_u32 {s(S_ID)}, 31\ns_cbranch_scc0 L_no_reg")
    A(f"s_add_u32 s29, s29, 1\nv_mov_b32 v1, s29\nv_mov_b32 v2, 0\ns_mov_b64 exec, 1\ns_mov_b32 s29, {FC + 17 * 256}")
    A(f"buffer_atomic_add v1, v2, {s(WS, 4)}, s29 offen sc1\ns_mov_b64 exec, -1")
    A("L_no_reg:")
    A("s_waitcnt lgkmcnt(0)")
    A("L_role_wait:")
    A("s_barrier\nds_read_b32 v1, v3\ns_waitcnt lgkmcnt(0)\nv_readfirstlane_b32 s30, v1")
    A(f"s_and_b32 {s(S_ID)}, s30, 0xff")
    A("v_and_b32 v1, 15, v0\nv_lshrrev_b32 v2, 4, v0\nv_lshlrev_b32 v3, 4, v0")
    A(f"s_lshr_b32 s28, {s(S_ID)}, 5\ns_and_b32 s29, {s(S_ID)}, 31")
    far = []

    def go(cond, label):
        hop = A.new("go")
        far.append((hop, label))
        A(f"{cond}\ns_cbranch_scc1 {hop}")

    A("s_cmp_eq_u32 s28, 0\ns_cbranch_scc0 L_not_chain")
    go("s_cmp_lt_u32 s29, 16", "L_chain_a")
    go("s_cmp_lt_u32 s29, 30", "L_chain_b")
    go("s_cmp_eq_u32 s29, 30", "L_chain_f")
    A("s_endpgm")
    A("L_not_chain:")
    if opts.get("tl"):
        A(f"s_cmp_eq_u32 {s(S_ID)}, 255\ns_cbranch_scc0 L_tl_no\nv_mov_b32 v8, {DBG}\nv_mov_b32 v9, 0\nbuffer_load_dwordx4 v[4:7], v8, {s(WS, 4)}, 0 offen\ns_waitcnt vmcnt(0)\nbuffer_store_dwordx4 v[4:7], v9, {s(DB, 4)}, 0 offen\nL_tl_no:")
    A("s_cmp_lt_u32 s28, 5\ns_cbranch_scc0 L_not_yx")
    A("s_sub_u32 s30, s28, 1\ns_lshl_b32 s30, s30, 2\ns_and_b32 s31, s29, 3\ns_add_u32 s30, s30, s31\ns_lshr_b32 s31, s29, 2")
    go("s_cmp_lt_u32 s29, 12", "L_y")
    A("s_sub_u32 s31, s31, 3")
    go("s_cmp_lt_u32 s29, 24", "L_x1")
    A("s_sub_u32 s30, s28, 1\ns_mul_i32 s30, s30, 7\ns_add_u32 s30, s30, s29\ns_sub_u32 s30, s30, 24\ns_mov_b32 s31, 1")
    go("s_cmp_lt_u32 s29, 31", "L_f1")
    A("s_sub_u32 s30, s28, 1\ns_branch L_go_z")
    A("L_not_yx:")
    A("s_mov_b32 s30, s29\ns_mov_b32 s31, 0")
    A("s_cmp_eq_u32 s28, 7\ns_cbranch_scc0 L_not_f1")
    go("s_cmp_lt_u32 s29, 28", "L_f1")
    A("s_sub_u32 s30, s29, 16\ns_branch L_go_z")
    A("L_not_f1:")
    A("s_sub_u32 s31, s28, 5")
    go("s_cmp_lt_u32 s29, 14", "L_x2")
    A("s_sub_u32 s30, s29, 14")
    go("s_cmp_lt_u32 s29, 28", "L_f2")
    A("s_lshl_b32 s30, s31, 2\ns_add_u32 s30, s30, s29\ns_sub_u32 s30, s30, 24")
    A("L_go_z:\ns_branch L_z")
    A("L_exit:")
    A("s_endpgm")
    for hop, label in far:
        A(f"{hop}:\ns_branch {label}")
    A("L_timeout:")
    A(f"s_mov_b64 exec, -1\ns_add_u32 s29, {s(S_ID)}, 0x1000\nv_mov_b32 v1, s29\nv_mov_b32 v2, 44")
    A(f"buffer_store_dword v1, v2, {s(DB, 4)}, 0 offen\ns_endpgm")

    A("L_chain_a:")
    gen_chain_a(A, opts)
    A("L_chain_b:")
    gen_chain_b(A, opts)
    A("L_chain_f:")
    gen_chain_f(A, opts)
    for lab, fn in (("y", gen_work.gen_y), ("z", gen_work.gen_z), ("x1", gen_work.gen_x1), ("x2", gen_work.gen_x2), ("f1", gen_work.gen_f1), ("f2", gen_work.gen_f2)):
        A(f"L_{lab}:")
        if opts.get("no_" + lab):
            A("s_endpgm")
        else:
            fn(A, opts)
```

```python
import math
import struct
from asmlib import Asm, v, a, s
from layout import *


def f32(x):
    return hex(struct.unpack("<I", struct.pack("<f", x))[0])


def load_srd(A, dst, name, tmp):
    A(f"s_load_dwordx2 {s(tmp, 2)}, s[0:1], {KARG[name]}")

    def build():
        A(f"s_mov_b32 {s(dst)}, {s(tmp)}")
        A(f"s_and_b32 {s(dst + 1)}, {s(tmp + 1)}, 0xffff")
        A(f"s_mov_b32 {s(dst + 2)}, {SIZE[name]}")
        A(f"s_mov_b32 {s(dst + 3)}, 0x20000")
    return build


def xor_reduce(A, op, x, t):
    for sw in ("v_permlane16_swap_b32", "v_permlane32_swap_b32"):
        A(f"v_mov_b32 {v(t)}, {v(x)}")
        A(f"{sw} {v(x)}, {v(t)}")
        A(f"{op} {v(x)}, {v(x)}, {v(t)}")


def gen_prep(A, name):
    WS, R_, C_, X_, M0_ = 8, 12, 16, 20, 24
    A(f".p2align 8\n.type {name},@function\n{name}:")
    A("s_cmp_ge_u32 s2, 256\ns_cbranch_scc1 L_prep_end")
    b = [load_srd(A, WS, "ws", 40)]
    A(f"s_load_dwordx4 s[44:47], s[0:1], {KARG['wq']}")
    A(f"s_load_dwordx4 s[48:51], s[0:1], {KARG['wv']}")
    b.append(load_srd(A, X_, "x", 52))
    b.append(load_srd(A, M0_, "mem0", 54))
    A("v_lshrrev_b32 v1, 6, v0\nv_and_b32 v0, 63, v0")
    A("v_readfirstlane_b32 s3, v1")
    A("s_and_b32 s4, s2, 7\ns_lshr_b32 s5, s2, 3")
    A("v_and_b32 v1, 15, v0\nv_lshrrev_b32 v2, 4, v0")
    A("s_waitcnt lgkmcnt(0)")
    for f in b:
        f()
    A("s_cmp_ge_u32 s5, 28\ns_cbranch_scc1 L_prep_ln")
    A("s_mul_i32 s6, s5, 37\ns_lshr_b32 s6, s6, 8\ns_mul_i32 s7, s6, 7\ns_sub_u32 s7, s5, s7")
    A("s_lshr_b32 s28, s6, 1\ns_lshl_b32 s29, s4, 1\ns_add_u32 s28, s28, s29")
    A("s_and_b32 s29, s6, 1")
    A("s_cmp_eq_u32 s29, 0")
    A(f"s_cselect_b32 {s(R_)}, s44, s48\ns_cselect_b32 {s(R_ + 1)}, s45, s49")
    A(f"s_cselect_b32 {s(C_)}, s46, s50\ns_cselect_b32 {s(C_ + 1)}, s47, s51")
    for r in (R_, C_):
        A(f"s_and_b32 {s(r + 1)}, {s(r + 1)}, 0xffff\ns_mov_b32 {s(r + 2)}, {SIZE['wq']}\ns_mov_b32 {s(r + 3)}, 0x20000")
    A("v_lshrrev_b32 v3, 2, v1\nv_lshlrev_b32 v3, 3, v3\nv_and_b32 v4, 3, v1\nv_add_u32 v3, v3, v4")
    A("v_lshlrev_b32 v4, 13, v3\nv_lshl_add_u32 v4, v2, 4, v4\ns_lshl_b32 s30, s28, 9\nv_add_u32 v4, s30, v4")
    A("v_lshlrev_b32 v5, 4, v0")
    RR, CC, ACC, PK = 16, 144, 208, 240
    A("s_lshl_b32 s31, s7, 19")
    for rho in range(4):
        off = (32 * (rho // 2) + 4 * (rho % 2)) * 8192
        A(f"s_add_u32 {s(32 + rho)}, s31, {off}")
    A(f"s_mul_i32 s36, s28, {FRAG_H}\ns_mul_i32 s37, s29, {BF - AF}\ns_add_u32 s36, s36, s37")
    A(f"s_mul_i32 s37, s3, {7 * 14 * KB}\ns_add_u32 s36, s36, s37\ns_lshl_b32 s37, s7, 11\ns_add_u32 s36, s36, s37")
    if AF:
        A(f"s_add_u32 s36, s36, {AF}")

    def load_R():
        for es in range(8):
            for rho in range(4):
                A(f"buffer_load_dwordx4 {v(RR + (rho * 8 + es) * 4, 4)}, v4, {s(R_, 4)}, {s(32 + rho)} offen offset:{es * 64}")

    def mfmas(cbase, accb):
        for es in range(8):
            for rho in range(4):
                c = "0" if es == 0 else v(accb + rho * 4, 4)
                A(f"v_mfma_f32_16x16x32_bf16 {v(accb + rho * 4, 4)}, {v(RR + (rho * 8 + es) * 4, 4)}, {v(cbase + es * 4, 4)}, {c}")

    def epilogue(accb, i, scale):
        if scale:
            for r in range(16):
                A(f"v_mul_f32 {v(accb + r)}, s38, {v(accb + r)}")
        for r in range(8):
            A(f"v_cvt_pk_bf16_f32 {v(PK + r)}, {v(accb + 2 * r)}, {v(accb + 2 * r + 1)}")
        A(f"buffer_store_dwordx4 {v(PK, 4)}, v5, {s(WS, 4)}, s36 offen")
        A(f"buffer_store_dwordx4 {v(PK + 4, 4)}, v5, {s(WS, 4)}, s36 offen offset:1024")
        A(f"s_add_u32 s36, s36, {14 * KB}")

    A("s_cmp_eq_u32 s29, 0\ns_cbranch_scc0 L_prep_b")
    A(f"s_mov_b32 s38, {f32(math.log2(math.e) / 16.0)}")
    A("s_mul_i32 s39, s3, 7")

    def load_C(i):
        A(f"s_add_u32 s56, s39, {i}\ns_lshr_b32 s57, s56, 1\ns_lshl_b32 s57, s57, 18\ns_and_b32 s56, s56, 1\ns_lshl_b32 s56, s56, 15\ns_add_u32 s56, s56, s57")
        for es in range(8):
            A(f"buffer_load_dwordx4 {v(CC + (i % 2) * 32 + es * 4, 4)}, v4, {s(C_, 4)}, s56 offen offset:{es * 64}")

    load_C(0)
    load_R()
    load_C(1)
    for i in range(7):
        n = 8 if i == 0 else (10 if i < 6 else 2)
        A(f"s_waitcnt vmcnt({n})")
        mfmas(CC + (i % 2) * 32, ACC + (i % 2) * 16)
        if i + 2 < 7:
            load_C(i + 2)
        epilogue(ACC + (i % 2) * 16, i, True)
    A("s_endpgm")

    A("L_prep_b:")
    A("v_lshrrev_b32 v6, 2, v0\nv_mul_u32_u24 v6, 896, v6\nv_and_b32 v7, 3, v0\nv_lshl_add_u32 v6, v7, 4, v6")
    A("v_lshrrev_b32 v8, 2, v1\nv_lshlrev_b32 v8, 6, v8\nv_lshl_add_u32 v8, v7, 4, v8\nv_lshl_add_u32 v8, v2, 9, v8")
    A("s_lshl_b32 s58, s3, 15\nv_add_u32 v8, s58, v8")
    A("s_mul_i32 s39, s3, 7\ns_lshr_b32 s59, s39, 1\ns_lshl_b32 s59, s59, 6")
    A("s_mul_i32 s60, s28, 229376\ns_add_u32 s59, s59, s60")

    def dma_block(bk):
        A(f"s_add_u32 s60, s59, {bk * 64}\ns_add_u32 s61, s58, {(bk % 2) * 16384}")
        for j in range(16):
            A("s_mov_b32 m0, s61")
            A("s_add_u32 s61, s61, 1024")
            A(f"buffer_load_dwordx4 v6, {s(C_, 4)}, s60 offen lds")
            A(f"s_add_u32 s60, s60, {16 * 896}")

    def b_path(odd):
        tiles = [((i + odd) // 2, (i + odd) % 2) for i in range(7)]
        dma_block(0)
        load_R()
        A("s_waitcnt vmcnt(47)")
        dma_block(1)
        out = ["R"] * 32 + ["D1"] * 16
        for i, (bk, vv) in enumerate(tiles):
            first = i == 0 or tiles[i - 1][0] != bk
            if first:
                keep = 0
                for tag in reversed(out):
                    if tag == f"D{bk}" or tag == "R":
                        break
                    keep += 1
                A(f"s_waitcnt vmcnt({keep})")
                out = out[len(out) - keep:] if keep else []
            cb = CC + (i % 2) * 32
            for es in range(8):
                for x in range(2):
                    A(f"ds_read_b64_tr_b16 {v(cb + es * 4 + x * 2, 2)}, v8 offset:{(bk % 2) * 16384 + es * 2048 + x * 256 + vv * 8}")
            A("s_waitcnt lgkmcnt(0)")
            last = i == 6 or tiles[i + 1][0] != bk
            if last and bk + 2 < 4:
                dma_block(bk + 2)
                out += [f"D{bk + 2}"] * 16
            mfmas(cb, ACC + (i % 2) * 16)
            epilogue(ACC + (i % 2) * 16, i, False)
            out += ["S"] * 2
        A("s_endpgm")

    A("s_bitcmp1_b32 s3, 0\ns_cbranch_scc1 L_prep_b_odd")
    b_path(0)
    A("L_prep_b_odd:")
    b_path(1)

    A("L_prep_ln:")
    A("s_sub_u32 s5, s5, 28\ns_lshl_b32 s6, s4, 2\ns_add_u32 s6, s6, s5")
    A("s_lshl_b32 s7, s6, 2\ns_add_u32 s7, s7, s3")
    A("v_mul_u32_u24 v3, 896, v1\nv_lshl_add_u32 v3, v2, 4, v3")
    A(f"s_mul_i32 s28, s7, {16 * 896}")
    RAW, F = 4, 64
    for ks in range(14):
        A(f"buffer_load_dwordx4 {v(RAW + ks * 4, 4)}, v3, {s(X_, 4)}, s28 offen offset:{ks * 64}")
    A("s_lshl_b32 s29, s3, 10\nv_lshl_add_u32 v60, v0, 4, s29")
    for r in range(4):
        A(f"v_mov_b32 {v(180 + r)}, -1\nv_mov_b32 {v(184 + r)}, 0")
    A(f"s_mul_i32 s30, s6, 18\ns_mov_b32 s33, {P1_BASE}")
    for i in range(18):
        sk = A.new("pz")
        A(f"s_add_u32 s31, s30, {i}\ns_cmp_ge_u32 s31, {P1_BLOCKS + P2_BLOCKS}\ns_cbranch_scc1 {sk}")
        A(f"s_cmp_lt_u32 s31, {P1_BLOCKS}")
        A(f"s_cselect_b32 s32, s33, {P2_BASE - P1_BLOCKS * 4096}")
        A("s_lshl_b32 s31, s31, 12\ns_add_u32 s31, s31, s32")
        A(f"buffer_store_dwordx4 v[180:183], v60, {s(WS, 4)}, s31 offen")
        A(f"{sk}:")
    A(f"s_cmp_ge_u32 s6, {FL_BYTES // 4096}\ns_cbranch_scc1 L_prep_nofl")
    A(f"s_lshl_b32 s31, s6, 12\ns_add_u32 s31, s31, {FL}")
    A(f"buffer_store_dwordx4 v[184:187], v60, {s(WS, 4)}, s31 offen")
    A("L_prep_nofl:")
    A("s_cmp_eq_u32 s6, 31\ns_cbranch_scc0 L_prep_nomem")
    A("v_and_b32 v61, 7, v1\nv_mul_u32_u24 v61, 896, v61\nv_lshrrev_b32 v62, 3, v1\nv_lshl_add_u32 v61, v62, 2, v61\nv_lshl_add_u32 v61, v2, 5, v61")
    A("v_lshlrev_b32 v62, 4, v0")
    for rep in range(2):
        sk = A.new("m0")
        A(f"s_add_u32 s31, s3, {4 * rep}\ns_cmp_ge_u32 s31, 7\ns_cbranch_scc1 {sk}")
        A("s_lshl_b32 s32, s31, 7\ns_lshl_b32 s33, s31, 10")
        for j in range(4):
            A(f"buffer_load_dword {v(188 + j)}, v61, {s(M0_, 4)}, s32 offen offset:{j * 8}")
        A(f"s_add_u32 s34, s33, {CM}\ns_add_u32 s35, s33, {XM}")
        A("s_waitcnt vmcnt(0)")
        for j in range(4):
            A(f"v_min_u32 {v(188 + j)}, -2, {v(188 + j)}")
        A(f"buffer_store_dwordx4 v[188:191], v62, {s(WS, 4)}, s34 offen")
        A(f"buffer_store_dwordx4 v[188:191], v62, {s(WS, 4)}, s35 offen")
        A(f"{sk}:")
    A("L_prep_nomem:")
    A("s_waitcnt vmcnt(0)")
    A("s_mov_b32 s29, 0xffff0000")
    for r in range(56):
        A(f"v_lshlrev_b32 {v(F + 2 * r)}, 16, {v(RAW + r)}")
        A(f"v_and_b32 {v(F + 2 * r + 1)}, s29, {v(RAW + r)}")
    S0 = 192
    for k in range(4):
        A(f"v_add_f32 {v(S0 + k)}, {v(F + k)}, {v(F + 4 + k)}")
    for r in range(8, 112):
        A(f"v_add_f32 {v(S0 + r % 4)}, {v(S0 + r % 4)}, {v(F + r)}")
    A(f"v_add_f32 {v(S0)}, {v(S0)}, {v(S0 + 1)}\nv_add_f32 {v(S0 + 2)}, {v(S0 + 2)}, {v(S0 + 3)}\nv_add_f32 {v(S0)}, {v(S0)}, {v(S0 + 2)}")
    xor_reduce(A, "v_add_f32", S0, S0 + 1)
    A(f"v_mul_f32 {v(S0)}, {f32(1.0 / 448)}, {v(S0)}")
    for r in range(112):
        A(f"v_sub_f32 {v(F + r)}, {v(F + r)}, {v(S0)}")
    for k in range(4):
        A(f"v_mul_f32 {v(S0 + 4 + k)}, {v(F + k)}, {v(F + k)}")
    for r in range(4, 112):
        A(f"v_fmac_f32 {v(S0 + 4 + r % 4)}, {v(F + r)}, {v(F + r)}")
    A(f"v_add_f32 {v(S0 + 4)}, {v(S0 + 4)}, {v(S0 + 5)}\nv_add_f32 {v(S0 + 6)}, {v(S0 + 6)}, {v(S0 + 7)}\nv_add_f32 {v(S0 + 4)}, {v(S0 + 4)}, {v(S0 + 6)}")
    xor_reduce(A, "v_add_f32", S0 + 4, S0 + 5)
    A(f"v_mov_b32 {v(S0 + 5)}, {f32(1e-5)}")
    A(f"v_fmac_f32 {v(S0 + 5)}, {f32(1.0 / 448)}, {v(S0 + 4)}")
    A(f"v_rsq_f32 {v(S0 + 5)}, {v(S0 + 5)}")
    A(f"s_mul_i32 s28, s7, {14 * KB}\ns_add_u32 s28, s28, {XF}")
    A("v_lshlrev_b32 v62, 4, v0")
    A("v_lshrrev_b32 v61, 1, v2\nv_lshlrev_b32 v61, 9, v61\nv_lshrrev_b32 v63, 1, v1\nv_lshl_add_u32 v61, v63, 4, v61\nv_and_b32 v63, 1, v2\nv_lshl_add_u32 v61, v63, 3, v61")
    A("v_and_b32 v63, 1, v1\nv_mul_u32_u24 v63, 14336, v63\nv_add_u32 v61, v61, v63")
    A(f"s_lshr_b32 s30, s7, 1\ns_mul_i32 s30, s30, {28 * KB}\ns_and_b32 s31, s7, 1\ns_lshl_b32 s31, s31, 7\ns_add_u32 s30, s30, s31\ns_add_u32 s30, s30, {XS}")
    for ks in range(14):
        for r in range(8):
            A(f"v_mul_f32 {v(F + ks * 8 + r)}, {v(F + ks * 8 + r)}, {v(S0 + 5)}")
        for r in range(4):
            A(f"v_cvt_pk_bf16_f32 {v(RAW + ks * 4 + r)}, {v(F + ks * 8 + 2 * r)}, {v(F + ks * 8 + 2 * r + 1)}")
        A(f"buffer_store_dwordx4 {v(RAW + ks * 4, 4)}, v62, {s(WS, 4)}, s28 offen offset:{(ks % 4) * 1024}")
        Q = 200 + 4 * (ks % 2)
        for r, d in enumerate((0, 2, 1, 3)):
            A(f"v_mov_b32 {v(Q + r)}, {v(RAW + ks * 4 + d)}")
        A(f"buffer_store_dwordx2 {v(Q, 2)}, v61, {s(WS, 4)}, s30 offen offset:{(ks % 4) * 1024}")
        A(f"buffer_store_dwordx2 {v(Q + 2, 2)}, v61, {s(WS, 4)}, s30 offen offset:{(ks % 4) * 1024 + 256}")
        if ks % 4 == 3:
            A("s_add_u32 s28, s28, 4096\ns_add_u32 s30, s30, 4096")
    A("L_prep_end:")
    A("s_endpgm")
```

```python
from asmlib import v, a, s
from layout import *
from common import *
from gen_prep import f32, load_srd, xor_reduce
import math

MF = "v_mfma_f32_16x16x32_bf16"
Y_TEAMS, X1_TEAMS, X2_TEAMS, F_TEAMS = 3, 3, 2, 2


def set_flag(A, soff, t):
    A(f"v_mov_b32 {v(t)}, 1\nv_mov_b32 {v(t + 1)}, 0")
    A(f"buffer_store_dword {v(t)}, {v(t + 1)}, {s(WS, 4)}, {s(soff)} offen sc1")


def seg_dma(A, sx, sm0, cnt=None):
    for q, n in ((0, 4), (1, 3)):
        A(f"s_add_u32 s33, {s(sm0)}, {q * 4096}\ns_mov_b32 m0, s33\ns_add_u32 s34, {s(sx)}, {q * 4096}")
        for k in range(n):
            t = f"buffer_load_dwordx4 v3, {s(WS, 4)}, s34 offen offset:{k * 1024} lds"
            cnt.op(t, "x") if cnt else A(t)


def gen_y(A, opts):
    ACC, XOP, PK, XR, T = 4, 32, 48, 76, 78
    sS, sX, sM0, sY, sF = 44, 45, 46, 47, 48
    vm = Cnt(A, "vmcnt", 63)
    A(f"s_mov_b32 {s(sS)}, s31\ns_mul_i32 {s(sM0)}, {s(S_W)}, {7 * KB}")
    A(f"s_mul_i32 {s(sX)}, s31, {28 * KB}\ns_add_u32 {s(sX)}, {s(sX)}, {s(sM0)}\ns_add_u32 {s(sX)}, {s(sX)}, {XF}")
    seg_dma(A, sX, sM0, vm)
    A(f"s_mul_i32 s35, s30, {FRAG_H}\ns_mul_i32 s36, {s(S_W)}, {7 * 14 * KB}\ns_add_u32 s35, s35, s36\ns_add_u32 s35, s35, {BF}")
    load_weights(A, vm, 3, [(lambda i=i: A(f"s_add_u32 s37, s35, {i * 14 * KB}")) for i in range(7)], 37)
    A(f"s_lshl_b32 s33, s31, 4\ns_add_u32 s33, s33, s30\ns_mul_i32 {s(sY)}, s33, {28 * KB}\ns_add_u32 {s(sY)}, {s(sY)}, {YF}")
    A(f"s_mul_i32 s33, {s(S_W)}, {7 * KB}\ns_add_u32 {s(sY)}, {s(sY)}, s33")
    A(f"s_lshl_b32 {s(sF)}, s31, 7\ns_lshl_b32 s33, s30, 2\ns_add_u32 {s(sF)}, {s(sF)}, s33\ns_add_u32 {s(sF)}, {s(sF)}, {FY}")
    A(f"v_mov_b32 {v(XR)}, v3")
    top, nodma, noflag, done = (A.new(x) for x in ("y_top", "y_nodma", "y_nofl", "y_done"))
    A("s_waitcnt vmcnt(0)\ns_barrier")
    mark(A, opts, 1)
    A(f"{top}:")
    A(f"s_add_u32 s33, {s(sS)}, {Y_TEAMS}\ns_cmp_ge_u32 s33, 63\ns_cbranch_scc1 {nodma}" if False else
      f"s_add_u32 s33, {s(sS)}, {Y_TEAMS}\ns_cmp_ge_u32 s33, 64\ns_cbranch_scc1 {nodma}")
    A(f"s_add_u32 {s(sX)}, {s(sX)}, {Y_TEAMS * 28 * KB}\ns_xor_b32 {s(sM0)}, {s(sM0)}, 0x8000")
    seg_dma(A, sX, sM0)
    A(f"{nodma}:")
    lg = Cnt(A, "lgkmcnt", 15)
    rd = lambda n: lg.op(f"ds_read_b128 {v(XOP + 4 * (n % 4), 4)}, {v(XR)} offset:{n * KB}", f"x{n}")
    for n in range(3):
        rd(n)
    for tt in range(2):
        for ks in range(14):
            n = tt * 14 + ks
            if n + 3 < 28:
                rd(n + 3)
            lg.wait(f"x{n}")
            for i in range(7):
                c = "0" if ks == 0 else v(ACC + 4 * i, 4)
                A(f"{MF} {v(ACC + 4 * i, 4)}, {v(XOP + 4 * (n % 4), 4)}, {wreg((i * 14 + ks) * 4, 4)}, {c}")
        for i in range(7):
            for b in range(2):
                A(f"v_cvt_pk_bf16_f32 {v(PK + 4 * i + 2 * tt + b)}, {v(ACC + 4 * i + 2 * b)}, {v(ACC + 4 * i + 2 * b + 1)}")
    A(f"s_add_u32 s33, {s(sY)}, 4096")
    for i in range(7):
        A(f"buffer_store_dwordx4 {v(PK + 4 * i, 4)}, v3, {s(WS, 4)}, {s(sY) if i < 4 else 's33'} offen offset:{(i % 4) * 1024} sc1")
    A(f"v_xor_b32 {v(XR)}, 0x8000, {v(XR)}")
    A("s_waitcnt vmcnt(0)\ns_barrier")
    A(f"s_cmp_eq_u32 {s(S_W)}, 0\ns_cbranch_scc0 {noflag}")
    set_flag(A, sF, T)
    A(f"{noflag}:")
    A(f"s_add_u32 {s(sS)}, {s(sS)}, {Y_TEAMS}\ns_cmp_ge_u32 {s(sS)}, 64\ns_cbranch_scc1 {done}")
    A(f"s_add_u32 {s(sY)}, {s(sY)}, {Y_TEAMS * 16 * 28 * KB}\ns_add_u32 {s(sF)}, {s(sF)}, {Y_TEAMS * 128}\ns_branch {top}")
    A(f"{done}:")
    flush_stamps(A, opts)
    A("s_endpgm")


def gen_z(A, opts):
    from gen_chain import SMF, gather_addr, gather_mem, idx_reg, zero
    MEM, ACC, G0, G1, PK, IDX, GA0, GA1, ZA, T = 4, 32, 60, 68, 76, 90, 91, 92, 93, 94
    sS, sXM, sZ, sF = 44, 45, 46, 47
    vm = Cnt(A, "vmcnt", 63)
    A(f"s_mul_i32 s35, s30, {FRAG_H}\ns_mul_i32 s36, {s(S_W)}, {7 * 14 * KB}\ns_add_u32 s35, s35, s36\ns_add_u32 s35, s35, {BF}")
    load_weights(A, vm, 3, [(lambda i=i: A(f"s_add_u32 s37, s35, {i * 14 * KB}")) for i in range(7)], 37)
    gather_addr(A, GA0, GA1)
    idx_reg(A, IDX)
    A(f"v_lshlrev_b32 {v(ZA)}, 3, v0")
    A(f"s_mov_b32 {s(sS)}, 0\ns_mov_b32 {s(sXM)}, {XM}\ns_mul_i32 {s(sZ)}, s30, 14336\ns_mul_i32 s33, {s(S_W)}, 3584\ns_add_u32 {s(sZ)}, {s(sZ)}, s33\ns_add_u32 {s(sZ)}, {s(sZ)}, {ZF}")
    A(f"s_lshl_b32 {s(sF)}, s30, 2\ns_add_u32 {s(sF)}, {s(sF)}, {FZ - 128}")
    top, noflag = A.new("z_top"), A.new("z_nofl")
    mark(A, opts, 1)
    A(f"{top}:")
    gather_mem(A, {}, G0, G1, GA0, GA1, sXM, T, 0, zero(ACC, 28))
    lg = Cnt(A, "lgkmcnt", 15)
    for kk in range(7):
        lg.op(f"ds_read_b128 {v(MEM + 4 * kk, 4)}, v3 offset:{kk * 1024}", f"m{kk}")
    A(f"s_cmp_eq_u32 {s(S_W)}, 0\ns_cbranch_scc0 {noflag}\ns_cmp_eq_u32 {s(sS)}, 0\ns_cbranch_scc1 {noflag}")
    set_flag(A, sF, T)
    A(f"{noflag}:")
    for i in range(7):
        for kk in range(7):
            if i == 0:
                lg.wait(f"m{kk}")
            A(f"{SMF} {v(ACC + 4 * i, 4)}, {v(MEM + 4 * kk, 4)}, {wreg((i * 7 + kk) * 8, 8)}, {v(IDX)}")
    A("s_barrier")
    for i in range(7):
        for b in range(2):
            A(f"v_cvt_pk_bf16_f32 {v(PK + 2 * i + b)}, {v(ACC + 4 * i + 2 * b)}, {v(ACC + 4 * i + 2 * b + 1)}")
        A(f"buffer_store_dwordx2 {v(PK + 2 * i, 2)}, {v(ZA)}, {s(WS, 4)}, {s(sZ)} offen offset:{i * 512} sc1")
    A(f"s_add_u32 {s(sS)}, {s(sS)}, 1\ns_add_u32 {s(sXM)}, {s(sXM)}, 8192\ns_add_u32 {s(sZ)}, {s(sZ)}, {16 * 14336}\ns_add_u32 {s(sF)}, {s(sF)}, 128")
    A(f"s_cmp_lt_u32 {s(sS)}, 64\ns_cbranch_scc1 {top}")
    A("s_waitcnt vmcnt(0)\ns_barrier")
    set_flag(A, sF, T)
    flush_stamps(A, opts)
    A("s_endpgm")


def wait_flags(A, fv, fa, soff, off=0):
    lp, ok = A.new("wf"), A.new("wfok")
    A(f"{lp}:")
    A(f"buffer_load_dword {v(fv)}, {v(fa)}, {s(WS, 4)}, {s(soff)} offen offset:{off} sc1")
    poll_guard(A)
    A(f"s_waitcnt vmcnt(0)\nv_cmp_eq_u32 vcc, 0, {v(fv)}\ns_cbranch_vccz {ok}\ns_sleep 2\ns_branch {lp}\n{ok}:")


def unpack(A, dst, src, n, smask):
    for r in range(n):
        A(f"v_lshlrev_b32 {v(dst + 2 * r)}, 16, {v(src + r)}\nv_and_b32 {v(dst + 2 * r + 1)}, {s(smask)}, {v(src + r)}")


def gen_x1(A, opts):
    from gen_chain import gather_addr, mem_loads, check8
    ACC, XOP, TOP, G, ZERO = 4, 32, 48, 80, 88
    GA0, GA1, XR, KX, KX3, MK, MK2, MK3, SW, SR, PA, NEG, T = range(89, 102)
    SXB, SMB, XB = 8192, 20480, 32768
    sS, sX, sM0, sXM, sP, sF, sODD, sP0 = 44, 45, 46, 47, 48, 49, 50, 51
    MASK, ODDM = 56, 72
    vm = Cnt(A, "vmcnt", 63)
    A(f"s_mov_b32 {s(sS)}, s31\ns_mul_i32 s35, {s(S_W)}, {7 * KB}\ns_add_u32 {s(sM0)}, s35, {XB}")
    A(f"s_mul_i32 {s(sX)}, s31, {28 * KB}\ns_add_u32 {s(sX)}, {s(sX)}, s35\ns_add_u32 {s(sX)}, {s(sX)}, {XF}")
    seg_dma(A, sX, sM0, vm)
    A(f"s_and_b32 {s(sODD)}, {s(S_W)}, 1\ns_mul_i32 s33, {s(S_W)}, 7\ns_add_u32 {s(sP0)}, s33, {s(sODD)}\ns_lshr_b32 {s(sP0)}, {s(sP0)}, 1")
    A(f"s_mul_i32 s34, s30, {FRAG_H}\ns_mul_i32 s33, {s(S_W)}, {7 * 14 * KB}\ns_add_u32 s34, s34, s33")
    if AF:
        A(f"s_add_u32 s34, s34, {AF}")
    A(f"s_mul_i32 s35, {s(sODD)}, {14 * KB}\ns_add_u32 s35, s35, s34\ns_add_u32 s36, s34, {6 * 14 * KB}\ns_cmp_eq_u32 {s(sODD)}, 0\ns_cselect_b32 s36, s36, s34")
    A(f"s_cselect_b64 {s(ODDM, 2)}, 0, -1")
    tiles = [(lambda i=i: A(f"s_add_u32 s37, s35, {i * 14 * KB}")) for i in range(6)] + [lambda: A("s_mov_b32 s37, s36")]
    load_weights(A, vm, 3, tiles, 37)
    gather_addr(A, GA0, GA1)
    A(f"v_mov_b32 {v(ZERO)}, 0\nv_mov_b32 {v(NEG)}, {f32(-1.0e9 * math.log2(math.e))}\nv_add_u32 {v(XR)}, {XB}, v3")
    A(f"s_lshl_b32 s33, {s(sP0)}, 10\nv_add_u32 {v(KX)}, s33, {v(XR)}\ns_lshl_b32 s34, {s(sODD)}, 12\ns_sub_u32 s34, 3072, s34\nv_add_u32 {v(KX3)}, s34, {v(KX)}")
    A(f"v_and_b32 v4, 7, v1\nv_lshlrev_b32 v4, 4, v4\nv_lshrrev_b32 v5, 1, v2\nv_lshl_add_u32 v4, v5, 8, v4\nv_and_b32 v5, 1, v2\nv_lshl_add_u32 v4, v5, 3, v4")
    A(f"s_lshl_b32 s33, {s(sP0)}, 9\nv_add_u32 {v(MK)}, s33, v4\nv_add_u32 {v(MK2)}, 1024, {v(MK)}")
    A(f"s_lshl_b32 s34, {s(sODD)}, 11\ns_sub_u32 s34, 1536, s34\nv_add_u32 {v(MK3)}, s34, {v(MK)}")
    A(f"s_lshl_b32 s33, {s(S_W)}, 10\nv_add_u32 {v(SW)}, s33, v3\ns_lshl_b32 s33, {s(sODD)}, 12\nv_add_u32 {v(SR)}, s33, v3\nv_lshlrev_b32 {v(PA)}, 3, v0")
    for q in range(4):
        A(f"v_lshl_add_u32 v4, v2, 2, {q}\nv_cmp_le_u32 vcc, v4, v1")
        A(f"s_or_b64 {s(MASK + 2 * q, 2)}, vcc, {s(ODDM, 2)}\ns_and_b64 {s(MASK + 8 + 2 * q, 2)}, vcc, {s(ODDM, 2)}")
    A(f"s_lshl_b32 {s(sXM)}, s31, 13\ns_add_u32 {s(sXM)}, {s(sXM)}, {XM}")
    A(f"s_lshl_b32 s33, s31, 4\ns_add_u32 s33, s33, s30\ns_lshl_b32 s33, s33, 1\ns_add_u32 s33, s33, {s(sODD)}\ns_mul_i32 {s(sP)}, s33, 1536\ns_add_u32 {s(sP)}, {s(sP)}, {PF}")
    A(f"s_lshl_b32 s33, s30, 1\ns_add_u32 s33, s33, {s(sODD)}\ns_lshl_b32 s33, s33, 2\ns_lshl_b32 {s(sF)}, s31, 7\ns_add_u32 {s(sF)}, {s(sF)}, s33\ns_add_u32 {s(sF)}, {s(sF)}, {FP}")
    top, nodma, nxt, lp, ok = (A.new("x1_" + x) for x in ("top", "nodma", "next", "poll", "ok"))
    mark(A, opts, 1)
    A(f"{top}:")
    A("s_waitcnt vmcnt(0)\ns_barrier")
    A(f"s_add_u32 s33, {s(sS)}, {X1_TEAMS}\ns_cmp_ge_u32 s33, 64\ns_cbranch_scc1 {nodma}")
    A(f"s_add_u32 {s(sX)}, {s(sX)}, {X1_TEAMS * 28 * KB}\ns_xor_b32 {s(sM0)}, {s(sM0)}, 0x18000")
    seg_dma(A, sX, sM0)
    A(f"{nodma}:")
    lg = Cnt(A, "lgkmcnt", 15)
    rd = lambda n: lg.op(f"ds_read_b128 {v(XOP + 4 * (n % 4), 4)}, {v(XR)} offset:{n * KB}", f"x{n}")
    for n in range(3):
        rd(n)
    for tt in range(2):
        for ks in range(14):
            n = tt * 14 + ks
            if n + 3 < 28:
                rd(n + 3)
            lg.wait(f"x{n}")
            for i in range(7):
                c = "0" if ks == 0 else v(ACC + 4 * i, 4)
                A(f"{MF} {v(ACC + 4 * i, 4)}, {wreg((i * 14 + ks) * 4, 4)}, {v(XOP + 4 * (n % 4), 4)}, {c}")
        for i in range(6):
            for b in range(2):
                A(f"v_cvt_pk_bf16_f32 {v(TOP + 16 * tt + 2 * i + b)}, {v(ACC + 4 * i + 2 * b)}, {v(ACC + 4 * i + 2 * b + 1)}")
        for b in range(2):
            A(f"v_cvt_pk_bf16_f32 {v(T + b)}, {v(ACC + 24 + 2 * b)}, {v(ACC + 25 + 2 * b)}")
        for b in range(2):
            A(f"v_cndmask_b32 {v(TOP + 16 * tt + 12 + b)}, {v(T + b)}, {v(ZERO)}, {s(ODDM, 2)}")
            A(f"v_cndmask_b32 {v(TOP + 16 * tt + 14 + b)}, {v(ZERO)}, {v(T + b)}, {s(ODDM, 2)}")
    for half in range(2):
        for b in (2 * half, 2 * half + 1):
            for kt in range(2):
                reg, o = (KX3, 0) if b == 3 else (KX, b * KB)
                lg.op(f"ds_read_b128 {v(XOP + 8 * (b % 2) + 4 * kt, 4)}, {v(reg)} offset:{o + kt * 14 * KB}", f"k{b}")
        for b in (2 * half, 2 * half + 1):
            lg.wait(f"k{b}")
            for j, (kt, tt) in enumerate(((0, 0), (0, 1), (1, 1))):
                c = "0" if b == 0 else v(ACC + 4 * j, 4)
                A(f"{MF} {v(ACC + 4 * j, 4)}, {v(XOP + 8 * (b % 2) + 4 * kt, 4)}, {v(TOP + 16 * tt + 4 * b, 4)}, {c}")
    for r in (XR, KX, KX3):
        A(f"v_xor_b32 {v(r)}, 0x18000, {v(r)}")
    for j in range(3):
        A(f"ds_write_b128 {v(SW)}, {v(ACC + 4 * j, 4)} offset:{SXB + j * 4096}")
    A(f"{lp}:")
    mem_loads(A, G, GA0, GA1, sXM)
    poll_guard(A)
    A("s_waitcnt vmcnt(0)")
    A(f"ds_write_b128 {v(GA0)}, {v(G, 4)}\nds_write_b128 {v(GA1)}, {v(G + 4, 4)}")
    check8(A, G, T)
    A(f"s_cbranch_vccz {ok}\ns_sleep 2\ns_branch {lp}\n{ok}:")
    A("s_waitcnt lgkmcnt(0)\ns_barrier")
    lg.q = []
    for b in range(4):
        reg, o = [(MK, 0), (MK, 128), (MK2, 0), (MK3, 0)][b]
        for x in range(2):
            lg.op(f"ds_read2_b32 {v(XOP + 4 * b + 2 * x, 2)}, {v(reg)} offset0:{o + x} offset1:{o + x + 32}", f"m{b}")
    for b in range(4):
        lg.wait(f"m{b}")
        for tt in range(2):
            c = "0" if b == 0 else v(ACC + 4 * tt, 4)
            A(f"{MF} {v(ACC + 4 * tt, 4)}, {v(XOP + 4 * b, 4)}, {v(TOP + 16 * tt + 4 * b, 4)}, {c}")
    for tt in range(2):
        A(f"ds_write_b128 {v(SW)}, {v(ACC + 4 * tt, 4)} offset:{SMB + tt * 4096}")
    A(f"s_cmp_ge_u32 {s(S_W)}, 2")
    A(f"s_waitcnt lgkmcnt(0)\ns_barrier\ns_cbranch_scc1 {nxt}")
    R, S = TOP, ACC
    for k, (reg, base) in enumerate(((SR, SMB), (SR, SXB), (3, SXB + 8192))):
        for w in range(4):
            A(f"ds_read_b128 {v((XOP if k == 2 else R + 16 * k) + 4 * w, 4)}, {v(reg)} offset:{base + w * KB}")
    for k, d in enumerate((8, 0, 4)):
        b = XOP if k == 2 else R + 16 * k
        A(f"s_waitcnt lgkmcnt({8 - 4 * k})")
        for q in range(0, 4, 2):
            A(f"v_pk_add_f32 {v(b + q, 2)}, {v(b + q, 2)}, {v(b + 4 + q, 2)}\nv_pk_add_f32 {v(b + 8 + q, 2)}, {v(b + 8 + q, 2)}, {v(b + 12 + q, 2)}")
        for q in range(0, 4, 2):
            A(f"v_pk_add_f32 {v(S + d + q, 2)}, {v(b + q, 2)}, {v(b + 8 + q, 2)}")
    for r in range(8):
        A(f"v_cndmask_b32 {v(S + r)}, {v(NEG)}, {v(S + r)}, {s(MASK + 2 * r, 2)}")
    mx, sm = T, T + 1
    A(f"v_max3_f32 {v(mx)}, {v(S)}, {v(S + 1)}, {v(S + 2)}")
    for r in range(3, 11, 2):
        A(f"v_max3_f32 {v(mx)}, {v(mx)}, {v(S + r)}, {v(S + r + 1)}")
    A(f"v_max_f32 {v(mx)}, {v(mx)}, {v(S + 11)}")
    xor_reduce(A, "v_max_f32", mx, T + 2)
    for r in range(12):
        A(f"v_sub_f32 {v(S + r)}, {v(S + r)}, {v(mx)}")
    for r in range(12):
        A(f"v_exp_f32 {v(S + r)}, {v(S + r)}")
    A(f"v_add_f32 {v(sm)}, {v(S + 8)}, {v(S + 9)}\nv_add_f32 {v(T + 2)}, {v(S + 10)}, {v(S + 11)}\nv_add_f32 {v(sm)}, {v(sm)}, {v(T + 2)}\nv_mul_f32 {v(sm)}, 0.5, {v(sm)}")
    for r in range(8):
        A(f"v_add_f32 {v(sm)}, {v(sm)}, {v(S + r)}")
    xor_reduce(A, "v_add_f32", sm, T + 2)
    A(f"v_rcp_f32 {v(sm)}, {v(sm)}")
    for r in range(12):
        A(f"v_mul_f32 {v(S + r)}, {v(S + r)}, {v(sm)}")
    for r in range(6):
        A(f"v_cvt_pk_bf16_f32 {v(G + r)}, {v(S + 2 * r)}, {v(S + 2 * r + 1)}")
    A(f"buffer_store_dwordx4 {v(G, 4)}, v3, {s(WS, 4)}, {s(sP)} offen sc1")
    A(f"buffer_store_dwordx2 {v(G + 4, 2)}, {v(PA)}, {s(WS, 4)}, {s(sP)} offen offset:1024 sc1")
    A("s_waitcnt vmcnt(0)")
    set_flag(A, sF, T)
    A(f"{nxt}:")
    A(f"s_add_u32 {s(sS)}, {s(sS)}, {X1_TEAMS}\ns_add_u32 {s(sXM)}, {s(sXM)}, {X1_TEAMS * 8192}\ns_add_u32 {s(sP)}, {s(sP)}, {X1_TEAMS * 32 * 1536}\ns_add_u32 {s(sF)}, {s(sF)}, {X1_TEAMS * 128}")
    A(f"s_cmp_lt_u32 {s(sS)}, 64\ns_cbranch_scc1 {top}")
    flush_stamps(A, opts)
    A("s_endpgm")


def reduce_tiles(A, R, out, rr, base):
    for vv in range(2):
        for w in range(4):
            A(f"ds_read_b128 {v(R + 16 * vv + 4 * w, 4)}, {v(rr)} offset:{base + w * 4096 + vv * KB}")
    for vv in range(2):
        b = R + 16 * vv
        A(f"s_waitcnt lgkmcnt({4 - 4 * vv})")
        for q in (0, 2):
            A(f"v_pk_add_f32 {v(b + q, 2)}, {v(b + q, 2)}, {v(b + 4 + q, 2)}\nv_pk_add_f32 {v(b + 8 + q, 2)}, {v(b + 8 + q, 2)}, {v(b + 12 + q, 2)}")
        for q in (0, 2):
            A(f"v_pk_add_f32 {v(out + 4 * vv + q, 2)}, {v(b + q, 2)}, {v(b + 8 + q, 2)}")


def gen_x2(A, opts):
    Y, PX, PM, Z, ACC, XV, R, O = 4, 36, 68, 84, 100, 116, 120, 152
    FA1, FA2, FV, L8, RW, RR, XA, SA, T = range(160, 169)
    X_ = 16
    sS, sY, sP, sZ, sFL, sXO, sH, sST, sF, sMASK = range(44, 54)
    b = load_srd(A, X_, "x", 40)
    A(f"s_mov_b32 {s(sS)}, s31\ns_mov_b32 {s(sMASK)}, 0xffff0000\ns_and_b32 s36, {s(S_W)}, 1")
    A(f"v_lshlrev_b32 {v(FA1)}, 2, v1\nv_lshlrev_b32 {v(L8)}, 3, v0")
    A(f"v_and_b32 v4, 31, v0\nv_lshlrev_b32 v4, 2, v4\nv_add_u32 v4, {FP - FL}, v4\nv_add_u32 v5, {FZ - FL}, {v(FA1)}\nv_cmp_gt_u32 vcc, 32, v0\nv_cndmask_b32 {v(FA2)}, v5, v4, vcc")
    A(f"s_lshl_b32 s33, {s(S_W)}, 12\nv_add_u32 {v(RW)}, s33, v3\ns_lshl_b32 s33, s36, 11\nv_add_u32 {v(RR)}, s33, v3")
    A(f"v_mul_u32_u24 v4, 896, v1\nv_lshl_add_u32 {v(XA)}, v2, 4, v4")
    A(f"v_lshlrev_b32 v4, 3, v1\nv_mov_b32 v5, {OOB}\nv_cmp_gt_u32 vcc, 16, v0\nv_cndmask_b32 {v(SA)}, v5, v4, vcc")
    A(f"s_lshl_b32 s33, s31, 4\ns_lshl_b32 s34, {s(S_W)}, 2\ns_add_u32 s33, s33, s34")
    A(f"s_mul_i32 {s(sY)}, s33, {28 * KB}\ns_lshl_b32 s34, s30, 11\ns_add_u32 {s(sY)}, {s(sY)}, s34\ns_add_u32 {s(sY)}, {s(sY)}, {YF}")
    A(f"s_mul_i32 {s(sP)}, s33, 3072\ns_add_u32 {s(sP)}, {s(sP)}, {PF}")
    A(f"s_mul_i32 {s(sZ)}, s33, 14336\ns_lshl_b32 s34, s30, 10\ns_add_u32 {s(sZ)}, {s(sZ)}, s34\ns_add_u32 {s(sZ)}, {s(sZ)}, {ZF}")
    A(f"s_lshl_b32 {s(sFL)}, s31, 7\ns_add_u32 {s(sFL)}, {s(sFL)}, {FL}")
    A(f"s_lshl_b32 s33, s31, 1\ns_add_u32 s33, s33, s36")
    A(f"s_mul_i32 {s(sXO)}, s33, {16 * 896}\ns_lshl_b32 s34, s30, 6\ns_add_u32 {s(sXO)}, {s(sXO)}, s34")
    A(f"s_mul_i32 s33, s33, 14\ns_add_u32 s33, s33, s30\ns_lshl_b32 {s(sH)}, s33, 10\ns_add_u32 {s(sH)}, {s(sH)}, {HF}\ns_lshl_b32 {s(sST)}, s33, 7\ns_add_u32 {s(sST)}, {s(sST)}, {ST}")
    A(f"s_lshl_b32 s33, s30, 1\ns_add_u32 s33, s33, s36\ns_lshl_b32 s33, s33, 2\ns_add_u32 {s(sF)}, {s(sFL)}, s33\ns_add_u32 {s(sF)}, {s(sF)}, {FH - FL}")
    A("s_waitcnt lgkmcnt(0)")
    b()
    top, nxt = A.new("x2_top"), A.new("x2_next")
    mark(A, opts, 1)
    A(f"{top}:")
    wait_flags(A, FV, FA1, sFL)
    for hh in range(4):
        A(f"s_add_u32 s33, {s(sY)}, {hh * 28 * KB}")
        for vv in range(2):
            A(f"buffer_load_dwordx4 {v(Y + 8 * hh + 4 * vv, 4)}, v3, {s(WS, 4)}, s33 offen offset:{vv * KB} sc1")
    A(f"buffer_load_dwordx4 {v(XV, 4)}, {v(XA)}, {s(X_, 4)}, {s(sXO)} offen")
    wait_flags(A, FV, FA2, sFL)
    vm = Cnt(A, "vmcnt", 63)
    for hh in range(4):
        A(f"s_add_u32 s33, {s(sP)}, {hh * 3072}\ns_add_u32 s34, {s(sZ)}, {hh * 14336}")
        for tt in range(2):
            vm.op(f"buffer_load_dwordx4 {v(PX + 8 * hh + 4 * tt, 4)}, v3, {s(WS, 4)}, s33 offen offset:{tt * 1536} sc1", f"x{hh}")
        for tt in range(2):
            vm.op(f"buffer_load_dwordx2 {v(PM + 8 * (hh // 2) + 4 * tt + 2 * (hh % 2), 2)}, {v(L8)}, {s(WS, 4)}, s33 offen offset:{tt * 1536 + 1024} sc1", f"m{hh // 2}")
        for vv in range(2):
            vm.op(f"buffer_load_dwordx2 {v(Z + 8 * (hh // 2) + 4 * vv + 2 * (hh % 2), 2)}, {v(L8)}, {s(WS, 4)}, s34 offen offset:{vv * 512} sc1", f"m{hh // 2}")
    A("s_barrier")
    for hh in range(4):
        vm.wait(f"x{hh}")
        for tt in range(2):
            for vv in range(2):
                d = v(ACC + 8 * tt + 4 * vv, 4)
                A(f"{MF} {d}, {v(Y + 8 * hh + 4 * vv, 4)}, {v(PX + 8 * hh + 4 * tt, 4)}, {'0' if hh == 0 else d}")
        if hh % 2:
            vm.wait(f"m{hh // 2}")
            for tt in range(2):
                for vv in range(2):
                    d = v(ACC + 8 * tt + 4 * vv, 4)
                    A(f"{MF} {d}, {v(Z + 8 * (hh // 2) + 4 * vv, 4)}, {v(PM + 8 * (hh // 2) + 4 * tt, 4)}, {d}")
    for k in range(4):
        A(f"ds_write_b128 {v(RW)}, {v(ACC + 4 * k, 4)} offset:{k * KB}")
    A(f"s_cmp_ge_u32 {s(S_W)}, 2\ns_waitcnt lgkmcnt(0)\ns_barrier\ns_cbranch_scc1 {nxt}")
    reduce_tiles(A, R, O, RR, 0)
    for r in range(4):
        A(f"v_cvt_pk_bf16_f32 {v(R + r)}, {v(O + 2 * r)}, {v(O + 2 * r + 1)}")
    unpack(A, O, R, 4, sMASK)
    unpack(A, R + 8, XV, 4, sMASK)
    for r in range(8):
        A(f"v_add_f32 {v(O + r)}, {v(O + r)}, {v(R + 8 + r)}")
    for r in range(4):
        A(f"v_cvt_pk_bf16_f32 {v(R + r)}, {v(O + 2 * r)}, {v(O + 2 * r + 1)}")
    A(f"buffer_store_dwordx4 {v(R, 4)}, v3, {s(WS, 4)}, {s(sH)} offen sc1")
    unpack(A, O, R, 4, sMASK)
    M = R + 8
    A(f"v_add_f32 {v(M)}, {v(O)}, {v(O + 1)}")
    for r in range(2, 8):
        A(f"v_add_f32 {v(M)}, {v(M)}, {v(O + r)}")
    xor_reduce(A, "v_add_f32", M, T)
    A(f"v_mul_f32 {v(M)}, {f32(1.0 / 32)}, {v(M)}")
    for r in range(8):
        A(f"v_sub_f32 {v(O + r)}, {v(O + r)}, {v(M)}")
    A(f"v_mul_f32 {v(M + 1)}, {v(O)}, {v(O)}")
    for r in range(1, 8):
        A(f"v_fmac_f32 {v(M + 1)}, {v(O + r)}, {v(O + r)}")
    xor_reduce(A, "v_add_f32", M + 1, T)
    A(f"buffer_store_dwordx2 {v(M, 2)}, {v(SA)}, {s(WS, 4)}, {s(sST)} offen sc1")
    A("s_waitcnt vmcnt(0)")
    set_flag(A, sF, T)
    A(f"{nxt}:")
    for r, step in ((sS, 1), (sY, 16 * 28 * KB), (sP, 16 * 3072), (sZ, 16 * 14336), (sFL, 128), (sXO, 32 * 896), (sH, 28 * KB), (sST, 28 * 128), (sF, 128)):
        A(f"s_add_u32 {s(r)}, {s(r)}, {X2_TEAMS * step}")
    A(f"s_cmp_lt_u32 {s(sS)}, 64\ns_cbranch_scc1 {top}")
    flush_stamps(A, opts)
    A("s_endpgm")


def tr_addr(A, dst, sbase):
    A(f"v_lshrrev_b32 v4, 2, v1\nv_lshlrev_b32 v4, 6, v4\nv_and_b32 v5, 3, v0\nv_lshl_add_u32 v4, v5, 4, v4\nv_lshl_add_u32 v4, v2, 9, v4\nv_add_u32 {v(dst)}, {s(sbase)}, v4")


def row_addr(A, dst, stride):
    A(f"v_lshrrev_b32 v4, 2, v0\nv_mov_b32 v6, {stride}\nv_mul_lo_u32 v4, v4, v6\nv_and_b32 v5, 3, v0\nv_lshl_add_u32 {v(dst)}, v5, 4, v4")


def gen_f1(A, opts):
    H, ACC, CS, B1, SV, U, PK = 4, 60, 68, 76, 84, 92, 100
    FA, FV, SA, RA, TR, T = range(108, 114)
    W_, B_ = 16, 20
    sS, sH, sST, sG, sFH, sF, sMASK, sP = range(44, 52)
    b = [load_srd(A, W_, "w1", 40), load_srd(A, B_, "b1", 42)]
    A(f"s_lshr_b32 s34, {s(S_W)}, 1\ns_and_b32 s35, {s(S_W)}, 1\ns_lshl_b32 {s(sP)}, s30, 1\ns_add_u32 {s(sP)}, {s(sP)}, s34")
    row_addr(A, RA, 3584)
    A(f"s_mul_i32 s36, s34, {28 * KB}")
    tr_addr(A, TR, 36)
    A(f"s_mul_i32 s37, s35, {14 * KB}\ns_add_u32 s36, s36, s37\ns_mul_i32 s37, s35, {224 * 3584}\ns_lshl_b32 s38, {s(sP)}, 6\ns_add_u32 s37, s37, s38")
    A(f"v_lshlrev_b32 v7, 4, v2\ns_mov_b32 {s(sMASK)}, 0xffff0000")
    A("s_waitcnt lgkmcnt(0)")
    for f in b:
        f()
    for j in range(14):
        A(f"s_mov_b32 m0, s36\ns_add_u32 s36, s36, 1024\nbuffer_load_dwordx4 {v(RA)}, {s(W_, 4)}, s37 offen lds\ns_add_u32 s37, s37, {16 * 3584}")
    A(f"buffer_load_dwordx4 {v(PK, 4)}, v7, {s(B_, 4)}, s38 offen")
    A(f"s_mov_b32 {s(sS)}, s31\ns_lshl_b32 s33, s31, 1\ns_add_u32 s33, s33, s35")
    A(f"s_mul_i32 {s(sH)}, s33, {14 * KB}\ns_add_u32 {s(sH)}, {s(sH)}, {HF}\ns_mul_i32 {s(sST)}, s33, {14 * 128}\ns_add_u32 {s(sST)}, {s(sST)}, {ST}")
    A(f"s_mul_i32 s34, s33, 56\ns_add_u32 s34, s34, {s(sP)}\ns_lshl_b32 {s(sG)}, s34, 10\ns_add_u32 {s(sG)}, {s(sG)}, {GF}")
    A(f"s_lshl_b32 {s(sF)}, s33, 8\ns_lshl_b32 s34, {s(sP)}, 2\ns_add_u32 {s(sF)}, {s(sF)}, s34\ns_add_u32 {s(sF)}, {s(sF)}, {FG}")
    A(f"s_lshl_b32 {s(sFH)}, s31, 7\ns_add_u32 {s(sFH)}, {s(sFH)}, {FH}")
    A(f"v_min_u32 {v(FA)}, 13, v1\nv_lshlrev_b32 {v(FA)}, 3, {v(FA)}\ns_lshl_b32 s34, s35, 2\nv_add_u32 {v(FA)}, s34, {v(FA)}")
    A(f"v_lshlrev_b32 {v(SA)}, 7, v2\nv_lshl_add_u32 {v(SA)}, v1, 3, {v(SA)}\nv_add_u32 v4, 1536, {v(SA)}\nv_mov_b32 v5, {OOB}\nv_cmp_gt_u32 vcc, 32, v0\nv_cndmask_b32 {v(T + 5)}, v5, v4, vcc")
    A("s_waitcnt vmcnt(0)\ns_barrier")
    unpack(A, B1, PK, 4, sMASK)
    lg = Cnt(A, "lgkmcnt", 15)
    for vv in range(2):
        for ks in range(14):
            for x in range(2):
                lg.room(1)
                lg.op(f"ds_read_b64_tr_b16 {a((vv * 14 + ks) * 4 + 2 * x, 2)}, {v(TR)} offset:{ks * 2048 + x * 256 + vv * 8}")
    for r in range(4):
        A(f"v_mov_b32 {v(H + r)}, 0x3f803f80")
    lg.drain()
    for ks in range(14):
        for vv in range(2):
            d = v(CS + 4 * vv, 4)
            A(f"{MF} {d}, {a((vv * 14 + ks) * 4, 4)}, {v(H, 4)}, {'0' if ks == 0 else d}")
    K1 = -2.0 * math.sqrt(2.0 / math.pi) * math.log2(math.e)
    A(f"s_mov_b32 s54, {f32(K1 * 0.044715)}\nv_mov_b32 {v(T + 4)}, {f32(K1)}")
    top = A.new("f1_top")
    mark(A, opts, 1)
    A(f"{top}:")
    wait_flags(A, FV, FA, sFH)
    vm = Cnt(A, "vmcnt", 63)
    for k in range(3):
        vm.op(f"buffer_load_dwordx2 {v(SV + 2 * k, 2)}, {v(SA)}, {s(WS, 4)}, {s(sST)} offen offset:{k * 512} sc1", "s")
    vm.op(f"buffer_load_dwordx2 {v(SV + 6, 2)}, {v(T + 5)}, {s(WS, 4)}, {s(sST)} offen sc1", "s")
    A(f"s_mov_b32 s33, {s(sH)}")
    for ks in range(14):
        vm.op(f"buffer_load_dwordx4 {v(H + 4 * ks, 4)}, v3, {s(WS, 4)}, s33 offen offset:{(ks % 4) * KB} sc1", f"h{ks}")
        if ks % 4 == 3:
            A("s_add_u32 s33, s33, 4096")
    vm.wait("s")
    mu, m2, q2 = T, T + 1, T + 2
    A(f"v_add_f32 {v(mu)}, {v(SV)}, {v(SV + 2)}\nv_add_f32 {v(m2)}, {v(SV + 1)}, {v(SV + 3)}\nv_mul_f32 {v(q2)}, {v(SV)}, {v(SV)}\nv_fmac_f32 {v(q2)}, {v(SV + 2)}, {v(SV + 2)}")
    for k in (4, 6):
        A(f"v_add_f32 {v(mu)}, {v(mu)}, {v(SV + k)}\nv_add_f32 {v(m2)}, {v(m2)}, {v(SV + k + 1)}\nv_fmac_f32 {v(q2)}, {v(SV + k)}, {v(SV + k)}")
    A(f"v_fmac_f32 {v(m2)}, {f32(32.0)}, {v(q2)}")
    xor_reduce(A, "v_add_f32", mu, T + 3)
    xor_reduce(A, "v_add_f32", m2, T + 3)
    A(f"v_mul_f32 {v(mu)}, {f32(1.0 / 14)}, {v(mu)}\nv_mul_f32 {v(q2)}, {v(mu)}, {v(mu)}")
    A(f"v_mul_f32 {v(m2)}, {f32(1.0 / 448)}, {v(m2)}\nv_sub_f32 {v(m2)}, {v(m2)}, {v(q2)}\nv_max_f32 {v(m2)}, 0, {v(m2)}\nv_add_f32 {v(m2)}, {f32(1e-5)}, {v(m2)}\nv_rsq_f32 {v(m2)}, {v(m2)}")
    for ks in range(14):
        vm.wait(f"h{ks}")
        for vv in range(2):
            d = v(ACC + 4 * vv, 4)
            A(f"{MF} {d}, {a((vv * 14 + ks) * 4, 4)}, {v(H + 4 * ks, 4)}, {'0' if ks == 0 else d}")
    for r in range(8):
        A(f"v_fma_f32 {v(U + r)}, -{v(mu)}, {v(CS + r)}, {v(ACC + r)}")
    for r in range(8):
        A(f"v_fma_f32 {v(U + r)}, {v(m2)}, {v(U + r)}, {v(B1 + r)}")
    for r in range(8):
        A(f"v_mul_f32 {v(ACC + r)}, {v(U + r)}, {v(U + r)}")
    for r in range(8):
        A(f"v_fma_f32 {v(ACC + r)}, {v(ACC + r)}, s54, {v(T + 4)}")
    for r in range(8):
        A(f"v_mul_f32 {v(ACC + r)}, {v(ACC + r)}, {v(U + r)}")
    for r in range(8):
        A(f"v_exp_f32 {v(ACC + r)}, {v(ACC + r)}")
    for r in range(8):
        A(f"v_add_f32 {v(ACC + r)}, 1.0, {v(ACC + r)}")
    for r in range(8):
        A(f"v_rcp_f32 {v(ACC + r)}, {v(ACC + r)}")
    for r in range(8):
        A(f"v_mul_f32 {v(U + r)}, {v(U + r)}, {v(ACC + r)}")
    for r in range(4):
        A(f"v_cvt_pk_bf16_f32 {v(PK + r)}, {v(U + 2 * r)}, {v(U + 2 * r + 1)}")
    A(f"buffer_store_dwordx4 {v(PK, 4)}, v3, {s(WS, 4)}, {s(sG)} offen sc1")
    A("s_waitcnt vmcnt(0)")
    set_flag(A, sF, SV)
    for r, step in ((sS, 1), (sH, 28 * KB), (sST, 28 * 128), (sG, 112 * KB), (sFH, 128), (sF, 512)):
        A(f"s_add_u32 {s(r)}, {s(r)}, {F_TEAMS * step}")
    A(f"s_cmp_lt_u32 {s(sS)}, 64\ns_cbranch_scc1 {top}")
    flush_stamps(A, opts)
    A("s_endpgm")


def gen_f2(A, opts):
    Gr, ACC, HV, B2, R, O = 4, 60, 76, 80, 88, 120
    FA, FV, RA, TR, RW, RR, OA, T = range(128, 136)
    W_, B_, O_ = 16, 20, 24
    sS, sG, sH, sO, sFG, sMASK = range(44, 50)
    b = [load_srd(A, W_, "w2", 40), load_srd(A, B_, "b2", 42), load_srd(A, O_, "out", 38)]
    A(f"s_lshr_b32 s34, s30, 1\ns_and_b32 s35, s30, 1\ns_and_b32 s29, {s(S_W)}, 1")
    row_addr(A, RA, 896)
    A(f"s_mul_i32 s28, {s(S_W)}, {28 * KB}")
    tr_addr(A, TR, 28)
    A(f"v_lshlrev_b32 v7, 4, v2\ns_mov_b32 {s(sMASK)}, 0xffff0000\ns_lshl_b32 s52, s34, 7\ns_lshl_b32 s53, s29, 6\ns_add_u32 s53, s53, s52")
    A("s_waitcnt lgkmcnt(0)")
    for f in b:
        f()
    A(f"buffer_load_dwordx4 {v(HV, 4)}, v7, {s(B_, 4)}, s53 offen")
    lg = Cnt(A, "lgkmcnt", 15)
    for pa in range(2):
        A(f"s_mul_i32 s37, {s(S_W)}, {448 * 896}\ns_add_u32 s37, s37, s52\ns_add_u32 s37, s37, {pa * 64}\ns_mov_b32 s36, s28")
        for j in range(28):
            A(f"s_mov_b32 m0, s36\ns_add_u32 s36, s36, 1024\nbuffer_load_dwordx4 {v(RA)}, {s(W_, 4)}, s37 offen lds\ns_add_u32 s37, s37, {16 * 896}")
        A("s_waitcnt vmcnt(0)")
        for vv in range(2):
            for ks in range(14):
                for x in range(2):
                    lg.room(1)
                    lg.op(f"ds_read_b64_tr_b16 {a(((2 * pa + vv) * 14 + ks) * 4 + 2 * x, 2)}, {v(TR)} offset:{ks * 2048 + x * 256 + vv * 8}")
        lg.drain()
    unpack(A, B2, HV, 4, sMASK)
    A(f"s_mov_b32 {s(sS)}, s31\ns_lshl_b32 s33, s31, 1\ns_add_u32 s33, s33, s35")
    A(f"s_mul_i32 s36, s33, 56\ns_mul_i32 s37, {s(S_W)}, 14\ns_add_u32 s36, s36, s37\ns_lshl_b32 {s(sG)}, s36, 10\ns_add_u32 {s(sG)}, {s(sG)}, {GF}")
    A(f"s_mul_i32 s36, s33, 14\ns_lshl_b32 s37, s34, 1\ns_add_u32 s36, s36, s37\ns_add_u32 s36, s36, s29\ns_lshl_b32 {s(sH)}, s36, 10\ns_add_u32 {s(sH)}, {s(sH)}, {HF}")
    A(f"s_mul_i32 {s(sO)}, s33, {16 * 896}\ns_add_u32 {s(sO)}, {s(sO)}, s53\ns_lshl_b32 {s(sFG)}, s33, 8\ns_add_u32 {s(sFG)}, {s(sFG)}, {FG}")
    A(f"v_min_u32 {v(FA)}, 55, v0\nv_lshlrev_b32 {v(FA)}, 2, {v(FA)}")
    A(f"s_lshl_b32 s33, {s(S_W)}, 12\nv_add_u32 {v(RW)}, s33, v3\ns_lshl_b32 s33, s29, 11\nv_add_u32 {v(RR)}, s33, v3")
    A(f"v_mul_u32_u24 v4, 896, v1\nv_lshl_add_u32 {v(OA)}, v2, 4, v4")
    top, nxt = A.new("f2_top"), A.new("f2_next")
    mark(A, opts, 1)
    A(f"{top}:")
    wait_flags(A, FV, FA, sFG)
    vm = Cnt(A, "vmcnt", 63)
    A(f"s_mov_b32 s33, {s(sG)}")
    for ks in range(14):
        vm.op(f"buffer_load_dwordx4 {v(Gr + 4 * ks, 4)}, v3, {s(WS, 4)}, s33 offen offset:{(ks % 4) * KB} sc1", f"g{ks}")
        if ks % 4 == 3:
            A("s_add_u32 s33, s33, 4096")
    vm.op(f"buffer_load_dwordx4 {v(HV, 4)}, v3, {s(WS, 4)}, {s(sH)} offen sc1", "h")
    A("s_barrier")
    for ks in range(14):
        vm.wait(f"g{ks}")
        for t in range(4):
            d = v(ACC + 4 * t, 4)
            A(f"{MF} {d}, {a((t * 14 + ks) * 4, 4)}, {v(Gr + 4 * ks, 4)}, {'0' if ks == 0 else d}")
    for k in range(4):
        A(f"ds_write_b128 {v(RW)}, {v(ACC + 4 * k, 4)} offset:{k * KB}")
    A(f"s_cmp_ge_u32 {s(S_W)}, 2\ns_waitcnt vmcnt(0) lgkmcnt(0)\ns_barrier\ns_cbranch_scc1 {nxt}")
    reduce_tiles(A, R, O, RR, 0)
    unpack(A, R, HV, 4, sMASK)
    for r in range(8):
        A(f"v_add_f32 {v(O + r)}, {v(O + r)}, {v(B2 + r)}")
    for r in range(8):
        A(f"v_add_f32 {v(O + r)}, {v(O + r)}, {v(R + r)}")
    for r in range(4):
        A(f"v_cvt_pk_bf16_f32 {v(R + 8 + r)}, {v(O + 2 * r)}, {v(O + 2 * r + 1)}")
    A(f"buffer_store_dwordx4 {v(R + 8, 4)}, {v(OA)}, {s(O_, 4)}, {s(sO)} offen")
    A(f"{nxt}:")
    for r, step in ((sS, 1), (sG, 112 * KB), (sH, 28 * KB), (sO, 32 * 896), (sFG, 512)):
        A(f"s_add_u32 {s(r)}, {s(r)}, {F_TEAMS * step}")
    A(f"s_cmp_lt_u32 {s(sS)}, 64\ns_cbranch_scc1 {top}")
    dbg_time(A, opts, 7, 206)
    flush_stamps(A, opts)
    A("s_endpgm")
```

```python
KB = 1024
FRAG_H = 28 * 14 * KB
AF = 0
BF = AF + 16 * FRAG_H
XF = BF + 16 * FRAG_H
XS = XF + 128 * 14 * KB
YF = XS + 128 * 14 * KB
XM = YF + 64 * 16 * 28 * KB
CM = XM + 64 * 8192
CP = CM + 64 * 8192
EF = CP + 64 * 10240
EF_STEP = 10240
EF_P = 7680
ZF = EF + 64 * EF_STEP
PF = ZF + 64 * 14 * 16384
HF = PF + 64 * 16 * 2 * 1536
ST = HF + 128 * 14 * KB
GF = ST + 128 * 14 * 128
FL = GF + 128 * 56 * KB
FY = FL
FZ = FL + 8192
FP = FL + 2 * 8192
FH = FL + 3 * 8192
FC = FL + 4 * 8192
FG = FL + 5 * 8192
FL_BYTES = 9 * 8192
DBG = FL + FL_BYTES
DBG_BYTES = 256 * 4 * 2048
WS_USED = DBG + DBG_BYTES
WS_BYTES = 268435456

P1_BASE, P1_BLOCKS = XM + 8192, 126
P2_BASE, P2_BLOCKS = CM + 8192, 446

KARG = dict(x=0, mem0=8, wq=16, wk=24, wv=32, wo=40, w1=64, b1=72, w2=80, b2=88, out=96, dbg=104, ws=112)
SIZE = dict(x=1835008, mem0=7168, wq=3670016, wk=3670016, wv=3670016, wo=3670016, w1=1605632, b1=3584,
            w2=1605632, b2=896, out=1835008, dbg=256, ws=WS_BYTES)
```

```python
import sys
from asmlib import Asm
from layout import *
from gen_prep import gen_prep

NAME = "sequential_preLN__memory_aug_recurrent_mem_tr__dense_activation_gelu__prompt"
REF = f"cdna_kernels/{NAME}.s.ref"


def descriptor(name, nv, acc, ns=102):
    return f""".p2align 6
.amdhsa_kernel {name}
  .amdhsa_next_free_vgpr {nv}
  .amdhsa_next_free_sgpr {ns}
  .amdhsa_accum_offset {acc}
  .amdhsa_group_segment_fixed_size 0
  .amdhsa_kernarg_size 120
  .amdhsa_user_sgpr_count 2
  .amdhsa_user_sgpr_kernarg_segment_ptr 1
  .amdhsa_system_sgpr_workgroup_id_x 1
.end_amdhsa_kernel
"""


def build(opts):
    head = [ln for ln in open(REF).read().split("\n") if ln.startswith(";") and "@launch" not in ln
            and "Override launch" not in ln and "grid=ceil" not in ln]
    launches = ["; @launch kernel=prep_kernel grid=(256,1,1) block=(256,1,1) lds=131072"]
    A = Asm()
    A(".globl prep_kernel")
    gen_prep(A, "prep_kernel", opts)
    desc = descriptor("prep_kernel", 256, 256)
    if not opts.get("prep_only"):
        from gen_main import gen_main, MAIN_LDS
        launches.append(f"; @launch kernel=main_kernel grid=(256,1,1) block=(256,1,1) lds={MAIN_LDS}")
        A(".globl main_kernel")
        gen_main(A, "main_kernel", opts)
        desc += descriptor("main_kernel", 512, 256)
    n = A.fix_hazards()
    txt = "\n".join(head + launches) + '\n.amdgcn_target "amdgcn-amd-amdhsa--gfx950"\n.text\n' + A.text()
    txt += '.section .rodata,"a"\n' + desc
    return txt, n


if __name__ == "__main__":
    out = sys.argv[1]
    opts = dict(lb=2, ka_tr=3, ndb=0)
    for x in sys.argv[2:]:
        k, _, val = x.partition("=")
        opts[k] = int(val) if val else 1
    txt, n = build(opts)
    open(out, "w").write(txt)
    print(f"wrote {out}: {len(txt)} bytes, {txt.count(chr(10))} lines, {n} hazard pads")
```

```python
from asmlib import v, a, s
from layout import *

WS, DB = 8, 12
S_W, S_ID, S_FOREIGN, S_POLL = 3, 4, 5, 6
POLL_MAX = 0x40000
OOB = 0x40000000
WV0 = 120


def wreg(idx, n, nacc=256, v0=WV0):
    return a(idx, n) if idx < nacc else v(v0 + idx - nacc, n)


class Cnt:
    def __init__(self, A, name, cap):
        self.A, self.name, self.cap, self.q = A, name, cap, []

    def op(self, text, tag=None):
        self.A(text)
        self.q.append(tag)

    def wait(self, *tags):
        last = -1
        for i, t in enumerate(self.q):
            if t in tags:
                last = i
        if last < 0:
            return
        n = min(len(self.q) - 1 - last, self.cap)
        self.A(f"s_waitcnt {self.name}({n})")
        self.q = self.q[len(self.q) - n:] if n else []

    def drain(self):
        self.A(f"s_waitcnt {self.name}(0)")
        self.q = []

    def room(self, n):
        if len(self.q) + n > self.cap:
            keep = self.cap - n
            self.A(f"s_waitcnt {self.name}({keep})")
            self.q = self.q[len(self.q) - keep:] if keep else []


def poll_guard(A):
    A(f"s_add_u32 {s(S_POLL)}, {s(S_POLL)}, 1\ns_cmp_gt_u32 {s(S_POLL)}, {POLL_MAX}\ns_cbranch_scc1 L_timeout")


def interleave(A, stream, fill):
    def em(x):
        if callable(x):
            x()
        else:
            A(x)
    for x in fill.get(-1, []):
        em(x)
    for i, m in enumerate(stream):
        em(m)
        for x in fill.get(i, []):
            em(x)


def spread(fill, start, items, per=2):
    g = start
    for it in items:
        while len(fill.setdefault(g, [])) >= per:
            g += 1
        fill[g].append(it)
    return g


def load_weights(A, vm, vaddr, tiles, sreg, n_ks=14, base_idx=0, nacc=256, v0=WV0, flags=""):
    idx = base_idx
    for setter in tiles:
        setter()
        for ks in range(n_ks):
            vm.room(1)
            vm.op(f"buffer_load_dwordx4 {wreg(idx, 4, nacc, v0)}, {v(vaddr)}, {s(WS, 4)}, {s(sreg)} offen offset:{(ks % 4) * 1024}{flags}", "w")
            if ks % 4 == 3:
                A(f"s_add_u32 {s(sreg)}, {s(sreg)}, 4096")
            idx += 4


def sentinel_check(A, regs, t, retry):
    regs = list(regs)
    A(f"v_max3_u32 {v(t)}, {v(regs[0])}, {v(regs[1])}, {v(regs[2])}")
    rest = regs[3:]
    while len(rest) >= 2:
        A(f"v_max3_u32 {v(t)}, {v(t)}, {v(rest[0])}, {v(rest[1])}")
        rest = rest[2:]
    if rest:
        A(f"v_max_u32 {v(t)}, {v(t)}, {v(rest[0])}")
    A(f"v_cmp_eq_u32 vcc, -1, {v(t)}\ns_cbranch_vccnz {retry}")


def stamp(A, opts, slot):
    if opts.get("stamps", 0) == 2:
        A(f"s_memtime {s(60 + 2 * slot, 2)}")
        if slot == 0:
            A("s_memrealtime s[74:75]")


def collect(A, opts, vb, sstep=44):
    if opts.get("stamps", 0) == 2:
        A(f"s_waitcnt lgkmcnt(0)\ns_mov_b32 m0, {s(sstep)}")
        for k in range(5):
            A(f"v_writelane_b32 {v(vb + k)}, {s(60 + 2 * k)}, m0")
        A(f"v_writelane_b32 {v(vb + 5)}, s74, m0")


def collect_lds(A, opts, sbase, off, t, sstep=44):
    if opts.get("stamps", 0) == 2:
        A(f"s_waitcnt lgkmcnt(0)\ns_lshl_b32 s78, {s(sstep)}, 2\ns_add_u32 s78, s78, {s(sbase)}\nv_mov_b32 {v(t + 1)}, s78")
        for k, r in enumerate([60, 62, 64, 66, 68, 74]):
            A(f"v_mov_b32 {v(t)}, {s(r)}\nds_write_b32 {v(t + 1)}, {v(t)} offset:{off + 256 * k}")


def fetch_lds(A, opts, sbase, off, vb):
    if opts.get("stamps"):
        A(f"v_lshrrev_b32 v0, 4, v3\nv_lshlrev_b32 v4, 2, v0\nv_add_u32 v4, {s(sbase)}, v4")
        for k in range(6):
            A(f"ds_read_b32 {v(vb + k)}, v4 offset:{off + 256 * k}")
        A("s_waitcnt lgkmcnt(0)")


def mark(A, opts, k):
    if opts.get("stamps"):
        A(f"s_memtime s[78:79]\ns_memrealtime s[76:77]\ns_waitcnt lgkmcnt(0)\ns_mov_b32 {s(80 + 2 * k)}, s78\ns_mov_b32 {s(81 + 2 * k)}, s76")


def flush_stamps(A, opts, vb=114):
    if opts.get("stamps"):
        mark(A, opts, 7)
        A(f"s_lshl_b32 s78, {s(S_ID)}, 2\ns_add_u32 s78, s78, {s(S_W)}\ns_lshl_b32 s78, s78, 11\ns_add_u32 s78, s78, {DBG}")
        A("v_lshlrev_b32 v4, 2, v0")
        for k in range(6):
            A(f"buffer_store_dword {v(vb + k)}, v4, {s(WS, 4)}, s78 offen offset:{256 * k}")
        A("v_mov_b32 v4, 0")
        for k in range(16):
            A(f"v_mov_b32 v5, {s(80 + k)}\nbuffer_store_dword v5, v4, {s(WS, 4)}, s78 offen offset:{1536 + 4 * k}")


def dbg_time(A, opts, slot, srd=DB, cond=None):
    if opts.get("tl"):
        A("s_memrealtime s[76:77]\ns_waitcnt lgkmcnt(0)")
        A(f"v_mov_b32 v4, s76\nv_mov_b32 v5, {4 * slot}\nbuffer_atomic_umax v4, v5, {s(srd, 4)}, 0 offen sc1\ns_waitcnt vmcnt(0)")
```

```python
import math
import struct
from asmlib import Asm, v, a, s
from layout import *
from common import dbg_time


def f32(x):
    return hex(struct.unpack("<I", struct.pack("<f", x))[0])


def load_srd(A, dst, name, tmp):
    A(f"s_load_dwordx2 {s(tmp, 2)}, s[0:1], {KARG[name]}")

    def build():
        A(f"s_mov_b32 {s(dst)}, {s(tmp)}")
        A(f"s_and_b32 {s(dst + 1)}, {s(tmp + 1)}, 0xffff")
        A(f"s_mov_b32 {s(dst + 2)}, {SIZE[name]}")
        A(f"s_mov_b32 {s(dst + 3)}, 0x20000")
    return build


def xor_reduce(A, op, x, t):
    for sw in ("v_permlane16_swap_b32", "v_permlane32_swap_b32"):
        A(f"v_mov_b32 {v(t)}, {v(x)}")
        A(f"{sw} {v(x)}, {v(t)}")
        A(f"{op} {v(x)}, {v(x)}, {v(t)}")


def gen_prep(A, name, opts):
    WS, R_, C_, X_, M0_ = 8, 12, 16, 20, 24
    A(f".p2align 8\n.type {name},@function\n{name}:")
    A("s_cmp_ge_u32 s2, 256\ns_cbranch_scc1 L_prep_end")
    b = [load_srd(A, WS, "ws", 40)]
    A(f"s_load_dwordx4 s[44:47], s[0:1], {KARG['wq']}")
    A(f"s_load_dwordx4 s[48:51], s[0:1], {KARG['wv']}")
    b.append(load_srd(A, X_, "x", 52))
    b.append(load_srd(A, M0_, "mem0", 54))
    if opts.get("tl"):
        b.append(load_srd(A, 64, "dbg", 62))
        A("s_memrealtime s[70:71]")
    A("v_lshrrev_b32 v1, 6, v0\nv_and_b32 v0, 63, v0")
    A("v_readfirstlane_b32 s3, v1")
    A("s_and_b32 s4, s2, 7\ns_lshr_b32 s5, s2, 3")
    A("v_and_b32 v1, 15, v0\nv_lshrrev_b32 v2, 4, v0")
    A("s_waitcnt lgkmcnt(0)")
    for f in b:
        f()
    if opts.get("tl"):
        A("s_not_b32 s70, s70\nv_mov_b32 v4, s70\nv_mov_b32 v5, 0\nbuffer_atomic_umax v4, v5, s[64:67], 0 offen sc1")
    A("s_cmp_ge_u32 s5, 28\ns_cbranch_scc1 L_prep_ln")
    A("s_mul_i32 s6, s5, 37\ns_lshr_b32 s6, s6, 8\ns_mul_i32 s7, s6, 7\ns_sub_u32 s7, s5, s7")
    A("s_lshr_b32 s28, s6, 1\ns_lshl_b32 s29, s4, 1\ns_add_u32 s28, s28, s29")
    A("s_and_b32 s29, s6, 1")
    A("s_cmp_eq_u32 s29, 0")
    A(f"s_cselect_b32 {s(R_)}, s44, s48\ns_cselect_b32 {s(R_ + 1)}, s45, s49")
    A(f"s_cselect_b32 {s(C_)}, s46, s50\ns_cselect_b32 {s(C_ + 1)}, s47, s51")
    for r in (R_, C_):
        A(f"s_and_b32 {s(r + 1)}, {s(r + 1)}, 0xffff\ns_mov_b32 {s(r + 2)}, {SIZE['wq']}\ns_mov_b32 {s(r + 3)}, 0x20000")
    A("v_lshrrev_b32 v3, 2, v1\nv_lshlrev_b32 v3, 3, v3\nv_and_b32 v4, 3, v1\nv_add_u32 v3, v3, v4")
    A("v_lshlrev_b32 v4, 13, v3\nv_lshl_add_u32 v4, v2, 4, v4\ns_lshl_b32 s30, s28, 9\nv_add_u32 v4, s30, v4")
    A("v_lshlrev_b32 v5, 4, v0")
    RR, CC, ACC, PK = 16, 144, 208, 240
    A("s_lshl_b32 s31, s7, 19")
    for rho in range(4):
        off = (32 * (rho // 2) + 4 * (rho % 2)) * 8192
        A(f"s_add_u32 {s(32 + rho)}, s31, {off}")
    A(f"s_mul_i32 s36, s28, {FRAG_H}\ns_mul_i32 s37, s29, {BF - AF}\ns_add_u32 s36, s36, s37")
    A(f"s_mul_i32 s37, s3, {7 * 14 * KB}\ns_add_u32 s36, s36, s37\ns_lshl_b32 s37, s7, 11\ns_add_u32 s36, s36, s37")
    if AF:
        A(f"s_add_u32 s36, s36, {AF}")

    def load_R():
        for es in range(8):
            for rho in range(4):
                A(f"buffer_load_dwordx4 {v(RR + (rho * 8 + es) * 4, 4)}, v4, {s(R_, 4)}, {s(32 + rho)} offen offset:{es * 64}")

    def mfmas(cbase, accb):
        for es in range(8):
            for rho in range(4):
                c = "0" if es == 0 else v(accb + rho * 4, 4)
                A(f"v_mfma_f32_16x16x32_bf16 {v(accb + rho * 4, 4)}, {v(RR + (rho * 8 + es) * 4, 4)}, {v(cbase + es * 4, 4)}, {c}")

    def epilogue(accb, i, scale):
        if scale:
            for r in range(16):
                A(f"v_mul_f32 {v(accb + r)}, s38, {v(accb + r)}")
        for r in range(8):
            A(f"v_cvt_pk_bf16_f32 {v(PK + r)}, {v(accb + 2 * r)}, {v(accb + 2 * r + 1)}")
        A(f"buffer_store_dwordx4 {v(PK, 4)}, v5, {s(WS, 4)}, s36 offen")
        A(f"buffer_store_dwordx4 {v(PK + 4, 4)}, v5, {s(WS, 4)}, s36 offen offset:1024")
        A(f"s_add_u32 s36, s36, {14 * KB}")

    A("s_cmp_eq_u32 s29, 0\ns_cbranch_scc0 L_prep_b")
    A(f"s_mov_b32 s38, {f32(math.log2(math.e) / 16.0)}")
    A("s_mul_i32 s39, s3, 7")

    def load_C(i):
        A(f"s_add_u32 s56, s39, {i}\ns_lshr_b32 s57, s56, 1\ns_lshl_b32 s57, s57, 18\ns_and_b32 s56, s56, 1\ns_lshl_b32 s56, s56, 15\ns_add_u32 s56, s56, s57")
        for es in range(8):
            A(f"buffer_load_dwordx4 {v(CC + (i % 2) * 32 + es * 4, 4)}, v4, {s(C_, 4)}, s56 offen offset:{es * 64}")

    load_C(0)
    load_R()
    load_C(1)
    for i in range(7):
        n = 8 if i == 0 else (10 if i < 6 else 2)
        A(f"s_waitcnt vmcnt({n})")
        mfmas(CC + (i % 2) * 32, ACC + (i % 2) * 16)
        if i + 2 < 7:
            load_C(i + 2)
        epilogue(ACC + (i % 2) * 16, i, True)
    dbg_time(A, opts, 1, 64)
    A("s_endpgm")

    A("L_prep_b:")
    A("v_lshrrev_b32 v6, 2, v0\nv_mul_u32_u24 v6, 896, v6\nv_and_b32 v7, 3, v0\nv_lshl_add_u32 v6, v7, 4, v6")
    A("v_lshrrev_b32 v8, 2, v1\nv_lshlrev_b32 v8, 6, v8\nv_lshl_add_u32 v8, v7, 4, v8\nv_lshl_add_u32 v8, v2, 9, v8")
    A("s_lshl_b32 s58, s3, 15\nv_add_u32 v8, s58, v8")
    A("s_mul_i32 s39, s3, 7\ns_lshr_b32 s59, s39, 1\ns_lshl_b32 s59, s59, 6")
    A("s_mul_i32 s60, s28, 229376\ns_add_u32 s59, s59, s60")

    def dma_block(bk):
        A(f"s_add_u32 s60, s59, {bk * 64}\ns_add_u32 s61, s58, {(bk % 2) * 16384}")
        for j in range(16):
            A("s_mov_b32 m0, s61")
            A("s_add_u32 s61, s61, 1024")
            A(f"buffer_load_dwordx4 v6, {s(C_, 4)}, s60 offen lds")
            A(f"s_add_u32 s60, s60, {16 * 896}")

    def b_path(odd):
        tiles = [((i + odd) // 2, (i + odd) % 2) for i in range(7)]
        dma_block(0)
        load_R()
        A("s_waitcnt vmcnt(47)")
        dma_block(1)
        out = ["R"] * 32 + ["D1"] * 16
        for i, (bk, vv) in enumerate(tiles):
            first = i == 0 or tiles[i - 1][0] != bk
            if first:
                keep = 0
                for tag in reversed(out):
                    if tag == f"D{bk}" or tag == "R":
                        break
                    keep += 1
                A(f"s_waitcnt vmcnt({keep})")
                out = out[len(out) - keep:] if keep else []
            cb = CC + (i % 2) * 32
            for es in range(8):
                for x in range(2):
                    A(f"ds_read_b64_tr_b16 {v(cb + es * 4 + x * 2, 2)}, v8 offset:{(bk % 2) * 16384 + es * 2048 + x * 256 + vv * 8}")
            A("s_waitcnt lgkmcnt(0)")
            last = i == 6 or tiles[i + 1][0] != bk
            if last and bk + 2 < 4:
                dma_block(bk + 2)
                out += [f"D{bk + 2}"] * 16
            mfmas(cb, ACC + (i % 2) * 16)
            epilogue(ACC + (i % 2) * 16, i, False)
            out += ["S"] * 2
        dbg_time(A, opts, 2, 64)
        A("s_endpgm")

    A("s_bitcmp1_b32 s3, 0\ns_cbranch_scc1 L_prep_b_odd")
    b_path(0)
    A("L_prep_b_odd:")
    b_path(1)

    A("L_prep_ln:")
    A("s_sub_u32 s5, s5, 28\ns_lshl_b32 s6, s4, 2\ns_add_u32 s6, s6, s5")
    A("s_lshl_b32 s7, s6, 2\ns_add_u32 s7, s7, s3")
    A("v_mul_u32_u24 v3, 896, v1\nv_lshl_add_u32 v3, v2, 4, v3")
    A(f"s_mul_i32 s28, s7, {16 * 896}")
    RAW, F = 4, 64
    for ks in range(14):
        A(f"buffer_load_dwordx4 {v(RAW + ks * 4, 4)}, v3, {s(X_, 4)}, s28 offen offset:{ks * 64}")
    A("s_lshl_b32 s29, s3, 10\nv_lshl_add_u32 v60, v0, 4, s29")
    for r in range(4):
        A(f"v_mov_b32 {v(180 + r)}, -1\nv_mov_b32 {v(184 + r)}, 0")
    A(f"s_mul_i32 s30, s6, 18\ns_mov_b32 s33, {P1_BASE}")
    for i in range(18):
        sk = A.new("pz")
        A(f"s_add_u32 s31, s30, {i}\ns_cmp_ge_u32 s31, {P1_BLOCKS + P2_BLOCKS}\ns_cbranch_scc1 {sk}")
        A(f"s_cmp_lt_u32 s31, {P1_BLOCKS}")
        A(f"s_cselect_b32 s32, s33, {P2_BASE - P1_BLOCKS * 4096}")
        A("s_lshl_b32 s31, s31, 12\ns_add_u32 s31, s31, s32")
        A(f"buffer_store_dwordx4 v[180:183], v60, {s(WS, 4)}, s31 offen")
        A(f"{sk}:")
    A(f"s_cmp_ge_u32 s6, {FL_BYTES // 4096}\ns_cbranch_scc1 L_prep_nofl")
    A(f"s_lshl_b32 s31, s6, 12\ns_add_u32 s31, s31, {FL}")
    A(f"buffer_store_dwordx4 v[184:187], v60, {s(WS, 4)}, s31 offen")
    A("L_prep_nofl:")
    A("s_cmp_eq_u32 s6, 31\ns_cbranch_scc0 L_prep_nomem")
    A("v_and_b32 v61, 7, v1\nv_mul_u32_u24 v61, 896, v61\nv_lshrrev_b32 v62, 3, v1\nv_lshl_add_u32 v61, v62, 2, v61\nv_lshl_add_u32 v61, v2, 5, v61")
    A("v_lshlrev_b32 v62, 4, v0")
    for rep in range(2):
        sk = A.new("m0")
        A(f"s_add_u32 s31, s3, {4 * rep}\ns_cmp_ge_u32 s31, 7\ns_cbranch_scc1 {sk}")
        A("s_lshl_b32 s32, s31, 7\ns_lshl_b32 s33, s31, 10")
        for j in range(4):
            A(f"buffer_load_dword {v(188 + j)}, v61, {s(M0_, 4)}, s32 offen offset:{j * 8}")
        A(f"s_add_u32 s34, s33, {CM}\ns_add_u32 s35, s33, {XM}")
        A("s_waitcnt vmcnt(0)")
        for j in range(4):
            A(f"v_min_u32 {v(188 + j)}, -2, {v(188 + j)}")
        A(f"buffer_store_dwordx4 v[188:191], v62, {s(WS, 4)}, s34 offen")
        A(f"buffer_store_dwordx4 v[188:191], v62, {s(WS, 4)}, s35 offen")
        A(f"{sk}:")
    A("L_prep_nomem:")
    A("s_waitcnt vmcnt(0)")
    A("s_mov_b32 s29, 0xffff0000")
    for r in range(56):
        A(f"v_lshlrev_b32 {v(F + 2 * r)}, 16, {v(RAW + r)}")
        A(f"v_and_b32 {v(F + 2 * r + 1)}, s29, {v(RAW + r)}")
    S0 = 192
    for k in range(4):
        A(f"v_add_f32 {v(S0 + k)}, {v(F + k)}, {v(F + 4 + k)}")
    for r in range(8, 112):
        A(f"v_add_f32 {v(S0 + r % 4)}, {v(S0 + r % 4)}, {v(F + r)}")
    A(f"v_add_f32 {v(S0)}, {v(S0)}, {v(S0 + 1)}\nv_add_f32 {v(S0 + 2)}, {v(S0 + 2)}, {v(S0 + 3)}\nv_add_f32 {v(S0)}, {v(S0)}, {v(S0 + 2)}")
    xor_reduce(A, "v_add_f32", S0, S0 + 1)
    A(f"v_mul_f32 {v(S0)}, {f32(1.0 / 448)}, {v(S0)}")
    for r in range(112):
        A(f"v_sub_f32 {v(F + r)}, {v(F + r)}, {v(S0)}")
    for k in range(4):
        A(f"v_mul_f32 {v(S0 + 4 + k)}, {v(F + k)}, {v(F + k)}")
    for r in range(4, 112):
        A(f"v_fmac_f32 {v(S0 + 4 + r % 4)}, {v(F + r)}, {v(F + r)}")
    A(f"v_add_f32 {v(S0 + 4)}, {v(S0 + 4)}, {v(S0 + 5)}\nv_add_f32 {v(S0 + 6)}, {v(S0 + 6)}, {v(S0 + 7)}\nv_add_f32 {v(S0 + 4)}, {v(S0 + 4)}, {v(S0 + 6)}")
    xor_reduce(A, "v_add_f32", S0 + 4, S0 + 5)
    A(f"v_mov_b32 {v(S0 + 5)}, {f32(1e-5)}")
    A(f"v_fmac_f32 {v(S0 + 5)}, {f32(1.0 / 448)}, {v(S0 + 4)}")
    A(f"v_rsq_f32 {v(S0 + 5)}, {v(S0 + 5)}")
    A(f"s_mul_i32 s28, s7, {14 * KB}\ns_add_u32 s28, s28, {XF}")
    A("v_lshlrev_b32 v62, 4, v0")
    A("v_lshrrev_b32 v61, 1, v2\nv_lshlrev_b32 v61, 9, v61\nv_lshrrev_b32 v63, 1, v1\nv_lshl_add_u32 v61, v63, 4, v61\nv_and_b32 v63, 1, v2\nv_lshl_add_u32 v61, v63, 3, v61")
    A("v_and_b32 v63, 1, v1\nv_mul_u32_u24 v63, 14336, v63\nv_add_u32 v61, v61, v63")
    A(f"s_lshr_b32 s30, s7, 1\ns_mul_i32 s30, s30, {28 * KB}\ns_and_b32 s31, s7, 1\ns_lshl_b32 s31, s31, 7\ns_add_u32 s30, s30, s31\ns_add_u32 s30, s30, {XS}")
    for ks in range(14):
        for r in range(8):
            A(f"v_mul_f32 {v(F + ks * 8 + r)}, {v(F + ks * 8 + r)}, {v(S0 + 5)}")
        for r in range(4):
            A(f"v_cvt_pk_bf16_f32 {v(RAW + ks * 4 + r)}, {v(F + ks * 8 + 2 * r)}, {v(F + ks * 8 + 2 * r + 1)}")
        A(f"buffer_store_dwordx4 {v(RAW + ks * 4, 4)}, v62, {s(WS, 4)}, s28 offen offset:{(ks % 4) * 1024}")
        Q = 200 + 4 * (ks % 2)
        for r, d in enumerate((0, 2, 1, 3)):
            A(f"v_mov_b32 {v(Q + r)}, {v(RAW + ks * 4 + d)}")
        A(f"buffer_store_dwordx2 {v(Q, 2)}, v61, {s(WS, 4)}, s30 offen offset:{(ks % 4) * 1024}")
        A(f"buffer_store_dwordx2 {v(Q + 2, 2)}, v61, {s(WS, 4)}, s30 offen offset:{(ks % 4) * 1024 + 256}")
        if ks % 4 == 3:
            A("s_add_u32 s28, s28, 4096\ns_add_u32 s30, s30, 4096")
    dbg_time(A, opts, 3, 64)
    A("L_prep_end:")
    A("s_endpgm")
```

```python
from asmlib import v, a, s
from layout import *

WS, DB = 8, 12
S_W, S_ID, S_FOREIGN, S_POLL = 3, 4, 5, 6
POLL_MAX = 0x40000
OOB = 0x40000000
WV0 = 120


def wreg(idx, n, nacc=256, v0=WV0):
    return a(idx, n) if idx < nacc else v(v0 + idx - nacc, n)


class Cnt:
    def __init__(self, A, name, cap):
        self.A, self.name, self.cap, self.q = A, name, cap, []

    def op(self, text, tag=None):
        self.A(text)
        self.q.append(tag)

    def wait(self, *tags):
        last = -1
        for i, t in enumerate(self.q):
            if t in tags:
                last = i
        if last < 0:
            return
        n = min(len(self.q) - 1 - last, self.cap)
        self.A(f"s_waitcnt {self.name}({n})")
        self.q = self.q[len(self.q) - n:] if n else []

    def drain(self):
        self.A(f"s_waitcnt {self.name}(0)")
        self.q = []

    def room(self, n):
        if len(self.q) + n > self.cap:
            keep = self.cap - n
            self.A(f"s_waitcnt {self.name}({keep})")
            self.q = self.q[len(self.q) - keep:] if keep else []


def poll_guard(A):
    A(f"s_add_u32 {s(S_POLL)}, {s(S_POLL)}, 1\ns_cmp_gt_u32 {s(S_POLL)}, {POLL_MAX}\ns_cbranch_scc1 L_timeout")


def interleave(A, stream, fill):
    def em(x):
        if callable(x):
            x()
        else:
            A(x)
    for x in fill.get(-1, []):
        em(x)
    for i, m in enumerate(stream):
        em(m)
        for x in fill.get(i, []):
            em(x)


def spread(fill, start, items, per=2):
    g = start
    for it in items:
        while len(fill.setdefault(g, [])) >= per:
            g += 1
        fill[g].append(it)
    return g


def load_weights(A, vm, vaddr, tiles, sreg, n_ks=14, base_idx=0, nacc=256, v0=WV0, flags=""):
    idx = base_idx
    for setter in tiles:
        setter()
        for ks in range(n_ks):
            vm.room(1)
            vm.op(f"buffer_load_dwordx4 {wreg(idx, 4, nacc, v0)}, {v(vaddr)}, {s(WS, 4)}, {s(sreg)} offen offset:{(ks % 4) * 1024}{flags}", "w")
            if ks % 4 == 3:
                A(f"s_add_u32 {s(sreg)}, {s(sreg)}, 4096")
            idx += 4


def sentinel_check(A, regs, t, retry):
    regs = list(regs)
    A(f"v_max3_u32 {v(t)}, {v(regs[0])}, {v(regs[1])}, {v(regs[2])}")
    rest = regs[3:]
    while len(rest) >= 2:
        A(f"v_max3_u32 {v(t)}, {v(t)}, {v(rest[0])}, {v(rest[1])}")
        rest = rest[2:]
    if rest:
        A(f"v_max_u32 {v(t)}, {v(t)}, {v(rest[0])}")
    A(f"v_cmp_eq_u32 vcc, -1, {v(t)}\ns_cbranch_vccnz {retry}")


def stamp(A, opts, slot):
    if opts.get("stamps", 0) == 2:
        A(f"s_memtime {s(60 + 2 * slot, 2)}")
        if slot == 0:
            A("s_memrealtime s[74:75]")


def collect(A, opts, vb, sstep=44):
    if opts.get("stamps", 0) == 2:
        A(f"s_waitcnt lgkmcnt(0)\ns_mov_b32 m0, {s(sstep)}")
        for k in range(5):
            A(f"v_writelane_b32 {v(vb + k)}, {s(60 + 2 * k)}, m0")
        A(f"v_writelane_b32 {v(vb + 5)}, s74, m0")


def collect_lds(A, opts, sbase, off, t, sstep=44):
    if opts.get("stamps", 0) == 2:
        A(f"s_waitcnt lgkmcnt(0)\ns_lshl_b32 s78, {s(sstep)}, 2\ns_add_u32 s78, s78, {s(sbase)}\nv_mov_b32 {v(t + 1)}, s78")
        for k, r in enumerate([60, 62, 64, 66, 68, 74]):
            A(f"v_mov_b32 {v(t)}, {s(r)}\nds_write_b32 {v(t + 1)}, {v(t)} offset:{off + 256 * k}")


def fetch_lds(A, opts, sbase, off, vb):
    if opts.get("stamps"):
        A(f"v_lshrrev_b32 v0, 4, v3\nv_lshlrev_b32 v4, 2, v0\nv_add_u32 v4, {s(sbase)}, v4")
        for k in range(6):
            A(f"ds_read_b32 {v(vb + k)}, v4 offset:{off + 256 * k}")
        A("s_waitcnt lgkmcnt(0)")


def mark(A, opts, k):
    if opts.get("stamps"):
        A(f"s_memtime s[78:79]\ns_memrealtime s[76:77]\ns_waitcnt lgkmcnt(0)\ns_mov_b32 {s(80 + 2 * k)}, s78\ns_mov_b32 {s(81 + 2 * k)}, s76")


def flush_stamps(A, opts, vb=114):
    if opts.get("stamps"):
        mark(A, opts, 7)
        A(f"s_lshl_b32 s78, {s(S_ID)}, 2\ns_add_u32 s78, s78, {s(S_W)}\ns_lshl_b32 s78, s78, 11\ns_add_u32 s78, s78, {DBG}")
        A("v_lshlrev_b32 v4, 2, v0")
        for k in range(6):
            A(f"buffer_store_dword {v(vb + k)}, v4, {s(WS, 4)}, s78 offen offset:{256 * k}")
        A("v_mov_b32 v4, 0")
        for k in range(16):
            A(f"v_mov_b32 v5, {s(80 + k)}\nbuffer_store_dword v5, v4, {s(WS, 4)}, s78 offen offset:{1536 + 4 * k}")


def dbg_time(A, opts, slot, who, sreg=S_ID, srd=DB, base=0):
    if opts.get("tl"):
        sk = A.new("tl")
        A(f"s_cmp_eq_u32 {s(sreg)}, {who}\ns_cbranch_scc0 {sk}\ns_cmp_eq_u32 s3, 0\ns_cbranch_scc0 {sk}")
        A("s_memrealtime s[76:77]\ns_waitcnt lgkmcnt(0)")
        A(f"v_mov_b32 v4, s76\nv_mov_b32 v5, {base + 4 * slot}\nbuffer_store_dword v4, v5, {s(srd, 4)}, 0 offen\n{sk}:")
```

```python
import math
import struct
from asmlib import Asm, v, a, s
from layout import *
from common import dbg_time


def f32(x):
    return hex(struct.unpack("<I", struct.pack("<f", x))[0])


def load_srd(A, dst, name, tmp):
    A(f"s_load_dwordx2 {s(tmp, 2)}, s[0:1], {KARG[name]}")

    def build():
        A(f"s_mov_b32 {s(dst)}, {s(tmp)}")
        A(f"s_and_b32 {s(dst + 1)}, {s(tmp + 1)}, 0xffff")
        A(f"s_mov_b32 {s(dst + 2)}, {SIZE[name]}")
        A(f"s_mov_b32 {s(dst + 3)}, 0x20000")
    return build


def xor_reduce(A, op, x, t):
    for sw in ("v_permlane16_swap_b32", "v_permlane32_swap_b32"):
        A(f"v_mov_b32 {v(t)}, {v(x)}")
        A(f"{sw} {v(x)}, {v(t)}")
        A(f"{op} {v(x)}, {v(x)}, {v(t)}")


def gen_prep(A, name, opts):
    WS, R_, C_, X_, M0_ = 8, 12, 16, 20, 24
    A(f".p2align 8\n.type {name},@function\n{name}:")
    A("s_cmp_ge_u32 s2, 256\ns_cbranch_scc1 L_prep_end")
    b = [load_srd(A, WS, "ws", 40)]
    A(f"s_load_dwordx4 s[44:47], s[0:1], {KARG['wq']}")
    A(f"s_load_dwordx4 s[48:51], s[0:1], {KARG['wv']}")
    b.append(load_srd(A, X_, "x", 52))
    b.append(load_srd(A, M0_, "mem0", 54))
    A("v_lshrrev_b32 v1, 6, v0\nv_and_b32 v0, 63, v0")
    A("v_readfirstlane_b32 s3, v1")
    A("s_and_b32 s4, s2, 7\ns_lshr_b32 s5, s2, 3")
    A("v_and_b32 v1, 15, v0\nv_lshrrev_b32 v2, 4, v0")
    A("s_waitcnt lgkmcnt(0)")
    for f in b:
        f()
    dbg_time(A, opts, 0, 0, 2, WS, DBG)
    A("s_cmp_ge_u32 s5, 28\ns_cbranch_scc1 L_prep_ln")
    A("s_mul_i32 s6, s5, 37\ns_lshr_b32 s6, s6, 8\ns_mul_i32 s7, s6, 7\ns_sub_u32 s7, s5, s7")
    A("s_lshr_b32 s28, s6, 1\ns_lshl_b32 s29, s4, 1\ns_add_u32 s28, s28, s29")
    A("s_and_b32 s29, s6, 1")
    A("s_cmp_eq_u32 s29, 0")
    A(f"s_cselect_b32 {s(R_)}, s44, s48\ns_cselect_b32 {s(R_ + 1)}, s45, s49")
    A(f"s_cselect_b32 {s(C_)}, s46, s50\ns_cselect_b32 {s(C_ + 1)}, s47, s51")
    for r in (R_, C_):
        A(f"s_and_b32 {s(r + 1)}, {s(r + 1)}, 0xffff\ns_mov_b32 {s(r + 2)}, {SIZE['wq']}\ns_mov_b32 {s(r + 3)}, 0x20000")
    A("v_lshrrev_b32 v3, 2, v1\nv_lshlrev_b32 v3, 3, v3\nv_and_b32 v4, 3, v1\nv_add_u32 v3, v3, v4")
    A("v_lshlrev_b32 v4, 13, v3\nv_lshl_add_u32 v4, v2, 4, v4\ns_lshl_b32 s30, s28, 9\nv_add_u32 v4, s30, v4")
    A("v_lshlrev_b32 v5, 4, v0")
    RR, CC, ACC, PK = 16, 144, 208, 240
    A("s_lshl_b32 s31, s7, 19")
    for rho in range(4):
        off = (32 * (rho // 2) + 4 * (rho % 2)) * 8192
        A(f"s_add_u32 {s(32 + rho)}, s31, {off}")
    A(f"s_mul_i32 s36, s28, {FRAG_H}\ns_mul_i32 s37, s29, {BF - AF}\ns_add_u32 s36, s36, s37")
    A(f"s_mul_i32 s37, s3, {7 * 14 * KB}\ns_add_u32 s36, s36, s37\ns_lshl_b32 s37, s7, 11\ns_add_u32 s36, s36, s37")
    if AF:
        A(f"s_add_u32 s36, s36, {AF}")

    def load_R():
        for es in range(8):
            for rho in range(4):
                A(f"buffer_load_dwordx4 {v(RR + (rho * 8 + es) * 4, 4)}, v4, {s(R_, 4)}, {s(32 + rho)} offen offset:{es * 64}")

    def mfmas(cbase, accb):
        for es in range(8):
            for rho in range(4):
                c = "0" if es == 0 else v(accb + rho * 4, 4)
                A(f"v_mfma_f32_16x16x32_bf16 {v(accb + rho * 4, 4)}, {v(RR + (rho * 8 + es) * 4, 4)}, {v(cbase + es * 4, 4)}, {c}")

    def epilogue(accb, i, scale):
        if scale:
            for r in range(16):
                A(f"v_mul_f32 {v(accb + r)}, s38, {v(accb + r)}")
        for r in range(8):
            A(f"v_cvt_pk_bf16_f32 {v(PK + r)}, {v(accb + 2 * r)}, {v(accb + 2 * r + 1)}")
        A(f"buffer_store_dwordx4 {v(PK, 4)}, v5, {s(WS, 4)}, s36 offen")
        A(f"buffer_store_dwordx4 {v(PK + 4, 4)}, v5, {s(WS, 4)}, s36 offen offset:1024")
        A(f"s_add_u32 s36, s36, {14 * KB}")

    A("s_cmp_eq_u32 s29, 0\ns_cbranch_scc0 L_prep_b")
    A(f"s_mov_b32 s38, {f32(math.log2(math.e) / 16.0)}")
    A("s_mul_i32 s39, s3, 7")

    def load_C(i):
        A(f"s_add_u32 s56, s39, {i}\ns_lshr_b32 s57, s56, 1\ns_lshl_b32 s57, s57, 18\ns_and_b32 s56, s56, 1\ns_lshl_b32 s56, s56, 15\ns_add_u32 s56, s56, s57")
        for es in range(8):
            A(f"buffer_load_dwordx4 {v(CC + (i % 2) * 32 + es * 4, 4)}, v4, {s(C_, 4)}, s56 offen offset:{es * 64}")

    load_C(0)
    load_R()
    load_C(1)
    for i in range(7):
        n = 8 if i == 0 else (10 if i < 6 else 2)
        A(f"s_waitcnt vmcnt({n})")
        mfmas(CC + (i % 2) * 32, ACC + (i % 2) * 16)
        if i + 2 < 7:
            load_C(i + 2)
        epilogue(ACC + (i % 2) * 16, i, True)
    dbg_time(A, opts, 1, 0, 2, WS, DBG)
    A("s_endpgm")

    A("L_prep_b:")
    A("v_lshrrev_b32 v6, 2, v0\nv_mul_u32_u24 v6, 896, v6\nv_and_b32 v7, 3, v0\nv_lshl_add_u32 v6, v7, 4, v6")
    A("v_lshrrev_b32 v8, 2, v1\nv_lshlrev_b32 v8, 6, v8\nv_lshl_add_u32 v8, v7, 4, v8\nv_lshl_add_u32 v8, v2, 9, v8")
    A("s_lshl_b32 s58, s3, 15\nv_add_u32 v8, s58, v8")
    A("s_mul_i32 s39, s3, 7\ns_lshr_b32 s59, s39, 1\ns_lshl_b32 s59, s59, 6")
    A("s_mul_i32 s60, s28, 229376\ns_add_u32 s59, s59, s60")

    def dma_block(bk):
        A(f"s_add_u32 s60, s59, {bk * 64}\ns_add_u32 s61, s58, {(bk % 2) * 16384}")
        for j in range(16):
            A("s_mov_b32 m0, s61")
            A("s_add_u32 s61, s61, 1024")
            A(f"buffer_load_dwordx4 v6, {s(C_, 4)}, s60 offen lds")
            A(f"s_add_u32 s60, s60, {16 * 896}")

    def b_path(odd):
        tiles = [((i + odd) // 2, (i + odd) % 2) for i in range(7)]
        dma_block(0)
        load_R()
        A("s_waitcnt vmcnt(47)")
        dma_block(1)
        out = ["R"] * 32 + ["D1"] * 16
        for i, (bk, vv) in enumerate(tiles):
            first = i == 0 or tiles[i - 1][0] != bk
            if first:
                keep = 0
                for tag in reversed(out):
                    if tag == f"D{bk}" or tag == "R":
                        break
                    keep += 1
                A(f"s_waitcnt vmcnt({keep})")
                out = out[len(out) - keep:] if keep else []
            cb = CC + (i % 2) * 32
            for es in range(8):
                for x in range(2):
                    A(f"ds_read_b64_tr_b16 {v(cb + es * 4 + x * 2, 2)}, v8 offset:{(bk % 2) * 16384 + es * 2048 + x * 256 + vv * 8}")
            A("s_waitcnt lgkmcnt(0)")
            last = i == 6 or tiles[i + 1][0] != bk
            if last and bk + 2 < 4:
                dma_block(bk + 2)
                out += [f"D{bk + 2}"] * 16
            mfmas(cb, ACC + (i % 2) * 16)
            epilogue(ACC + (i % 2) * 16, i, False)
            out += ["S"] * 2
        dbg_time(A, opts, 2, 56, 2, WS, DBG)
        A("s_endpgm")

    A("s_bitcmp1_b32 s3, 0\ns_cbranch_scc1 L_prep_b_odd")
    b_path(0)
    A("L_prep_b_odd:")
    b_path(1)

    A("L_prep_ln:")
    A("s_sub_u32 s5, s5, 28\ns_lshl_b32 s6, s4, 2\ns_add_u32 s6, s6, s5")
    A("s_lshl_b32 s7, s6, 2\ns_add_u32 s7, s7, s3")
    A("v_mul_u32_u24 v3, 896, v1\nv_lshl_add_u32 v3, v2, 4, v3")
    A(f"s_mul_i32 s28, s7, {16 * 896}")
    RAW, F = 4, 64
    for ks in range(14):
        A(f"buffer_load_dwordx4 {v(RAW + ks * 4, 4)}, v3, {s(X_, 4)}, s28 offen offset:{ks * 64}")
    A("s_lshl_b32 s29, s3, 10\nv_lshl_add_u32 v60, v0, 4, s29")
    for r in range(4):
        A(f"v_mov_b32 {v(180 + r)}, -1\nv_mov_b32 {v(184 + r)}, 0")
    A(f"s_mul_i32 s30, s6, 18\ns_mov_b32 s33, {P1_BASE}")
    for i in range(18):
        sk = A.new("pz")
        A(f"s_add_u32 s31, s30, {i}\ns_cmp_ge_u32 s31, {P1_BLOCKS + P2_BLOCKS}\ns_cbranch_scc1 {sk}")
        A(f"s_cmp_lt_u32 s31, {P1_BLOCKS}")
        A(f"s_cselect_b32 s32, s33, {P2_BASE - P1_BLOCKS * 4096}")
        A("s_lshl_b32 s31, s31, 12\ns_add_u32 s31, s31, s32")
        A(f"buffer_store_dwordx4 v[180:183], v60, {s(WS, 4)}, s31 offen")
        A(f"{sk}:")
    A(f"s_cmp_ge_u32 s6, {FL_BYTES // 4096}\ns_cbranch_scc1 L_prep_nofl")
    A(f"s_lshl_b32 s31, s6, 12\ns_add_u32 s31, s31, {FL}")
    A(f"buffer_store_dwordx4 v[184:187], v60, {s(WS, 4)}, s31 offen")
    A("L_prep_nofl:")
    A("s_cmp_eq_u32 s6, 31\ns_cbranch_scc0 L_prep_nomem")
    A("v_and_b32 v61, 7, v1\nv_mul_u32_u24 v61, 896, v61\nv_lshrrev_b32 v62, 3, v1\nv_lshl_add_u32 v61, v62, 2, v61\nv_lshl_add_u32 v61, v2, 5, v61")
    A("v_lshlrev_b32 v62, 4, v0")
    for rep in range(2):
        sk = A.new("m0")
        A(f"s_add_u32 s31, s3, {4 * rep}\ns_cmp_ge_u32 s31, 7\ns_cbranch_scc1 {sk}")
        A("s_lshl_b32 s32, s31, 7\ns_lshl_b32 s33, s31, 10")
        for j in range(4):
            A(f"buffer_load_dword {v(188 + j)}, v61, {s(M0_, 4)}, s32 offen offset:{j * 8}")
        A(f"s_add_u32 s34, s33, {CM}\ns_add_u32 s35, s33, {XM}")
        A("s_waitcnt vmcnt(0)")
        for j in range(4):
            A(f"v_min_u32 {v(188 + j)}, -2, {v(188 + j)}")
        A(f"buffer_store_dwordx4 v[188:191], v62, {s(WS, 4)}, s34 offen")
        A(f"buffer_store_dwordx4 v[188:191], v62, {s(WS, 4)}, s35 offen")
        A(f"{sk}:")
    A("L_prep_nomem:")
    A("s_waitcnt vmcnt(0)")
    A("s_mov_b32 s29, 0xffff0000")
    for r in range(56):
        A(f"v_lshlrev_b32 {v(F + 2 * r)}, 16, {v(RAW + r)}")
        A(f"v_and_b32 {v(F + 2 * r + 1)}, s29, {v(RAW + r)}")
    S0 = 192
    for k in range(4):
        A(f"v_add_f32 {v(S0 + k)}, {v(F + k)}, {v(F + 4 + k)}")
    for r in range(8, 112):
        A(f"v_add_f32 {v(S0 + r % 4)}, {v(S0 + r % 4)}, {v(F + r)}")
    A(f"v_add_f32 {v(S0)}, {v(S0)}, {v(S0 + 1)}\nv_add_f32 {v(S0 + 2)}, {v(S0 + 2)}, {v(S0 + 3)}\nv_add_f32 {v(S0)}, {v(S0)}, {v(S0 + 2)}")
    xor_reduce(A, "v_add_f32", S0, S0 + 1)
    A(f"v_mul_f32 {v(S0)}, {f32(1.0 / 448)}, {v(S0)}")
    for r in range(112):
        A(f"v_sub_f32 {v(F + r)}, {v(F + r)}, {v(S0)}")
    for k in range(4):
        A(f"v_mul_f32 {v(S0 + 4 + k)}, {v(F + k)}, {v(F + k)}")
    for r in range(4, 112):
        A(f"v_fmac_f32 {v(S0 + 4 + r % 4)}, {v(F + r)}, {v(F + r)}")
    A(f"v_add_f32 {v(S0 + 4)}, {v(S0 + 4)}, {v(S0 + 5)}\nv_add_f32 {v(S0 + 6)}, {v(S0 + 6)}, {v(S0 + 7)}\nv_add_f32 {v(S0 + 4)}, {v(S0 + 4)}, {v(S0 + 6)}")
    xor_reduce(A, "v_add_f32", S0 + 4, S0 + 5)
    A(f"v_mov_b32 {v(S0 + 5)}, {f32(1e-5)}")
    A(f"v_fmac_f32 {v(S0 + 5)}, {f32(1.0 / 448)}, {v(S0 + 4)}")
    A(f"v_rsq_f32 {v(S0 + 5)}, {v(S0 + 5)}")
    A(f"s_mul_i32 s28, s7, {14 * KB}\ns_add_u32 s28, s28, {XF}")
    A("v_lshlrev_b32 v62, 4, v0")
    A("v_lshrrev_b32 v61, 1, v2\nv_lshlrev_b32 v61, 9, v61\nv_lshrrev_b32 v63, 1, v1\nv_lshl_add_u32 v61, v63, 4, v61\nv_and_b32 v63, 1, v2\nv_lshl_add_u32 v61, v63, 3, v61")
    A("v_and_b32 v63, 1, v1\nv_mul_u32_u24 v63, 14336, v63\nv_add_u32 v61, v61, v63")
    A(f"s_lshr_b32 s30, s7, 1\ns_mul_i32 s30, s30, {28 * KB}\ns_and_b32 s31, s7, 1\ns_lshl_b32 s31, s31, 7\ns_add_u32 s30, s30, s31\ns_add_u32 s30, s30, {XS}")
    for ks in range(14):
        for r in range(8):
            A(f"v_mul_f32 {v(F + ks * 8 + r)}, {v(F + ks * 8 + r)}, {v(S0 + 5)}")
        for r in range(4):
            A(f"v_cvt_pk_bf16_f32 {v(RAW + ks * 4 + r)}, {v(F + ks * 8 + 2 * r)}, {v(F + ks * 8 + 2 * r + 1)}")
        A(f"buffer_store_dwordx4 {v(RAW + ks * 4, 4)}, v62, {s(WS, 4)}, s28 offen offset:{(ks % 4) * 1024}")
        Q = 200 + 4 * (ks % 2)
        for r, d in enumerate((0, 2, 1, 3)):
            A(f"v_mov_b32 {v(Q + r)}, {v(RAW + ks * 4 + d)}")
        A(f"buffer_store_dwordx2 {v(Q, 2)}, v61, {s(WS, 4)}, s30 offen offset:{(ks % 4) * 1024}")
        A(f"buffer_store_dwordx2 {v(Q + 2, 2)}, v61, {s(WS, 4)}, s30 offen offset:{(ks % 4) * 1024 + 256}")
        if ks % 4 == 3:
            A("s_add_u32 s28, s28, 4096\ns_add_u32 s30, s30, 4096")
    dbg_time(A, opts, 3, 224, 2, WS, DBG)
    A("L_prep_end:")
    A("s_endpgm")
```

```python
from asmlib import v, a, s
from layout import *

WS, DB = 8, 12
S_W, S_ID, S_FOREIGN, S_POLL, S_NONCE = 3, 4, 5, 6, 98
POLL_MAX = 0x40000
OOB = 0x40000000
WV0 = 120


def wreg(idx, n, nacc=256, v0=WV0):
    return a(idx, n) if idx < nacc else v(v0 + idx - nacc, n)


class Cnt:
    def __init__(self, A, name, cap):
        self.A, self.name, self.cap, self.q = A, name, cap, []

    def op(self, text, tag=None):
        self.A(text)
        self.q.append(tag)

    def wait(self, *tags):
        last = -1
        for i, t in enumerate(self.q):
            if t in tags:
                last = i
        if last < 0:
            return
        n = min(len(self.q) - 1 - last, self.cap)
        self.A(f"s_waitcnt {self.name}({n})")
        self.q = self.q[len(self.q) - n:] if n else []

    def drain(self):
        self.A(f"s_waitcnt {self.name}(0)")
        self.q = []

    def room(self, n):
        if len(self.q) + n > self.cap:
            keep = self.cap - n
            self.A(f"s_waitcnt {self.name}({keep})")
            self.q = self.q[len(self.q) - keep:] if keep else []


def poll_guard(A):
    A(f"s_add_u32 {s(S_POLL)}, {s(S_POLL)}, 1\ns_cmp_gt_u32 {s(S_POLL)}, {POLL_MAX}\ns_cbranch_scc1 L_timeout")


def wait_prep(A, everything):
    lp, out = A.new("wp"), A.new("wpd")
    n = 4 if everything else 1
    A(f"s_cmp_eq_u32 {s(S_W)}, 0\ns_cbranch_scc0 {out}")
    if everything:
        A(f"v_lshlrev_b32 v4, 7, v0\ns_mov_b32 s34, {DONE}")
    else:
        A(f"v_and_b32 v4, 31, v0\nv_lshlrev_b32 v4, 7, v4\ns_mov_b32 s34, {DONE + 224 * 128}")
    A(f"{lp}:")
    for k in range(n):
        A(f"s_add_u32 s35, s34, {k * 8192}\nbuffer_load_dword {v(8 + k)}, v4, {s(WS, 4)}, s35 offen sc1")
    poll_guard(A)
    A(f"s_waitcnt vmcnt(0)\nv_cmp_ne_u32 vcc, {s(S_NONCE)}, v8")
    for k in range(1, n):
        A(f"v_cmp_ne_u32 s[36:37], {s(S_NONCE)}, {v(8 + k)}\ns_or_b64 vcc, vcc, s[36:37]")
    A(f"s_cbranch_vccz {out}\ns_sleep 2\ns_branch {lp}")
    A(f"{out}:\ns_barrier")


def load_pieces(A, pieces, task):
    lp = A.new("lp")
    full = (1 << len(pieces)) - 1
    A(f"v_lshlrev_b32 {v(task)}, 7, {v(task)}\ns_mov_b32 s38, 0\ns_mov_b32 s39, {DONE}")
    A(f"{lp}:")
    A(f"buffer_load_dword {v(task + 1)}, {v(task)}, {s(WS, 4)}, s39 offen sc1")
    poll_guard(A)
    A(f"s_waitcnt vmcnt(0)\nv_cmp_eq_u32 vcc, {s(S_NONCE)}, {v(task + 1)}\ns_andn2_b32 s40, vcc_lo, s38")
    for p, (n, emit) in enumerate(pieces):
        sk = A.new("lps")
        A(f"s_bitcmp1_b32 s40, {p}\ns_cbranch_scc0 {sk}\ns_waitcnt vmcnt({63 - n})")
        emit()
        A(f"{sk}:")
    A(f"s_or_b32 s38, s38, s40\ns_and_b32 s38, s38, {full}\ns_cmp_eq_u32 s38, {full}\ns_cbranch_scc0 {lp}")


def frag_loads(A, sreg, items, nacc=256, v0=WV0):
    base = None
    for idx, off in items:
        if base is None or not 0 <= off - base < 4096:
            base = off
            A(f"s_add_u32 s41, {s(sreg)}, {off}")
        A(f"buffer_load_dwordx4 {wreg(idx, 4, nacc, v0)}, v3, {s(WS, 4)}, s41 offen offset:{off - base} sc1")


def interleave(A, stream, fill):
    def em(x):
        if callable(x):
            x()
        else:
            A(x)
    for x in fill.get(-1, []):
        em(x)
    for i, m in enumerate(stream):
        em(m)
        for x in fill.get(i, []):
            em(x)


def spread(fill, start, items, per=2):
    g = start
    for it in items:
        while len(fill.setdefault(g, [])) >= per:
            g += 1
        fill[g].append(it)
    return g


def load_weights(A, vm, vaddr, tiles, sreg, n_ks=14, base_idx=0, nacc=256, v0=WV0, flags=" sc1"):
    idx = base_idx
    for setter in tiles:
        setter()
        for ks in range(n_ks):
            vm.room(1)
            vm.op(f"buffer_load_dwordx4 {wreg(idx, 4, nacc, v0)}, {v(vaddr)}, {s(WS, 4)}, {s(sreg)} offen offset:{(ks % 4) * 1024}{flags}", "w")
            if ks % 4 == 3:
                A(f"s_add_u32 {s(sreg)}, {s(sreg)}, 4096")
            idx += 4


def sentinel_check(A, regs, t, retry):
    regs = list(regs)
    A(f"v_max3_u32 {v(t)}, {v(regs[0])}, {v(regs[1])}, {v(regs[2])}")
    rest = regs[3:]
    while len(rest) >= 2:
        A(f"v_max3_u32 {v(t)}, {v(t)}, {v(rest[0])}, {v(rest[1])}")
        rest = rest[2:]
    if rest:
        A(f"v_max_u32 {v(t)}, {v(t)}, {v(rest[0])}")
    A(f"v_cmp_eq_u32 vcc, -1, {v(t)}\ns_cbranch_vccnz {retry}")


def stamp(A, opts, slot):
    if opts.get("stamps", 0) == 2:
        A(f"s_memtime {s(60 + 2 * slot, 2)}")
        if slot == 0:
            A("s_memrealtime s[74:75]")


def collect(A, opts, vb, sstep=44):
    if opts.get("stamps", 0) == 2:
        A(f"s_waitcnt lgkmcnt(0)\ns_mov_b32 m0, {s(sstep)}")
        for k in range(5):
            A(f"v_writelane_b32 {v(vb + k)}, {s(60 + 2 * k)}, m0")
        A(f"v_writelane_b32 {v(vb + 5)}, s74, m0")


def collect_lds(A, opts, sbase, off, t, sstep=44):
    if opts.get("stamps", 0) == 2:
        A(f"s_waitcnt lgkmcnt(0)\ns_lshl_b32 s78, {s(sstep)}, 2\ns_add_u32 s78, s78, {s(sbase)}\nv_mov_b32 {v(t + 1)}, s78")
        for k, r in enumerate([60, 62, 64, 66, 68, 74]):
            A(f"v_mov_b32 {v(t)}, {s(r)}\nds_write_b32 {v(t + 1)}, {v(t)} offset:{off + 256 * k}")


def fetch_lds(A, opts, sbase, off, vb):
    if opts.get("stamps"):
        A(f"v_lshrrev_b32 v0, 4, v3\nv_lshlrev_b32 v4, 2, v0\nv_add_u32 v4, {s(sbase)}, v4")
        for k in range(6):
            A(f"ds_read_b32 {v(vb + k)}, v4 offset:{off + 256 * k}")
        A("s_waitcnt lgkmcnt(0)")


def mark(A, opts, k):
    if opts.get("stamps"):
        A(f"s_memtime s[78:79]\ns_memrealtime s[76:77]\ns_waitcnt lgkmcnt(0)\ns_mov_b32 {s(80 + 2 * k)}, s78\ns_mov_b32 {s(81 + 2 * k)}, s76")


def flush_stamps(A, opts, vb=114):
    if opts.get("stamps"):
        mark(A, opts, 7)
        A(f"s_lshl_b32 s78, {s(S_ID)}, 2\ns_add_u32 s78, s78, {s(S_W)}\ns_lshl_b32 s78, s78, 11\ns_add_u32 s78, s78, {DBG}")
        A("v_lshlrev_b32 v4, 2, v0")
        for k in range(6):
            A(f"buffer_store_dword {v(vb + k)}, v4, {s(WS, 4)}, s78 offen offset:{256 * k}")
        A("v_mov_b32 v4, 0")
        for k in range(16):
            A(f"v_mov_b32 v5, {s(80 + k)}\nbuffer_store_dword v5, v4, {s(WS, 4)}, s78 offen offset:{1536 + 4 * k}")


def dbg_time(A, opts, slot, who, sreg=S_ID, srd=DB, base=80):
    if opts.get("tl"):
        sk = A.new("tl")
        A(f"s_cmp_eq_u32 {s(sreg)}, {who}\ns_cbranch_scc0 {sk}\ns_cmp_eq_u32 s3, 0\ns_cbranch_scc0 {sk}")
        A("s_memrealtime s[76:77]\ns_waitcnt lgkmcnt(0)")
        A(f"v_mov_b32 v4, s76\nv_mov_b32 v5, {(16 if slot < 4 else 32) + 4 * slot}\nbuffer_store_dword v4, v5, {s(srd, 4)}, 0 offen\n{sk}:")
```

```python
from asmlib import v, a, s
from layout import *
from common import *
from gen_prep import chunk_pos

SMF = "v_smfmac_f32_16x16x64_bf16"
MF = "v_mfma_f32_16x16x32_bf16"
N_CHAIN = 31


def chain_mode(A, opts, vm, lab):
    lp = A.new("reg")
    A("v_mov_b32 v5, 68")
    A(f"{lp}:")
    A(f"buffer_load_dword v4, v5, {s(DB, 4)}, 0 offen sc1")
    poll_guard(A)
    vm.drain()
    A(f"v_readfirstlane_b32 s34, v4\ns_and_b32 s35, s34, 0xff\ns_cmp_eq_u32 s35, {N_CHAIN}\ns_cbranch_scc0 {lp}")
    mark(A, opts, 1)
    dbg_time(A, opts, 5, 16)
    if lab:
        A(f"s_waitcnt lgkmcnt(0)\ns_lshr_b32 s34, s34, 8\ns_cmp_eq_u32 s34, 0\ns_cbranch_scc0 {lab}")


def gather_addr(A, ga0, ga1):
    A(f"s_mul_i32 s33, {s(S_W)}, {112 * 16}\nv_add_u32 {v(ga0)}, s33, v3")
    A(f"v_min_u32 {v(ga1)}, 47, v0\nv_lshlrev_b32 {v(ga1)}, 4, {v(ga1)}\ns_add_u32 s33, s33, 1024\nv_add_u32 {v(ga1)}, s33, {v(ga1)}")


def mem_loads(A, G, ga0, ga1, scm):
    A(f"buffer_load_dwordx4 {v(G, 4)}, {v(ga0)}, {s(WS, 4)}, {s(scm)} offen sc1")
    A(f"buffer_load_dwordx4 {v(G + 4, 4)}, {v(ga1)}, {s(WS, 4)}, {s(scm)} offen sc1")


def check8(A, G, t):
    A(f"v_max3_u32 {v(t)}, {v(G)}, {v(G + 1)}, {v(G + 2)}\nv_max3_u32 {v(t + 1)}, {v(G + 3)}, {v(G + 4)}, {v(G + 5)}")
    A(f"v_max3_u32 {v(t)}, {v(t)}, {v(G + 6)}, {v(G + 7)}\nv_max_u32 {v(t)}, {v(t)}, {v(t + 1)}\nv_cmp_eq_u32 vcc, -1, {v(t)}")


def gather_mem(A, opts, G0, G1, ga0, ga1, scm, t, memb, shadow, ka=""):
    lp, ok = A.new("poll"), A.new("ok")
    mem_loads(A, G0, ga0, ga1, scm)
    for x in shadow:
        A(x)
    A(f"{lp}:")
    for cur, other in ((G0, G1), (G1, G0)):
        mem_loads(A, other, ga0, ga1, scm)
        poll_guard(A)
        A(ka)
        A("s_waitcnt vmcnt(2)")
        A(f"ds_write_b128 {v(ga0)}, {v(cur, 4)} offset:{memb}\nds_write_b128 {v(ga1)}, {v(cur + 4, 4)} offset:{memb}")
        check8(A, cur, t)
        if opts.get("solo"):
            A(f"s_cbranch_vccz {ok}\ns_branch {ok}")
        A(f"s_cbranch_vccz {ok}" if cur == G0 else f"s_cbranch_vccnz {lp}")
    A(f"{ok}:")
    stamp(A, opts, 0)
    A("s_waitcnt lgkmcnt(0)\ns_barrier")


def notice_wait(A, opts, F, fa, sreg, off, shadow, sstep=None):
    if opts.get("solo"):
        for x in shadow:
            A(x)
        return
    depth = opts.get("nd", 3)
    lp, ok = A.new("nw"), A.new("nok")
    ld = lambda k: A(f"buffer_load_dword {v(F + k)}, {v(fa)}, {s(WS, 4)}, {s(sreg)} offen offset:{off} sc1")
    for k in range(depth - 1):
        ld(k)
    for x in shadow:
        A(x)
    if sstep is not None:
        A(f"s_cmp_eq_u32 {s(sstep)}, 0\ns_cbranch_scc1 {ok}")
    A(f"{lp}:")
    poll_guard(A)
    for k in range(depth):
        ld((k + depth - 1) % depth)
        A(f"s_waitcnt vmcnt({depth - 1})\nv_cmp_ne_u32 vcc, {s(S_NONCE)}, {v(F + k)}")
        A(f"s_cbranch_vccz {ok}" if k < depth - 1 else f"s_cbranch_vccnz {lp}")
    A(f"{ok}:")


def fetch_mem(A, opts, G, ga0, ga1, scm, t, memb, ka=""):
    lp = A.new("fm")
    A(f"{lp}:")
    mem_loads(A, G, ga0, ga1, scm)
    poll_guard(A)
    A(ka)
    A("s_waitcnt vmcnt(0)")
    A(f"ds_write_b128 {v(ga0)}, {v(G, 4)} offset:{memb}\nds_write_b128 {v(ga1)}, {v(G + 4, 4)} offset:{memb}")
    check8(A, G, t)
    if opts.get("stamps") == 2:
        A("s_add_u32 s53, s53, 1")
    if not opts.get("solo"):
        A(f"s_cbranch_vccnz {lp}")
    stamp(A, opts, 0)
    A("s_waitcnt lgkmcnt(0)\ns_barrier")


def notice(A, val, addr, sreg, off, sc):
    A(f"buffer_store_dword {v(val)}, {v(addr)}, {s(WS, 4)}, {s(sreg)} offen offset:{off}{sc}")


def idx_reg(A, r):
    A(f"v_mov_b32 {v(r)}, 0x44444444\nv_mov_b32 v4, 0xeeeeeeee\nv_cmp_gt_u32 vcc, 8, v1\nv_cndmask_b32 {v(r)}, v4, {v(r)}, vcc")


def zero(r, n):
    return [f"v_mov_b64 {v(r + 2 * k, 2)}, 0" for k in range(n // 2)]


def emit_stream(A, stream, fill):
    for i, m_ in enumerate(stream):
        m_() if callable(m_) else A(m_)
        items = fill.get(i, [])
        for x in items:
            x() if callable(x) else A(x)
        if not items and i + 1 < len(stream):
            A("s_nop 1")


def gen_chain_a(A, opts):
    MEM, ACC, KEY, TSP, SC, PK, IDX = 4, 32, 60, 84, 92, 104, 108
    GA0, GA1, SR2, FA, MK, MK3, TW0, TW1, TWS, TR0, TR1 = range(109, 120)
    XR, SW, SR, PX, PM = 0, 1, 2, 106, 107
    T = 104
    REG = 32768
    XK, TB, SB, MEMB = 0, 16384, 20480, 24576
    sS, sCM, sCP, sXA, sXB, sM0, sP0, sODD, sREG, sEF = 44, 45, 46, 47, 48, 49, 50, 51, 52, 54
    vm = Cnt(A, "vmcnt", 63)
    A(f"s_and_b32 {s(sODD)}, {s(S_W)}, 1\ns_mul_i32 s33, {s(S_W)}, 7\ns_add_u32 {s(sP0)}, s33, {s(sODD)}\ns_lshr_b32 {s(sP0)}, {s(sP0)}, 1")
    A(f"s_lshl_b32 {s(sREG)}, {s(S_W)}, 15\ns_mov_b32 {s(sM0)}, {s(sREG)}")
    A(f"s_lshl_b32 {s(sXA)}, {s(sP0)}, 10\ns_add_u32 {s(sXA)}, {s(sXA)}, {XS}\ns_lshl_b32 s33, {s(sODD)}, 12\ns_sub_u32 {s(sXB)}, {s(sXA)}, s33")

    def dma(k):
        aa, b = k // 4, k % 4
        pre = f"s_add_u32 s33, {s(sM0)}, {aa * 4096}\ns_mov_b32 m0, s33\n" if b == 0 else ""
        if b in (0, 3):
            pre += f"s_add_u32 s34, {s(sXB if b == 3 else sXA)}, {aa * 14336}\n"
        return pre + f"buffer_load_dwordx4 v3, {s(WS, 4)}, s34 offen offset:{b * 1024} sc1 lds"

    A(f"s_mul_i32 s34, {s(S_ID)}, {FRAG_H}\ns_mul_i32 s33, {s(S_W)}, {7 * 14 * KB}\ns_add_u32 s34, s34, s33")
    if AF:
        A(f"s_add_u32 s34, s34, {AF}")
    A(f"s_mul_i32 s35, {s(sODD)}, {14 * KB}\ns_add_u32 s35, s35, s34\ns_add_u32 s36, s34, {6 * 14 * KB}\ns_cmp_eq_u32 {s(sODD)}, 0\ns_cselect_b32 s36, s36, s34")
    A(f"s_mul_i32 s33, {s(S_ID)}, 7\nv_min_u32 v4, 6, v0\nv_add_u32 v4, s33, v4")

    def piece(kk):
        frag_loads(A, 35, [((i * 7 + kk) * 8 + 4 * u, i * 14 * KB + (2 * kk + u) * KB) for i in range(6) for u in range(2)])
        frag_loads(A, 36, [((42 + kk) * 8 + 4 * u, (2 * kk + u) * KB) for u in range(2)])

    load_pieces(A, [(14, lambda kk=kk: piece(kk)) for kk in range(7)], 4)
    wait_prep(A, True)
    for k in range(8):
        A(dma(k))
    gather_addr(A, GA0, GA1)
    idx_reg(A, IDX)
    A(f"v_and_b32 v4, 7, v1\nv_lshlrev_b32 v4, 4, v4\nv_lshl_add_u32 v4, v2, 7, v4\ns_lshl_b32 s33, {s(sP0)}, 9\nv_add_u32 {v(MK)}, s33, v4")
    A(f"s_lshl_b32 s34, {s(sODD)}, 11\ns_sub_u32 s34, 1536, s34\nv_add_u32 {v(MK3)}, s34, {v(MK)}")
    A(f"v_lshrrev_b32 v4, 1, v2\nv_lshlrev_b32 v4, 3, v4\nv_xor_b32 v4, v4, v1\nv_lshlrev_b32 v4, 3, v4\nv_lshl_add_u32 v4, v2, 7, v4")
    A(f"v_add_u32 {v(TW0)}, {s(sREG)}, v4\nv_xor_b32 {v(TW1)}, 32, {v(TW0)}\nv_add_u32 {v(TW1)}, 512, {v(TW1)}")
    A(f"s_cmp_eq_u32 {s(sODD)}, 0\ns_cselect_b64 vcc, -1, 0\nv_cndmask_b32 {v(TWS)}, {v(TW1)}, {v(TW0)}, vcc")
    A("v_lshrrev_b32 v4, 2, v1\nv_and_b32 v5, 3, v1")
    A("v_lshrrev_b32 v6, 1, v2\nv_lshrrev_b32 v7, 1, v5\nv_xor_b32 v6, v6, v7\nv_lshlrev_b32 v6, 3, v6")
    A("v_and_b32 v7, 1, v2\nv_lshl_add_u32 v6, v7, 1, v6\nv_and_b32 v7, 1, v4\nv_add_u32 v6, v6, v7")
    A("v_lshrrev_b32 v7, 1, v4\nv_lshl_add_u32 v6, v7, 2, v6\nv_lshlrev_b32 v6, 3, v6\nv_lshl_add_u32 v6, v7, 9, v6\nv_lshl_add_u32 v6, v5, 7, v6")
    A(f"v_add_u32 {v(TR0)}, {s(sREG)}, v6\nv_xor_b32 {v(TR1)}, 32, {v(TR0)}")
    A(f"v_add_u32 v12, {s(sREG)}, v3")
    for r in range(4):
        A(f"v_mov_b32 {v(8 + r)}, 0")
    A(f"ds_write_b128 v12, v[8:11] offset:{TB + 3072}")
    A(f"s_lshl_b32 s33, {s(sODD)}, 2\nv_add_u32 v4, s33, v2")
    A("v_bfe_u32 v5, v1, 2, 1\nv_lshlrev_b32 v5, 5, v5\nv_and_b32 v6, 1, v1\nv_lshl_add_u32 v5, v6, 4, v5\nv_bfe_u32 v6, v1, 1, 1\nv_lshl_add_u32 v5, v6, 3, v5\nv_lshrrev_b32 v6, 3, v1\nv_lshl_add_u32 v5, v6, 2, v5")
    A(f"v_lshl_add_u32 {v(PX)}, v4, 6, v5")
    A(f"v_lshlrev_b32 v4, 4, v4\nv_lshl_add_u32 v4, v1, 1, v4\nv_add_u32 v4, 512, v4\nv_and_b32 v5, 9, v1\nv_cmp_eq_u32 vcc, 0, v5\nv_mov_b32 v5, {OOB}\nv_cndmask_b32 {v(PM)}, v5, v4, vcc")
    A(f"v_lshrrev_b32 v4, 1, v2\nv_lshlrev_b32 v4, 5, v4\nv_add_u32 v4, v4, v1\ns_lshl_b32 s33, {s(sODD)}, 4\nv_add_u32 v4, s33, v4\nv_lshlrev_b32 v4, 3, v4")
    A(f"v_and_b32 v5, 1, v2\nv_lshl_add_u32 v4, v5, 2, v4\nv_add_u32 v13, {SB}, v4\nv_lshlrev_b32 v14, 3, v0\nv_add_u32 v14, {s(sREG)}, v14")
    A(f"v_min_u32 {v(FA)}, {55 if opts.get('pw', 1) else 13}, v0\nv_lshlrev_b32 {v(FA)}, 2, {v(FA)}\ns_lshl_b32 s33, {s(S_ID)}, 8\nv_add_u32 {v(FA)}, s33, {v(FA)}\ns_mov_b32 {s(sEF)}, {EF}\ns_mov_b32 s53, 0")
    chunk_pos(A, 12, 1, 2, 4)
    A(f"v_add_u32 v12, {s(sREG)}, v12")
    A(f"v_mov_b32 {v(XR)}, v12\nv_mov_b32 {v(SW)}, v14\nv_mov_b32 {v(SR)}, v13\nv_add_u32 {v(SR2)}, {2 * REG}, v13")
    A(f"s_mov_b32 {s(sS)}, 0\ns_mov_b32 {s(sCM)}, {CM}\ns_mul_i32 {s(sCP)}, {s(S_ID)}, 640\ns_add_u32 {s(sCP)}, {s(sCP)}, {CP}")
    slow = A.new("a_slow")
    chain_mode(A, opts, vm, slow)
    ka = lambda n, r=ACC: "".join(f"{MF} {v(r, 4)}, {v(TSP, 4)}, {v(TSP, 4)}, {v(r, 4)}\n" for _ in range(n))

    def loop(sc):
        top, nxt, done, lp, ok, idle = (A.new(x) for x in ("a_top", "a_next", "a_done", "a_poll", "a_ok", "a_idle"))
        G0, G1 = KEY, KEY + 8
        A(f"{top}:")
        notice_wait(A, opts, G1, FA, sEF, 0, zero(ACC, 28), sS)
        fetch_mem(A, opts, G0, GA0, GA1, sCM, T, MEMB, ka(opts.get('ka_m', 0), SC))
        stamp(A, opts, 1)
        lg = Cnt(A, "lgkmcnt", 15)
        for kk in range(7):
            lg.op(f"ds_read_b128 {v(MEM + 4 * kk, 4)}, v3 offset:{MEMB + kk * 1024}", f"m{kk}")

        def tile(i):
            out = []
            for kk in range(7):
                txt = f"{SMF} {v(ACC + 4 * i, 4)}, {v(MEM + 4 * kk, 4)}, {wreg((i * 7 + kk) * 8, 8)}, {v(IDX)}"
                out.append((lambda txt=txt, kk=kk: (lg.wait(f"m{kk}"), A(txt))) if i == 0 else txt)
            return out

        def score(b):
            out = []
            for tau in range(3):
                c = "0" if b == 0 else v(SC + 4 * tau, 4)
                txt = f"{MF} {v(SC + 4 * tau, 4)}, {v(TSP + 4 * (b % 2), 4)}, {v(KEY + 12 * (b % 2) + 4 * tau, 4)}, {c}"
                out.append((lambda txt=txt: (lg.wait(f"tr{b}", f"k{b}"), A(txt))) if tau == 0 else txt)
            return out

        def keys(b):
            K = KEY + 12 * (b % 2)
            out = [lambda aa=aa: lg.op(f"ds_read_b128 {v(K + 4 * aa, 4)}, {v(XR)} offset:{XK + aa * 4096 + b * 1024}", f"k{b}") for aa in range(2)]
            reg, o = (MK3, 0) if b == 3 else (MK, b * 512)
            out.append(lambda: lg.op(f"ds_read_b128 {v(K + 8, 4)}, {v(reg)} offset:{MEMB + o}", f"k{b}"))
            return out

        def epi(i):
            D = ACC + 4 * i
            addr, off = (TWS, 3072) if i == 6 else ((TW0, TW1)[i % 2], (i // 2) * 1024)
            return [f"v_cvt_pk_bf16_f32 {v(PK)}, {v(D)}, {v(D + 1)}", f"v_cvt_pk_bf16_f32 {v(PK + 1)}, {v(D + 2)}, {v(D + 3)}",
                    lambda: lg.op(f"ds_write_b64 {v(addr)}, {v(PK, 2)} offset:{TB + off}", f"t{i}")]

        def trs(b):
            return [lambda x=x: lg.op(f"ds_read_b64_tr_b16 {v(TSP + 4 * (b % 2) + 2 * x, 2)}, {v((TR0, TR1)[x])} offset:{TB + b * 1024}", f"tr{b}") for x in range(2)]

        stream = tile(0) + tile(1) + tile(2) + tile(3) + score(0) + tile(4) + tile(5) + score(1) + tile(6) + score(2)
        fill = {}

        def put(g, items):
            for k, it in enumerate(items):
                assert g + k not in fill, g + k
                fill[g + k] = [it]

        put(7, keys(0))
        put(11, epi(0))
        put(15, keys(1))
        put(18, epi(1))
        put(21, trs(0))
        put(25, epi(2))
        k2 = keys(2)
        put(31, k2[:1])
        put(32, epi(3))
        put(35, trs(1))
        put(38, k2[1:])
        put(41, epi(4))
        put(47, epi(5))
        put(50, trs(2))
        put(52, keys(3))
        emit_stream(A, stream, fill)
        stamp(A, opts, 2)
        for x in epi(6) + trs(3):
            x() if callable(x) else A(x)
        if opts.get("ka_tr"):
            A(ka(opts["ka_tr"]))
        for x in score(3):
            x() if callable(x) else A(x)
            A("s_nop 1")
        X = MEM
        A(f"s_cmp_ge_u32 {s(S_W)}, 2")
        for tau in range(3):
            D = SC + 4 * tau
            A(f"v_permlane32_swap_b32 {v(D)}, {v(D + 2)}\nv_permlane32_swap_b32 {v(D + 1)}, {v(D + 3)}")
            if opts.get("pk", 1):
                A(f"v_pk_add_f32 {v(X + 2 * tau, 2)}, {v(D, 2)}, {v(D + 2, 2)}")
            else:
                A(f"v_add_f32 {v(X + 2 * tau)}, {v(D)}, {v(D + 2)}\nv_add_f32 {v(X + 2 * tau + 1)}, {v(D + 1)}, {v(D + 3)}")
            A(f"ds_write_b64 {v(SW)}, {v(X + 2 * tau, 2)} offset:{SB + 512 * tau}")
        if opts.get("ka_x"):
            A(ka(opts["ka_x"]))
        A("s_waitcnt lgkmcnt(0)\ns_barrier")
        stamp(A, opts, 3)
        A(f"s_cbranch_scc1 {idle}")
        R = MEM + 8
        for tau in range(3):
            A(f"ds_read2st64_b32 {v(R + 4 + 4 * tau, 2)}, {v(SR)} offset0:{2 * tau} offset1:{2 * tau + 128}")
            A(f"ds_read2st64_b32 {v(R + 6 + 4 * tau, 2)}, {v(SR2)} offset0:{2 * tau} offset1:{2 * tau + 128}")
        for tau in range(3):
            A(f"s_waitcnt lgkmcnt({4 - 2 * tau})")
            A(f"v_pk_add_f32 {v(R + 4 + 4 * tau, 2)}, {v(R + 4 + 4 * tau, 2)}, {v(R + 6 + 4 * tau, 2)}")
            A(f"v_add_f32 {v(R + tau)}, {v(R + 4 + 4 * tau)}, {v(R + 5 + 4 * tau)}")
        mx, sm = T, T + 1
        A(f"v_max3_f32 {v(mx)}, {v(R)}, {v(R + 1)}, {v(R + 2)}")
        for rot in (8, 4, 2, 1):
            A(f"v_max_f32_dpp {v(mx)}, {v(mx)}, {v(mx)} row_ror:{rot} row_mask:0xf bank_mask:0xf")
        for tau in (2, 0, 1):
            A(f"v_sub_f32 {v(R + tau)}, {v(R + tau)}, {v(mx)}")
        for tau in (2, 0, 1):
            A(f"v_exp_f32 {v(R + tau)}, {v(R + tau)}")
        A(f"v_fma_f32 {v(sm)}, 0.5, {v(R + 2)}, {v(R)}")
        A(f"v_mov_b32_dpp {v(R + 3)}, {v(R + 2)} quad_perm:[1,0,3,2] row_mask:0xf bank_mask:0xf")
        A(f"v_add_f32 {v(sm)}, {v(sm)}, {v(R + 1)}")
        for rot in (8, 4, 2, 1):
            A(f"v_add_f32_dpp {v(sm)}, {v(sm)}, {v(sm)} row_ror:{rot} row_mask:0xf bank_mask:0xf")
        A(f"v_rcp_f32 {v(sm)}, {v(sm)}")
        for k in range(4):
            A(f"v_mul_f32 {v(R + k)}, {v(R + k)}, {v(sm)}")
        A(f"v_cvt_pk_bf16_f32 {v(R)}, {v(R)}, {v(R + 1)}\nv_cvt_pk_bf16_f32 {v(R + 2)}, {v(R + 2)}, {v(R + 3)}")
        A(f"v_min_u32 {v(R)}, -2, {v(R)}")
        A(f"buffer_store_dword {v(R)}, {v(PX)}, {s(WS, 4)}, {s(sCP)} offen{sc}")
        A(f"v_min_u32 {v(R + 2)}, -2, {v(R + 2)}")
        A(f"buffer_store_dword {v(R + 2)}, {v(PM)}, {s(WS, 4)}, {s(sCP)} offen{sc}")
        A(f"{nxt}:")
        stamp(A, opts, 4)
        collect_lds(A, opts, sREG, 22528, T)
        A(f"s_add_u32 {s(sS)}, {s(sS)}, 1\ns_add_u32 {s(sCM)}, {s(sCM)}, {0 if opts.get('solo') else 8192}\ns_add_u32 {s(sCP)}, {s(sCP)}, {0 if opts.get('solo') else 10240}")
        adv = 0 if opts.get("solo") else EF_STEP
        A(f"s_add_u32 {s(sEF)}, {s(sEF)}, {adv}\ns_add_u32 {s(sXA)}, {s(sXA)}, {28 * KB}\ns_add_u32 {s(sXB)}, {s(sXB)}, {28 * KB}")
        A("s_barrier")
        if not opts.get("nodma"):
            for k in range(8):
                A(dma(k))
        A(f"s_cmp_eq_u32 {s(sS)}, 63\ns_cbranch_scc0 {top}")
        A("s_waitcnt vmcnt(0)")
        A("s_mov_b32 s84, s53" if opts.get("stamps") == 2 else "")
        fetch_lds(A, opts, sREG, 22528, 10)
        flush_stamps(A, opts, 10)
        A("s_endpgm")
        A(f"{idle}:")
        A(f"v_lshrrev_b32 {v(T + 1)}, 4, v3\nv_min_u32 {v(T + 1)}, 13, {v(T + 1)}\ns_lshl_b32 s33, {s(S_ID)}, 2\ns_add_u32 s33, s33, {EF_P}")
        A(f"v_lshl_add_u32 {v(T + 1)}, {v(T + 1)}, 7, s33\nv_mov_b32 {v(T)}, {s(S_NONCE)}")
        A(ka(opts.get("la", 6)))
        w3 = A.new("a_w3")
        A(f"s_cmp_eq_u32 {s(S_W)}, 2\ns_cbranch_scc0 {w3}")
        notice(A, T, T + 1, sEF, 0, sc)
        A(f"s_branch {nxt}\n{w3}:")
        A(ka(opts.get("ka_sm", 0)))
        A(f"s_branch {nxt}")

    loop("")
    A(f"{slow}:")
    loop(" sc1")


def gen_chain_b(A, opts):
    MEM, ZACC, ZOP, Y, OACC, IDX = 4, 32, 60, 76, 108, 132
    GA0, GA1, PXA, PMA, RW, RR0, RR1, MO, WR, FA, FV = range(133, 144)
    FM, NZ, NA, FP = 128, 129, 130, 131
    T, WST, V0 = 116, 144, 176
    RED, WL = 8192, 12288
    sS, sCM, sCP, sY, sEF, sC, sFY = 44, 45, 46, 47, 48, 50, 51
    vm = Cnt(A, "vmcnt", 63)
    A(f"s_sub_u32 {s(sC)}, {s(S_ID)}, 16")
    A(f"s_mul_i32 s34, {s(S_W)}, {4 * FRAG_H}\ns_mul_i32 s33, {s(sC)}, {28 * KB}\ns_add_u32 s34, s34, s33\ns_add_u32 s34, s34, {BF}")
    A(f"s_mul_i32 s36, {s(S_W)}, {28 * KB}\ns_add_u32 s36, s36, {WL}\nv_add_u32 {v(WR)}, s36, v3\ns_add_u32 s37, s34, {3 * FRAG_H}")
    A(f"s_mul_i32 s33, {s(S_W)}, 28\ns_lshr_b32 s35, {s(sC)}, 1\ns_add_u32 s33, s33, s35\ns_add_u32 s33, s33, 112\nv_and_b32 v4, 3, v0\nv_mul_u32_u24 v4, 7, v4\nv_add_u32 v4, s33, v4")

    def piece(hh):
        if hh < 3:
            frag_loads(A, 34, [((hh * 28 + k) * 4, hh * FRAG_H + k * KB) for k in range(28)], v0=V0)
            return
        for q in range(7):
            A("s_mov_b32 m0, s36\ns_add_u32 s36, s36, 4096")
            for k in range(4):
                A(f"buffer_load_dwordx4 v3, {s(WS, 4)}, s37 offen offset:{k * 1024} sc1 lds")
            A("s_add_u32 s37, s37, 4096")

    load_pieces(A, [(28, lambda hh=hh: piece(hh)) for hh in range(4)], 4)
    wait_prep(A, True)
    gather_addr(A, GA0, GA1)
    idx_reg(A, IDX)
    A("v_and_b32 v4, 7, v1\nv_lshrrev_b32 v5, 3, v1\nv_lshrrev_b32 v6, 1, v2\nv_and_b32 v7, 1, v2")
    A(f"s_mul_i32 s33, {s(S_W)}, 2560")
    A(f"v_mul_u32_u24 v8, 640, v6\nv_lshl_add_u32 v8, v4, 6, v8\nv_lshl_add_u32 v8, v7, 5, v8\nv_lshl_add_u32 v8, v5, 4, v8\nv_add_u32 {v(PXA)}, s33, v8")
    A(f"v_lshl_add_u32 v8, v6, 1, v5\nv_mul_u32_u24 v8, 640, v8\nv_lshl_add_u32 v8, v4, 4, v8\ns_add_u32 s33, s33, 512\nv_add_u32 {v(PMA)}, s33, v8")
    A(f"v_lshl_add_u32 v8, v6, 1, v7\nv_xor_b32 v8, v0, v8\nv_lshlrev_b32 v8, 4, v8\ns_lshl_b32 s33, {s(S_W)}, 10\ns_add_u32 s33, s33, {RED}\nv_add_u32 {v(RW)}, s33, v8")
    A("v_lshrrev_b32 v4, 5, v0\nv_bfe_u32 v5, v0, 2, 3\nv_and_b32 v6, 3, v0")
    A("v_and_b32 v7, 1, v6\nv_lshrrev_b32 v8, 2, v5")
    A(f"v_lshlrev_b32 v9, 5, v7\nv_lshl_add_u32 v9, v8, 4, v9\ns_and_b32 s33, {s(S_W)}, 1\ns_lshl_b32 s33, s33, 3\nv_add_u32 v9, s33, v9")
    A("v_lshrrev_b32 v10, 1, v6\nv_lshl_add_u32 v9, v10, 2, v9\nv_lshl_add_u32 v9, v4, 1, v9")
    A("v_lshl_add_u32 v10, v7, 1, v8\nv_xor_b32 v9, v9, v10\nv_lshlrev_b32 v9, 4, v9\nv_and_b32 v10, 3, v5\nv_lshl_add_u32 v9, v10, 2, v9")
    A(f"v_add_u32 {v(RR0)}, {RED}, v9\nv_xor_b32 {v(RR1)}, 16, {v(RR0)}")
    A(f"s_lshl_b32 s33, {s(sC)}, 9\ns_and_b32 s35, {s(S_W)}, 1\ns_lshl_b32 s35, s35, 8\ns_add_u32 s33, s33, s35\nv_lshl_add_u32 {v(MO)}, v0, 2, s33")
    A(f"v_lshlrev_b32 {v(FA)}, 7, v1\nv_mov_b32 {v(FV)}, 0")
    A(f"s_mov_b32 {s(sS)}, 0\ns_mov_b32 {s(sCM)}, {CM}\ns_mov_b32 {s(sCP)}, {CP}")
    A(f"s_mul_i32 s33, {s(S_W)}, {4 * 28 * KB}\ns_lshl_b32 s35, {s(sC)}, 11\ns_add_u32 {s(sY)}, s33, s35\ns_add_u32 {s(sY)}, {s(sY)}, {YF}")
    A(f"s_mov_b32 {s(sFY)}, {FY}\ns_mov_b32 {s(sEF)}, {EF}\ns_mov_b32 s53, 0\ns_mov_b32 s55, 0")
    pw = opts.get("pw", 1)
    A(f"v_min_u32 {v(FM)}, {55 if pw else 13}, v0\nv_lshlrev_b32 {v(FM)}, 2, {v(FM)}\ns_lshl_b32 s33, {s(S_ID)}, 8\nv_add_u32 {v(FM)}, s33, {v(FM)}")
    A(f"s_lshl_b32 s33, {s(sC)}, 7\ns_add_u32 s33, s33, {EF_P}\nv_lshl_add_u32 {v(FP)}, v1, 2, s33")
    if pw:
        A(f"s_lshl_b32 s33, {s(sC)}, 2\ns_add_u32 s33, s33, {s(S_W)}\ns_lshl_b32 s33, s33, 2")
    else:
        A(f"s_lshl_b32 s33, {s(sC)}, 2")
    A(f"s_add_u32 s33, s33, {EF_STEP}\nv_min_u32 {v(NA)}, 29, v0\nv_lshl_add_u32 {v(NA)}, {v(NA)}, 8, s33\nv_mov_b32 {v(NZ)}, {s(S_NONCE)}")
    slow = A.new("b_slow")
    chain_mode(A, opts, vm, slow)
    ka = lambda n: "".join(f"{MF} {v(ZACC + 8, 4)}, {v(ZOP, 4)}, {v(ZOP, 4)}, {v(ZACC + 8, 4)}\n" for _ in range(n))

    def loop(sc):
        top, nxt, last, noy, yok, ypoll, noflag, gm, gp, idle, noz = (A.new("b_" + x) for x in ("top", "next", "last", "noy", "yok", "ypoll", "nofl", "gm", "gp", "idle", "noz"))
        A(f"{top}:")
        if opts.get("ndb", 1):
            notice_wait(A, dict(opts, nd=opts.get('ndb', 1)), WST + 8, FM, sEF, 0, zero(ZACC, 28) + zero(OACC, 8), sS)
        else:
            for x in zero(ZACC, 28) + zero(OACC, 8):
                A(x)
        fetch_mem(A, opts, WST, GA0, GA1, sCM, T, 0)
        lg = Cnt(A, "lgkmcnt", 15)
        for kk in range(7):
            lg.op(f"ds_read_b128 {v(MEM + 4 * kk, 4)}, v3 offset:{kk * 1024}", f"m{kk}")
        A(f"v_cmp_ne_u32 vcc, {s(S_NONCE)}, {v(FV)}\ns_cbranch_vccz {yok}")
        A(f"{ypoll}:")
        A(f"buffer_load_dword {v(FV)}, {v(FA)}, {s(WS, 4)}, {s(sFY)} offen sc1")
        poll_guard(A)
        A(f"s_waitcnt vmcnt(0)\nv_cmp_ne_u32 vcc, {s(S_NONCE)}, {v(FV)}\ns_cbranch_vccnz {ypoll}")
        A(f"{yok}:")
        bulk = []
        for hh in range(4):
            for vv in range(0 if opts.get("noy") else 2):
                pre = f"s_add_u32 s33, {s(sY)}, {hh * 28 * KB}\n" if vv == 0 else ""
                bulk.append(pre + f"buffer_load_dwordx4 {v(Y + 16 * (hh // 2) + 8 * vv + 4 * (hh % 2), 4)}, v3, {s(WS, 4)}, s33 offen offset:{vv * 1024} sc1")
        bulk.append(f"s_add_u32 {s(sFY)}, {s(sFY)}, {FL_STEP}\nbuffer_load_dword {v(FV)}, {v(FA)}, {s(WS, 4)}, {s(sFY)} offen sc1")
        order = []
        regs = [(t, kk) for t in range(6) for kk in range(7)]
        for n in range(14):
            order += regs[3 * n:3 * n + 3] + [(6 + n // 7, n % 7)]
        accof = lambda t: ZACC + 4 * (t if t < 7 else 0)
        stream, pos, seen = [], {}, set()
        for t, kk in order:
            pos[(t, kk)] = len(stream)
            n = (t - 6) * 7 + kk
            w = wreg((t * 7 + kk) * 8, 8, 256, V0) if t < 6 else v(WST + 8 * (n % 4), 8)
            txt = f"{SMF} {v(accof(t), 4)}, {v(MEM + 4 * kk, 4)}, {w}, {v(IDX)}"
            tags = ([f"m{kk}"] if kk not in seen else []) + ([f"w{n}"] if t >= 6 else [])
            seen.add(kk)
            stream.append((lambda txt=txt, tags=tags: (lg.wait(*tags), A(txt))) if tags else txt)

        def wread(n):
            return [lambda u=u: lg.op(f"ds_read_b128 {v(WST + 8 * (n % 4) + 4 * u, 4)}, {v(WR)} offset:{(n // 7) * 14 * KB + (2 * (n % 7) + u) * KB}", f"w{n}") for u in range(2)]

        def epi(t):
            hh, vv = t // 2, t % 2
            D = accof(t)
            out = [f"v_cvt_pk_bf16_f32 {v(ZOP + 8 * vv + 4 * (hh // 2) + 2 * b + hh % 2)}, {v(D + 2 * b)}, {v(D + 2 * b + 1)}" for b in range(2)]
            return out + (zero(D, 4) if t == 0 else [])

        y = bulk + ["s_nop 0"] * (9 - len(bulk))
        for x in wread(0) + wread(1):
            x()
        npre = opts.get("ypre", 2)
        for x in y[:npre]:
            A(x)
        fill = {}
        for n in range(2, 14):
            spread(fill, 4 * (n - 2), wread(n), per=1)
        g = 2
        for x in y[npre:]:
            while g in fill:
                g += 1
            fill[g] = [x]
            g += opts.get("ygap", 1)
        late = []
        for t in sorted(range(8), key=lambda t: pos[(t, 6)]):
            g = pos[(t, 6)] + 4
            for x in epi(t):
                while g in fill:
                    g += 1
                if g < len(stream):
                    fill[g] = [x]
                    assert t != 0 or g < pos[(7, 0)] - 1
                else:
                    late.append(x)
        emit_stream(A, stream, fill)
        for x in late:
            A(x)
        stamp(A, opts, 1)

        def p_loads(P):
            A(f"buffer_load_dwordx4 {v(P, 4)}, {v(PXA)}, {s(WS, 4)}, {s(sCP)} offen sc1")
            A(f"buffer_load_dwordx4 {v(P + 4, 4)}, {v(PXA)}, {s(WS, 4)}, {s(sCP)} offen offset:1280 sc1")
            A(f"buffer_load_dwordx4 {v(P + 8, 4)}, {v(PMA)}, {s(WS, 4)}, {s(sCP)} offen sc1")

        cur = MEM
        ok = A.new("b_ok")
        notice_wait(A, opts, MEM + 12, FP, sEF, 0, [])
        A(f"{gp}:")
        p_loads(cur)
        poll_guard(A)
        A(ka(opts.get("ka_p", 0)))
        if opts.get("stamps") == 2:
            A("s_add_u32 s55, s55, 1")
        mx3 = lambda d, x, y, z: f"v_max3_u32 {v(d)}, {v(x)}, {v(y)}, {v(z)}"
        chk = ["s_nop 0", mx3(T, cur, cur + 1, cur + 2), mx3(T, T, cur + 3, cur + 4), mx3(T + 1, cur + 5, cur + 6, cur + 7), mx3(T + 2, cur + 8, cur + 9, cur + 10),
               mx3(T, T, T + 1, cur + 11) + f"\nv_max_u32 {v(T)}, {v(T)}, {v(T + 2)}\nv_cmp_eq_u32 vcc, -1, {v(T)}"]
        k = 0
        for kap in range(3):
            A(f"s_waitcnt vmcnt({2 - kap})")
            if kap == 0:
                stamp(A, opts, 2)
            for vv in range(2):
                b = v(Y + 16 * kap + 8 * vv, 8) if kap < 2 else v(ZOP + 8 * vv, 8)
                A(f"{SMF} {v(OACC + 4 * vv, 4)}, {v(cur + 4 * kap, 4)}, {b}, {v(IDX)}")
                A(chk[k])
                k += 1
        A(f"s_cbranch_vccz {ok}")
        if opts.get("solo"):
            A(f"s_branch {ok}")
        for x in zero(OACC, 8):
            A(x)
        A(f"s_branch {gp}")
        A(f"{ok}:")
        lb = opts.get("lb", 2) if pw else -1
        if lb == 0:
            notice(A, NZ, NA, sEF, 0, sc)
        for q in range(4):
            A(f"v_permlane32_swap_b32 {v(OACC + q)}, {v(OACC + 4 + q)}")
        if lb == 1:
            notice(A, NZ, NA, sEF, 0, sc)
        for q in range(4):
            A(f"v_add_f32 {v(OACC + q)}, {v(OACC + q)}, {v(OACC + 4 + q)}")
        A(f"ds_write_b128 {v(RW)}, {v(OACC, 4)}")
        if lb >= 2:
            A(ka(lb - 2))
            notice(A, NZ, NA, sEF, 0, sc)
        A("s_waitcnt lgkmcnt(0)\ns_barrier")
        stamp(A, opts, 3)
        A(f"s_cmp_ge_u32 {s(S_W)}, 2\ns_cbranch_scc1 {idle}")
        R = ZACC
        if not pw:
            A(f"s_cmp_eq_u32 {s(S_W)}, 0\ns_cbranch_scc0 {noflag}")
            notice(A, NZ, NA, sEF, 0, sc)
            A(f"{noflag}:")
        A(f"ds_read2st64_b32 {v(R, 2)}, {v(RR0)} offset0:0 offset1:4\nds_read2st64_b32 {v(R + 2, 2)}, {v(RR1)} offset0:0 offset1:4")
        A(f"ds_read2st64_b32 {v(R + 4, 2)}, {v(RR0)} offset0:8 offset1:12\nds_read2st64_b32 {v(R + 6, 2)}, {v(RR1)} offset0:8 offset1:12")
        A(f"s_add_u32 s33, {s(sCM)}, 8192")
        A("s_waitcnt lgkmcnt(2)")
        A(f"v_add_f32 {v(R)}, {v(R)}, {v(R + 1)}\nv_add_f32 {v(R + 2)}, {v(R + 2)}, {v(R + 3)}")
        A("s_waitcnt lgkmcnt(0)")
        A(f"v_add_f32 {v(R + 4)}, {v(R + 4)}, {v(R + 5)}\nv_add_f32 {v(R + 6)}, {v(R + 6)}, {v(R + 7)}")
        A(f"v_add_f32 {v(R)}, {v(R)}, {v(R + 4)}\nv_add_f32 {v(R + 2)}, {v(R + 2)}, {v(R + 6)}")
        A(f"v_cvt_pk_bf16_f32 {v(R)}, {v(R)}, {v(R + 2)}\nv_min_u32 {v(R)}, -2, {v(R)}")
        A(f"buffer_store_dword {v(R)}, {v(MO)}, {s(WS, 4)}, s33 offen{sc}")
        A(f"{nxt}:")
        stamp(A, opts, 4)
        collect(A, opts, 120)
        A(f"s_add_u32 {s(sS)}, {s(sS)}, 1\ns_add_u32 {s(sCM)}, {s(sCM)}, {0 if opts.get('solo') else 8192}\ns_add_u32 {s(sCP)}, {s(sCP)}, {0 if opts.get('solo') else 10240}")
        A(f"s_add_u32 {s(sY)}, {s(sY)}, {16 * 28 * KB}\ns_add_u32 {s(sEF)}, {s(sEF)}, {0 if opts.get('solo') else EF_STEP}")
        A(f"s_cmp_eq_u32 {s(sS)}, 63\ns_cbranch_scc0 {top}")
        A("s_waitcnt vmcnt(0)")
        A("s_mov_b32 s84, s53\ns_mov_b32 s85, s55" if opts.get("stamps") == 2 else "")
        dbg_time(A, opts, 6, 16)
        flush_stamps(A, opts, 120)
        A("s_endpgm")
        A(f"{idle}:")
        A(ka(opts.get("ka_f", 0)))
        A(f"s_branch {nxt}")

    loop("")
    A(f"{slow}:")
    loop(" sc1")


def gen_chain_f(A, opts):
    G, GA0, GA1, T, WA = 4, 12, 13, 14, 20
    sS, sCM, sXM = 44, 45, 46
    wait_prep(A, True)
    gather_addr(A, GA0, GA1)
    A(f"s_lshl_b32 s33, {s(S_W)}, 10\nv_add_u32 {v(WA)}, s33, v3")

    def touch(base, stride, nbytes, ahead, last):
        A(f"s_add_u32 s33, {s(sS)}, {ahead}\ns_min_u32 s33, s33, {last}\ns_mul_i32 s33, s33, {stride}\ns_add_u32 s33, s33, {base}")
        for k in range(0, nbytes, 4096):
            A(f"buffer_load_dwordx4 v[16:19], {v(WA)}, {s(WS, 4)}, s33 offen sc1\ns_add_u32 s33, s33, 4096")

    def touch_all():
        if not opts.get("nopf"):
            touch(CP, 10240, 12288, 1, 62)
            touch(CM, 8192, 8192, 2, 63)
            touch(EF, EF_STEP, 12288, 2, 62)
            touch(XS, 28 * KB, 28 * KB, 2, 63)

    for first in (-1, 0):
        A(f"s_mov_b32 {s(sS)}, {first}")
        touch_all()
    A(f"s_mov_b32 {s(sS)}, 1\ns_mov_b32 {s(sCM)}, {CM + 8192}\ns_mov_b32 {s(sXM)}, {XM + 8192}")
    lp = A.new("f_poll")
    A(f"{lp}:")
    mem_loads(A, G, GA0, GA1, sCM)
    poll_guard(A)
    A("s_waitcnt vmcnt(0)")
    check8(A, G, T)
    A(f"s_cbranch_vccnz {lp}")
    A(f"buffer_store_dwordx4 {v(G, 4)}, {v(GA0)}, {s(WS, 4)}, {s(sXM)} offen sc1")
    A(f"buffer_store_dwordx4 {v(G + 4, 4)}, {v(GA1)}, {s(WS, 4)}, {s(sXM)} offen sc1")
    touch_all()
    A(f"s_add_u32 {s(sS)}, {s(sS)}, 1\ns_add_u32 {s(sCM)}, {s(sCM)}, 8192\ns_add_u32 {s(sXM)}, {s(sXM)}, 8192")
    A(f"s_cmp_lt_u32 {s(sS)}, 64\ns_cbranch_scc1 {lp}\ns_endpgm")
```

```python
from asmlib import v, a, s
from layout import *
from common import *
from gen_prep import *
from gen_chain import gen_chain_a, gen_chain_b, gen_chain_f
import gen_work

MAIN_LDS = 132096
LDS_ROLE = 131072


def gen_main(A, name, opts):
    ER = 252
    A(f".p2align 8\n.type {name},@function\n{name}:")
    A("s_cmp_ge_u32 s2, 256\ns_cbranch_scc1 L_exit")
    mark(A, opts, 0)
    b = [load_srd(A, WS, "ws", 40), load_srd(A, DB, "dbg", 42)]
    A(f"s_load_dwordx4 s[44:47], s[0:1], {KARG['wq']}\ns_load_dwordx4 s[48:51], s[0:1], {KARG['wv']}\ns_load_dwordx4 s[52:55], s[0:1], {KARG['x']}")
    A(f"v_lshrrev_b32 v1, 6, v0\nv_and_b32 v0, 63, v0\nv_readfirstlane_b32 {s(S_W)}, v1")
    if opts.get("fake"):
        A("s_mul_i32 s29, s2, 43\ns_lshr_b32 s29, s29, 8\ns_mul_i32 s29, s29, 6\ns_sub_u32 s7, s2, s29\ns_add_u32 s7, s7, 1\ns_and_b32 s7, s7, 15\ns_cmp_eq_u32 s2, 0\ns_cselect_b32 s7, 8, s7")
    else:
        A("s_getreg_b32 s7, hwreg(HW_REG_XCC_ID, 0, 4)")
    A(f"s_mov_b32 {s(S_POLL)}, 0\ns_mov_b32 {s(S_FOREIGN)}, 0")
    A("v_and_b32 v1, 15, v0\nv_lshrrev_b32 v2, 4, v0\nv_lshlrev_b32 v3, 4, v0")
    A(f"v_mov_b32 {v(ER)}, 1\nv_mov_b32 {v(ER + 1)}, 0\ns_and_b32 s17, s7, 4\ns_lshl_b32 s17, s17, 5\ns_andn2_b32 s19, s7, 4\ns_lshl_b32 s19, s19, 2\ns_add_u32 s17, s17, s19")
    A("s_waitcnt lgkmcnt(0)")
    for f in b:
        f()
    A(f"s_or_b32 s19, s2, {s(S_W)}\ns_cmp_eq_u32 s19, 0\ns_cbranch_scc0 L_no_nonce")
    A(f"s_memrealtime s[28:29]\ns_waitcnt lgkmcnt(0)\ns_lshl_b32 s28, s28, 4\ns_and_b32 s29, s7, 7\ns_or_b32 s28, s28, s29\ns_or_b32 s28, s28, 8\nv_mov_b32 v4, s28\nbuffer_store_dword v4, {v(ER + 1)}, {s(DB, 4)}, 0 offen offset:{D_NONCE} sc1")
    A("L_no_nonce:")
    dbg_time(A, opts, 0, 0, 2)

    def rank():
        sk = A.new("rank")
        A(f"s_cmp_eq_u32 {s(S_W)}, 0\ns_cbranch_scc0 {sk}\ns_mov_b64 exec, 1")
        A(f"buffer_atomic_add {v(ER)}, {v(ER + 1)}, {s(DB, 4)}, s17 offen sc0 sc1\ns_mov_b64 exec, -1\n{sk}:")

    gen_prep(A, opts, "L_prep_done", rank)
    A("L_prep_done:")
    A(f"v_mov_b32 v6, {LDS_ROLE}")
    A("L_nonce:")
    A(f"buffer_load_dword v7, {v(ER + 1)}, {s(DB, 4)}, 0 offen offset:{D_NONCE} sc1")
    poll_guard(A)
    A(f"s_waitcnt vmcnt(0)\nv_readfirstlane_b32 {s(S_NONCE)}, v7\ns_cmp_eq_u32 {s(S_NONCE)}, 0\ns_cbranch_scc1 L_nonce")
    mark(A, opts, 6)
    A(f"s_cmp_eq_u32 {s(S_W)}, 0\ns_cbranch_scc0 L_role_wait")
    A(f"v_readfirstlane_b32 s30, {v(ER)}")
    A(f"s_sub_u32 s31, s7, {s(S_NONCE)}\ns_and_b32 s31, s31, 7\ns_lshl_b32 {s(S_ID)}, s31, 5\ns_add_u32 {s(S_ID)}, {s(S_ID)}, s30")
    A("s_cmp_ge_u32 s7, 8\ns_cbranch_scc1 L_overflow\ns_cmp_ge_u32 s30, 32\ns_cbranch_scc0 L_role_known")
    A("L_overflow:")
    A(f"v_mov_b32 {v(ER)}, 1\ns_mov_b64 exec, 1")
    A(f"buffer_atomic_add {v(ER)}, {v(ER + 1)}, {s(DB, 4)}, 0 offen offset:{D_OVF} sc0 sc1")
    A(f"s_waitcnt vmcnt(0)\nv_readfirstlane_b32 s31, {v(ER)}\ns_mov_b64 exec, -1")
    A("v_and_b32 v4, 4, v1\nv_lshlrev_b32 v4, 5, v4\nv_and_b32 v5, 11, v1\nv_lshl_add_u32 v4, v5, 2, v4")
    A("L_ov_poll:")
    A(f"buffer_load_dword v5, v4, {s(DB, 4)}, 0 offen sc1")
    poll_guard(A)
    A("s_waitcnt vmcnt(0)\ns_mov_b32 s32, 0")
    for k in range(16):
        A(f"v_readlane_b32 {s(44 + k)}, v5, {k}")
    for k in range(16):
        A(f"s_add_u32 s32, s32, {s(44 + k)}")
    A("s_cmp_lt_u32 s32, 256\ns_cbranch_scc1 L_ov_poll")
    A(f"s_mov_b32 {s(S_FOREIGN)}, 1")
    for k in range(8):
        A(f"s_min_u32 s33, {s(44 + k)}, 32\ns_sub_u32 s34, 32, s33")
        A(f"s_sub_u32 s35, {k}, {s(S_NONCE)}\ns_and_b32 s35, s35, 7\ns_lshl_b32 s35, s35, 5\ns_add_u32 {s(S_ID)}, s33, s31\ns_add_u32 {s(S_ID)}, {s(S_ID)}, s35")
        A("s_cmp_lt_u32 s31, s34\ns_cbranch_scc1 L_role_known\ns_sub_u32 s31, s31, s34")
    A("s_branch L_timeout")
    A("L_role_known:")
    A(f"s_lshl_b32 s29, {s(S_FOREIGN)}, 8\ns_or_b32 s30, s29, {s(S_ID)}\nv_mov_b32 v4, s30\nds_write_b32 v6, v4\ns_waitcnt lgkmcnt(0)")
    A("L_role_wait:")
    A("s_barrier\nds_read_b32 v4, v6")
    A(f"s_cmp_eq_u32 {s(S_W)}, 0\ns_cbranch_scc0 L_no_reg")
    A(f"v_mov_b32 {v(ER)}, {s(S_NONCE)}\ns_lshl_b32 s16, s16, 7\ns_add_u32 s16, s16, {DONE}\ns_mov_b64 exec, 1\nbuffer_store_dword {v(ER)}, {v(ER + 1)}, {s(WS, 4)}, s16 offen sc1")
    A(f"s_cmp_lt_u32 {s(S_ID)}, 31\ns_cbranch_scc0 L_no_reg2")
    A(f"s_add_u32 s29, s29, 1\nv_mov_b32 {v(ER + 2)}, s29\nbuffer_atomic_add {v(ER + 2)}, {v(ER + 1)}, {s(DB, 4)}, 0 offen offset:{D_REG} sc1")
    A("L_no_reg2:\ns_mov_b64 exec, -1")
    A("L_no_reg:")
    A("s_waitcnt lgkmcnt(0)\nv_readfirstlane_b32 s30, v4")
    A(f"s_and_b32 {s(S_ID)}, s30, 0xff")
    dbg_time(A, opts, 4, 16)
    A(f"s_lshr_b32 s28, {s(S_ID)}, 5\ns_and_b32 s29, {s(S_ID)}, 31")
    far = []

    def go(cond, label):
        hop = A.new("go")
        far.append((hop, label))
        A(f"{cond}\ns_cbranch_scc1 {hop}")

    A("s_cmp_eq_u32 s28, 0\ns_cbranch_scc0 L_not_chain")
    go("s_cmp_lt_u32 s29, 16", "L_chain_a")
    go("s_cmp_lt_u32 s29, 30", "L_chain_b")
    go("s_cmp_eq_u32 s29, 30", "L_chain_f")
    A("s_endpgm")
    A("L_not_chain:")
    A("s_cmp_lt_u32 s28, 5\ns_cbranch_scc0 L_not_yx")
    A("s_sub_u32 s30, s28, 1\ns_lshl_b32 s30, s30, 2\ns_and_b32 s31, s29, 3\ns_add_u32 s30, s30, s31\ns_lshr_b32 s31, s29, 2")
    go("s_cmp_lt_u32 s29, 12", "L_y")
    A("s_sub_u32 s31, s31, 3")
    go("s_cmp_lt_u32 s29, 24", "L_x1")
    A("s_sub_u32 s30, s28, 1\ns_mul_i32 s30, s30, 7\ns_add_u32 s30, s30, s29\ns_sub_u32 s30, s30, 24\ns_mov_b32 s31, 1")
    go("s_cmp_lt_u32 s29, 31", "L_f1")
    A("s_sub_u32 s30, s28, 1\ns_branch L_go_z")
    A("L_not_yx:")
    A("s_mov_b32 s30, s29\ns_mov_b32 s31, 0")
    A("s_cmp_eq_u32 s28, 7\ns_cbranch_scc0 L_not_f1")
    go("s_cmp_lt_u32 s29, 28", "L_f1")
    A("s_sub_u32 s30, s29, 16\ns_branch L_go_z")
    A("L_not_f1:")
    A("s_sub_u32 s31, s28, 5")
    go("s_cmp_lt_u32 s29, 14", "L_x2")
    A("s_sub_u32 s30, s29, 14")
    go("s_cmp_lt_u32 s29, 28", "L_f2")
    A("s_lshl_b32 s30, s31, 2\ns_add_u32 s30, s30, s29\ns_sub_u32 s30, s30, 24")
    A("L_go_z:\ns_branch L_z")
    A("L_exit:")
    A("s_endpgm")
    for hop, label in far:
        A(f"{hop}:\ns_branch {label}")
    A("L_timeout:")
    A(f"s_mov_b64 exec, -1\ns_add_u32 s29, {s(S_ID)}, 0x1000\nv_mov_b32 v1, s29\nv_mov_b32 v2, {D_ERR}")
    A(f"buffer_store_dword v1, v2, {s(DB, 4)}, 0 offen\ns_endpgm")

    A("L_chain_a:")
    gen_chain_a(A, opts)
    A("L_chain_b:")
    gen_chain_b(A, opts)
    A("L_chain_f:")
    gen_chain_f(A, opts)
    for lab, fn in (("y", gen_work.gen_y), ("z", gen_work.gen_z), ("x1", gen_work.gen_x1), ("x2", gen_work.gen_x2), ("f1", gen_work.gen_f1), ("f2", gen_work.gen_f2)):
        A(f"L_{lab}:")
        if opts.get("no_" + lab):
            A("s_endpgm")
        else:
            fn(A, opts)
```

```python
import math
import struct
from asmlib import Asm, v, a, s
from layout import *
from common import *

MF = "v_mfma_f32_16x16x32_bf16"
D_OVF, D_REG, D_ERR, D_NONCE = 64, 68, 72, 192


def f32(x):
    return hex(struct.unpack("<I", struct.pack("<f", x))[0])


def load_srd(A, dst, name, tmp):
    A(f"s_load_dwordx2 {s(tmp, 2)}, s[0:1], {KARG[name]}")

    def build():
        A(f"s_mov_b32 {s(dst)}, {s(tmp)}")
        A(f"s_and_b32 {s(dst + 1)}, {s(tmp + 1)}, 0xffff")
        A(f"s_mov_b32 {s(dst + 2)}, {SIZE[name]}")
        A(f"s_mov_b32 {s(dst + 3)}, 0x20000")
    return build


def xor_reduce(A, op, x, t):
    for sw in ("v_permlane16_swap_b32", "v_permlane32_swap_b32"):
        A(f"v_mov_b32 {v(t)}, {v(x)}")
        A(f"{sw} {v(x)}, {v(t)}")
        A(f"{op} {v(x)}, {v(x)}, {v(t)}")


def quad_sum(A, x):
    for p in ("[1,0,3,2]", "[2,3,0,1]"):
        A(f"v_add_f32_dpp {v(x)}, {v(x)}, {v(x)} quad_perm:{p} row_mask:0xf bank_mask:0xf")


def chunk_pos(A, dst, tok, g, t):
    A(f"v_lshrrev_b32 {v(t)}, 2, {v(tok)}\nv_sub_u32 {v(t)}, 0, {v(t)}\nv_and_b32 {v(t)}, 3, {v(t)}\nv_xor_b32 {v(t)}, {v(t)}, {v(g)}")
    A(f"v_lshl_add_u32 {v(t)}, {v(tok)}, 2, {v(t)}\nv_lshlrev_b32 {v(dst)}, 4, {v(t)}")


def gen_prep(A, opts, done, rank):
    S_, G_, X_, M0_ = 20, 24, 20, 24
    A("s_and_b32 s28, s2, 7\ns_lshr_b32 s29, s2, 3")
    A("s_cmp_eq_u32 s28, 0\ns_cbranch_scc1 L_prep_ln")
    A("s_sub_u32 s28, s28, 1\ns_lshl_b32 s28, s28, 5\ns_add_u32 s28, s28, s29")
    A("s_mul_i32 s30, s28, 293\ns_lshr_b32 s30, s30, 11\ns_mul_i32 s31, s30, 7\ns_sub_u32 s31, s28, s31")
    A("s_lshr_b32 s32, s30, 1\ns_and_b32 s33, s30, 1")
    A("s_lshl_b32 s16, s33, 4\ns_add_u32 s16, s16, s32\ns_mul_i32 s16, s16, 7\ns_add_u32 s16, s16, s31")
    A("s_cmp_eq_u32 s33, 0")
    A(f"s_cselect_b32 {s(S_)}, s44, s50\ns_cselect_b32 {s(S_ + 1)}, s45, s51\ns_cselect_b32 {s(G_)}, s46, s48\ns_cselect_b32 {s(G_ + 1)}, s47, s49")
    for r in (S_, G_):
        A(f"s_and_b32 {s(r + 1)}, {s(r + 1)}, 0xffff\ns_mov_b32 {s(r + 2)}, {SIZE['wq']}\ns_mov_b32 {s(r + 3)}, 0x20000")
    DA, RA = 208, 216
    A("v_lshrrev_b32 v4, 5, v0\nv_and_b32 v5, 31, v0\ns_lshl_b32 s34, s32, 9\nv_and_b32 v7, 3, v1")
    for j in range(8):
        pm = 8 * (2 * j // 4) + (2 * j) % 4
        A(f"v_add_u32 v6, {2 * j}, v4\nv_xor_b32 v6, v6, v5\nv_lshlrev_b32 v6, 4, v6\nv_lshl_add_u32 v6, v4, 13, v6\ns_add_u32 s35, s34, {pm * 8192}\nv_add_u32 {v(DA + j)}, s35, v6")
    for k in range(4):
        A(f"v_add_u32 v6, {4 * k}, v2\nv_xor_b32 v6, v6, v1\nv_lshlrev_b32 v6, 4, v6\nv_lshl_add_u32 {v(RA + k)}, v1, 9, v6")
    A(f"s_mul_i32 s61, {s(S_W)}, 24576\ns_add_u32 s61, s61, 32768")
    for k in range(4):
        A(f"v_add_u32 {v(RA + 4 + k)}, s61, {v(RA + k)}")
    SS, ACC = 16, 144
    A(f"s_mul_i32 s36, s32, {FRAG_H}\ns_mul_i32 s37, s33, {BF - AF}\ns_add_u32 s36, s36, s37")
    if AF:
        A(f"s_add_u32 s36, s36, {AF}")
    A(f"s_mul_i32 s39, {s(S_W)}, 7\ns_lshl_b32 s58, {s(S_W)}, 13")

    def tile_ids(typ):
        if typ == 0:
            for j in range(7):
                A(f"s_add_u32 s56, s31, {j}\ns_sub_u32 s57, s56, 7\ns_cmp_ge_u32 s56, 7\ns_cselect_b32 s56, s57, s56\ns_add_u32 {s(64 + j)}, s56, s39")
            return
        A(f"s_mul_i32 s59, {s(S_W)}, 3\ns_min_u32 s60, {s(S_W)}, 2\ns_add_u32 s59, s59, s60")
        A("s_sub_u32 s56, s31, 3\ns_cmp_ge_u32 s31, 3\ns_cselect_b32 s60, s56, s31\ns_cmp_ge_u32 s31, 6\ns_cselect_b32 s60, 0, s60")
        for jp in range(4):
            if jp < 3:
                A(f"s_add_u32 s56, s60, {jp}\ns_sub_u32 s57, s56, 3\ns_cmp_ge_u32 s56, 3\ns_cselect_b32 s56, s57, s56\ns_add_u32 s56, s56, s59")
            else:
                A("s_add_u32 s56, s59, 3\ns_min_u32 s56, s56, 13")
            A(f"s_lshl_b32 {s(64 + 2 * jp)}, s56, 1\ns_add_u32 {s(65 + 2 * jp)}, {s(64 + 2 * jp)}, 1")

    def tile_dma(vm, srd, tag, k, sbase):
        A(f"s_add_u32 s62, {s(sbase)}, {k * 1024}\ns_mov_b32 m0, s62\ns_nop 0")
        vm.op(f"buffer_load_dwordx4 {v(DA + k)}, {s(srd, 4)}, s56 offen lds", tag)

    def load_G(vm, j):
        out = []
        for k in range(8):
            def one(k=k):
                if k == 0:
                    A(f"s_lshr_b32 s57, {s(64 + j)}, 1\ns_lshl_b32 s57, s57, 18\ns_and_b32 s56, {s(64 + j)}, 1\ns_lshl_b32 s56, s56, 15\ns_add_u32 s56, s56, s57")
                    A(f"s_add_u32 s63, s61, {(j % 3) * 8192}")
                tile_dma(vm, G_, f"g{j}", k, 63)
            out.append(one)
        return out

    def body(typ):
        vm = Cnt(A, "vmcnt", 63)
        mark(A, opts, 5)
        tile_ids(typ)
        NT = 7 + typ
        if typ == 0:
            A(f"s_lshr_b32 s56, {s(S_W)}, 1\ns_lshl_b32 s56, s56, 18\ns_and_b32 s57, {s(S_W)}, 1\ns_lshl_b32 s57, s57, 15\ns_add_u32 s56, s56, s57\ns_lshl_b32 s57, s31, 19\ns_add_u32 s56, s56, s57")
            for k in range(8):
                tile_dma(vm, S_, "s", k, 58)
        else:
            A("v_lshrrev_b32 v6, 2, v0\nv_mul_u32_u24 v6, 896, v6\nv_lshl_add_u32 v6, v7, 4, v6")
            A("v_lshrrev_b32 v8, 2, v1\nv_lshlrev_b32 v8, 6, v8\nv_lshl_add_u32 v8, v7, 4, v8\nv_lshl_add_u32 v8, v2, 9, v8")
            A(f"s_mul_i32 s56, s32, 229376\ns_lshl_b32 s57, s31, 7\ns_add_u32 s56, s56, s57\ns_lshr_b32 s57, {s(S_W)}, 1\ns_lshl_b32 s57, s57, 6\ns_add_u32 s56, s56, s57")
            A(f"s_and_b32 s57, {s(S_W)}, 1\ns_mul_i32 s57, s57, {128 * 896}\ns_add_u32 s56, s56, s57\ns_mov_b32 s57, s58")
            for j in range(8):
                A("s_mov_b32 m0, s57\ns_add_u32 s57, s57, 1024")
                vm.op(f"buffer_load_dwordx4 v6, {s(S_, 4)}, s56 offen lds", "s")
                A(f"s_add_u32 s56, s56, {16 * 896}")
        first = opts.get("gfirst", 1)
        for j in range(first):
            for x in load_G(vm, j):
                x()
        if not opts.get("laterank"):
            rank()
        vm.wait("s")
        mark(A, opts, 2)
        A("s_barrier")
        lg = Cnt(A, "lgkmcnt", 15)
        for es in range(8):
            for t in range(4):
                if typ == 0:
                    lg.room(1)
                    lg.op(f"ds_read_b128 {v(SS + (t * 8 + es) * 4, 4)}, {v(RA + es % 4)} offset:{t * 8192 + (es // 4) * 256}")
                else:
                    for x in range(2):
                        lg.room(1)
                        lg.op(f"ds_read_b64_tr_b16 {v(SS + (t * 8 + es) * 4 + 2 * x, 2)}, v8 offset:{(t // 2) * 16384 + es * 2048 + x * 256 + (t % 2) * 8}")
        if typ == 0:
            A(f"s_mov_b32 s38, {f32(math.log2(math.e) / 16.0)}\ns_lshl_b32 s57, s31, 11\ns_add_u32 s36, s36, s57")
        else:
            A(f"s_mul_i32 s57, s31, {4 * 14 * KB}\ns_add_u32 s36, s36, s57")
        lg.drain()

        def epilogue(j):
            accb = ACC + (j % 2) * 16
            out = []
            if typ == 0:
                out += [f"v_pk_mul_f32 {v(accb + r, 2)}, {v(accb + r, 2)}, v[12:13]" for r in range(0, 16, 2)]
                out += [f"v_cvt_pk_bf16_f32 {pk(j, r)}, {v(accb + 2 * r)}, {v(accb + 2 * r + 1)}" for r in range(8)]
            else:
                out += [f"v_cvt_pk_bf16_f32 {pk(j // 2 * 2 + r // 4, 4 * (r // 2 % 2) + 2 * (j % 2) + r % 2)}, {v(accb + 2 * r)}, {v(accb + 2 * r + 1)}" for r in range(8)]
            return out

        def pk(j, r, n=1):
            return v((176 + 8 * j if j < 4 else 224 + 8 * (j - 4) if j < 7 else 4) + r, n)

        def stores(j):
            if typ == 0:
                A(f"s_mul_i32 s59, {s(64 + j)}, {14 * KB}\ns_add_u32 s59, s59, s36")
                for k in range(2):
                    A(f"buffer_store_dwordx4 {pk(j, 4 * k, 4)}, v3, {s(WS, 4)}, s59 offen offset:{k * 1024} sc1")
            elif j % 2:
                A(f"s_lshl_b32 s59, {s(63 + j)}, 9\ns_add_u32 s59, s59, s36")
                for t in range(4):
                    A(f"buffer_store_dwordx4 {pk(j - 1 + t // 2, 4 * (t % 2), 4)}, v3, {s(WS, 4)}, s59 offen sc1\ns_add_u32 s59, s59, {14 * KB}")

        if typ == 0:
            A("v_mov_b32 v12, s38\nv_mov_b32 v13, s38")
        def poison():
            A(f"s_lshl_b32 s59, {s(S_W)}, 10\nv_add_u32 v9, s59, v3\ns_mov_b32 s60, {P1_BASE}")
            for r in range(4):
                A(f"v_mov_b32 {v(248 + r)}, -1")
            for i in range(2):
                sk = A.new("pz")
                A(f"s_lshl_b32 s59, s28, 1\ns_add_u32 s59, s59, {i}\ns_cmp_ge_u32 s59, {P1_BLOCKS + P2_BLOCKS}\ns_cbranch_scc1 {sk}")
                A(f"s_cmp_lt_u32 s59, {P1_BLOCKS}\ns_cselect_b32 s73, s60, {P2_BASE - P1_BLOCKS * 4096}\ns_lshl_b32 s59, s59, 12\ns_add_u32 s59, s59, s73")
                A(f"buffer_store_dwordx4 v[248:251], v9, {s(WS, 4)}, s59 offen sc1\n{sk}:")

        def g_reads(j):
            return [lambda es=es: lg.op(f"ds_read_b128 {a((j % 2) * 32 + es * 4, 4)}, {v(RA + 4 + es % 4)} offset:{(j % 3) * 8192 + (es // 4) * 256}", f"r{j}") for es in range(8)]

        vm.wait("g0")
        mark(A, opts, 3)
        for x in g_reads(0):
            x()
        for j in range(first, 3):
            for x in load_G(vm, j):
                x()
        lg.drain()
        for x in load_G(vm, 3):
            x()
        pend = []
        short = A.new("short")
        sfirst = opts.get("sfirst", 4)
        for j in range(NT):
            accb = ACC + (j % 2) * 16
            fill = {}
            if typ == 1 and j == 6:
                A(f"s_cmp_ge_u32 {s(S_W)}, 2\ns_cbranch_scc1 {short}")
                pend6 = list(pend)
            if j < NT - 1:
                r = g_reads(j + 1)
                fill[0] = [lambda: vm.wait(f"g{j + 1}"), r[0]]
                for k in range(1, 8):
                    fill[k] = [r[k]]
                if j + 4 < NT:
                    d = load_G(vm, j + 4)
                    fill[23] = [lambda: lg.wait(f"r{j + 1}")]
                    for k in range(8):
                        fill[24 + k] = [d[k]]
            for k, x in enumerate(pend):
                fill.setdefault(8 + k, []).insert(0, x)
            if j == sfirst:
                fill.setdefault(2, []).append(poison)
                for k in range(j - 1):
                    fill.setdefault(6 + 6 * k, []).append(lambda k=k: (stores(k), vm.q.extend(["o"] * (2 if typ == 0 else 4 * (k % 2)))))
            if j >= sfirst:
                fill.setdefault(28, []).append(lambda j=j: (stores(j - 1), vm.q.extend(["o"] * (2 if typ == 0 else 4 * ((j - 1) % 2)))))
            lg.wait(f"r{j}")
            if j == 5:
                mark(A, opts, 4)
            k = 0
            for es in range(8):
                for t in range(4):
                    c = "0" if es == 0 else v(accb + t * 4, 4)
                    sop, gop = v(SS + (t * 8 + es) * 4, 4), a((j % 2) * 32 + es * 4, 4)
                    A(f"{MF} {v(accb + t * 4, 4)}, {sop if typ == 0 else gop}, {gop if typ == 0 else sop}, {c}")
                    for x in fill.get(k, []):
                        x() if callable(x) else A(x)
                    k += 1
            pend = epilogue(j)
        for x in pend:
            x() if callable(x) else A(x)
        stores(NT - 1)
        if typ == 1:
            A(f"s_branch {done}\n{short}:")
            for x in pend6:
                A(x)
            stores(5)
        dbg_time(A, opts, 1 + typ, 1 + 56 * typ, 2)
        A(f"s_branch {done}")

    A("s_cmp_eq_u32 s33, 0\ns_cbranch_scc0 L_prep_b")
    body(0)
    A("L_prep_b:")
    body(1)

    A("L_prep_ln:")
    for dst, src, name in ((X_, 52, "x"), (M0_, 54, "mem0")):
        A(f"s_mov_b32 {s(dst)}, {s(src)}\ns_and_b32 {s(dst + 1)}, {s(src + 1)}, 0xffff\ns_mov_b32 {s(dst + 2)}, {SIZE[name]}\ns_mov_b32 {s(dst + 3)}, 0x20000")
    A("s_mov_b32 s36, s29")
    A("s_add_u32 s16, s36, 224")
    A(f"s_lshl_b32 s37, s36, 2\ns_add_u32 s37, s37, {s(S_W)}")
    A("v_lshrrev_b32 v61, 2, v0\nv_and_b32 v62, 3, v0\nv_mul_u32_u24 v63, 896, v61\nv_lshl_add_u32 v63, v62, 4, v63")
    A(f"s_mul_i32 s28, s37, {16 * 896}")
    RAW, F = 4, 64
    for ks in range(14):
        A(f"buffer_load_dwordx4 {v(RAW + ks * 4, 4)}, v63, {s(X_, 4)}, s28 offen offset:{ks * 64}")
    A("s_waitcnt vmcnt(0)")
    rank()
    A("s_mov_b32 s29, 0xffff0000")
    for r in range(56):
        A(f"v_lshlrev_b32 {v(F + 2 * r)}, 16, {v(RAW + r)}")
        A(f"v_and_b32 {v(F + 2 * r + 1)}, s29, {v(RAW + r)}")
    S0 = 192
    pk = lambda op, d, x, y: A(f"{op} {v(d, 2)}, {v(x, 2)}, {v(y, 2)}")
    pk("v_pk_add_f32", S0, F, F + 2)
    pk("v_pk_add_f32", S0 + 2, F + 4, F + 6)
    for r in range(8, 112, 2):
        pk("v_pk_add_f32", S0 + r % 4, S0 + r % 4, F + r)
    pk("v_pk_add_f32", S0, S0, S0 + 2)
    A(f"v_add_f32 {v(S0)}, {v(S0)}, {v(S0 + 1)}")
    quad_sum(A, S0)
    A(f"v_mul_f32 {v(S0)}, {f32(-1.0 / 448)}, {v(S0)}\nv_mov_b32 {v(S0 + 1)}, {v(S0)}")
    for r in range(0, 112, 2):
        pk("v_pk_add_f32", F + r, F + r, S0)
    pk("v_pk_mul_f32", S0 + 4, F, F)
    pk("v_pk_mul_f32", S0 + 6, F + 2, F + 2)
    for r in range(4, 112, 2):
        A(f"v_pk_fma_f32 {v(S0 + 4 + r % 4, 2)}, {v(F + r, 2)}, {v(F + r, 2)}, {v(S0 + 4 + r % 4, 2)}")
    pk("v_pk_add_f32", S0 + 4, S0 + 4, S0 + 6)
    A(f"v_add_f32 {v(S0 + 4)}, {v(S0 + 4)}, {v(S0 + 5)}")
    quad_sum(A, S0 + 4)
    A(f"v_mov_b32 {v(S0 + 6)}, {f32(1e-5)}")
    A(f"v_fmac_f32 {v(S0 + 6)}, {f32(1.0 / 448)}, {v(S0 + 4)}")
    A(f"v_rsq_f32 {v(S0 + 6)}, {v(S0 + 6)}\nv_mov_b32 {v(S0 + 7)}, {v(S0 + 6)}")
    A(f"s_mul_i32 s28, s37, {14 * KB}\ns_add_u32 s28, s28, {XF}")
    chunk_pos(A, 208, 61, 62, 63)
    A(f"v_and_b32 v63, 1, v62\nv_cmp_eq_u32 s[56:57], 1, v63\ns_add_u32 s30, s28, {XS - XF}")
    for ks in range(14):
        for r in range(0, 8, 2):
            pk("v_pk_mul_f32", F + ks * 8 + r, F + ks * 8 + r, S0 + 6)
        for r in range(4):
            A(f"v_cvt_pk_bf16_f32 {v(RAW + ks * 4 + r)}, {v(F + ks * 8 + 2 * r)}, {v(F + ks * 8 + 2 * r + 1)}")
        A(f"buffer_store_dwordx4 {v(RAW + ks * 4, 4)}, v208, {s(WS, 4)}, s28 offen offset:{(ks % 4) * 1024} sc1")
        Q, D = 200 + 4 * (ks % 2), RAW + ks * 4
        A(f"v_cndmask_b32 v210, {v(D + 1)}, {v(D)}, s[56:57]\nv_cndmask_b32 v211, {v(D + 3)}, {v(D + 2)}, s[56:57]")
        for r in range(2):
            A(f"v_mov_b32_dpp {v(212 + r)}, {v(210 + r)} quad_perm:[1,0,3,2] row_mask:0xf bank_mask:0xf")
        for r, (ev, od) in enumerate(((D, 212), (D + 2, 213), (212, D + 1), (213, D + 3))):
            A(f"v_cndmask_b32 {v(Q + r)}, {v(ev)}, {v(od)}, s[56:57]")
        A(f"buffer_store_dwordx4 {v(Q, 4)}, v208, {s(WS, 4)}, s30 offen offset:{(ks % 4) * 1024} sc1")
        if ks % 4 == 3:
            A("s_add_u32 s28, s28, 4096\ns_add_u32 s30, s30, 4096\ns_waitcnt vmcnt(40)")
    A(f"s_cmp_eq_u32 s36, 31\ns_cbranch_scc0 L_prep_nomem")
    A("v_and_b32 v61, 7, v1\nv_mul_u32_u24 v61, 896, v61\nv_lshrrev_b32 v62, 3, v1\nv_lshl_add_u32 v61, v62, 2, v61\nv_lshl_add_u32 v61, v2, 5, v61")
    A("s_waitcnt vmcnt(30)")
    for rep in range(2):
        A(f"s_add_u32 s31, {s(S_W)}, {4 * rep}\ns_min_u32 s31, s31, 6\ns_lshl_b32 s32, s31, 7\ns_lshl_b32 {s(33 + rep)}, s31, 10")
        for j in range(4):
            A(f"buffer_load_dword {v(188 + 4 * rep + j)}, v61, {s(M0_, 4)}, s32 offen offset:{j * 8}")
    A("s_waitcnt vmcnt(0)")
    for rep in range(2):
        for j in range(4):
            A(f"v_min_u32 {v(188 + 4 * rep + j)}, -2, {v(188 + 4 * rep + j)}")
        for base in (CM, XM):
            A(f"s_add_u32 s35, {s(33 + rep)}, {base}\nbuffer_store_dwordx4 {v(188 + 4 * rep, 4)}, v3, {s(WS, 4)}, s35 offen sc1")
    A("L_prep_nomem:")
    dbg_time(A, opts, 3, 8, 2)
```

```python
from asmlib import v, a, s
from layout import *
from common import *
from gen_prep import f32, load_srd, xor_reduce, chunk_pos
import math

MF = "v_mfma_f32_16x16x32_bf16"
Y_TEAMS, X1_TEAMS, X2_TEAMS, F_TEAMS = 3, 3, 2, 2


def set_flag(A, soff, t):
    A(f"v_mov_b32 {v(t)}, {s(S_NONCE)}\nv_mov_b32 {v(t + 1)}, 0")
    A(f"buffer_store_dword {v(t)}, {v(t + 1)}, {s(WS, 4)}, {s(soff)} offen sc1")


def paired_addr(A, d0, d1):
    for vv, d in enumerate((d0, d1)):
        A(f"v_lshrrev_b32 v4, 1, v1\nv_add_u32 v4, {8 * vv}, v4")
        chunk_pos(A, d, 4, 2, 5)
        A(f"v_and_b32 v4, 1, v1\nv_mul_u32_u24 v4, {14 * KB}, v4\nv_add_u32 {v(d)}, {v(d)}, v4")


def seg_dma(A, sx, sm0, cnt=None):
    for q, n in ((0, 4), (1, 3)):
        A(f"s_add_u32 s33, {s(sm0)}, {q * 4096}\ns_mov_b32 m0, s33\ns_add_u32 s34, {s(sx)}, {q * 4096}")
        for k in range(n):
            t = f"buffer_load_dwordx4 v3, {s(WS, 4)}, s34 offen offset:{k * 1024} sc1 lds"
            cnt.op(t, "x") if cnt else A(t)


def gen_y(A, opts):
    ACC, XOP, PK, XR, T = 4, 32, 48, 76, 78
    sS, sX, sM0, sY, sF = 44, 45, 46, 47, 48
    vm = Cnt(A, "vmcnt", 63)
    A(f"s_mov_b32 {s(sS)}, s31\ns_mul_i32 {s(sM0)}, {s(S_W)}, {7 * KB}")
    A(f"s_mul_i32 {s(sX)}, s31, {28 * KB}\ns_add_u32 {s(sX)}, {s(sX)}, {s(sM0)}\ns_add_u32 {s(sX)}, {s(sX)}, {XF}")
    A(f"s_mul_i32 s35, s30, {FRAG_H}\ns_mul_i32 s36, {s(S_W)}, {7 * 14 * KB}\ns_add_u32 s35, s35, s36\ns_add_u32 s35, s35, {BF}")
    A(f"s_mul_i32 s33, {s(S_W)}, 7\nv_min_u32 v4, 6, v0\nv_add_u32 v4, s33, v4\nv_lshrrev_b32 v4, 2, v4\ns_mul_i32 s33, s30, 7\ns_add_u32 s33, s33, 112\nv_add_u32 v4, s33, v4")
    load_pieces(A, [(14, lambda i=i: frag_loads(A, 35, [((i * 14 + ks) * 4, (i * 14 + ks) * KB) for ks in range(14)])) for i in range(7)], 4)
    wait_prep(A, False)
    seg_dma(A, sX, sM0)
    A(f"s_lshl_b32 s33, s31, 4\ns_add_u32 s33, s33, s30\ns_mul_i32 {s(sY)}, s33, {28 * KB}\ns_add_u32 {s(sY)}, {s(sY)}, {YF}")
    A(f"s_mul_i32 s33, {s(S_W)}, {7 * KB}\ns_add_u32 {s(sY)}, {s(sY)}, s33")
    A(f"s_mul_i32 {s(sF)}, s31, {FL_STEP}\ns_lshl_b32 s33, s30, 7\ns_add_u32 {s(sF)}, {s(sF)}, s33\ns_add_u32 {s(sF)}, {s(sF)}, {FY}")
    paired_addr(A, XR, XR + 1)
    top, nodma, noflag, done = (A.new(x) for x in ("y_top", "y_nodma", "y_nofl", "y_done"))
    A("s_waitcnt vmcnt(0)\ns_barrier")
    mark(A, opts, 1)
    A(f"{top}:")
    A(f"s_add_u32 s33, {s(sS)}, {Y_TEAMS}\ns_cmp_ge_u32 s33, 63\ns_cbranch_scc1 {nodma}" if False else
      f"s_add_u32 s33, {s(sS)}, {Y_TEAMS}\ns_cmp_ge_u32 s33, 64\ns_cbranch_scc1 {nodma}")
    A(f"s_add_u32 {s(sX)}, {s(sX)}, {Y_TEAMS * 28 * KB}\ns_xor_b32 {s(sM0)}, {s(sM0)}, 0x8000")
    seg_dma(A, sX, sM0)
    A(f"{nodma}:")
    lg = Cnt(A, "lgkmcnt", 15)
    rd = lambda n: lg.op(f"ds_read_b128 {v(XOP + 4 * (n % 4), 4)}, {v(XR + n // 14)} offset:{(n % 14) * KB}", f"x{n}")
    for n in range(3):
        rd(n)
    for tt in range(2):
        for ks in range(14):
            n = tt * 14 + ks
            if n + 3 < 28:
                rd(n + 3)
            lg.wait(f"x{n}")
            for i in range(7):
                c = "0" if ks == 0 else v(ACC + 4 * i, 4)
                A(f"{MF} {v(ACC + 4 * i, 4)}, {v(XOP + 4 * (n % 4), 4)}, {wreg((i * 14 + ks) * 4, 4)}, {c}")
        for i in range(7):
            for b in range(2):
                A(f"v_cvt_pk_bf16_f32 {v(PK + 4 * i + 2 * tt + b)}, {v(ACC + 4 * i + 2 * b)}, {v(ACC + 4 * i + 2 * b + 1)}")
    A(f"s_add_u32 s33, {s(sY)}, 4096")
    for i in range(7):
        A(f"buffer_store_dwordx4 {v(PK + 4 * i, 4)}, v3, {s(WS, 4)}, {s(sY) if i < 4 else 's33'} offen offset:{(i % 4) * 1024} sc1")
    A(f"v_xor_b32 {v(XR)}, 0x8000, {v(XR)}\nv_xor_b32 {v(XR + 1)}, 0x8000, {v(XR + 1)}")
    A("s_waitcnt vmcnt(0)\ns_barrier")
    A(f"s_cmp_eq_u32 {s(S_W)}, 0\ns_cbranch_scc0 {noflag}")
    set_flag(A, sF, T)
    A(f"{noflag}:")
    A(f"s_add_u32 {s(sS)}, {s(sS)}, {Y_TEAMS}\ns_cmp_ge_u32 {s(sS)}, 64\ns_cbranch_scc1 {done}")
    A(f"s_add_u32 {s(sY)}, {s(sY)}, {Y_TEAMS * 16 * 28 * KB}\ns_add_u32 {s(sF)}, {s(sF)}, {Y_TEAMS * FL_STEP}\ns_branch {top}")
    A(f"{done}:")
    flush_stamps(A, opts)
    A("s_endpgm")


def gen_z(A, opts):
    from gen_chain import SMF, gather_addr, gather_mem, idx_reg, zero
    MEM, ACC, G0, G1, PK, IDX, GA0, GA1, ZA, T = 4, 32, 60, 68, 76, 90, 91, 92, 93, 94
    sS, sXM, sZ, sF = 44, 45, 46, 47
    after_first_y(A, opts)
    wait_prep(A, True)
    vm = Cnt(A, "vmcnt", 63)
    A(f"s_mul_i32 s35, s30, {FRAG_H}\ns_mul_i32 s36, {s(S_W)}, {7 * 14 * KB}\ns_add_u32 s35, s35, s36\ns_add_u32 s35, s35, {BF}")
    load_weights(A, vm, 3, [(lambda i=i: A(f"s_add_u32 s37, s35, {i * 14 * KB}")) for i in range(7)], 37)
    gather_addr(A, GA0, GA1)
    idx_reg(A, IDX)
    A(f"v_lshlrev_b32 {v(ZA)}, 3, v0")
    A(f"s_mov_b32 {s(sS)}, 0\ns_mov_b32 {s(sXM)}, {XM}\ns_mul_i32 {s(sZ)}, s30, 14336\ns_mul_i32 s33, {s(S_W)}, 3584\ns_add_u32 {s(sZ)}, {s(sZ)}, s33\ns_add_u32 {s(sZ)}, {s(sZ)}, {ZF}")
    A(f"s_lshl_b32 {s(sF)}, s30, 7\ns_add_u32 {s(sF)}, {s(sF)}, {FZ - FL_STEP}")
    top, noflag = A.new("z_top"), A.new("z_nofl")
    mark(A, opts, 1)
    A(f"{top}:")
    gather_mem(A, {}, G0, G1, GA0, GA1, sXM, T, 0, zero(ACC, 28))
    lg = Cnt(A, "lgkmcnt", 15)
    for kk in range(7):
        lg.op(f"ds_read_b128 {v(MEM + 4 * kk, 4)}, v3 offset:{kk * 1024}", f"m{kk}")
    A(f"s_cmp_eq_u32 {s(S_W)}, 0\ns_cbranch_scc0 {noflag}\ns_cmp_eq_u32 {s(sS)}, 0\ns_cbranch_scc1 {noflag}")
    set_flag(A, sF, T)
    A(f"{noflag}:")
    for i in range(7):
        for kk in range(7):
            if i == 0:
                lg.wait(f"m{kk}")
            A(f"{SMF} {v(ACC + 4 * i, 4)}, {v(MEM + 4 * kk, 4)}, {wreg((i * 7 + kk) * 8, 8)}, {v(IDX)}")
    A("s_barrier")
    for i in range(7):
        for b in range(2):
            A(f"v_cvt_pk_bf16_f32 {v(PK + 2 * i + b)}, {v(ACC + 4 * i + 2 * b)}, {v(ACC + 4 * i + 2 * b + 1)}")
        A(f"buffer_store_dwordx2 {v(PK + 2 * i, 2)}, {v(ZA)}, {s(WS, 4)}, {s(sZ)} offen offset:{i * 512} sc1")
    A(f"s_add_u32 {s(sS)}, {s(sS)}, 1\ns_add_u32 {s(sXM)}, {s(sXM)}, 8192\ns_add_u32 {s(sZ)}, {s(sZ)}, {16 * 14336}\ns_add_u32 {s(sF)}, {s(sF)}, {FL_STEP}")
    A(f"s_cmp_lt_u32 {s(sS)}, 64\ns_cbranch_scc1 {top}")
    A("s_waitcnt vmcnt(0)\ns_barrier")
    set_flag(A, sF, T)
    flush_stamps(A, opts)
    A("s_endpgm")


def wait_flags(A, fv, fa, soff, off=0, sleep=2):
    lp, ok = A.new("wf"), A.new("wfok")
    A(f"{lp}:")
    A(f"buffer_load_dword {v(fv)}, {v(fa)}, {s(WS, 4)}, {s(soff)} offen offset:{off} sc1")
    poll_guard(A)
    A(f"s_waitcnt vmcnt(0)\nv_cmp_ne_u32 vcc, {s(S_NONCE)}, {v(fv)}\ns_cbranch_vccz {ok}\ns_sleep {sleep}\ns_branch {lp}\n{ok}:")


def after_first_y(A, opts):
    if opts.get("nodelay"):
        return
    out = A.new("afy")
    A(f"s_cmp_eq_u32 {s(S_W)}, 0\ns_cbranch_scc0 {out}\nv_lshlrev_b32 v4, 7, v1\ns_mov_b32 s34, {FY}")
    wait_flags(A, 5, 4, 34, sleep=16)
    A(f"{out}:\ns_barrier")


def unpack(A, dst, src, n, smask):
    for r in range(n):
        A(f"v_lshlrev_b32 {v(dst + 2 * r)}, 16, {v(src + r)}\nv_and_b32 {v(dst + 2 * r + 1)}, {s(smask)}, {v(src + r)}")


def gen_x1(A, opts):
    from gen_chain import gather_addr, mem_loads, check8
    ACC, XOP, TOP, G, ZERO = 4, 32, 48, 80, 88
    GA0, GA1, XR, KX, KX1, KX3, KX31, MK, MK2, MK3, SW, SR, PA, NEG, T = range(89, 104)
    SXB, SMB, XB = 8192, 24576, 32768
    sS, sX, sM0, sXM, sP, sF, sODD, sP0 = 44, 45, 46, 47, 48, 49, 50, 51
    MASK, ODDM = 56, 72
    after_first_y(A, opts)
    wait_prep(A, True)
    vm = Cnt(A, "vmcnt", 63)
    A(f"s_mov_b32 {s(sS)}, s31\ns_mul_i32 s35, {s(S_W)}, {7 * KB}\ns_add_u32 {s(sM0)}, s35, {XB}")
    A(f"s_mul_i32 {s(sX)}, s31, {28 * KB}\ns_add_u32 {s(sX)}, {s(sX)}, s35\ns_add_u32 {s(sX)}, {s(sX)}, {XF}")
    seg_dma(A, sX, sM0, vm)
    A(f"s_and_b32 {s(sODD)}, {s(S_W)}, 1\ns_mul_i32 s33, {s(S_W)}, 7\ns_add_u32 {s(sP0)}, s33, {s(sODD)}\ns_lshr_b32 {s(sP0)}, {s(sP0)}, 1")
    A(f"s_mul_i32 s34, s30, {FRAG_H}\ns_mul_i32 s33, {s(S_W)}, {7 * 14 * KB}\ns_add_u32 s34, s34, s33")
    if AF:
        A(f"s_add_u32 s34, s34, {AF}")
    A(f"s_mul_i32 s35, {s(sODD)}, {14 * KB}\ns_add_u32 s35, s35, s34\ns_add_u32 s36, s34, {6 * 14 * KB}\ns_cmp_eq_u32 {s(sODD)}, 0\ns_cselect_b32 s36, s36, s34")
    A(f"s_cselect_b64 {s(ODDM, 2)}, 0, -1")
    tiles = [(lambda i=i: A(f"s_add_u32 s37, s35, {i * 14 * KB}")) for i in range(6)] + [lambda: A("s_mov_b32 s37, s36")]
    load_weights(A, vm, 3, tiles, 37)
    gather_addr(A, GA0, GA1)
    A(f"v_mov_b32 {v(ZERO)}, 0\nv_mov_b32 {v(NEG)}, {f32(-1.0e9 * math.log2(math.e))}")
    chunk_pos(A, XR, 1, 2, 4)
    paired_addr(A, KX, KX1)
    A(f"v_add_u32 {v(XR)}, {XB}, {v(XR)}")
    A(f"s_lshl_b32 s33, {s(sP0)}, 10\ns_add_u32 s33, s33, {XB}\ns_lshl_b32 s34, {s(sODD)}, 12\ns_sub_u32 s34, 3072, s34")
    for r in (KX, KX1):
        A(f"v_add_u32 {v(r)}, s33, {v(r)}\nv_add_u32 {v(r + 2)}, s34, {v(r)}")
    A(f"v_and_b32 v4, 7, v1\nv_lshlrev_b32 v4, 4, v4\nv_lshrrev_b32 v5, 1, v2\nv_lshl_add_u32 v4, v5, 8, v4\nv_and_b32 v5, 1, v2\nv_lshl_add_u32 v4, v5, 3, v4")
    A(f"s_lshl_b32 s33, {s(sP0)}, 9\nv_add_u32 {v(MK)}, s33, v4\nv_add_u32 {v(MK2)}, 1024, {v(MK)}")
    A(f"s_lshl_b32 s34, {s(sODD)}, 11\ns_sub_u32 s34, 1536, s34\nv_add_u32 {v(MK3)}, s34, {v(MK)}")
    A(f"s_lshl_b32 s33, {s(S_W)}, 10\nv_add_u32 {v(SW)}, s33, v3\ns_lshl_b32 s33, {s(sODD)}, 12\nv_add_u32 {v(SR)}, s33, v3\nv_lshlrev_b32 {v(PA)}, 3, v0")
    A(f"s_lshl_b32 s33, {s(sODD)}, 4\nv_add_u32 v5, s33, v1")
    for kt in range(2):
        for q in range(4):
            A(f"v_lshl_add_u32 v4, v2, 1, {8 * kt + (q >> 1) + 16 * (q & 1)}\nv_cmp_le_u32 {s(MASK + 8 * kt + 2 * q, 2)}, v4, v5")
    A(f"s_lshl_b32 {s(sXM)}, s31, 13\ns_add_u32 {s(sXM)}, {s(sXM)}, {XM}")
    A(f"s_lshl_b32 s33, s31, 4\ns_add_u32 s33, s33, s30\ns_lshl_b32 s33, s33, 1\ns_add_u32 s33, s33, {s(sODD)}\ns_mul_i32 {s(sP)}, s33, 1536\ns_add_u32 {s(sP)}, {s(sP)}, {PF}")
    A(f"s_lshl_b32 s33, s30, 1\ns_add_u32 s33, s33, {s(sODD)}\ns_lshl_b32 s33, s33, 7\ns_mul_i32 {s(sF)}, s31, {FL_STEP}\ns_add_u32 {s(sF)}, {s(sF)}, s33\ns_add_u32 {s(sF)}, {s(sF)}, {FP}")
    top, nodma, nxt, lp, ok = (A.new("x1_" + x) for x in ("top", "nodma", "next", "poll", "ok"))
    mark(A, opts, 1)
    A(f"{top}:")
    A("s_waitcnt vmcnt(0)\ns_barrier")
    A(f"s_add_u32 s33, {s(sS)}, {X1_TEAMS}\ns_cmp_ge_u32 s33, 64\ns_cbranch_scc1 {nodma}")
    A(f"s_add_u32 {s(sX)}, {s(sX)}, {X1_TEAMS * 28 * KB}\ns_xor_b32 {s(sM0)}, {s(sM0)}, 0x18000")
    seg_dma(A, sX, sM0)
    A(f"{nodma}:")
    lg = Cnt(A, "lgkmcnt", 15)
    rd = lambda n: lg.op(f"ds_read_b128 {v(XOP + 4 * (n % 4), 4)}, {v(XR)} offset:{n * KB}", f"x{n}")
    for n in range(3):
        rd(n)
    for tt in range(2):
        for ks in range(14):
            n = tt * 14 + ks
            if n + 3 < 28:
                rd(n + 3)
            lg.wait(f"x{n}")
            for i in range(7):
                c = "0" if ks == 0 else v(ACC + 4 * i, 4)
                A(f"{MF} {v(ACC + 4 * i, 4)}, {wreg((i * 14 + ks) * 4, 4)}, {v(XOP + 4 * (n % 4), 4)}, {c}")
        for i in range(6):
            for b in range(2):
                A(f"v_cvt_pk_bf16_f32 {v(TOP + 16 * tt + 2 * i + b)}, {v(ACC + 4 * i + 2 * b)}, {v(ACC + 4 * i + 2 * b + 1)}")
        for b in range(2):
            A(f"v_cvt_pk_bf16_f32 {v(T + b)}, {v(ACC + 24 + 2 * b)}, {v(ACC + 25 + 2 * b)}")
        for b in range(2):
            A(f"v_cndmask_b32 {v(TOP + 16 * tt + 12 + b)}, {v(T + b)}, {v(ZERO)}, {s(ODDM, 2)}")
            A(f"v_cndmask_b32 {v(TOP + 16 * tt + 14 + b)}, {v(ZERO)}, {v(T + b)}, {s(ODDM, 2)}")
    for half in range(2):
        for b in (2 * half, 2 * half + 1):
            for kt in range(2):
                reg, o = (KX3 + kt, 0) if b == 3 else (KX + kt, b * KB)
                lg.op(f"ds_read_b128 {v(XOP + 8 * (b % 2) + 4 * kt, 4)}, {v(reg)} offset:{o}", f"k{b}")
        for b in (2 * half, 2 * half + 1):
            lg.wait(f"k{b}")
            for j in range(4):
                kt, tt = j % 2, j // 2
                c = "0" if b == 0 else v(ACC + 4 * j, 4)
                A(f"{MF} {v(ACC + 4 * j, 4)}, {v(XOP + 8 * (b % 2) + 4 * kt, 4)}, {v(TOP + 16 * tt + 4 * b, 4)}, {c}")
    for r in (XR, KX, KX1, KX3, KX31):
        A(f"v_xor_b32 {v(r)}, 0x18000, {v(r)}")
    for j in range(4):
        A(f"ds_write_b128 {v(SW)}, {v(ACC + 4 * j, 4)} offset:{SXB + (j % 2) * 8192 + (j // 2) * 4096}")
    A(f"{lp}:")
    mem_loads(A, G, GA0, GA1, sXM)
    poll_guard(A)
    A("s_waitcnt vmcnt(0)")
    A(f"ds_write_b128 {v(GA0)}, {v(G, 4)}\nds_write_b128 {v(GA1)}, {v(G + 4, 4)}")
    check8(A, G, T)
    A(f"s_cbranch_vccz {ok}\ns_sleep 2\ns_branch {lp}\n{ok}:")
    A("s_waitcnt lgkmcnt(0)\ns_barrier")
    lg.q = []
    for b in range(4):
        reg, o = [(MK, 0), (MK, 128), (MK2, 0), (MK3, 0)][b]
        for x in range(2):
            lg.op(f"ds_read2_b32 {v(XOP + 4 * b + 2 * x, 2)}, {v(reg)} offset0:{o + x} offset1:{o + x + 32}", f"m{b}")
    for b in range(4):
        lg.wait(f"m{b}")
        for tt in range(2):
            c = "0" if b == 0 else v(ACC + 4 * tt, 4)
            A(f"{MF} {v(ACC + 4 * tt, 4)}, {v(XOP + 4 * b, 4)}, {v(TOP + 16 * tt + 4 * b, 4)}, {c}")
    for tt in range(2):
        A(f"ds_write_b128 {v(SW)}, {v(ACC + 4 * tt, 4)} offset:{SMB + tt * 4096}")
    A(f"s_cmp_ge_u32 {s(S_W)}, 2")
    A(f"s_waitcnt lgkmcnt(0)\ns_barrier\ns_cbranch_scc1 {nxt}")
    R, S = TOP, ACC
    for k, (reg, base) in enumerate(((SR, SMB), (SR, SXB), (SR, SXB + 8192))):
        for w in range(4):
            A(f"ds_read_b128 {v((XOP if k == 2 else R + 16 * k) + 4 * w, 4)}, {v(reg)} offset:{base + w * KB}")
    for k, d in enumerate((8, 0, 4)):
        b = XOP if k == 2 else R + 16 * k
        A(f"s_waitcnt lgkmcnt({8 - 4 * k})")
        for q in range(0, 4, 2):
            A(f"v_pk_add_f32 {v(b + q, 2)}, {v(b + q, 2)}, {v(b + 4 + q, 2)}\nv_pk_add_f32 {v(b + 8 + q, 2)}, {v(b + 8 + q, 2)}, {v(b + 12 + q, 2)}")
        for q in range(0, 4, 2):
            A(f"v_pk_add_f32 {v(S + d + q, 2)}, {v(b + q, 2)}, {v(b + 8 + q, 2)}")
    for r in range(8):
        A(f"v_cndmask_b32 {v(S + r)}, {v(NEG)}, {v(S + r)}, {s(MASK + 2 * r, 2)}")
    mx, sm = T, T + 1
    A(f"v_max3_f32 {v(mx)}, {v(S)}, {v(S + 1)}, {v(S + 2)}")
    for r in range(3, 11, 2):
        A(f"v_max3_f32 {v(mx)}, {v(mx)}, {v(S + r)}, {v(S + r + 1)}")
    A(f"v_max_f32 {v(mx)}, {v(mx)}, {v(S + 11)}")
    xor_reduce(A, "v_max_f32", mx, T + 2)
    for r in range(12):
        A(f"v_sub_f32 {v(S + r)}, {v(S + r)}, {v(mx)}")
    for r in range(12):
        A(f"v_exp_f32 {v(S + r)}, {v(S + r)}")
    A(f"v_add_f32 {v(sm)}, {v(S + 8)}, {v(S + 9)}\nv_add_f32 {v(T + 2)}, {v(S + 10)}, {v(S + 11)}\nv_add_f32 {v(sm)}, {v(sm)}, {v(T + 2)}\nv_mul_f32 {v(sm)}, 0.5, {v(sm)}")
    for r in range(8):
        A(f"v_add_f32 {v(sm)}, {v(sm)}, {v(S + r)}")
    xor_reduce(A, "v_add_f32", sm, T + 2)
    A(f"v_rcp_f32 {v(sm)}, {v(sm)}")
    for r in range(12):
        A(f"v_mul_f32 {v(S + r)}, {v(S + r)}, {v(sm)}")
    for r in range(6):
        A(f"v_cvt_pk_bf16_f32 {v(G + r)}, {v(S + 2 * r)}, {v(S + 2 * r + 1)}")
    A(f"buffer_store_dwordx4 {v(G, 4)}, v3, {s(WS, 4)}, {s(sP)} offen sc1")
    A(f"buffer_store_dwordx2 {v(G + 4, 2)}, {v(PA)}, {s(WS, 4)}, {s(sP)} offen offset:1024 sc1")
    A("s_waitcnt vmcnt(0)")
    set_flag(A, sF, T)
    A(f"{nxt}:")
    A(f"s_add_u32 {s(sS)}, {s(sS)}, {X1_TEAMS}\ns_add_u32 {s(sXM)}, {s(sXM)}, {X1_TEAMS * 8192}\ns_add_u32 {s(sP)}, {s(sP)}, {X1_TEAMS * 32 * 1536}\ns_add_u32 {s(sF)}, {s(sF)}, {X1_TEAMS * FL_STEP}")
    A(f"s_cmp_lt_u32 {s(sS)}, 64\ns_cbranch_scc1 {top}")
    flush_stamps(A, opts)
    A("s_endpgm")


def reduce_tiles(A, R, out, rr, base):
    for vv in range(2):
        for w in range(4):
            A(f"ds_read_b128 {v(R + 16 * vv + 4 * w, 4)}, {v(rr)} offset:{base + w * 4096 + vv * KB}")
    for vv in range(2):
        b = R + 16 * vv
        A(f"s_waitcnt lgkmcnt({4 - 4 * vv})")
        for q in (0, 2):
            A(f"v_pk_add_f32 {v(b + q, 2)}, {v(b + q, 2)}, {v(b + 4 + q, 2)}\nv_pk_add_f32 {v(b + 8 + q, 2)}, {v(b + 8 + q, 2)}, {v(b + 12 + q, 2)}")
        for q in (0, 2):
            A(f"v_pk_add_f32 {v(out + 4 * vv + q, 2)}, {v(b + q, 2)}, {v(b + 8 + q, 2)}")


def gen_x2(A, opts):
    Y, PX, PM, Z, ACC, XV, R, O = 4, 36, 68, 84, 100, 116, 120, 152
    FA1, FA2, FV, L8, RW, RR, XA, SA, T = range(160, 169)
    X_ = 16
    sS, sY, sP, sZ, sFL, sXO, sH, sST, sF, sMASK = range(44, 54)
    b = load_srd(A, X_, "x", 40)
    A(f"s_mov_b32 {s(sS)}, s31\ns_mov_b32 {s(sMASK)}, 0xffff0000\ns_and_b32 s36, {s(S_W)}, 1")
    A(f"v_lshlrev_b32 {v(FA1)}, 7, v1\nv_lshlrev_b32 {v(L8)}, 3, v0")
    A(f"v_and_b32 v4, 31, v0\nv_lshlrev_b32 v4, 7, v4\nv_add_u32 v4, {FP - FL}, v4\nv_add_u32 v5, {FZ - FL}, {v(FA1)}\nv_cmp_gt_u32 vcc, 32, v0\nv_cndmask_b32 {v(FA2)}, v5, v4, vcc")
    A(f"s_lshl_b32 s33, {s(S_W)}, 12\nv_add_u32 {v(RW)}, s33, v3\ns_lshl_b32 s33, s36, 11\nv_add_u32 {v(RR)}, s33, v3")
    A(f"v_mul_u32_u24 v4, 896, v1\nv_lshl_add_u32 {v(XA)}, v2, 4, v4")
    A(f"v_lshlrev_b32 v4, 3, v1\nv_mov_b32 v5, {OOB}\nv_cmp_gt_u32 vcc, 16, v0\nv_cndmask_b32 {v(SA)}, v5, v4, vcc")
    A(f"s_lshl_b32 s33, s31, 4\ns_lshl_b32 s34, {s(S_W)}, 2\ns_add_u32 s33, s33, s34")
    A(f"s_mul_i32 {s(sY)}, s33, {28 * KB}\ns_lshl_b32 s34, s30, 11\ns_add_u32 {s(sY)}, {s(sY)}, s34\ns_add_u32 {s(sY)}, {s(sY)}, {YF}")
    A(f"s_mul_i32 {s(sP)}, s33, 3072\ns_add_u32 {s(sP)}, {s(sP)}, {PF}")
    A(f"s_mul_i32 {s(sZ)}, s33, 14336\ns_lshl_b32 s34, s30, 10\ns_add_u32 {s(sZ)}, {s(sZ)}, s34\ns_add_u32 {s(sZ)}, {s(sZ)}, {ZF}")
    A(f"s_mul_i32 {s(sFL)}, s31, {FL_STEP}\ns_add_u32 {s(sFL)}, {s(sFL)}, {FL}")
    A(f"s_lshl_b32 s33, s31, 1\ns_add_u32 s33, s33, s36")
    A(f"s_mul_i32 {s(sXO)}, s33, {16 * 896}\ns_lshl_b32 s34, s30, 6\ns_add_u32 {s(sXO)}, {s(sXO)}, s34")
    A(f"s_mul_i32 s33, s33, 14\ns_add_u32 s33, s33, s30\ns_lshl_b32 {s(sH)}, s33, 10\ns_add_u32 {s(sH)}, {s(sH)}, {HF}\ns_lshl_b32 {s(sST)}, s33, 7\ns_add_u32 {s(sST)}, {s(sST)}, {ST}")
    A(f"s_lshl_b32 s33, s30, 1\ns_add_u32 s33, s33, s36\ns_lshl_b32 s33, s33, 7\ns_add_u32 {s(sF)}, {s(sFL)}, s33\ns_add_u32 {s(sF)}, {s(sF)}, {FH - FL}")
    A("s_waitcnt lgkmcnt(0)")
    b()
    top, nxt = A.new("x2_top"), A.new("x2_next")
    mark(A, opts, 1)
    A(f"{top}:")
    wait_flags(A, FV, FA1, sFL)
    for hh in range(4):
        A(f"s_add_u32 s33, {s(sY)}, {hh * 28 * KB}")
        for vv in range(2):
            A(f"buffer_load_dwordx4 {v(Y + 8 * hh + 4 * vv, 4)}, v3, {s(WS, 4)}, s33 offen offset:{vv * KB} sc1")
    A(f"buffer_load_dwordx4 {v(XV, 4)}, {v(XA)}, {s(X_, 4)}, {s(sXO)} offen")
    wait_flags(A, FV, FA2, sFL)
    vm = Cnt(A, "vmcnt", 63)
    for hh in range(4):
        A(f"s_add_u32 s33, {s(sP)}, {hh * 3072}\ns_add_u32 s34, {s(sZ)}, {hh * 14336}")
        for tt in range(2):
            vm.op(f"buffer_load_dwordx4 {v(PX + 8 * hh + 4 * tt, 4)}, v3, {s(WS, 4)}, s33 offen offset:{tt * 1536} sc1", f"x{hh}")
        for tt in range(2):
            vm.op(f"buffer_load_dwordx2 {v(PM + 8 * (hh // 2) + 4 * tt + 2 * (hh % 2), 2)}, {v(L8)}, {s(WS, 4)}, s33 offen offset:{tt * 1536 + 1024} sc1", f"m{hh // 2}")
        for vv in range(2):
            vm.op(f"buffer_load_dwordx2 {v(Z + 8 * (hh // 2) + 4 * vv + 2 * (hh % 2), 2)}, {v(L8)}, {s(WS, 4)}, s34 offen offset:{vv * 512} sc1", f"m{hh // 2}")
    A("s_barrier")
    for hh in range(4):
        vm.wait(f"x{hh}")
        for tt in range(2):
            for vv in range(2):
                d = v(ACC + 8 * tt + 4 * vv, 4)
                A(f"{MF} {d}, {v(Y + 8 * hh + 4 * vv, 4)}, {v(PX + 8 * hh + 4 * tt, 4)}, {'0' if hh == 0 else d}")
        if hh % 2:
            vm.wait(f"m{hh // 2}")
            for tt in range(2):
                for vv in range(2):
                    d = v(ACC + 8 * tt + 4 * vv, 4)
                    A(f"{MF} {d}, {v(Z + 8 * (hh // 2) + 4 * vv, 4)}, {v(PM + 8 * (hh // 2) + 4 * tt, 4)}, {d}")
    for k in range(4):
        A(f"ds_write_b128 {v(RW)}, {v(ACC + 4 * k, 4)} offset:{k * KB}")
    A(f"s_cmp_ge_u32 {s(S_W)}, 2\ns_waitcnt lgkmcnt(0)\ns_barrier\ns_cbranch_scc1 {nxt}")
    reduce_tiles(A, R, O, RR, 0)
    for r in range(4):
        A(f"v_cvt_pk_bf16_f32 {v(R + r)}, {v(O + 2 * r)}, {v(O + 2 * r + 1)}")
    unpack(A, O, R, 4, sMASK)
    unpack(A, R + 8, XV, 4, sMASK)
    for r in range(8):
        A(f"v_add_f32 {v(O + r)}, {v(O + r)}, {v(R + 8 + r)}")
    for r in range(4):
        A(f"v_cvt_pk_bf16_f32 {v(R + r)}, {v(O + 2 * r)}, {v(O + 2 * r + 1)}")
    A(f"buffer_store_dwordx4 {v(R, 4)}, v3, {s(WS, 4)}, {s(sH)} offen sc1")
    unpack(A, O, R, 4, sMASK)
    M = R + 8
    A(f"v_add_f32 {v(M)}, {v(O)}, {v(O + 1)}")
    for r in range(2, 8):
        A(f"v_add_f32 {v(M)}, {v(M)}, {v(O + r)}")
    xor_reduce(A, "v_add_f32", M, T)
    A(f"v_mul_f32 {v(M)}, {f32(1.0 / 32)}, {v(M)}")
    for r in range(8):
        A(f"v_sub_f32 {v(O + r)}, {v(O + r)}, {v(M)}")
    A(f"v_mul_f32 {v(M + 1)}, {v(O)}, {v(O)}")
    for r in range(1, 8):
        A(f"v_fmac_f32 {v(M + 1)}, {v(O + r)}, {v(O + r)}")
    xor_reduce(A, "v_add_f32", M + 1, T)
    A(f"buffer_store_dwordx2 {v(M, 2)}, {v(SA)}, {s(WS, 4)}, {s(sST)} offen sc1")
    A("s_waitcnt vmcnt(0)")
    set_flag(A, sF, T)
    A(f"{nxt}:")
    for r, step in ((sS, 1), (sY, 16 * 28 * KB), (sP, 16 * 3072), (sZ, 16 * 14336), (sFL, FL_STEP), (sXO, 32 * 896), (sH, 28 * KB), (sST, 28 * 128), (sF, FL_STEP)):
        A(f"s_add_u32 {s(r)}, {s(r)}, {X2_TEAMS * step}")
    A(f"s_cmp_lt_u32 {s(sS)}, 64\ns_cbranch_scc1 {top}")
    flush_stamps(A, opts)
    A("s_endpgm")


def tr_addr(A, dst, sbase):
    A(f"v_lshrrev_b32 v4, 2, v1\nv_lshlrev_b32 v4, 6, v4\nv_and_b32 v5, 3, v0\nv_lshl_add_u32 v4, v5, 4, v4\nv_lshl_add_u32 v4, v2, 9, v4\nv_add_u32 {v(dst)}, {s(sbase)}, v4")


def row_addr(A, dst, stride):
    A(f"v_lshrrev_b32 v4, 2, v0\nv_mov_b32 v6, {stride}\nv_mul_lo_u32 v4, v4, v6\nv_and_b32 v5, 3, v0\nv_lshl_add_u32 {v(dst)}, v5, 4, v4")


def gen_f1(A, opts):
    H, ACC, CS, B1, SV, U, PK = 4, 60, 68, 76, 84, 92, 100
    FA, FV, SA, RA, TR, T = range(108, 114)
    W_, B_ = 16, 20
    sS, sH, sST, sG, sFH, sF, sMASK, sP = range(44, 52)
    after_first_y(A, opts)
    b = [load_srd(A, W_, "w1", 40), load_srd(A, B_, "b1", 42)]
    A(f"s_lshr_b32 s34, {s(S_W)}, 1\ns_and_b32 s35, {s(S_W)}, 1\ns_lshl_b32 {s(sP)}, s30, 1\ns_add_u32 {s(sP)}, {s(sP)}, s34")
    row_addr(A, RA, 3584)
    A(f"s_mul_i32 s36, s34, {28 * KB}")
    tr_addr(A, TR, 36)
    A(f"s_mul_i32 s37, s35, {14 * KB}\ns_add_u32 s36, s36, s37\ns_mul_i32 s37, s35, {224 * 3584}\ns_lshl_b32 s38, {s(sP)}, 6\ns_add_u32 s37, s37, s38")
    A(f"v_lshlrev_b32 v7, 4, v2\ns_mov_b32 {s(sMASK)}, 0xffff0000")
    A("s_waitcnt lgkmcnt(0)")
    for f in b:
        f()
    for j in range(14):
        A(f"s_mov_b32 m0, s36\ns_add_u32 s36, s36, 1024\nbuffer_load_dwordx4 {v(RA)}, {s(W_, 4)}, s37 offen lds\ns_add_u32 s37, s37, {16 * 3584}")
    A(f"buffer_load_dwordx4 {v(PK, 4)}, v7, {s(B_, 4)}, s38 offen")
    A(f"s_mov_b32 {s(sS)}, s31\ns_lshl_b32 s33, s31, 1\ns_add_u32 s33, s33, s35")
    A(f"s_mul_i32 {s(sH)}, s33, {14 * KB}\ns_add_u32 {s(sH)}, {s(sH)}, {HF}\ns_mul_i32 {s(sST)}, s33, {14 * 128}\ns_add_u32 {s(sST)}, {s(sST)}, {ST}")
    A(f"s_mul_i32 s34, s33, 56\ns_add_u32 s34, s34, {s(sP)}\ns_lshl_b32 {s(sG)}, s34, 10\ns_add_u32 {s(sG)}, {s(sG)}, {GF}")
    A(f"s_mul_i32 {s(sFH)}, s31, {FL_STEP}\ns_lshl_b32 {s(sF)}, s35, 13\ns_lshl_b32 s34, {s(sP)}, 7\ns_add_u32 {s(sF)}, {s(sF)}, s34\ns_add_u32 {s(sF)}, {s(sF)}, {s(sFH)}\ns_add_u32 {s(sF)}, {s(sF)}, {FG}")
    A(f"s_add_u32 {s(sFH)}, {s(sFH)}, {FH}")
    A(f"v_min_u32 {v(FA)}, 13, v1\nv_lshlrev_b32 {v(FA)}, 8, {v(FA)}\ns_lshl_b32 s34, s35, 7\nv_add_u32 {v(FA)}, s34, {v(FA)}")
    A(f"v_lshlrev_b32 {v(SA)}, 7, v2\nv_lshl_add_u32 {v(SA)}, v1, 3, {v(SA)}\nv_add_u32 v4, 1536, {v(SA)}\nv_mov_b32 v5, {OOB}\nv_cmp_gt_u32 vcc, 32, v0\nv_cndmask_b32 {v(T + 5)}, v5, v4, vcc")
    A("s_waitcnt vmcnt(0)\ns_barrier")
    unpack(A, B1, PK, 4, sMASK)
    lg = Cnt(A, "lgkmcnt", 15)
    for vv in range(2):
        for ks in range(14):
            for x in range(2):
                lg.room(1)
                lg.op(f"ds_read_b64_tr_b16 {a((vv * 14 + ks) * 4 + 2 * x, 2)}, {v(TR)} offset:{ks * 2048 + x * 256 + vv * 8}")
    for r in range(4):
        A(f"v_mov_b32 {v(H + r)}, 0x3f803f80")
    lg.drain()
    for ks in range(14):
        for vv in range(2):
            d = v(CS + 4 * vv, 4)
            A(f"{MF} {d}, {a((vv * 14 + ks) * 4, 4)}, {v(H, 4)}, {'0' if ks == 0 else d}")
    K1 = -2.0 * math.sqrt(2.0 / math.pi) * math.log2(math.e)
    A(f"s_mov_b32 s54, {f32(K1 * 0.044715)}\nv_mov_b32 {v(T + 4)}, {f32(K1)}")
    top = A.new("f1_top")
    mark(A, opts, 1)
    A(f"{top}:")
    wait_flags(A, FV, FA, sFH)
    vm = Cnt(A, "vmcnt", 63)
    for k in range(3):
        vm.op(f"buffer_load_dwordx2 {v(SV + 2 * k, 2)}, {v(SA)}, {s(WS, 4)}, {s(sST)} offen offset:{k * 512} sc1", "s")
    vm.op(f"buffer_load_dwordx2 {v(SV + 6, 2)}, {v(T + 5)}, {s(WS, 4)}, {s(sST)} offen sc1", "s")
    A(f"s_mov_b32 s33, {s(sH)}")
    for ks in range(14):
        vm.op(f"buffer_load_dwordx4 {v(H + 4 * ks, 4)}, v3, {s(WS, 4)}, s33 offen offset:{(ks % 4) * KB} sc1", f"h{ks}")
        if ks % 4 == 3:
            A("s_add_u32 s33, s33, 4096")
    vm.wait("s")
    mu, m2, q2 = T, T + 1, T + 2
    A(f"v_add_f32 {v(mu)}, {v(SV)}, {v(SV + 2)}\nv_add_f32 {v(m2)}, {v(SV + 1)}, {v(SV + 3)}\nv_mul_f32 {v(q2)}, {v(SV)}, {v(SV)}\nv_fmac_f32 {v(q2)}, {v(SV + 2)}, {v(SV + 2)}")
    for k in (4, 6):
        A(f"v_add_f32 {v(mu)}, {v(mu)}, {v(SV + k)}\nv_add_f32 {v(m2)}, {v(m2)}, {v(SV + k + 1)}\nv_fmac_f32 {v(q2)}, {v(SV + k)}, {v(SV + k)}")
    A(f"v_fmac_f32 {v(m2)}, {f32(32.0)}, {v(q2)}")
    xor_reduce(A, "v_add_f32", mu, T + 3)
    xor_reduce(A, "v_add_f32", m2, T + 3)
    A(f"v_mul_f32 {v(mu)}, {f32(1.0 / 14)}, {v(mu)}\nv_mul_f32 {v(q2)}, {v(mu)}, {v(mu)}")
    A(f"v_mul_f32 {v(m2)}, {f32(1.0 / 448)}, {v(m2)}\nv_sub_f32 {v(m2)}, {v(m2)}, {v(q2)}\nv_max_f32 {v(m2)}, 0, {v(m2)}\nv_add_f32 {v(m2)}, {f32(1e-5)}, {v(m2)}\nv_rsq_f32 {v(m2)}, {v(m2)}")
    for ks in range(14):
        vm.wait(f"h{ks}")
        for vv in range(2):
            d = v(ACC + 4 * vv, 4)
            A(f"{MF} {d}, {a((vv * 14 + ks) * 4, 4)}, {v(H + 4 * ks, 4)}, {'0' if ks == 0 else d}")
    for r in range(8):
        A(f"v_fma_f32 {v(U + r)}, -{v(mu)}, {v(CS + r)}, {v(ACC + r)}")
    for r in range(8):
        A(f"v_fma_f32 {v(U + r)}, {v(m2)}, {v(U + r)}, {v(B1 + r)}")
    for r in range(8):
        A(f"v_mul_f32 {v(ACC + r)}, {v(U + r)}, {v(U + r)}")
    for r in range(8):
        A(f"v_fma_f32 {v(ACC + r)}, {v(ACC + r)}, s54, {v(T + 4)}")
    for r in range(8):
        A(f"v_mul_f32 {v(ACC + r)}, {v(ACC + r)}, {v(U + r)}")
    for r in range(8):
        A(f"v_exp_f32 {v(ACC + r)}, {v(ACC + r)}")
    for r in range(8):
        A(f"v_add_f32 {v(ACC + r)}, 1.0, {v(ACC + r)}")
    for r in range(8):
        A(f"v_rcp_f32 {v(ACC + r)}, {v(ACC + r)}")
    for r in range(8):
        A(f"v_mul_f32 {v(U + r)}, {v(U + r)}, {v(ACC + r)}")
    for r in range(4):
        A(f"v_cvt_pk_bf16_f32 {v(PK + r)}, {v(U + 2 * r)}, {v(U + 2 * r + 1)}")
    A(f"buffer_store_dwordx4 {v(PK, 4)}, v3, {s(WS, 4)}, {s(sG)} offen sc1")
    A("s_waitcnt vmcnt(0)")
    set_flag(A, sF, SV)
    for r, step in ((sS, 1), (sH, 28 * KB), (sST, 28 * 128), (sG, 112 * KB), (sFH, FL_STEP), (sF, FL_STEP)):
        A(f"s_add_u32 {s(r)}, {s(r)}, {F_TEAMS * step}")
    A(f"s_cmp_lt_u32 {s(sS)}, 64\ns_cbranch_scc1 {top}")
    flush_stamps(A, opts)
    A("s_endpgm")


def gen_f2(A, opts):
    Gr, ACC, HV, B2, R, O = 4, 60, 76, 80, 88, 120
    FA, FV, RA, TR, RW, RR, OA, T = range(128, 136)
    W_, B_, O_ = 16, 20, 24
    sS, sG, sH, sO, sFG, sMASK = range(44, 50)
    after_first_y(A, opts)
    b = [load_srd(A, W_, "w2", 40), load_srd(A, B_, "b2", 42), load_srd(A, O_, "out", 38)]
    A(f"s_lshr_b32 s34, s30, 1\ns_and_b32 s35, s30, 1\ns_and_b32 s29, {s(S_W)}, 1")
    row_addr(A, RA, 896)
    A(f"s_mul_i32 s28, {s(S_W)}, {28 * KB}")
    tr_addr(A, TR, 28)
    A(f"v_lshlrev_b32 v7, 4, v2\ns_mov_b32 {s(sMASK)}, 0xffff0000\ns_lshl_b32 s52, s34, 7\ns_lshl_b32 s53, s29, 6\ns_add_u32 s53, s53, s52")
    A("s_waitcnt lgkmcnt(0)")
    for f in b:
        f()
    A(f"buffer_load_dwordx4 {v(HV, 4)}, v7, {s(B_, 4)}, s53 offen")
    lg = Cnt(A, "lgkmcnt", 15)
    for pa in range(2):
        A(f"s_mul_i32 s37, {s(S_W)}, {448 * 896}\ns_add_u32 s37, s37, s52\ns_add_u32 s37, s37, {pa * 64}\ns_mov_b32 s36, s28")
        for j in range(28):
            A(f"s_mov_b32 m0, s36\ns_add_u32 s36, s36, 1024\nbuffer_load_dwordx4 {v(RA)}, {s(W_, 4)}, s37 offen lds\ns_add_u32 s37, s37, {16 * 896}")
        A("s_waitcnt vmcnt(0)")
        for vv in range(2):
            for ks in range(14):
                for x in range(2):
                    lg.room(1)
                    lg.op(f"ds_read_b64_tr_b16 {a(((2 * pa + vv) * 14 + ks) * 4 + 2 * x, 2)}, {v(TR)} offset:{ks * 2048 + x * 256 + vv * 8}")
        lg.drain()
    unpack(A, B2, HV, 4, sMASK)
    A(f"s_mov_b32 {s(sS)}, s31\ns_lshl_b32 s33, s31, 1\ns_add_u32 s33, s33, s35")
    A(f"s_mul_i32 s36, s33, 56\ns_mul_i32 s37, {s(S_W)}, 14\ns_add_u32 s36, s36, s37\ns_lshl_b32 {s(sG)}, s36, 10\ns_add_u32 {s(sG)}, {s(sG)}, {GF}")
    A(f"s_mul_i32 s36, s33, 14\ns_lshl_b32 s37, s34, 1\ns_add_u32 s36, s36, s37\ns_add_u32 s36, s36, s29\ns_lshl_b32 {s(sH)}, s36, 10\ns_add_u32 {s(sH)}, {s(sH)}, {HF}")
    A(f"s_mul_i32 {s(sO)}, s33, {16 * 896}\ns_add_u32 {s(sO)}, {s(sO)}, s53\ns_mul_i32 {s(sFG)}, s31, {FL_STEP}\ns_lshl_b32 s36, s35, 13\ns_add_u32 {s(sFG)}, {s(sFG)}, s36\ns_add_u32 {s(sFG)}, {s(sFG)}, {FG}")
    A(f"v_min_u32 {v(FA)}, 55, v0\nv_lshlrev_b32 {v(FA)}, 7, {v(FA)}")
    A(f"s_lshl_b32 s33, {s(S_W)}, 12\nv_add_u32 {v(RW)}, s33, v3\ns_lshl_b32 s33, s29, 11\nv_add_u32 {v(RR)}, s33, v3")
    A(f"v_mul_u32_u24 v4, 896, v1\nv_lshl_add_u32 {v(OA)}, v2, 4, v4")
    top, nxt = A.new("f2_top"), A.new("f2_next")
    mark(A, opts, 1)
    A(f"{top}:")
    wait_flags(A, FV, FA, sFG)
    vm = Cnt(A, "vmcnt", 63)
    A(f"s_mov_b32 s33, {s(sG)}")
    for ks in range(14):
        vm.op(f"buffer_load_dwordx4 {v(Gr + 4 * ks, 4)}, v3, {s(WS, 4)}, s33 offen offset:{(ks % 4) * KB} sc1", f"g{ks}")
        if ks % 4 == 3:
            A("s_add_u32 s33, s33, 4096")
    vm.op(f"buffer_load_dwordx4 {v(HV, 4)}, v3, {s(WS, 4)}, {s(sH)} offen sc1", "h")
    A("s_barrier")
    for ks in range(14):
        vm.wait(f"g{ks}")
        for t in range(4):
            d = v(ACC + 4 * t, 4)
            A(f"{MF} {d}, {a((t * 14 + ks) * 4, 4)}, {v(Gr + 4 * ks, 4)}, {'0' if ks == 0 else d}")
    for k in range(4):
        A(f"ds_write_b128 {v(RW)}, {v(ACC + 4 * k, 4)} offset:{k * KB}")
    A(f"s_cmp_ge_u32 {s(S_W)}, 2\ns_waitcnt vmcnt(0) lgkmcnt(0)\ns_barrier\ns_cbranch_scc1 {nxt}")
    reduce_tiles(A, R, O, RR, 0)
    unpack(A, R, HV, 4, sMASK)
    for r in range(8):
        A(f"v_add_f32 {v(O + r)}, {v(O + r)}, {v(B2 + r)}")
    for r in range(8):
        A(f"v_add_f32 {v(O + r)}, {v(O + r)}, {v(R + r)}")
    for r in range(4):
        A(f"v_cvt_pk_bf16_f32 {v(R + 8 + r)}, {v(O + 2 * r)}, {v(O + 2 * r + 1)}")
    A(f"buffer_store_dwordx4 {v(R + 8, 4)}, {v(OA)}, {s(O_, 4)}, {s(sO)} offen")
    A(f"{nxt}:")
    for r, step in ((sS, 1), (sG, 112 * KB), (sH, 28 * KB), (sO, 32 * 896), (sFG, FL_STEP)):
        A(f"s_add_u32 {s(r)}, {s(r)}, {F_TEAMS * step}")
    A(f"s_cmp_lt_u32 {s(sS)}, 64\ns_cbranch_scc1 {top}")
    dbg_time(A, opts, 7, 206)
    flush_stamps(A, opts)
    A("s_endpgm")
```

```python
KB = 1024
FRAG_H = 28 * 14 * KB
AF = 0
BF = AF + 16 * FRAG_H
XF = BF + 16 * FRAG_H
XS = XF + 128 * 14 * KB
YF = XS + 128 * 14 * KB
XM = YF + 64 * 16 * 28 * KB
CM = XM + 64 * 8192
CP = CM + 64 * 8192
EF = CP + 64 * 10240
EF_STEP = 16384
EF_P = 8192
ZF = EF + 64 * EF_STEP
PF = ZF + 64 * 14 * 16384
HF = PF + 64 * 16 * 2 * 1536
ST = HF + 128 * 14 * KB
GF = ST + 128 * 14 * 128
FL = GF + 128 * 56 * KB
FL_STEP = 28672
FY, FZ, FP, FH, FG = FL, FL + 2048, FL + 4096, FL + 8192, FL + 12288
DONE = FL + 65 * FL_STEP
DBG = DONE + 256 * 128
DBG_BYTES = 256 * 4 * 2048
WS_USED = DBG + DBG_BYTES
WS_BYTES = 268435456

P1_BASE, P1_BLOCKS = XM + 8192, 126
P2_BASE, P2_BLOCKS = CM + 8192, 284
P_LAST = [(PF + 63 * 32 * 1536, 12), (ZF + 63 * 16 * 14336, 56), (HF + 126 * 14 * KB, 7), (ST + 126 * 14 * 128, 1), (GF + 126 * 56 * KB, 28)]

KARG = dict(x=0, mem0=8, wq=16, wk=24, wv=32, wo=40, w1=64, b1=72, w2=80, b2=88, out=96, dbg=104, ws=112)
SIZE = dict(x=1835008, mem0=7168, wq=3670016, wk=3670016, wv=3670016, wo=3670016, w1=1605632, b1=3584,
            w2=1605632, b2=896, out=1835008, dbg=256, ws=WS_BYTES)
```

```python
import os
import sys
from asmlib import Asm
from layout import *

NAME = "sequential_preLN__memory_aug_recurrent_mem_tr__dense_activation_gelu__prompt"
REF = f"cdna_kernels/{NAME}.s.ref"


def descriptor(name, nv, acc, ns=102):
    return f""".p2align 6
.amdhsa_kernel {name}
  .amdhsa_next_free_vgpr {nv}
  .amdhsa_next_free_sgpr {ns}
  .amdhsa_accum_offset {acc}
  .amdhsa_group_segment_fixed_size 0
  .amdhsa_kernarg_size 120
  .amdhsa_user_sgpr_count 2
  .amdhsa_user_sgpr_kernarg_segment_ptr 1
  .amdhsa_system_sgpr_workgroup_id_x 1
.end_amdhsa_kernel
"""


def build(opts):
    head = [ln for ln in open(REF).read().split("\n") if ln.startswith(";") and "@launch" not in ln
            and "Override launch" not in ln and "grid=ceil" not in ln]
    from gen_main import gen_main, MAIN_LDS
    import common
    common.FNT = [' sc1', ' sc1 nt', ' nt'][opts.get('fnt', 0)]
    kn = NAME + "_kernel"
    if opts.get("list"):
        launches = [f"; @launch kernel={kn} grid=(256,1,1) block=(256,1,1) lds={MAIN_LDS}"]
    else:
        launches = [f"; @launch grid=(256,1,1) block=(256,1,1) lds={MAIN_LDS}"]
    A = Asm()
    A(f".globl {kn}")
    gen_main(A, kn, opts)
    desc = descriptor(kn, 512, 256)
    n = A.fix_hazards()
    txt = "\n".join(head + launches) + '\n.amdgcn_target "amdgcn-amd-amdhsa--gfx950"\n.text\n' + A.text()
    txt += '.section .rodata,"a"\n' + desc
    return txt, n


if __name__ == "__main__":
    out = sys.argv[1]
    opts = dict(lb=2, la=4, nd=4, pfg=-1, ka_tr=3, ndb=0, gfirst=2, slp=4, sfirst=5, pnt=3, yah=2)
    for x in sys.argv[2:]:
        k, _, val = x.partition("=")
        opts[k] = int(val) if val else 1
    if "/dev/" in os.path.abspath(out):
        opts["list"] = 1
    txt, n = build(opts)
    open(out, "w").write(txt)
    print(f"wrote {out}: {len(txt)} bytes, {txt.count(chr(10))} lines, {n} hazard pads")
```

```python
from asmlib import v, a, s
from layout import *
from common import *
from gen_prep import chunk_pos

SMF = "v_smfmac_f32_16x16x64_bf16"
MF = "v_mfma_f32_16x16x32_bf16"
N_CHAIN = 31


def chain_mode(A, opts, vm, lab):
    lp = A.new("reg")
    A("v_mov_b32 v5, 68")
    A(f"{lp}:")
    A(f"buffer_load_dword v4, v5, {s(DB, 4)}, 0 offen sc1")
    poll_guard(A)
    vm.drain()
    A(f"v_readfirstlane_b32 s34, v4\ns_and_b32 s35, s34, 0xff\ns_cmp_eq_u32 s35, {N_CHAIN}\ns_cbranch_scc0 {lp}")
    mark(A, opts, 1)
    dbg_time(A, opts, 5, 16)
    if lab:
        A(f"s_waitcnt lgkmcnt(0)\ns_lshr_b32 s34, s34, 8\ns_cmp_eq_u32 s34, 0\ns_cbranch_scc0 {lab}")


def gather_addr(A, ga0, ga1):
    A(f"s_mul_i32 s33, {s(S_W)}, {112 * 16}\nv_add_u32 {v(ga0)}, s33, v3")
    A(f"v_min_u32 {v(ga1)}, 47, v0\nv_lshlrev_b32 {v(ga1)}, 4, {v(ga1)}\ns_add_u32 s33, s33, 1024\nv_add_u32 {v(ga1)}, s33, {v(ga1)}")


def mem_loads(A, G, ga0, ga1, scm):
    A(f"buffer_load_dwordx4 {v(G, 4)}, {v(ga0)}, {s(WS, 4)}, {s(scm)} offen sc1")
    A(f"buffer_load_dwordx4 {v(G + 4, 4)}, {v(ga1)}, {s(WS, 4)}, {s(scm)} offen sc1")


def check8(A, G, t):
    A(f"v_max3_u32 {v(t)}, {v(G)}, {v(G + 1)}, {v(G + 2)}\nv_max3_u32 {v(t + 1)}, {v(G + 3)}, {v(G + 4)}, {v(G + 5)}")
    A(f"v_max3_u32 {v(t)}, {v(t)}, {v(G + 6)}, {v(G + 7)}\nv_max_u32 {v(t)}, {v(t)}, {v(t + 1)}\nv_cmp_eq_u32 vcc, -1, {v(t)}")


def gather_mem(A, opts, G0, G1, ga0, ga1, scm, t, memb, shadow, ka=""):
    lp, ok = A.new("poll"), A.new("ok")
    mem_loads(A, G0, ga0, ga1, scm)
    for x in shadow:
        A(x)
    A(f"{lp}:")
    for cur, other in ((G0, G1), (G1, G0)):
        mem_loads(A, other, ga0, ga1, scm)
        poll_guard(A)
        A(ka)
        A("s_waitcnt vmcnt(2)")
        A(f"ds_write_b128 {v(ga0)}, {v(cur, 4)} offset:{memb}\nds_write_b128 {v(ga1)}, {v(cur + 4, 4)} offset:{memb}")
        check8(A, cur, t)
        if opts.get("solo"):
            A(f"s_cbranch_vccz {ok}\ns_branch {ok}")
        A(f"s_cbranch_vccz {ok}" if cur == G0 else f"s_cbranch_vccnz {lp}")
    A(f"{ok}:")
    stamp(A, opts, 0)
    A("s_waitcnt lgkmcnt(0)\ns_barrier")


def notice_wait(A, opts, F, fa, sreg, off, shadow, sstep=None):
    if opts.get("solo"):
        for x in shadow:
            A(x)
        return
    depth = opts.get("nd", 3)
    lp, ok = A.new("nw"), A.new("nok")
    ld = lambda k: A(f"buffer_load_dword {v(F + k)}, {v(fa)}, {s(WS, 4)}, {s(sreg)} offen offset:{off} sc1")
    for k in range(depth - 1):
        ld(k)
    for x in shadow:
        A(x)
    if sstep is not None:
        A(f"s_cmp_eq_u32 {s(sstep)}, 0\ns_cbranch_scc1 {ok}")
    A(f"{lp}:")
    poll_guard(A)
    for k in range(depth):
        ld((k + depth - 1) % depth)
        A(f"s_waitcnt vmcnt({depth - 1})\nv_cmp_ne_u32 vcc, {s(S_NONCE)}, {v(F + k)}")
        A(f"s_cbranch_vccz {ok}" if k < depth - 1 else f"s_cbranch_vccnz {lp}")
    A(f"{ok}:")


def fetch_mem(A, opts, G, ga0, ga1, scm, t, memb, ka=""):
    lp = A.new("fm")
    A(f"{lp}:")
    mem_loads(A, G, ga0, ga1, scm)
    poll_guard(A)
    A(ka)
    A("s_waitcnt vmcnt(0)")
    A(f"ds_write_b128 {v(ga0)}, {v(G, 4)} offset:{memb}\nds_write_b128 {v(ga1)}, {v(G + 4, 4)} offset:{memb}")
    check8(A, G, t)
    if opts.get("stamps"):
        A("s_add_u32 s53, s53, 1")
    if not opts.get("solo"):
        A(f"s_cbranch_vccnz {lp}")
    stamp(A, opts, 0)
    A("s_waitcnt lgkmcnt(0)\ns_barrier")


def notice(A, val, addr, sreg, off, sc):
    A(f"buffer_store_dword {v(val)}, {v(addr)}, {s(WS, 4)}, {s(sreg)} offen offset:{off}{sc}")


def idx_reg(A, r):
    A(f"v_mov_b32 {v(r)}, 0x44444444\nv_mov_b32 v4, 0xeeeeeeee\nv_cmp_gt_u32 vcc, 8, v1\nv_cndmask_b32 {v(r)}, v4, {v(r)}, vcc")


def zero(r, n):
    return [f"v_mov_b64 {v(r + 2 * k, 2)}, 0" for k in range(n // 2)]


def emit_stream(A, stream, fill):
    for i, m_ in enumerate(stream):
        m_() if callable(m_) else A(m_)
        items = fill.get(i, [])
        for x in items:
            x() if callable(x) else A(x)
        if not items and i + 1 < len(stream):
            A("s_nop 1")


def gen_chain_a(A, opts):
    MEM, ACC, KEY, TSP, SC, PK, IDX = 4, 32, 60, 84, 92, 104, 108
    CK, PFA, SR2, FA, MK, MK3, TW0, TW1, TWS, TR0, TR1 = range(109, 120)
    XR, SW, SR, PX, PM = 0, 1, 2, 106, 107
    T = 104
    REG = 32768
    XK, TB, SB, MEMB = 0, 16384, 20480, 24576
    sS, sCM, sCP, sXA, sXB, sM0, sP0, sODD, sREG, sEF, sYP, sMB, sQ = 44, 45, 46, 47, 48, 49, 50, 51, 52, 54, 55, 56, 57
    vm = Cnt(A, "vmcnt", 63)
    A(f"s_and_b32 {s(sODD)}, {s(S_W)}, 1\ns_mul_i32 s33, {s(S_W)}, 7\ns_add_u32 {s(sP0)}, s33, {s(sODD)}\ns_lshr_b32 {s(sP0)}, {s(sP0)}, 1")
    A(f"s_lshl_b32 {s(sREG)}, {s(S_W)}, 15\ns_mov_b32 {s(sM0)}, {s(sREG)}")
    A(f"s_lshl_b32 {s(sXA)}, {s(sP0)}, 10\ns_add_u32 {s(sXA)}, {s(sXA)}, {XS}\ns_lshl_b32 s33, {s(sODD)}, 12\ns_sub_u32 {s(sXB)}, {s(sXA)}, s33")

    def dma(k):
        aa, b = k // 4, k % 4
        pre = f"s_add_u32 s33, {s(sM0)}, {aa * 4096}\ns_mov_b32 m0, s33\n" if b == 0 else ""
        if b in (0, 3):
            pre += f"s_add_u32 s34, {s(sXB if b == 3 else sXA)}, {aa * 14336}\n"
        return pre + f"buffer_load_dwordx4 v3, {s(WS, 4)}, s34 offen offset:{b * 1024} sc1 lds"

    A(f"s_mul_i32 s34, {s(S_ID)}, {FRAG_H}\ns_mul_i32 s33, {s(S_W)}, {7 * 14 * KB}\ns_add_u32 s34, s34, s33")
    if AF:
        A(f"s_add_u32 s34, s34, {AF}")
    A(f"s_mul_i32 s35, {s(sODD)}, {14 * KB}\ns_add_u32 s35, s35, s34\ns_add_u32 s36, s34, {6 * 14 * KB}\ns_cmp_eq_u32 {s(sODD)}, 0\ns_cselect_b32 s36, s36, s34")
    A(f"s_mul_i32 s33, {s(S_ID)}, 7\nv_min_u32 v4, 6, v0\nv_add_u32 v4, s33, v4")

    def piece(kk):
        frag_loads(A, 35, [((i * 7 + kk) * 8 + 4 * u, i * 14 * KB + (2 * kk + u) * KB) for i in range(6) for u in range(2)])
        frag_loads(A, 36, [((42 + kk) * 8 + 4 * u, (2 * kk + u) * KB) for u in range(2)])

    load_pieces(A, [(14, lambda kk=kk: piece(kk)) for kk in range(7)], 4)
    wait_prep(A, True)
    for k in range(8):
        A(dma(k))
    A(f"s_lshl_b32 {s(sQ)}, {s(S_W)}, 11\ns_add_u32 {s(sMB)}, {s(sQ)}, {MEMB}\ns_add_u32 {s(sQ)}, {s(sQ)}, {CM}")
    idx_reg(A, IDX)
    A(f"v_and_b32 v4, 7, v1\nv_lshlrev_b32 v4, 4, v4\nv_lshl_add_u32 v4, v2, 7, v4\ns_lshl_b32 s33, {s(sP0)}, 9\nv_add_u32 {v(MK)}, s33, v4")
    A(f"s_lshl_b32 s34, {s(sODD)}, 11\ns_sub_u32 s34, 1536, s34\nv_add_u32 {v(MK3)}, s34, {v(MK)}")
    A(f"v_lshrrev_b32 v4, 1, v2\nv_lshlrev_b32 v4, 3, v4\nv_xor_b32 v4, v4, v1\nv_lshlrev_b32 v4, 3, v4\nv_lshl_add_u32 v4, v2, 7, v4")
    A(f"v_add_u32 {v(TW0)}, {s(sREG)}, v4\nv_xor_b32 {v(TW1)}, 32, {v(TW0)}\nv_add_u32 {v(TW1)}, 512, {v(TW1)}")
    A(f"s_cmp_eq_u32 {s(sODD)}, 0\ns_cselect_b64 vcc, -1, 0\nv_cndmask_b32 {v(TWS)}, {v(TW1)}, {v(TW0)}, vcc")
    A("v_lshrrev_b32 v4, 2, v1\nv_and_b32 v5, 3, v1")
    A("v_lshrrev_b32 v6, 1, v2\nv_lshrrev_b32 v7, 1, v5\nv_xor_b32 v6, v6, v7\nv_lshlrev_b32 v6, 3, v6")
    A("v_and_b32 v7, 1, v2\nv_lshl_add_u32 v6, v7, 1, v6\nv_and_b32 v7, 1, v4\nv_add_u32 v6, v6, v7")
    A("v_lshrrev_b32 v7, 1, v4\nv_lshl_add_u32 v6, v7, 2, v6\nv_lshlrev_b32 v6, 3, v6\nv_lshl_add_u32 v6, v7, 9, v6\nv_lshl_add_u32 v6, v5, 7, v6")
    A(f"v_add_u32 {v(TR0)}, {s(sREG)}, v6\nv_xor_b32 {v(TR1)}, 32, {v(TR0)}")
    A(f"v_add_u32 v12, {s(sREG)}, v3")
    for r in range(4):
        A(f"v_mov_b32 {v(8 + r)}, 0")
    A(f"ds_write_b128 v12, v[8:11] offset:{TB + 3072}")
    A(f"s_lshl_b32 s33, {s(sODD)}, 2\nv_add_u32 v4, s33, v2")
    A("v_bfe_u32 v5, v1, 2, 1\nv_lshlrev_b32 v5, 5, v5\nv_and_b32 v6, 1, v1\nv_lshl_add_u32 v5, v6, 4, v5\nv_bfe_u32 v6, v1, 1, 1\nv_lshl_add_u32 v5, v6, 3, v5\nv_lshrrev_b32 v6, 3, v1\nv_lshl_add_u32 v5, v6, 2, v5")
    A(f"v_lshl_add_u32 {v(PX)}, v4, 6, v5")
    A(f"v_lshlrev_b32 v4, 4, v4\nv_lshl_add_u32 v4, v1, 1, v4\nv_add_u32 v4, 512, v4\nv_and_b32 v5, 9, v1\nv_cmp_eq_u32 vcc, 0, v5\nv_mov_b32 v5, {OOB}\nv_cndmask_b32 {v(PM)}, v5, v4, vcc")
    A(f"v_lshrrev_b32 v4, 1, v2\nv_lshlrev_b32 v4, 5, v4\nv_add_u32 v4, v4, v1\ns_lshl_b32 s33, {s(sODD)}, 4\nv_add_u32 v4, s33, v4\nv_lshlrev_b32 v4, 3, v4")
    A(f"v_and_b32 v5, 1, v2\nv_lshl_add_u32 v4, v5, 2, v4\nv_add_u32 v13, {SB}, v4\nv_lshlrev_b32 v14, 3, v0\nv_add_u32 v14, {s(sREG)}, v14")
    A(f"v_min_u32 {v(FA)}, {55 if opts.get('pw', 1) else 13}, v0\nv_lshlrev_b32 {v(FA)}, 2, {v(FA)}\ns_lshl_b32 s33, {s(S_ID)}, 8\nv_add_u32 {v(FA)}, s33, {v(FA)}\ns_mov_b32 {s(sEF)}, {EF}\ns_mov_b32 s53, 0")
    chunk_pos(A, 12, 1, 2, 4)
    A(f"v_add_u32 v12, {s(sREG)}, v12")
    A(f"v_mov_b32 {v(XR)}, v12\nv_mov_b32 {v(SW)}, v14\nv_mov_b32 {v(SR)}, v13\nv_add_u32 {v(SR2)}, {2 * REG}, v13")
    A(f"s_mov_b32 {s(sS)}, 0\ns_mov_b32 {s(sCM)}, {CM}\ns_mul_i32 {s(sCP)}, {s(S_ID)}, 640\ns_add_u32 {s(sCP)}, {s(sCP)}, {CP}")
    A(f"v_lshlrev_b32 {v(PFA)}, 3, v3")
    ahead = opts.get("yah", 1)
    A(f"s_mul_i32 {s(sYP)}, {s(S_ID)}, {28 * KB}\ns_mul_i32 s33, {s(S_W)}, {7 * KB}\ns_add_u32 {s(sYP)}, {s(sYP)}, s33\ns_add_u32 {s(sYP)}, {s(sYP)}, {YF + ahead * 16 * 28 * KB}")
    slow = A.new("a_slow")
    chain_mode(A, opts, vm, slow)
    ka = lambda n, r=ACC: "".join(f"{MF} {v(r, 4)}, {v(TSP, 4)}, {v(TSP, 4)}, {v(r, 4)}\n" for _ in range(n))

    def loop(sc):
        top, nxt, done, lp, ok, idle = (A.new(x) for x in ("a_top", "a_next", "a_done", "a_poll", "a_ok", "a_idle"))
        redo = A.new("a_redo")
        G0, G1 = KEY, KEY + 8
        A(f"{top}:")
        notice_wait(A, opts, G1, FA, sEF, 0, zero(ACC, 28) + [f"s_mov_b32 m0, {s(sMB)}"], sS)
        if opts.get("nst"):
            stamp(A, opts, 1)
        fetch = f"buffer_load_dwordx4 v3, {s(WS, 4)}, {s(sQ)} offen sc1 lds\nbuffer_load_dwordx4 v3, {s(WS, 4)}, {s(sQ)} offen offset:1024 sc1 lds"
        A(fetch)
        A(f"{lp}:")
        if opts.get("stamps"):
            A("s_add_u32 s53, s53, 1")
        A("s_waitcnt vmcnt(0)")
        stamp(A, opts, 0)
        A("s_barrier")
        if not opts.get("nst"):
            stamp(A, opts, 1)
        lg = Cnt(A, "lgkmcnt", 15)
        for kk in range(7):
            lg.op(f"ds_read_b128 {v(MEM + 4 * kk, 4)}, v3 offset:{MEMB + kk * 1024}", f"m{kk}")

        def tile(i):
            out = []
            for kk in range(7):
                txt = f"{SMF} {v(ACC + 4 * i, 4)}, {v(MEM + 4 * kk, 4)}, {wreg((i * 7 + kk) * 8, 8)}, {v(IDX)}" if not opts.get("noam") else "s_nop 2"
                out.append((lambda txt=txt, kk=kk: (lg.wait(f"m{kk}"), A(txt))) if i == 0 else txt)
            return out

        def score(b):
            out = []
            for tau in range(3):
                c = "0" if b == 0 else v(SC + 4 * tau, 4)
                txt = f"{MF} {v(SC + 4 * tau, 4)}, {v(TSP + 4 * (b % 2), 4)}, {v(KEY + 12 * (b % 2) + 4 * tau, 4)}, {c}"
                out.append((lambda txt=txt: (lg.wait(f"tr{b}", f"k{b}"), A(txt))) if tau == 0 else txt)
            return out

        def keys(b):
            K = KEY + 12 * (b % 2)
            out = [lambda aa=aa: lg.op(f"ds_read_b128 {v(K + 4 * aa, 4)}, {v(XR)} offset:{XK + aa * 4096 + b * 1024}", f"k{b}") for aa in range(2)]
            reg, o = (MK3, 0) if b == 3 else (MK, b * 512)
            out.append(lambda: lg.op(f"ds_read_b128 {v(K + 8, 4)}, {v(reg)} offset:{MEMB + o}", f"k{b}"))
            return out

        def epi(i):
            D = ACC + 4 * i
            addr, off = (TWS, 3072) if i == 6 else ((TW0, TW1)[i % 2], (i // 2) * 1024)
            return [f"v_cvt_pk_bf16_f32 {v(PK)}, {v(D)}, {v(D + 1)}", f"v_cvt_pk_bf16_f32 {v(PK + 1)}, {v(D + 2)}, {v(D + 3)}",
                    lambda: lg.op(f"ds_write_b64 {v(addr)}, {v(PK, 2)} offset:{TB + off}", f"t{i}")]

        def trs(b):
            return [lambda x=x: lg.op(f"ds_read_b64_tr_b16 {v(TSP + 4 * (b % 2) + 2 * x, 2)}, {v((TR0, TR1)[x])} offset:{TB + b * 1024}", f"tr{b}") for x in range(2)]

        stream = tile(0) + tile(1) + tile(2) + tile(3) + score(0) + tile(4) + tile(5) + score(1) + tile(6) + score(2)
        fill = {}

        def put(g, items):
            for k, it in enumerate(items):
                assert g + k not in fill, g + k
                fill[g + k] = [it]

        for k in range(opts.get("apf", 1)):
            pre = f"s_add_u32 s33, {s(sREG)}, 31744\ns_mov_b32 m0, s33\ns_nop 0\n" if k == 0 else ""
            (put if opts.get("pfg", 1) >= 0 else lambda g, x: A(x[0]))(opts.get("pfg", 1) + 3 * k, [pre + f"buffer_load_dword {v(PFA)}, {s(WS, 4)}, {s(sYP)} offen offset:{64 * k} sc1 lds"])
        put(7, keys(0))
        put(11, epi(0))
        put(15, keys(1))
        put(18, epi(1))
        put(21, trs(0))
        put(25, epi(2))
        k2 = keys(2)
        put(31, k2[:1])
        put(32, epi(3))
        put(35, trs(1))
        put(38, k2[1:])
        put(41, epi(4))
        put(47, epi(5))
        put(50, trs(2))
        put(52, keys(3))
        br = "s_nop 0" if opts.get("solo") else f"s_cbranch_vccnz {redo}"
        mx = lambda x, y, z: f"v_max3_u32 {v(CK)}, {v(x)}, {v(y)}, {v(z)}"
        cmpi = f"v_cmp_eq_u32 vcc, -1, {v(CK)}"
        for g, x in zip((2, 4, 6, 10), (mx(MEM, MEM + 4, MEM + 8), mx(CK, MEM + 12, MEM + 16), mx(CK, MEM + 20, MEM + 24), cmpi)):
            put(g, [x])
        fill[12].append(br)
        rest = [MEM + r for r in range(28) if r % 4]
        late = [mx(*rest[:3])] + [mx(CK, rest[r], rest[r + 1]) for r in range(3, 21, 2)] + [cmpi]
        for g, x in zip((14, 23, 24, 28, 29, 30, 37, 40, 44, 45, 46), late):
            put(g, [x])
        fill[49].append(br)
        emit_stream(A, stream, fill)
        stamp(A, opts, 2)
        for x in epi(6) + trs(3):
            x() if callable(x) else A(x)
        if opts.get("ka_tr"):
            A(ka(opts["ka_tr"]))
        for x in score(3):
            x() if callable(x) else A(x)
            A("s_nop 1")
        X = MEM
        A(f"s_cmp_ge_u32 {s(S_W)}, 2")
        for tau in range(3):
            D = SC + 4 * tau
            A(f"v_permlane32_swap_b32 {v(D)}, {v(D + 2)}\nv_permlane32_swap_b32 {v(D + 1)}, {v(D + 3)}")
            if opts.get("pk", 1):
                A(f"v_pk_add_f32 {v(X + 2 * tau, 2)}, {v(D, 2)}, {v(D + 2, 2)}")
            else:
                A(f"v_add_f32 {v(X + 2 * tau)}, {v(D)}, {v(D + 2)}\nv_add_f32 {v(X + 2 * tau + 1)}, {v(D + 1)}, {v(D + 3)}")
            A(f"ds_write_b64 {v(SW)}, {v(X + 2 * tau, 2)} offset:{SB + 512 * tau}")
        if opts.get("ka_x"):
            A(ka(opts["ka_x"]))
        A("s_waitcnt lgkmcnt(0)\ns_barrier")
        stamp(A, opts, 3)
        A(f"s_cbranch_scc1 {idle}")
        R = MEM + 8
        for tau in range(3):
            A(f"ds_read2st64_b32 {v(R + 4 + 4 * tau, 2)}, {v(SR)} offset0:{2 * tau} offset1:{2 * tau + 128}")
            A(f"ds_read2st64_b32 {v(R + 6 + 4 * tau, 2)}, {v(SR2)} offset0:{2 * tau} offset1:{2 * tau + 128}")
        for tau in range(3):
            A(f"s_waitcnt lgkmcnt({4 - 2 * tau})")
            A(f"v_pk_add_f32 {v(R + 4 + 4 * tau, 2)}, {v(R + 4 + 4 * tau, 2)}, {v(R + 6 + 4 * tau, 2)}")
            A(f"v_add_f32 {v(R + tau)}, {v(R + 4 + 4 * tau)}, {v(R + 5 + 4 * tau)}")
        mx, sm = T, T + 1
        A(f"v_max3_f32 {v(mx)}, {v(R)}, {v(R + 1)}, {v(R + 2)}")
        for rot in (8, 4, 2, 1):
            A(f"v_max_f32_dpp {v(mx)}, {v(mx)}, {v(mx)} row_ror:{rot} row_mask:0xf bank_mask:0xf")
        for tau in (2, 0, 1):
            A(f"v_sub_f32 {v(R + tau)}, {v(R + tau)}, {v(mx)}")
        for tau in (2, 0, 1):
            A(f"v_exp_f32 {v(R + tau)}, {v(R + tau)}")
        A(f"v_fma_f32 {v(sm)}, 0.5, {v(R + 2)}, {v(R)}")
        A(f"v_mov_b32_dpp {v(R + 3)}, {v(R + 2)} quad_perm:[1,0,3,2] row_mask:0xf bank_mask:0xf")
        A(f"v_add_f32 {v(sm)}, {v(sm)}, {v(R + 1)}")
        for rot in (8, 4, 2, 1):
            A(f"v_add_f32_dpp {v(sm)}, {v(sm)}, {v(sm)} row_ror:{rot} row_mask:0xf bank_mask:0xf")
        A(f"v_rcp_f32 {v(sm)}, {v(sm)}")
        for k, addr in ((0, PX), (2, PM)):
            A(f"v_mul_f32 {v(R + k)}, {v(R + k)}, {v(sm)}\nv_mul_f32 {v(R + k + 1)}, {v(R + k + 1)}, {v(sm)}")
            A(f"v_cvt_pk_bf16_f32 {v(R + k)}, {v(R + k)}, {v(R + k + 1)}\nv_min_u32 {v(R + k)}, -2, {v(R + k)}")
            A(f"buffer_store_dword {v(R + k)}, {v(addr)}, {s(WS, 4)}, {s(sCP)} offen{sc}")
        A(f"{nxt}:")
        stamp(A, opts, 4)
        collect_lds(A, opts, sREG, 22528, T)
        A(f"s_add_u32 {s(sS)}, {s(sS)}, 1\ns_add_u32 {s(sQ)}, {s(sQ)}, {0 if opts.get('solo') else 8192}\ns_add_u32 {s(sCP)}, {s(sCP)}, {0 if opts.get('solo') else 10240}")
        adv = 0 if opts.get("solo") else EF_STEP
        A(f"s_add_u32 {s(sEF)}, {s(sEF)}, {adv}\ns_add_u32 {s(sXA)}, {s(sXA)}, {28 * KB}\ns_add_u32 {s(sXB)}, {s(sXB)}, {28 * KB}\ns_add_u32 {s(sYP)}, {s(sYP)}, {16 * 28 * KB}")
        A("s_barrier")
        if not opts.get("nodma"):
            for k in range(8):
                A(dma(k))
        A(f"s_cmp_eq_u32 {s(sS)}, 63\ns_cbranch_scc0 {top}")
        A("s_waitcnt vmcnt(0)")
        A("s_mov_b32 s84, s53" if opts.get("stamps") else "")
        fetch_lds(A, opts, sREG, 22528, 10)
        flush_stamps(A, opts, 10)
        A("s_endpgm")
        A(f"{redo}:\ns_mov_b32 m0, {s(sMB)}\ns_waitcnt lgkmcnt(0)\ns_barrier")
        A(fetch)
        poll_guard(A)
        for x in zero(ACC, 28):
            A(x)
        A(f"s_branch {lp}")
        A(f"{idle}:")
        A(f"v_lshrrev_b32 {v(T + 1)}, 4, v3\nv_min_u32 {v(T + 1)}, 13, {v(T + 1)}\ns_lshl_b32 s33, {s(S_ID)}, 2\ns_add_u32 s33, s33, {EF_P}")
        A(f"v_lshl_add_u32 {v(T + 1)}, {v(T + 1)}, 7, s33\nv_mov_b32 {v(T)}, {s(S_NONCE)}")
        A(ka(opts.get("la", 6)))
        w3 = A.new("a_w3")
        A(f"s_cmp_eq_u32 {s(S_W)}, 2\ns_cbranch_scc0 {w3}")
        notice(A, T, T + 1, sEF, 0, sc)
        A(f"s_branch {nxt}\n{w3}:")
        A(ka(opts.get("ka_sm", 0)))
        A(f"s_branch {nxt}")

    loop("")
    A(f"{slow}:")
    loop(" sc1")


def gen_chain_b(A, opts):
    MEM, ZACC, ZOP, Y, OACC, IDX = 4, 32, 60, 76, 108, 132
    GA0, GA1, PXA, PMA, RW, RR0, RR1, MO, WR, FA, FV = range(133, 144)
    FM, NZ, NA, FP = 128, 129, 130, 131
    T, WST, V0 = 116, 144, 176
    RED, WL = 8192, 12288
    sS, sCM, sCP, sY, sEF, sC, sFY = 44, 45, 46, 47, 48, 50, 51
    vm = Cnt(A, "vmcnt", 63)
    A(f"s_sub_u32 {s(sC)}, {s(S_ID)}, 16")
    A(f"s_mul_i32 s34, {s(S_W)}, {4 * FRAG_H}\ns_mul_i32 s33, {s(sC)}, {28 * KB}\ns_add_u32 s34, s34, s33\ns_add_u32 s34, s34, {BF}")
    A(f"s_mul_i32 s36, {s(S_W)}, {28 * KB}\ns_add_u32 s36, s36, {WL}\nv_add_u32 {v(WR)}, s36, v3\ns_add_u32 s37, s34, {3 * FRAG_H}")
    A(f"s_mul_i32 s33, {s(S_W)}, 28\ns_lshr_b32 s35, {s(sC)}, 1\ns_add_u32 s33, s33, s35\ns_add_u32 s33, s33, 112\nv_and_b32 v4, 3, v0\nv_mul_u32_u24 v4, 7, v4\nv_add_u32 v4, s33, v4")

    def piece(hh):
        if hh < 3:
            frag_loads(A, 34, [((hh * 28 + k) * 4, hh * FRAG_H + k * KB) for k in range(28)], v0=V0)
            return
        for q in range(7):
            A("s_mov_b32 m0, s36\ns_add_u32 s36, s36, 4096")
            for k in range(4):
                A(f"buffer_load_dwordx4 v3, {s(WS, 4)}, s37 offen offset:{k * 1024} sc1 lds")
            A("s_add_u32 s37, s37, 4096")

    load_pieces(A, [(28, lambda hh=hh: piece(hh)) for hh in range(4)], 4)
    wait_prep(A, True)
    gather_addr(A, GA0, GA1)
    idx_reg(A, IDX)
    A("v_and_b32 v4, 7, v1\nv_lshrrev_b32 v5, 3, v1\nv_lshrrev_b32 v6, 1, v2\nv_and_b32 v7, 1, v2")
    A(f"s_mul_i32 s33, {s(S_W)}, 2560")
    A(f"v_mul_u32_u24 v8, 640, v6\nv_lshl_add_u32 v8, v4, 6, v8\nv_lshl_add_u32 v8, v7, 5, v8\nv_lshl_add_u32 v8, v5, 4, v8\nv_add_u32 {v(PXA)}, s33, v8")
    A(f"v_lshl_add_u32 v8, v6, 1, v5\nv_mul_u32_u24 v8, 640, v8\nv_lshl_add_u32 v8, v4, 4, v8\ns_add_u32 s33, s33, 512\nv_add_u32 {v(PMA)}, s33, v8")
    A(f"v_lshl_add_u32 v8, v6, 1, v7\nv_xor_b32 v8, v0, v8\nv_lshlrev_b32 v8, 4, v8\ns_lshl_b32 s33, {s(S_W)}, 10\ns_add_u32 s33, s33, {RED}\nv_add_u32 {v(RW)}, s33, v8")
    A("v_lshrrev_b32 v4, 5, v0\nv_bfe_u32 v5, v0, 2, 3\nv_and_b32 v6, 3, v0")
    A("v_and_b32 v7, 1, v6\nv_lshrrev_b32 v8, 2, v5")
    A(f"v_lshlrev_b32 v9, 5, v7\nv_lshl_add_u32 v9, v8, 4, v9\ns_and_b32 s33, {s(S_W)}, 1\ns_lshl_b32 s33, s33, 3\nv_add_u32 v9, s33, v9")
    A("v_lshrrev_b32 v10, 1, v6\nv_lshl_add_u32 v9, v10, 2, v9\nv_lshl_add_u32 v9, v4, 1, v9")
    A("v_lshl_add_u32 v10, v7, 1, v8\nv_xor_b32 v9, v9, v10\nv_lshlrev_b32 v9, 4, v9\nv_and_b32 v10, 3, v5\nv_lshl_add_u32 v9, v10, 2, v9")
    A(f"v_add_u32 {v(RR0)}, {RED}, v9\nv_xor_b32 {v(RR1)}, 16, {v(RR0)}")
    A(f"s_lshl_b32 s33, {s(sC)}, 9\ns_and_b32 s35, {s(S_W)}, 1\ns_lshl_b32 s35, s35, 8\ns_add_u32 s33, s33, s35\nv_lshl_add_u32 {v(MO)}, v0, 2, s33")
    A(f"v_lshlrev_b32 {v(FA)}, 7, v1\nv_mov_b32 {v(FV)}, 0")
    A(f"s_mov_b32 {s(sS)}, 0\ns_mov_b32 {s(sCM)}, {CM}\ns_mov_b32 {s(sCP)}, {CP}")
    A(f"s_mul_i32 s33, {s(S_W)}, {4 * 28 * KB}\ns_lshl_b32 s35, {s(sC)}, 11\ns_add_u32 {s(sY)}, s33, s35\ns_add_u32 {s(sY)}, {s(sY)}, {YF}")
    A(f"s_mov_b32 {s(sFY)}, {FY}\ns_mov_b32 {s(sEF)}, {EF}\ns_mov_b32 s53, 0\ns_mov_b32 s55, 0")
    pw = opts.get("pw", 1)
    A(f"v_min_u32 {v(FM)}, {55 if pw else 13}, v0\nv_lshlrev_b32 {v(FM)}, 2, {v(FM)}\ns_lshl_b32 s33, {s(S_ID)}, 8\nv_add_u32 {v(FM)}, s33, {v(FM)}")
    A(f"s_lshl_b32 s33, {s(sC)}, 7\ns_add_u32 s33, s33, {EF_P}\nv_lshl_add_u32 {v(FP)}, v1, 2, s33")
    if pw:
        A(f"s_lshl_b32 s33, {s(sC)}, 2\ns_add_u32 s33, s33, {s(S_W)}\ns_lshl_b32 s33, s33, 2")
    else:
        A(f"s_lshl_b32 s33, {s(sC)}, 2")
    A(f"s_add_u32 s33, s33, {EF_STEP}\nv_min_u32 {v(NA)}, {29 if opts.get('ndb') else 15}, v0\nv_lshl_add_u32 {v(NA)}, {v(NA)}, 8, s33\nv_mov_b32 {v(NZ)}, {s(S_NONCE)}")
    slow = A.new("b_slow")
    chain_mode(A, opts, vm, slow)
    ka = lambda n: "".join(f"{MF} {v(ZACC + 8, 4)}, {v(ZOP, 4)}, {v(ZOP, 4)}, {v(ZACC + 8, 4)}\n" for _ in range(n))

    def loop(sc):
        top, nxt, last, noy, yok, ypoll, noflag, gm, gp, idle, noz = (A.new("b_" + x) for x in ("top", "next", "last", "noy", "yok", "ypoll", "nofl", "gm", "gp", "idle", "noz"))
        A(f"{top}:")
        if opts.get("ndb", 1):
            notice_wait(A, dict(opts, nd=opts.get('ndb', 1)), WST + 8, FM, sEF, 0, zero(ZACC, 28) + zero(OACC, 8), sS)
        else:
            for x in zero(ZACC, 28) + zero(OACC, 8):
                A(x)
        fetch_mem(A, dict(opts, stamps=0) if opts.get('nst') else opts, WST, GA0, GA1, sCM, T, 0)
        lg = Cnt(A, "lgkmcnt", 15)
        for kk in range(7):
            lg.op(f"ds_read_b128 {v(MEM + 4 * kk, 4)}, v3 offset:{kk * 1024}", f"m{kk}")
        A(f"v_cmp_ne_u32 vcc, {s(S_NONCE)}, {v(FV)}\ns_cbranch_vccz {yok}")
        A(f"{ypoll}:")
        A(f"buffer_load_dword {v(FV)}, {v(FA)}, {s(WS, 4)}, {s(sFY)} offen sc1")
        poll_guard(A)
        A(f"s_waitcnt vmcnt(0)\nv_cmp_ne_u32 vcc, {s(S_NONCE)}, {v(FV)}\ns_cbranch_vccnz {ypoll}")
        A(f"{yok}:")
        bulk = []
        for hh in range(4):
            for vv in range(0 if opts.get("noy") else 2):
                pre = f"s_add_u32 s33, {s(sY)}, {hh * 28 * KB}\n" if vv == 0 else ""
                bulk.append(pre + f"buffer_load_dwordx4 {v(Y + 16 * (hh // 2) + 8 * vv + 4 * (hh % 2), 4)}, v3, {s(WS, 4)}, s33 offen offset:{vv * 1024} {'nt' if opts.get('ynt') == 1 else 'sc1 nt' if opts.get('ynt') else 'sc1'}")
        bulk.append(f"s_add_u32 {s(sFY)}, {s(sFY)}, {FL_STEP}\nbuffer_load_dword {v(FV)}, {v(FA)}, {s(WS, 4)}, {s(sFY)} offen sc1")
        order = []
        regs = [(t, kk) for t in range(6) for kk in range(7)]
        for n in range(14):
            order += regs[3 * n:3 * n + 3] + [(6 + n // 7, n % 7)]
        accof = lambda t: ZACC + 4 * (t if t < 7 else 0)
        stream, pos, seen = [], {}, set()
        for t, kk in order:
            pos[(t, kk)] = len(stream)
            n = (t - 6) * 7 + kk
            w = wreg((t * 7 + kk) * 8, 8, 256, V0) if t < 6 else v(WST + 8 * (n % 4), 8)
            txt = f"{SMF} {v(accof(t), 4)}, {v(MEM + 4 * kk, 4)}, {w}, {v(IDX)}" if not opts.get("nozm") else "s_nop 2"
            tags = ([f"m{kk}"] if kk not in seen else []) + ([f"w{n}"] if t >= 6 else [])
            seen.add(kk)
            stream.append((lambda txt=txt, tags=tags: (lg.wait(*tags), A(txt))) if tags else txt)

        def wread(n):
            return [lambda u=u: lg.op(f"ds_read_b128 {v(WST + 8 * (n % 4) + 4 * u, 4)}, {v(WR)} offset:{(n // 7) * 14 * KB + (2 * (n % 7) + u) * KB}", f"w{n}") for u in range(2)]

        def epi(t):
            hh, vv = t // 2, t % 2
            D = accof(t)
            out = [f"v_cvt_pk_bf16_f32 {v(ZOP + 8 * vv + 4 * (hh // 2) + 2 * b + hh % 2)}, {v(D + 2 * b)}, {v(D + 2 * b + 1)}" for b in range(2)]
            return out + (zero(D, 4) if t == 0 else [])

        y = bulk + ["s_nop 0"] * (9 - len(bulk))
        ye = opts.get("yearly", 0)
        early, y = y[:ye], y[ye:]
        if ye:
            first = A.new("b_first")
            A(f"s_cmp_eq_u32 {s(sS)}, 0\ns_cbranch_scc0 {first}")
            for x in early:
                A(x)
            A(f"{first}:")
        for x in wread(0) + wread(1):
            x()
        npre = opts.get("ypre", 2)
        for x in y[:npre]:
            A(x)
        fill = {}
        for n in range(2, 14):
            spread(fill, 4 * (n - 2), wread(n), per=1)
        g = 2
        for x in y[npre:]:
            while g in fill:
                g += 1
            fill[g] = [x]
            g += opts.get("ygap", 1)
        late = []
        for t in sorted(range(8), key=lambda t: pos[(t, 6)]):
            g = pos[(t, 6)] + 4
            for x in epi(t):
                while g in fill:
                    g += 1
                if g < len(stream):
                    fill[g] = [x]
                    assert t != 0 or g < pos[(7, 0)] - 1
                else:
                    late.append(x)
        emit_stream(A, stream, fill)
        for x in late:
            A(x)
        if not opts.get("nst"):
            stamp(A, opts, 1)

        def p_loads(P):
            A(f"buffer_load_dwordx4 {v(P, 4)}, {v(PXA)}, {s(WS, 4)}, {s(sCP)} offen sc1")
            A(f"buffer_load_dwordx4 {v(P + 4, 4)}, {v(PXA)}, {s(WS, 4)}, {s(sCP)} offen offset:1280 sc1")
            A(f"buffer_load_dwordx4 {v(P + 8, 4)}, {v(PMA)}, {s(WS, 4)}, {s(sCP)} offen sc1")

        cur = MEM
        ok = A.new("b_ok")
        notice_wait(A, opts, MEM + 12, FP, sEF, 0, [])
        if opts.get("nst"):
            stamp(A, opts, 1)
        A(f"{gp}:")
        p_loads(cur)
        poll_guard(A)
        A(ka(opts.get("ka_p", 0)))
        if opts.get("stamps"):
            A("s_add_u32 s55, s55, 1")
        mx3 = lambda d, x, y, z: f"v_max3_u32 {v(d)}, {v(x)}, {v(y)}, {v(z)}"
        chk = ["s_nop 0", mx3(T, cur, cur + 1, cur + 2), mx3(T, T, cur + 3, cur + 4), mx3(T + 1, cur + 5, cur + 6, cur + 7), mx3(T + 2, cur + 8, cur + 9, cur + 10),
               mx3(T, T, T + 1, cur + 11) + f"\nv_max_u32 {v(T)}, {v(T)}, {v(T + 2)}\nv_cmp_eq_u32 vcc, -1, {v(T)}"]
        k = 0
        for kap in range(3):
            A(f"s_waitcnt vmcnt({2 - kap})")
            if kap == 0:
                stamp(A, opts, 2)
            for vv in range(2):
                b = v(Y + 16 * kap + 8 * vv, 8) if kap < 2 else v(ZOP + 8 * vv, 8)
                A(f"{SMF} {v(OACC + 4 * vv, 4)}, {v(cur + 4 * kap, 4)}, {b}, {v(IDX)}")
                if opts.get("lb") == 10 + k:
                    notice(A, NZ, NA, sEF, 0, sc)
                A(chk[k])
                k += 1
        A(f"s_cbranch_vccz {ok}")
        if opts.get("solo"):
            A(f"s_branch {ok}")
        for x in zero(OACC, 8):
            A(x)
        A(f"s_branch {gp}")
        A(f"{ok}:")
        lb = opts.get("lb", 2) if pw else -1
        if lb == 0:
            notice(A, NZ, NA, sEF, 0, sc)
        for q in range(4):
            A(f"v_permlane32_swap_b32 {v(OACC + q)}, {v(OACC + 4 + q)}")
        if lb == 1:
            notice(A, NZ, NA, sEF, 0, sc)
        for q in (0, 2):
            A(f"v_pk_add_f32 {v(OACC + q, 2)}, {v(OACC + q, 2)}, {v(OACC + 4 + q, 2)}")
        A(f"ds_write_b128 {v(RW)}, {v(OACC, 4)}")
        if 2 <= lb < 10:
            A(ka(lb - 2))
            notice(A, NZ, NA, sEF, 0, sc)
            if opts.get("nst"):
                stamp(A, opts, 0)
        A(f"s_add_u32 s33, {s(sCM)}, 8192\ns_cmp_ge_u32 {s(S_W)}, 2\ns_waitcnt lgkmcnt(0)\ns_barrier")
        stamp(A, opts, 3)
        A(f"s_cbranch_scc1 {idle}")
        R = ZACC
        if not pw:
            A(f"s_cmp_eq_u32 {s(S_W)}, 0\ns_cbranch_scc0 {noflag}")
            notice(A, NZ, NA, sEF, 0, sc)
            A(f"{noflag}:")
        A(f"ds_read2st64_b32 {v(R, 2)}, {v(RR0)} offset0:0 offset1:4\nds_read2st64_b32 {v(R + 4, 2)}, {v(RR0)} offset0:8 offset1:12")
        A(f"ds_read2st64_b32 {v(R + 2, 2)}, {v(RR1)} offset0:0 offset1:4\nds_read2st64_b32 {v(R + 6, 2)}, {v(RR1)} offset0:8 offset1:12")
        A("s_waitcnt lgkmcnt(2)")
        A(f"v_pk_add_f32 {v(R, 2)}, {v(R, 2)}, {v(R + 4, 2)}\nv_add_f32 {v(R)}, {v(R)}, {v(R + 1)}")
        A("s_waitcnt lgkmcnt(0)")
        A(f"v_pk_add_f32 {v(R + 2, 2)}, {v(R + 2, 2)}, {v(R + 6, 2)}\nv_add_f32 {v(R + 2)}, {v(R + 2)}, {v(R + 3)}")
        A(f"v_cvt_pk_bf16_f32 {v(R)}, {v(R)}, {v(R + 2)}\nv_min_u32 {v(R)}, -2, {v(R)}")
        A(f"buffer_store_dword {v(R)}, {v(MO)}, {s(WS, 4)}, s33 offen{sc}")
        A(f"{nxt}:")
        stamp(A, opts, 4)
        collect(A, opts, 120)
        A(f"s_add_u32 {s(sS)}, {s(sS)}, 1\ns_add_u32 {s(sCM)}, {s(sCM)}, {0 if opts.get('solo') else 8192}\ns_add_u32 {s(sCP)}, {s(sCP)}, {0 if opts.get('solo') else 10240}")
        A(f"s_add_u32 {s(sY)}, {s(sY)}, {16 * 28 * KB}\ns_add_u32 {s(sEF)}, {s(sEF)}, {0 if opts.get('solo') else EF_STEP}")
        A("s_barrier")
        if ye:
            yw = A.new("b_yw")
            A(f"v_cmp_ne_u32 vcc, {s(S_NONCE)}, {v(FV)}\ns_cbranch_vccz {yw}_ok\n{yw}:")
            A(f"buffer_load_dword {v(FV)}, {v(FA)}, {s(WS, 4)}, {s(sFY)} offen sc1")
            poll_guard(A)
            A(f"s_waitcnt vmcnt(0)\nv_cmp_ne_u32 vcc, {s(S_NONCE)}, {v(FV)}\ns_cbranch_vccnz {yw}\n{yw}_ok:")
            for x in early:
                A(x)
        A(f"s_cmp_eq_u32 {s(sS)}, 63\ns_cbranch_scc0 {top}")
        A("s_waitcnt vmcnt(0)")
        A("s_mov_b32 s84, s53\ns_mov_b32 s85, s55" if opts.get("stamps") else "")
        dbg_time(A, opts, 6, 16)
        flush_stamps(A, opts, 120)
        A("s_endpgm")
        A(f"{idle}:")
        A(ka(opts.get("ka_f", 0)))
        A(f"s_branch {nxt}")

    loop("")
    A(f"{slow}:")
    loop(" sc1")


def gen_chain_f(A, opts):
    G, GA0, GA1, T, WA = 4, 12, 13, 14, 20
    sS, sCM, sXM = 44, 45, 46
    wait_prep(A, True)
    gather_addr(A, GA0, GA1)
    A(f"s_lshl_b32 s33, {s(S_W)}, 10\nv_add_u32 {v(WA)}, s33, v3")

    def touch(base, stride, nbytes, ahead, last):
        A(f"s_add_u32 s33, {s(sS)}, {ahead}\ns_min_u32 s33, s33, {last}\ns_mul_i32 s33, s33, {stride}\ns_add_u32 s33, s33, {base}")
        for k in range(0, nbytes, 4096):
            A(f"buffer_load_dwordx4 v[16:19], {v(WA)}, {s(WS, 4)}, s33 offen sc1\ns_add_u32 s33, s33, 4096")

    def touch_all():
        if not opts.get("nopf"):
            touch(CP, 10240, 12288, 1, 62)
            touch(CM, 8192, 8192, 2, 63)
            touch(EF, EF_STEP, 12288, 2, 62)
            touch(XS, 28 * KB, 28 * KB, 2, 63)

    for first in (-1, 0):
        A(f"s_mov_b32 {s(sS)}, {first}")
        touch_all()
    A(f"s_mov_b32 {s(sS)}, 1\ns_mov_b32 {s(sCM)}, {CM + 8192}\ns_mov_b32 {s(sXM)}, {XM + 8192}")
    lp = A.new("f_poll")
    A(f"{lp}:")
    mem_loads(A, G, GA0, GA1, sCM)
    poll_guard(A)
    A("s_waitcnt vmcnt(0)")
    check8(A, G, T)
    A(f"s_cbranch_vccnz {lp}")
    A(f"buffer_store_dwordx4 {v(G, 4)}, {v(GA0)}, {s(WS, 4)}, {s(sXM)} offen sc1")
    A(f"buffer_store_dwordx4 {v(G + 4, 4)}, {v(GA1)}, {s(WS, 4)}, {s(sXM)} offen sc1")
    touch_all()
    A(f"s_add_u32 {s(sS)}, {s(sS)}, 1\ns_add_u32 {s(sCM)}, {s(sCM)}, 8192\ns_add_u32 {s(sXM)}, {s(sXM)}, 8192")
    A(f"s_cmp_lt_u32 {s(sS)}, 64\ns_cbranch_scc1 {lp}\ns_endpgm")


def gen_chain_g(A, opts):
    sS, sEF, sY, sF = 44, 45, 46, 47
    n = opts.get("ypf", 0)
    if not n:
        A("s_endpgm")
        return
    A(f"s_mov_b32 {s(sS)}, 2\ns_mov_b32 {s(sEF)}, {EF + EF_STEP}\ns_mul_i32 s33, {s(S_W)}, {n * KB}\ns_add_u32 {s(sY)}, s33, {YF + 2 * 16 * 28 * KB}\ns_mov_b32 {s(sF)}, {FY + 2 * FL_STEP}")
    A("v_mov_b32 v4, 0\nv_lshlrev_b32 v6, 7, v1")
    top = A.new("g_top")
    A(f"{top}:")
    for reg, va in ((sEF, 4), (sF, 6)):
        lp = A.new("g_w")
        A(f"{lp}:\nbuffer_load_dword v5, {v(va)}, {s(WS, 4)}, {s(reg)} offen sc1")
        poll_guard(A)
        A(f"s_waitcnt vmcnt(0)\nv_cmp_ne_u32 vcc, {s(S_NONCE)}, v5\ns_cbranch_vccnz {lp}")
    A(f"s_mov_b32 s33, {s(sY)}")
    for k in range(n):
        A(f"buffer_load_dwordx4 v[8:11], v3, {s(WS, 4)}, s33 offen offset:{(k % 4) * KB} sc1")
        if k % 4 == 3:
            A("s_add_u32 s33, s33, 4096")
        if k >= 48:
            A("s_waitcnt vmcnt(48)")
    A(f"s_add_u32 {s(sS)}, {s(sS)}, 1\ns_add_u32 {s(sEF)}, {s(sEF)}, {EF_STEP}\ns_add_u32 {s(sY)}, {s(sY)}, {16 * 28 * KB}\ns_add_u32 {s(sF)}, {s(sF)}, {FL_STEP}")
    A(f"s_cmp_lt_u32 {s(sS)}, 63\ns_cbranch_scc1 {top}\ns_endpgm")
```

```python
from asmlib import v, a, s
from layout import *
from common import *
from gen_prep import *
from gen_chain import gen_chain_a, gen_chain_b, gen_chain_f, gen_chain_g
import gen_work

MAIN_LDS = 132096
LDS_ROLE = 131072


def gen_main(A, name, opts):
    ER = 252
    A(f".p2align 8\n.type {name},@function\n{name}:")
    A("s_cmp_ge_u32 s2, 256\ns_cbranch_scc1 L_exit")
    mark(A, opts, 0)
    amp_mark(A, opts, 0)
    b = [load_srd(A, WS, "ws", 40), load_srd(A, DB, "dbg", 42)]
    A(f"s_load_dwordx4 s[44:47], s[0:1], {KARG['wq']}\ns_load_dwordx4 s[48:51], s[0:1], {KARG['wv']}\ns_load_dwordx4 s[52:55], s[0:1], {KARG['x']}")
    A(f"v_lshrrev_b32 v1, 6, v0\nv_and_b32 v0, 63, v0\nv_readfirstlane_b32 {s(S_W)}, v1")
    if opts.get("fake"):
        A("s_mul_i32 s29, s2, 43\ns_lshr_b32 s29, s29, 8\ns_mul_i32 s29, s29, 6\ns_sub_u32 s7, s2, s29\ns_add_u32 s7, s7, 1\ns_and_b32 s7, s7, 15\ns_cmp_eq_u32 s2, 0\ns_cselect_b32 s7, 8, s7")
    else:
        A("s_getreg_b32 s7, hwreg(HW_REG_XCC_ID, 0, 4)")
    A(f"s_mov_b32 {s(S_POLL)}, 0\ns_mov_b32 {s(S_FOREIGN)}, 0")
    A("v_and_b32 v1, 15, v0\nv_lshrrev_b32 v2, 4, v0\nv_lshlrev_b32 v3, 4, v0")
    A(f"v_mov_b32 {v(ER)}, 1\nv_mov_b32 {v(ER + 1)}, 0\ns_and_b32 s17, s7, 4\ns_lshl_b32 s17, s17, 5\ns_andn2_b32 s19, s7, 4\ns_lshl_b32 s19, s19, 2\ns_add_u32 s17, s17, s19")
    A("s_waitcnt lgkmcnt(0)")
    for f in b:
        f()
    A(f"s_or_b32 s19, s2, {s(S_W)}\ns_cmp_eq_u32 s19, 0\ns_cbranch_scc0 L_no_nonce")
    A(f"s_memrealtime s[28:29]\ns_waitcnt lgkmcnt(0)\ns_lshl_b32 s28, s28, 4\ns_and_b32 s29, s7, 7\ns_or_b32 s28, s28, s29\ns_or_b32 s28, s28, 8\nv_mov_b32 v4, s28\nbuffer_store_dword v4, {v(ER + 1)}, {s(DB, 4)}, 0 offen offset:{D_NONCE} sc1")
    A("L_no_nonce:")
    dbg_time(A, opts, 0, 0, 2)

    def rank():
        sk = A.new("rank")
        A(f"s_cmp_eq_u32 {s(S_W)}, 0\ns_cbranch_scc0 {sk}\ns_mov_b64 exec, 1")
        A(f"buffer_atomic_add {v(ER)}, {v(ER + 1)}, {s(DB, 4)}, s17 offen sc0 sc1\ns_mov_b64 exec, -1\n{sk}:")

    gen_prep(A, opts, "L_prep_done", rank)
    A("L_prep_done:")
    A(f"v_mov_b32 v6, {LDS_ROLE}")
    A("L_nonce:")
    A(f"buffer_load_dword v7, {v(ER + 1)}, {s(DB, 4)}, 0 offen offset:{D_NONCE} sc1")
    poll_guard(A)
    A(f"s_waitcnt vmcnt(0)\nv_readfirstlane_b32 {s(S_NONCE)}, v7\ns_cmp_eq_u32 {s(S_NONCE)}, 0\ns_cbranch_scc1 L_nonce")
    mark(A, opts, 6)
    A(f"s_cmp_eq_u32 {s(S_W)}, 0\ns_cbranch_scc0 L_role_wait")
    A(f"v_readfirstlane_b32 s30, {v(ER)}")
    A(f"s_sub_u32 s31, s7, {s(S_NONCE)}\ns_and_b32 s31, s31, 7\ns_lshl_b32 {s(S_ID)}, s31, 5\ns_add_u32 {s(S_ID)}, {s(S_ID)}, s30")
    A("s_cmp_ge_u32 s7, 8\ns_cbranch_scc1 L_overflow\ns_cmp_ge_u32 s30, 32\ns_cbranch_scc0 L_role_known")
    A("L_overflow:")
    A(f"v_mov_b32 {v(ER)}, 1\ns_mov_b64 exec, 1")
    A(f"buffer_atomic_add {v(ER)}, {v(ER + 1)}, {s(DB, 4)}, 0 offen offset:{D_OVF} sc0 sc1")
    A(f"s_waitcnt vmcnt(0)\nv_readfirstlane_b32 s31, {v(ER)}\ns_mov_b64 exec, -1")
    A("v_and_b32 v4, 4, v1\nv_lshlrev_b32 v4, 5, v4\nv_and_b32 v5, 11, v1\nv_lshl_add_u32 v4, v5, 2, v4")
    A("L_ov_poll:")
    A(f"buffer_load_dword v5, v4, {s(DB, 4)}, 0 offen sc1")
    poll_guard(A)
    A("s_waitcnt vmcnt(0)\ns_mov_b32 s32, 0")
    for k in range(16):
        A(f"v_readlane_b32 {s(44 + k)}, v5, {k}")
    for k in range(16):
        A(f"s_add_u32 s32, s32, {s(44 + k)}")
    A("s_cmp_lt_u32 s32, 256\ns_cbranch_scc1 L_ov_poll")
    A(f"s_mov_b32 {s(S_FOREIGN)}, 1")
    for k in range(8):
        A(f"s_min_u32 s33, {s(44 + k)}, 32\ns_sub_u32 s34, 32, s33")
        A(f"s_sub_u32 s35, {k}, {s(S_NONCE)}\ns_and_b32 s35, s35, 7\ns_lshl_b32 s35, s35, 5\ns_add_u32 {s(S_ID)}, s33, s31\ns_add_u32 {s(S_ID)}, {s(S_ID)}, s35")
        A("s_cmp_lt_u32 s31, s34\ns_cbranch_scc1 L_role_known\ns_sub_u32 s31, s31, s34")
    A("s_branch L_timeout")
    A("L_role_known:")
    A(f"s_lshl_b32 s29, {s(S_FOREIGN)}, 8\ns_or_b32 s30, s29, {s(S_ID)}\nv_mov_b32 v4, s30\nds_write_b32 v6, v4\ns_waitcnt lgkmcnt(0)")
    A("L_role_wait:")
    A("s_barrier\nds_read_b32 v4, v6")
    A(f"s_cmp_eq_u32 {s(S_W)}, 0\ns_cbranch_scc0 L_no_reg")
    A(f"v_mov_b32 {v(ER)}, {s(S_NONCE)}\ns_lshl_b32 s16, s16, 7\ns_add_u32 s16, s16, {DONE}")
    A(f"v_lshrrev_b32 v5, 2, v3\nv_and_b32 v5, 124, v5\nbuffer_store_dword {v(ER)}, v5, {s(WS, 4)}, s16 offen sc1\ns_mov_b64 exec, 1")
    A(f"s_cmp_lt_u32 {s(S_ID)}, 32\ns_cbranch_scc0 L_no_reg2")
    A(f"s_add_u32 s29, s29, 1\nv_mov_b32 {v(ER + 2)}, s29\nbuffer_atomic_add {v(ER + 2)}, {v(ER + 1)}, {s(DB, 4)}, 0 offen offset:{D_REG} sc1")
    A("L_no_reg2:\ns_mov_b64 exec, -1")
    A("L_no_reg:")
    A("s_waitcnt lgkmcnt(0)\nv_readfirstlane_b32 s30, v4")
    A(f"s_and_b32 {s(S_ID)}, s30, 0xff")
    dbg_time(A, opts, 4, 16)
    amp_mark(A, opts, 1)
    A(f"s_lshr_b32 s28, {s(S_ID)}, 5\ns_and_b32 s29, {s(S_ID)}, 31")
    far = []

    def go(cond, label):
        hop = A.new("go")
        far.append((hop, label))
        A(f"{cond}\ns_cbranch_scc1 {hop}")

    A("s_cmp_eq_u32 s28, 0\ns_cbranch_scc0 L_not_chain")
    go("s_cmp_lt_u32 s29, 16", "L_chain_a")
    go("s_cmp_lt_u32 s29, 30", "L_chain_b")
    go("s_cmp_eq_u32 s29, 30", "L_chain_f")
    A("s_branch L_chain_g")
    A("L_not_chain:")
    A("s_cmp_lt_u32 s28, 5\ns_cbranch_scc0 L_not_yx")
    A("s_sub_u32 s30, s28, 1\ns_lshl_b32 s30, s30, 2\ns_and_b32 s31, s29, 3\ns_add_u32 s30, s30, s31\ns_lshr_b32 s31, s29, 2")
    go("s_cmp_lt_u32 s29, 12", "L_y")
    A("s_sub_u32 s31, s31, 3")
    go("s_cmp_lt_u32 s29, 24", "L_x1")
    A("s_sub_u32 s30, s28, 1\ns_mul_i32 s30, s30, 7\ns_add_u32 s30, s30, s29\ns_sub_u32 s30, s30, 24\ns_mov_b32 s31, 1")
    go("s_cmp_lt_u32 s29, 31", "L_f1")
    A("s_sub_u32 s30, s28, 1\ns_branch L_go_z")
    A("L_not_yx:")
    A("s_mov_b32 s30, s29\ns_mov_b32 s31, 0")
    A("s_cmp_eq_u32 s28, 7\ns_cbranch_scc0 L_not_f1")
    go("s_cmp_lt_u32 s29, 28", "L_f1")
    A("s_sub_u32 s30, s29, 16\ns_branch L_go_z")
    A("L_not_f1:")
    A("s_sub_u32 s31, s28, 5")
    go("s_cmp_lt_u32 s29, 14", "L_x2")
    A("s_sub_u32 s30, s29, 14")
    go("s_cmp_lt_u32 s29, 28", "L_f2")
    A("s_lshl_b32 s30, s31, 2\ns_add_u32 s30, s30, s29\ns_sub_u32 s30, s30, 24")
    A("L_go_z:\ns_branch L_z")
    A("L_exit:")
    A("s_endpgm")
    for hop, label in far:
        A(f"{hop}:\ns_branch {label}")
    A("L_timeout:")
    A(f"s_mov_b64 exec, -1\ns_add_u32 s29, {s(S_ID)}, 0x1000\nv_mov_b32 v1, s29\nv_mov_b32 v2, {D_ERR}")
    A(f"buffer_store_dword v1, v2, {s(DB, 4)}, 0 offen\ns_endpgm")

    gen_work.SLEEP = opts.get("slp", 2)
    A("L_chain_a:")
    gen_chain_a(A, opts)
    A("L_chain_b:")
    gen_chain_b(A, opts)
    A("L_chain_f:")
    gen_chain_f(A, opts)
    A("L_chain_g:")
    gen_chain_g(A, opts)
    for lab, fn in (("y", gen_work.gen_y), ("z", gen_work.gen_z), ("x1", gen_work.gen_x1), ("x2", gen_work.gen_x2), ("f1", gen_work.gen_f1), ("f2", gen_work.gen_f2)):
        A(f"L_{lab}:")
        if opts.get("no_" + lab):
            A("s_endpgm")
        else:
            fn(A, opts)
```

```python
from asmlib import v, a, s
from layout import *
from common import *
from gen_prep import f32, load_srd, xor_reduce, chunk_pos
import math

MF = "v_mfma_f32_16x16x32_bf16"
Y_TEAMS, X1_TEAMS, X2_TEAMS, F_TEAMS = 3, 3, 2, 2


def set_flag(A, soff, t):
    A(f"v_mov_b32 {v(t)}, {s(S_NONCE)}\nv_mov_b32 {v(t + 1)}, 0")
    A(f"buffer_store_dword {v(t)}, {v(t + 1)}, {s(WS, 4)}, {s(soff)} offen sc1")


def paired_addr(A, d0, d1):
    for vv, d in enumerate((d0, d1)):
        A(f"v_lshrrev_b32 v4, 1, v1\nv_add_u32 v4, {8 * vv}, v4")
        chunk_pos(A, d, 4, 2, 5)
        A(f"v_and_b32 v4, 1, v1\nv_mul_u32_u24 v4, {14 * KB}, v4\nv_add_u32 {v(d)}, {v(d)}, v4")


def seg_dma(A, sx, sm0, cnt=None):
    for q, n in ((0, 4), (1, 3)):
        A(f"s_add_u32 s33, {s(sm0)}, {q * 4096}\ns_mov_b32 m0, s33\ns_add_u32 s34, {s(sx)}, {q * 4096}")
        for k in range(n):
            t = f"buffer_load_dwordx4 v3, {s(WS, 4)}, s34 offen offset:{k * 1024} sc1 lds"
            cnt.op(t, "x") if cnt else A(t)


def gen_y(A, opts):
    ACC, XOP, PK, XR, T = 4, 32, 48, 76, 78
    sS, sX, sM0, sY, sF = 44, 45, 46, 47, 48
    vm = Cnt(A, "vmcnt", 63)
    A(f"s_mov_b32 {s(sS)}, s31\ns_mul_i32 {s(sM0)}, {s(S_W)}, {7 * KB}")
    A(f"s_mul_i32 {s(sX)}, s31, {28 * KB}\ns_add_u32 {s(sX)}, {s(sX)}, {s(sM0)}\ns_add_u32 {s(sX)}, {s(sX)}, {XF}")
    A(f"s_mul_i32 s35, s30, {FRAG_H}\ns_mul_i32 s36, {s(S_W)}, {7 * 14 * KB}\ns_add_u32 s35, s35, s36\ns_add_u32 s35, s35, {BF}")
    A(f"s_mul_i32 s33, {s(S_W)}, 7\nv_min_u32 v4, 6, v0\nv_add_u32 v4, s33, v4\nv_lshrrev_b32 v4, 2, v4\ns_mul_i32 s33, s30, 7\ns_add_u32 s33, s33, 112\nv_add_u32 v4, s33, v4")
    load_pieces(A, [(14, lambda i=i: frag_loads(A, 35, [((i * 14 + ks) * 4, (i * 14 + ks) * KB) for ks in range(14)])) for i in range(7)], 4)
    wait_prep(A, False)
    seg_dma(A, sX, sM0)
    A(f"s_lshl_b32 s33, s31, 4\ns_add_u32 s33, s33, s30\ns_mul_i32 {s(sY)}, s33, {28 * KB}\ns_add_u32 {s(sY)}, {s(sY)}, {YF}")
    A(f"s_mul_i32 s33, {s(S_W)}, {7 * KB}\ns_add_u32 {s(sY)}, {s(sY)}, s33")
    A(f"s_mul_i32 {s(sF)}, s31, {FL_STEP}\ns_lshl_b32 s33, s30, 7\ns_add_u32 {s(sF)}, {s(sF)}, s33\ns_add_u32 {s(sF)}, {s(sF)}, {FY}")
    paired_addr(A, XR, XR + 1)
    top, nodma, noflag, done = (A.new(x) for x in ("y_top", "y_nodma", "y_nofl", "y_done"))
    A("s_waitcnt vmcnt(0)\ns_barrier")
    mark(A, opts, 1)
    A(f"{top}:")
    A(f"s_add_u32 s33, {s(sS)}, {Y_TEAMS}\ns_cmp_ge_u32 s33, 63\ns_cbranch_scc1 {nodma}" if False else
      f"s_add_u32 s33, {s(sS)}, {Y_TEAMS}\ns_cmp_ge_u32 s33, 64\ns_cbranch_scc1 {nodma}")
    A(f"s_add_u32 {s(sX)}, {s(sX)}, {Y_TEAMS * 28 * KB}\ns_xor_b32 {s(sM0)}, {s(sM0)}, 0x8000")
    seg_dma(A, sX, sM0)
    A(f"{nodma}:")
    lg = Cnt(A, "lgkmcnt", 15)
    rd = lambda n: lg.op(f"ds_read_b128 {v(XOP + 4 * (n % 4), 4)}, {v(XR + n // 14)} offset:{(n % 14) * KB}", f"x{n}")
    for n in range(3):
        rd(n)
    for tt in range(2):
        for ks in range(14):
            n = tt * 14 + ks
            if n + 3 < 28:
                rd(n + 3)
            lg.wait(f"x{n}")
            for i in range(7):
                c = "0" if ks == 0 else v(ACC + 4 * i, 4)
                A(f"{MF} {v(ACC + 4 * i, 4)}, {v(XOP + 4 * (n % 4), 4)}, {wreg((i * 14 + ks) * 4, 4)}, {c}")
        for i in range(7):
            for b in range(2):
                A(f"v_cvt_pk_bf16_f32 {v(PK + 4 * i + 2 * tt + b)}, {v(ACC + 4 * i + 2 * b)}, {v(ACC + 4 * i + 2 * b + 1)}")
    A(f"s_add_u32 s33, {s(sY)}, 4096")
    for i in range(7):
        A(f"buffer_store_dwordx4 {v(PK + 4 * i, 4)}, v3, {s(WS, 4)}, {s(sY) if i < 4 else 's33'} offen offset:{(i % 4) * 1024} sc1")
    A(f"v_xor_b32 {v(XR)}, 0x8000, {v(XR)}\nv_xor_b32 {v(XR + 1)}, 0x8000, {v(XR + 1)}")
    A("s_waitcnt vmcnt(0)\ns_barrier")
    A(f"s_cmp_eq_u32 {s(S_W)}, 0\ns_cbranch_scc0 {noflag}")
    set_flag(A, sF, T)
    A(f"{noflag}:")
    A(f"s_add_u32 {s(sS)}, {s(sS)}, {Y_TEAMS}\ns_cmp_ge_u32 {s(sS)}, 64\ns_cbranch_scc1 {done}")
    A(f"s_add_u32 {s(sY)}, {s(sY)}, {Y_TEAMS * 16 * 28 * KB}\ns_add_u32 {s(sF)}, {s(sF)}, {Y_TEAMS * FL_STEP}\ns_branch {top}")
    A(f"{done}:")
    flush_stamps(A, opts)
    A("s_endpgm")


def gen_z(A, opts):
    from gen_chain import SMF, gather_addr, gather_mem, idx_reg, zero
    MEM, ACC, G0, G1, PK, IDX, GA0, GA1, ZA, T = 4, 32, 60, 68, 76, 90, 91, 92, 93, 94
    sS, sXM, sZ, sF = 44, 45, 46, 47
    after_first_y(A, opts)
    wait_prep(A, True)
    vm = Cnt(A, "vmcnt", 63)
    A(f"s_mul_i32 s35, s30, {FRAG_H}\ns_mul_i32 s36, {s(S_W)}, {7 * 14 * KB}\ns_add_u32 s35, s35, s36\ns_add_u32 s35, s35, {BF}")
    load_weights(A, vm, 3, [(lambda i=i: A(f"s_add_u32 s37, s35, {i * 14 * KB}")) for i in range(7)], 37)
    gather_addr(A, GA0, GA1)
    idx_reg(A, IDX)
    A(f"v_lshlrev_b32 {v(ZA)}, 3, v0")
    A(f"s_mov_b32 {s(sS)}, 0\ns_mov_b32 {s(sXM)}, {XM}\ns_mul_i32 {s(sZ)}, s30, 14336\ns_mul_i32 s33, {s(S_W)}, 3584\ns_add_u32 {s(sZ)}, {s(sZ)}, s33\ns_add_u32 {s(sZ)}, {s(sZ)}, {ZF}")
    A(f"s_lshl_b32 {s(sF)}, s30, 7\ns_add_u32 {s(sF)}, {s(sF)}, {FZ - FL_STEP}")
    top, noflag = A.new("z_top"), A.new("z_nofl")
    mark(A, opts, 1)
    A(f"{top}:")
    gather_mem(A, {}, G0, G1, GA0, GA1, sXM, T, 0, zero(ACC, 28))
    mark(A, opts, 2)
    lg = Cnt(A, "lgkmcnt", 15)
    for kk in range(7):
        lg.op(f"ds_read_b128 {v(MEM + 4 * kk, 4)}, v3 offset:{kk * 1024}", f"m{kk}")
    A(f"s_cmp_eq_u32 {s(S_W)}, 0\ns_cbranch_scc0 {noflag}\ns_cmp_eq_u32 {s(sS)}, 0\ns_cbranch_scc1 {noflag}")
    set_flag(A, sF, T)
    A(f"{noflag}:")
    for i in range(7):
        for kk in range(7):
            if i == 0:
                lg.wait(f"m{kk}")
            A(f"{SMF} {v(ACC + 4 * i, 4)}, {v(MEM + 4 * kk, 4)}, {wreg((i * 7 + kk) * 8, 8)}, {v(IDX)}")
    A("s_barrier")
    for i in range(7):
        for b in range(2):
            A(f"v_cvt_pk_bf16_f32 {v(PK + 2 * i + b)}, {v(ACC + 4 * i + 2 * b)}, {v(ACC + 4 * i + 2 * b + 1)}")
        A(f"buffer_store_dwordx2 {v(PK + 2 * i, 2)}, {v(ZA)}, {s(WS, 4)}, {s(sZ)} offen offset:{i * 512} sc1")
    A(f"s_add_u32 {s(sS)}, {s(sS)}, 1\ns_add_u32 {s(sXM)}, {s(sXM)}, 8192\ns_add_u32 {s(sZ)}, {s(sZ)}, {16 * 14336}\ns_add_u32 {s(sF)}, {s(sF)}, {FL_STEP}")
    A(f"s_cmp_lt_u32 {s(sS)}, 64\ns_cbranch_scc1 {top}")
    mark(A, opts, 3)
    A("s_waitcnt vmcnt(0)\ns_barrier")
    mark(A, opts, 4)
    set_flag(A, sF, T)
    flush_stamps(A, opts)
    A("s_endpgm")


def wait_flags(A, fv, fa, soff, off=0, sleep=2):
    lp, ok = A.new("wf"), A.new("wfok")
    A(f"{lp}:")
    A(f"buffer_load_dword {v(fv)}, {v(fa)}, {s(WS, 4)}, {s(soff)} offen offset:{off} sc1")
    poll_guard(A)
    A(f"s_waitcnt vmcnt(0)\nv_cmp_ne_u32 vcc, {s(S_NONCE)}, {v(fv)}\ns_cbranch_vccz {ok}\ns_sleep {sleep}\ns_branch {lp}\n{ok}:")


def after_first_y(A, opts):
    if opts.get("nodelay"):
        return
    out = A.new("afy")
    A(f"s_cmp_eq_u32 {s(S_W)}, 0\ns_cbranch_scc0 {out}\nv_lshlrev_b32 v4, 7, v1\ns_mov_b32 s34, {FY}")
    wait_flags(A, 5, 4, 34, sleep=16)
    A(f"{out}:\ns_barrier")


def unpack(A, dst, src, n, smask):
    for r in range(n):
        A(f"v_lshlrev_b32 {v(dst + 2 * r)}, 16, {v(src + r)}\nv_and_b32 {v(dst + 2 * r + 1)}, {s(smask)}, {v(src + r)}")


def gen_x1(A, opts):
    from gen_chain import gather_addr, mem_loads, check8
    ACC, XOP, TOP, G, ZERO = 4, 32, 48, 80, 88
    GA0, GA1, XR, KX, KX1, KX3, KX31, MK, MK2, MK3, SW, SR, PA, NEG, T = range(89, 104)
    SXB, SMB, XB = 8192, 24576, 32768
    sS, sX, sM0, sXM, sP, sF, sODD, sP0 = 44, 45, 46, 47, 48, 49, 50, 51
    MASK, ODDM = 56, 72
    after_first_y(A, opts)
    wait_prep(A, True)
    vm = Cnt(A, "vmcnt", 63)
    A(f"s_mov_b32 {s(sS)}, s31\ns_mul_i32 s35, {s(S_W)}, {7 * KB}\ns_add_u32 {s(sM0)}, s35, {XB}")
    A(f"s_mul_i32 {s(sX)}, s31, {28 * KB}\ns_add_u32 {s(sX)}, {s(sX)}, s35\ns_add_u32 {s(sX)}, {s(sX)}, {XF}")
    seg_dma(A, sX, sM0, vm)
    A(f"s_and_b32 {s(sODD)}, {s(S_W)}, 1\ns_mul_i32 s33, {s(S_W)}, 7\ns_add_u32 {s(sP0)}, s33, {s(sODD)}\ns_lshr_b32 {s(sP0)}, {s(sP0)}, 1")
    A(f"s_mul_i32 s34, s30, {FRAG_H}\ns_mul_i32 s33, {s(S_W)}, {7 * 14 * KB}\ns_add_u32 s34, s34, s33")
    if AF:
        A(f"s_add_u32 s34, s34, {AF}")
    A(f"s_mul_i32 s35, {s(sODD)}, {14 * KB}\ns_add_u32 s35, s35, s34\ns_add_u32 s36, s34, {6 * 14 * KB}\ns_cmp_eq_u32 {s(sODD)}, 0\ns_cselect_b32 s36, s36, s34")
    A(f"s_cselect_b64 {s(ODDM, 2)}, 0, -1")
    tiles = [(lambda i=i: A(f"s_add_u32 s37, s35, {i * 14 * KB}")) for i in range(6)] + [lambda: A("s_mov_b32 s37, s36")]
    load_weights(A, vm, 3, tiles, 37)
    gather_addr(A, GA0, GA1)
    A(f"v_mov_b32 {v(ZERO)}, 0\nv_mov_b32 {v(NEG)}, {f32(-1.0e9 * math.log2(math.e))}")
    chunk_pos(A, XR, 1, 2, 4)
    paired_addr(A, KX, KX1)
    A(f"v_add_u32 {v(XR)}, {XB}, {v(XR)}")
    A(f"s_lshl_b32 s33, {s(sP0)}, 10\ns_add_u32 s33, s33, {XB}\ns_lshl_b32 s34, {s(sODD)}, 12\ns_sub_u32 s34, 3072, s34")
    for r in (KX, KX1):
        A(f"v_add_u32 {v(r)}, s33, {v(r)}\nv_add_u32 {v(r + 2)}, s34, {v(r)}")
    A(f"v_and_b32 v4, 7, v1\nv_lshlrev_b32 v4, 4, v4\nv_lshrrev_b32 v5, 1, v2\nv_lshl_add_u32 v4, v5, 8, v4\nv_and_b32 v5, 1, v2\nv_lshl_add_u32 v4, v5, 3, v4")
    A(f"s_lshl_b32 s33, {s(sP0)}, 9\nv_add_u32 {v(MK)}, s33, v4\nv_add_u32 {v(MK2)}, 1024, {v(MK)}")
    A(f"s_lshl_b32 s34, {s(sODD)}, 11\ns_sub_u32 s34, 1536, s34\nv_add_u32 {v(MK3)}, s34, {v(MK)}")
    A(f"s_lshl_b32 s33, {s(S_W)}, 10\nv_add_u32 {v(SW)}, s33, v3\ns_lshl_b32 s33, {s(sODD)}, 12\nv_add_u32 {v(SR)}, s33, v3\nv_lshlrev_b32 {v(PA)}, 3, v0")
    A(f"s_lshl_b32 s33, {s(sODD)}, 4\nv_add_u32 v5, s33, v1")
    for kt in range(2):
        for q in range(4):
            A(f"v_lshl_add_u32 v4, v2, 1, {8 * kt + (q >> 1) + 16 * (q & 1)}\nv_cmp_le_u32 {s(MASK + 8 * kt + 2 * q, 2)}, v4, v5")
    A(f"s_lshl_b32 {s(sXM)}, s31, 13\ns_add_u32 {s(sXM)}, {s(sXM)}, {XM}")
    A(f"s_lshl_b32 s33, s31, 4\ns_add_u32 s33, s33, s30\ns_lshl_b32 s33, s33, 1\ns_add_u32 s33, s33, {s(sODD)}\ns_mul_i32 {s(sP)}, s33, 1536\ns_add_u32 {s(sP)}, {s(sP)}, {PF}")
    A(f"s_lshl_b32 s33, s30, 1\ns_add_u32 s33, s33, {s(sODD)}\ns_lshl_b32 s33, s33, 7\ns_mul_i32 {s(sF)}, s31, {FL_STEP}\ns_add_u32 {s(sF)}, {s(sF)}, s33\ns_add_u32 {s(sF)}, {s(sF)}, {FP}")
    top, nodma, nxt, lp, ok = (A.new("x1_" + x) for x in ("top", "nodma", "next", "poll", "ok"))
    mark(A, opts, 1)
    A(f"{top}:")
    A("s_waitcnt vmcnt(0)\ns_barrier")
    A(f"s_add_u32 s33, {s(sS)}, {X1_TEAMS}\ns_cmp_ge_u32 s33, 64\ns_cbranch_scc1 {nodma}")
    A(f"s_add_u32 {s(sX)}, {s(sX)}, {X1_TEAMS * 28 * KB}\ns_xor_b32 {s(sM0)}, {s(sM0)}, 0x18000")
    seg_dma(A, sX, sM0)
    A(f"{nodma}:")
    lg = Cnt(A, "lgkmcnt", 15)
    rd = lambda n: lg.op(f"ds_read_b128 {v(XOP + 4 * (n % 4), 4)}, {v(XR)} offset:{n * KB}", f"x{n}")
    for n in range(3):
        rd(n)
    for tt in range(2):
        for ks in range(14):
            n = tt * 14 + ks
            if n + 3 < 28:
                rd(n + 3)
            lg.wait(f"x{n}")
            for i in range(7):
                c = "0" if ks == 0 else v(ACC + 4 * i, 4)
                A(f"{MF} {v(ACC + 4 * i, 4)}, {wreg((i * 14 + ks) * 4, 4)}, {v(XOP + 4 * (n % 4), 4)}, {c}")
        for i in range(6):
            for b in range(2):
                A(f"v_cvt_pk_bf16_f32 {v(TOP + 16 * tt + 2 * i + b)}, {v(ACC + 4 * i + 2 * b)}, {v(ACC + 4 * i + 2 * b + 1)}")
        for b in range(2):
            A(f"v_cvt_pk_bf16_f32 {v(T + b)}, {v(ACC + 24 + 2 * b)}, {v(ACC + 25 + 2 * b)}")
        for b in range(2):
            A(f"v_cndmask_b32 {v(TOP + 16 * tt + 12 + b)}, {v(T + b)}, {v(ZERO)}, {s(ODDM, 2)}")
            A(f"v_cndmask_b32 {v(TOP + 16 * tt + 14 + b)}, {v(ZERO)}, {v(T + b)}, {s(ODDM, 2)}")
    for half in range(2):
        for b in (2 * half, 2 * half + 1):
            for kt in range(2):
                reg, o = (KX3 + kt, 0) if b == 3 else (KX + kt, b * KB)
                lg.op(f"ds_read_b128 {v(XOP + 8 * (b % 2) + 4 * kt, 4)}, {v(reg)} offset:{o}", f"k{b}")
        for b in (2 * half, 2 * half + 1):
            lg.wait(f"k{b}")
            for j in range(4):
                kt, tt = j % 2, j // 2
                c = "0" if b == 0 else v(ACC + 4 * j, 4)
                A(f"{MF} {v(ACC + 4 * j, 4)}, {v(XOP + 8 * (b % 2) + 4 * kt, 4)}, {v(TOP + 16 * tt + 4 * b, 4)}, {c}")
    for r in (XR, KX, KX1, KX3, KX31):
        A(f"v_xor_b32 {v(r)}, 0x18000, {v(r)}")
    for j in range(4):
        A(f"ds_write_b128 {v(SW)}, {v(ACC + 4 * j, 4)} offset:{SXB + (j % 2) * 8192 + (j // 2) * 4096}")
    A(f"{lp}:")
    mem_loads(A, G, GA0, GA1, sXM)
    poll_guard(A)
    A("s_waitcnt vmcnt(0)")
    A(f"ds_write_b128 {v(GA0)}, {v(G, 4)}\nds_write_b128 {v(GA1)}, {v(G + 4, 4)}")
    check8(A, G, T)
    A(f"s_cbranch_vccz {ok}\ns_sleep 2\ns_branch {lp}\n{ok}:")
    mark(A, opts, 2)
    A("s_waitcnt lgkmcnt(0)\ns_barrier")
    lg.q = []
    for b in range(4):
        reg, o = [(MK, 0), (MK, 128), (MK2, 0), (MK3, 0)][b]
        for x in range(2):
            lg.op(f"ds_read2_b32 {v(XOP + 4 * b + 2 * x, 2)}, {v(reg)} offset0:{o + x} offset1:{o + x + 32}", f"m{b}")
    for b in range(4):
        lg.wait(f"m{b}")
        for tt in range(2):
            c = "0" if b == 0 else v(ACC + 4 * tt, 4)
            A(f"{MF} {v(ACC + 4 * tt, 4)}, {v(XOP + 4 * b, 4)}, {v(TOP + 16 * tt + 4 * b, 4)}, {c}")
    for tt in range(2):
        A(f"ds_write_b128 {v(SW)}, {v(ACC + 4 * tt, 4)} offset:{SMB + tt * 4096}")
    A(f"s_cmp_ge_u32 {s(S_W)}, 2")
    A(f"s_waitcnt lgkmcnt(0)\ns_barrier\ns_cbranch_scc1 {nxt}")
    R, S = TOP, ACC
    for k, (reg, base) in enumerate(((SR, SMB), (SR, SXB), (SR, SXB + 8192))):
        for w in range(4):
            A(f"ds_read_b128 {v((XOP if k == 2 else R + 16 * k) + 4 * w, 4)}, {v(reg)} offset:{base + w * KB}")
    for k, d in enumerate((8, 0, 4)):
        b = XOP if k == 2 else R + 16 * k
        A(f"s_waitcnt lgkmcnt({8 - 4 * k})")
        for q in range(0, 4, 2):
            A(f"v_pk_add_f32 {v(b + q, 2)}, {v(b + q, 2)}, {v(b + 4 + q, 2)}\nv_pk_add_f32 {v(b + 8 + q, 2)}, {v(b + 8 + q, 2)}, {v(b + 12 + q, 2)}")
        for q in range(0, 4, 2):
            A(f"v_pk_add_f32 {v(S + d + q, 2)}, {v(b + q, 2)}, {v(b + 8 + q, 2)}")
    for r in range(8):
        A(f"v_cndmask_b32 {v(S + r)}, {v(NEG)}, {v(S + r)}, {s(MASK + 2 * r, 2)}")
    mx, sm = T, T + 1
    A(f"v_max3_f32 {v(mx)}, {v(S)}, {v(S + 1)}, {v(S + 2)}")
    for r in range(3, 11, 2):
        A(f"v_max3_f32 {v(mx)}, {v(mx)}, {v(S + r)}, {v(S + r + 1)}")
    A(f"v_max_f32 {v(mx)}, {v(mx)}, {v(S + 11)}")
    xor_reduce(A, "v_max_f32", mx, T + 2)
    for r in range(12):
        A(f"v_sub_f32 {v(S + r)}, {v(S + r)}, {v(mx)}")
    for r in range(12):
        A(f"v_exp_f32 {v(S + r)}, {v(S + r)}")
    A(f"v_add_f32 {v(sm)}, {v(S + 8)}, {v(S + 9)}\nv_add_f32 {v(T + 2)}, {v(S + 10)}, {v(S + 11)}\nv_add_f32 {v(sm)}, {v(sm)}, {v(T + 2)}\nv_mul_f32 {v(sm)}, 0.5, {v(sm)}")
    for r in range(8):
        A(f"v_add_f32 {v(sm)}, {v(sm)}, {v(S + r)}")
    xor_reduce(A, "v_add_f32", sm, T + 2)
    A(f"v_rcp_f32 {v(sm)}, {v(sm)}")
    for r in range(12):
        A(f"v_mul_f32 {v(S + r)}, {v(S + r)}, {v(sm)}")
    for r in range(6):
        A(f"v_cvt_pk_bf16_f32 {v(G + r)}, {v(S + 2 * r)}, {v(S + 2 * r + 1)}")
    A(f"buffer_store_dwordx4 {v(G, 4)}, v3, {s(WS, 4)}, {s(sP)} offen sc1")
    A(f"buffer_store_dwordx2 {v(G + 4, 2)}, {v(PA)}, {s(WS, 4)}, {s(sP)} offen offset:1024 sc1")
    mark(A, opts, 3)
    A("s_waitcnt vmcnt(0)")
    mark(A, opts, 4)
    set_flag(A, sF, T)
    A(f"{nxt}:")
    A(f"s_add_u32 {s(sS)}, {s(sS)}, {X1_TEAMS}\ns_add_u32 {s(sXM)}, {s(sXM)}, {X1_TEAMS * 8192}\ns_add_u32 {s(sP)}, {s(sP)}, {X1_TEAMS * 32 * 1536}\ns_add_u32 {s(sF)}, {s(sF)}, {X1_TEAMS * FL_STEP}")
    A(f"s_cmp_lt_u32 {s(sS)}, 64\ns_cbranch_scc1 {top}")
    flush_stamps(A, opts)
    A("s_endpgm")


def reduce_tiles(A, R, out, rr, base):
    for vv in range(2):
        for w in range(4):
            A(f"ds_read_b128 {v(R + 16 * vv + 4 * w, 4)}, {v(rr)} offset:{base + w * 4096 + vv * KB}")
    for vv in range(2):
        b = R + 16 * vv
        A(f"s_waitcnt lgkmcnt({4 - 4 * vv})")
        for q in (0, 2):
            A(f"v_pk_add_f32 {v(b + q, 2)}, {v(b + q, 2)}, {v(b + 4 + q, 2)}\nv_pk_add_f32 {v(b + 8 + q, 2)}, {v(b + 8 + q, 2)}, {v(b + 12 + q, 2)}")
        for q in (0, 2):
            A(f"v_pk_add_f32 {v(out + 4 * vv + q, 2)}, {v(b + q, 2)}, {v(b + 8 + q, 2)}")


def gen_x2(A, opts):
    Y, PX, PM, Z, ACC, XV, R, O = 4, 36, 68, 84, 100, 116, 120, 152
    FA1, FA2, FV, L8, RW, RR, XA, SA, T = range(160, 169)
    X_ = 16
    sS, sY, sP, sZ, sFL, sXO, sH, sST, sF, sMASK = range(44, 54)
    b = load_srd(A, X_, "x", 40)
    A(f"s_mov_b32 {s(sS)}, s31\ns_mov_b32 {s(sMASK)}, 0xffff0000\ns_and_b32 s36, {s(S_W)}, 1")
    A(f"v_lshlrev_b32 {v(FA1)}, 7, v1\nv_lshlrev_b32 {v(L8)}, 3, v0")
    A(f"v_and_b32 v4, 31, v0\nv_lshlrev_b32 v4, 7, v4\nv_add_u32 v4, {FP - FL}, v4\nv_add_u32 v5, {FZ - FL}, {v(FA1)}\nv_cmp_gt_u32 vcc, 32, v0\nv_cndmask_b32 {v(FA2)}, v5, v4, vcc")
    A(f"s_lshl_b32 s33, {s(S_W)}, 12\nv_add_u32 {v(RW)}, s33, v3\ns_lshl_b32 s33, s36, 11\nv_add_u32 {v(RR)}, s33, v3")
    A(f"v_mul_u32_u24 v4, 896, v1\nv_lshl_add_u32 {v(XA)}, v2, 4, v4")
    A(f"v_lshlrev_b32 v4, 3, v1\nv_mov_b32 v5, {OOB}\nv_cmp_gt_u32 vcc, 16, v0\nv_cndmask_b32 {v(SA)}, v5, v4, vcc")
    A(f"s_lshl_b32 s33, s31, 4\ns_lshl_b32 s34, {s(S_W)}, 2\ns_add_u32 s33, s33, s34")
    A(f"s_mul_i32 {s(sY)}, s33, {28 * KB}\ns_lshl_b32 s34, s30, 11\ns_add_u32 {s(sY)}, {s(sY)}, s34\ns_add_u32 {s(sY)}, {s(sY)}, {YF}")
    A(f"s_mul_i32 {s(sP)}, s33, 3072\ns_add_u32 {s(sP)}, {s(sP)}, {PF}")
    A(f"s_mul_i32 {s(sZ)}, s33, 14336\ns_lshl_b32 s34, s30, 10\ns_add_u32 {s(sZ)}, {s(sZ)}, s34\ns_add_u32 {s(sZ)}, {s(sZ)}, {ZF}")
    A(f"s_mul_i32 {s(sFL)}, s31, {FL_STEP}\ns_add_u32 {s(sFL)}, {s(sFL)}, {FL}")
    A(f"s_lshl_b32 s33, s31, 1\ns_add_u32 s33, s33, s36")
    A(f"s_mul_i32 {s(sXO)}, s33, {16 * 896}\ns_lshl_b32 s34, s30, 6\ns_add_u32 {s(sXO)}, {s(sXO)}, s34")
    A(f"s_mul_i32 s33, s33, 14\ns_add_u32 s33, s33, s30\ns_lshl_b32 {s(sH)}, s33, 10\ns_add_u32 {s(sH)}, {s(sH)}, {HF}\ns_lshl_b32 {s(sST)}, s33, 7\ns_add_u32 {s(sST)}, {s(sST)}, {ST}")
    A(f"s_lshl_b32 s33, s30, 1\ns_add_u32 s33, s33, s36\ns_lshl_b32 s33, s33, 7\ns_add_u32 {s(sF)}, {s(sFL)}, s33\ns_add_u32 {s(sF)}, {s(sF)}, {FH - FL}")
    A("s_waitcnt lgkmcnt(0)")
    b()
    top, nxt = A.new("x2_top"), A.new("x2_next")
    mark(A, opts, 1)
    A(f"{top}:")
    wait_flags(A, FV, FA1, sFL)
    for hh in range(4):
        A(f"s_add_u32 s33, {s(sY)}, {hh * 28 * KB}")
        for vv in range(2):
            A(f"buffer_load_dwordx4 {v(Y + 8 * hh + 4 * vv, 4)}, v3, {s(WS, 4)}, s33 offen offset:{vv * KB} sc1")
    A(f"buffer_load_dwordx4 {v(XV, 4)}, {v(XA)}, {s(X_, 4)}, {s(sXO)} offen")
    wait_flags(A, FV, FA2, sFL)
    mark(A, opts, 2)
    vm = Cnt(A, "vmcnt", 63)
    for hh in range(4):
        A(f"s_add_u32 s33, {s(sP)}, {hh * 3072}\ns_add_u32 s34, {s(sZ)}, {hh * 14336}")
        for tt in range(2):
            vm.op(f"buffer_load_dwordx4 {v(PX + 8 * hh + 4 * tt, 4)}, v3, {s(WS, 4)}, s33 offen offset:{tt * 1536} sc1", f"x{hh}")
        for tt in range(2):
            vm.op(f"buffer_load_dwordx2 {v(PM + 8 * (hh // 2) + 4 * tt + 2 * (hh % 2), 2)}, {v(L8)}, {s(WS, 4)}, s33 offen offset:{tt * 1536 + 1024} sc1", f"m{hh // 2}")
        for vv in range(2):
            vm.op(f"buffer_load_dwordx2 {v(Z + 8 * (hh // 2) + 4 * vv + 2 * (hh % 2), 2)}, {v(L8)}, {s(WS, 4)}, s34 offen offset:{vv * 512} sc1", f"m{hh // 2}")
    A("s_barrier")
    for hh in range(4):
        vm.wait(f"x{hh}")
        for tt in range(2):
            for vv in range(2):
                d = v(ACC + 8 * tt + 4 * vv, 4)
                A(f"{MF} {d}, {v(Y + 8 * hh + 4 * vv, 4)}, {v(PX + 8 * hh + 4 * tt, 4)}, {'0' if hh == 0 else d}")
        if hh % 2:
            vm.wait(f"m{hh // 2}")
            for tt in range(2):
                for vv in range(2):
                    d = v(ACC + 8 * tt + 4 * vv, 4)
                    A(f"{MF} {d}, {v(Z + 8 * (hh // 2) + 4 * vv, 4)}, {v(PM + 8 * (hh // 2) + 4 * tt, 4)}, {d}")
    for k in range(4):
        A(f"ds_write_b128 {v(RW)}, {v(ACC + 4 * k, 4)} offset:{k * KB}")
    A(f"s_cmp_ge_u32 {s(S_W)}, 2\ns_waitcnt lgkmcnt(0)\ns_barrier\ns_cbranch_scc1 {nxt}")
    reduce_tiles(A, R, O, RR, 0)
    mark(A, opts, 3)
    for r in range(4):
        A(f"v_cvt_pk_bf16_f32 {v(R + r)}, {v(O + 2 * r)}, {v(O + 2 * r + 1)}")
    unpack(A, O, R, 4, sMASK)
    unpack(A, R + 8, XV, 4, sMASK)
    for r in range(8):
        A(f"v_add_f32 {v(O + r)}, {v(O + r)}, {v(R + 8 + r)}")
    for r in range(4):
        A(f"v_cvt_pk_bf16_f32 {v(R + r)}, {v(O + 2 * r)}, {v(O + 2 * r + 1)}")
    A(f"buffer_store_dwordx4 {v(R, 4)}, v3, {s(WS, 4)}, {s(sH)} offen sc1")
    unpack(A, O, R, 4, sMASK)
    M = R + 8
    A(f"v_add_f32 {v(M)}, {v(O)}, {v(O + 1)}")
    for r in range(2, 8):
        A(f"v_add_f32 {v(M)}, {v(M)}, {v(O + r)}")
    xor_reduce(A, "v_add_f32", M, T)
    A(f"v_mul_f32 {v(M)}, {f32(1.0 / 32)}, {v(M)}")
    for r in range(8):
        A(f"v_sub_f32 {v(O + r)}, {v(O + r)}, {v(M)}")
    A(f"v_mul_f32 {v(M + 1)}, {v(O)}, {v(O)}")
    for r in range(1, 8):
        A(f"v_fmac_f32 {v(M + 1)}, {v(O + r)}, {v(O + r)}")
    xor_reduce(A, "v_add_f32", M + 1, T)
    A(f"buffer_store_dwordx2 {v(M, 2)}, {v(SA)}, {s(WS, 4)}, {s(sST)} offen sc1")
    mark(A, opts, 5)
    A("s_waitcnt vmcnt(0)")
    mark(A, opts, 4)
    set_flag(A, sF, T)
    A(f"{nxt}:")
    for r, step in ((sS, 1), (sY, 16 * 28 * KB), (sP, 16 * 3072), (sZ, 16 * 14336), (sFL, FL_STEP), (sXO, 32 * 896), (sH, 28 * KB), (sST, 28 * 128), (sF, FL_STEP)):
        A(f"s_add_u32 {s(r)}, {s(r)}, {X2_TEAMS * step}")
    A(f"s_cmp_lt_u32 {s(sS)}, 64\ns_cbranch_scc1 {top}")
    flush_stamps(A, opts)
    A("s_endpgm")


def tr_addr(A, dst, sbase):
    A(f"v_lshrrev_b32 v4, 2, v1\nv_lshlrev_b32 v4, 6, v4\nv_and_b32 v5, 3, v0\nv_lshl_add_u32 v4, v5, 4, v4\nv_lshl_add_u32 v4, v2, 9, v4\nv_add_u32 {v(dst)}, {s(sbase)}, v4")


def row_addr(A, dst, stride):
    A(f"v_lshrrev_b32 v4, 2, v0\nv_mov_b32 v6, {stride}\nv_mul_lo_u32 v4, v4, v6\nv_and_b32 v5, 3, v0\nv_lshl_add_u32 {v(dst)}, v5, 4, v4")


def gen_f1(A, opts):
    H, ACC, CS, B1, SV, U, PK = 4, 60, 68, 76, 84, 92, 100
    FA, FV, SA, RA, TR, T = range(108, 114)
    W_, B_ = 16, 20
    sS, sH, sST, sG, sFH, sF, sMASK, sP = range(44, 52)
    after_first_y(A, opts)
    b = [load_srd(A, W_, "w1", 40), load_srd(A, B_, "b1", 42)]
    A(f"s_lshr_b32 s34, {s(S_W)}, 1\ns_and_b32 s35, {s(S_W)}, 1\ns_lshl_b32 {s(sP)}, s30, 1\ns_add_u32 {s(sP)}, {s(sP)}, s34")
    row_addr(A, RA, 3584)
    A(f"s_mul_i32 s36, s34, {28 * KB}")
    tr_addr(A, TR, 36)
    A(f"s_mul_i32 s37, s35, {14 * KB}\ns_add_u32 s36, s36, s37\ns_mul_i32 s37, s35, {224 * 3584}\ns_lshl_b32 s38, {s(sP)}, 6\ns_add_u32 s37, s37, s38")
    A(f"v_lshlrev_b32 v7, 4, v2\ns_mov_b32 {s(sMASK)}, 0xffff0000")
    A("s_waitcnt lgkmcnt(0)")
    for f in b:
        f()
    for j in range(14):
        A(f"s_mov_b32 m0, s36\ns_add_u32 s36, s36, 1024\nbuffer_load_dwordx4 {v(RA)}, {s(W_, 4)}, s37 offen lds\ns_add_u32 s37, s37, {16 * 3584}")
    A(f"buffer_load_dwordx4 {v(PK, 4)}, v7, {s(B_, 4)}, s38 offen")
    A(f"s_mov_b32 {s(sS)}, s31\ns_lshl_b32 s33, s31, 1\ns_add_u32 s33, s33, s35")
    A(f"s_mul_i32 {s(sH)}, s33, {14 * KB}\ns_add_u32 {s(sH)}, {s(sH)}, {HF}\ns_mul_i32 {s(sST)}, s33, {14 * 128}\ns_add_u32 {s(sST)}, {s(sST)}, {ST}")
    A(f"s_mul_i32 s34, s33, 56\ns_add_u32 s34, s34, {s(sP)}\ns_lshl_b32 {s(sG)}, s34, 10\ns_add_u32 {s(sG)}, {s(sG)}, {GF}")
    A(f"s_mul_i32 {s(sFH)}, s31, {FL_STEP}\ns_lshl_b32 {s(sF)}, s35, 13\ns_lshl_b32 s34, {s(sP)}, 7\ns_add_u32 {s(sF)}, {s(sF)}, s34\ns_add_u32 {s(sF)}, {s(sF)}, {s(sFH)}\ns_add_u32 {s(sF)}, {s(sF)}, {FG}")
    A(f"s_add_u32 {s(sFH)}, {s(sFH)}, {FH}")
    A(f"v_min_u32 {v(FA)}, 13, v1\nv_lshlrev_b32 {v(FA)}, 8, {v(FA)}\ns_lshl_b32 s34, s35, 7\nv_add_u32 {v(FA)}, s34, {v(FA)}")
    A(f"v_lshlrev_b32 {v(SA)}, 7, v2\nv_lshl_add_u32 {v(SA)}, v1, 3, {v(SA)}\nv_add_u32 v4, 1536, {v(SA)}\nv_mov_b32 v5, {OOB}\nv_cmp_gt_u32 vcc, 32, v0\nv_cndmask_b32 {v(T + 5)}, v5, v4, vcc")
    A("s_waitcnt vmcnt(0)\ns_barrier")
    unpack(A, B1, PK, 4, sMASK)
    lg = Cnt(A, "lgkmcnt", 15)
    for vv in range(2):
        for ks in range(14):
            for x in range(2):
                lg.room(1)
                lg.op(f"ds_read_b64_tr_b16 {a((vv * 14 + ks) * 4 + 2 * x, 2)}, {v(TR)} offset:{ks * 2048 + x * 256 + vv * 8}")
    for r in range(4):
        A(f"v_mov_b32 {v(H + r)}, 0x3f803f80")
    lg.drain()
    for ks in range(14):
        for vv in range(2):
            d = v(CS + 4 * vv, 4)
            A(f"{MF} {d}, {a((vv * 14 + ks) * 4, 4)}, {v(H, 4)}, {'0' if ks == 0 else d}")
    K1 = -2.0 * math.sqrt(2.0 / math.pi) * math.log2(math.e)
    A(f"s_mov_b32 s54, {f32(K1 * 0.044715)}\nv_mov_b32 {v(T + 4)}, {f32(K1)}")
    top = A.new("f1_top")
    mark(A, opts, 1)
    A(f"{top}:")
    wait_flags(A, FV, FA, sFH)
    mark(A, opts, 2)
    vm = Cnt(A, "vmcnt", 63)
    for k in range(3):
        vm.op(f"buffer_load_dwordx2 {v(SV + 2 * k, 2)}, {v(SA)}, {s(WS, 4)}, {s(sST)} offen offset:{k * 512} sc1", "s")
    vm.op(f"buffer_load_dwordx2 {v(SV + 6, 2)}, {v(T + 5)}, {s(WS, 4)}, {s(sST)} offen sc1", "s")
    A(f"s_mov_b32 s33, {s(sH)}")
    for ks in range(14):
        vm.op(f"buffer_load_dwordx4 {v(H + 4 * ks, 4)}, v3, {s(WS, 4)}, s33 offen offset:{(ks % 4) * KB} sc1", f"h{ks}")
        if ks % 4 == 3:
            A("s_add_u32 s33, s33, 4096")
    vm.wait("s")
    mu, m2, q2 = T, T + 1, T + 2
    A(f"v_add_f32 {v(mu)}, {v(SV)}, {v(SV + 2)}\nv_add_f32 {v(m2)}, {v(SV + 1)}, {v(SV + 3)}\nv_mul_f32 {v(q2)}, {v(SV)}, {v(SV)}\nv_fmac_f32 {v(q2)}, {v(SV + 2)}, {v(SV + 2)}")
    for k in (4, 6):
        A(f"v_add_f32 {v(mu)}, {v(mu)}, {v(SV + k)}\nv_add_f32 {v(m2)}, {v(m2)}, {v(SV + k + 1)}\nv_fmac_f32 {v(q2)}, {v(SV + k)}, {v(SV + k)}")
    A(f"v_fmac_f32 {v(m2)}, {f32(32.0)}, {v(q2)}")
    xor_reduce(A, "v_add_f32", mu, T + 3)
    xor_reduce(A, "v_add_f32", m2, T + 3)
    A(f"v_mul_f32 {v(mu)}, {f32(1.0 / 14)}, {v(mu)}\nv_mul_f32 {v(q2)}, {v(mu)}, {v(mu)}")
    A(f"v_mul_f32 {v(m2)}, {f32(1.0 / 448)}, {v(m2)}\nv_sub_f32 {v(m2)}, {v(m2)}, {v(q2)}\nv_max_f32 {v(m2)}, 0, {v(m2)}\nv_add_f32 {v(m2)}, {f32(1e-5)}, {v(m2)}\nv_rsq_f32 {v(m2)}, {v(m2)}")
    for ks in range(14):
        vm.wait(f"h{ks}")
        for vv in range(2):
            d = v(ACC + 4 * vv, 4)
            A(f"{MF} {d}, {a((vv * 14 + ks) * 4, 4)}, {v(H + 4 * ks, 4)}, {'0' if ks == 0 else d}")
    mark(A, opts, 3)
    for r in range(8):
        A(f"v_fma_f32 {v(U + r)}, -{v(mu)}, {v(CS + r)}, {v(ACC + r)}")
    for r in range(8):
        A(f"v_fma_f32 {v(U + r)}, {v(m2)}, {v(U + r)}, {v(B1 + r)}")
    for r in range(8):
        A(f"v_mul_f32 {v(ACC + r)}, {v(U + r)}, {v(U + r)}")
    for r in range(8):
        A(f"v_fma_f32 {v(ACC + r)}, {v(ACC + r)}, s54, {v(T + 4)}")
    for r in range(8):
        A(f"v_mul_f32 {v(ACC + r)}, {v(ACC + r)}, {v(U + r)}")
    for r in range(8):
        A(f"v_exp_f32 {v(ACC + r)}, {v(ACC + r)}")
    for r in range(8):
        A(f"v_add_f32 {v(ACC + r)}, 1.0, {v(ACC + r)}")
    for r in range(8):
        A(f"v_rcp_f32 {v(ACC + r)}, {v(ACC + r)}")
    for r in range(8):
        A(f"v_mul_f32 {v(U + r)}, {v(U + r)}, {v(ACC + r)}")
    for r in range(4):
        A(f"v_cvt_pk_bf16_f32 {v(PK + r)}, {v(U + 2 * r)}, {v(U + 2 * r + 1)}")
    A(f"buffer_store_dwordx4 {v(PK, 4)}, v3, {s(WS, 4)}, {s(sG)} offen sc1")
    mark(A, opts, 5)
    A("s_waitcnt vmcnt(0)")
    mark(A, opts, 4)
    set_flag(A, sF, SV)
    for r, step in ((sS, 1), (sH, 28 * KB), (sST, 28 * 128), (sG, 112 * KB), (sFH, FL_STEP), (sF, FL_STEP)):
        A(f"s_add_u32 {s(r)}, {s(r)}, {F_TEAMS * step}")
    A(f"s_cmp_lt_u32 {s(sS)}, 64\ns_cbranch_scc1 {top}")
    flush_stamps(A, opts)
    A("s_endpgm")


def gen_f2(A, opts):
    Gr, ACC, HV, B2, R, O = 4, 60, 76, 80, 88, 120
    FA, FV, RA, TR, RW, RR, OA, T = range(128, 136)
    W_, B_, O_ = 16, 20, 24
    sS, sG, sH, sO, sFG, sMASK = range(44, 50)
    after_first_y(A, opts)
    b = [load_srd(A, W_, "w2", 40), load_srd(A, B_, "b2", 42), load_srd(A, O_, "out", 38)]
    A(f"s_lshr_b32 s34, s30, 1\ns_and_b32 s35, s30, 1\ns_and_b32 s29, {s(S_W)}, 1")
    row_addr(A, RA, 896)
    A(f"s_mul_i32 s28, {s(S_W)}, {28 * KB}")
    tr_addr(A, TR, 28)
    A(f"v_lshlrev_b32 v7, 4, v2\ns_mov_b32 {s(sMASK)}, 0xffff0000\ns_lshl_b32 s52, s34, 7\ns_lshl_b32 s53, s29, 6\ns_add_u32 s53, s53, s52")
    A("s_waitcnt lgkmcnt(0)")
    for f in b:
        f()
    A(f"buffer_load_dwordx4 {v(HV, 4)}, v7, {s(B_, 4)}, s53 offen")
    lg = Cnt(A, "lgkmcnt", 15)
    for pa in range(2):
        A(f"s_mul_i32 s37, {s(S_W)}, {448 * 896}\ns_add_u32 s37, s37, s52\ns_add_u32 s37, s37, {pa * 64}\ns_mov_b32 s36, s28")
        for j in range(28):
            A(f"s_mov_b32 m0, s36\ns_add_u32 s36, s36, 1024\nbuffer_load_dwordx4 {v(RA)}, {s(W_, 4)}, s37 offen lds\ns_add_u32 s37, s37, {16 * 896}")
        A("s_waitcnt vmcnt(0)")
        for vv in range(2):
            for ks in range(14):
                for x in range(2):
                    lg.room(1)
                    lg.op(f"ds_read_b64_tr_b16 {a(((2 * pa + vv) * 14 + ks) * 4 + 2 * x, 2)}, {v(TR)} offset:{ks * 2048 + x * 256 + vv * 8}")
        lg.drain()
    unpack(A, B2, HV, 4, sMASK)
    A(f"s_mov_b32 {s(sS)}, s31\ns_lshl_b32 s33, s31, 1\ns_add_u32 s33, s33, s35")
    A(f"s_mul_i32 s36, s33, 56\ns_mul_i32 s37, {s(S_W)}, 14\ns_add_u32 s36, s36, s37\ns_lshl_b32 {s(sG)}, s36, 10\ns_add_u32 {s(sG)}, {s(sG)}, {GF}")
    A(f"s_mul_i32 s36, s33, 14\ns_lshl_b32 s37, s34, 1\ns_add_u32 s36, s36, s37\ns_add_u32 s36, s36, s29\ns_lshl_b32 {s(sH)}, s36, 10\ns_add_u32 {s(sH)}, {s(sH)}, {HF}")
    A(f"s_mul_i32 {s(sO)}, s33, {16 * 896}\ns_add_u32 {s(sO)}, {s(sO)}, s53\ns_mul_i32 {s(sFG)}, s31, {FL_STEP}\ns_lshl_b32 s36, s35, 13\ns_add_u32 {s(sFG)}, {s(sFG)}, s36\ns_add_u32 {s(sFG)}, {s(sFG)}, {FG}")
    A(f"v_min_u32 {v(FA)}, 55, v0\nv_lshlrev_b32 {v(FA)}, 7, {v(FA)}")
    A(f"s_lshl_b32 s33, {s(S_W)}, 12\nv_add_u32 {v(RW)}, s33, v3\ns_lshl_b32 s33, s29, 11\nv_add_u32 {v(RR)}, s33, v3")
    A(f"v_mul_u32_u24 v4, 896, v1\nv_lshl_add_u32 {v(OA)}, v2, 4, v4")
    top, nxt = A.new("f2_top"), A.new("f2_next")
    mark(A, opts, 1)
    A(f"{top}:")
    wait_flags(A, FV, FA, sFG)
    mark(A, opts, 2)
    vm = Cnt(A, "vmcnt", 63)
    A(f"s_mov_b32 s33, {s(sG)}")
    for ks in range(14):
        vm.op(f"buffer_load_dwordx4 {v(Gr + 4 * ks, 4)}, v3, {s(WS, 4)}, s33 offen offset:{(ks % 4) * KB} sc1", f"g{ks}")
        if ks % 4 == 3:
            A("s_add_u32 s33, s33, 4096")
    vm.op(f"buffer_load_dwordx4 {v(HV, 4)}, v3, {s(WS, 4)}, {s(sH)} offen sc1", "h")
    A("s_barrier")
    for ks in range(14):
        vm.wait(f"g{ks}")
        for t in range(4):
            d = v(ACC + 4 * t, 4)
            A(f"{MF} {d}, {a((t * 14 + ks) * 4, 4)}, {v(Gr + 4 * ks, 4)}, {'0' if ks == 0 else d}")
    for k in range(4):
        A(f"ds_write_b128 {v(RW)}, {v(ACC + 4 * k, 4)} offset:{k * KB}")
    A(f"s_cmp_ge_u32 {s(S_W)}, 2\ns_waitcnt vmcnt(0) lgkmcnt(0)\ns_barrier\ns_cbranch_scc1 {nxt}")
    reduce_tiles(A, R, O, RR, 0)
    mark(A, opts, 3)
    unpack(A, R, HV, 4, sMASK)
    for r in range(8):
        A(f"v_add_f32 {v(O + r)}, {v(O + r)}, {v(B2 + r)}")
    for r in range(8):
        A(f"v_add_f32 {v(O + r)}, {v(O + r)}, {v(R + r)}")
    for r in range(4):
        A(f"v_cvt_pk_bf16_f32 {v(R + 8 + r)}, {v(O + 2 * r)}, {v(O + 2 * r + 1)}")
    A(f"buffer_store_dwordx4 {v(R + 8, 4)}, {v(OA)}, {s(O_, 4)}, {s(sO)} offen")
    A(f"{nxt}:")
    for r, step in ((sS, 1), (sG, 112 * KB), (sH, 28 * KB), (sO, 32 * 896), (sFG, FL_STEP)):
        A(f"s_add_u32 {s(r)}, {s(r)}, {F_TEAMS * step}")
    A(f"s_cmp_lt_u32 {s(sS)}, 64\ns_cbranch_scc1 {top}")
    dbg_time(A, opts, 7, 206)
    flush_stamps(A, opts)
    A("s_endpgm")
```

```python
from asmlib import v, a, s
from layout import *
from common import *
from gen_prep import chunk_pos

SMF = "v_smfmac_f32_16x16x64_bf16"
MF = "v_mfma_f32_16x16x32_bf16"
N_CHAIN = 32


def chain_mode(A, opts, vm, lab):
    lp = A.new("reg")
    A("v_mov_b32 v5, 68")
    A(f"{lp}:")
    A(f"buffer_load_dword v4, v5, {s(DB, 4)}, 0 offen sc1")
    poll_guard(A)
    vm.drain()
    A(f"v_readfirstlane_b32 s34, v4\ns_and_b32 s35, s34, 0xff\ns_cmp_eq_u32 s35, {N_CHAIN}\ns_cbranch_scc0 {lp}")
    mark(A, opts, 1)
    dbg_time(A, opts, 5, 16)
    if lab:
        A(f"s_waitcnt lgkmcnt(0)\ns_lshr_b32 s34, s34, 8\ns_cmp_eq_u32 s34, 0\ns_cbranch_scc0 {lab}")


def gather_addr(A, ga0, ga1):
    A(f"s_mul_i32 s33, {s(S_W)}, {112 * 16}\nv_add_u32 {v(ga0)}, s33, v3")
    A(f"v_min_u32 {v(ga1)}, 47, v0\nv_lshlrev_b32 {v(ga1)}, 4, {v(ga1)}\ns_add_u32 s33, s33, 1024\nv_add_u32 {v(ga1)}, s33, {v(ga1)}")


def mem_loads(A, G, ga0, ga1, scm):
    A(f"buffer_load_dwordx4 {v(G, 4)}, {v(ga0)}, {s(WS, 4)}, {s(scm)} offen sc1")
    A(f"buffer_load_dwordx4 {v(G + 4, 4)}, {v(ga1)}, {s(WS, 4)}, {s(scm)} offen sc1")


def check8(A, G, t):
    A(f"v_max3_u32 {v(t)}, {v(G)}, {v(G + 1)}, {v(G + 2)}\nv_max3_u32 {v(t + 1)}, {v(G + 3)}, {v(G + 4)}, {v(G + 5)}")
    A(f"v_max3_u32 {v(t)}, {v(t)}, {v(G + 6)}, {v(G + 7)}\nv_max_u32 {v(t)}, {v(t)}, {v(t + 1)}\nv_cmp_eq_u32 vcc, -1, {v(t)}")


def gather_mem(A, opts, G0, G1, ga0, ga1, scm, t, memb, shadow, ka=""):
    lp, ok = A.new("poll"), A.new("ok")
    mem_loads(A, G0, ga0, ga1, scm)
    for x in shadow:
        A(x)
    A(f"{lp}:")
    for cur, other in ((G0, G1), (G1, G0)):
        mem_loads(A, other, ga0, ga1, scm)
        poll_guard(A)
        A(ka)
        A("s_waitcnt vmcnt(2)")
        A(f"ds_write_b128 {v(ga0)}, {v(cur, 4)} offset:{memb}\nds_write_b128 {v(ga1)}, {v(cur + 4, 4)} offset:{memb}")
        check8(A, cur, t)
        if opts.get("solo"):
            A(f"s_cbranch_vccz {ok}\ns_branch {ok}")
        A(f"s_cbranch_vccz {ok}" if cur == G0 else f"s_cbranch_vccnz {lp}")
    A(f"{ok}:")
    stamp(A, opts, 0)
    A("s_waitcnt lgkmcnt(0)\ns_barrier")


def notice_wait(A, opts, F, fa, sreg, off, shadow, sstep=None):
    if opts.get("solo"):
        for x in shadow:
            A(x)
        return
    depth = opts.get("nd", 3)
    lp, ok = A.new("nw"), A.new("nok")
    ld = lambda k: A(f"buffer_load_dword {v(F + k)}, {v(fa)}, {s(WS, 4)}, {s(sreg)} offen offset:{off} sc1")
    for k in range(depth - 1):
        ld(k)
    for x in shadow:
        A(x)
    if sstep is not None:
        A(f"s_cmp_eq_u32 {s(sstep)}, 0\ns_cbranch_scc1 {ok}")
    A(f"{lp}:")
    poll_guard(A)
    for k in range(depth):
        ld((k + depth - 1) % depth)
        A(f"s_waitcnt vmcnt({depth - 1})\nv_cmp_ne_u32 vcc, {s(S_NONCE)}, {v(F + k)}")
        A(f"s_cbranch_vccz {ok}" if k < depth - 1 else f"s_cbranch_vccnz {lp}")
    A(f"{ok}:")


def fetch_mem(A, opts, G, ga0, ga1, scm, t, memb, ka=""):
    lp = A.new("fm")
    A(f"{lp}:")
    mem_loads(A, G, ga0, ga1, scm)
    poll_guard(A)
    A(ka)
    A("s_waitcnt vmcnt(0)")
    A(f"ds_write_b128 {v(ga0)}, {v(G, 4)} offset:{memb}\nds_write_b128 {v(ga1)}, {v(G + 4, 4)} offset:{memb}")
    check8(A, G, t)
    if opts.get("stamps"):
        A("s_add_u32 s53, s53, 1")
    if not opts.get("solo"):
        A(f"s_cbranch_vccnz {lp}")
    stamp(A, opts, 0)
    A("s_waitcnt lgkmcnt(0)\ns_barrier")


def notice(A, val, addr, sreg, off, sc):
    A(f"buffer_store_dword {v(val)}, {v(addr)}, {s(WS, 4)}, {s(sreg)} offen offset:{off}{sc}")


def idx_reg(A, r):
    A(f"v_mov_b32 {v(r)}, 0x44444444\nv_mov_b32 v4, 0xeeeeeeee\nv_cmp_gt_u32 vcc, 8, v1\nv_cndmask_b32 {v(r)}, v4, {v(r)}, vcc")


def zero(r, n):
    return [f"v_mov_b64 {v(r + 2 * k, 2)}, 0" for k in range(n // 2)]


def emit_stream(A, stream, fill):
    for i, m_ in enumerate(stream):
        m_() if callable(m_) else A(m_)
        items = fill.get(i, [])
        for x in items:
            x() if callable(x) else A(x)
        if not items and i + 1 < len(stream):
            A("s_nop 1")


def gen_chain_a(A, opts):
    MEM, ACC, KEY, TSP, SC, PK, IDX = 4, 32, 60, 84, 92, 104, 108
    CK, PFA, SR2, FA, MK, MK3, TW0, TW1, TWS, TR0, TR1 = range(109, 120)
    XR, SW, SR, PX, PM = 0, 1, 2, 106, 107
    T = 104
    REG = 32768
    XK, TB, SB, MEMB = 0, 16384, 20480, 24576
    sS, sCM, sCP, sXA, sXB, sM0, sP0, sODD, sREG, sEF, sYP, sMB, sQ = 44, 45, 46, 47, 48, 49, 50, 51, 52, 54, 55, 56, 57
    vm = Cnt(A, "vmcnt", 63)
    A(f"s_and_b32 {s(sODD)}, {s(S_W)}, 1\ns_mul_i32 s33, {s(S_W)}, 7\ns_add_u32 {s(sP0)}, s33, {s(sODD)}\ns_lshr_b32 {s(sP0)}, {s(sP0)}, 1")
    A(f"s_lshl_b32 {s(sREG)}, {s(S_W)}, 15\ns_mov_b32 {s(sM0)}, {s(sREG)}")
    A(f"s_lshl_b32 {s(sXA)}, {s(sP0)}, 10\ns_add_u32 {s(sXA)}, {s(sXA)}, {XS}\ns_lshl_b32 s33, {s(sODD)}, 12\ns_sub_u32 {s(sXB)}, {s(sXA)}, s33")

    def dma(k):
        aa, b = k // 4, k % 4
        pre = f"s_add_u32 s33, {s(sM0)}, {aa * 4096}\ns_mov_b32 m0, s33\n" if b == 0 else ""
        if b in (0, 3):
            pre += f"s_add_u32 s34, {s(sXB if b == 3 else sXA)}, {aa * 14336}\n"
        return pre + f"buffer_load_dwordx4 v3, {s(WS, 4)}, s34 offen offset:{b * 1024} sc1 lds"

    A(f"s_mul_i32 s34, {s(S_ID)}, {FRAG_H}\ns_mul_i32 s33, {s(S_W)}, {7 * 14 * KB}\ns_add_u32 s34, s34, s33")
    if AF:
        A(f"s_add_u32 s34, s34, {AF}")
    A(f"s_mul_i32 s35, {s(sODD)}, {14 * KB}\ns_add_u32 s35, s35, s34\ns_add_u32 s36, s34, {6 * 14 * KB}\ns_cmp_eq_u32 {s(sODD)}, 0\ns_cselect_b32 s36, s36, s34")
    A(f"s_mul_i32 s33, {s(S_ID)}, 7\nv_min_u32 v4, 6, v0\nv_add_u32 v4, s33, v4")

    def piece(kk):
        frag_loads(A, 35, [((i * 7 + kk) * 8 + 4 * u, i * 14 * KB + (2 * kk + u) * KB) for i in range(6) for u in range(2)])
        frag_loads(A, 36, [((42 + kk) * 8 + 4 * u, (2 * kk + u) * KB) for u in range(2)])

    load_pieces(A, [(14, lambda kk=kk: piece(kk)) for kk in range(7)], 4)
    wait_prep(A, True)
    for k in range(8):
        A(dma(k))
    A(f"s_lshl_b32 {s(sQ)}, {s(S_W)}, 11\ns_add_u32 {s(sMB)}, {s(sQ)}, {MEMB}\ns_add_u32 {s(sQ)}, {s(sQ)}, {CM}")
    idx_reg(A, IDX)
    A(f"v_and_b32 v4, 7, v1\nv_lshlrev_b32 v4, 4, v4\nv_lshl_add_u32 v4, v2, 7, v4\ns_lshl_b32 s33, {s(sP0)}, 9\nv_add_u32 {v(MK)}, s33, v4")
    A(f"s_lshl_b32 s34, {s(sODD)}, 11\ns_sub_u32 s34, 1536, s34\nv_add_u32 {v(MK3)}, s34, {v(MK)}")
    A(f"v_lshrrev_b32 v4, 1, v2\nv_lshlrev_b32 v4, 3, v4\nv_xor_b32 v4, v4, v1\nv_lshlrev_b32 v4, 3, v4\nv_lshl_add_u32 v4, v2, 7, v4")
    A(f"v_add_u32 {v(TW0)}, {s(sREG)}, v4\nv_xor_b32 {v(TW1)}, 32, {v(TW0)}\nv_add_u32 {v(TW1)}, 512, {v(TW1)}")
    A(f"s_cmp_eq_u32 {s(sODD)}, 0\ns_cselect_b64 vcc, -1, 0\nv_cndmask_b32 {v(TWS)}, {v(TW1)}, {v(TW0)}, vcc")
    A("v_lshrrev_b32 v4, 2, v1\nv_and_b32 v5, 3, v1")
    A("v_lshrrev_b32 v6, 1, v2\nv_lshrrev_b32 v7, 1, v5\nv_xor_b32 v6, v6, v7\nv_lshlrev_b32 v6, 3, v6")
    A("v_and_b32 v7, 1, v2\nv_lshl_add_u32 v6, v7, 1, v6\nv_and_b32 v7, 1, v4\nv_add_u32 v6, v6, v7")
    A("v_lshrrev_b32 v7, 1, v4\nv_lshl_add_u32 v6, v7, 2, v6\nv_lshlrev_b32 v6, 3, v6\nv_lshl_add_u32 v6, v7, 9, v6\nv_lshl_add_u32 v6, v5, 7, v6")
    A(f"v_add_u32 {v(TR0)}, {s(sREG)}, v6\nv_xor_b32 {v(TR1)}, 32, {v(TR0)}")
    A(f"v_add_u32 v12, {s(sREG)}, v3")
    for r in range(4):
        A(f"v_mov_b32 {v(8 + r)}, 0")
    A(f"ds_write_b128 v12, v[8:11] offset:{TB + 3072}")
    A(f"s_lshl_b32 s33, {s(sODD)}, 2\nv_add_u32 v4, s33, v2")
    A("v_bfe_u32 v5, v1, 2, 1\nv_lshlrev_b32 v5, 5, v5\nv_and_b32 v6, 1, v1\nv_lshl_add_u32 v5, v6, 4, v5\nv_bfe_u32 v6, v1, 1, 1\nv_lshl_add_u32 v5, v6, 3, v5\nv_lshrrev_b32 v6, 3, v1\nv_lshl_add_u32 v5, v6, 2, v5")
    A(f"v_lshl_add_u32 {v(PX)}, v4, 6, v5")
    A(f"v_lshlrev_b32 v4, 4, v4\nv_lshl_add_u32 v4, v1, 1, v4\nv_add_u32 v4, 512, v4\nv_and_b32 v5, 9, v1\nv_cmp_eq_u32 vcc, 0, v5\nv_mov_b32 v5, {OOB}\nv_cndmask_b32 {v(PM)}, v5, v4, vcc")
    A(f"v_lshrrev_b32 v4, 1, v2\nv_lshlrev_b32 v4, 5, v4\nv_add_u32 v4, v4, v1\ns_lshl_b32 s33, {s(sODD)}, 4\nv_add_u32 v4, s33, v4\nv_lshlrev_b32 v4, 3, v4")
    A(f"v_and_b32 v5, 1, v2\nv_lshl_add_u32 v4, v5, 2, v4\nv_add_u32 v13, {SB}, v4\nv_lshlrev_b32 v14, 3, v0\nv_add_u32 v14, {s(sREG)}, v14")
    A(f"v_min_u32 {v(FA)}, {55 if opts.get('pw', 1) else 13}, v0\nv_lshlrev_b32 {v(FA)}, 2, {v(FA)}\ns_lshl_b32 s33, {s(S_ID)}, 8\nv_add_u32 {v(FA)}, s33, {v(FA)}\ns_mov_b32 {s(sEF)}, {EF}\ns_mov_b32 s53, 0")
    chunk_pos(A, 12, 1, 2, 4)
    A(f"v_add_u32 v12, {s(sREG)}, v12")
    A(f"v_mov_b32 {v(XR)}, v12\nv_mov_b32 {v(SW)}, v14\nv_mov_b32 {v(SR)}, v13\nv_add_u32 {v(SR2)}, {2 * REG}, v13")
    A(f"s_mov_b32 {s(sS)}, 0\ns_mov_b32 {s(sCM)}, {CM}\ns_mul_i32 {s(sCP)}, {s(S_ID)}, 640\ns_add_u32 {s(sCP)}, {s(sCP)}, {CP}")
    A(f"v_lshlrev_b32 {v(PFA)}, 3, v3")
    ahead = opts.get("yah", 1)
    A(f"s_mul_i32 {s(sYP)}, {s(S_ID)}, {28 * KB}\ns_mul_i32 s33, {s(S_W)}, {7 * KB}\ns_add_u32 {s(sYP)}, {s(sYP)}, s33\ns_add_u32 {s(sYP)}, {s(sYP)}, {YF + ahead * 16 * 28 * KB}")
    slow = A.new("a_slow")
    chain_mode(A, opts, vm, slow)
    ka = lambda n, r=ACC: "".join(f"{MF} {v(r, 4)}, {v(TSP, 4)}, {v(TSP, 4)}, {v(r, 4)}\n" for _ in range(n))

    def loop(sc):
        top, nxt, done, lp, ok, idle = (A.new(x) for x in ("a_top", "a_next", "a_done", "a_poll", "a_ok", "a_idle"))
        redo = A.new("a_redo")
        G0, G1 = KEY, KEY + 8
        A(f"{top}:")
        notice_wait(A, opts, G1, FA, sEF, 0, zero(ACC, 28) + [f"s_mov_b32 m0, {s(sMB)}"], sS)
        if opts.get("nst"):
            stamp(A, opts, 1)
        fetch = f"buffer_load_dwordx4 v3, {s(WS, 4)}, {s(sQ)} offen sc1 lds\nbuffer_load_dwordx4 v3, {s(WS, 4)}, {s(sQ)} offen offset:1024 sc1 lds"
        A(fetch)
        A(f"{lp}:")
        if opts.get("stamps"):
            A("s_add_u32 s53, s53, 1")
        A("s_waitcnt vmcnt(0)")
        stamp(A, opts, 0)
        A("s_barrier")
        if not opts.get("nst"):
            stamp(A, opts, 1)
        lg = Cnt(A, "lgkmcnt", 15)
        for kk in range(7):
            lg.op(f"ds_read_b128 {v(MEM + 4 * kk, 4)}, v3 offset:{MEMB + kk * 1024}", f"m{kk}")

        def tile(i):
            out = []
            for kk in range(7):
                txt = f"{SMF} {v(ACC + 4 * i, 4)}, {v(MEM + 4 * kk, 4)}, {wreg((i * 7 + kk) * 8, 8)}, {v(IDX)}" if not opts.get("noam") else "s_nop 2"
                out.append((lambda txt=txt, kk=kk: (lg.wait(f"m{kk}"), A(txt))) if i == 0 else txt)
            return out

        def score(b):
            out = []
            for tau in range(3):
                c = "0" if b == 0 else v(SC + 4 * tau, 4)
                txt = f"{MF} {v(SC + 4 * tau, 4)}, {v(TSP + 4 * (b % 2), 4)}, {v(KEY + 12 * (b % 2) + 4 * tau, 4)}, {c}"
                out.append((lambda txt=txt: (lg.wait(f"tr{b}", f"k{b}"), A(txt))) if tau == 0 else txt)
            return out

        def keys(b):
            K = KEY + 12 * (b % 2)
            out = [lambda aa=aa: lg.op(f"ds_read_b128 {v(K + 4 * aa, 4)}, {v(XR)} offset:{XK + aa * 4096 + b * 1024}", f"k{b}") for aa in range(2)]
            reg, o = (MK3, 0) if b == 3 else (MK, b * 512)
            out.append(lambda: lg.op(f"ds_read_b128 {v(K + 8, 4)}, {v(reg)} offset:{MEMB + o}", f"k{b}"))
            return out

        def epi(i):
            D = ACC + 4 * i
            addr, off = (TWS, 3072) if i == 6 else ((TW0, TW1)[i % 2], (i // 2) * 1024)
            return [f"v_cvt_pk_bf16_f32 {v(PK)}, {v(D)}, {v(D + 1)}", f"v_cvt_pk_bf16_f32 {v(PK + 1)}, {v(D + 2)}, {v(D + 3)}",
                    lambda: lg.op(f"ds_write_b64 {v(addr)}, {v(PK, 2)} offset:{TB + off}", f"t{i}")]

        def trs(b):
            return [lambda x=x: lg.op(f"ds_read_b64_tr_b16 {v(TSP + 4 * (b % 2) + 2 * x, 2)}, {v((TR0, TR1)[x])} offset:{TB + b * 1024}", f"tr{b}") for x in range(2)]

        stream = tile(0) + tile(1) + tile(2) + tile(3) + score(0) + tile(4) + tile(5) + score(1) + tile(6) + score(2)
        fill = {}

        def put(g, items):
            for k, it in enumerate(items):
                assert g + k not in fill, g + k
                fill[g + k] = [it]

        for k in range(opts.get("apf", 1)):
            pre = f"s_add_u32 s33, {s(sREG)}, 31744\ns_mov_b32 m0, s33\ns_nop 0\n" if k == 0 else ""
            (put if opts.get("pfg", 1) >= 0 else lambda g, x: A(x[0]))(opts.get("pfg", 1) + 3 * k, [pre + f"buffer_load_dword {v(PFA)}, {s(WS, 4)}, {s(sYP)} offen offset:{128 // opts.get('apf', 1) * k} sc1 lds"])
        put(7, keys(0))
        put(11, epi(0))
        put(15, keys(1))
        put(18, epi(1))
        put(21, trs(0))
        put(25, epi(2))
        k2 = keys(2)
        put(31, k2[:1])
        put(32, epi(3))
        put(35, trs(1))
        put(38, k2[1:])
        put(41, epi(4))
        put(47, epi(5))
        put(50, trs(2))
        put(52, keys(3))
        br = "s_nop 0" if opts.get("solo") else f"s_cbranch_vccnz {redo}"
        mx = lambda x, y, z: f"v_max3_u32 {v(CK)}, {v(x)}, {v(y)}, {v(z)}"
        cmpi = f"v_cmp_eq_u32 vcc, -1, {v(CK)}"
        for g, x in zip((2, 4, 6, 10), (mx(MEM, MEM + 4, MEM + 8), mx(CK, MEM + 12, MEM + 16), mx(CK, MEM + 20, MEM + 24), cmpi)):
            put(g, [x])
        fill[12].append(br)
        rest = [MEM + r for r in range(28) if r % 4]
        late = [mx(*rest[:3])] + [mx(CK, rest[r], rest[r + 1]) for r in range(3, 21, 2)] + [cmpi]
        for g, x in zip((14, 23, 24, 28, 29, 30, 37, 40, 44, 45, 46), late):
            put(g, [x])
        fill[49].append(br)
        emit_stream(A, stream, fill)
        stamp(A, opts, 2)
        for x in epi(6) + trs(3):
            x() if callable(x) else A(x)
        if opts.get("ka_tr"):
            A(ka(opts["ka_tr"]))
        for x in score(3):
            x() if callable(x) else A(x)
            A("s_nop 1")
        X = MEM
        A(f"s_cmp_ge_u32 {s(S_W)}, 2")
        for tau in range(3):
            D = SC + 4 * tau
            A(f"v_permlane32_swap_b32 {v(D)}, {v(D + 2)}\nv_permlane32_swap_b32 {v(D + 1)}, {v(D + 3)}")
            if opts.get("pk", 1):
                A(f"v_pk_add_f32 {v(X + 2 * tau, 2)}, {v(D, 2)}, {v(D + 2, 2)}")
            else:
                A(f"v_add_f32 {v(X + 2 * tau)}, {v(D)}, {v(D + 2)}\nv_add_f32 {v(X + 2 * tau + 1)}, {v(D + 1)}, {v(D + 3)}")
            A(f"ds_write_b64 {v(SW)}, {v(X + 2 * tau, 2)} offset:{SB + 512 * tau}")
        if opts.get("ka_x"):
            A(ka(opts["ka_x"]))
        A("s_waitcnt lgkmcnt(0)\ns_barrier")
        stamp(A, opts, 3)
        A(f"s_cbranch_scc1 {idle}")
        R = MEM + 8
        for tau in range(3):
            A(f"ds_read2st64_b32 {v(R + 4 + 4 * tau, 2)}, {v(SR)} offset0:{2 * tau} offset1:{2 * tau + 128}")
            A(f"ds_read2st64_b32 {v(R + 6 + 4 * tau, 2)}, {v(SR2)} offset0:{2 * tau} offset1:{2 * tau + 128}")
        for tau in range(3):
            A(f"s_waitcnt lgkmcnt({4 - 2 * tau})")
            A(f"v_pk_add_f32 {v(R + 4 + 4 * tau, 2)}, {v(R + 4 + 4 * tau, 2)}, {v(R + 6 + 4 * tau, 2)}")
            A(f"v_add_f32 {v(R + tau)}, {v(R + 4 + 4 * tau)}, {v(R + 5 + 4 * tau)}")
        mx, sm = T, T + 1
        A(f"v_max3_f32 {v(mx)}, {v(R)}, {v(R + 1)}, {v(R + 2)}")
        for rot in (8, 4, 2, 1):
            A(f"v_max_f32_dpp {v(mx)}, {v(mx)}, {v(mx)} row_ror:{rot} row_mask:0xf bank_mask:0xf")
        for tau in (2, 0, 1):
            A(f"v_sub_f32 {v(R + tau)}, {v(R + tau)}, {v(mx)}")
        for tau in (2, 0, 1):
            A(f"v_exp_f32 {v(R + tau)}, {v(R + tau)}")
        A(f"v_fma_f32 {v(sm)}, 0.5, {v(R + 2)}, {v(R)}")
        A(f"v_mov_b32_dpp {v(R + 3)}, {v(R + 2)} quad_perm:[1,0,3,2] row_mask:0xf bank_mask:0xf")
        A(f"v_add_f32 {v(sm)}, {v(sm)}, {v(R + 1)}")
        for rot in (8, 4, 2, 1):
            A(f"v_add_f32_dpp {v(sm)}, {v(sm)}, {v(sm)} row_ror:{rot} row_mask:0xf bank_mask:0xf")
        A(f"v_rcp_f32 {v(sm)}, {v(sm)}")
        for k, addr in ((0, PX), (2, PM)):
            A(f"v_mul_f32 {v(R + k)}, {v(R + k)}, {v(sm)}\nv_mul_f32 {v(R + k + 1)}, {v(R + k + 1)}, {v(sm)}")
            A(f"v_cvt_pk_bf16_f32 {v(R + k)}, {v(R + k)}, {v(R + k + 1)}\nv_min_u32 {v(R + k)}, -2, {v(R + k)}")
            A(f"buffer_store_dword {v(R + k)}, {v(addr)}, {s(WS, 4)}, {s(sCP)} offen{sc}")
        A(f"{nxt}:")
        stamp(A, opts, 4)
        collect_lds(A, opts, sREG, 22528, T)
        A(f"s_add_u32 {s(sS)}, {s(sS)}, 1\ns_add_u32 {s(sQ)}, {s(sQ)}, {0 if opts.get('solo') else 8192}\ns_add_u32 {s(sCP)}, {s(sCP)}, {0 if opts.get('solo') else 10240}")
        adv = 0 if opts.get("solo") else EF_STEP
        A(f"s_add_u32 {s(sEF)}, {s(sEF)}, {adv}\ns_add_u32 {s(sXA)}, {s(sXA)}, {28 * KB}\ns_add_u32 {s(sXB)}, {s(sXB)}, {28 * KB}\ns_add_u32 {s(sYP)}, {s(sYP)}, {16 * 28 * KB}")
        A("s_barrier")
        if not opts.get("nodma"):
            for k in range(8):
                A(dma(k))
        A(f"s_cmp_eq_u32 {s(sS)}, 63\ns_cbranch_scc0 {top}")
        A("s_waitcnt vmcnt(0)")
        A("s_mov_b32 s84, s53" if opts.get("stamps") else "")
        fetch_lds(A, opts, sREG, 22528, 10)
        flush_stamps(A, opts, 10)
        A("s_endpgm")
        A(f"{redo}:\ns_mov_b32 m0, {s(sMB)}\ns_waitcnt lgkmcnt(0)\ns_barrier")
        A(fetch)
        poll_guard(A)
        for x in zero(ACC, 28):
            A(x)
        A(f"s_branch {lp}")
        A(f"{idle}:")
        A(f"v_lshrrev_b32 {v(T + 1)}, 4, v3\nv_min_u32 {v(T + 1)}, 13, {v(T + 1)}\ns_lshl_b32 s33, {s(S_ID)}, 2\ns_add_u32 s33, s33, {EF_P}")
        A(f"v_lshl_add_u32 {v(T + 1)}, {v(T + 1)}, 7, s33\nv_mov_b32 {v(T)}, {s(S_NONCE)}")
        A(ka(opts.get("la", 6)))
        w3 = A.new("a_w3")
        A(f"s_cmp_eq_u32 {s(S_W)}, 2\ns_cbranch_scc0 {w3}")
        notice(A, T, T + 1, sEF, 0, sc)
        A(f"s_branch {nxt}\n{w3}:")
        A(ka(opts.get("ka_sm", 0)))
        A(f"s_branch {nxt}")

    loop("")
    A(f"{slow}:")
    loop(" sc1")


def gen_chain_b(A, opts):
    MEM, ZACC, ZOP, Y, OACC, IDX = 4, 32, 60, 76, 108, 132
    GA0, GA1, PXA, PMA, RW, RR0, RR1, MO, WR, FA, FV = range(133, 144)
    FM, NZ, NA, FP = 128, 129, 130, 131
    T, WST, V0 = 116, 144, 176
    RED, WL = 8192, 12288
    sS, sCM, sCP, sY, sEF, sC, sFY = 44, 45, 46, 47, 48, 50, 51
    vm = Cnt(A, "vmcnt", 63)
    A(f"s_sub_u32 {s(sC)}, {s(S_ID)}, 16")
    A(f"s_mul_i32 s34, {s(S_W)}, {4 * FRAG_H}\ns_mul_i32 s33, {s(sC)}, {28 * KB}\ns_add_u32 s34, s34, s33\ns_add_u32 s34, s34, {BF}")
    A(f"s_mul_i32 s36, {s(S_W)}, {28 * KB}\ns_add_u32 s36, s36, {WL}\nv_add_u32 {v(WR)}, s36, v3\ns_add_u32 s37, s34, {3 * FRAG_H}")
    A(f"s_mul_i32 s33, {s(S_W)}, 28\ns_lshr_b32 s35, {s(sC)}, 1\ns_add_u32 s33, s33, s35\ns_add_u32 s33, s33, 112\nv_and_b32 v4, 3, v0\nv_mul_u32_u24 v4, 7, v4\nv_add_u32 v4, s33, v4")

    def piece(hh):
        if hh < 3:
            frag_loads(A, 34, [((hh * 28 + k) * 4, hh * FRAG_H + k * KB) for k in range(28)], v0=V0)
            return
        for q in range(7):
            A("s_mov_b32 m0, s36\ns_add_u32 s36, s36, 4096")
            for k in range(4):
                A(f"buffer_load_dwordx4 v3, {s(WS, 4)}, s37 offen offset:{k * 1024} sc1 lds")
            A("s_add_u32 s37, s37, 4096")

    load_pieces(A, [(28, lambda hh=hh: piece(hh)) for hh in range(4)], 4)
    wait_prep(A, True)
    gather_addr(A, GA0, GA1)
    idx_reg(A, IDX)
    A("v_and_b32 v4, 7, v1\nv_lshrrev_b32 v5, 3, v1\nv_lshrrev_b32 v6, 1, v2\nv_and_b32 v7, 1, v2")
    A(f"s_mul_i32 s33, {s(S_W)}, 2560")
    A(f"v_mul_u32_u24 v8, 640, v6\nv_lshl_add_u32 v8, v4, 6, v8\nv_lshl_add_u32 v8, v7, 5, v8\nv_lshl_add_u32 v8, v5, 4, v8\nv_add_u32 {v(PXA)}, s33, v8")
    A(f"v_lshl_add_u32 v8, v6, 1, v5\nv_mul_u32_u24 v8, 640, v8\nv_lshl_add_u32 v8, v4, 4, v8\ns_add_u32 s33, s33, 512\nv_add_u32 {v(PMA)}, s33, v8")
    A(f"v_lshl_add_u32 v8, v6, 1, v7\nv_xor_b32 v8, v0, v8\nv_lshlrev_b32 v8, 4, v8\ns_lshl_b32 s33, {s(S_W)}, 10\ns_add_u32 s33, s33, {RED}\nv_add_u32 {v(RW)}, s33, v8")
    A("v_lshrrev_b32 v4, 5, v0\nv_bfe_u32 v5, v0, 2, 3\nv_and_b32 v6, 3, v0")
    A("v_and_b32 v7, 1, v6\nv_lshrrev_b32 v8, 2, v5")
    A(f"v_lshlrev_b32 v9, 5, v7\nv_lshl_add_u32 v9, v8, 4, v9\ns_and_b32 s33, {s(S_W)}, 1\ns_lshl_b32 s33, s33, 3\nv_add_u32 v9, s33, v9")
    A("v_lshrrev_b32 v10, 1, v6\nv_lshl_add_u32 v9, v10, 2, v9\nv_lshl_add_u32 v9, v4, 1, v9")
    A("v_lshl_add_u32 v10, v7, 1, v8\nv_xor_b32 v9, v9, v10\nv_lshlrev_b32 v9, 4, v9\nv_and_b32 v10, 3, v5\nv_lshl_add_u32 v9, v10, 2, v9")
    A(f"v_add_u32 {v(RR0)}, {RED}, v9\nv_xor_b32 {v(RR1)}, 16, {v(RR0)}")
    A(f"s_lshl_b32 s33, {s(sC)}, 9\ns_and_b32 s35, {s(S_W)}, 1\ns_lshl_b32 s35, s35, 8\ns_add_u32 s33, s33, s35\nv_lshl_add_u32 {v(MO)}, v0, 2, s33")
    A(f"v_lshlrev_b32 {v(FA)}, 7, v1\nv_mov_b32 {v(FV)}, 0")
    A(f"s_mov_b32 {s(sS)}, 0\ns_mov_b32 {s(sCM)}, {CM}\ns_mov_b32 {s(sCP)}, {CP}")
    A(f"s_mul_i32 s33, {s(S_W)}, {4 * 28 * KB}\ns_lshl_b32 s35, {s(sC)}, 11\ns_add_u32 {s(sY)}, s33, s35\ns_add_u32 {s(sY)}, {s(sY)}, {YF}")
    A(f"s_mov_b32 {s(sFY)}, {FY}\ns_mov_b32 {s(sEF)}, {EF}\ns_mov_b32 s53, 0\ns_mov_b32 s55, 0")
    pw = opts.get("pw", 1)
    A(f"v_min_u32 {v(FM)}, {55 if pw else 13}, v0\nv_lshlrev_b32 {v(FM)}, 2, {v(FM)}\ns_lshl_b32 s33, {s(S_ID)}, 8\nv_add_u32 {v(FM)}, s33, {v(FM)}")
    A(f"s_lshl_b32 s33, {s(sC)}, 7\ns_add_u32 s33, s33, {EF_P}\nv_min_u32 {v(FP)}, 16, v0\nv_lshl_add_u32 {v(FP)}, {v(FP)}, 2, s33")
    if pw:
        A(f"s_lshl_b32 s33, {s(sC)}, 2\ns_add_u32 s33, s33, {s(S_W)}\ns_lshl_b32 s33, s33, 2")
    else:
        A(f"s_lshl_b32 s33, {s(sC)}, 2")
    A(f"s_add_u32 s33, s33, {EF_STEP}\nv_min_u32 {v(NA)}, {29 if opts.get('ndb') else 15}, v0\nv_lshl_add_u32 {v(NA)}, {v(NA)}, 8, s33\nv_mov_b32 {v(NZ)}, {s(S_NONCE)}")
    slow = A.new("b_slow")
    chain_mode(A, opts, vm, slow)
    ka = lambda n: "".join(f"{MF} {v(ZACC + 8, 4)}, {v(ZOP, 4)}, {v(ZOP, 4)}, {v(ZACC + 8, 4)}\n" for _ in range(n))

    def loop(sc):
        top, nxt, last, noy, yok, ypoll, noflag, gm, gp, idle, noz = (A.new("b_" + x) for x in ("top", "next", "last", "noy", "yok", "ypoll", "nofl", "gm", "gp", "idle", "noz"))
        A(f"{top}:")
        if opts.get("ndb", 1):
            notice_wait(A, dict(opts, nd=opts.get('ndb', 1)), WST + 8, FM, sEF, 0, zero(ZACC, 28) + zero(OACC, 8), sS)
        else:
            for x in zero(ZACC, 28) + zero(OACC, 8):
                A(x)
        fetch_mem(A, dict(opts, stamps=0) if opts.get('nst') else opts, WST, GA0, GA1, sCM, T, 0)
        lg = Cnt(A, "lgkmcnt", 15)
        for kk in range(7):
            lg.op(f"ds_read_b128 {v(MEM + 4 * kk, 4)}, v3 offset:{kk * 1024}", f"m{kk}")
        A(f"s_cmp_eq_u32 {s(sS)}, 0\ns_cbranch_scc0 {yok}")
        A(f"{ypoll}:")
        A(f"buffer_load_dword {v(FV)}, {v(FA)}, {s(WS, 4)}, {s(sFY)} offen sc1")
        poll_guard(A)
        A(f"s_waitcnt vmcnt(0)\nv_cmp_ne_u32 vcc, {s(S_NONCE)}, {v(FV)}\ns_cbranch_vccnz {ypoll}")
        A(f"{yok}:")
        bulk = []
        for hh in range(4):
            for vv in range(0 if opts.get("noy") else 2):
                pre = f"s_add_u32 s33, {s(sY)}, {hh * 28 * KB}\n" if vv == 0 else ""
                bulk.append(pre + f"buffer_load_dwordx4 {v(Y + 16 * (hh // 2) + 8 * vv + 4 * (hh % 2), 4)}, v3, {s(WS, 4)}, s33 offen offset:{vv * 1024} {'nt' if opts.get('ynt') == 1 else 'sc1 nt' if opts.get('ynt') else 'sc1'}")
        order = []
        regs = [(t, kk) for t in range(6) for kk in range(7)]
        for n in range(14):
            order += regs[3 * n:3 * n + 3] + [(6 + n // 7, n % 7)]
        accof = lambda t: ZACC + 4 * (t if t < 7 else 0)
        stream, pos, seen = [], {}, set()
        for t, kk in order:
            pos[(t, kk)] = len(stream)
            n = (t - 6) * 7 + kk
            w = wreg((t * 7 + kk) * 8, 8, 256, V0) if t < 6 else v(WST + 8 * (n % 4), 8)
            txt = f"{SMF} {v(accof(t), 4)}, {v(MEM + 4 * kk, 4)}, {w}, {v(IDX)}" if not opts.get("nozm") else "s_nop 2"
            tags = ([f"m{kk}"] if kk not in seen else []) + ([f"w{n}"] if t >= 6 else [])
            seen.add(kk)
            stream.append((lambda txt=txt, tags=tags: (lg.wait(*tags), A(txt))) if tags else txt)

        def wread(n):
            return [lambda u=u: lg.op(f"ds_read_b128 {v(WST + 8 * (n % 4) + 4 * u, 4)}, {v(WR)} offset:{(n // 7) * 14 * KB + (2 * (n % 7) + u) * KB}", f"w{n}") for u in range(2)]

        def epi(t):
            hh, vv = t // 2, t % 2
            D = accof(t)
            out = [f"v_cvt_pk_bf16_f32 {v(ZOP + 8 * vv + 4 * (hh // 2) + 2 * b + hh % 2)}, {v(D + 2 * b)}, {v(D + 2 * b + 1)}" for b in range(2)]
            return out + (zero(D, 4) if t == 0 else [])

        y = bulk + ["s_nop 0"] * (8 - len(bulk))
        for x in wread(0) + wread(1):
            x()
        npre = opts.get("ypre", 2)
        for x in y[:npre]:
            A(x)
        fill = {}
        for n in range(2, 14):
            spread(fill, 4 * (n - 2), wread(n), per=1)
        g = 2
        for x in y[npre:]:
            while g in fill:
                g += 1
            fill[g] = [x]
            g += opts.get("ygap", 1)
        late = []
        for t in sorted(range(8), key=lambda t: pos[(t, 6)]):
            g = pos[(t, 6)] + 4
            for x in epi(t):
                while g in fill:
                    g += 1
                if g < len(stream):
                    fill[g] = [x]
                    assert t != 0 or g < pos[(7, 0)] - 1
                else:
                    late.append(x)
        emit_stream(A, stream, fill)
        for x in late:
            A(x)
        if not opts.get("nst"):
            stamp(A, opts, 1)

        def p_loads(P):
            A(f"buffer_load_dwordx4 {v(P, 4)}, {v(PXA)}, {s(WS, 4)}, {s(sCP)} offen sc1")
            A(f"buffer_load_dwordx4 {v(P + 4, 4)}, {v(PXA)}, {s(WS, 4)}, {s(sCP)} offen offset:1280 sc1")
            A(f"buffer_load_dwordx4 {v(P + 8, 4)}, {v(PMA)}, {s(WS, 4)}, {s(sCP)} offen sc1")

        cur = MEM
        ok = A.new("b_ok")
        notice_wait(A, opts, MEM + 12, FP, sEF, 0, [])
        if opts.get("nst"):
            stamp(A, opts, 1)
        A(f"{gp}:")
        p_loads(cur)
        poll_guard(A)
        A(ka(opts.get("ka_p", 0)))
        if opts.get("stamps"):
            A("s_add_u32 s55, s55, 1")
        mx3 = lambda d, x, y, z: f"v_max3_u32 {v(d)}, {v(x)}, {v(y)}, {v(z)}"
        chk = ["s_nop 0", mx3(T, cur, cur + 1, cur + 2), mx3(T, T, cur + 3, cur + 4), mx3(T + 1, cur + 5, cur + 6, cur + 7), mx3(T + 2, cur + 8, cur + 9, cur + 10),
               mx3(T, T, T + 1, cur + 11) + f"\nv_max_u32 {v(T)}, {v(T)}, {v(T + 2)}\nv_cmp_eq_u32 vcc, -1, {v(T)}"]
        k = 0
        for kap in range(3):
            A(f"s_waitcnt vmcnt({2 - kap})")
            if kap == 0:
                stamp(A, opts, 2)
            for vv in range(2):
                b = v(Y + 16 * kap + 8 * vv, 8) if kap < 2 else v(ZOP + 8 * vv, 8)
                A(f"{SMF} {v(OACC + 4 * vv, 4)}, {v(cur + 4 * kap, 4)}, {b}, {v(IDX)}")
                if opts.get("lb") == 10 + k:
                    notice(A, NZ, NA, sEF, 0, sc)
                A(chk[k])
                k += 1
        A(f"s_cbranch_vccz {ok}")
        if opts.get("solo"):
            A(f"s_branch {ok}")
        for x in zero(OACC, 8):
            A(x)
        A(f"s_branch {gp}")
        A(f"{ok}:")
        lb = opts.get("lb", 2) if pw else -1
        if lb == 0:
            notice(A, NZ, NA, sEF, 0, sc)
        for q in range(4):
            A(f"v_permlane32_swap_b32 {v(OACC + q)}, {v(OACC + 4 + q)}")
        if lb == 1:
            notice(A, NZ, NA, sEF, 0, sc)
        for q in (0, 2):
            A(f"v_pk_add_f32 {v(OACC + q, 2)}, {v(OACC + q, 2)}, {v(OACC + 4 + q, 2)}")
        A(f"ds_write_b128 {v(RW)}, {v(OACC, 4)}")
        if 2 <= lb < 10:
            A(ka(lb - 2))
            notice(A, NZ, NA, sEF, 0, sc)
            if opts.get("nst"):
                stamp(A, opts, 0)
        A(f"s_add_u32 s33, {s(sCM)}, 8192\ns_cmp_ge_u32 {s(S_W)}, 2\ns_waitcnt lgkmcnt(0)\ns_barrier")
        stamp(A, opts, 3)
        A(f"s_cbranch_scc1 {idle}")
        R = ZACC
        if not pw:
            A(f"s_cmp_eq_u32 {s(S_W)}, 0\ns_cbranch_scc0 {noflag}")
            notice(A, NZ, NA, sEF, 0, sc)
            A(f"{noflag}:")
        A(f"ds_read2st64_b32 {v(R, 2)}, {v(RR0)} offset0:0 offset1:4\nds_read2st64_b32 {v(R + 4, 2)}, {v(RR0)} offset0:8 offset1:12")
        A(f"ds_read2st64_b32 {v(R + 2, 2)}, {v(RR1)} offset0:0 offset1:4\nds_read2st64_b32 {v(R + 6, 2)}, {v(RR1)} offset0:8 offset1:12")
        A("s_waitcnt lgkmcnt(2)")
        A(f"v_pk_add_f32 {v(R, 2)}, {v(R, 2)}, {v(R + 4, 2)}\nv_add_f32 {v(R)}, {v(R)}, {v(R + 1)}")
        A("s_waitcnt lgkmcnt(0)")
        A(f"v_pk_add_f32 {v(R + 2, 2)}, {v(R + 2, 2)}, {v(R + 6, 2)}\nv_add_f32 {v(R + 2)}, {v(R + 2)}, {v(R + 3)}")
        A(f"v_cvt_pk_bf16_f32 {v(R)}, {v(R)}, {v(R + 2)}\nv_min_u32 {v(R)}, -2, {v(R)}")
        A(f"buffer_store_dword {v(R)}, {v(MO)}, {s(WS, 4)}, s33 offen{sc}")
        A(f"{nxt}:")
        stamp(A, opts, 4)
        collect(A, opts, 120)
        A(f"s_add_u32 {s(sS)}, {s(sS)}, 1\ns_add_u32 {s(sCM)}, {s(sCM)}, {0 if opts.get('solo') else 8192}\ns_add_u32 {s(sCP)}, {s(sCP)}, {0 if opts.get('solo') else 10240}")
        A(f"s_add_u32 {s(sY)}, {s(sY)}, {16 * 28 * KB}\ns_add_u32 {s(sEF)}, {s(sEF)}, {0 if opts.get('solo') else EF_STEP}")
        A("s_barrier")
        A(f"s_cmp_eq_u32 {s(sS)}, 63\ns_cbranch_scc0 {top}")
        A("s_waitcnt vmcnt(0)")
        A("s_mov_b32 s84, s53\ns_mov_b32 s85, s55" if opts.get("stamps") else "")
        dbg_time(A, opts, 6, 16)
        flush_stamps(A, opts, 120)
        A("s_endpgm")
        A(f"{idle}:")
        A(ka(opts.get("ka_f", 0)))
        A(f"s_branch {nxt}")

    loop("")
    A(f"{slow}:")
    loop(" sc1")


def gen_chain_f(A, opts):
    G, GA0, GA1, T, WA = 4, 12, 13, 14, 20
    sS, sCM, sXM = 44, 45, 46
    wait_prep(A, True)
    gather_addr(A, GA0, GA1)
    A(f"s_lshl_b32 s33, {s(S_W)}, 10\nv_add_u32 {v(WA)}, s33, v3")

    def touch(base, stride, nbytes, ahead, last):
        A(f"s_add_u32 s33, {s(sS)}, {ahead}\ns_min_u32 s33, s33, {last}\ns_mul_i32 s33, s33, {stride}\ns_add_u32 s33, s33, {base}")
        for k in range(0, nbytes, 4096):
            A(f"buffer_load_dwordx4 v[16:19], {v(WA)}, {s(WS, 4)}, s33 offen sc1\ns_add_u32 s33, s33, 4096")

    def touch_all():
        if not opts.get("nopf"):
            touch(CP, 10240, 12288, 1, 62)
            touch(CM, 8192, 8192, 2, 63)
            touch(EF, EF_STEP, 12288, 2, 62)
            touch(XS, 28 * KB, 28 * KB, 2, 63)

    for first in (-1, 0):
        A(f"s_mov_b32 {s(sS)}, {first}")
        touch_all()
    A(f"s_mov_b32 {s(sS)}, 1\ns_mov_b32 {s(sCM)}, {CM + 8192}\ns_mov_b32 {s(sXM)}, {XM + 8192}")
    lp = A.new("f_poll")
    A(f"{lp}:")
    mem_loads(A, G, GA0, GA1, sCM)
    poll_guard(A)
    A("s_waitcnt vmcnt(0)")
    check8(A, G, T)
    A(f"s_cbranch_vccnz {lp}")
    A(f"buffer_store_dwordx4 {v(G, 4)}, {v(GA0)}, {s(WS, 4)}, {s(sXM)} offen sc1")
    A(f"buffer_store_dwordx4 {v(G + 4, 4)}, {v(GA1)}, {s(WS, 4)}, {s(sXM)} offen sc1")
    touch_all()
    A(f"s_add_u32 {s(sS)}, {s(sS)}, 1\ns_add_u32 {s(sCM)}, {s(sCM)}, 8192\ns_add_u32 {s(sXM)}, {s(sXM)}, 8192")
    A(f"s_cmp_lt_u32 {s(sS)}, 64\ns_cbranch_scc1 {lp}\ns_endpgm")


def gen_chain_g(A, opts):
    sS, sEF, sF = 44, 45, 46
    A(f"s_cmp_eq_u32 {s(S_W)}, 0\ns_cbranch_scc0 L_exit")
    A(f"s_mov_b32 {s(sS)}, 0\ns_mov_b32 {s(sEF)}, {EF + EF_P + 64}\ns_mov_b32 {s(sF)}, {FY + FL_STEP}")
    A(f"v_lshlrev_b32 v6, 7, v1\nv_min_u32 v7, 13, v0\nv_lshlrev_b32 v7, 7, v7\nv_mov_b32 v8, {s(S_NONCE)}")
    slow = A.new("g_slow")
    chain_mode(A, {}, Cnt(A, "vmcnt", 63), slow)

    def loop(sc):
        top, ok = A.new("g_top"), A.new("g_ok")
        A(f"{top}:\nbuffer_load_dword v5, v6, {s(WS, 4)}, {s(sF)} offen sc1")
        poll_guard(A)
        A(f"s_waitcnt vmcnt(0)\nv_cmp_ne_u32 vcc, {s(S_NONCE)}, v5\ns_cbranch_vccz {ok}\ns_sleep 2\ns_branch {top}\n{ok}:")
        notice(A, 8, 7, sEF, 0, sc)
        A(f"s_add_u32 {s(sS)}, {s(sS)}, 1\ns_add_u32 {s(sEF)}, {s(sEF)}, {EF_STEP}\ns_add_u32 {s(sF)}, {s(sF)}, {FL_STEP}")
        A(f"s_cmp_lt_u32 {s(sS)}, 63\ns_cbranch_scc1 {top}\ns_endpgm")

    loop("")
    A(f"{slow}:")
    loop(" sc1")
```

```python
from asmlib import v, a, s
from layout import *

WS, DB = 8, 12
S_W, S_ID, S_FOREIGN, S_POLL, S_NONCE = 3, 4, 5, 6, 98
POLL_MAX = 0x40000
OOB = 0x40000000
FNT = ' sc1'
WV0 = 120


def wreg(idx, n, nacc=256, v0=WV0):
    return a(idx, n) if idx < nacc else v(v0 + idx - nacc, n)


class Cnt:
    def __init__(self, A, name, cap):
        self.A, self.name, self.cap, self.q = A, name, cap, []

    def op(self, text, tag=None):
        self.A(text)
        self.q.append(tag)

    def wait(self, *tags):
        last = -1
        for i, t in enumerate(self.q):
            if t in tags:
                last = i
        if last < 0:
            return
        n = min(len(self.q) - 1 - last, self.cap)
        self.A(f"s_waitcnt {self.name}({n})")
        self.q = self.q[len(self.q) - n:] if n else []

    def drain(self):
        self.A(f"s_waitcnt {self.name}(0)")
        self.q = []

    def room(self, n):
        if len(self.q) + n > self.cap:
            keep = self.cap - n
            self.A(f"s_waitcnt {self.name}({keep})")
            self.q = self.q[len(self.q) - keep:] if keep else []


def poll_guard(A):
    A(f"s_add_u32 {s(S_POLL)}, {s(S_POLL)}, 1\ns_cmp_gt_u32 {s(S_POLL)}, {POLL_MAX}\ns_cbranch_scc1 L_timeout")


def flag_load(A, dst, va, soff):
    A(f"buffer_load_dwordx2 {v(dst, 2)}, {v(va)}, {s(WS, 4)}, {soff} offen sc1")


def flag_missing(A, regs):
    words = [r + k for r in regs for k in range(2)]
    A(f"v_cmp_ne_u32 vcc, {s(S_NONCE)}, {v(words[0])}")
    for r in words[1:]:
        A(f"v_cmp_ne_u32 s[36:37], {s(S_NONCE)}, {v(r)}\ns_or_b64 vcc, vcc, s[36:37]")


def wait_prep(A, everything):
    lp, out = A.new("wp"), A.new("wpd")
    n = 4 if everything else 1
    A(f"s_cmp_eq_u32 {s(S_W)}, 0\ns_cbranch_scc0 {out}")
    if everything:
        A(f"v_lshlrev_b32 v4, 7, v0\ns_mov_b32 s34, {DONE}")
    else:
        A(f"v_and_b32 v4, 31, v0\nv_lshlrev_b32 v4, 7, v4\ns_mov_b32 s34, {DONE + 224 * 128}")
    A(f"{lp}:")
    for k in range(n):
        A(f"s_add_u32 s35, s34, {k * 8192}")
        flag_load(A, 8 + 2 * k, 4, "s35")
    poll_guard(A)
    A("s_waitcnt vmcnt(0)")
    flag_missing(A, [8 + 2 * k for k in range(n)])
    A(f"s_cbranch_vccz {out}\ns_sleep 2\ns_branch {lp}")
    A(f"{out}:\ns_barrier")


def wait_start(A, opts, slow, extra=None):
    lp = A.new("ws")
    A(f"v_lshlrev_b32 v4, 3, v3\nv_mov_b32 v5, 68")
    A(f"{lp}:")
    for k in range(4):
        A(f"s_mov_b32 s35, {DONE + k * 8192}")
        flag_load(A, 8 + 2 * k, 4, "s35")
    if extra:
        flag_load(A, 16, extra[0], s(extra[1]))
    A(f"buffer_load_dword v6, v5, {s(DB, 4)}, 0 offen sc1")
    poll_guard(A)
    A("s_waitcnt vmcnt(0)\nv_readfirstlane_b32 s34, v6")
    flag_missing(A, [8 + 2 * k for k in range(5 if extra else 4)])
    A(f"s_cbranch_vccnz {lp}\ns_and_b32 s35, s34, 0xff\ns_cmp_eq_u32 s35, 32\ns_cbranch_scc0 {lp}")
    mark(A, opts, 1)
    dbg_time(A, opts, 5, 16)
    A(f"s_waitcnt lgkmcnt(0)\ns_lshr_b32 s34, s34, 8\ns_cmp_eq_u32 s34, 0\ns_cbranch_scc0 {slow}")


def load_pieces(A, pieces, task, ln_piece=None):
    lp = A.new("lp")
    if ln_piece:
        A(f"v_add_u32 {v(task + 1)}, 192, v0\nv_cmp_gt_u32 vcc, 32, v0\nv_cndmask_b32 {v(task)}, {v(task + 1)}, {v(task)}, vcc")
        pieces = pieces + [ln_piece]
    full = (1 << len(pieces)) - 1
    A(f"v_lshlrev_b32 {v(task)}, 7, {v(task)}\ns_mov_b32 s38, 0\ns_mov_b32 s39, {DONE}")
    A(f"{lp}:")
    flag_load(A, task + 2, task, "s39")
    poll_guard(A)
    A(f"s_waitcnt vmcnt(0)\nv_cmp_eq_u32 vcc, {s(S_NONCE)}, {v(task + 2)}\nv_cmp_eq_u32 s[42:43], {s(S_NONCE)}, {v(task + 3)}\ns_and_b64 vcc, vcc, s[42:43]")
    if ln_piece:
        b = 1 << (len(pieces) - 1)
        A(f"s_and_b32 s40, vcc_lo, {b - 1}\ns_cmp_eq_u32 vcc_hi, -1\ns_cselect_b32 s42, {b}, 0\ns_or_b32 s40, s40, s42\ns_andn2_b32 s40, s40, s38")
    else:
        A("s_andn2_b32 s40, vcc_lo, s38")
    for p, (n, emit) in enumerate(pieces):
        sk = A.new("lps")
        A(f"s_bitcmp1_b32 s40, {p}\ns_cbranch_scc0 {sk}\ns_waitcnt vmcnt({63 - n})")
        emit()
        A(f"{sk}:")
    A(f"s_or_b32 s38, s38, s40\ns_and_b32 s38, s38, {full}\ns_cmp_eq_u32 s38, {full}\ns_cbranch_scc0 {lp}")


def frag_loads(A, sreg, items, nacc=256, v0=WV0, cap=None):
    base = None
    for idx, off in items:
        if base is None or not 0 <= off - base < 4096:
            base = off
            A(f"s_add_u32 s41, {s(sreg)}, {off}")
        A(f"buffer_load_dwordx4 {wreg(idx, 4, nacc, v0)}, v3, {s(WS, 4)}, s41 offen offset:{off - base}{FNT}")
        if cap:
            A(f"s_waitcnt vmcnt({cap})")


def interleave(A, stream, fill):
    def em(x):
        if callable(x):
            x()
        else:
            A(x)
    for x in fill.get(-1, []):
        em(x)
    for i, m in enumerate(stream):
        em(m)
        for x in fill.get(i, []):
            em(x)


def spread(fill, start, items, per=2):
    g = start
    for it in items:
        while len(fill.setdefault(g, [])) >= per:
            g += 1
        fill[g].append(it)
    return g


def load_weights(A, vm, vaddr, tiles, sreg, n_ks=14, base_idx=0, nacc=256, v0=WV0, flags=" sc1"):
    idx = base_idx
    for setter in tiles:
        setter()
        for ks in range(n_ks):
            vm.room(1)
            vm.op(f"buffer_load_dwordx4 {wreg(idx, 4, nacc, v0)}, {v(vaddr)}, {s(WS, 4)}, {s(sreg)} offen offset:{(ks % 4) * 1024}{flags}", "w")
            if ks % 4 == 3:
                A(f"s_add_u32 {s(sreg)}, {s(sreg)}, 4096")
            idx += 4


def sentinel_check(A, regs, t, retry):
    regs = list(regs)
    A(f"v_max3_u32 {v(t)}, {v(regs[0])}, {v(regs[1])}, {v(regs[2])}")
    rest = regs[3:]
    while len(rest) >= 2:
        A(f"v_max3_u32 {v(t)}, {v(t)}, {v(rest[0])}, {v(rest[1])}")
        rest = rest[2:]
    if rest:
        A(f"v_max_u32 {v(t)}, {v(t)}, {v(rest[0])}")
    A(f"v_cmp_eq_u32 vcc, -1, {v(t)}\ns_cbranch_vccnz {retry}")


def stamp(A, opts, slot):
    if opts.get("stamps", 0) == 2:
        A(f"s_memtime {s(60 + 2 * slot, 2)}")
        if slot == 0:
            A("s_memrealtime s[74:75]")


def collect(A, opts, vb, sstep=44):
    if opts.get("stamps", 0) == 2:
        A(f"s_waitcnt lgkmcnt(0)\ns_mov_b32 m0, {s(sstep)}")
        for k in range(5):
            A(f"v_writelane_b32 {v(vb + k)}, {s(60 + 2 * k)}, m0")
        A(f"v_writelane_b32 {v(vb + 5)}, s74, m0")


def collect_lds(A, opts, sbase, off, t, sstep=44):
    if opts.get("stamps", 0) == 2:
        A(f"s_waitcnt lgkmcnt(0)\ns_lshl_b32 s78, {s(sstep)}, 2\ns_add_u32 s78, s78, {s(sbase)}\nv_mov_b32 {v(t + 1)}, s78")
        for k, r in enumerate([60, 62, 64, 66, 68, 74]):
            A(f"v_mov_b32 {v(t)}, {s(r)}\nds_write_b32 {v(t + 1)}, {v(t)} offset:{off + 256 * k}")


def fetch_lds(A, opts, sbase, off, vb):
    if opts.get("stamps"):
        A(f"v_lshrrev_b32 v0, 4, v3\nv_lshlrev_b32 v4, 2, v0\nv_add_u32 v4, {s(sbase)}, v4")
        for k in range(6):
            A(f"ds_read_b32 {v(vb + k)}, v4 offset:{off + 256 * k}")
        A("s_waitcnt lgkmcnt(0)")


def mark(A, opts, k):
    if opts.get("stamps"):
        A(f"s_memtime s[78:79]\ns_memrealtime s[76:77]\ns_waitcnt lgkmcnt(0)\ns_mov_b32 {s(80 + 2 * k)}, s78\ns_mov_b32 {s(81 + 2 * k)}, s76")


def flush_stamps(A, opts, vb=114):
    if opts.get("stamps"):
        mark(A, opts, 7)
        A(f"s_lshl_b32 s78, {s(S_ID)}, 2\ns_add_u32 s78, s78, {s(S_W)}\ns_lshl_b32 s78, s78, 11\ns_add_u32 s78, s78, {DBG}")
        A("v_lshlrev_b32 v4, 2, v0")
        for k in range(6):
            A(f"buffer_store_dword {v(vb + k)}, v4, {s(WS, 4)}, s78 offen offset:{256 * k}")
        A("v_mov_b32 v4, 0")
        for k in range(16):
            A(f"v_mov_b32 v5, {s(80 + k)}\nbuffer_store_dword v5, v4, {s(WS, 4)}, s78 offen offset:{1536 + 4 * k}")


def dbg_time(A, opts, slot, who, sreg=S_ID, srd=DB, base=80):
    if opts.get("tl"):
        sk = A.new("tl")
        A(f"s_cmp_eq_u32 {s(sreg)}, {who}\ns_cbranch_scc0 {sk}\ns_cmp_eq_u32 s3, 0\ns_cbranch_scc0 {sk}")
        A("s_memrealtime s[76:77]\ns_waitcnt lgkmcnt(0)")
        A(f"v_mov_b32 v4, s76\nv_mov_b32 v5, {(16 if slot < 4 else 32) + 4 * slot}\nbuffer_store_dword v4, v5, {s(srd, 4)}, 0 offen\n{sk}:")
```

```python
from asmlib import v, a, s
from layout import *
from common import *
from gen_prep import chunk_pos

SMF = "v_smfmac_f32_16x16x64_bf16"
MF = "v_mfma_f32_16x16x32_bf16"
N_CHAIN = 32


def chain_mode(A, opts, vm, lab):
    lp = A.new("reg")
    A("v_mov_b32 v5, 68")
    A(f"{lp}:\ns_sleep 16")
    A(f"buffer_load_dword v4, v5, {s(DB, 4)}, 0 offen sc1")
    poll_guard(A)
    vm.drain()
    A(f"v_readfirstlane_b32 s34, v4\ns_and_b32 s35, s34, 0xff\ns_cmp_eq_u32 s35, {N_CHAIN}\ns_cbranch_scc0 {lp}")
    mark(A, opts, 1)
    dbg_time(A, opts, 5, 16)
    if lab:
        A(f"s_waitcnt lgkmcnt(0)\ns_lshr_b32 s34, s34, 8\ns_cmp_eq_u32 s34, 0\ns_cbranch_scc0 {lab}")


def gather_addr(A, ga0, ga1):
    A(f"s_mul_i32 s33, {s(S_W)}, {112 * 16}\nv_add_u32 {v(ga0)}, s33, v3")
    A(f"v_min_u32 {v(ga1)}, 47, v0\nv_lshlrev_b32 {v(ga1)}, 4, {v(ga1)}\ns_add_u32 s33, s33, 1024\nv_add_u32 {v(ga1)}, s33, {v(ga1)}")


def mem_loads(A, G, ga0, ga1, scm):
    A(f"buffer_load_dwordx4 {v(G, 4)}, {v(ga0)}, {s(WS, 4)}, {s(scm)} offen sc1")
    A(f"buffer_load_dwordx4 {v(G + 4, 4)}, {v(ga1)}, {s(WS, 4)}, {s(scm)} offen sc1")


def check8(A, G, t):
    A(f"v_max3_u32 {v(t)}, {v(G)}, {v(G + 1)}, {v(G + 2)}\nv_max3_u32 {v(t + 1)}, {v(G + 3)}, {v(G + 4)}, {v(G + 5)}")
    A(f"v_max3_u32 {v(t)}, {v(t)}, {v(G + 6)}, {v(G + 7)}\nv_max_u32 {v(t)}, {v(t)}, {v(t + 1)}\nv_cmp_eq_u32 vcc, -1, {v(t)}")


def gather_mem(A, opts, G0, G1, ga0, ga1, scm, t, memb, shadow, ka=""):
    lp, ok = A.new("poll"), A.new("ok")
    mem_loads(A, G0, ga0, ga1, scm)
    for x in shadow:
        A(x)
    A(f"{lp}:")
    for cur, other in ((G0, G1), (G1, G0)):
        mem_loads(A, other, ga0, ga1, scm)
        poll_guard(A)
        A(ka)
        A("s_waitcnt vmcnt(2)")
        A(f"ds_write_b128 {v(ga0)}, {v(cur, 4)} offset:{memb}\nds_write_b128 {v(ga1)}, {v(cur + 4, 4)} offset:{memb}")
        check8(A, cur, t)
        if opts.get("solo"):
            A(f"s_cbranch_vccz {ok}\ns_branch {ok}")
        A(f"s_cbranch_vccz {ok}" if cur == G0 else f"s_cbranch_vccnz {lp}")
    A(f"{ok}:")
    stamp(A, opts, 0)
    A("s_waitcnt lgkmcnt(0)\ns_barrier")


def notice_wait(A, opts, F, fa, sreg, off, shadow, sstep=None):
    if opts.get("solo"):
        for x in shadow:
            A(x)
        return
    depth = opts.get("nd", 3)
    lp, ok = A.new("nw"), A.new("nok")
    ld = lambda k: A(f"buffer_load_dword {v(F + k)}, {v(fa)}, {s(WS, 4)}, {s(sreg)} offen offset:{off} sc1")
    for k in range(depth - 1):
        ld(k)
    for x in shadow:
        A(x)
    if sstep is not None:
        A(f"s_cmp_eq_u32 {s(sstep)}, 0\ns_cbranch_scc1 {ok}")
    A(f"{lp}:")
    poll_guard(A)
    for k in range(depth):
        ld((k + depth - 1) % depth)
        A(f"s_waitcnt vmcnt({depth - 1})\nv_cmp_ne_u32 vcc, {s(S_NONCE)}, {v(F + k)}")
        A(f"s_cbranch_vccz {ok}" if k < depth - 1 else f"s_cbranch_vccnz {lp}")
    A(f"{ok}:")


def fetch_mem(A, opts, G, ga0, ga1, scm, t, memb, ka=""):
    lp = A.new("fm")
    A(f"{lp}:")
    mem_loads(A, G, ga0, ga1, scm)
    poll_guard(A)
    A(ka)
    A("s_waitcnt vmcnt(0)")
    A(f"ds_write_b128 {v(ga0)}, {v(G, 4)} offset:{memb}\nds_write_b128 {v(ga1)}, {v(G + 4, 4)} offset:{memb}")
    check8(A, G, t)
    if opts.get("stamps"):
        A("s_add_u32 s53, s53, 1")
    if not opts.get("solo"):
        A(f"s_cbranch_vccnz {lp}")
    stamp(A, opts, 0)
    A("s_waitcnt lgkmcnt(0)\ns_barrier")


def notice(A, val, addr, sreg, off, sc):
    A(f"buffer_store_dword {v(val)}, {v(addr)}, {s(WS, 4)}, {s(sreg)} offen offset:{off}{sc}")


def idx_reg(A, r):
    A(f"v_mov_b32 {v(r)}, 0x44444444\nv_mov_b32 v4, 0xeeeeeeee\nv_cmp_gt_u32 vcc, 8, v1\nv_cndmask_b32 {v(r)}, v4, {v(r)}, vcc")


def zero(r, n):
    return [f"v_mov_b64 {v(r + 2 * k, 2)}, 0" for k in range(n // 2)]


def emit_stream(A, stream, fill):
    for i, m_ in enumerate(stream):
        m_() if callable(m_) else A(m_)
        items = fill.get(i, [])
        for x in items:
            x() if callable(x) else A(x)
        if not items and i + 1 < len(stream):
            A("s_nop 1")


def gen_chain_a(A, opts):
    MEM, ACC, KEY, TSP, SC, PK, IDX = 4, 32, 60, 84, 92, 104, 108
    CK, PFA, SR2, FA, MK, MK3, TW0, TW1, TWS, TR0, TR1 = range(109, 120)
    XR, SW, SR, PX, PM = 0, 1, 2, 106, 107
    T = 104
    REG = 32768
    XK, TB, SB, MEMB = 0, 16384, 20480, 24576
    sS, sCM, sCP, sXA, sXB, sM0, sP0, sODD, sREG, sEF, sYP, sMB, sQ, sEX = 44, 45, 46, 47, 48, 49, 50, 51, 52, 54, 55, 56, 57, 58
    vm = Cnt(A, "vmcnt", 63)
    A(f"s_and_b32 {s(sODD)}, {s(S_W)}, 1\ns_mul_i32 s33, {s(S_W)}, 7\ns_add_u32 {s(sP0)}, s33, {s(sODD)}\ns_lshr_b32 {s(sP0)}, {s(sP0)}, 1")
    A(f"s_lshl_b32 {s(sREG)}, {s(S_W)}, 15\ns_mov_b32 {s(sM0)}, {s(sREG)}")
    A(f"s_lshl_b32 {s(sXA)}, {s(sP0)}, 10\ns_add_u32 {s(sXA)}, {s(sXA)}, {XS}\ns_lshl_b32 s33, {s(sODD)}, 12\ns_sub_u32 {s(sXB)}, {s(sXA)}, s33")

    def dma(k):
        aa, b = k // 4, k % 4
        pre = f"s_add_u32 s33, {s(sM0)}, {aa * 4096}\ns_mov_b32 m0, s33\n" if b == 0 else ""
        if b in (0, 3):
            pre += f"s_add_u32 s34, {s(sXB if b == 3 else sXA)}, {aa * 14336}\n"
        return pre + f"buffer_load_dwordx4 v3, {s(WS, 4)}, s34 offen offset:{b * 1024} sc1 lds"

    A(f"s_mul_i32 s34, {s(S_ID)}, {FRAG_H}\ns_mul_i32 s33, {s(S_W)}, {7 * 14 * KB}\ns_add_u32 s34, s34, s33")
    if AF:
        A(f"s_add_u32 s34, s34, {AF}")
    A(f"s_mul_i32 s35, {s(sODD)}, {14 * KB}\ns_add_u32 s35, s35, s34\ns_add_u32 s36, s34, {6 * 14 * KB}\ns_cmp_eq_u32 {s(sODD)}, 0\ns_cselect_b32 s36, s36, s34")
    A(f"s_mul_i32 s33, {s(S_ID)}, 7\nv_min_u32 v4, 6, v0\nv_add_u32 v4, s33, v4")

    def piece(kk):
        frag_loads(A, 35, [((i * 7 + kk) * 8 + 4 * u, i * 14 * KB + (2 * kk + u) * KB) for i in range(6) for u in range(2)])
        frag_loads(A, 36, [((42 + kk) * 8 + 4 * u, (2 * kk + u) * KB) for u in range(2)])

    A(f"s_lshl_b32 {s(sQ)}, {s(S_W)}, 11\ns_add_u32 {s(sMB)}, {s(sQ)}, {MEMB}\ns_add_u32 {s(sQ)}, {s(sQ)}, {CM}")
    A(f"s_cmp_eq_u32 {s(S_W)}, 3\ns_cselect_b64 {s(sEX, 2)}, {opts.get('ex3', 1)}, -1")
    fetch = f"buffer_load_dwordx4 v3, {s(WS, 4)}, {s(sQ)} offen sc1 lds\ns_mov_b64 exec, {s(sEX, 2)}\nbuffer_load_dwordx4 v3, {s(WS, 4)}, {s(sQ)} offen offset:1024 sc1 lds\ns_mov_b64 exec, -1"

    def first_inputs():
        for k in range(8):
            A(dma(k))
        A(f"s_mov_b32 m0, {s(sMB)}\ns_nop 0\n" + fetch)

    load_pieces(A, [(14, lambda kk=kk: piece(kk)) for kk in range(7)], 4, (10, first_inputs))
    mark(A, opts, 2)
    idx_reg(A, IDX)
    A(f"v_and_b32 v4, 7, v1\nv_lshlrev_b32 v4, 4, v4\nv_lshl_add_u32 v4, v2, 7, v4\ns_lshl_b32 s33, {s(sP0)}, 9\nv_add_u32 {v(MK)}, s33, v4")
    A(f"s_lshl_b32 s34, {s(sODD)}, 11\ns_sub_u32 s34, 1536, s34\nv_add_u32 {v(MK3)}, s34, {v(MK)}")
    A(f"v_lshrrev_b32 v4, 1, v2\nv_lshlrev_b32 v4, 3, v4\nv_xor_b32 v4, v4, v1\nv_lshlrev_b32 v4, 3, v4\nv_lshl_add_u32 v4, v2, 7, v4")
    A(f"v_add_u32 {v(TW0)}, {s(sREG)}, v4\nv_xor_b32 {v(TW1)}, 32, {v(TW0)}\nv_add_u32 {v(TW1)}, 512, {v(TW1)}")
    A(f"s_cmp_eq_u32 {s(sODD)}, 0\ns_cselect_b64 vcc, -1, 0\nv_cndmask_b32 {v(TWS)}, {v(TW1)}, {v(TW0)}, vcc")
    A("v_lshrrev_b32 v4, 2, v1\nv_and_b32 v5, 3, v1")
    A("v_lshrrev_b32 v6, 1, v2\nv_lshrrev_b32 v7, 1, v5\nv_xor_b32 v6, v6, v7\nv_lshlrev_b32 v6, 3, v6")
    A("v_and_b32 v7, 1, v2\nv_lshl_add_u32 v6, v7, 1, v6\nv_and_b32 v7, 1, v4\nv_add_u32 v6, v6, v7")
    A("v_lshrrev_b32 v7, 1, v4\nv_lshl_add_u32 v6, v7, 2, v6\nv_lshlrev_b32 v6, 3, v6\nv_lshl_add_u32 v6, v7, 9, v6\nv_lshl_add_u32 v6, v5, 7, v6")
    A(f"v_add_u32 {v(TR0)}, {s(sREG)}, v6\nv_xor_b32 {v(TR1)}, 32, {v(TR0)}")
    A(f"v_add_u32 v12, {s(sREG)}, v3")
    for r in range(4):
        A(f"v_mov_b32 {v(8 + r)}, 0")
    A(f"ds_write_b128 v12, v[8:11] offset:{TB + 3072}")
    A(f"s_lshl_b32 s33, {s(sODD)}, 2\nv_add_u32 v4, s33, v2")
    A("v_bfe_u32 v5, v1, 2, 1\nv_lshlrev_b32 v5, 5, v5\nv_and_b32 v6, 1, v1\nv_lshl_add_u32 v5, v6, 4, v5\nv_bfe_u32 v6, v1, 1, 1\nv_lshl_add_u32 v5, v6, 3, v5\nv_lshrrev_b32 v6, 3, v1\nv_lshl_add_u32 v5, v6, 2, v5")
    A(f"v_lshl_add_u32 {v(PX)}, v4, 6, v5")
    A(f"v_lshlrev_b32 v4, 4, v4\nv_lshl_add_u32 v4, v1, 1, v4\nv_add_u32 v4, 512, v4\nv_and_b32 v5, 9, v1\nv_cmp_eq_u32 vcc, 0, v5\nv_mov_b32 v5, {OOB}\nv_cndmask_b32 {v(PM)}, v5, v4, vcc")
    A(f"v_lshrrev_b32 v4, 1, v2\nv_lshlrev_b32 v4, 5, v4\nv_add_u32 v4, v4, v1\ns_lshl_b32 s33, {s(sODD)}, 4\nv_add_u32 v4, s33, v4\nv_lshlrev_b32 v4, 3, v4")
    A(f"v_and_b32 v5, 1, v2\nv_lshl_add_u32 v4, v5, 2, v4\nv_add_u32 v13, {SB}, v4\nv_lshlrev_b32 v14, 3, v0\nv_add_u32 v14, {s(sREG)}, v14")
    if opts.get("own", 3) & 1:
        A(f"s_lshl_b32 s33, {s(S_W)}, 4\nv_add_u32 {v(FA)}, s33, v1")
    else:
        A(f"v_mov_b32 {v(FA)}, v0")
    A(f"v_min_u32 {v(FA)}, 55, {v(FA)}\nv_lshlrev_b32 {v(FA)}, 2, {v(FA)}\ns_lshl_b32 s33, {s(S_ID)}, 8\nv_add_u32 {v(FA)}, s33, {v(FA)}\ns_mov_b32 {s(sEF)}, {EF}\ns_mov_b32 s53, 0")
    chunk_pos(A, 12, 1, 2, 4)
    A(f"v_add_u32 v12, {s(sREG)}, v12")
    A(f"v_mov_b32 {v(XR)}, v12\nv_mov_b32 {v(SW)}, v14\nv_mov_b32 {v(SR)}, v13\nv_add_u32 {v(SR2)}, {2 * REG}, v13")
    A(f"s_mov_b32 {s(sS)}, 0\ns_mov_b32 {s(sCM)}, {CM}\ns_mul_i32 {s(sCP)}, {s(S_ID)}, 640\ns_add_u32 {s(sCP)}, {s(sCP)}, {CP}")
    A(f"v_lshlrev_b32 {v(PFA)}, 3, v3")
    ahead = opts.get("yah", 1)
    A(f"s_mul_i32 {s(sYP)}, {s(S_ID)}, {28 * KB}\ns_mul_i32 s33, {s(S_W)}, {7 * KB}\ns_add_u32 {s(sYP)}, {s(sYP)}, s33\ns_add_u32 {s(sYP)}, {s(sYP)}, {YF + ahead * 16 * 28 * KB}")
    slow = A.new("a_slow")
    for x in zero(ACC, 28):
        A(x)
    wait_start(A, opts, slow)
    ka = lambda n, r=ACC: "".join(f"{MF} {v(r, 4)}, {v(TSP, 4)}, {v(TSP, 4)}, {v(r, 4)}\n" for _ in range(n))

    def loop(sc):
        top, nxt, done, lp, ok, idle = (A.new(x) for x in ("a_top", "a_next", "a_done", "a_poll", "a_ok", "a_idle"))
        redo = A.new("a_redo")
        G0, G1 = KEY, KEY + 8
        A(f"s_branch {lp}\n{top}:")
        notice_wait(A, opts, G1, FA, sEF, 0, zero(ACC, 28) + [f"s_mov_b32 m0, {s(sMB)}"])
        if opts.get("nst"):
            stamp(A, opts, 1)
        A(fetch)
        A(f"{lp}:")
        if opts.get("stamps"):
            A("s_add_u32 s53, s53, 1")
        A("s_waitcnt vmcnt(0)")
        stamp(A, opts, 0)
        A("s_barrier")
        if not opts.get("nst"):
            stamp(A, opts, 1)
        lg = Cnt(A, "lgkmcnt", 15)
        for kk in range(7):
            lg.op(f"ds_read_b128 {v(MEM + 4 * kk, 4)}, v3 offset:{MEMB + kk * 1024}", f"m{kk}")

        def tile(i):
            out = []
            for kk in range(7):
                txt = f"{SMF} {v(ACC + 4 * i, 4)}, {v(MEM + 4 * kk, 4)}, {wreg((i * 7 + kk) * 8, 8)}, {v(IDX)}" if not opts.get("noam") else "s_nop 2"
                out.append((lambda txt=txt, kk=kk: (lg.wait(f"m{kk}"), A(txt))) if i == 0 else txt)
            return out

        def score(b):
            out = []
            for tau in range(3):
                c = "0" if b == 0 else v(SC + 4 * tau, 4)
                txt = f"{MF} {v(SC + 4 * tau, 4)}, {v(TSP + 4 * (b % 2), 4)}, {v(KEY + 12 * (b % 2) + 4 * tau, 4)}, {c}"
                out.append((lambda txt=txt: (lg.wait(f"tr{b}", f"k{b}"), A(txt))) if tau == 0 else txt)
            return out

        def keys(b):
            K = KEY + 12 * (b % 2)
            out = [lambda aa=aa: lg.op(f"ds_read_b128 {v(K + 4 * aa, 4)}, {v(XR)} offset:{XK + aa * 4096 + b * 1024}", f"k{b}") for aa in range(2)]
            reg, o = (MK3, 0) if b == 3 else (MK, b * 512)
            out.append(lambda: lg.op(f"ds_read_b128 {v(K + 8, 4)}, {v(reg)} offset:{MEMB + o}", f"k{b}"))
            return out

        def epi(i):
            D = ACC + 4 * i
            addr, off = (TWS, 3072) if i == 6 else ((TW0, TW1)[i % 2], (i // 2) * 1024)
            return [f"v_cvt_pk_bf16_f32 {v(PK)}, {v(D)}, {v(D + 1)}", f"v_cvt_pk_bf16_f32 {v(PK + 1)}, {v(D + 2)}, {v(D + 3)}",
                    lambda: lg.op(f"ds_write_b64 {v(addr)}, {v(PK, 2)} offset:{TB + off}", f"t{i}")]

        def trs(b):
            return [lambda x=x: lg.op(f"ds_read_b64_tr_b16 {v(TSP + 4 * (b % 2) + 2 * x, 2)}, {v((TR0, TR1)[x])} offset:{TB + b * 1024}", f"tr{b}") for x in range(2)]

        stream = tile(0) + tile(1) + tile(2) + tile(3) + score(0) + tile(4) + tile(5) + score(1) + tile(6) + score(2)
        fill = {}

        def put(g, items):
            for k, it in enumerate(items):
                assert g + k not in fill, g + k
                fill[g + k] = [it]

        for k in range(opts.get("apf", 1)):
            pre = f"s_add_u32 s33, {s(sREG)}, 31744\ns_mov_b32 m0, s33\ns_nop 0\n" if k == 0 else ""
            (put if opts.get("pfg", 1) >= 0 else lambda g, x: A(x[0]))(opts.get("pfg", 1) + 3 * k, [pre + f"buffer_load_dword {v(PFA)}, {s(WS, 4)}, {s(sYP)} offen offset:{128 // opts.get('apf', 1) * k} sc1 lds"])
        put(7, keys(0))
        put(11, epi(0))
        put(15, keys(1))
        put(18, epi(1))
        put(21, trs(0))
        put(25, epi(2))
        k2 = keys(2)
        put(31, k2[:1])
        put(32, epi(3))
        put(35, trs(1))
        put(38, k2[1:])
        put(41, epi(4))
        put(47, epi(5))
        put(50, trs(2))
        put(52, keys(3))
        br = "s_nop 0" if opts.get("solo") else f"s_cbranch_vccnz {redo}"
        mx = lambda x, y, z: f"v_max3_u32 {v(CK)}, {v(x)}, {v(y)}, {v(z)}"
        cmpi = f"v_cmp_eq_u32 vcc, -1, {v(CK)}"
        for g, x in zip((2, 4, 6, 10), (mx(MEM, MEM + 4, MEM + 8), mx(CK, MEM + 12, MEM + 16), mx(CK, MEM + 20, MEM + 24), cmpi)):
            put(g, [x])
        fill[12].append(br)
        rest = [MEM + r for r in range(28) if r % 4]
        late = [mx(*rest[:3])] + [mx(CK, rest[r], rest[r + 1]) for r in range(3, 21, 2)] + [cmpi]
        for g, x in zip((14, 23, 24, 28, 29, 30, 37, 40, 44, 45, 46), late):
            put(g, [x])
        fill[49].append(br)
        emit_stream(A, stream, fill)
        stamp(A, opts, 2)
        for x in epi(6) + trs(3):
            x() if callable(x) else A(x)
        if opts.get("ka_tr"):
            A(ka(opts["ka_tr"]))
        for x in score(3):
            x() if callable(x) else A(x)
            A("s_nop 1")
        X = MEM
        A(f"s_cmp_ge_u32 {s(S_W)}, 2")
        for tau in range(3):
            D = SC + 4 * tau
            A(f"v_permlane32_swap_b32 {v(D)}, {v(D + 2)}\nv_permlane32_swap_b32 {v(D + 1)}, {v(D + 3)}")
            if opts.get("pk", 1):
                A(f"v_pk_add_f32 {v(X + 2 * tau, 2)}, {v(D, 2)}, {v(D + 2, 2)}")
            else:
                A(f"v_add_f32 {v(X + 2 * tau)}, {v(D)}, {v(D + 2)}\nv_add_f32 {v(X + 2 * tau + 1)}, {v(D + 1)}, {v(D + 3)}")
            A(f"ds_write_b64 {v(SW)}, {v(X + 2 * tau, 2)} offset:{SB + 512 * tau}")
        if opts.get("ka_x"):
            A(ka(opts["ka_x"]))
        A("s_waitcnt lgkmcnt(0)\ns_barrier")
        stamp(A, opts, 3)
        A(f"s_cbranch_scc1 {idle}")
        R = MEM + 8
        for tau in range(3):
            A(f"ds_read2st64_b32 {v(R + 4 + 4 * tau, 2)}, {v(SR)} offset0:{2 * tau} offset1:{2 * tau + 128}")
            A(f"ds_read2st64_b32 {v(R + 6 + 4 * tau, 2)}, {v(SR2)} offset0:{2 * tau} offset1:{2 * tau + 128}")
        for tau in range(3):
            A(f"s_waitcnt lgkmcnt({4 - 2 * tau})")
            A(f"v_pk_add_f32 {v(R + 4 + 4 * tau, 2)}, {v(R + 4 + 4 * tau, 2)}, {v(R + 6 + 4 * tau, 2)}")
            A(f"v_add_f32 {v(R + tau)}, {v(R + 4 + 4 * tau)}, {v(R + 5 + 4 * tau)}")
        mx, sm = T, T + 1
        A(f"v_max3_f32 {v(mx)}, {v(R)}, {v(R + 1)}, {v(R + 2)}")
        for rot in (8, 4, 2, 1):
            A(f"v_max_f32_dpp {v(mx)}, {v(mx)}, {v(mx)} row_ror:{rot} row_mask:0xf bank_mask:0xf")
        for tau in (2, 0, 1):
            A(f"v_sub_f32 {v(R + tau)}, {v(R + tau)}, {v(mx)}")
        for tau in (2, 0, 1):
            A(f"v_exp_f32 {v(R + tau)}, {v(R + tau)}")
        A(f"v_fma_f32 {v(sm)}, 0.5, {v(R + 2)}, {v(R)}")
        A(f"v_mov_b32_dpp {v(R + 3)}, {v(R + 2)} quad_perm:[1,0,3,2] row_mask:0xf bank_mask:0xf")
        A(f"v_add_f32 {v(sm)}, {v(sm)}, {v(R + 1)}")
        for rot in (8, 4, 2, 1):
            A(f"v_add_f32_dpp {v(sm)}, {v(sm)}, {v(sm)} row_ror:{rot} row_mask:0xf bank_mask:0xf")
        A(f"v_rcp_f32 {v(sm)}, {v(sm)}")
        for k, addr in ((0, PX), (2, PM)):
            A(f"v_mul_f32 {v(R + k)}, {v(R + k)}, {v(sm)}\nv_mul_f32 {v(R + k + 1)}, {v(R + k + 1)}, {v(sm)}")
            A(f"v_cvt_pk_bf16_f32 {v(R + k)}, {v(R + k)}, {v(R + k + 1)}\nv_min_u32 {v(R + k)}, -2, {v(R + k)}")
            A(f"buffer_store_dword {v(R + k)}, {v(addr)}, {s(WS, 4)}, {s(sCP)} offen{sc}")
        A(f"{nxt}:")
        stamp(A, opts, 4)
        collect_lds(A, opts, sREG, 22528, T)
        A(f"s_add_u32 {s(sS)}, {s(sS)}, 1\ns_add_u32 {s(sQ)}, {s(sQ)}, {0 if opts.get('solo') else 8192}\ns_add_u32 {s(sCP)}, {s(sCP)}, {0 if opts.get('solo') else 10240}")
        adv = 0 if opts.get("solo") else EF_STEP
        A(f"s_add_u32 {s(sEF)}, {s(sEF)}, {adv}\ns_add_u32 {s(sXA)}, {s(sXA)}, {28 * KB}\ns_add_u32 {s(sXB)}, {s(sXB)}, {28 * KB}\ns_add_u32 {s(sYP)}, {s(sYP)}, {16 * 28 * KB}")
        A("s_barrier")
        if not opts.get("nodma"):
            for k in range(8):
                A(dma(k))
        A(f"s_cmp_eq_u32 {s(sS)}, 63\ns_cbranch_scc0 {top}")
        A("s_waitcnt vmcnt(0)")
        A("s_mov_b32 s84, s53" if opts.get("stamps") else "")
        fetch_lds(A, opts, sREG, 22528, 10)
        flush_stamps(A, opts, 10)
        A("s_endpgm")
        A(f"{redo}:\ns_mov_b32 m0, {s(sMB)}\ns_waitcnt lgkmcnt(0)\ns_barrier")
        A(fetch)
        poll_guard(A)
        for x in zero(ACC, 28):
            A(x)
        A(f"s_branch {lp}")
        A(f"{idle}:")
        A(f"v_lshrrev_b32 {v(T + 1)}, 4, v3\nv_min_u32 {v(T + 1)}, 13, {v(T + 1)}\ns_lshl_b32 s33, {s(S_ID)}, 2\ns_add_u32 s33, s33, {EF_P}")
        A(f"v_lshl_add_u32 {v(T + 1)}, {v(T + 1)}, 7, s33\nv_mov_b32 {v(T)}, {s(S_NONCE)}")
        A(ka(opts.get("la", 6)))
        w3 = A.new("a_w3")
        A(f"s_cmp_eq_u32 {s(S_W)}, 2\ns_cbranch_scc0 {w3}")
        notice(A, T, T + 1, sEF, 0, sc)
        A(f"s_branch {nxt}\n{w3}:")
        A(ka(opts.get("ka_sm", 0)))
        A(f"s_branch {nxt}")

    loop("")
    A(f"{slow}:")
    loop(" sc1")


def gen_chain_b(A, opts):
    MEM, ZACC, ZOP, Y, OACC, IDX = 4, 32, 60, 76, 108, 132
    GA0, GA1, PXA, PMA, RW, RR0, RR1, MO, WR, FA, FV = range(133, 144)
    FM, NZ, NA, FP = 128, 129, 130, 131
    T, WST, V0 = 116, 144, 176
    RED, WL = 8192, 12288
    sS, sCM, sCP, sY, sEF, sC, sFY = 44, 45, 46, 47, 48, 50, 51
    vm = Cnt(A, "vmcnt", 63)
    A(f"s_sub_u32 {s(sC)}, {s(S_ID)}, 16")
    A(f"s_mul_i32 s34, {s(S_W)}, {4 * FRAG_H}\ns_mul_i32 s33, {s(sC)}, {28 * KB}\ns_add_u32 s34, s34, s33\ns_add_u32 s34, s34, {BF}")
    A(f"s_mul_i32 s36, {s(S_W)}, {28 * KB}\ns_add_u32 s36, s36, {WL}\nv_add_u32 {v(WR)}, s36, v3\ns_add_u32 s37, s34, {3 * FRAG_H}")
    A(f"s_mul_i32 s33, {s(S_W)}, 28\ns_lshr_b32 s35, {s(sC)}, 1\ns_add_u32 s33, s33, s35\ns_add_u32 s33, s33, 112\nv_and_b32 v4, 3, v0\nv_mul_u32_u24 v4, 7, v4\nv_add_u32 v4, s33, v4")

    def piece(hh):
        if hh < 3:
            frag_loads(A, 34, [((hh * 28 + k) * 4, hh * FRAG_H + k * KB) for k in range(28)], v0=V0, cap=opts.get('bcap'))
            return
        for q in range(7):
            A("s_mov_b32 m0, s36\ns_add_u32 s36, s36, 4096")
            for k in range(4):
                A(f"buffer_load_dwordx4 v3, {s(WS, 4)}, s37 offen offset:{k * 1024} sc1 lds")
            A("s_add_u32 s37, s37, 4096")

    load_pieces(A, [(28, lambda hh=hh: piece(hh)) for hh in range(4)], 4)
    gather_addr(A, GA0, GA1)
    idx_reg(A, IDX)
    A("v_and_b32 v4, 7, v1\nv_lshrrev_b32 v5, 3, v1\nv_lshrrev_b32 v6, 1, v2\nv_and_b32 v7, 1, v2")
    A(f"s_mul_i32 s33, {s(S_W)}, 2560")
    A(f"v_mul_u32_u24 v8, 640, v6\nv_lshl_add_u32 v8, v4, 6, v8\nv_lshl_add_u32 v8, v7, 5, v8\nv_lshl_add_u32 v8, v5, 4, v8\nv_add_u32 {v(PXA)}, s33, v8")
    A(f"v_lshl_add_u32 v8, v6, 1, v5\nv_mul_u32_u24 v8, 640, v8\nv_lshl_add_u32 v8, v4, 4, v8\ns_add_u32 s33, s33, 512\nv_add_u32 {v(PMA)}, s33, v8")
    A(f"v_lshl_add_u32 v8, v6, 1, v7\nv_xor_b32 v8, v0, v8\nv_lshlrev_b32 v8, 4, v8\ns_lshl_b32 s33, {s(S_W)}, 10\ns_add_u32 s33, s33, {RED}\nv_add_u32 {v(RW)}, s33, v8")
    A("v_lshrrev_b32 v4, 5, v0\nv_bfe_u32 v5, v0, 2, 3\nv_and_b32 v6, 3, v0")
    A("v_and_b32 v7, 1, v6\nv_lshrrev_b32 v8, 2, v5")
    A(f"v_lshlrev_b32 v9, 5, v7\nv_lshl_add_u32 v9, v8, 4, v9\ns_and_b32 s33, {s(S_W)}, 1\ns_lshl_b32 s33, s33, 3\nv_add_u32 v9, s33, v9")
    A("v_lshrrev_b32 v10, 1, v6\nv_lshl_add_u32 v9, v10, 2, v9\nv_lshl_add_u32 v9, v4, 1, v9")
    A("v_lshl_add_u32 v10, v7, 1, v8\nv_xor_b32 v9, v9, v10\nv_lshlrev_b32 v9, 4, v9\nv_and_b32 v10, 3, v5\nv_lshl_add_u32 v9, v10, 2, v9")
    A(f"v_add_u32 {v(RR0)}, {RED}, v9\nv_xor_b32 {v(RR1)}, 16, {v(RR0)}")
    A(f"s_lshl_b32 s33, {s(sC)}, 9\ns_and_b32 s35, {s(S_W)}, 1\ns_lshl_b32 s35, s35, 8\ns_add_u32 s33, s33, s35\nv_lshl_add_u32 {v(MO)}, v0, 2, s33")
    A(f"v_lshlrev_b32 {v(FA)}, 7, v1\nv_mov_b32 {v(FV)}, 0")
    A(f"s_mov_b32 {s(sS)}, 0\ns_mov_b32 {s(sCM)}, {CM}\ns_mov_b32 {s(sCP)}, {CP}")
    A(f"s_mul_i32 s33, {s(S_W)}, {4 * 28 * KB}\ns_lshl_b32 s35, {s(sC)}, 11\ns_add_u32 {s(sY)}, s33, s35\ns_add_u32 {s(sY)}, {s(sY)}, {YF}")
    A(f"s_mov_b32 {s(sFY)}, {FY}\ns_mov_b32 {s(sEF)}, {EF}\ns_mov_b32 s53, 0\ns_mov_b32 s55, 0")
    pw = opts.get("pw", 1)
    A(f"v_min_u32 {v(FM)}, {55 if pw else 13}, v0\nv_lshlrev_b32 {v(FM)}, 2, {v(FM)}\ns_lshl_b32 s33, {s(S_ID)}, 8\nv_add_u32 {v(FM)}, s33, {v(FM)}")
    A(f"s_lshl_b32 s33, {s(sC)}, 7\ns_add_u32 s33, s33, {EF_P}\nv_min_u32 {v(FP)}, 17, v0")
    if opts.get("own", 3) & 2:
        A(f"v_and_b32 v4, 3, v0\ns_lshl_b32 s35, {s(S_W)}, 2\nv_add_u32 v4, s35, v4\nv_and_b32 v5, 1, v0\nv_add_u32 v5, 16, v5\nv_cmp_gt_u32 vcc, 32, v0\nv_cndmask_b32 {v(FP)}, v5, v4, vcc")
    A(f"v_lshl_add_u32 {v(FP)}, {v(FP)}, 2, s33")
    if pw:
        A(f"s_lshl_b32 s33, {s(sC)}, 2\ns_add_u32 s33, s33, {s(S_W)}\ns_lshl_b32 s33, s33, 2")
    else:
        A(f"s_lshl_b32 s33, {s(sC)}, 2")
    A(f"s_add_u32 s33, s33, {EF_STEP}\nv_min_u32 {v(NA)}, {29 if opts.get('ndb') else 15}, v0\nv_lshl_add_u32 {v(NA)}, {v(NA)}, 8, s33\nv_mov_b32 {v(NZ)}, {s(S_NONCE)}")
    slow = A.new("b_slow")
    wait_start(A, opts, slow, (FA, sFY))
    ka = lambda n: "".join(f"{MF} {v(ZACC + 8, 4)}, {v(ZOP, 4)}, {v(ZOP, 4)}, {v(ZACC + 8, 4)}\n" for _ in range(n))

    def loop(sc):
        top, nxt, last, noy, yok, ypoll, noflag, gm, gp, idle, noz = (A.new("b_" + x) for x in ("top", "next", "last", "noy", "yok", "ypoll", "nofl", "gm", "gp", "idle", "noz"))
        A(f"{top}:")
        if opts.get("ndb", 1):
            notice_wait(A, dict(opts, nd=opts.get('ndb', 1)), WST + 8, FM, sEF, 0, zero(ZACC, 28) + zero(OACC, 8), sS)
        else:
            for x in zero(ZACC, 28) + zero(OACC, 8):
                A(x)
        fetch_mem(A, dict(opts, stamps=0) if opts.get('nst') else opts, WST, GA0, GA1, sCM, T, 0)
        lg = Cnt(A, "lgkmcnt", 15)
        for kk in range(7):
            lg.op(f"ds_read_b128 {v(MEM + 4 * kk, 4)}, v3 offset:{kk * 1024}", f"m{kk}")
        bulk = []
        for hh in range(4):
            for vv in range(0 if opts.get("noy") else 2):
                pre = f"s_add_u32 s33, {s(sY)}, {hh * 28 * KB}\n" if vv == 0 else ""
                bulk.append(pre + f"buffer_load_dwordx4 {v(Y + 16 * (hh // 2) + 8 * vv + 4 * (hh % 2), 4)}, v3, {s(WS, 4)}, s33 offen offset:{vv * 1024} {'nt' if opts.get('ynt') == 1 else 'sc1 nt' if opts.get('ynt') else 'sc1'}")
        order = []
        regs = [(t, kk) for t in range(6) for kk in range(7)]
        for n in range(14):
            order += regs[3 * n:3 * n + 3] + [(6 + n // 7, n % 7)]
        accof = lambda t: ZACC + 4 * (t if t < 7 else 0)
        stream, pos, seen = [], {}, set()
        for t, kk in order:
            pos[(t, kk)] = len(stream)
            n = (t - 6) * 7 + kk
            w = wreg((t * 7 + kk) * 8, 8, 256, V0) if t < 6 else v(WST + 8 * (n % 4), 8)
            txt = f"{SMF} {v(accof(t), 4)}, {v(MEM + 4 * kk, 4)}, {w}, {v(IDX)}" if not opts.get("nozm") else "s_nop 2"
            tags = ([f"m{kk}"] if kk not in seen else []) + ([f"w{n}"] if t >= 6 else [])
            seen.add(kk)
            stream.append((lambda txt=txt, tags=tags: (lg.wait(*tags), A(txt))) if tags else txt)

        def wread(n):
            return [lambda u=u: lg.op(f"ds_read_b128 {v(WST + 8 * (n % 4) + 4 * u, 4)}, {v(WR)} offset:{(n // 7) * 14 * KB + (2 * (n % 7) + u) * KB}", f"w{n}") for u in range(2)]

        def epi(t):
            hh, vv = t // 2, t % 2
            D = accof(t)
            out = [f"v_cvt_pk_bf16_f32 {v(ZOP + 8 * vv + 4 * (hh // 2) + 2 * b + hh % 2)}, {v(D + 2 * b)}, {v(D + 2 * b + 1)}" for b in range(2)]
            return out + (zero(D, 4) if t == 0 else [])

        y = bulk + ["s_nop 0"] * (8 - len(bulk))
        for x in wread(0) + wread(1):
            x()
        npre = opts.get("ypre", 2)
        for x in y[:npre]:
            A(x)
        fill = {}
        for n in range(2, 14):
            spread(fill, 4 * (n - 2), wread(n), per=1)
        g = 2
        for x in y[npre:]:
            while g in fill:
                g += 1
            fill[g] = [x]
            g += opts.get("ygap", 1)
        late = []
        for t in sorted(range(8), key=lambda t: pos[(t, 6)]):
            g = pos[(t, 6)] + 4
            for x in epi(t):
                while g in fill:
                    g += 1
                if g < len(stream):
                    fill[g] = [x]
                    assert t != 0 or g < pos[(7, 0)] - 1
                else:
                    late.append(x)
        emit_stream(A, stream, fill)
        for x in late:
            A(x)
        if not opts.get("nst"):
            stamp(A, opts, 1)

        def p_loads(P):
            A(f"buffer_load_dwordx4 {v(P, 4)}, {v(PXA)}, {s(WS, 4)}, {s(sCP)} offen sc1")
            A(f"buffer_load_dwordx4 {v(P + 4, 4)}, {v(PXA)}, {s(WS, 4)}, {s(sCP)} offen offset:1280 sc1")
            A(f"buffer_load_dwordx4 {v(P + 8, 4)}, {v(PMA)}, {s(WS, 4)}, {s(sCP)} offen sc1")

        cur = MEM
        ok = A.new("b_ok")
        notice_wait(A, opts, MEM + 12, FP, sEF, 0, [])
        if opts.get("nst"):
            stamp(A, opts, 1)
        A(f"{gp}:")
        p_loads(cur)
        poll_guard(A)
        A(ka(opts.get("ka_p", 0)))
        if opts.get("stamps"):
            A("s_add_u32 s55, s55, 1")
        mx3 = lambda d, x, y, z: f"v_max3_u32 {v(d)}, {v(x)}, {v(y)}, {v(z)}"
        chk = ["s_nop 0", mx3(T, cur, cur + 1, cur + 2), mx3(T, T, cur + 3, cur + 4), mx3(T + 1, cur + 5, cur + 6, cur + 7), mx3(T + 2, cur + 8, cur + 9, cur + 10),
               mx3(T, T, T + 1, cur + 11) + f"\nv_max_u32 {v(T)}, {v(T)}, {v(T + 2)}\nv_cmp_eq_u32 vcc, -1, {v(T)}"]
        k = 0
        for kap in range(3):
            A(f"s_waitcnt vmcnt({2 - kap})")
            if kap == 0:
                stamp(A, opts, 2)
            for vv in range(2):
                b = v(Y + 16 * kap + 8 * vv, 8) if kap < 2 else v(ZOP + 8 * vv, 8)
                A(f"{SMF} {v(OACC + 4 * vv, 4)}, {v(cur + 4 * kap, 4)}, {b}, {v(IDX)}")
                if opts.get("lb") == 10 + k:
                    notice(A, NZ, NA, sEF, 0, sc)
                A(chk[k])
                k += 1
        A(f"s_cbranch_vccz {ok}")
        if opts.get("solo"):
            A(f"s_branch {ok}")
        for x in zero(OACC, 8):
            A(x)
        A(f"s_branch {gp}")
        A(f"{ok}:")
        lb = opts.get("lb", 2) if pw else -1
        if lb == 0:
            notice(A, NZ, NA, sEF, 0, sc)
        for q in range(4):
            A(f"v_permlane32_swap_b32 {v(OACC + q)}, {v(OACC + 4 + q)}")
        if lb == 1:
            notice(A, NZ, NA, sEF, 0, sc)
        for q in (0, 2):
            A(f"v_pk_add_f32 {v(OACC + q, 2)}, {v(OACC + q, 2)}, {v(OACC + 4 + q, 2)}")
        A(f"ds_write_b128 {v(RW)}, {v(OACC, 4)}")
        if 2 <= lb < 10:
            A(ka(lb - 2))
            notice(A, NZ, NA, sEF, 0, sc)
            if opts.get("nst"):
                stamp(A, opts, 0)
        A(f"s_add_u32 s33, {s(sCM)}, 8192\ns_cmp_ge_u32 {s(S_W)}, 2\ns_waitcnt lgkmcnt(0)\ns_barrier")
        stamp(A, opts, 3)
        A(f"s_cbranch_scc1 {idle}")
        R = ZACC
        if not pw:
            A(f"s_cmp_eq_u32 {s(S_W)}, 0\ns_cbranch_scc0 {noflag}")
            notice(A, NZ, NA, sEF, 0, sc)
            A(f"{noflag}:")
        A(f"ds_read2st64_b32 {v(R, 2)}, {v(RR0)} offset0:0 offset1:4\nds_read2st64_b32 {v(R + 4, 2)}, {v(RR0)} offset0:8 offset1:12")
        A(f"ds_read2st64_b32 {v(R + 2, 2)}, {v(RR1)} offset0:0 offset1:4\nds_read2st64_b32 {v(R + 6, 2)}, {v(RR1)} offset0:8 offset1:12")
        A("s_waitcnt lgkmcnt(2)")
        A(f"v_pk_add_f32 {v(R, 2)}, {v(R, 2)}, {v(R + 4, 2)}\nv_add_f32 {v(R)}, {v(R)}, {v(R + 1)}")
        A("s_waitcnt lgkmcnt(0)")
        A(f"v_pk_add_f32 {v(R + 2, 2)}, {v(R + 2, 2)}, {v(R + 6, 2)}\nv_add_f32 {v(R + 2)}, {v(R + 2)}, {v(R + 3)}")
        A(f"v_cvt_pk_bf16_f32 {v(R)}, {v(R)}, {v(R + 2)}\nv_min_u32 {v(R)}, -2, {v(R)}")
        A(f"buffer_store_dword {v(R)}, {v(MO)}, {s(WS, 4)}, s33 offen{sc}")
        A(f"{nxt}:")
        stamp(A, opts, 4)
        collect(A, opts, 120)
        A(f"s_add_u32 {s(sS)}, {s(sS)}, 1\ns_add_u32 {s(sCM)}, {s(sCM)}, {0 if opts.get('solo') else 8192}\ns_add_u32 {s(sCP)}, {s(sCP)}, {0 if opts.get('solo') else 10240}")
        A(f"s_add_u32 {s(sY)}, {s(sY)}, {16 * 28 * KB}\ns_add_u32 {s(sEF)}, {s(sEF)}, {0 if opts.get('solo') else EF_STEP}")
        A("s_barrier")
        if opts.get("stamps"):
            m8 = A.new("m8")
            A(f"s_cmp_eq_u32 {s(sS)}, 8\ns_cbranch_scc0 {m8}")
            mark(A, opts, 5)
            A(f"{m8}:")
        A(f"s_cmp_eq_u32 {s(sS)}, 63\ns_cbranch_scc0 {top}")
        if opts.get("fast63", 1):
            A(f"s_cmp_ge_u32 {s(S_W)}, 2\ns_cbranch_scc1 {last}\ns_mov_b32 s33, {XM + 63 * 8192}")
            A(f"buffer_store_dword {v(R)}, {v(MO)}, {s(WS, 4)}, s33 offen sc1\n{last}:")
        A("s_waitcnt vmcnt(0)")
        A("s_mov_b32 s84, s53\ns_mov_b32 s85, s55" if opts.get("stamps") else "")
        dbg_time(A, opts, 6, 16)
        amp_mark(A, opts, 3)
        amp_spin(A, opts, 16, (0, 1, 2, 3))
        flush_stamps(A, opts, 120)
        A("s_endpgm")
        A(f"{idle}:")
        A(ka(opts.get("ka_f", 0)))
        A(f"s_branch {nxt}")

    loop("")
    A(f"{slow}:")
    loop(" sc1")


def gen_chain_f(A, opts):
    G, GA0, GA1, T, WA = 4, 12, 13, 14, 20
    sS, sCM, sXM = 44, 45, 46
    wait_prep(A, True)
    gather_addr(A, GA0, GA1)
    A(f"s_lshl_b32 s33, {s(S_W)}, 10\nv_add_u32 {v(WA)}, s33, v3")

    def touch(base, stride, nbytes, ahead, last):
        A(f"s_add_u32 s33, {s(sS)}, {ahead}\ns_min_u32 s33, s33, {last}\ns_mul_i32 s33, s33, {stride}\ns_add_u32 s33, s33, {base}")
        for k in range(0, nbytes, 4096):
            A(f"buffer_load_dwordx4 v[16:19], {v(WA)}, {s(WS, 4)}, s33 offen sc1\ns_add_u32 s33, s33, 4096")

    def touch_all():
        if not opts.get("nopf"):
            touch(CP, 10240, 12288, 2, 62)
            touch(CM, 8192, 8192, 2, 63)
            touch(EF, EF_STEP, 12288, 2, 62)
            touch(XS, 28 * KB, 28 * KB, 2, 63)

    for first in (-2, -1, 0):
        A(f"s_mov_b32 {s(sS)}, {first}")
        touch_all()
    A(f"s_mov_b32 {s(sS)}, 1\ns_mov_b32 {s(sCM)}, {CM + 8192}\ns_mov_b32 {s(sXM)}, {XM + 8192}")
    lp = A.new("f_poll")
    A(f"{lp}:")
    mem_loads(A, G, GA0, GA1, sCM)
    poll_guard(A)
    A("s_waitcnt vmcnt(0)")
    check8(A, G, T)
    A(f"s_cbranch_vccnz {lp}")
    A(f"buffer_store_dwordx4 {v(G, 4)}, {v(GA0)}, {s(WS, 4)}, {s(sXM)} offen sc1")
    A(f"buffer_store_dwordx4 {v(G + 4, 4)}, {v(GA1)}, {s(WS, 4)}, {s(sXM)} offen sc1")
    touch_all()
    A(f"s_add_u32 {s(sS)}, {s(sS)}, 1\ns_add_u32 {s(sCM)}, {s(sCM)}, 8192\ns_add_u32 {s(sXM)}, {s(sXM)}, 8192")
    A(f"s_cmp_lt_u32 {s(sS)}, {63 if opts.get('fast63', 1) else 64}\ns_cbranch_scc1 {lp}")
    if opts.get("wb"):
        A(f"s_cmp_eq_u32 {s(S_W)}, 0\ns_cbranch_scc0 L_exit\ns_waitcnt vmcnt(0)\nbuffer_wbl2 sc1\ns_waitcnt vmcnt(0)")
    A("s_endpgm")


def gen_chain_g(A, opts):
    sS, sEF, sF = 44, 45, 46
    A(f"s_cmp_eq_u32 {s(S_W)}, 0\ns_cbranch_scc0 L_exit")
    A(f"s_mov_b32 {s(sS)}, 0\ns_mov_b32 {s(sEF)}, {EF + EF_P + 64}\ns_mov_b32 {s(sF)}, {FY + FL_STEP}")
    A(f"v_lshlrev_b32 v6, 7, v1\nv_lshrrev_b32 v7, 1, v0\nv_min_u32 v7, 13, v7\nv_lshlrev_b32 v7, 7, v7\nv_and_b32 v9, 1, v0\nv_lshl_add_u32 v7, v9, 2, v7\nv_mov_b32 v8, {s(S_NONCE)}")
    slow = A.new("g_slow")
    chain_mode(A, {}, Cnt(A, "vmcnt", 63), slow)

    def loop(sc):
        top, ok = A.new("g_top"), A.new("g_ok")
        A(f"{top}:")
        flag_load(A, 10, 6, s(sF))
        poll_guard(A)
        A("s_waitcnt vmcnt(0)")
        flag_missing(A, [10])
        A(f"s_cbranch_vccz {ok}\ns_sleep 2\ns_branch {top}\n{ok}:")
        notice(A, 8, 7, sEF, 0, sc)
        A(f"s_add_u32 {s(sS)}, {s(sS)}, 1\ns_add_u32 {s(sEF)}, {s(sEF)}, {EF_STEP}\ns_add_u32 {s(sF)}, {s(sF)}, {FL_STEP}")
        A(f"s_cmp_lt_u32 {s(sS)}, 63\ns_cbranch_scc1 {top}\ns_endpgm")

    loop("")
    A(f"{slow}:")
    loop(" sc1")
```

```python
import math
import struct
from asmlib import Asm, v, a, s
from layout import *
from common import *

MF = "v_mfma_f32_16x16x32_bf16"
D_OVF, D_REG, D_ERR, D_NONCE = 64, 68, 72, 192


def f32(x):
    return hex(struct.unpack("<I", struct.pack("<f", x))[0])


def load_srd(A, dst, name, tmp):
    A(f"s_load_dwordx2 {s(tmp, 2)}, s[0:1], {KARG[name]}")

    def build():
        A(f"s_mov_b32 {s(dst)}, {s(tmp)}")
        A(f"s_and_b32 {s(dst + 1)}, {s(tmp + 1)}, 0xffff")
        A(f"s_mov_b32 {s(dst + 2)}, {SIZE[name]}")
        A(f"s_mov_b32 {s(dst + 3)}, 0x20000")
    return build


def xor_reduce(A, op, x, t):
    for sw in ("v_permlane16_swap_b32", "v_permlane32_swap_b32"):
        A(f"v_mov_b32 {v(t)}, {v(x)}")
        A(f"{sw} {v(x)}, {v(t)}")
        A(f"{op} {v(x)}, {v(x)}, {v(t)}")


def quad_sum(A, x):
    for p in ("[1,0,3,2]", "[2,3,0,1]"):
        A(f"v_add_f32_dpp {v(x)}, {v(x)}, {v(x)} quad_perm:{p} row_mask:0xf bank_mask:0xf")


def chunk_pos(A, dst, tok, g, t):
    A(f"v_lshrrev_b32 {v(t)}, 2, {v(tok)}\nv_sub_u32 {v(t)}, 0, {v(t)}\nv_and_b32 {v(t)}, 3, {v(t)}\nv_xor_b32 {v(t)}, {v(t)}, {v(g)}")
    A(f"v_lshl_add_u32 {v(t)}, {v(tok)}, 2, {v(t)}\nv_lshlrev_b32 {v(dst)}, 4, {v(t)}")


def gen_prep(A, opts, done, rank):
    S_, G_, X_, M0_ = 20, 24, 20, 24
    A("s_and_b32 s28, s2, 7\ns_lshr_b32 s29, s2, 3")
    A("s_cmp_eq_u32 s28, 0\ns_cbranch_scc1 L_prep_ln")
    A("s_sub_u32 s28, s28, 1\ns_lshl_b32 s28, s28, 5\ns_add_u32 s28, s28, s29")
    A("s_mul_i32 s30, s28, 293\ns_lshr_b32 s30, s30, 11\ns_mul_i32 s31, s30, 7\ns_sub_u32 s31, s28, s31")
    A("s_lshr_b32 s32, s30, 1\ns_and_b32 s33, s30, 1")
    A("s_lshl_b32 s16, s33, 4\ns_add_u32 s16, s16, s32\ns_mul_i32 s16, s16, 7\ns_add_u32 s16, s16, s31")
    A("s_cmp_eq_u32 s33, 0")
    A(f"s_cselect_b32 {s(S_)}, s44, s50\ns_cselect_b32 {s(S_ + 1)}, s45, s51\ns_cselect_b32 {s(G_)}, s46, s48\ns_cselect_b32 {s(G_ + 1)}, s47, s49")
    for r in (S_, G_):
        A(f"s_and_b32 {s(r + 1)}, {s(r + 1)}, 0xffff\ns_mov_b32 {s(r + 2)}, {SIZE['wq']}\ns_mov_b32 {s(r + 3)}, 0x20000")
    DA, RA = 208, 216
    A("v_lshrrev_b32 v4, 5, v0\nv_and_b32 v5, 31, v0\ns_lshl_b32 s34, s32, 9\nv_and_b32 v7, 3, v1")
    for j in range(8):
        pm = 8 * (2 * j // 4) + (2 * j) % 4
        A(f"v_add_u32 v6, {2 * j}, v4\nv_xor_b32 v6, v6, v5\nv_lshlrev_b32 v6, 4, v6\nv_lshl_add_u32 v6, v4, 13, v6\ns_add_u32 s35, s34, {pm * 8192}\nv_add_u32 {v(DA + j)}, s35, v6")
    for k in range(4):
        A(f"v_add_u32 v6, {4 * k}, v2\nv_xor_b32 v6, v6, v1\nv_lshlrev_b32 v6, 4, v6\nv_lshl_add_u32 {v(RA + k)}, v1, 9, v6")
    A(f"s_mul_i32 s61, {s(S_W)}, 24576\ns_add_u32 s61, s61, 32768")
    for k in range(4):
        A(f"v_add_u32 {v(RA + 4 + k)}, s61, {v(RA + k)}")
    SS, ACC = 16, 144
    A(f"s_mul_i32 s36, s32, {FRAG_H}\ns_mul_i32 s37, s33, {BF - AF}\ns_add_u32 s36, s36, s37")
    if AF:
        A(f"s_add_u32 s36, s36, {AF}")
    A(f"s_mul_i32 s39, {s(S_W)}, 7\ns_lshl_b32 s58, {s(S_W)}, 13")

    def tile_ids(typ):
        if typ == 0:
            for j in range(7):
                A(f"s_add_u32 s56, s31, {j}\ns_sub_u32 s57, s56, 7\ns_cmp_ge_u32 s56, 7\ns_cselect_b32 s56, s57, s56\ns_add_u32 {s(64 + j)}, s56, s39")
            return
        A(f"s_mul_i32 s59, {s(S_W)}, 3\ns_min_u32 s60, {s(S_W)}, 2\ns_add_u32 s59, s59, s60")
        A("s_sub_u32 s56, s31, 3\ns_cmp_ge_u32 s31, 3\ns_cselect_b32 s60, s56, s31\ns_cmp_ge_u32 s31, 6\ns_cselect_b32 s60, 0, s60")
        for jp in range(4):
            if jp < 3:
                A(f"s_add_u32 s56, s60, {jp}\ns_sub_u32 s57, s56, 3\ns_cmp_ge_u32 s56, 3\ns_cselect_b32 s56, s57, s56\ns_add_u32 s56, s56, s59")
            else:
                A("s_add_u32 s56, s59, 3\ns_min_u32 s56, s56, 13")
            A(f"s_lshl_b32 {s(64 + 2 * jp)}, s56, 1\ns_add_u32 {s(65 + 2 * jp)}, {s(64 + 2 * jp)}, 1")

    def tile_dma(vm, srd, tag, k, sbase):
        A(f"s_add_u32 s62, {s(sbase)}, {k * 1024}\ns_mov_b32 m0, s62\ns_nop 0")
        nt = " nt" if opts.get("pnt", 0) & (1 if tag == "s" else 2) else ""
        vm.op(f"buffer_load_dwordx4 {v(DA + k)}, {s(srd, 4)}, s56 offen{nt} lds", tag)

    def load_G(vm, j):
        out = []
        for k in range(8):
            def one(k=k):
                if k == 0:
                    A(f"s_lshr_b32 s57, {s(64 + j)}, 1\ns_lshl_b32 s57, s57, 18\ns_and_b32 s56, {s(64 + j)}, 1\ns_lshl_b32 s56, s56, 15\ns_add_u32 s56, s56, s57")
                    A(f"s_add_u32 s63, s61, {(j % 3) * 8192}")
                tile_dma(vm, G_, f"g{j}", k, 63)
            out.append(one)
        return out

    def body(typ):
        vm = Cnt(A, "vmcnt", 63)
        mark(A, opts, 5)
        tile_ids(typ)
        NT = 7 + typ
        if typ == 0:
            A(f"s_lshr_b32 s56, {s(S_W)}, 1\ns_lshl_b32 s56, s56, 18\ns_and_b32 s57, {s(S_W)}, 1\ns_lshl_b32 s57, s57, 15\ns_add_u32 s56, s56, s57\ns_lshl_b32 s57, s31, 19\ns_add_u32 s56, s56, s57")
            for k in range(8):
                tile_dma(vm, S_, "s", k, 58)
        else:
            A("v_lshrrev_b32 v6, 2, v0\nv_mul_u32_u24 v6, 896, v6\nv_lshl_add_u32 v6, v7, 4, v6")
            A("v_lshrrev_b32 v8, 2, v1\nv_lshlrev_b32 v8, 6, v8\nv_lshl_add_u32 v8, v7, 4, v8\nv_lshl_add_u32 v8, v2, 9, v8")
            A(f"s_mul_i32 s56, s32, 229376\ns_lshl_b32 s57, s31, 7\ns_add_u32 s56, s56, s57\ns_lshr_b32 s57, {s(S_W)}, 1\ns_lshl_b32 s57, s57, 6\ns_add_u32 s56, s56, s57")
            A(f"s_and_b32 s57, {s(S_W)}, 1\ns_mul_i32 s57, s57, {128 * 896}\ns_add_u32 s56, s56, s57\ns_mov_b32 s57, s58")
            for j in range(8):
                A("s_mov_b32 m0, s57\ns_add_u32 s57, s57, 1024")
                vm.op(f"buffer_load_dwordx4 v6, {s(S_, 4)}, s56 offen{' nt' if opts.get('pnt', 0) & 1 else ''} lds", "s")
                A(f"s_add_u32 s56, s56, {16 * 896}")
        first = opts.get("gfirst", 1)
        for j in range(first):
            for x in load_G(vm, j):
                x()
        if not opts.get("laterank"):
            rank()
        vm.wait("s")
        mark(A, opts, 2)
        A("s_barrier")
        lg = Cnt(A, "lgkmcnt", 15)
        for es in range(8):
            for t in range(4):
                if typ == 0:
                    lg.room(1)
                    lg.op(f"ds_read_b128 {v(SS + (t * 8 + es) * 4, 4)}, {v(RA + es % 4)} offset:{t * 8192 + (es // 4) * 256}")
                else:
                    for x in range(2):
                        lg.room(1)
                        lg.op(f"ds_read_b64_tr_b16 {v(SS + (t * 8 + es) * 4 + 2 * x, 2)}, v8 offset:{(t // 2) * 16384 + es * 2048 + x * 256 + (t % 2) * 8}")
        if typ == 0:
            A(f"s_mov_b32 s38, {f32(math.log2(math.e) / 16.0)}\ns_lshl_b32 s57, s31, 11\ns_add_u32 s36, s36, s57")
        else:
            A(f"s_mul_i32 s57, s31, {4 * 14 * KB}\ns_add_u32 s36, s36, s57")
        lg.drain()

        def epilogue(j):
            accb = ACC + (j % 2) * 16
            out = []
            if typ == 0:
                out += [f"v_pk_mul_f32 {v(accb + r, 2)}, {v(accb + r, 2)}, v[12:13]" for r in range(0, 16, 2)]
                out += [f"v_cvt_pk_bf16_f32 {pk(j, r)}, {v(accb + 2 * r)}, {v(accb + 2 * r + 1)}" for r in range(8)]
            else:
                out += [f"v_cvt_pk_bf16_f32 {pk(j // 2 * 2 + r // 4, 4 * (r // 2 % 2) + 2 * (j % 2) + r % 2)}, {v(accb + 2 * r)}, {v(accb + 2 * r + 1)}" for r in range(8)]
            return out

        def pk(j, r, n=1):
            return v((176 + 8 * j if j < 4 else 224 + 8 * (j - 4) if j < 7 else 4) + r, n)

        def stores(j):
            if typ == 0:
                A(f"s_mul_i32 s59, {s(64 + j)}, {14 * KB}\ns_add_u32 s59, s59, s36")
                for k in range(2):
                    A(f"buffer_store_dwordx4 {pk(j, 4 * k, 4)}, v3, {s(WS, 4)}, s59 offen offset:{k * 1024} sc1{' nt' if opts.get('snt') else ''}")
            elif j % 2:
                A(f"s_lshl_b32 s59, {s(63 + j)}, 9\ns_add_u32 s59, s59, s36")
                for t in range(4):
                    A(f"buffer_store_dwordx4 {pk(j - 1 + t // 2, 4 * (t % 2), 4)}, v3, {s(WS, 4)}, s59 offen sc1{' nt' if opts.get('snt') else ''}\ns_add_u32 s59, s59, {14 * KB}")

        if typ == 0:
            A("v_mov_b32 v12, s38\nv_mov_b32 v13, s38")
        def poison():
            A(f"s_lshl_b32 s59, {s(S_W)}, 10\nv_add_u32 v9, s59, v3")
            for r in range(4):
                A(f"v_mov_b32 {v(248 + r)}, -1")
            ranges = [(P1_BASE, P1_BLOCKS), (P2_BASE, P2_BLOCKS)] + P_LAST
            total = sum(n for _, n in ranges)
            for i in range(-(-total // 224)):
                sk = A.new("pz")
                A(f"s_add_u32 s59, s28, {224 * i}\ns_cmp_ge_u32 s59, {total}\ns_cbranch_scc1 {sk}")
                first = 0
                for k, (base, n) in enumerate(ranges):
                    if first + n > 224 * i and first < 224 * (i + 1):
                        val = (base - first * 4096) & 0xffffffff
                        if first <= 224 * i:
                            A(f"s_mov_b32 s73, {val}")
                        else:
                            A(f"s_cmp_ge_u32 s59, {first}\ns_cselect_b32 s73, {val}, s73")
                    first += n
                A(f"s_lshl_b32 s59, s59, 12\ns_add_u32 s59, s59, s73")
                A(f"buffer_store_dwordx4 v[248:251], v9, {s(WS, 4)}, s59 offen sc1\n{sk}:")

        def g_reads(j):
            return [lambda es=es: lg.op(f"ds_read_b128 {a((j % 2) * 32 + es * 4, 4)}, {v(RA + 4 + es % 4)} offset:{(j % 3) * 8192 + (es // 4) * 256}", f"r{j}") for es in range(8)]

        vm.wait("g0")
        mark(A, opts, 3)
        for x in g_reads(0):
            x()
        for j in range(first, 3):
            for x in load_G(vm, j):
                x()
        lg.drain()
        for x in load_G(vm, 3):
            x()
        pend = []
        short = A.new("short")
        sfirst = opts.get("sfirst", 4)
        for j in range(NT):
            accb = ACC + (j % 2) * 16
            fill = {}
            if typ == 1 and j == 6:
                A(f"s_cmp_ge_u32 {s(S_W)}, 2\ns_cbranch_scc1 {short}")
                pend6 = list(pend)
            if j < NT - 1:
                r = g_reads(j + 1)
                fill[0] = [lambda: vm.wait(f"g{j + 1}"), r[0]]
                for k in range(1, 8):
                    fill[k] = [r[k]]
                if j + 4 < NT:
                    d = load_G(vm, j + 4)
                    fill[23] = [lambda: lg.wait(f"r{j + 1}")]
                    for k in range(8):
                        fill[24 + k] = [d[k]]
            for k, x in enumerate(pend):
                fill.setdefault(8 + k, []).insert(0, x)
            if j == sfirst:
                fill.setdefault(2, []).append(poison)
                for k in range(j - 1):
                    fill.setdefault(6 + 6 * k, []).append(lambda k=k: (stores(k), vm.q.extend(["o"] * (2 if typ == 0 else 4 * (k % 2)))))
            if j >= sfirst:
                fill.setdefault(28, []).append(lambda j=j: (stores(j - 1), vm.q.extend(["o"] * (2 if typ == 0 else 4 * ((j - 1) % 2)))))
            lg.wait(f"r{j}")
            if opts.get("tilem") and j in (1, 3, 5):
                mark(A, opts, {1: 2, 3: 5, 5: 4}[j])
            elif j == 5:
                mark(A, opts, 4)
            k = 0
            for es in range(8):
                for t in range(4):
                    c = "0" if es == 0 else v(accb + t * 4, 4)
                    sop, gop = v(SS + (t * 8 + es) * 4, 4), a((j % 2) * 32 + es * 4, 4)
                    A(f"{MF} {v(accb + t * 4, 4)}, {sop if typ == 0 else gop}, {gop if typ == 0 else sop}, {c}")
                    for x in fill.get(k, []):
                        x() if callable(x) else A(x)
                    k += 1
            pend = epilogue(j)
        for x in pend:
            x() if callable(x) else A(x)
        stores(NT - 1)
        if typ == 1:
            A(f"s_branch {done}\n{short}:")
            for x in pend6:
                A(x)
            stores(5)
        dbg_time(A, opts, 1 + typ, 1 + 56 * typ, 2)
        A(f"s_branch {done}")

    A("s_cmp_eq_u32 s33, 0\ns_cbranch_scc0 L_prep_b")
    body(0)
    A("L_prep_b:")
    body(1)

    A("L_prep_ln:")
    for dst, src, name in ((X_, 52, "x"), (M0_, 54, "mem0")):
        A(f"s_mov_b32 {s(dst)}, {s(src)}\ns_and_b32 {s(dst + 1)}, {s(src + 1)}, 0xffff\ns_mov_b32 {s(dst + 2)}, {SIZE[name]}\ns_mov_b32 {s(dst + 3)}, 0x20000")
    A("s_mov_b32 s36, s29")
    A("s_add_u32 s16, s36, 224")
    A(f"s_lshl_b32 s37, s36, 2\ns_add_u32 s37, s37, {s(S_W)}")
    A("v_lshrrev_b32 v61, 2, v0\nv_and_b32 v62, 3, v0\nv_mul_u32_u24 v63, 896, v61\nv_lshl_add_u32 v63, v62, 4, v63")
    A(f"s_mul_i32 s28, s37, {16 * 896}")
    RAW, F = 4, 64
    for ks in range(14):
        A(f"buffer_load_dwordx4 {v(RAW + ks * 4, 4)}, v63, {s(X_, 4)}, s28 offen offset:{ks * 64}{' nt' if opts.get('pnt', 0) & 1 else ''}")
    A("s_waitcnt vmcnt(0)")
    rank()
    A("s_mov_b32 s29, 0xffff0000")
    for r in range(56):
        A(f"v_lshlrev_b32 {v(F + 2 * r)}, 16, {v(RAW + r)}")
        A(f"v_and_b32 {v(F + 2 * r + 1)}, s29, {v(RAW + r)}")
    S0 = 192
    pk = lambda op, d, x, y: A(f"{op} {v(d, 2)}, {v(x, 2)}, {v(y, 2)}")
    pk("v_pk_add_f32", S0, F, F + 2)
    pk("v_pk_add_f32", S0 + 2, F + 4, F + 6)
    for r in range(8, 112, 2):
        pk("v_pk_add_f32", S0 + r % 4, S0 + r % 4, F + r)
    pk("v_pk_add_f32", S0, S0, S0 + 2)
    A(f"v_add_f32 {v(S0)}, {v(S0)}, {v(S0 + 1)}")
    quad_sum(A, S0)
    A(f"v_mul_f32 {v(S0)}, {f32(-1.0 / 448)}, {v(S0)}\nv_mov_b32 {v(S0 + 1)}, {v(S0)}")
    for r in range(0, 112, 2):
        pk("v_pk_add_f32", F + r, F + r, S0)
    pk("v_pk_mul_f32", S0 + 4, F, F)
    pk("v_pk_mul_f32", S0 + 6, F + 2, F + 2)
    for r in range(4, 112, 2):
        A(f"v_pk_fma_f32 {v(S0 + 4 + r % 4, 2)}, {v(F + r, 2)}, {v(F + r, 2)}, {v(S0 + 4 + r % 4, 2)}")
    pk("v_pk_add_f32", S0 + 4, S0 + 4, S0 + 6)
    A(f"v_add_f32 {v(S0 + 4)}, {v(S0 + 4)}, {v(S0 + 5)}")
    quad_sum(A, S0 + 4)
    A(f"v_mov_b32 {v(S0 + 6)}, {f32(1e-5)}")
    A(f"v_fmac_f32 {v(S0 + 6)}, {f32(1.0 / 448)}, {v(S0 + 4)}")
    A(f"v_rsq_f32 {v(S0 + 6)}, {v(S0 + 6)}\nv_mov_b32 {v(S0 + 7)}, {v(S0 + 6)}")
    A(f"s_mul_i32 s28, s37, {14 * KB}\ns_add_u32 s28, s28, {XF}")
    chunk_pos(A, 208, 61, 62, 63)
    A(f"v_and_b32 v63, 1, v62\nv_cmp_eq_u32 s[56:57], 1, v63\ns_add_u32 s30, s28, {XS - XF}")
    for ks in range(14):
        for r in range(0, 8, 2):
            pk("v_pk_mul_f32", F + ks * 8 + r, F + ks * 8 + r, S0 + 6)
        for r in range(4):
            A(f"v_cvt_pk_bf16_f32 {v(RAW + ks * 4 + r)}, {v(F + ks * 8 + 2 * r)}, {v(F + ks * 8 + 2 * r + 1)}")
        A(f"buffer_store_dwordx4 {v(RAW + ks * 4, 4)}, v208, {s(WS, 4)}, s28 offen offset:{(ks % 4) * 1024} sc1{' nt' if opts.get('snt') else ''}")
        Q, D = 200 + 4 * (ks % 2), RAW + ks * 4
        A(f"v_cndmask_b32 v210, {v(D + 1)}, {v(D)}, s[56:57]\nv_cndmask_b32 v211, {v(D + 3)}, {v(D + 2)}, s[56:57]")
        for r in range(2):
            A(f"v_mov_b32_dpp {v(212 + r)}, {v(210 + r)} quad_perm:[1,0,3,2] row_mask:0xf bank_mask:0xf")
        for r, (ev, od) in enumerate(((D, 212), (D + 2, 213), (212, D + 1), (213, D + 3))):
            A(f"v_cndmask_b32 {v(Q + r)}, {v(ev)}, {v(od)}, s[56:57]")
        A(f"buffer_store_dwordx4 {v(Q, 4)}, v208, {s(WS, 4)}, s30 offen offset:{(ks % 4) * 1024} sc1{' nt' if opts.get('snt') else ''}")
        if ks % 4 == 3:
            A("s_add_u32 s28, s28, 4096\ns_add_u32 s30, s30, 4096\ns_waitcnt vmcnt(40)")
    A(f"s_cmp_eq_u32 s36, 31\ns_cbranch_scc0 L_prep_nomem")
    A("v_and_b32 v61, 7, v1\nv_mul_u32_u24 v61, 896, v61\nv_lshrrev_b32 v62, 3, v1\nv_lshl_add_u32 v61, v62, 2, v61\nv_lshl_add_u32 v61, v2, 5, v61")
    A("s_waitcnt vmcnt(30)")
    for rep in range(2):
        A(f"s_add_u32 s31, {s(S_W)}, {4 * rep}\ns_min_u32 s31, s31, 6\ns_lshl_b32 s32, s31, 7\ns_lshl_b32 {s(33 + rep)}, s31, 10")
        for j in range(4):
            A(f"buffer_load_dword {v(188 + 4 * rep + j)}, v61, {s(M0_, 4)}, s32 offen offset:{j * 8}")
    A("s_waitcnt vmcnt(0)")
    for rep in range(2):
        for j in range(4):
            A(f"v_min_u32 {v(188 + 4 * rep + j)}, -2, {v(188 + 4 * rep + j)}")
        for base in (CM, XM):
            A(f"s_add_u32 s35, {s(33 + rep)}, {base}\nbuffer_store_dwordx4 {v(188 + 4 * rep, 4)}, v3, {s(WS, 4)}, s35 offen sc1{' nt' if opts.get('snt') else ''}")
    A("L_prep_nomem:")
    dbg_time(A, opts, 3, 8, 2)
```

```python
from asmlib import v, a, s
from layout import *
from common import *
from gen_prep import f32, load_srd, xor_reduce, chunk_pos
import math

MF = "v_mfma_f32_16x16x32_bf16"
SLEEP = 2
Y_TEAMS, X1_TEAMS, X2_TEAMS, F_TEAMS = 3, 3, 2, 2


def tmark(A, opts, k):
    if opts.get("tailm"):
        mark(A, opts, k)


def set_flag(A, soff, t):
    A(f"v_mov_b32 {v(t)}, {s(S_NONCE)}\nv_lshrrev_b32 {v(t + 1)}, 2, v3\nv_and_b32 {v(t + 1)}, 124, {v(t + 1)}")
    A(f"buffer_store_dword {v(t)}, {v(t + 1)}, {s(WS, 4)}, {s(soff)} offen sc1")


def paired_addr(A, d0, d1):
    for vv, d in enumerate((d0, d1)):
        A(f"v_lshrrev_b32 v4, 1, v1\nv_add_u32 v4, {8 * vv}, v4")
        chunk_pos(A, d, 4, 2, 5)
        A(f"v_and_b32 v4, 1, v1\nv_mul_u32_u24 v4, {14 * KB}, v4\nv_add_u32 {v(d)}, {v(d)}, v4")


def drain_unless_last(A, opts, sstep):
    if not opts.get("fast63", 1):
        A("s_waitcnt vmcnt(0)")
        return
    sk = A.new("nd")
    A(f"s_cmp_eq_u32 {s(sstep)}, 63\ns_cbranch_scc1 {sk}\ns_waitcnt vmcnt(0)\n{sk}:")


def clean(A, regs):
    for r in regs:
        A(f"v_min_u32 {v(r)}, -2, {v(r)}")


def verify_last(A, opts, sstep, regs, t, retry, younger=0):
    if not opts.get("fast63", 1):
        return
    sk = A.new("vl")
    A(f"s_cmp_eq_u32 {s(sstep)}, 63\ns_cbranch_scc0 {sk}")
    poll_guard(A)
    A(f"s_waitcnt vmcnt({younger})")
    sentinel_check(A, regs, t, retry)
    A(f"{sk}:")


def seg_dma(A, sx, sm0, cnt=None):
    for q, n in ((0, 4), (1, 3)):
        A(f"s_add_u32 s33, {s(sm0)}, {q * 4096}\ns_mov_b32 m0, s33\ns_add_u32 s34, {s(sx)}, {q * 4096}")
        for k in range(n):
            t = f"buffer_load_dwordx4 v3, {s(WS, 4)}, s34 offen offset:{k * 1024} sc1 lds"
            cnt.op(t, "x") if cnt else A(t)


def gen_y(A, opts):
    ACC, XOP, PK, XR, T = 4, 32, 48, 76, 78
    sS, sX, sM0, sY, sF = 44, 45, 46, 47, 48
    vm = Cnt(A, "vmcnt", 63)
    A(f"s_mov_b32 {s(sS)}, s31\ns_mul_i32 {s(sM0)}, {s(S_W)}, {7 * KB}")
    A(f"s_mul_i32 {s(sX)}, s31, {28 * KB}\ns_add_u32 {s(sX)}, {s(sX)}, {s(sM0)}\ns_add_u32 {s(sX)}, {s(sX)}, {XF}")
    A(f"s_mul_i32 s35, s30, {FRAG_H}\ns_mul_i32 s36, {s(S_W)}, {7 * 14 * KB}\ns_add_u32 s35, s35, s36\ns_add_u32 s35, s35, {BF}")
    A(f"s_mul_i32 s33, {s(S_W)}, 7\nv_min_u32 v4, 6, v0\nv_add_u32 v4, s33, v4\nv_lshrrev_b32 v4, 2, v4\ns_mul_i32 s33, s30, 7\ns_add_u32 s33, s33, 112\nv_add_u32 v4, s33, v4")
    load_pieces(A, [(14, lambda i=i: frag_loads(A, 35, [((i * 14 + ks) * 4, (i * 14 + ks) * KB) for ks in range(14)])) for i in range(7)], 4, (7, lambda: seg_dma(A, sX, sM0)))
    A(f"s_lshl_b32 s33, s31, 4\ns_add_u32 s33, s33, s30\ns_mul_i32 {s(sY)}, s33, {28 * KB}\ns_add_u32 {s(sY)}, {s(sY)}, {YF}")
    A(f"s_mul_i32 s33, {s(S_W)}, {7 * KB}\ns_add_u32 {s(sY)}, {s(sY)}, s33")
    A(f"s_mul_i32 {s(sF)}, s31, {FL_STEP}\ns_lshl_b32 s33, s30, 7\ns_add_u32 {s(sF)}, {s(sF)}, s33\ns_add_u32 {s(sF)}, {s(sF)}, {FY}")
    paired_addr(A, XR, XR + 1)
    top, nodma, noflag, done = (A.new(x) for x in ("y_top", "y_nodma", "y_nofl", "y_done"))
    A("s_waitcnt vmcnt(0)\ns_barrier")
    mark(A, opts, 1)
    A(f"{top}:")
    A(f"s_add_u32 s33, {s(sS)}, {Y_TEAMS}\ns_cmp_ge_u32 s33, 63\ns_cbranch_scc1 {nodma}" if False else
      f"s_add_u32 s33, {s(sS)}, {Y_TEAMS}\ns_cmp_ge_u32 s33, 64\ns_cbranch_scc1 {nodma}")
    A(f"s_add_u32 {s(sX)}, {s(sX)}, {Y_TEAMS * 28 * KB}\ns_xor_b32 {s(sM0)}, {s(sM0)}, 0x8000")
    seg_dma(A, sX, sM0)
    A(f"{nodma}:")
    lg = Cnt(A, "lgkmcnt", 15)
    rd = lambda n: lg.op(f"ds_read_b128 {v(XOP + 4 * (n % 4), 4)}, {v(XR + n // 14)} offset:{(n % 14) * KB}", f"x{n}")
    for n in range(3):
        rd(n)
    for tt in range(2):
        for ks in range(14):
            n = tt * 14 + ks
            if n + 3 < 28:
                rd(n + 3)
            lg.wait(f"x{n}")
            for i in range(7):
                c = "0" if ks == 0 else v(ACC + 4 * i, 4)
                A(f"{MF} {v(ACC + 4 * i, 4)}, {v(XOP + 4 * (n % 4), 4)}, {wreg((i * 14 + ks) * 4, 4)}, {c}")
        for i in range(7):
            for b in range(2):
                A(f"v_cvt_pk_bf16_f32 {v(PK + 4 * i + 2 * tt + b)}, {v(ACC + 4 * i + 2 * b)}, {v(ACC + 4 * i + 2 * b + 1)}")
    A(f"s_add_u32 s33, {s(sY)}, 4096")
    for i in range(7):
        A(f"buffer_store_dwordx4 {v(PK + 4 * i, 4)}, v3, {s(WS, 4)}, {s(sY) if i < 4 else 's33'} offen offset:{(i % 4) * 1024} sc1")
    A(f"v_xor_b32 {v(XR)}, 0x8000, {v(XR)}\nv_xor_b32 {v(XR + 1)}, 0x8000, {v(XR + 1)}")
    A("s_waitcnt vmcnt(0)\ns_barrier")
    A(f"s_cmp_eq_u32 {s(S_W)}, 0\ns_cbranch_scc0 {noflag}")
    set_flag(A, sF, T)
    A(f"{noflag}:")
    A(f"s_add_u32 {s(sS)}, {s(sS)}, {Y_TEAMS}\ns_cmp_ge_u32 {s(sS)}, 64\ns_cbranch_scc1 {done}")
    A(f"s_add_u32 {s(sY)}, {s(sY)}, {Y_TEAMS * 16 * 28 * KB}\ns_add_u32 {s(sF)}, {s(sF)}, {Y_TEAMS * FL_STEP}\ns_branch {top}")
    A(f"{done}:")
    wait_prep(A, True)
    A(f"s_add_u32 s31, s31, {Z_SPLIT}")
    z_loop(A, opts, "s31", Y_TEAMS, 64, False)


Z_SPLIT = 33


def z_loop(A, opts, first, step, end, lagged):
    from gen_chain import SMF, gather_addr, fetch_mem, idx_reg, zero
    MEM, ACC, G0, PK, IDX, GA0, GA1, ZA, T = 4, 32, 60, 76, 90, 91, 92, 93, 94
    sS, sXM, sZ, sF = 44, 45, 46, 47
    gather_addr(A, GA0, GA1)
    idx_reg(A, IDX)
    A(f"v_lshlrev_b32 {v(ZA)}, 3, v0\ns_mov_b32 {s(sS)}, {first}")
    A(f"s_lshl_b32 {s(sXM)}, {s(sS)}, 13\ns_add_u32 {s(sXM)}, {s(sXM)}, {XM}")
    A(f"s_lshl_b32 s33, {s(sS)}, 4\ns_add_u32 s33, s33, s30\ns_mul_i32 {s(sZ)}, s33, 14336\ns_mul_i32 s33, {s(S_W)}, 3584\ns_add_u32 {s(sZ)}, {s(sZ)}, s33\ns_add_u32 {s(sZ)}, {s(sZ)}, {ZF}")
    A(f"s_mul_i32 {s(sF)}, {s(sS)}, {FL_STEP}\ns_lshl_b32 s33, s30, 7\ns_add_u32 {s(sF)}, {s(sF)}, s33\ns_add_u32 {s(sF)}, {s(sF)}, {FZ - (FL_STEP if lagged else 0)}")
    top, noflag = A.new("z_top"), A.new("z_nofl")
    A(f"{top}:")
    for x in zero(ACC, 28):
        A(x)
    fetch_mem(A, {}, G0, GA0, GA1, sXM, T, 0)
    tmark(A, opts, 2)
    lg = Cnt(A, "lgkmcnt", 15)
    for kk in range(7):
        lg.op(f"ds_read_b128 {v(MEM + 4 * kk, 4)}, v3 offset:{kk * 1024}", f"m{kk}")
    if lagged:
        A(f"s_cmp_eq_u32 {s(S_W)}, 0\ns_cbranch_scc0 {noflag}\ns_cmp_eq_u32 {s(sS)}, 0\ns_cbranch_scc1 {noflag}")
        set_flag(A, sF, T)
        A(f"{noflag}:")
    for i in range(7):
        for kk in range(7):
            if i == 0:
                lg.wait(f"m{kk}")
            A(f"{SMF} {v(ACC + 4 * i, 4)}, {v(MEM + 4 * kk, 4)}, {wreg((i * 7 + kk) * 8, 8)}, {v(IDX)}")
    if lagged:
        A("s_barrier")
    for i in range(7):
        for b in range(2):
            A(f"v_cvt_pk_bf16_f32 {v(PK + 2 * i + b)}, {v(ACC + 4 * i + 2 * b)}, {v(ACC + 4 * i + 2 * b + 1)}")
        if not lagged:
            clean(A, (PK + 2 * i, PK + 2 * i + 1))
        A(f"buffer_store_dwordx2 {v(PK + 2 * i, 2)}, {v(ZA)}, {s(WS, 4)}, {s(sZ)} offen offset:{i * 512} sc1")
    if not lagged:
        tmark(A, opts, 3)
        drain_unless_last(A, opts, sS)
        A(f"s_cmp_eq_u32 {s(S_W)}, 0\ns_barrier\ns_cbranch_scc0 {noflag}")
        tmark(A, opts, 4)
        set_flag(A, sF, T)
        A(f"{noflag}:")
    A(f"s_add_u32 {s(sS)}, {s(sS)}, {step}\ns_add_u32 {s(sXM)}, {s(sXM)}, {step * 8192}\ns_add_u32 {s(sZ)}, {s(sZ)}, {step * 16 * 14336}\ns_add_u32 {s(sF)}, {s(sF)}, {step * FL_STEP}")
    A(f"s_cmp_lt_u32 {s(sS)}, {end}\ns_cbranch_scc1 {top}")
    if lagged:
        A("s_waitcnt vmcnt(0)\ns_barrier")
        set_flag(A, sF, T)
        A("s_mov_b32 s31, 63\ns_cmp_lt_u32 s30, 14\ns_cbranch_scc1 L_x2")
    flush_stamps(A, opts)
    A("s_endpgm")


def gen_z(A, opts):
    after_first_y(A, opts)
    wait_prep(A, True)
    vm = Cnt(A, "vmcnt", 63)
    A(f"s_mul_i32 s35, s30, {FRAG_H}\ns_mul_i32 s36, {s(S_W)}, {7 * 14 * KB}\ns_add_u32 s35, s35, s36\ns_add_u32 s35, s35, {BF}")
    load_weights(A, vm, 3, [(lambda i=i: A(f"s_add_u32 s37, s35, {i * 14 * KB}")) for i in range(7)], 37)
    mark(A, opts, 1)
    z_loop(A, opts, 0, 1, Z_SPLIT, True)


def wait_flags(A, fv, fa, soff, off=0, sleep=None):
    sleep = SLEEP if sleep is None else sleep
    lp, ok = A.new("wf"), A.new("wfok")
    A(f"{lp}:")
    flag_load(A, fv, fa, s(soff))
    poll_guard(A)
    A("s_waitcnt vmcnt(0)")
    flag_missing(A, [fv])
    A(f"s_cbranch_vccz {ok}\ns_sleep {sleep}\ns_branch {lp}\n{ok}:")


def after_first_y(A, opts):
    if opts.get("nodelay"):
        return
    out = A.new("afy")
    A(f"s_cmp_eq_u32 {s(S_W)}, 0\ns_cbranch_scc0 {out}\nv_lshlrev_b32 v4, 7, v1\ns_mov_b32 s34, {FY}")
    wait_flags(A, 6, 4, 34, sleep=16)
    A(f"{out}:\ns_barrier")


def unpack(A, dst, src, n, smask):
    for r in range(n):
        A(f"v_lshlrev_b32 {v(dst + 2 * r)}, 16, {v(src + r)}\nv_and_b32 {v(dst + 2 * r + 1)}, {s(smask)}, {v(src + r)}")


def gen_x1(A, opts):
    from gen_chain import gather_addr, mem_loads, check8
    ACC, XOP, TOP, G, ZERO = 4, 32, 48, 80, 88
    GA0, GA1, XR, KX, KX1, KX3, KX31, MK, MK2, MK3, SW, SR, PA, NEG, T = range(89, 104)
    SXB, SMB, XB = 8192, 24576, 32768
    sS, sX, sM0, sXM, sP, sF, sODD, sP0 = 44, 45, 46, 47, 48, 49, 50, 51
    MASK, ODDM = 56, 72
    after_first_y(A, opts)
    wait_prep(A, True)
    vm = Cnt(A, "vmcnt", 63)
    A(f"s_mov_b32 {s(sS)}, s31\ns_mul_i32 s35, {s(S_W)}, {7 * KB}\ns_add_u32 {s(sM0)}, s35, {XB}")
    A(f"s_mul_i32 {s(sX)}, s31, {28 * KB}\ns_add_u32 {s(sX)}, {s(sX)}, s35\ns_add_u32 {s(sX)}, {s(sX)}, {XF}")
    seg_dma(A, sX, sM0, vm)
    A(f"s_and_b32 {s(sODD)}, {s(S_W)}, 1\ns_mul_i32 s33, {s(S_W)}, 7\ns_add_u32 {s(sP0)}, s33, {s(sODD)}\ns_lshr_b32 {s(sP0)}, {s(sP0)}, 1")
    A(f"s_mul_i32 s34, s30, {FRAG_H}\ns_mul_i32 s33, {s(S_W)}, {7 * 14 * KB}\ns_add_u32 s34, s34, s33")
    if AF:
        A(f"s_add_u32 s34, s34, {AF}")
    A(f"s_mul_i32 s35, {s(sODD)}, {14 * KB}\ns_add_u32 s35, s35, s34\ns_add_u32 s36, s34, {6 * 14 * KB}\ns_cmp_eq_u32 {s(sODD)}, 0\ns_cselect_b32 s36, s36, s34")
    A(f"s_cselect_b64 {s(ODDM, 2)}, 0, -1")
    tiles = [(lambda i=i: A(f"s_add_u32 s37, s35, {i * 14 * KB}")) for i in range(6)] + [lambda: A("s_mov_b32 s37, s36")]
    load_weights(A, vm, 3, tiles, 37)
    gather_addr(A, GA0, GA1)
    A(f"v_mov_b32 {v(ZERO)}, 0\nv_mov_b32 {v(NEG)}, {f32(-1.0e9 * math.log2(math.e))}")
    chunk_pos(A, XR, 1, 2, 4)
    paired_addr(A, KX, KX1)
    A(f"v_add_u32 {v(XR)}, {XB}, {v(XR)}")
    A(f"s_lshl_b32 s33, {s(sP0)}, 10\ns_add_u32 s33, s33, {XB}\ns_lshl_b32 s34, {s(sODD)}, 12\ns_sub_u32 s34, 3072, s34")
    for r in (KX, KX1):
        A(f"v_add_u32 {v(r)}, s33, {v(r)}\nv_add_u32 {v(r + 2)}, s34, {v(r)}")
    A(f"v_and_b32 v4, 7, v1\nv_lshlrev_b32 v4, 4, v4\nv_lshrrev_b32 v5, 1, v2\nv_lshl_add_u32 v4, v5, 8, v4\nv_and_b32 v5, 1, v2\nv_lshl_add_u32 v4, v5, 3, v4")
    A(f"s_lshl_b32 s33, {s(sP0)}, 9\nv_add_u32 {v(MK)}, s33, v4\nv_add_u32 {v(MK2)}, 1024, {v(MK)}")
    A(f"s_lshl_b32 s34, {s(sODD)}, 11\ns_sub_u32 s34, 1536, s34\nv_add_u32 {v(MK3)}, s34, {v(MK)}")
    A(f"s_lshl_b32 s33, {s(S_W)}, 10\nv_add_u32 {v(SW)}, s33, v3\ns_lshl_b32 s33, {s(sODD)}, 12\nv_add_u32 {v(SR)}, s33, v3\nv_lshlrev_b32 {v(PA)}, 3, v0")
    A(f"s_lshl_b32 s33, {s(sODD)}, 4\nv_add_u32 v5, s33, v1")
    for kt in range(2):
        for q in range(4):
            A(f"v_lshl_add_u32 v4, v2, 1, {8 * kt + (q >> 1) + 16 * (q & 1)}\nv_cmp_le_u32 {s(MASK + 8 * kt + 2 * q, 2)}, v4, v5")
    A(f"s_lshl_b32 {s(sXM)}, s31, 13\ns_add_u32 {s(sXM)}, {s(sXM)}, {XM}")
    A(f"s_lshl_b32 s33, s31, 4\ns_add_u32 s33, s33, s30\ns_lshl_b32 s33, s33, 1\ns_add_u32 s33, s33, {s(sODD)}\ns_mul_i32 {s(sP)}, s33, 1536\ns_add_u32 {s(sP)}, {s(sP)}, {PF}")
    A(f"s_lshl_b32 s33, s30, 1\ns_add_u32 s33, s33, {s(sODD)}\ns_lshl_b32 s33, s33, 7\ns_mul_i32 {s(sF)}, s31, {FL_STEP}\ns_add_u32 {s(sF)}, {s(sF)}, s33\ns_add_u32 {s(sF)}, {s(sF)}, {FP}")
    top, nodma, nxt, lp, ok = (A.new("x1_" + x) for x in ("top", "nodma", "next", "poll", "ok"))
    A("s_waitcnt vmcnt(0)")
    mark(A, opts, 1)
    A(f"{top}:")
    A("s_barrier")
    A(f"s_add_u32 s33, {s(sS)}, {X1_TEAMS}\ns_cmp_ge_u32 s33, 64\ns_cbranch_scc1 {nodma}")
    A(f"s_add_u32 {s(sX)}, {s(sX)}, {X1_TEAMS * 28 * KB}\ns_xor_b32 {s(sM0)}, {s(sM0)}, 0x18000")
    seg_dma(A, sX, sM0)
    A(f"{nodma}:")
    lg = Cnt(A, "lgkmcnt", 15)
    rd = lambda n: lg.op(f"ds_read_b128 {v(XOP + 4 * (n % 4), 4)}, {v(XR)} offset:{n * KB}", f"x{n}")
    for n in range(3):
        rd(n)
    for tt in range(2):
        for ks in range(14):
            n = tt * 14 + ks
            if n + 3 < 28:
                rd(n + 3)
            lg.wait(f"x{n}")
            for i in range(7):
                c = "0" if ks == 0 else v(ACC + 4 * i, 4)
                A(f"{MF} {v(ACC + 4 * i, 4)}, {wreg((i * 14 + ks) * 4, 4)}, {v(XOP + 4 * (n % 4), 4)}, {c}")
        for i in range(6):
            for b in range(2):
                A(f"v_cvt_pk_bf16_f32 {v(TOP + 16 * tt + 2 * i + b)}, {v(ACC + 4 * i + 2 * b)}, {v(ACC + 4 * i + 2 * b + 1)}")
        for b in range(2):
            A(f"v_cvt_pk_bf16_f32 {v(T + b)}, {v(ACC + 24 + 2 * b)}, {v(ACC + 25 + 2 * b)}")
        for b in range(2):
            A(f"v_cndmask_b32 {v(TOP + 16 * tt + 12 + b)}, {v(T + b)}, {v(ZERO)}, {s(ODDM, 2)}")
            A(f"v_cndmask_b32 {v(TOP + 16 * tt + 14 + b)}, {v(ZERO)}, {v(T + b)}, {s(ODDM, 2)}")
    for half in range(2):
        for b in (2 * half, 2 * half + 1):
            for kt in range(2):
                reg, o = (KX3 + kt, 0) if b == 3 else (KX + kt, b * KB)
                lg.op(f"ds_read_b128 {v(XOP + 8 * (b % 2) + 4 * kt, 4)}, {v(reg)} offset:{o}", f"k{b}")
        for b in (2 * half, 2 * half + 1):
            lg.wait(f"k{b}")
            for j in range(4):
                kt, tt = j % 2, j // 2
                c = "0" if b == 0 else v(ACC + 4 * j, 4)
                A(f"{MF} {v(ACC + 4 * j, 4)}, {v(XOP + 8 * (b % 2) + 4 * kt, 4)}, {v(TOP + 16 * tt + 4 * b, 4)}, {c}")
    for r in (XR, KX, KX1, KX3, KX31):
        A(f"v_xor_b32 {v(r)}, 0x18000, {v(r)}")
    for j in range(4):
        A(f"ds_write_b128 {v(SW)}, {v(ACC + 4 * j, 4)} offset:{SXB + (j % 2) * 8192 + (j // 2) * 4096}")
    A(f"{lp}:")
    mem_loads(A, G, GA0, GA1, sXM)
    poll_guard(A)
    A("s_waitcnt vmcnt(0)")
    A(f"ds_write_b128 {v(GA0)}, {v(G, 4)}\nds_write_b128 {v(GA1)}, {v(G + 4, 4)}")
    check8(A, G, T)
    A(f"s_cbranch_vccz {ok}\ns_sleep 2\ns_branch {lp}\n{ok}:")
    tmark(A, opts, 2)
    A("s_waitcnt lgkmcnt(0)\ns_barrier")
    lg.q = []
    for b in range(4):
        reg, o = [(MK, 0), (MK, 128), (MK2, 0), (MK3, 0)][b]
        for x in range(2):
            lg.op(f"ds_read2_b32 {v(XOP + 4 * b + 2 * x, 2)}, {v(reg)} offset0:{o + x} offset1:{o + x + 32}", f"m{b}")
    for b in range(4):
        lg.wait(f"m{b}")
        for tt in range(2):
            c = "0" if b == 0 else v(ACC + 4 * tt, 4)
            A(f"{MF} {v(ACC + 4 * tt, 4)}, {v(XOP + 4 * b, 4)}, {v(TOP + 16 * tt + 4 * b, 4)}, {c}")
    for tt in range(2):
        A(f"ds_write_b128 {v(SW)}, {v(ACC + 4 * tt, 4)} offset:{SMB + tt * 4096}")
    A(f"s_cmp_ge_u32 {s(S_W)}, 2")
    A(f"s_waitcnt lgkmcnt(0)\ns_barrier\ns_cbranch_scc1 {nxt}")
    R, S = TOP, ACC
    for k, (reg, base) in enumerate(((SR, SMB), (SR, SXB), (SR, SXB + 8192))):
        for w in range(4):
            A(f"ds_read_b128 {v((XOP if k == 2 else R + 16 * k) + 4 * w, 4)}, {v(reg)} offset:{base + w * KB}")
    for k, d in enumerate((8, 0, 4)):
        b = XOP if k == 2 else R + 16 * k
        A(f"s_waitcnt lgkmcnt({8 - 4 * k})")
        for q in range(0, 4, 2):
            A(f"v_pk_add_f32 {v(b + q, 2)}, {v(b + q, 2)}, {v(b + 4 + q, 2)}\nv_pk_add_f32 {v(b + 8 + q, 2)}, {v(b + 8 + q, 2)}, {v(b + 12 + q, 2)}")
        for q in range(0, 4, 2):
            A(f"v_pk_add_f32 {v(S + d + q, 2)}, {v(b + q, 2)}, {v(b + 8 + q, 2)}")
    for r in range(8):
        A(f"v_cndmask_b32 {v(S + r)}, {v(NEG)}, {v(S + r)}, {s(MASK + 2 * r, 2)}")
    mx, sm = T, T + 1
    A(f"v_max3_f32 {v(mx)}, {v(S)}, {v(S + 1)}, {v(S + 2)}")
    for r in range(3, 11, 2):
        A(f"v_max3_f32 {v(mx)}, {v(mx)}, {v(S + r)}, {v(S + r + 1)}")
    A(f"v_max_f32 {v(mx)}, {v(mx)}, {v(S + 11)}")
    xor_reduce(A, "v_max_f32", mx, T + 2)
    for r in range(12):
        A(f"v_sub_f32 {v(S + r)}, {v(S + r)}, {v(mx)}")
    for r in range(12):
        A(f"v_exp_f32 {v(S + r)}, {v(S + r)}")
    A(f"v_add_f32 {v(sm)}, {v(S + 8)}, {v(S + 9)}\nv_add_f32 {v(T + 2)}, {v(S + 10)}, {v(S + 11)}\nv_add_f32 {v(sm)}, {v(sm)}, {v(T + 2)}\nv_mul_f32 {v(sm)}, 0.5, {v(sm)}")
    for r in range(8):
        A(f"v_add_f32 {v(sm)}, {v(sm)}, {v(S + r)}")
    xor_reduce(A, "v_add_f32", sm, T + 2)
    A(f"v_rcp_f32 {v(sm)}, {v(sm)}")
    for r in range(12):
        A(f"v_mul_f32 {v(S + r)}, {v(S + r)}, {v(sm)}")
    for r in range(6):
        A(f"v_cvt_pk_bf16_f32 {v(G + r)}, {v(S + 2 * r)}, {v(S + 2 * r + 1)}")
    clean(A, range(G, G + 6))
    A(f"buffer_store_dwordx4 {v(G, 4)}, v3, {s(WS, 4)}, {s(sP)} offen sc1")
    A(f"buffer_store_dwordx2 {v(G + 4, 2)}, {v(PA)}, {s(WS, 4)}, {s(sP)} offen offset:1024 sc1")
    tmark(A, opts, 3)
    drain_unless_last(A, opts, sS)
    tmark(A, opts, 4)
    set_flag(A, sF, T)
    A(f"{nxt}:")
    A(f"s_add_u32 {s(sS)}, {s(sS)}, {X1_TEAMS}\ns_add_u32 {s(sXM)}, {s(sXM)}, {X1_TEAMS * 8192}\ns_add_u32 {s(sP)}, {s(sP)}, {X1_TEAMS * 32 * 1536}\ns_add_u32 {s(sF)}, {s(sF)}, {X1_TEAMS * FL_STEP}")
    A(f"s_cmp_lt_u32 {s(sS)}, 64\ns_cbranch_scc1 {top}")
    flush_stamps(A, opts)
    A("s_endpgm")


def reduce_tiles(A, R, out, rr, base):
    for vv in range(2):
        for w in range(4):
            A(f"ds_read_b128 {v(R + 16 * vv + 4 * w, 4)}, {v(rr)} offset:{base + w * 4096 + vv * KB}")
    for vv in range(2):
        b = R + 16 * vv
        A(f"s_waitcnt lgkmcnt({4 - 4 * vv})")
        for q in (0, 2):
            A(f"v_pk_add_f32 {v(b + q, 2)}, {v(b + q, 2)}, {v(b + 4 + q, 2)}\nv_pk_add_f32 {v(b + 8 + q, 2)}, {v(b + 8 + q, 2)}, {v(b + 12 + q, 2)}")
        for q in (0, 2):
            A(f"v_pk_add_f32 {v(out + 4 * vv + q, 2)}, {v(b + q, 2)}, {v(b + 8 + q, 2)}")


def gen_x2(A, opts):
    Y, PX, PM, Z, ACC, XV, R, O = 4, 36, 68, 84, 100, 116, 120, 152
    FA1, FA2, _, L8, RW, RR, XA, SA, T = range(160, 169)
    YN, FV = 172, 208
    X_ = 16
    sS, sY, sP, sZ, sFL, sXO, sH, sST, sF, sMASK = range(44, 54)
    b = load_srd(A, X_, "x", 40)
    A(f"s_mov_b32 {s(sS)}, s31\ns_mov_b32 {s(sMASK)}, 0xffff0000\ns_and_b32 s36, {s(S_W)}, 1")
    A(f"v_lshlrev_b32 {v(FA1)}, 7, v1\nv_lshlrev_b32 {v(L8)}, 3, v0")
    A(f"v_and_b32 v4, 31, v0\nv_lshlrev_b32 v4, 7, v4\nv_add_u32 v4, {FP - FL}, v4\nv_add_u32 v5, {FZ - FL}, {v(FA1)}\nv_cmp_gt_u32 vcc, 32, v0\nv_cndmask_b32 {v(FA2)}, v5, v4, vcc")
    A(f"v_add_u32 v4, {X2_TEAMS * FL_STEP}, {v(FA1)}\nv_cmp_gt_u32 vcc, 48, v0\nv_cndmask_b32 {v(T + 2)}, v4, {v(FA2)}, vcc")
    A(f"s_lshl_b32 s33, {s(S_W)}, 12\nv_add_u32 {v(RW)}, s33, v3\ns_lshl_b32 s33, s36, 11\nv_add_u32 {v(RR)}, s33, v3")
    A(f"v_mul_u32_u24 v4, 896, v1\nv_lshl_add_u32 {v(XA)}, v2, 4, v4")
    A(f"v_lshlrev_b32 v4, 3, v1\nv_mov_b32 v5, {OOB}\nv_cmp_gt_u32 vcc, 16, v0\nv_cndmask_b32 {v(SA)}, v5, v4, vcc")
    A(f"s_lshl_b32 s33, s31, 4\ns_lshl_b32 s34, {s(S_W)}, 2\ns_add_u32 s33, s33, s34")
    A(f"s_mul_i32 {s(sY)}, s33, {28 * KB}\ns_lshl_b32 s34, s30, 11\ns_add_u32 {s(sY)}, {s(sY)}, s34\ns_add_u32 {s(sY)}, {s(sY)}, {YF}")
    A(f"s_mul_i32 {s(sP)}, s33, 3072\ns_add_u32 {s(sP)}, {s(sP)}, {PF}")
    A(f"s_mul_i32 {s(sZ)}, s33, 14336\ns_lshl_b32 s34, s30, 10\ns_add_u32 {s(sZ)}, {s(sZ)}, s34\ns_add_u32 {s(sZ)}, {s(sZ)}, {ZF}")
    A(f"s_mul_i32 {s(sFL)}, s31, {FL_STEP}\ns_add_u32 {s(sFL)}, {s(sFL)}, {FL}")
    A(f"s_lshl_b32 s33, s31, 1\ns_add_u32 s33, s33, s36")
    A(f"s_mul_i32 {s(sXO)}, s33, {16 * 896}\ns_lshl_b32 s34, s30, 6\ns_add_u32 {s(sXO)}, {s(sXO)}, s34")
    A(f"s_mul_i32 s33, s33, 14\ns_add_u32 s33, s33, s30\ns_lshl_b32 {s(sH)}, s33, 10\ns_add_u32 {s(sH)}, {s(sH)}, {HF}\ns_lshl_b32 {s(sST)}, s33, 7\ns_add_u32 {s(sST)}, {s(sST)}, {ST}")
    A(f"s_lshl_b32 s33, s30, 1\ns_add_u32 s33, s33, s36\ns_lshl_b32 s33, s33, 7\ns_add_u32 {s(sF)}, {s(sFL)}, s33\ns_add_u32 {s(sF)}, {s(sF)}, {FH - FL}")
    A("s_waitcnt lgkmcnt(0)")
    b()
    top, nxt = A.new("x2_top"), A.new("x2_next")
    mark(A, opts, 1)
    def y_loads(cnt=None):
        for hh in range(4):
            A(f"s_add_u32 s33, {s(sY)}, {hh * 28 * KB}")
            for vv in range(2):
                t = f"buffer_load_dwordx4 {v(YN + 8 * hh + 4 * vv, 4)}, v3, {s(WS, 4)}, s33 offen offset:{vv * KB} sc1"
                cnt.op(t) if cnt else A(t)
        t = f"buffer_load_dwordx4 {v(YN + 32, 4)}, {v(XA)}, {s(X_, 4)}, {s(sXO)} offen nt"
        cnt.op(t) if cnt else A(t)

    wait_flags(A, FV, FA1, sFL)
    y_loads()
    A(f"{top}:")
    A(f"s_cmp_lt_u32 {s(sS)}, {63 - X2_TEAMS}\ns_cselect_b64 vcc, -1, 0\nv_cndmask_b32 {v(T + 3)}, {v(FA2)}, {v(T + 2)}, vcc")
    A(f"s_cselect_b32 s33, {X2_TEAMS * 16 * 28 * KB}, 0\ns_cselect_b32 s34, {X2_TEAMS * 32 * 896}, 0\ns_add_u32 {s(sY)}, {s(sY)}, s33\ns_add_u32 {s(sXO)}, {s(sXO)}, s34\ns_waitcnt vmcnt(0)")
    for r in range(0, 32, 2):
        A(f"v_mov_b64 {v(Y + r, 2)}, {v(YN + r, 2)}")
    A(f"v_mov_b64 {v(XV, 2)}, {v(YN + 32, 2)}\nv_mov_b64 {v(XV + 2, 2)}, {v(YN + 34, 2)}")
    wait_flags(A, FV, T + 3, sFL)
    tmark(A, opts, 2)
    again = A.new("x2_again")
    A(f"s_barrier\n{again}:")
    vm = Cnt(A, "vmcnt", 63)
    for hh in range(4):
        A(f"s_add_u32 s33, {s(sP)}, {hh * 3072}\ns_add_u32 s34, {s(sZ)}, {hh * 14336}")
        for tt in range(2):
            vm.op(f"buffer_load_dwordx4 {v(PX + 8 * hh + 4 * tt, 4)}, v3, {s(WS, 4)}, s33 offen offset:{tt * 1536} sc1", f"x{hh}")
        for tt in range(2):
            vm.op(f"buffer_load_dwordx2 {v(PM + 8 * (hh // 2) + 4 * tt + 2 * (hh % 2), 2)}, {v(L8)}, {s(WS, 4)}, s33 offen offset:{tt * 1536 + 1024} sc1", f"m{hh // 2}")
        for vv in range(2):
            vm.op(f"buffer_load_dwordx2 {v(Z + 8 * (hh // 2) + 4 * vv + 2 * (hh % 2), 2)}, {v(L8)}, {s(WS, 4)}, s34 offen offset:{vv * 512} sc1", f"m{hh // 2}")
    y_loads(vm)
    for hh in range(4):
        vm.wait(f"x{hh}")
        for tt in range(2):
            for vv in range(2):
                d = v(ACC + 8 * tt + 4 * vv, 4)
                A(f"{MF} {d}, {v(Y + 8 * hh + 4 * vv, 4)}, {v(PX + 8 * hh + 4 * tt, 4)}, {'0' if hh == 0 else d}")
        if hh % 2:
            vm.wait(f"m{hh // 2}")
            for tt in range(2):
                for vv in range(2):
                    d = v(ACC + 8 * tt + 4 * vv, 4)
                    A(f"{MF} {d}, {v(Z + 8 * (hh // 2) + 4 * vv, 4)}, {v(PM + 8 * (hh // 2) + 4 * tt, 4)}, {d}")
    verify_last(A, opts, sS, range(PX, ACC), T, again, 9)
    for k in range(4):
        A(f"ds_write_b128 {v(RW)}, {v(ACC + 4 * k, 4)} offset:{k * KB}")
    A(f"s_cmp_ge_u32 {s(S_W)}, 2\ns_waitcnt lgkmcnt(0)\ns_barrier\ns_cbranch_scc1 {nxt}")
    reduce_tiles(A, R, O, RR, 0)
    tmark(A, opts, 3)
    for r in range(4):
        A(f"v_cvt_pk_bf16_f32 {v(R + r)}, {v(O + 2 * r)}, {v(O + 2 * r + 1)}")
    unpack(A, O, R, 4, sMASK)
    unpack(A, R + 8, XV, 4, sMASK)
    for r in range(8):
        A(f"v_add_f32 {v(O + r)}, {v(O + r)}, {v(R + 8 + r)}")
    for r in range(4):
        A(f"v_cvt_pk_bf16_f32 {v(R + r)}, {v(O + 2 * r)}, {v(O + 2 * r + 1)}")
    clean(A, range(R, R + 4))
    A(f"buffer_store_dwordx4 {v(R, 4)}, v3, {s(WS, 4)}, {s(sH)} offen sc1")
    unpack(A, O, R, 4, sMASK)
    M = R + 8
    A(f"v_add_f32 {v(M)}, {v(O)}, {v(O + 1)}")
    for r in range(2, 8):
        A(f"v_add_f32 {v(M)}, {v(M)}, {v(O + r)}")
    xor_reduce(A, "v_add_f32", M, T)
    A(f"v_mul_f32 {v(M)}, {f32(1.0 / 32)}, {v(M)}")
    for r in range(8):
        A(f"v_sub_f32 {v(O + r)}, {v(O + r)}, {v(M)}")
    A(f"v_mul_f32 {v(M + 1)}, {v(O)}, {v(O)}")
    for r in range(1, 8):
        A(f"v_fmac_f32 {v(M + 1)}, {v(O + r)}, {v(O + r)}")
    xor_reduce(A, "v_add_f32", M + 1, T)
    clean(A, (M, M + 1))
    A(f"buffer_store_dwordx2 {v(M, 2)}, {v(SA)}, {s(WS, 4)}, {s(sST)} offen sc1")
    tmark(A, opts, 5)
    drain_unless_last(A, opts, sS)
    tmark(A, opts, 4)
    set_flag(A, sF, T)
    A(f"{nxt}:")
    for r, step in ((sS, 1), (sP, 16 * 3072), (sZ, 16 * 14336), (sFL, FL_STEP), (sH, 28 * KB), (sST, 28 * 128), (sF, FL_STEP)):
        A(f"s_add_u32 {s(r)}, {s(r)}, {X2_TEAMS * step}")
    A(f"s_cmp_lt_u32 {s(sS)}, 63\ns_cbranch_scc1 {top}")
    flush_stamps(A, opts)
    A("s_endpgm")


def tr_addr(A, dst, sbase):
    A(f"v_lshrrev_b32 v4, 2, v1\nv_lshlrev_b32 v4, 6, v4\nv_and_b32 v5, 3, v0\nv_lshl_add_u32 v4, v5, 4, v4\nv_lshl_add_u32 v4, v2, 9, v4\nv_add_u32 {v(dst)}, {s(sbase)}, v4")


def row_addr(A, dst, stride):
    A(f"v_lshrrev_b32 v4, 2, v0\nv_mov_b32 v6, {stride}\nv_mul_lo_u32 v4, v4, v6\nv_and_b32 v5, 3, v0\nv_lshl_add_u32 {v(dst)}, v5, 4, v4")


def gen_f1(A, opts):
    H, ACC, CS, B1, SV, U, PK = 4, 60, 68, 76, 84, 92, 100
    FA, _, SA, RA, TR, T = range(108, 114)
    FV = 120
    W_, B_ = 16, 20
    sS, sH, sST, sG, sFH, sF, sMASK, sP = range(44, 52)
    after_first_y(A, opts)
    b = [load_srd(A, W_, "w1", 40), load_srd(A, B_, "b1", 42)]
    A(f"s_lshr_b32 s34, {s(S_W)}, 1\ns_and_b32 s35, {s(S_W)}, 1\ns_lshl_b32 {s(sP)}, s30, 1\ns_add_u32 {s(sP)}, {s(sP)}, s34")
    row_addr(A, RA, 3584)
    A(f"s_mul_i32 s36, s34, {28 * KB}")
    tr_addr(A, TR, 36)
    A(f"s_mul_i32 s37, s35, {14 * KB}\ns_add_u32 s36, s36, s37\ns_mul_i32 s37, s35, {224 * 3584}\ns_lshl_b32 s38, {s(sP)}, 6\ns_add_u32 s37, s37, s38")
    A(f"v_lshlrev_b32 v7, 4, v2\ns_mov_b32 {s(sMASK)}, 0xffff0000")
    A("s_waitcnt lgkmcnt(0)")
    for f in b:
        f()
    for j in range(14):
        A(f"s_mov_b32 m0, s36\ns_add_u32 s36, s36, 1024\nbuffer_load_dwordx4 {v(RA)}, {s(W_, 4)}, s37 offen nt lds\ns_add_u32 s37, s37, {16 * 3584}")
    A(f"buffer_load_dwordx4 {v(PK, 4)}, v7, {s(B_, 4)}, s38 offen")
    A(f"s_mov_b32 {s(sS)}, s31\ns_lshl_b32 s33, s31, 1\ns_add_u32 s33, s33, s35")
    A(f"s_mul_i32 {s(sH)}, s33, {14 * KB}\ns_add_u32 {s(sH)}, {s(sH)}, {HF}\ns_mul_i32 {s(sST)}, s33, {14 * 128}\ns_add_u32 {s(sST)}, {s(sST)}, {ST}")
    A(f"s_mul_i32 s34, s33, 56\ns_add_u32 s34, s34, {s(sP)}\ns_lshl_b32 {s(sG)}, s34, 10\ns_add_u32 {s(sG)}, {s(sG)}, {GF}")
    A(f"s_mul_i32 {s(sFH)}, s31, {FL_STEP}\ns_lshl_b32 {s(sF)}, s35, 13\ns_lshl_b32 s34, {s(sP)}, 7\ns_add_u32 {s(sF)}, {s(sF)}, s34\ns_add_u32 {s(sF)}, {s(sF)}, {s(sFH)}\ns_add_u32 {s(sF)}, {s(sF)}, {FG}")
    A(f"s_add_u32 {s(sFH)}, {s(sFH)}, {FH}")
    A(f"v_min_u32 {v(FA)}, 13, v1\nv_lshlrev_b32 {v(FA)}, 8, {v(FA)}\ns_lshl_b32 s34, s35, 7\nv_add_u32 {v(FA)}, s34, {v(FA)}")
    A(f"v_lshlrev_b32 {v(SA)}, 7, v2\nv_lshl_add_u32 {v(SA)}, v1, 3, {v(SA)}\nv_add_u32 v4, 1536, {v(SA)}\nv_mov_b32 v5, {OOB}\nv_cmp_gt_u32 vcc, 32, v0\nv_cndmask_b32 {v(T + 5)}, v5, v4, vcc")
    A("s_waitcnt vmcnt(0)\ns_barrier")
    unpack(A, B1, PK, 4, sMASK)
    lg = Cnt(A, "lgkmcnt", 15)
    for vv in range(2):
        for ks in range(14):
            for x in range(2):
                lg.room(1)
                lg.op(f"ds_read_b64_tr_b16 {a((vv * 14 + ks) * 4 + 2 * x, 2)}, {v(TR)} offset:{ks * 2048 + x * 256 + vv * 8}")
    for r in range(4):
        A(f"v_mov_b32 {v(H + r)}, 0x3f803f80")
    lg.drain()
    for ks in range(14):
        for vv in range(2):
            d = v(CS + 4 * vv, 4)
            A(f"{MF} {d}, {a((vv * 14 + ks) * 4, 4)}, {v(H, 4)}, {'0' if ks == 0 else d}")
    K1 = -2.0 * math.sqrt(2.0 / math.pi) * math.log2(math.e)
    A(f"s_mov_b32 s54, {f32(K1 * 0.044715)}\nv_mov_b32 {v(T + 4)}, {f32(K1)}")
    top = A.new("f1_top")
    mark(A, opts, 1)
    A(f"{top}:")
    wait_flags(A, FV, FA, sFH)
    tmark(A, opts, 2)
    again = A.new("f1_again")
    A(f"{again}:")
    vm = Cnt(A, "vmcnt", 63)
    for k in range(3):
        vm.op(f"buffer_load_dwordx2 {v(SV + 2 * k, 2)}, {v(SA)}, {s(WS, 4)}, {s(sST)} offen offset:{k * 512} sc1", "s")
    vm.op(f"buffer_load_dwordx2 {v(SV + 6, 2)}, {v(T + 5)}, {s(WS, 4)}, {s(sST)} offen sc1", "s")
    A(f"s_mov_b32 s33, {s(sH)}")
    for ks in range(14):
        vm.op(f"buffer_load_dwordx4 {v(H + 4 * ks, 4)}, v3, {s(WS, 4)}, s33 offen offset:{(ks % 4) * KB} sc1", f"h{ks}")
        if ks % 4 == 3:
            A("s_add_u32 s33, s33, 4096")
    vm.wait("s")
    mu, m2, q2 = T, T + 1, T + 2
    A(f"v_add_f32 {v(mu)}, {v(SV)}, {v(SV + 2)}\nv_add_f32 {v(m2)}, {v(SV + 1)}, {v(SV + 3)}\nv_mul_f32 {v(q2)}, {v(SV)}, {v(SV)}\nv_fmac_f32 {v(q2)}, {v(SV + 2)}, {v(SV + 2)}")
    for k in (4, 6):
        A(f"v_add_f32 {v(mu)}, {v(mu)}, {v(SV + k)}\nv_add_f32 {v(m2)}, {v(m2)}, {v(SV + k + 1)}\nv_fmac_f32 {v(q2)}, {v(SV + k)}, {v(SV + k)}")
    A(f"v_fmac_f32 {v(m2)}, {f32(32.0)}, {v(q2)}")
    xor_reduce(A, "v_add_f32", mu, T + 3)
    xor_reduce(A, "v_add_f32", m2, T + 3)
    A(f"v_mul_f32 {v(mu)}, {f32(1.0 / 14)}, {v(mu)}\nv_mul_f32 {v(q2)}, {v(mu)}, {v(mu)}")
    A(f"v_mul_f32 {v(m2)}, {f32(1.0 / 448)}, {v(m2)}\nv_sub_f32 {v(m2)}, {v(m2)}, {v(q2)}\nv_max_f32 {v(m2)}, 0, {v(m2)}\nv_add_f32 {v(m2)}, {f32(1e-5)}, {v(m2)}\nv_rsq_f32 {v(m2)}, {v(m2)}")
    for ks in range(14):
        vm.wait(f"h{ks}")
        for vv in range(2):
            d = v(ACC + 4 * vv, 4)
            A(f"{MF} {d}, {a((vv * 14 + ks) * 4, 4)}, {v(H + 4 * ks, 4)}, {'0' if ks == 0 else d}")
    verify_last(A, opts, sS, list(range(H, H + 56)) + list(range(SV, SV + 8)), U, again)
    tmark(A, opts, 3)
    for r in range(8):
        A(f"v_fma_f32 {v(U + r)}, -{v(mu)}, {v(CS + r)}, {v(ACC + r)}")
    for r in range(8):
        A(f"v_fma_f32 {v(U + r)}, {v(m2)}, {v(U + r)}, {v(B1 + r)}")
    for r in range(8):
        A(f"v_mul_f32 {v(ACC + r)}, {v(U + r)}, {v(U + r)}")
    for r in range(8):
        A(f"v_fma_f32 {v(ACC + r)}, {v(ACC + r)}, s54, {v(T + 4)}")
    for r in range(8):
        A(f"v_mul_f32 {v(ACC + r)}, {v(ACC + r)}, {v(U + r)}")
    for r in range(8):
        A(f"v_exp_f32 {v(ACC + r)}, {v(ACC + r)}")
    for r in range(8):
        A(f"v_add_f32 {v(ACC + r)}, 1.0, {v(ACC + r)}")
    for r in range(8):
        A(f"v_rcp_f32 {v(ACC + r)}, {v(ACC + r)}")
    for r in range(8):
        A(f"v_mul_f32 {v(U + r)}, {v(U + r)}, {v(ACC + r)}")
    for r in range(4):
        A(f"v_cvt_pk_bf16_f32 {v(PK + r)}, {v(U + 2 * r)}, {v(U + 2 * r + 1)}")
    clean(A, range(PK, PK + 4))
    A(f"buffer_store_dwordx4 {v(PK, 4)}, v3, {s(WS, 4)}, {s(sG)} offen sc1")
    tmark(A, opts, 5)
    drain_unless_last(A, opts, sS)
    tmark(A, opts, 4)
    set_flag(A, sF, SV)
    for r, step in ((sS, 1), (sH, 28 * KB), (sST, 28 * 128), (sG, 112 * KB), (sFH, FL_STEP), (sF, FL_STEP)):
        A(f"s_add_u32 {s(r)}, {s(r)}, {F_TEAMS * step}")
    A(f"s_cmp_lt_u32 {s(sS)}, 64\ns_cbranch_scc1 {top}")
    flush_stamps(A, opts)
    A("s_endpgm")


def gen_f2(A, opts):
    Gr, ACC, HV, B2, R, O = 4, 60, 76, 80, 88, 120
    FA, _, RA, TR, RW, RR, OA, T = range(128, 136)
    FV = 138
    W_, B_, O_ = 16, 20, 24
    sS, sG, sH, sO, sFG, sMASK = range(44, 50)
    after_first_y(A, opts)
    b = [load_srd(A, W_, "w2", 40), load_srd(A, B_, "b2", 42), load_srd(A, O_, "out", 38)]
    A(f"s_lshr_b32 s34, s30, 1\ns_and_b32 s35, s30, 1\ns_and_b32 s29, {s(S_W)}, 1")
    row_addr(A, RA, 896)
    A(f"s_mul_i32 s28, {s(S_W)}, {28 * KB}")
    tr_addr(A, TR, 28)
    A(f"v_lshlrev_b32 v7, 4, v2\ns_mov_b32 {s(sMASK)}, 0xffff0000\ns_lshl_b32 s52, s34, 7\ns_lshl_b32 s53, s29, 6\ns_add_u32 s53, s53, s52")
    A("s_waitcnt lgkmcnt(0)")
    for f in b:
        f()
    A(f"buffer_load_dwordx4 {v(HV, 4)}, v7, {s(B_, 4)}, s53 offen")
    lg = Cnt(A, "lgkmcnt", 15)
    for pa in range(2):
        A(f"s_mul_i32 s37, {s(S_W)}, {448 * 896}\ns_add_u32 s37, s37, s52\ns_add_u32 s37, s37, {pa * 64}\ns_mov_b32 s36, s28")
        for j in range(28):
            A(f"s_mov_b32 m0, s36\ns_add_u32 s36, s36, 1024\nbuffer_load_dwordx4 {v(RA)}, {s(W_, 4)}, s37 offen nt lds\ns_add_u32 s37, s37, {16 * 896}")
        A("s_waitcnt vmcnt(0)")
        for vv in range(2):
            for ks in range(14):
                for x in range(2):
                    lg.room(1)
                    lg.op(f"ds_read_b64_tr_b16 {a(((2 * pa + vv) * 14 + ks) * 4 + 2 * x, 2)}, {v(TR)} offset:{ks * 2048 + x * 256 + vv * 8}")
        lg.drain()
    unpack(A, B2, HV, 4, sMASK)
    A(f"s_mov_b32 {s(sS)}, s31\ns_lshl_b32 s33, s31, 1\ns_add_u32 s33, s33, s35")
    A(f"s_mul_i32 s36, s33, 56\ns_mul_i32 s37, {s(S_W)}, 14\ns_add_u32 s36, s36, s37\ns_lshl_b32 {s(sG)}, s36, 10\ns_add_u32 {s(sG)}, {s(sG)}, {GF}")
    A(f"s_mul_i32 s36, s33, 14\ns_lshl_b32 s37, s34, 1\ns_add_u32 s36, s36, s37\ns_add_u32 s36, s36, s29\ns_lshl_b32 {s(sH)}, s36, 10\ns_add_u32 {s(sH)}, {s(sH)}, {HF}")
    A(f"s_mul_i32 {s(sO)}, s33, {16 * 896}\ns_add_u32 {s(sO)}, {s(sO)}, s53\ns_mul_i32 {s(sFG)}, s31, {FL_STEP}\ns_lshl_b32 s36, s35, 13\ns_add_u32 {s(sFG)}, {s(sFG)}, s36\ns_add_u32 {s(sFG)}, {s(sFG)}, {FG}")
    A(f"v_min_u32 {v(FA)}, 55, v0\nv_lshlrev_b32 {v(FA)}, 7, {v(FA)}")
    A(f"s_lshl_b32 s33, {s(S_W)}, 12\nv_add_u32 {v(RW)}, s33, v3\ns_lshl_b32 s33, s29, 11\nv_add_u32 {v(RR)}, s33, v3")
    A(f"v_mul_u32_u24 v4, 896, v1\nv_lshl_add_u32 {v(OA)}, v2, 4, v4")
    top, nxt = A.new("f2_top"), A.new("f2_next")
    mark(A, opts, 1)
    A(f"{top}:")
    wait_flags(A, FV, FA, sFG)
    tmark(A, opts, 2)
    again = A.new("f2_again")
    A(f"s_barrier\n{again}:")
    vm = Cnt(A, "vmcnt", 63)
    A(f"s_mov_b32 s33, {s(sG)}")
    for ks in range(14):
        vm.op(f"buffer_load_dwordx4 {v(Gr + 4 * ks, 4)}, v3, {s(WS, 4)}, s33 offen offset:{(ks % 4) * KB} sc1", f"g{ks}")
        if ks % 4 == 3:
            A("s_add_u32 s33, s33, 4096")
    vm.op(f"buffer_load_dwordx4 {v(HV, 4)}, v3, {s(WS, 4)}, {s(sH)} offen sc1", "h")
    for ks in range(14):
        vm.wait(f"g{ks}")
        for t in range(4):
            d = v(ACC + 4 * t, 4)
            A(f"{MF} {d}, {a((t * 14 + ks) * 4, 4)}, {v(Gr + 4 * ks, 4)}, {'0' if ks == 0 else d}")
    verify_last(A, opts, sS, list(range(Gr, Gr + 56)) + list(range(HV, HV + 4)), T, again)
    for k in range(4):
        A(f"ds_write_b128 {v(RW)}, {v(ACC + 4 * k, 4)} offset:{k * KB}")
    A(f"s_cmp_ge_u32 {s(S_W)}, 2\ns_waitcnt vmcnt(0) lgkmcnt(0)\ns_barrier\ns_cbranch_scc1 {nxt}")
    reduce_tiles(A, R, O, RR, 0)
    tmark(A, opts, 3)
    unpack(A, R, HV, 4, sMASK)
    for r in range(8):
        A(f"v_add_f32 {v(O + r)}, {v(O + r)}, {v(B2 + r)}")
    for r in range(8):
        A(f"v_add_f32 {v(O + r)}, {v(O + r)}, {v(R + r)}")
    for r in range(4):
        A(f"v_cvt_pk_bf16_f32 {v(R + 8 + r)}, {v(O + 2 * r)}, {v(O + 2 * r + 1)}")
    A(f"buffer_store_dwordx4 {v(R + 8, 4)}, {v(OA)}, {s(O_, 4)}, {s(sO)} offen{['', ' sc1', ' nt'][opts.get('osc', 0)]}")
    A(f"{nxt}:")
    for r, step in ((sS, 1), (sG, 112 * KB), (sH, 28 * KB), (sO, 32 * 896), (sFG, FL_STEP)):
        A(f"s_add_u32 {s(r)}, {s(r)}, {F_TEAMS * step}")
    A(f"s_cmp_lt_u32 {s(sS)}, 64\ns_cbranch_scc1 {top}")
    dbg_time(A, opts, 7, 206)
    amp_mark(A, opts, 4)
    amp_spin(A, opts, 206, (4,))
    flush_stamps(A, opts)
    A("s_endpgm")
```

```python
from asmlib import v, a, s
from layout import *

WS, DB = 8, 12
S_W, S_ID, S_FOREIGN, S_POLL, S_NONCE = 3, 4, 5, 6, 98
POLL_MAX = 0x40000
OOB = 0x40000000
FNT = ' sc1'
WV0 = 120


def wreg(idx, n, nacc=256, v0=WV0):
    return a(idx, n) if idx < nacc else v(v0 + idx - nacc, n)


class Cnt:
    def __init__(self, A, name, cap):
        self.A, self.name, self.cap, self.q = A, name, cap, []

    def op(self, text, tag=None):
        self.A(text)
        self.q.append(tag)

    def wait(self, *tags):
        last = -1
        for i, t in enumerate(self.q):
            if t in tags:
                last = i
        if last < 0:
            return
        n = min(len(self.q) - 1 - last, self.cap)
        self.A(f"s_waitcnt {self.name}({n})")
        self.q = self.q[len(self.q) - n:] if n else []

    def drain(self):
        self.A(f"s_waitcnt {self.name}(0)")
        self.q = []

    def room(self, n):
        if len(self.q) + n > self.cap:
            keep = self.cap - n
            self.A(f"s_waitcnt {self.name}({keep})")
            self.q = self.q[len(self.q) - keep:] if keep else []


def poll_guard(A):
    A(f"s_add_u32 {s(S_POLL)}, {s(S_POLL)}, 1\ns_cmp_gt_u32 {s(S_POLL)}, {POLL_MAX}\ns_cbranch_scc1 L_timeout")


def flag_load(A, dst, va, soff):
    A(f"buffer_load_dwordx2 {v(dst, 2)}, {v(va)}, {s(WS, 4)}, {soff} offen sc1")


def flag_missing(A, regs):
    words = [r + k for r in regs for k in range(2)]
    A(f"v_cmp_ne_u32 vcc, {s(S_NONCE)}, {v(words[0])}")
    for r in words[1:]:
        A(f"v_cmp_ne_u32 s[36:37], {s(S_NONCE)}, {v(r)}\ns_or_b64 vcc, vcc, s[36:37]")


def wait_prep(A, everything):
    lp, out = A.new("wp"), A.new("wpd")
    n = 4 if everything else 1
    A(f"s_cmp_eq_u32 {s(S_W)}, 0\ns_cbranch_scc0 {out}")
    if everything:
        A(f"v_lshlrev_b32 v4, 7, v0\ns_mov_b32 s34, {DONE}")
    else:
        A(f"v_and_b32 v4, 31, v0\nv_lshlrev_b32 v4, 7, v4\ns_mov_b32 s34, {DONE + 224 * 128}")
    A(f"{lp}:")
    for k in range(n):
        A(f"s_add_u32 s35, s34, {k * 8192}")
        flag_load(A, 8 + 2 * k, 4, "s35")
    poll_guard(A)
    A("s_waitcnt vmcnt(0)")
    flag_missing(A, [8 + 2 * k for k in range(n)])
    A(f"s_cbranch_vccz {out}\ns_sleep 2\ns_branch {lp}")
    A(f"{out}:\ns_barrier")


def wait_start(A, opts, slow, extra=None):
    lp = A.new("ws")
    A(f"v_lshlrev_b32 v4, 3, v3\nv_mov_b32 v5, 68")
    A(f"{lp}:")
    for k in range(4):
        A(f"s_mov_b32 s35, {DONE + k * 8192}")
        flag_load(A, 8 + 2 * k, 4, "s35")
    if extra:
        flag_load(A, 16, extra[0], s(extra[1]))
    A(f"buffer_load_dword v6, v5, {s(DB, 4)}, 0 offen sc1")
    poll_guard(A)
    A("s_waitcnt vmcnt(0)\nv_readfirstlane_b32 s34, v6")
    flag_missing(A, [8 + 2 * k for k in range(5 if extra else 4)])
    A(f"s_cbranch_vccnz {lp}\ns_and_b32 s35, s34, 0xff\ns_cmp_eq_u32 s35, 32\ns_cbranch_scc0 {lp}")
    mark(A, opts, 1)
    dbg_time(A, opts, 5, 16)
    amp_mark(A, opts, 2)
    A(f"s_waitcnt lgkmcnt(0)\ns_lshr_b32 s34, s34, 8\ns_cmp_eq_u32 s34, 0\ns_cbranch_scc0 {slow}")


def load_pieces(A, pieces, task, ln_piece=None):
    lp = A.new("lp")
    if ln_piece:
        A(f"v_add_u32 {v(task + 1)}, 192, v0\nv_cmp_gt_u32 vcc, 32, v0\nv_cndmask_b32 {v(task)}, {v(task + 1)}, {v(task)}, vcc")
        pieces = pieces + [ln_piece]
    full = (1 << len(pieces)) - 1
    A(f"v_lshlrev_b32 {v(task)}, 7, {v(task)}\ns_mov_b32 s38, 0\ns_mov_b32 s39, {DONE}")
    A(f"{lp}:")
    flag_load(A, task + 2, task, "s39")
    poll_guard(A)
    A(f"s_waitcnt vmcnt(0)\nv_cmp_eq_u32 vcc, {s(S_NONCE)}, {v(task + 2)}\nv_cmp_eq_u32 s[42:43], {s(S_NONCE)}, {v(task + 3)}\ns_and_b64 vcc, vcc, s[42:43]")
    if ln_piece:
        b = 1 << (len(pieces) - 1)
        A(f"s_and_b32 s40, vcc_lo, {b - 1}\ns_cmp_eq_u32 vcc_hi, -1\ns_cselect_b32 s42, {b}, 0\ns_or_b32 s40, s40, s42\ns_andn2_b32 s40, s40, s38")
    else:
        A("s_andn2_b32 s40, vcc_lo, s38")
    for p, (n, emit) in enumerate(pieces):
        sk = A.new("lps")
        A(f"s_bitcmp1_b32 s40, {p}\ns_cbranch_scc0 {sk}\ns_waitcnt vmcnt({63 - n})")
        emit()
        A(f"{sk}:")
    A(f"s_or_b32 s38, s38, s40\ns_and_b32 s38, s38, {full}\ns_cmp_eq_u32 s38, {full}\ns_cbranch_scc0 {lp}")


def frag_loads(A, sreg, items, nacc=256, v0=WV0, cap=None):
    base = None
    for idx, off in items:
        if base is None or not 0 <= off - base < 4096:
            base = off
            A(f"s_add_u32 s41, {s(sreg)}, {off}")
        A(f"buffer_load_dwordx4 {wreg(idx, 4, nacc, v0)}, v3, {s(WS, 4)}, s41 offen offset:{off - base}{FNT}")
        if cap:
            A(f"s_waitcnt vmcnt({cap})")


def interleave(A, stream, fill):
    def em(x):
        if callable(x):
            x()
        else:
            A(x)
    for x in fill.get(-1, []):
        em(x)
    for i, m in enumerate(stream):
        em(m)
        for x in fill.get(i, []):
            em(x)


def spread(fill, start, items, per=2):
    g = start
    for it in items:
        while len(fill.setdefault(g, [])) >= per:
            g += 1
        fill[g].append(it)
    return g


def load_weights(A, vm, vaddr, tiles, sreg, n_ks=14, base_idx=0, nacc=256, v0=WV0, flags=" sc1"):
    idx = base_idx
    for setter in tiles:
        setter()
        for ks in range(n_ks):
            vm.room(1)
            vm.op(f"buffer_load_dwordx4 {wreg(idx, 4, nacc, v0)}, {v(vaddr)}, {s(WS, 4)}, {s(sreg)} offen offset:{(ks % 4) * 1024}{flags}", "w")
            if ks % 4 == 3:
                A(f"s_add_u32 {s(sreg)}, {s(sreg)}, 4096")
            idx += 4


def sentinel_check(A, regs, t, retry):
    regs = list(regs)
    A(f"v_max3_u32 {v(t)}, {v(regs[0])}, {v(regs[1])}, {v(regs[2])}")
    rest = regs[3:]
    while len(rest) >= 2:
        A(f"v_max3_u32 {v(t)}, {v(t)}, {v(rest[0])}, {v(rest[1])}")
        rest = rest[2:]
    if rest:
        A(f"v_max_u32 {v(t)}, {v(t)}, {v(rest[0])}")
    A(f"v_cmp_eq_u32 vcc, -1, {v(t)}\ns_cbranch_vccnz {retry}")


def stamp(A, opts, slot):
    if opts.get("stamps", 0) == 2:
        A(f"s_memtime {s(60 + 2 * slot, 2)}")
        if slot == 0:
            A("s_memrealtime s[74:75]")


def collect(A, opts, vb, sstep=44):
    if opts.get("stamps", 0) == 2:
        A(f"s_waitcnt lgkmcnt(0)\ns_mov_b32 m0, {s(sstep)}")
        for k in range(5):
            A(f"v_writelane_b32 {v(vb + k)}, {s(60 + 2 * k)}, m0")
        A(f"v_writelane_b32 {v(vb + 5)}, s74, m0")


def collect_lds(A, opts, sbase, off, t, sstep=44):
    if opts.get("stamps", 0) == 2:
        A(f"s_waitcnt lgkmcnt(0)\ns_lshl_b32 s78, {s(sstep)}, 2\ns_add_u32 s78, s78, {s(sbase)}\nv_mov_b32 {v(t + 1)}, s78")
        for k, r in enumerate([60, 62, 64, 66, 68, 74]):
            A(f"v_mov_b32 {v(t)}, {s(r)}\nds_write_b32 {v(t + 1)}, {v(t)} offset:{off + 256 * k}")


def fetch_lds(A, opts, sbase, off, vb):
    if opts.get("stamps"):
        A(f"v_lshrrev_b32 v0, 4, v3\nv_lshlrev_b32 v4, 2, v0\nv_add_u32 v4, {s(sbase)}, v4")
        for k in range(6):
            A(f"ds_read_b32 {v(vb + k)}, v4 offset:{off + 256 * k}")
        A("s_waitcnt lgkmcnt(0)")


def mark(A, opts, k):
    if opts.get("stamps"):
        A(f"s_memtime s[78:79]\ns_memrealtime s[76:77]\ns_waitcnt lgkmcnt(0)\ns_mov_b32 {s(80 + 2 * k)}, s78\ns_mov_b32 {s(81 + 2 * k)}, s76")


def flush_stamps(A, opts, vb=114):
    if opts.get("stamps"):
        mark(A, opts, 7)
        A(f"s_lshl_b32 s78, {s(S_ID)}, 2\ns_add_u32 s78, s78, {s(S_W)}\ns_lshl_b32 s78, s78, 11\ns_add_u32 s78, s78, {DBG}")
        A("v_lshlrev_b32 v4, 2, v0")
        for k in range(6):
            A(f"buffer_store_dword {v(vb + k)}, v4, {s(WS, 4)}, s78 offen offset:{256 * k}")
        A("v_mov_b32 v4, 0")
        for k in range(16):
            A(f"v_mov_b32 v5, {s(80 + k)}\nbuffer_store_dword v5, v4, {s(WS, 4)}, s78 offen offset:{1536 + 4 * k}")


def dbg_time(A, opts, slot, who, sreg=S_ID, srd=DB, base=80):
    if opts.get("tl"):
        sk = A.new("tl")
        A(f"s_cmp_eq_u32 {s(sreg)}, {who}\ns_cbranch_scc0 {sk}\ns_cmp_eq_u32 s3, 0\ns_cbranch_scc0 {sk}")
        A("s_memrealtime s[76:77]\ns_waitcnt lgkmcnt(0)")
        A(f"v_mov_b32 v4, s76\nv_mov_b32 v5, {(16 if slot < 4 else 32) + 4 * slot}\nbuffer_store_dword v4, v5, {s(srd, 4)}, 0 offen\n{sk}:")


def amp_mark(A, opts, k):
    if opts.get("amp") is not None and (k == 0 or opts["amp"] == k):
        A(f"s_memrealtime s[76:77]\ns_waitcnt lgkmcnt(0)\ns_mov_b32 {'s97' if k == 0 else 's96'}, s76")
        if k == 0:
            A("s_mov_b32 s96, s76")


def amp_spin(A, opts, who, ks):
    if opts.get("amp") in ks:
        lp, sk = A.new("amp"), A.new("amps")
        A(f"s_cmp_eq_u32 {s(S_ID)}, {who}\ns_cbranch_scc0 {sk}\ns_sub_u32 s96, s96, s97\ns_lshl_b32 s96, s96, 2\ns_add_u32 s96, s96, 20000")
        A(f"{lp}:\ns_memrealtime s[76:77]\ns_waitcnt lgkmcnt(0)\ns_sub_u32 s76, s76, s97\ns_cmp_lt_u32 s76, s96\ns_cbranch_scc1 {lp}\n{sk}:")
```

```python
from asmlib import v, a, s
from layout import *

WS, DB = 8, 12
S_W, S_ID, S_FOREIGN, S_POLL, S_NONCE = 3, 4, 5, 6, 98
POLL_MAX = 0x40000
OOB = 0x40000000
FNT = ' sc1'
WV0 = 120


def wreg(idx, n, nacc=256, v0=WV0):
    return a(idx, n) if idx < nacc else v(v0 + idx - nacc, n)


class Cnt:
    def __init__(self, A, name, cap):
        self.A, self.name, self.cap, self.q = A, name, cap, []

    def op(self, text, tag=None):
        self.A(text)
        self.q.append(tag)

    def wait(self, *tags):
        last = -1
        for i, t in enumerate(self.q):
            if t in tags:
                last = i
        if last < 0:
            return
        n = min(len(self.q) - 1 - last, self.cap)
        self.A(f"s_waitcnt {self.name}({n})")
        self.q = self.q[len(self.q) - n:] if n else []

    def drain(self):
        self.A(f"s_waitcnt {self.name}(0)")
        self.q = []

    def room(self, n):
        if len(self.q) + n > self.cap:
            keep = self.cap - n
            self.A(f"s_waitcnt {self.name}({keep})")
            self.q = self.q[len(self.q) - keep:] if keep else []


def poll_guard(A):
    A(f"s_add_u32 {s(S_POLL)}, {s(S_POLL)}, 1\ns_cmp_gt_u32 {s(S_POLL)}, {POLL_MAX}\ns_cbranch_scc1 L_timeout")


def flag_load(A, dst, va, soff):
    A(f"buffer_load_dwordx2 {v(dst, 2)}, {v(va)}, {s(WS, 4)}, {soff} offen sc1")


def flag_missing(A, regs):
    words = [r + k for r in regs for k in range(2)]
    A(f"v_cmp_ne_u32 vcc, {s(S_NONCE)}, {v(words[0])}")
    for r in words[1:]:
        A(f"v_cmp_ne_u32 s[36:37], {s(S_NONCE)}, {v(r)}\ns_or_b64 vcc, vcc, s[36:37]")


def wait_prep(A, everything, barrier=True):
    lp, out = A.new("wp"), A.new("wpd")
    n = 4 if everything else 1
    A(f"s_cmp_eq_u32 {s(S_W)}, 0\ns_cbranch_scc0 {out}")
    if everything:
        A(f"v_lshlrev_b32 v4, 7, v0\ns_mov_b32 s34, {DONE}")
    else:
        A(f"v_and_b32 v4, 31, v0\nv_lshlrev_b32 v4, 7, v4\ns_mov_b32 s34, {DONE + 224 * 128}")
    A(f"{lp}:")
    for k in range(n):
        A(f"s_add_u32 s35, s34, {k * 8192}")
        flag_load(A, 8 + 2 * k, 4, "s35")
    poll_guard(A)
    A("s_waitcnt vmcnt(0)")
    flag_missing(A, [8 + 2 * k for k in range(n)])
    A(f"s_cbranch_vccz {out}\ns_sleep 2\ns_branch {lp}")
    A(f"{out}:\ns_barrier" if barrier else f"{out}:")


def wait_start(A, opts, slow, extra=None, sleep=0):
    lp = A.new("ws")
    A(f"v_lshlrev_b32 v4, 3, v3\nv_mov_b32 v5, 68\nv_min_u32 v7, {33 * 128}, v4")
    A(f"{lp}:")
    if sleep:
        A(f"s_sleep {sleep}")
    for k in range(4):
        A(f"s_mov_b32 s35, {DONE + k * 8192}")
        flag_load(A, 8 + 2 * k, 7 if k == 3 else 4, "s35")
    if extra:
        flag_load(A, 16, extra[0], s(extra[1]))
    A(f"buffer_load_dword v6, v5, {s(DB, 4)}, 0 offen sc1")
    poll_guard(A)
    A("s_waitcnt vmcnt(0)\nv_readfirstlane_b32 s34, v6")
    flag_missing(A, [8 + 2 * k for k in range(5 if extra else 4)])
    A(f"s_cbranch_vccnz {lp}\ns_and_b32 s35, s34, 0xff\ns_cmp_eq_u32 s35, 32\ns_cbranch_scc0 {lp}")
    mark(A, opts, 1)
    dbg_time(A, opts, 5, 16)
    amp_mark(A, opts, 2)
    A(f"s_waitcnt lgkmcnt(0)\ns_lshr_b32 s34, s34, 8\ns_cmp_eq_u32 s34, 0\ns_cbranch_scc0 {slow}")


def load_pieces(A, pieces, task, ln_piece=None):
    lp = A.new("lp")
    if ln_piece:
        A(f"v_and_b32 {v(task + 1)}, 1, v0\nv_add_u32 {v(task + 1)}, 224, {v(task + 1)}\nv_cmp_gt_u32 vcc, 32, v0\nv_cndmask_b32 {v(task)}, {v(task + 1)}, {v(task)}, vcc")
        pieces = pieces + [ln_piece]
    full = (1 << len(pieces)) - 1
    A(f"v_lshlrev_b32 {v(task)}, 7, {v(task)}\ns_mov_b32 s38, 0\ns_mov_b32 s39, {DONE}")
    A(f"{lp}:")
    flag_load(A, task + 2, task, "s39")
    poll_guard(A)
    A(f"s_waitcnt vmcnt(0)\nv_cmp_eq_u32 vcc, {s(S_NONCE)}, {v(task + 2)}\nv_cmp_eq_u32 s[42:43], {s(S_NONCE)}, {v(task + 3)}\ns_and_b64 vcc, vcc, s[42:43]")
    if ln_piece:
        b = 1 << (len(pieces) - 1)
        A(f"s_and_b32 s40, vcc_lo, {b - 1}\ns_cmp_eq_u32 vcc_hi, -1\ns_cselect_b32 s42, {b}, 0\ns_or_b32 s40, s40, s42\ns_andn2_b32 s40, s40, s38")
    else:
        A("s_andn2_b32 s40, vcc_lo, s38")
    for p, (n, emit) in enumerate(pieces):
        sk = A.new("lps")
        A(f"s_bitcmp1_b32 s40, {p}\ns_cbranch_scc0 {sk}\ns_waitcnt vmcnt({63 - n})")
        emit()
        A(f"{sk}:")
    out = A.new("lpo")
    A(f"s_or_b32 s38, s38, s40\ns_and_b32 s38, s38, {full}\ns_cmp_eq_u32 s38, {full}\ns_cbranch_scc1 {out}\ns_sleep 2\ns_branch {lp}\n{out}:")


def frag_loads(A, sreg, items, nacc=256, v0=WV0, cap=None):
    base = None
    for idx, off in items:
        if base is None or not 0 <= off - base < 4096:
            base = off
            A(f"s_add_u32 s41, {s(sreg)}, {off}")
        A(f"buffer_load_dwordx4 {wreg(idx, 4, nacc, v0)}, v3, {s(WS, 4)}, s41 offen offset:{off - base}{FNT}")
        if cap:
            A(f"s_waitcnt vmcnt({cap})")


def interleave(A, stream, fill):
    def em(x):
        if callable(x):
            x()
        else:
            A(x)
    for x in fill.get(-1, []):
        em(x)
    for i, m in enumerate(stream):
        em(m)
        for x in fill.get(i, []):
            em(x)


def spread(fill, start, items, per=2):
    g = start
    for it in items:
        while len(fill.setdefault(g, [])) >= per:
            g += 1
        fill[g].append(it)
    return g


def load_weights(A, vm, vaddr, tiles, sreg, n_ks=14, base_idx=0, nacc=256, v0=WV0, flags=" sc1"):
    idx = base_idx
    for setter in tiles:
        setter()
        for ks in range(n_ks):
            vm.room(1)
            vm.op(f"buffer_load_dwordx4 {wreg(idx, 4, nacc, v0)}, {v(vaddr)}, {s(WS, 4)}, {s(sreg)} offen offset:{(ks % 4) * 1024}{flags}", "w")
            if ks % 4 == 3:
                A(f"s_add_u32 {s(sreg)}, {s(sreg)}, 4096")
            idx += 4


def sentinel_check(A, regs, t, retry):
    regs = list(regs)
    A(f"v_max3_u32 {v(t)}, {v(regs[0])}, {v(regs[1])}, {v(regs[2])}")
    rest = regs[3:]
    while len(rest) >= 2:
        A(f"v_max3_u32 {v(t)}, {v(t)}, {v(rest[0])}, {v(rest[1])}")
        rest = rest[2:]
    if rest:
        A(f"v_max_u32 {v(t)}, {v(t)}, {v(rest[0])}")
    A(f"v_cmp_eq_u32 vcc, -1, {v(t)}\ns_cbranch_vccnz {retry}")


def stamp(A, opts, slot):
    if opts.get("stamps", 0) == 2:
        A(f"s_memtime {s(60 + 2 * slot, 2)}")
        if slot == 0:
            A("s_memrealtime s[74:75]")


def collect(A, opts, vb, sstep=44):
    if opts.get("stamps", 0) == 2:
        A(f"s_waitcnt lgkmcnt(0)\ns_mov_b32 m0, {s(sstep)}")
        for k in range(5):
            A(f"v_writelane_b32 {v(vb + k)}, {s(60 + 2 * k)}, m0")
        A(f"v_writelane_b32 {v(vb + 5)}, s74, m0")


def collect_lds(A, opts, sbase, off, t, sstep=44):
    if opts.get("stamps", 0) == 2:
        A(f"s_waitcnt lgkmcnt(0)\ns_lshl_b32 s78, {s(sstep)}, 2\ns_add_u32 s78, s78, {s(sbase)}\nv_mov_b32 {v(t + 1)}, s78")
        for k, r in enumerate([60, 62, 64, 66, 68, 74]):
            A(f"v_mov_b32 {v(t)}, {s(r)}\nds_write_b32 {v(t + 1)}, {v(t)} offset:{off + 256 * k}")


def fetch_lds(A, opts, sbase, off, vb):
    if opts.get("stamps"):
        A(f"v_lshrrev_b32 v0, 4, v3\nv_lshlrev_b32 v4, 2, v0\nv_add_u32 v4, {s(sbase)}, v4")
        for k in range(6):
            A(f"ds_read_b32 {v(vb + k)}, v4 offset:{off + 256 * k}")
        A("s_waitcnt lgkmcnt(0)")


def mark(A, opts, k):
    if opts.get("stamps"):
        A(f"s_memtime s[78:79]\ns_memrealtime s[76:77]\ns_waitcnt lgkmcnt(0)\ns_mov_b32 {s(80 + 2 * k)}, s78\ns_mov_b32 {s(81 + 2 * k)}, s76")


def flush_stamps(A, opts, vb=114):
    if opts.get("stamps"):
        mark(A, opts, 7)
        A(f"s_lshl_b32 s78, {s(S_ID)}, 2\ns_add_u32 s78, s78, {s(S_W)}\ns_lshl_b32 s78, s78, 11\ns_add_u32 s78, s78, {DBG}")
        A("v_lshlrev_b32 v4, 2, v0")
        for k in range(6):
            A(f"buffer_store_dword {v(vb + k)}, v4, {s(WS, 4)}, s78 offen offset:{256 * k}")
        A("v_mov_b32 v4, 0")
        for k in range(16):
            A(f"v_mov_b32 v5, {s(80 + k)}\nbuffer_store_dword v5, v4, {s(WS, 4)}, s78 offen offset:{1536 + 4 * k}")


def dbg_time(A, opts, slot, who, sreg=S_ID, srd=DB, base=80):
    if opts.get("tl"):
        sk = A.new("tl")
        A(f"s_cmp_eq_u32 {s(sreg)}, {who}\ns_cbranch_scc0 {sk}\ns_cmp_eq_u32 s3, 0\ns_cbranch_scc0 {sk}")
        A("s_memrealtime s[76:77]\ns_waitcnt lgkmcnt(0)")
        A(f"v_mov_b32 v4, s76\nv_mov_b32 v5, {(16 if slot < 4 else 32) + 4 * slot}\nbuffer_store_dword v4, v5, {s(srd, 4)}, 0 offen\n{sk}:")


def amp_mark(A, opts, k):
    if opts.get("amp") is not None and (k == 0 or opts["amp"] == k):
        A(f"s_memrealtime s[76:77]\ns_waitcnt lgkmcnt(0)\ns_mov_b32 {'s97' if k == 0 else 's96'}, s76")
        if k == 0:
            A("s_mov_b32 s96, s76")


def amp_spin(A, opts, who, ks):
    if opts.get("amp") in ks:
        lp, sk = A.new("amp"), A.new("amps")
        A(f"s_cmp_eq_u32 {s(S_ID)}, {who}\ns_cbranch_scc0 {sk}\ns_sub_u32 s96, s96, s97\ns_lshl_b32 s96, s96, 2\ns_add_u32 s96, s96, 20000")
        A(f"{lp}:\ns_memrealtime s[76:77]\ns_waitcnt lgkmcnt(0)\ns_sub_u32 s76, s76, s97\ns_cmp_lt_u32 s76, s96\ns_cbranch_scc1 {lp}\n{sk}:")
```

```python
from asmlib import v, a, s
from layout import *
from common import *
from gen_prep import chunk_pos

SMF = "v_smfmac_f32_16x16x64_bf16"
MF = "v_mfma_f32_16x16x32_bf16"
N_CHAIN = 32


def chain_mode(A, opts, vm, lab):
    lp = A.new("reg")
    A("v_mov_b32 v5, 68")
    A(f"{lp}:\ns_sleep 16")
    A(f"buffer_load_dword v4, v5, {s(DB, 4)}, 0 offen sc1")
    poll_guard(A)
    vm.drain()
    A(f"v_readfirstlane_b32 s34, v4\ns_and_b32 s35, s34, 0xff\ns_cmp_eq_u32 s35, {N_CHAIN}\ns_cbranch_scc0 {lp}")
    mark(A, opts, 1)
    dbg_time(A, opts, 5, 16)
    if lab:
        A(f"s_waitcnt lgkmcnt(0)\ns_lshr_b32 s34, s34, 8\ns_cmp_eq_u32 s34, 0\ns_cbranch_scc0 {lab}")


def gather_addr(A, ga0, ga1):
    A(f"s_mul_i32 s33, {s(S_W)}, {112 * 16}\nv_add_u32 {v(ga0)}, s33, v3")
    A(f"v_min_u32 {v(ga1)}, 47, v0\nv_lshlrev_b32 {v(ga1)}, 4, {v(ga1)}\ns_add_u32 s33, s33, 1024\nv_add_u32 {v(ga1)}, s33, {v(ga1)}")


def mem_loads(A, G, ga0, ga1, scm):
    A(f"buffer_load_dwordx4 {v(G, 4)}, {v(ga0)}, {s(WS, 4)}, {s(scm)} offen sc1")
    A(f"buffer_load_dwordx4 {v(G + 4, 4)}, {v(ga1)}, {s(WS, 4)}, {s(scm)} offen sc1")


def check8(A, G, t):
    A(f"v_max3_u32 {v(t)}, {v(G)}, {v(G + 1)}, {v(G + 2)}\nv_max3_u32 {v(t + 1)}, {v(G + 3)}, {v(G + 4)}, {v(G + 5)}")
    A(f"v_max3_u32 {v(t)}, {v(t)}, {v(G + 6)}, {v(G + 7)}\nv_max_u32 {v(t)}, {v(t)}, {v(t + 1)}\nv_cmp_eq_u32 vcc, -1, {v(t)}")


def gather_mem(A, opts, G0, G1, ga0, ga1, scm, t, memb, shadow, ka=""):
    lp, ok = A.new("poll"), A.new("ok")
    mem_loads(A, G0, ga0, ga1, scm)
    for x in shadow:
        A(x)
    A(f"{lp}:")
    for cur, other in ((G0, G1), (G1, G0)):
        mem_loads(A, other, ga0, ga1, scm)
        poll_guard(A)
        A(ka)
        A("s_waitcnt vmcnt(2)")
        A(f"ds_write_b128 {v(ga0)}, {v(cur, 4)} offset:{memb}\nds_write_b128 {v(ga1)}, {v(cur + 4, 4)} offset:{memb}")
        check8(A, cur, t)
        if opts.get("solo"):
            A(f"s_cbranch_vccz {ok}\ns_branch {ok}")
        A(f"s_cbranch_vccz {ok}" if cur == G0 else f"s_cbranch_vccnz {lp}")
    A(f"{ok}:")
    stamp(A, opts, 0)
    A("s_waitcnt lgkmcnt(0)\ns_barrier")


def notice_wait(A, opts, F, fa, sreg, off, shadow, sstep=None):
    if opts.get("solo"):
        for x in shadow:
            A(x)
        return
    depth = opts.get("nd", 3)
    lp, ok = A.new("nw"), A.new("nok")
    ld = lambda k: A(f"buffer_load_dword {v(F + k)}, {v(fa)}, {s(WS, 4)}, {s(sreg)} offen offset:{off} sc1")
    for k in range(depth - 1):
        ld(k)
    for x in shadow:
        A(x)
    if sstep is not None:
        A(f"s_cmp_eq_u32 {s(sstep)}, 0\ns_cbranch_scc1 {ok}")
    A(f"{lp}:")
    poll_guard(A)
    for k in range(depth):
        ld((k + depth - 1) % depth)
        A(f"s_waitcnt vmcnt({depth - 1})\nv_cmp_ne_u32 vcc, {s(S_NONCE)}, {v(F + k)}")
        A(f"s_cbranch_vccz {ok}" if k < depth - 1 else f"s_cbranch_vccnz {lp}")
    A(f"{ok}:")


def fetch_mem(A, opts, G, ga0, ga1, scm, t, memb, ka=""):
    lp = A.new("fm")
    A(f"{lp}:")
    mem_loads(A, G, ga0, ga1, scm)
    poll_guard(A)
    A(ka)
    A("s_waitcnt vmcnt(0)")
    A(f"ds_write_b128 {v(ga0)}, {v(G, 4)} offset:{memb}\nds_write_b128 {v(ga1)}, {v(G + 4, 4)} offset:{memb}")
    check8(A, G, t)
    if opts.get("stamps"):
        A("s_add_u32 s53, s53, 1")
    if not opts.get("solo"):
        A(f"s_cbranch_vccnz {lp}")
    stamp(A, opts, 0)
    A("s_waitcnt lgkmcnt(0)\ns_barrier")


def notice(A, val, addr, sreg, off, sc):
    A(f"buffer_store_dword {v(val)}, {v(addr)}, {s(WS, 4)}, {s(sreg)} offen offset:{off}{sc}")


def idx_reg(A, r):
    A(f"v_mov_b32 {v(r)}, 0x44444444\nv_mov_b32 v4, 0xeeeeeeee\nv_cmp_gt_u32 vcc, 8, v1\nv_cndmask_b32 {v(r)}, v4, {v(r)}, vcc")


def zero(r, n):
    return [f"v_mov_b64 {v(r + 2 * k, 2)}, 0" for k in range(n // 2)]


def emit_stream(A, stream, fill):
    for i, m_ in enumerate(stream):
        m_() if callable(m_) else A(m_)
        items = fill.get(i, [])
        for x in items:
            x() if callable(x) else A(x)
        if not items and i + 1 < len(stream):
            A("s_nop 1")


def gen_chain_a(A, opts):
    MEM, ACC, KEY, TSP, SC, PK, IDX = 4, 32, 60, 84, 92, 104, 108
    CK, PFA, SR2, FA, MK, MK3, TW0, TW1, TWS, TR0, TR1 = range(109, 120)
    XR, SW, SR, PX, PM = 0, 1, 2, 106, 107
    T = 104
    REG = 32768
    XK, TB, SB, MEMB = 0, 16384, 20480, 24576
    sS, sCM, sCP, sXA, sXB, sM0, sP0, sODD, sREG, sEF, sYP, sMB, sQ, sEX = 44, 45, 46, 47, 48, 49, 50, 51, 52, 54, 55, 56, 57, 58
    vm = Cnt(A, "vmcnt", 63)
    A(f"s_and_b32 {s(sODD)}, {s(S_W)}, 1\ns_mul_i32 s33, {s(S_W)}, 7\ns_add_u32 {s(sP0)}, s33, {s(sODD)}\ns_lshr_b32 {s(sP0)}, {s(sP0)}, 1")
    A(f"s_lshl_b32 {s(sREG)}, {s(S_W)}, 15\ns_mov_b32 {s(sM0)}, {s(sREG)}")
    A(f"s_lshl_b32 {s(sXA)}, {s(sP0)}, 10\ns_add_u32 {s(sXA)}, {s(sXA)}, {XS}\ns_lshl_b32 s33, {s(sODD)}, 12\ns_sub_u32 {s(sXB)}, {s(sXA)}, s33")

    def dma(k):
        aa, b = k // 4, k % 4
        pre = f"s_add_u32 s33, {s(sM0)}, {aa * 4096}\ns_mov_b32 m0, s33\n" if b == 0 else ""
        if b in (0, 3):
            pre += f"s_add_u32 s34, {s(sXB if b == 3 else sXA)}, {aa * 14336}\n"
        return pre + f"buffer_load_dwordx4 v3, {s(WS, 4)}, s34 offen offset:{b * 1024} sc1 lds"

    A(f"s_mul_i32 s34, {s(S_ID)}, {FRAG_H}\ns_mul_i32 s33, {s(S_W)}, {7 * 14 * KB}\ns_add_u32 s34, s34, s33")
    if AF:
        A(f"s_add_u32 s34, s34, {AF}")
    A(f"s_mul_i32 s35, {s(sODD)}, {14 * KB}\ns_add_u32 s35, s35, s34\ns_add_u32 s36, s34, {6 * 14 * KB}\ns_cmp_eq_u32 {s(sODD)}, 0\ns_cselect_b32 s36, s36, s34")
    A(f"s_mul_i32 s33, {s(S_ID)}, 7\nv_min_u32 v4, 6, v0\nv_add_u32 v4, s33, v4")

    def piece(kk):
        frag_loads(A, 35, [((i * 7 + kk) * 8 + 4 * u, i * 14 * KB + (2 * kk + u) * KB) for i in range(6) for u in range(2)])
        frag_loads(A, 36, [((42 + kk) * 8 + 4 * u, (2 * kk + u) * KB) for u in range(2)])

    A(f"s_lshl_b32 {s(sQ)}, {s(S_W)}, 11\ns_add_u32 {s(sMB)}, {s(sQ)}, {MEMB}\ns_add_u32 {s(sQ)}, {s(sQ)}, {CM}")
    A(f"s_cmp_eq_u32 {s(S_W)}, 3\ns_cselect_b64 {s(sEX, 2)}, {opts.get('ex3', 1)}, -1")
    fetch = f"buffer_load_dwordx4 v3, {s(WS, 4)}, {s(sQ)} offen sc1 lds\ns_mov_b64 exec, {s(sEX, 2)}\nbuffer_load_dwordx4 v3, {s(WS, 4)}, {s(sQ)} offen offset:1024 sc1 lds\ns_mov_b64 exec, -1"

    def first_inputs():
        for k in range(8):
            A(dma(k))
        A(f"s_mov_b32 m0, {s(sMB)}\ns_nop 0\n" + fetch)

    if opts.get('late'):
        A('v_mov_b32 v20, v4\ns_mov_b32 s60, s35\ns_mov_b32 s61, s36')
        wait_prep(A, True)
        A('v_mov_b32 v4, v20\ns_mov_b32 s35, s60\ns_mov_b32 s36, s61')
        mark(A, opts, 3)
    load_pieces(A, [(14, lambda kk=kk: piece(kk)) for kk in range(7)], 4, (10, first_inputs))
    mark(A, opts, 2)
    idx_reg(A, IDX)
    A(f"v_and_b32 v4, 7, v1\nv_lshlrev_b32 v4, 4, v4\nv_lshl_add_u32 v4, v2, 7, v4\ns_lshl_b32 s33, {s(sP0)}, 9\nv_add_u32 {v(MK)}, s33, v4")
    A(f"s_lshl_b32 s34, {s(sODD)}, 11\ns_sub_u32 s34, 1536, s34\nv_add_u32 {v(MK3)}, s34, {v(MK)}")
    A(f"v_lshrrev_b32 v4, 1, v2\nv_lshlrev_b32 v4, 3, v4\nv_xor_b32 v4, v4, v1\nv_lshlrev_b32 v4, 3, v4\nv_lshl_add_u32 v4, v2, 7, v4")
    A(f"v_add_u32 {v(TW0)}, {s(sREG)}, v4\nv_xor_b32 {v(TW1)}, 32, {v(TW0)}\nv_add_u32 {v(TW1)}, 512, {v(TW1)}")
    A(f"s_cmp_eq_u32 {s(sODD)}, 0\ns_cselect_b64 vcc, -1, 0\nv_cndmask_b32 {v(TWS)}, {v(TW1)}, {v(TW0)}, vcc")
    A("v_lshrrev_b32 v4, 2, v1\nv_and_b32 v5, 3, v1")
    A("v_lshrrev_b32 v6, 1, v2\nv_lshrrev_b32 v7, 1, v5\nv_xor_b32 v6, v6, v7\nv_lshlrev_b32 v6, 3, v6")
    A("v_and_b32 v7, 1, v2\nv_lshl_add_u32 v6, v7, 1, v6\nv_and_b32 v7, 1, v4\nv_add_u32 v6, v6, v7")
    A("v_lshrrev_b32 v7, 1, v4\nv_lshl_add_u32 v6, v7, 2, v6\nv_lshlrev_b32 v6, 3, v6\nv_lshl_add_u32 v6, v7, 9, v6\nv_lshl_add_u32 v6, v5, 7, v6")
    A(f"v_add_u32 {v(TR0)}, {s(sREG)}, v6\nv_xor_b32 {v(TR1)}, 32, {v(TR0)}")
    A(f"v_add_u32 v12, {s(sREG)}, v3")
    for r in range(4):
        A(f"v_mov_b32 {v(8 + r)}, 0")
    A(f"ds_write_b128 v12, v[8:11] offset:{TB + 3072}")
    A(f"s_lshl_b32 s33, {s(sODD)}, 2\nv_add_u32 v4, s33, v2")
    A("v_bfe_u32 v5, v1, 2, 1\nv_lshlrev_b32 v5, 5, v5\nv_and_b32 v6, 1, v1\nv_lshl_add_u32 v5, v6, 4, v5\nv_bfe_u32 v6, v1, 1, 1\nv_lshl_add_u32 v5, v6, 3, v5\nv_lshrrev_b32 v6, 3, v1\nv_lshl_add_u32 v5, v6, 2, v5")
    A(f"v_lshl_add_u32 {v(PX)}, v4, 6, v5")
    A(f"v_lshlrev_b32 v4, 4, v4\nv_lshl_add_u32 v4, v1, 1, v4\nv_add_u32 v4, 512, v4\nv_and_b32 v5, 9, v1\nv_cmp_eq_u32 vcc, 0, v5\nv_mov_b32 v5, {OOB}\nv_cndmask_b32 {v(PM)}, v5, v4, vcc")
    A(f"v_lshrrev_b32 v4, 1, v2\nv_lshlrev_b32 v4, 5, v4\nv_add_u32 v4, v4, v1\ns_lshl_b32 s33, {s(sODD)}, 4\nv_add_u32 v4, s33, v4\nv_lshlrev_b32 v4, 3, v4")
    A(f"v_and_b32 v5, 1, v2\nv_lshl_add_u32 v4, v5, 2, v4\nv_add_u32 v13, {SB}, v4\nv_lshlrev_b32 v14, 3, v0\nv_add_u32 v14, {s(sREG)}, v14")
    if opts.get("own", 3) & 1:
        A(f"s_lshl_b32 s33, {s(S_W)}, 4\nv_add_u32 {v(FA)}, s33, v1")
    else:
        A(f"v_mov_b32 {v(FA)}, v0")
    A(f"v_min_u32 {v(FA)}, 55, {v(FA)}\nv_lshlrev_b32 {v(FA)}, 2, {v(FA)}\ns_lshl_b32 s33, {s(S_ID)}, 8\nv_add_u32 {v(FA)}, s33, {v(FA)}\ns_mov_b32 {s(sEF)}, {EF}\ns_mov_b32 s53, 0")
    chunk_pos(A, 12, 1, 2, 4)
    A(f"v_add_u32 v12, {s(sREG)}, v12")
    A(f"v_mov_b32 {v(XR)}, v12\nv_mov_b32 {v(SW)}, v14\nv_mov_b32 {v(SR)}, v13\nv_add_u32 {v(SR2)}, {2 * REG}, v13")
    A(f"s_mov_b32 {s(sS)}, 0\ns_mov_b32 {s(sCM)}, {CM}\ns_mul_i32 {s(sCP)}, {s(S_ID)}, 640\ns_add_u32 {s(sCP)}, {s(sCP)}, {CP}")
    A(f"v_lshlrev_b32 {v(PFA)}, 3, v3")
    ahead = opts.get("yah", 1)
    A(f"s_mul_i32 {s(sYP)}, {s(S_ID)}, {28 * KB}\ns_mul_i32 s33, {s(S_W)}, {7 * KB}\ns_add_u32 {s(sYP)}, {s(sYP)}, s33\ns_add_u32 {s(sYP)}, {s(sYP)}, {YF + ahead * 16 * 28 * KB}")
    slow = A.new("a_slow")
    for x in zero(ACC, 28):
        A(x)
    wait_start(A, opts, slow)
    ka = lambda n, r=ACC: "".join(f"{MF} {v(r, 4)}, {v(TSP, 4)}, {v(TSP, 4)}, {v(r, 4)}\n" for _ in range(n))

    def loop(sc):
        top, nxt, done, lp, ok, idle = (A.new(x) for x in ("a_top", "a_next", "a_done", "a_poll", "a_ok", "a_idle"))
        redo = A.new("a_redo")
        G0, G1 = KEY, KEY + 8
        A(f"s_branch {lp}")
        if opts.get("al"):
            A(f".p2align {opts['al']}")
        A(f"{top}:")
        notice_wait(A, opts, G1, FA, sEF, 0, zero(ACC, 28) + [f"s_mov_b32 m0, {s(sMB)}"])
        if opts.get("nst"):
            stamp(A, opts, 1)
        A(fetch)
        A(f"{lp}:")
        if opts.get("stamps"):
            A("s_add_u32 s53, s53, 1")
        A(ka(opts.get("ka_m", 0), SC))
        A("s_waitcnt vmcnt(0)")
        stamp(A, opts, 0)
        A("s_barrier")
        if not opts.get("nst"):
            stamp(A, opts, 1)
        lg = Cnt(A, "lgkmcnt", 15)
        for kk in range(7):
            lg.op(f"ds_read_b128 {v(MEM + 4 * kk, 4)}, v3 offset:{MEMB + kk * 1024}", f"m{kk}")

        def tile(i):
            out = []
            for kk in range(7):
                txt = f"{SMF} {v(ACC + 4 * i, 4)}, {v(MEM + 4 * kk, 4)}, {wreg((i * 7 + kk) * 8, 8)}, {v(IDX)}" if not opts.get("noam") else "s_nop 2"
                out.append((lambda txt=txt, kk=kk: (lg.wait(f"m{kk}"), A(txt))) if i == 0 else txt)
            return out

        def score(b):
            out = []
            for tau in range(3):
                c = "0" if b == 0 else v(SC + 4 * tau, 4)
                txt = f"{MF} {v(SC + 4 * tau, 4)}, {v(TSP + 4 * (b % 2), 4)}, {v(KEY + 12 * (b % 2) + 4 * tau, 4)}, {c}"
                out.append((lambda txt=txt: (lg.wait(f"tr{b}", f"k{b}"), A(txt))) if tau == 0 else txt)
            return out

        def keys(b):
            K = KEY + 12 * (b % 2)
            out = [lambda aa=aa: lg.op(f"ds_read_b128 {v(K + 4 * aa, 4)}, {v(XR)} offset:{XK + aa * 4096 + b * 1024}", f"k{b}") for aa in range(2)]
            reg, o = (MK3, 0) if b == 3 else (MK, b * 512)
            out.append(lambda: lg.op(f"ds_read_b128 {v(K + 8, 4)}, {v(reg)} offset:{MEMB + o}", f"k{b}"))
            return out

        def epi(i):
            D = ACC + 4 * i
            addr, off = (TWS, 3072) if i == 6 else ((TW0, TW1)[i % 2], (i // 2) * 1024)
            return [f"v_cvt_pk_bf16_f32 {v(PK)}, {v(D)}, {v(D + 1)}", f"v_cvt_pk_bf16_f32 {v(PK + 1)}, {v(D + 2)}, {v(D + 3)}",
                    lambda: lg.op(f"ds_write_b64 {v(addr)}, {v(PK, 2)} offset:{TB + off}", f"t{i}")]

        def trs(b):
            return [lambda x=x: lg.op(f"ds_read_b64_tr_b16 {v(TSP + 4 * (b % 2) + 2 * x, 2)}, {v((TR0, TR1)[x])} offset:{TB + b * 1024}", f"tr{b}") for x in range(2)]

        stream = tile(0) + tile(1) + tile(2) + tile(3) + score(0) + tile(4) + tile(5) + score(1) + tile(6) + score(2)
        fill = {}

        def put(g, items):
            for k, it in enumerate(items):
                assert g + k not in fill, g + k
                fill[g + k] = [it]

        for k in range(opts.get("apf", 1)):
            pre = f"s_add_u32 s33, {s(sREG)}, 31744\ns_mov_b32 m0, s33\ns_nop 0\n" if k == 0 else ""
            (put if opts.get("pfg", 1) >= 0 else lambda g, x: A(x[0]))(opts.get("pfg", 1) + 3 * k, [pre + f"buffer_load_dword {v(PFA)}, {s(WS, 4)}, {s(sYP)} offen offset:{128 // opts.get('apf', 1) * k} sc1 lds"])
        put(opts.get('k0g', 4), keys(0))
        put(11, epi(0))
        put(15, keys(1))
        put(18, epi(1))
        put(21, trs(0))
        put(25, epi(2))
        k2 = keys(2)
        put(31, k2[:1])
        put(32, epi(3))
        put(35, trs(1))
        put(38, k2[1:])
        put(41, epi(4))
        put(47, epi(5))
        put(50, trs(2))
        put(52, keys(3))
        br = "s_nop 0" if opts.get("solo") else f"s_cbranch_vccnz {redo}"
        mx = lambda x, y, z: f"v_max3_u32 {v(CK)}, {v(x)}, {v(y)}, {v(z)}"
        cmpi = f"v_cmp_eq_u32 vcc, -1, {v(CK)}"
        for g, x in zip((7, 8, 9, 10) if opts.get('k0g', 4) == 4 else (2, 4, 6, 10), (mx(MEM, MEM + 4, MEM + 8), mx(CK, MEM + 12, MEM + 16), mx(CK, MEM + 20, MEM + 24), cmpi)):
            put(g, [x])
        fill[12].append(br)
        rest = [MEM + r for r in range(28) if r % 4]
        late = [mx(*rest[:3])] + [mx(CK, rest[r], rest[r + 1]) for r in range(3, 21, 2)] + [cmpi]
        for g, x in zip((14, 23, 24, 28, 29, 30, 37, 40, 44, 45, 46), late):
            put(g, [x])
        fill[49].append(br)
        emit_stream(A, stream, fill)
        stamp(A, opts, 2)
        e6 = epi(6)
        if opts.get("w32"):
            e6 = [e6[0], lambda: lg.op(f"ds_write_b32 {v(TWS)}, {v(PK)} offset:{TB + 3072}", "t6"), e6[1], lambda: lg.op(f"ds_write_b32 {v(TWS)}, {v(PK + 1)} offset:{TB + 3076}", "t6")]
        for x in e6 + trs(3):
            x() if callable(x) else A(x)
        if opts.get("ka_tr"):
            A(ka(opts["ka_tr"]))
        for x in score(3):
            x() if callable(x) else A(x)
            A("s_nop 1")
        X = MEM
        A(f"s_cmp_ge_u32 {s(S_W)}, 2")
        for tau in range(3):
            D = SC + 4 * tau
            A(f"v_permlane32_swap_b32 {v(D)}, {v(D + 2)}\nv_permlane32_swap_b32 {v(D + 1)}, {v(D + 3)}")
            if opts.get("pk", 1):
                A(f"v_pk_add_f32 {v(X + 2 * tau, 2)}, {v(D, 2)}, {v(D + 2, 2)}")
            else:
                A(f"v_add_f32 {v(X + 2 * tau)}, {v(D)}, {v(D + 2)}\nv_add_f32 {v(X + 2 * tau + 1)}, {v(D + 1)}, {v(D + 3)}")
            A(f"ds_write_b64 {v(SW)}, {v(X + 2 * tau, 2)} offset:{SB + 512 * tau}")
        if opts.get("ka_x"):
            A(ka(opts["ka_x"]))
        A("s_waitcnt lgkmcnt(0)\ns_barrier")
        stamp(A, opts, 3)
        A(f"s_cbranch_scc1 {idle}")
        R = MEM + 8
        for tau in range(3):
            A(f"ds_read2st64_b32 {v(R + 4 + 4 * tau, 2)}, {v(SR)} offset0:{2 * tau} offset1:{2 * tau + 128}")
            A(f"ds_read2st64_b32 {v(R + 6 + 4 * tau, 2)}, {v(SR2)} offset0:{2 * tau} offset1:{2 * tau + 128}")
        for tau in range(3):
            A(f"s_waitcnt lgkmcnt({4 - 2 * tau})")
            A(f"v_pk_add_f32 {v(R + 4 + 4 * tau, 2)}, {v(R + 4 + 4 * tau, 2)}, {v(R + 6 + 4 * tau, 2)}")
            A(f"v_add_f32 {v(R + tau)}, {v(R + 4 + 4 * tau)}, {v(R + 5 + 4 * tau)}")
        mx, sm = T, T + 1
        A(f"v_max3_f32 {v(mx)}, {v(R)}, {v(R + 1)}, {v(R + 2)}")
        for rot in (8, 4, 2, 1):
            A(f"v_max_f32_dpp {v(mx)}, {v(mx)}, {v(mx)} row_ror:{rot} row_mask:0xf bank_mask:0xf")
        for tau in (2, 0, 1):
            A(f"v_sub_f32 {v(R + tau)}, {v(R + tau)}, {v(mx)}")
        for tau in (2, 0, 1):
            A(f"v_exp_f32 {v(R + tau)}, {v(R + tau)}")
        A(f"v_fma_f32 {v(sm)}, 0.5, {v(R + 2)}, {v(R)}")
        A(f"v_mov_b32_dpp {v(R + 3)}, {v(R + 2)} quad_perm:[1,0,3,2] row_mask:0xf bank_mask:0xf")
        A(f"v_add_f32 {v(sm)}, {v(sm)}, {v(R + 1)}")
        for rot in (8, 4, 2, 1):
            A(f"v_add_f32_dpp {v(sm)}, {v(sm)}, {v(sm)} row_ror:{rot} row_mask:0xf bank_mask:0xf")
        A(f"v_rcp_f32 {v(sm)}, {v(sm)}")
        for k, addr in ((0, PX), (2, PM)):
            A(f"v_mul_f32 {v(R + k)}, {v(R + k)}, {v(sm)}\nv_mul_f32 {v(R + k + 1)}, {v(R + k + 1)}, {v(sm)}")
            A(f"v_cvt_pk_bf16_f32 {v(R + k)}, {v(R + k)}, {v(R + k + 1)}\nv_min_u32 {v(R + k)}, -2, {v(R + k)}")
            A(f"buffer_store_dword {v(R + k)}, {v(addr)}, {s(WS, 4)}, {s(sCP)} offen{sc}")
        A(f"{nxt}:")
        stamp(A, opts, 4)
        collect_lds(A, opts, sREG, 22528, T)
        A(f"s_add_u32 {s(sS)}, {s(sS)}, 1\ns_add_u32 {s(sQ)}, {s(sQ)}, {0 if opts.get('solo') else 8192}\ns_add_u32 {s(sCP)}, {s(sCP)}, {0 if opts.get('solo') else 10240}")
        adv = 0 if opts.get("solo") else EF_STEP
        A(f"s_add_u32 {s(sEF)}, {s(sEF)}, {adv}\ns_add_u32 {s(sXA)}, {s(sXA)}, {28 * KB}\ns_add_u32 {s(sXB)}, {s(sXB)}, {28 * KB}\ns_add_u32 {s(sYP)}, {s(sYP)}, {16 * 28 * KB}")
        A("s_barrier")
        if not opts.get("nodma"):
            for k in range(8):
                A(dma(k))
        A(f"s_cmp_eq_u32 {s(sS)}, 63\ns_cbranch_scc0 {top}")
        A("s_waitcnt vmcnt(0)")
        A("s_mov_b32 s84, s53" if opts.get("stamps") else "")
        fetch_lds(A, opts, sREG, 22528, 10)
        flush_stamps(A, opts, 10)
        A("s_endpgm")
        A(f"{redo}:\ns_mov_b32 m0, {s(sMB)}\ns_waitcnt lgkmcnt(0)\ns_barrier")
        A(fetch)
        poll_guard(A)
        for x in zero(ACC, 28):
            A(x)
        A(f"s_branch {lp}")
        A(f"{idle}:")
        A(f"v_lshrrev_b32 {v(T + 1)}, 4, v3\nv_min_u32 {v(T + 1)}, 13, {v(T + 1)}\ns_lshl_b32 s33, {s(S_ID)}, 2\ns_add_u32 s33, s33, {EF_P}")
        A(f"v_lshl_add_u32 {v(T + 1)}, {v(T + 1)}, 7, s33\nv_mov_b32 {v(T)}, {s(S_NONCE)}")
        A("s_nop 3\n" * opts.get("la", 6) if opts.get("lan") else ka(opts.get("la", 6)))
        w3 = A.new("a_w3")
        A(f"s_cmp_eq_u32 {s(S_W)}, 2\ns_cbranch_scc0 {w3}")
        notice(A, T, T + 1, sEF, 0, sc)
        A(f"s_branch {nxt}\n{w3}:")
        A(ka(opts.get("ka_sm", 0)))
        A(f"s_branch {nxt}")

    loop("")
    A(f"{slow}:")
    loop(" sc1")


def gen_chain_b(A, opts):
    MEM, ZACC, ZOP, Y, OACC, IDX = 4, 32, 60, 76, 108, 132
    GA0, GA1, PXA, PMA, RW, RR0, RR1, MO, WR, FA, FV = range(133, 144)
    FM, NZ, NA, FP = 128, 129, 130, 131
    T, WST, V0 = 116, 144, 176
    RED, WL = 8192, 12288
    sS, sCM, sCP, sY, sEF, sC, sFY = 44, 45, 46, 47, 48, 50, 51
    vm = Cnt(A, "vmcnt", 63)
    A(f"s_sub_u32 {s(sC)}, {s(S_ID)}, 16")
    A(f"s_mul_i32 s34, {s(S_W)}, {4 * FRAG_H}\ns_mul_i32 s33, {s(sC)}, {28 * KB}\ns_add_u32 s34, s34, s33\ns_add_u32 s34, s34, {BF}")
    A(f"s_mul_i32 s36, {s(S_W)}, {28 * KB}\ns_add_u32 s36, s36, {WL}\nv_add_u32 {v(WR)}, s36, v3\ns_add_u32 s37, s34, {3 * FRAG_H}")
    A(f"s_mul_i32 s33, {s(S_W)}, 28\ns_lshr_b32 s35, {s(sC)}, 1\ns_add_u32 s33, s33, s35\ns_add_u32 s33, s33, 112\nv_and_b32 v4, 3, v0\nv_mul_u32_u24 v4, 7, v4\nv_add_u32 v4, s33, v4")

    def piece(hh):
        if hh < 3:
            frag_loads(A, 34, [((hh * 28 + k) * 4, hh * FRAG_H + k * KB) for k in range(28)], v0=V0, cap=opts.get('bcap'))
            return
        for q in range(7):
            A("s_mov_b32 m0, s36\ns_add_u32 s36, s36, 4096")
            for k in range(4):
                A(f"buffer_load_dwordx4 v3, {s(WS, 4)}, s37 offen offset:{k * 1024} sc1 lds")
            A("s_add_u32 s37, s37, 4096")

    if opts.get('late'):
        A('v_mov_b32 v20, v4\ns_mov_b32 s60, s34\ns_mov_b32 s61, s36\ns_mov_b32 s62, s37')
        wait_prep(A, True)
        A('v_mov_b32 v4, v20\ns_mov_b32 s34, s60\ns_mov_b32 s36, s61\ns_mov_b32 s37, s62')
        mark(A, opts, 3)
    load_pieces(A, [(28, lambda hh=hh: piece(hh)) for hh in range(4)], 4)
    gather_addr(A, GA0, GA1)
    idx_reg(A, IDX)
    A("v_and_b32 v4, 7, v1\nv_lshrrev_b32 v5, 3, v1\nv_lshrrev_b32 v6, 1, v2\nv_and_b32 v7, 1, v2")
    A(f"s_mul_i32 s33, {s(S_W)}, 2560")
    A(f"v_mul_u32_u24 v8, 640, v6\nv_lshl_add_u32 v8, v4, 6, v8\nv_lshl_add_u32 v8, v7, 5, v8\nv_lshl_add_u32 v8, v5, 4, v8\nv_add_u32 {v(PXA)}, s33, v8")
    A(f"v_lshl_add_u32 v8, v6, 1, v5\nv_mul_u32_u24 v8, 640, v8\nv_lshl_add_u32 v8, v4, 4, v8\ns_add_u32 s33, s33, 512\nv_add_u32 {v(PMA)}, s33, v8")
    A(f"v_lshl_add_u32 v8, v6, 1, v7\nv_xor_b32 v8, v0, v8\nv_lshlrev_b32 v8, 4, v8\ns_lshl_b32 s33, {s(S_W)}, 10\ns_add_u32 s33, s33, {RED}\nv_add_u32 {v(RW)}, s33, v8")
    A("v_lshrrev_b32 v4, 5, v0\nv_bfe_u32 v5, v0, 2, 3\nv_and_b32 v6, 3, v0")
    A("v_and_b32 v7, 1, v6\nv_lshrrev_b32 v8, 2, v5")
    A(f"v_lshlrev_b32 v9, 5, v7\nv_lshl_add_u32 v9, v8, 4, v9\ns_and_b32 s33, {s(S_W)}, 1\ns_lshl_b32 s33, s33, 3\nv_add_u32 v9, s33, v9")
    A("v_lshrrev_b32 v10, 1, v6\nv_lshl_add_u32 v9, v10, 2, v9\nv_lshl_add_u32 v9, v4, 1, v9")
    A("v_lshl_add_u32 v10, v7, 1, v8\nv_xor_b32 v9, v9, v10\nv_lshlrev_b32 v9, 4, v9\nv_and_b32 v10, 3, v5\nv_lshl_add_u32 v9, v10, 2, v9")
    A(f"v_add_u32 {v(RR0)}, {RED}, v9\nv_xor_b32 {v(RR1)}, 16, {v(RR0)}")
    A(f"s_lshl_b32 s33, {s(sC)}, 9\ns_and_b32 s35, {s(S_W)}, 1\ns_lshl_b32 s35, s35, 8\ns_add_u32 s33, s33, s35\nv_lshl_add_u32 {v(MO)}, v0, 2, s33")
    A(f"v_lshlrev_b32 {v(FA)}, 7, v1\nv_mov_b32 {v(FV)}, 0")
    A(f"s_mov_b32 {s(sS)}, 0\ns_mov_b32 {s(sCM)}, {CM}\ns_mov_b32 {s(sCP)}, {CP}")
    A(f"s_mul_i32 s33, {s(S_W)}, {4 * 28 * KB}\ns_lshl_b32 s35, {s(sC)}, 11\ns_add_u32 {s(sY)}, s33, s35\ns_add_u32 {s(sY)}, {s(sY)}, {YF}")
    A(f"s_mov_b32 {s(sFY)}, {FY}\ns_mov_b32 {s(sEF)}, {EF}\ns_mov_b32 s53, 0\ns_mov_b32 s55, 0")
    pw = opts.get("pw", 1)
    A(f"v_min_u32 {v(FM)}, {55 if pw else 13}, v0\nv_lshlrev_b32 {v(FM)}, 2, {v(FM)}\ns_lshl_b32 s33, {s(S_ID)}, 8\nv_add_u32 {v(FM)}, s33, {v(FM)}")
    A(f"s_lshl_b32 s33, {s(sC)}, 7\ns_add_u32 s33, s33, {EF_P}\nv_min_u32 {v(FP)}, 17, v0")
    if opts.get("own", 3) & 2:
        A(f"v_and_b32 v4, 3, v0\ns_lshl_b32 s35, {s(S_W)}, 2\nv_add_u32 v4, s35, v4\nv_and_b32 v5, 1, v0\nv_add_u32 v5, 16, v5\nv_cmp_gt_u32 vcc, 32, v0\nv_cndmask_b32 {v(FP)}, v5, v4, vcc")
    A(f"v_lshl_add_u32 {v(FP)}, {v(FP)}, 2, s33")
    if pw:
        A(f"s_lshl_b32 s33, {s(sC)}, 2\ns_add_u32 s33, s33, {s(S_W)}\ns_lshl_b32 s33, s33, 2")
    else:
        A(f"s_lshl_b32 s33, {s(sC)}, 2")
    A(f"s_add_u32 s33, s33, {EF_STEP}\nv_min_u32 {v(NA)}, {29 if opts.get('ndb') else 15}, v0\nv_lshl_add_u32 {v(NA)}, {v(NA)}, 8, s33\nv_mov_b32 {v(NZ)}, {s(S_NONCE)}")
    slow = A.new("b_slow")
    wait_start(A, opts, slow, (FA, sFY))
    ka = lambda n: "".join(f"{MF} {v(ZACC + 8, 4)}, {v(ZOP, 4)}, {v(ZOP, 4)}, {v(ZACC + 8, 4)}\n" for _ in range(n))

    def loop(sc):
        top, nxt, last, noy, yok, ypoll, noflag, gm, gp, idle, noz = (A.new("b_" + x) for x in ("top", "next", "last", "noy", "yok", "ypoll", "nofl", "gm", "gp", "idle", "noz"))
        if opts.get("al"):
            A(f"s_branch {top}\n.p2align {opts['al']}")
        A(f"{top}:")
        if opts.get("ndb", 1):
            notice_wait(A, dict(opts, nd=opts.get('ndb', 1)), WST + 8, FM, sEF, 0, zero(ZACC, 28) + zero(OACC, 8), sS)
        else:
            for x in zero(ZACC, 28) + zero(OACC, 8):
                A(x)
        fetch_mem(A, dict(opts, stamps=0) if opts.get('nst') else opts, WST, GA0, GA1, sCM, T, 0)
        lg = Cnt(A, "lgkmcnt", 15)
        for kk in range(7):
            lg.op(f"ds_read_b128 {v(MEM + 4 * kk, 4)}, v3 offset:{kk * 1024}", f"m{kk}")
        bulk = []
        for hh in range(4):
            for vv in range(0 if opts.get("noy") else 2):
                pre = f"s_add_u32 s33, {s(sY)}, {hh * 28 * KB}\n" if vv == 0 else ""
                bulk.append(pre + f"buffer_load_dwordx4 {v(Y + 16 * (hh // 2) + 8 * vv + 4 * (hh % 2), 4)}, v3, {s(WS, 4)}, s33 offen offset:{vv * 1024} {'nt' if opts.get('ynt') == 1 else 'sc1 nt' if opts.get('ynt') else 'sc1'}")
        order = []
        regs = [(t, kk) for t in range(6) for kk in range(7)]
        for n in range(14):
            order += regs[3 * n:3 * n + 3] + [(6 + n // 7, n % 7)]
        accof = lambda t: ZACC + 4 * (t if t < 7 else 0)
        stream, pos, seen = [], {}, set()
        for t, kk in order:
            pos[(t, kk)] = len(stream)
            n = (t - 6) * 7 + kk
            w = wreg((t * 7 + kk) * 8, 8, 256, V0) if t < 6 else v(WST + 8 * (n % 4), 8)
            txt = f"{SMF} {v(accof(t), 4)}, {v(MEM + 4 * kk, 4)}, {w}, {v(IDX)}" if not opts.get("nozm") else "s_nop 2"
            tags = ([f"m{kk}"] if kk not in seen else []) + ([f"w{n}"] if t >= 6 else [])
            seen.add(kk)
            stream.append((lambda txt=txt, tags=tags: (lg.wait(*tags), A(txt))) if tags else txt)

        def wread(n):
            return [lambda u=u: lg.op(f"ds_read_b128 {v(WST + 8 * (n % 4) + 4 * u, 4)}, {v(WR)} offset:{(n // 7) * 14 * KB + (2 * (n % 7) + u) * KB}", f"w{n}") for u in range(2)]

        def epi(t):
            hh, vv = t // 2, t % 2
            D = accof(t)
            out = [f"v_cvt_pk_bf16_f32 {v(ZOP + 8 * vv + 4 * (hh // 2) + 2 * b + hh % 2)}, {v(D + 2 * b)}, {v(D + 2 * b + 1)}" for b in range(2)]
            return out + (zero(D, 4) if t == 0 else [])

        y = bulk + ["s_nop 0"] * (8 - len(bulk))
        for x in wread(0) + wread(1):
            x()
        npre = opts.get("ypre", 2)
        for x in y[:npre]:
            A(x)
        fill = {}
        for n in range(2, 14):
            spread(fill, 4 * (n - 2), wread(n), per=1)
        g = 2
        for x in y[npre:]:
            while g in fill:
                g += 1
            fill[g] = [x]
            g += opts.get("ygap", 1)
        late = []
        for t in sorted(range(8), key=lambda t: pos[(t, 6)]):
            g = pos[(t, 6)] + 4
            for x in epi(t):
                while g in fill:
                    g += 1
                if g < len(stream):
                    fill[g] = [x]
                    assert t != 0 or g < pos[(7, 0)] - 1
                else:
                    late.append(x)
        emit_stream(A, stream, fill)
        for x in late:
            A(x)
        if not opts.get("nst"):
            stamp(A, opts, 1)

        def p_loads(P):
            A(f"buffer_load_dwordx4 {v(P, 4)}, {v(PXA)}, {s(WS, 4)}, {s(sCP)} offen sc1")
            A(f"buffer_load_dwordx4 {v(P + 4, 4)}, {v(PXA)}, {s(WS, 4)}, {s(sCP)} offen offset:1280 sc1")
            A(f"buffer_load_dwordx4 {v(P + 8, 4)}, {v(PMA)}, {s(WS, 4)}, {s(sCP)} offen sc1")

        cur = MEM
        ok = A.new("b_ok")
        notice_wait(A, dict(opts, nd=opts.get('ndp', opts['nd'])), MEM + 12, FP, sEF, 0, [])
        if opts.get("nst"):
            stamp(A, opts, 1)
        A(f"{gp}:")
        p_loads(cur)
        poll_guard(A)
        A(ka(opts.get("ka_p", 0)))
        if opts.get("stamps"):
            A("s_add_u32 s55, s55, 1")
        mx3 = lambda d, x, y, z: f"v_max3_u32 {v(d)}, {v(x)}, {v(y)}, {v(z)}"
        chk = ["s_nop 0", mx3(T, cur, cur + 1, cur + 2), mx3(T, T, cur + 3, cur + 4), mx3(T + 1, cur + 5, cur + 6, cur + 7), mx3(T + 2, cur + 8, cur + 9, cur + 10),
               mx3(T, T, T + 1, cur + 11) + f"\nv_max_u32 {v(T)}, {v(T)}, {v(T + 2)}\nv_cmp_eq_u32 vcc, -1, {v(T)}"]
        k = 0
        for kap in range(3):
            A(f"s_waitcnt vmcnt({2 - kap})")
            if kap == 0:
                stamp(A, opts, 2)
            for vv in range(2):
                b = v(Y + 16 * kap + 8 * vv, 8) if kap < 2 else v(ZOP + 8 * vv, 8)
                A(f"{SMF} {v(OACC + 4 * vv, 4)}, {v(cur + 4 * kap, 4)}, {b}, {v(IDX)}")
                if opts.get("lb") == 10 + k:
                    notice(A, NZ, NA, sEF, 0, sc)
                A(chk[k])
                k += 1
        A(f"s_cbranch_vccz {ok}")
        if opts.get("solo"):
            A(f"s_branch {ok}")
        for x in zero(OACC, 8):
            A(x)
        A(f"s_branch {gp}")
        A(f"{ok}:")
        lb = opts.get("lb", 2) if pw else -1
        if lb == 0:
            notice(A, NZ, NA, sEF, 0, sc)
        for q in range(4):
            A(f"v_permlane32_swap_b32 {v(OACC + q)}, {v(OACC + 4 + q)}")
        if lb == 1:
            notice(A, NZ, NA, sEF, 0, sc)
        for q in (0, 2):
            A(f"v_pk_add_f32 {v(OACC + q, 2)}, {v(OACC + q, 2)}, {v(OACC + 4 + q, 2)}")
        A(f"ds_write_b128 {v(RW)}, {v(OACC, 4)}")
        if 2 <= lb < 10:
            A(ka(lb - 2))
            notice(A, NZ, NA, sEF, 0, sc)
            if opts.get("nst"):
                stamp(A, opts, 0)
        A(f"s_add_u32 s33, {s(sCM)}, 8192\ns_cmp_ge_u32 {s(S_W)}, 2\ns_waitcnt lgkmcnt(0)\ns_barrier")
        stamp(A, opts, 3)
        A(f"s_cbranch_scc1 {idle}")
        R = ZACC
        if not pw:
            A(f"s_cmp_eq_u32 {s(S_W)}, 0\ns_cbranch_scc0 {noflag}")
            notice(A, NZ, NA, sEF, 0, sc)
            A(f"{noflag}:")
        A(f"ds_read2st64_b32 {v(R, 2)}, {v(RR0)} offset0:0 offset1:4\nds_read2st64_b32 {v(R + 4, 2)}, {v(RR0)} offset0:8 offset1:12")
        A(f"ds_read2st64_b32 {v(R + 2, 2)}, {v(RR1)} offset0:0 offset1:4\nds_read2st64_b32 {v(R + 6, 2)}, {v(RR1)} offset0:8 offset1:12")
        A("s_waitcnt lgkmcnt(2)")
        A(f"v_pk_add_f32 {v(R, 2)}, {v(R, 2)}, {v(R + 4, 2)}\nv_add_f32 {v(R)}, {v(R)}, {v(R + 1)}")
        A("s_waitcnt lgkmcnt(0)")
        A(f"v_pk_add_f32 {v(R + 2, 2)}, {v(R + 2, 2)}, {v(R + 6, 2)}\nv_add_f32 {v(R + 2)}, {v(R + 2)}, {v(R + 3)}")
        A(f"v_cvt_pk_bf16_f32 {v(R)}, {v(R)}, {v(R + 2)}\nv_min_u32 {v(R)}, -2, {v(R)}")
        A(f"buffer_store_dword {v(R)}, {v(MO)}, {s(WS, 4)}, s33 offen{sc}")
        A(f"{nxt}:")
        stamp(A, opts, 4)
        collect(A, opts, 120)
        A(f"s_add_u32 {s(sS)}, {s(sS)}, 1\ns_add_u32 {s(sCM)}, {s(sCM)}, {0 if opts.get('solo') else 8192}\ns_add_u32 {s(sCP)}, {s(sCP)}, {0 if opts.get('solo') else 10240}")
        A(f"s_add_u32 {s(sY)}, {s(sY)}, {16 * 28 * KB}\ns_add_u32 {s(sEF)}, {s(sEF)}, {0 if opts.get('solo') else EF_STEP}")
        A("s_barrier")
        if opts.get("stamps"):
            m8 = A.new("m8")
            A(f"s_cmp_eq_u32 {s(sS)}, 8\ns_cbranch_scc0 {m8}")
            mark(A, opts, 5)
            A(f"{m8}:")
        A(f"s_cmp_eq_u32 {s(sS)}, 63\ns_cbranch_scc0 {top}")
        if opts.get("fast63", 1):
            A(f"s_cmp_ge_u32 {s(S_W)}, 2\ns_cbranch_scc1 {last}\ns_mov_b32 s33, {XM + 63 * 8192}")
            A(f"buffer_store_dword {v(R)}, {v(MO)}, {s(WS, 4)}, s33 offen sc1\n{last}:")
        A("s_waitcnt vmcnt(0)")
        A("s_mov_b32 s84, s53\ns_mov_b32 s85, s55" if opts.get("stamps") else "")
        dbg_time(A, opts, 6, 16)
        amp_mark(A, opts, 3)
        amp_spin(A, opts, 16, (0, 1, 2, 3))
        flush_stamps(A, opts, 120)
        A("s_endpgm")
        A(f"{idle}:")
        A(ka(opts.get("ka_f", 0)))
        A(f"s_branch {nxt}")

    loop("")
    A(f"{slow}:")
    loop(" sc1")


def gen_chain_f(A, opts):
    G, GA0, GA1, T, WA = 4, 12, 13, 14, 20
    sS, sCM, sXM = 44, 45, 46
    fw = A.new('f_go')
    wait_start(A, {}, fw)
    A(f'{fw}:')
    gather_addr(A, GA0, GA1)
    A(f"s_lshl_b32 s33, {s(S_W)}, 10\nv_add_u32 {v(WA)}, s33, v3")

    def touch(base, stride, nbytes, ahead, last):
        A(f"s_add_u32 s33, {s(sS)}, {ahead}\ns_min_u32 s33, s33, {last}\ns_mul_i32 s33, s33, {stride}\ns_add_u32 s33, s33, {base}")
        for k in range(0, nbytes, 4096):
            A(f"buffer_load_dwordx4 v[16:19], {v(WA)}, {s(WS, 4)}, s33 offen sc1\ns_add_u32 s33, s33, 4096")

    def touch_all():
        if not opts.get("nopf"):
            touch(CP, 10240, 12288, 2, 62)
            touch(CM, 8192, 8192, 2, 63)
            touch(EF, EF_STEP, 12288, 2, 62)
            touch(XS, 28 * KB, 28 * KB, 2, 63)

    for first in (-2, -1, 0):
        A(f"s_mov_b32 {s(sS)}, {first}")
        touch_all()
    A(f"s_mov_b32 {s(sS)}, 1\ns_mov_b32 {s(sCM)}, {CM + 8192}\ns_mov_b32 {s(sXM)}, {XM + 8192}")
    lp = A.new("f_poll")
    A(f"{lp}:")
    mem_loads(A, G, GA0, GA1, sCM)
    poll_guard(A)
    A("s_waitcnt vmcnt(0)")
    check8(A, G, T)
    A(f"s_cbranch_vccnz {lp}")
    A(f"buffer_store_dwordx4 {v(G, 4)}, {v(GA0)}, {s(WS, 4)}, {s(sXM)} offen sc1")
    A(f"buffer_store_dwordx4 {v(G + 4, 4)}, {v(GA1)}, {s(WS, 4)}, {s(sXM)} offen sc1")
    touch_all()
    A(f"s_add_u32 {s(sS)}, {s(sS)}, 1\ns_add_u32 {s(sCM)}, {s(sCM)}, 8192\ns_add_u32 {s(sXM)}, {s(sXM)}, 8192")
    A(f"s_cmp_lt_u32 {s(sS)}, {63 if opts.get('fast63', 1) else 64}\ns_cbranch_scc1 {lp}")
    if opts.get("wb"):
        A(f"s_cmp_eq_u32 {s(S_W)}, 0\ns_cbranch_scc0 L_exit\ns_waitcnt vmcnt(0)\nbuffer_wbl2 sc1\ns_waitcnt vmcnt(0)")
    A("s_endpgm")


def gen_chain_g(A, opts):
    sS, sEF, sF = 44, 45, 46
    A(f"s_cmp_eq_u32 {s(S_W)}, 0\ns_cbranch_scc0 L_exit")
    A(f"s_mov_b32 {s(sS)}, 0\ns_mov_b32 {s(sEF)}, {EF + EF_P + 64}\ns_mov_b32 {s(sF)}, {FY + FL_STEP}")
    A(f"v_lshlrev_b32 v6, 7, v1\nv_lshrrev_b32 v7, 1, v0\nv_min_u32 v7, 13, v7\nv_lshlrev_b32 v7, 7, v7\nv_and_b32 v9, 1, v0\nv_lshl_add_u32 v7, v9, 2, v7\nv_mov_b32 v8, {s(S_NONCE)}")
    slow = A.new("g_slow")
    chain_mode(A, {}, Cnt(A, "vmcnt", 63), slow)

    def loop(sc):
        top, ok = A.new("g_top"), A.new("g_ok")
        go = A.new("g_go")
        A(f"{top}:\ns_cmp_eq_u32 {s(sS)}, 2\ns_cbranch_scc0 {go}")
        A("v_mov_b32 v12, v8")
        wait_prep(A, False, False)
        A(f"v_mov_b32 v8, v12\n{go}:")
        top2 = A.new("g_poll")
        A(f"{top2}:")
        flag_load(A, 10, 6, s(sF))
        poll_guard(A)
        A("s_waitcnt vmcnt(0)")
        flag_missing(A, [10])
        A(f"s_cbranch_vccz {ok}\ns_sleep 2\ns_branch {top2}\n{ok}:")
        notice(A, 8, 7, sEF, 0, sc)
        A(f"s_add_u32 {s(sS)}, {s(sS)}, 1\ns_add_u32 {s(sEF)}, {s(sEF)}, {EF_STEP}\ns_add_u32 {s(sF)}, {s(sF)}, {FL_STEP}")
        A(f"s_cmp_lt_u32 {s(sS)}, 63\ns_cbranch_scc1 {top}\ns_endpgm")

    loop("")
    A(f"{slow}:")
    loop(" sc1")
```

```python
from asmlib import v, a, s
from layout import *
from common import *
from gen_prep import *
from gen_chain import gen_chain_a, gen_chain_b, gen_chain_f, gen_chain_g
import gen_work

MAIN_LDS = 132096
LDS_ROLE = 131072


def gen_main(A, name, opts):
    ER = 252
    A(f".p2align 8\n.type {name},@function\n{name}:")
    A("s_cmp_ge_u32 s2, 256\ns_cbranch_scc1 L_exit")
    mark(A, opts, 0)
    amp_mark(A, opts, 0)
    b = [load_srd(A, WS, "ws", 40), load_srd(A, DB, "dbg", 42)]
    A(f"s_load_dwordx4 s[44:47], s[0:1], {KARG['wq']}\ns_load_dwordx4 s[48:51], s[0:1], {KARG['wv']}")
    A(f"v_lshrrev_b32 v1, 6, v0\nv_and_b32 v0, 63, v0\nv_readfirstlane_b32 {s(S_W)}, v1")
    if opts.get("fake"):
        A("s_mul_i32 s29, s2, 43\ns_lshr_b32 s29, s29, 8\ns_mul_i32 s29, s29, 6\ns_sub_u32 s7, s2, s29\ns_add_u32 s7, s7, 1\ns_and_b32 s7, s7, 15\ns_cmp_eq_u32 s2, 0\ns_cselect_b32 s7, 8, s7")
    else:
        A("s_getreg_b32 s7, hwreg(HW_REG_XCC_ID, 0, 4)")
    A(f"s_mov_b32 {s(S_POLL)}, 0\ns_mov_b32 {s(S_FOREIGN)}, 0")
    A("v_and_b32 v1, 15, v0\nv_lshrrev_b32 v2, 4, v0\nv_lshlrev_b32 v3, 4, v0")
    A(f"v_mov_b32 {v(ER)}, 1\nv_mov_b32 {v(ER + 1)}, 0\ns_and_b32 s17, s7, 4\ns_lshl_b32 s17, s17, 5\ns_andn2_b32 s19, s7, 4\ns_lshl_b32 s19, s19, 2\ns_add_u32 s17, s17, s19")
    A("s_waitcnt lgkmcnt(0)")
    for f in b:
        f()
    A(f"s_or_b32 s19, s2, {s(S_W)}\ns_cmp_eq_u32 s19, 0\ns_cbranch_scc0 L_no_nonce")
    A(f"s_memrealtime s[28:29]\ns_waitcnt lgkmcnt(0)\ns_lshl_b32 s28, s28, 4\ns_and_b32 s29, s7, 7\ns_or_b32 s28, s28, s29\ns_or_b32 s28, s28, 8\nv_mov_b32 v4, s28\nbuffer_store_dword v4, {v(ER + 1)}, {s(DB, 4)}, 0 offen offset:{D_NONCE} sc1")
    A("L_no_nonce:")
    dbg_time(A, opts, 0, 0, 2)

    def rank():
        sk = A.new("rank")
        A(f"s_cmp_eq_u32 {s(S_W)}, 0\ns_cbranch_scc0 {sk}\ns_mov_b64 exec, 1")
        A(f"buffer_atomic_add {v(ER)}, {v(ER + 1)}, {s(DB, 4)}, s17 offen sc0 sc1\ns_mov_b64 exec, -1\n{sk}:")

    gen_prep(A, opts, "L_prep_done", rank)
    A("L_prep_done:")
    A(f"v_mov_b32 v6, {LDS_ROLE}")
    A("L_nonce:")
    A(f"buffer_load_dword v7, {v(ER + 1)}, {s(DB, 4)}, 0 offen offset:{D_NONCE} sc1")
    poll_guard(A)
    A(f"s_waitcnt vmcnt(0)\nv_readfirstlane_b32 {s(S_NONCE)}, v7\ns_cmp_eq_u32 {s(S_NONCE)}, 0\ns_cbranch_scc0 L_nonce_ok\ns_sleep 4\ns_branch L_nonce\nL_nonce_ok:")
    mark(A, opts, 6)
    if opts.get('tilem'):
        A('s_mov_b32 s92, s16')
    A(f"s_cmp_eq_u32 {s(S_W)}, 0\ns_cbranch_scc0 L_role_wait")
    A(f"v_readfirstlane_b32 s30, {v(ER)}")
    A(f"s_sub_u32 s31, s7, {s(S_NONCE)}\ns_and_b32 s31, s31, 7\ns_lshl_b32 {s(S_ID)}, s31, 5\ns_add_u32 {s(S_ID)}, {s(S_ID)}, s30")
    A("s_cmp_ge_u32 s7, 8\ns_cbranch_scc1 L_overflow\ns_cmp_ge_u32 s30, 32\ns_cbranch_scc0 L_role_known")
    A("L_overflow:")
    A(f"v_mov_b32 {v(ER)}, 1\ns_mov_b64 exec, 1")
    A(f"buffer_atomic_add {v(ER)}, {v(ER + 1)}, {s(DB, 4)}, 0 offen offset:{D_OVF} sc0 sc1")
    A(f"s_waitcnt vmcnt(0)\nv_readfirstlane_b32 s31, {v(ER)}\ns_mov_b64 exec, -1")
    A("v_and_b32 v4, 4, v1\nv_lshlrev_b32 v4, 5, v4\nv_and_b32 v5, 11, v1\nv_lshl_add_u32 v4, v5, 2, v4")
    A("L_ov_poll:")
    A(f"buffer_load_dword v5, v4, {s(DB, 4)}, 0 offen sc1")
    poll_guard(A)
    A("s_waitcnt vmcnt(0)\ns_mov_b32 s32, 0")
    for k in range(16):
        A(f"v_readlane_b32 {s(44 + k)}, v5, {k}")
    for k in range(16):
        A(f"s_add_u32 s32, s32, {s(44 + k)}")
    A("s_cmp_lt_u32 s32, 256\ns_cbranch_scc1 L_ov_poll")
    A(f"s_mov_b32 {s(S_FOREIGN)}, 1")
    for k in range(8):
        A(f"s_min_u32 s33, {s(44 + k)}, 32\ns_sub_u32 s34, 32, s33")
        A(f"s_sub_u32 s35, {k}, {s(S_NONCE)}\ns_and_b32 s35, s35, 7\ns_lshl_b32 s35, s35, 5\ns_add_u32 {s(S_ID)}, s33, s31\ns_add_u32 {s(S_ID)}, {s(S_ID)}, s35")
        A("s_cmp_lt_u32 s31, s34\ns_cbranch_scc1 L_role_known\ns_sub_u32 s31, s31, s34")
    A("s_branch L_timeout")
    A("L_role_known:")
    A(f"s_lshl_b32 s29, {s(S_FOREIGN)}, 8\ns_or_b32 s30, s29, {s(S_ID)}\nv_mov_b32 v4, s30\nds_write_b32 v6, v4\ns_waitcnt lgkmcnt(0)")
    A("L_role_wait:")
    A("s_barrier\nds_read_b32 v4, v6")
    A(f"s_cmp_eq_u32 {s(S_W)}, 0\ns_cbranch_scc0 L_no_reg")
    A("s_cmp_eq_u32 s16, -1\ns_cbranch_scc1 L_no_done")
    A(f"v_mov_b32 {v(ER)}, {s(S_NONCE)}\ns_lshl_b32 s16, s16, 7\ns_add_u32 s16, s16, {DONE}")
    A(f"v_lshrrev_b32 v5, 2, v3\nv_and_b32 v5, 124, v5\nbuffer_store_dword {v(ER)}, v5, {s(WS, 4)}, s16 offen sc1\nL_no_done:\ns_mov_b64 exec, 1")
    A(f"s_cmp_lt_u32 {s(S_ID)}, 32\ns_cbranch_scc0 L_no_reg2")
    A(f"s_add_u32 s29, s29, 1\nv_mov_b32 {v(ER + 2)}, s29\nbuffer_atomic_add {v(ER + 2)}, {v(ER + 1)}, {s(DB, 4)}, 0 offen offset:{D_REG} sc1")
    A("L_no_reg2:\ns_mov_b64 exec, -1")
    A("L_no_reg:")
    A("s_waitcnt lgkmcnt(0)\nv_readfirstlane_b32 s30, v4")
    A(f"s_and_b32 {s(S_ID)}, s30, 0xff")
    dbg_time(A, opts, 4, 16)
    amp_mark(A, opts, 1)
    A(f"s_sub_u32 s36, {s(S_ID)}, 30\ns_cmp_lt_u32 s36, 2\ns_cbranch_scc1 L_ln")
    A(f"s_sub_u32 s36, {s(S_ID)}, 160\ns_cmp_lt_u32 s36, 48\ns_cbranch_scc0 L_no_ln\ns_bitcmp1_b32 s36, 4\ns_cbranch_scc1 L_no_ln\ns_cmp_lt_u32 s36, 2\ns_cbranch_scc1 L_no_ln")
    A("s_lshr_b32 s37, s36, 1\ns_and_b32 s37, s37, 16\ns_and_b32 s36, s36, 15\ns_add_u32 s36, s36, s37\nL_ln:")
    gen_ln(A, opts)
    A("L_no_ln:")
    A(f"s_lshr_b32 s28, {s(S_ID)}, 5\ns_and_b32 s29, {s(S_ID)}, 31")
    far = []

    def go(cond, label):
        hop = A.new("go")
        far.append((hop, label))
        A(f"{cond}\ns_cbranch_scc1 {hop}")

    A("s_cmp_eq_u32 s28, 0\ns_cbranch_scc0 L_not_chain")
    go("s_cmp_lt_u32 s29, 16", "L_chain_a")
    go("s_cmp_lt_u32 s29, 30", "L_chain_b")
    go("s_cmp_eq_u32 s29, 30", "L_chain_f")
    A("s_branch L_chain_g")
    A("L_not_chain:")
    A("s_cmp_lt_u32 s28, 5\ns_cbranch_scc0 L_not_yx")
    A("s_sub_u32 s30, s28, 1\ns_lshl_b32 s30, s30, 2\ns_and_b32 s31, s29, 3\ns_add_u32 s30, s30, s31\ns_lshr_b32 s31, s29, 2")
    go("s_cmp_lt_u32 s29, 12", "L_y")
    A("s_sub_u32 s31, s31, 3")
    go("s_cmp_lt_u32 s29, 24", "L_x1")
    A("s_sub_u32 s30, s28, 1\ns_mul_i32 s30, s30, 7\ns_add_u32 s30, s30, s29\ns_sub_u32 s30, s30, 24\ns_mov_b32 s31, 1")
    go("s_cmp_lt_u32 s29, 31", "L_f1")
    A("s_sub_u32 s30, s28, 1\ns_branch L_go_z")
    A("L_not_yx:")
    A("s_mov_b32 s30, s29\ns_mov_b32 s31, 0")
    A("s_cmp_eq_u32 s28, 7\ns_cbranch_scc0 L_not_f1")
    go("s_cmp_lt_u32 s29, 28", "L_f1")
    A("s_sub_u32 s30, s29, 16\ns_branch L_go_z")
    A("L_not_f1:")
    A("s_sub_u32 s31, s28, 5")
    go("s_cmp_lt_u32 s29, 14", "L_x2")
    A("s_sub_u32 s30, s29, 14")
    go("s_cmp_lt_u32 s29, 28", "L_f2")
    A("s_lshl_b32 s30, s31, 2\ns_add_u32 s30, s30, s29\ns_sub_u32 s30, s30, 24")
    A("L_go_z:\ns_branch L_z")
    A("L_exit:")
    A("s_endpgm")
    for hop, label in far:
        A(f"{hop}:\ns_branch {label}")
    A("L_timeout:")
    A(f"s_mov_b64 exec, -1\ns_add_u32 s29, {s(S_ID)}, 0x1000\nv_mov_b32 v1, s29\nv_mov_b32 v2, {D_ERR}")
    A(f"buffer_store_dword v1, v2, {s(DB, 4)}, 0 offen\ns_endpgm")

    gen_work.SLEEP = opts.get("slp", 2)
    A("L_chain_a:")
    gen_chain_a(A, opts)
    A("L_chain_b:")
    gen_chain_b(A, opts)
    A("L_chain_f:")
    gen_chain_f(A, opts)
    A("L_chain_g:")
    gen_chain_g(A, opts)
    for lab, fn in (("y", gen_work.gen_y), ("z", gen_work.gen_z), ("x1", gen_work.gen_x1), ("x2", gen_work.gen_x2), ("f1", gen_work.gen_f1), ("f2", gen_work.gen_f2)):
        A(f"L_{lab}:")
        if opts.get("no_" + lab):
            A("s_endpgm")
        else:
            fn(A, opts)
```

```python
import math
import struct
from asmlib import Asm, v, a, s
from layout import *
from common import *

MF = "v_mfma_f32_16x16x32_bf16"
D_OVF, D_REG, D_ERR, D_NONCE = 64, 68, 72, 192


def f32(x):
    return hex(struct.unpack("<I", struct.pack("<f", x))[0])


def load_srd(A, dst, name, tmp):
    A(f"s_load_dwordx2 {s(tmp, 2)}, s[0:1], {KARG[name]}")

    def build():
        A(f"s_mov_b32 {s(dst)}, {s(tmp)}")
        A(f"s_and_b32 {s(dst + 1)}, {s(tmp + 1)}, 0xffff")
        A(f"s_mov_b32 {s(dst + 2)}, {SIZE[name]}")
        A(f"s_mov_b32 {s(dst + 3)}, 0x20000")
    return build


def xor_reduce(A, op, x, t):
    for sw in ("v_permlane16_swap_b32", "v_permlane32_swap_b32"):
        A(f"v_mov_b32 {v(t)}, {v(x)}")
        A(f"{sw} {v(x)}, {v(t)}")
        A(f"{op} {v(x)}, {v(x)}, {v(t)}")


def quad_sum(A, x):
    for p in ("[1,0,3,2]", "[2,3,0,1]"):
        A(f"v_add_f32_dpp {v(x)}, {v(x)}, {v(x)} quad_perm:{p} row_mask:0xf bank_mask:0xf")


def chunk_pos(A, dst, tok, g, t):
    A(f"v_lshrrev_b32 {v(t)}, 3, {v(tok)}\nv_lshlrev_b32 {v(t)}, 1, {v(t)}\nv_xor_b32 {v(t)}, {v(t)}, {v(g)}")
    A(f"v_lshl_add_u32 {v(t)}, {v(tok)}, 2, {v(t)}\nv_lshlrev_b32 {v(dst)}, 4, {v(t)}")


def gen_prep(A, opts, done, rank):
    S_, G_ = 20, 24
    A("s_and_b32 s28, s2, 7\ns_lshr_b32 s29, s2, 3")
    A("s_cmp_eq_u32 s28, 0\ns_cbranch_scc1 L_prep_none")
    A("s_sub_u32 s34, s28, 1\ns_lshl_b32 s28, s34, 5\ns_add_u32 s28, s28, s29")
    A("s_cmp_ge_u32 s29, 28\ns_cbranch_scc1 L_prep_rest")
    A("s_mul_i32 s30, s29, 37\ns_lshr_b32 s30, s30, 8\ns_mul_i32 s31, s30, 7\ns_sub_u32 s31, s29, s31")
    A("s_lshl_b32 s35, s34, 2\ns_add_u32 s30, s30, s35\ns_mul_i32 s35, s30, 37\ns_lshr_b32 s35, s35, 8\ns_mul_i32 s32, s35, 7\ns_sub_u32 s30, s30, s32")
    A("s_lshl_b32 s32, s35, 2\ns_add_u32 s32, s32, s30\ns_mul_i32 s35, s35, 3\ns_add_u32 s35, s35, s30\ns_sub_u32 s35, s35, 4")
    A("s_cmp_lt_u32 s30, 4\ns_cselect_b32 s32, s32, s35\ns_cselect_b32 s33, 1, 0\ns_branch L_prep_task")
    A("L_prep_rest:")
    A("s_sub_u32 s30, s29, 28\ns_lshr_b32 s35, s34, 1\ns_add_u32 s32, s35, 12\ns_and_b32 s33, s34, 1\ns_lshl_b32 s31, s33, 2\ns_add_u32 s31, s31, s30")
    A("s_add_u32 s35, s35, 4\ns_cmp_eq_u32 s31, 7\ns_cselect_b32 s32, 15, s32\ns_cselect_b32 s31, s35, s31\ns_mov_b32 s33, 0")
    A("L_prep_task:")
    A("s_lshl_b32 s16, s33, 4\ns_add_u32 s16, s16, s32\ns_mul_i32 s16, s16, 7\ns_add_u32 s16, s16, s31")
    A("s_cmp_eq_u32 s33, 0")
    A(f"s_cselect_b32 {s(S_)}, s44, s50\ns_cselect_b32 {s(S_ + 1)}, s45, s51\ns_cselect_b32 {s(G_)}, s46, s48\ns_cselect_b32 {s(G_ + 1)}, s47, s49")
    for r in (S_, G_):
        A(f"s_and_b32 {s(r + 1)}, {s(r + 1)}, 0xffff\ns_mov_b32 {s(r + 2)}, {SIZE['wq']}\ns_mov_b32 {s(r + 3)}, 0x20000")
    DA, RA = 208, 216
    A("v_lshrrev_b32 v4, 5, v0\nv_and_b32 v5, 31, v0\ns_lshl_b32 s34, s32, 9\nv_and_b32 v7, 3, v1")
    for j in range(8):
        pm = 8 * (2 * j // 4) + (2 * j) % 4
        A(f"v_add_u32 v6, {2 * j}, v4\nv_xor_b32 v6, v6, v5\nv_lshlrev_b32 v6, 4, v6\nv_lshl_add_u32 v6, v4, 13, v6\ns_add_u32 s35, s34, {pm * 8192}\nv_add_u32 {v(DA + j)}, s35, v6")
    for k in range(4):
        A(f"v_add_u32 v6, {4 * k}, v2\nv_xor_b32 v6, v6, v1\nv_lshlrev_b32 v6, 4, v6\nv_lshl_add_u32 {v(RA + k)}, v1, 9, v6")
    A(f"s_mul_i32 s61, {s(S_W)}, 24576\ns_add_u32 s61, s61, 32768")
    for k in range(4):
        A(f"v_add_u32 {v(RA + 4 + k)}, s61, {v(RA + k)}")
    SS, ACC = 16, 144
    A(f"s_mul_i32 s36, s32, {FRAG_H}\ns_mul_i32 s37, s33, {BF - AF}\ns_add_u32 s36, s36, s37")
    if AF:
        A(f"s_add_u32 s36, s36, {AF}")
    A(f"s_mul_i32 s39, {s(S_W)}, 7\ns_lshl_b32 s58, {s(S_W)}, 13")

    def tile_ids(typ):
        if typ == 0:
            for j in range(7):
                A(f"s_add_u32 s56, s31, {j}\ns_sub_u32 s57, s56, 7\ns_cmp_ge_u32 s56, 7\ns_cselect_b32 s56, s57, s56\ns_add_u32 {s(64 + j)}, s56, s39")
            return
        A(f"s_mul_i32 s59, {s(S_W)}, 3\ns_min_u32 s60, {s(S_W)}, 2\ns_add_u32 s59, s59, s60")
        A(f"s_cmp_lt_u32 {s(S_W)}, 2\ns_cselect_b32 s73, 4, 3")
        A("s_sub_u32 s56, s31, s73\ns_cmp_ge_u32 s31, s73\ns_cselect_b32 s60, s56, s31\ns_sub_u32 s56, s60, s73\ns_cmp_ge_u32 s60, s73\ns_cselect_b32 s60, s56, s60")
        for jp in range(4):
            A(f"s_add_u32 s56, s60, {jp}\ns_sub_u32 s57, s56, s73\ns_cmp_ge_u32 s56, s73\ns_cselect_b32 s56, s57, s56\ns_add_u32 s56, s56, s59")
            A(f"s_lshl_b32 {s(64 + 2 * jp)}, s56, 1\ns_add_u32 {s(65 + 2 * jp)}, {s(64 + 2 * jp)}, 1")

    def tile_dma(vm, srd, tag, k, sbase):
        A(f"s_add_u32 s62, {s(sbase)}, {k * 1024}\ns_mov_b32 m0, s62\ns_nop 0")
        nt = " nt" if opts.get("pnt", 0) & (1 if tag == "s" else 2) else ""
        vm.op(f"buffer_load_dwordx4 {v(DA + k)}, {s(srd, 4)}, s56 offen{nt} lds", tag)

    def load_G(vm, j):
        out = []
        for k in range(8):
            def one(k=k):
                if k == 0:
                    A(f"s_lshr_b32 s57, {s(64 + j)}, 1\ns_lshl_b32 s57, s57, 18\ns_and_b32 s56, {s(64 + j)}, 1\ns_lshl_b32 s56, s56, 15\ns_add_u32 s56, s56, s57")
                    A(f"s_add_u32 s63, s61, {(j % 3) * 8192}")
                tile_dma(vm, G_, f"g{j}", k, 63)
            out.append(one)
        return out

    def body(typ):
        vm = Cnt(A, "vmcnt", 63)
        mark(A, opts, 5)
        tile_ids(typ)
        NT = 7 + typ
        if typ == 0:
            A(f"s_lshr_b32 s56, {s(S_W)}, 1\ns_lshl_b32 s56, s56, 18\ns_and_b32 s57, {s(S_W)}, 1\ns_lshl_b32 s57, s57, 15\ns_add_u32 s56, s56, s57\ns_lshl_b32 s57, s31, 19\ns_add_u32 s56, s56, s57")
            for k in range(8):
                tile_dma(vm, S_, "s", k, 58)
        else:
            A("v_lshrrev_b32 v6, 2, v0\nv_mul_u32_u24 v6, 896, v6\nv_lshl_add_u32 v6, v7, 4, v6")
            A("v_lshrrev_b32 v8, 2, v1\nv_lshlrev_b32 v8, 6, v8\nv_lshl_add_u32 v8, v7, 4, v8\nv_lshl_add_u32 v8, v2, 9, v8")
            A(f"s_mul_i32 s56, s32, 229376\ns_lshl_b32 s57, s31, 7\ns_add_u32 s56, s56, s57\ns_lshr_b32 s57, {s(S_W)}, 1\ns_lshl_b32 s57, s57, 6\ns_add_u32 s56, s56, s57")
            A(f"s_and_b32 s57, {s(S_W)}, 1\ns_mul_i32 s57, s57, {128 * 896}\ns_add_u32 s56, s56, s57\ns_mov_b32 s57, s58")
            for j in range(8):
                A("s_mov_b32 m0, s57\ns_add_u32 s57, s57, 1024")
                vm.op(f"buffer_load_dwordx4 v6, {s(S_, 4)}, s56 offen{' nt' if opts.get('pnt', 0) & 1 else ''} lds", "s")
                A(f"s_add_u32 s56, s56, {16 * 896}")
        first = opts.get("gfirst", 1)
        for j in range(first):
            for x in load_G(vm, j):
                x()
        if not opts.get("laterank"):
            rank()
        vm.wait("s")
        mark(A, opts, 2)
        A("s_barrier")
        lg = Cnt(A, "lgkmcnt", 15)
        for es in range(8):
            for t in range(4):
                if typ == 0:
                    lg.room(1)
                    lg.op(f"ds_read_b128 {v(SS + (t * 8 + es) * 4, 4)}, {v(RA + es % 4)} offset:{t * 8192 + (es // 4) * 256}")
                else:
                    for x in range(2):
                        lg.room(1)
                        lg.op(f"ds_read_b64_tr_b16 {v(SS + (t * 8 + es) * 4 + 2 * x, 2)}, v8 offset:{(t // 2) * 16384 + es * 2048 + x * 256 + (t % 2) * 8}")
        if typ == 0:
            A(f"s_mov_b32 s38, {f32(math.log2(math.e) / 16.0)}\ns_lshl_b32 s57, s31, 11\ns_add_u32 s36, s36, s57")
        else:
            A(f"s_mul_i32 s57, s31, {4 * 14 * KB}\ns_add_u32 s36, s36, s57")
        lg.drain()

        def epilogue(j):
            accb = ACC + (j % 2) * 16
            out = []
            if typ == 0:
                out += [f"v_pk_mul_f32 {v(accb + r, 2)}, {v(accb + r, 2)}, v[12:13]" for r in range(0, 16, 2)]
                out += [f"v_cvt_pk_bf16_f32 {pk(j, r)}, {v(accb + 2 * r)}, {v(accb + 2 * r + 1)}" for r in range(8)]
            else:
                out += [f"v_cvt_pk_bf16_f32 {pk(j // 2 * 2 + r // 4, 4 * (r // 2 % 2) + 2 * (j % 2) + r % 2)}, {v(accb + 2 * r)}, {v(accb + 2 * r + 1)}" for r in range(8)]
            return out

        def pk(j, r, n=1):
            return v((176 + 8 * j if j < 4 else 224 + 8 * (j - 4) if j < 7 else 4) + r, n)

        def stores(j):
            if typ == 0:
                A(f"s_mul_i32 s59, {s(64 + j)}, {14 * KB}\ns_add_u32 s59, s59, s36")
                for k in range(2):
                    A(f"buffer_store_dwordx4 {pk(j, 4 * k, 4)}, v3, {s(WS, 4)}, s59 offen offset:{k * 1024} sc1{' nt' if opts.get('snt') else ''}")
            elif j % 2:
                A(f"s_lshl_b32 s59, {s(63 + j)}, 9\ns_add_u32 s59, s59, s36")
                for t in range(4):
                    A(f"buffer_store_dwordx4 {pk(j - 1 + t // 2, 4 * (t % 2), 4)}, v3, {s(WS, 4)}, s59 offen sc1{' nt' if opts.get('snt') else ''}\ns_add_u32 s59, s59, {14 * KB}")

        if typ == 0:
            A("v_mov_b32 v12, s38\nv_mov_b32 v13, s38")
        def poison():
            A(f"s_lshl_b32 s59, {s(S_W)}, 10\nv_add_u32 v9, s59, v3")
            for r in range(4):
                A(f"v_mov_b32 {v(248 + r)}, -1")
            ranges = [(P1_BASE, P1_BLOCKS), (P2_BASE, P2_BLOCKS)] + P_LAST
            total = sum(n for _, n in ranges)
            for i in range(-(-total // 224)):
                sk = A.new("pz")
                A(f"s_add_u32 s59, s28, {224 * i}\ns_cmp_ge_u32 s59, {total}\ns_cbranch_scc1 {sk}")
                first = 0
                for k, (base, n) in enumerate(ranges):
                    if first + n > 224 * i and first < 224 * (i + 1):
                        val = (base - first * 4096) & 0xffffffff
                        if first <= 224 * i:
                            A(f"s_mov_b32 s73, {val}")
                        else:
                            A(f"s_cmp_ge_u32 s59, {first}\ns_cselect_b32 s73, {val}, s73")
                    first += n
                A(f"s_lshl_b32 s59, s59, 12\ns_add_u32 s59, s59, s73")
                A(f"buffer_store_dwordx4 v[248:251], v9, {s(WS, 4)}, s59 offen sc1\n{sk}:")

        def g_reads(j):
            return [lambda es=es: lg.op(f"ds_read_b128 {a((j % 2) * 32 + es * 4, 4)}, {v(RA + 4 + es % 4)} offset:{(j % 3) * 8192 + (es // 4) * 256}", f"r{j}") for es in range(8)]

        vm.wait("g0")
        mark(A, opts, 3)
        for x in g_reads(0):
            x()
        for j in range(first, 2):
            for x in load_G(vm, j):
                x()
        pend = []
        short = A.new("short")
        sfirst = opts.get("sfirst", 4)
        for j in range(NT):
            accb = ACC + (j % 2) * 16
            fill = {}
            if typ == 1 and j == 6:
                A(f"s_cmp_ge_u32 {s(S_W)}, 2\ns_cbranch_scc1 {short}")
                pend6 = list(pend)
            if j + 2 < NT:
                for k, x in enumerate(load_G(vm, j + 2)):
                    fill[3 * k] = [x]
            if j < NT - 1:
                r = g_reads(j + 1)
                fill[23] = [lambda: vm.wait(f"g{j + 1}"), r[0]]
                for k in range(1, 8):
                    fill[23 + k] = [r[k]]
            g = 4
            for x in pend:
                while g in fill and g < 23:
                    g += 1
                fill.setdefault(g, []).insert(0, x)
                g += 1
            if j == sfirst:
                fill.setdefault(2, []).append(poison)
                for k in range(j - 1):
                    fill.setdefault(6 + 6 * k, []).append(lambda k=k: (stores(k), vm.q.extend(["o"] * (2 if typ == 0 else 4 * (k % 2)))))
            if j >= sfirst:
                fill.setdefault(31, []).append(lambda j=j: (stores(j - 1), vm.q.extend(["o"] * (2 if typ == 0 else 4 * ((j - 1) % 2)))))
            lg.wait(f"r{j}")
            if opts.get("tilem") and j in (1, 3, 5):
                mark(A, opts, {1: 2, 3: 5, 5: 4}[j])
            elif j == 5:
                mark(A, opts, 4)
            k = 0
            for es in range(8):
                for t in range(4):
                    c = "0" if es == 0 else v(accb + t * 4, 4)
                    sop, gop = v(SS + (t * 8 + es) * 4, 4), a((j % 2) * 32 + es * 4, 4)
                    A(f"{MF} {v(accb + t * 4, 4)}, {sop if typ == 0 else gop}, {gop if typ == 0 else sop}, {c}")
                    for x in fill.get(k, []):
                        x() if callable(x) else A(x)
                    k += 1
            pend = epilogue(j)
        for x in pend:
            x() if callable(x) else A(x)
        stores(NT - 1)
        if typ == 1:
            A(f"s_branch {done}\n{short}:")
            for x in pend6:
                A(x)
            stores(5)
        dbg_time(A, opts, 1 + typ, 1 + 56 * typ, 2)
        A(f"s_branch {done}")

    A("s_cmp_eq_u32 s33, 0\ns_cbranch_scc0 L_prep_b")
    body(0)
    A("L_prep_b:")
    body(1)

    A("L_prep_none:\ns_mov_b32 s16, -1")
    rank()


def gen_ln(A, opts):
    X_, M0_ = 20, 24
    A(f"s_load_dwordx4 s[52:55], s[0:1], {KARG['x']}\ns_waitcnt lgkmcnt(0)")
    for dst, src, name in ((X_, 52, "x"), (M0_, 54, "mem0")):
        A(f"s_mov_b32 {s(dst)}, {s(src)}\ns_and_b32 {s(dst + 1)}, {s(src + 1)}, 0xffff\ns_mov_b32 {s(dst + 2)}, {SIZE[name]}\ns_mov_b32 {s(dst + 3)}, 0x20000")
    A(f"s_lshl_b32 s37, s36, 2\ns_add_u32 s37, s37, {s(S_W)}")
    A("v_lshrrev_b32 v61, 2, v0\nv_and_b32 v62, 3, v0\nv_mul_u32_u24 v63, 896, v61\nv_lshl_add_u32 v63, v62, 4, v63")
    A(f"s_mul_i32 s28, s37, {16 * 896}")
    RAW, F = 4, 64
    for ks in range(14):
        A(f"buffer_load_dwordx4 {v(RAW + ks * 4, 4)}, v63, {s(X_, 4)}, s28 offen offset:{ks * 64}{' nt' if opts.get('pnt', 0) & 1 else ''}")
    A("s_cmp_eq_u32 s36, 1\ns_cbranch_scc1 L_prep_mem\ns_waitcnt vmcnt(0)\ns_branch L_prep_nomem\nL_prep_mem:")
    A("v_and_b32 v214, 7, v1\nv_mul_u32_u24 v214, 896, v214\nv_lshrrev_b32 v215, 3, v1\nv_lshl_add_u32 v214, v215, 2, v214\nv_lshl_add_u32 v214, v2, 5, v214")
    for rep in range(2):
        A(f"s_add_u32 s31, {s(S_W)}, {4 * rep}\ns_min_u32 s31, s31, 6\ns_lshl_b32 s32, s31, 7\ns_lshl_b32 {s(33 + rep)}, s31, 10")
        for j in range(4):
            A(f"buffer_load_dword {v(188 + 4 * rep + j)}, v214, {s(M0_, 4)}, s32 offen offset:{j * 8}")
    A("s_waitcnt vmcnt(0)")
    for rep in range(2):
        for j in range(4):
            A(f"v_min_u32 {v(188 + 4 * rep + j)}, -2, {v(188 + 4 * rep + j)}")
        for base in (CM, XM):
            A(f"s_add_u32 s35, {s(33 + rep)}, {base}\nbuffer_store_dwordx4 {v(188 + 4 * rep, 4)}, v3, {s(WS, 4)}, s35 offen sc1{' nt' if opts.get('snt') else ''}")
    A("L_prep_nomem:")
    A("s_waitcnt vmcnt(4)")
    A("s_mov_b32 s29, 0xffff0000")
    for r in range(56):
        A(f"v_lshlrev_b32 {v(F + 2 * r)}, 16, {v(RAW + r)}")
        A(f"v_and_b32 {v(F + 2 * r + 1)}, s29, {v(RAW + r)}")
    S0 = 192
    pk = lambda op, d, x, y: A(f"{op} {v(d, 2)}, {v(x, 2)}, {v(y, 2)}")
    pk("v_pk_add_f32", S0, F, F + 2)
    pk("v_pk_add_f32", S0 + 2, F + 4, F + 6)
    for r in range(8, 112, 2):
        pk("v_pk_add_f32", S0 + r % 4, S0 + r % 4, F + r)
    pk("v_pk_add_f32", S0, S0, S0 + 2)
    A(f"v_add_f32 {v(S0)}, {v(S0)}, {v(S0 + 1)}")
    quad_sum(A, S0)
    A(f"v_mul_f32 {v(S0)}, {f32(-1.0 / 448)}, {v(S0)}\nv_mov_b32 {v(S0 + 1)}, {v(S0)}")
    for r in range(0, 112, 2):
        pk("v_pk_add_f32", F + r, F + r, S0)
    pk("v_pk_mul_f32", S0 + 4, F, F)
    pk("v_pk_mul_f32", S0 + 6, F + 2, F + 2)
    for r in range(4, 112, 2):
        A(f"v_pk_fma_f32 {v(S0 + 4 + r % 4, 2)}, {v(F + r, 2)}, {v(F + r, 2)}, {v(S0 + 4 + r % 4, 2)}")
    pk("v_pk_add_f32", S0 + 4, S0 + 4, S0 + 6)
    A(f"v_add_f32 {v(S0 + 4)}, {v(S0 + 4)}, {v(S0 + 5)}")
    quad_sum(A, S0 + 4)
    A(f"v_mov_b32 {v(S0 + 6)}, {f32(1e-5)}")
    A(f"v_fmac_f32 {v(S0 + 6)}, {f32(1.0 / 448)}, {v(S0 + 4)}")
    A(f"v_rsq_f32 {v(S0 + 6)}, {v(S0 + 6)}\nv_mov_b32 {v(S0 + 7)}, {v(S0 + 6)}")
    A(f"s_mul_i32 s28, s37, {14 * KB}\ns_add_u32 s28, s28, {XF}")
    chunk_pos(A, 208, 61, 62, 63)
    A(f"v_and_b32 v63, 1, v62\nv_cmp_eq_u32 s[56:57], 1, v63\ns_add_u32 s30, s28, {XS - XF}")
    for ks in range(14):
        for r in range(0, 8, 2):
            pk("v_pk_mul_f32", F + ks * 8 + r, F + ks * 8 + r, S0 + 6)
        for r in range(4):
            A(f"v_cvt_pk_bf16_f32 {v(RAW + ks * 4 + r)}, {v(F + ks * 8 + 2 * r)}, {v(F + ks * 8 + 2 * r + 1)}")
        A(f"buffer_store_dwordx4 {v(RAW + ks * 4, 4)}, v208, {s(WS, 4)}, s28 offen offset:{(ks % 4) * 1024} sc1{' nt' if opts.get('snt') else ''}")
        Q, D = 200 + 4 * (ks % 2), RAW + ks * 4
        A(f"v_cndmask_b32 v210, {v(D + 1)}, {v(D)}, s[56:57]\nv_cndmask_b32 v211, {v(D + 3)}, {v(D + 2)}, s[56:57]")
        for r in range(2):
            A(f"v_mov_b32_dpp {v(212 + r)}, {v(210 + r)} quad_perm:[1,0,3,2] row_mask:0xf bank_mask:0xf")
        for r, (ev, od) in enumerate(((D, 212), (D + 2, 213), (212, D + 1), (213, D + 3))):
            A(f"v_cndmask_b32 {v(Q + r)}, {v(ev)}, {v(od)}, s[56:57]")
        A(f"buffer_store_dwordx4 {v(Q, 4)}, v208, {s(WS, 4)}, s30 offen offset:{(ks % 4) * 1024} sc1{' nt' if opts.get('snt') else ''}")
        if ks % 4 == 3:
            A("s_add_u32 s28, s28, 4096\ns_add_u32 s30, s30, 4096\ns_waitcnt vmcnt(40)")
    A(f"s_add_u32 s16, s36, 224\ns_lshl_b32 s16, s16, 7\ns_add_u32 s16, s16, {DONE}\nv_mov_b32 v4, {s(S_NONCE)}\nv_lshrrev_b32 v5, 2, v3\nv_and_b32 v5, 124, v5")
    A(f"s_cmp_eq_u32 {s(S_W)}, 0\ns_waitcnt vmcnt(0)\ns_barrier\ns_cbranch_scc0 L_ln_noflag")
    A(f"buffer_store_dword v4, v5, {s(WS, 4)}, s16 offen sc1\nL_ln_noflag:")
    dbg_time(A, opts, 3, 160)
```

```python
from asmlib import v, a, s
from layout import *
from common import *
from gen_prep import f32, load_srd, xor_reduce, chunk_pos
import math

MF = "v_mfma_f32_16x16x32_bf16"
SLEEP = 2
Y_TEAMS, X1_TEAMS, X2_TEAMS, F_TEAMS = 3, 3, 2, 2


def tmark(A, opts, k):
    if opts.get("tailm"):
        mark(A, opts, k)


def set_flag(A, soff, t):
    A(f"v_mov_b32 {v(t)}, {s(S_NONCE)}\nv_lshrrev_b32 {v(t + 1)}, 2, v3\nv_and_b32 {v(t + 1)}, 124, {v(t + 1)}")
    A(f"buffer_store_dword {v(t)}, {v(t + 1)}, {s(WS, 4)}, {s(soff)} offen sc1")


def paired_addr(A, d0, d1):
    for vv, d in enumerate((d0, d1)):
        A(f"v_lshrrev_b32 v4, 1, v1\nv_add_u32 v4, {8 * vv}, v4")
        chunk_pos(A, d, 4, 2, 5)
        A(f"v_and_b32 v4, 1, v1\nv_mul_u32_u24 v4, {14 * KB}, v4\nv_add_u32 {v(d)}, {v(d)}, v4")


def drain_unless_last(A, opts, sstep):
    if not opts.get("fast63", 1):
        A("s_waitcnt vmcnt(0)")
        return
    sk = A.new("nd")
    A(f"s_cmp_eq_u32 {s(sstep)}, 63\ns_cbranch_scc1 {sk}\ns_waitcnt vmcnt(0)\n{sk}:")


def clean(A, regs):
    for r in regs:
        A(f"v_min_u32 {v(r)}, -2, {v(r)}")


def verify_last(A, opts, sstep, regs, t, retry, younger=0):
    if not opts.get("fast63", 1):
        return
    sk = A.new("vl")
    A(f"s_cmp_eq_u32 {s(sstep)}, 63\ns_cbranch_scc0 {sk}")
    poll_guard(A)
    A(f"s_waitcnt vmcnt({younger})")
    sentinel_check(A, regs, t, retry)
    A(f"{sk}:")


def seg_dma(A, sx, sm0, cnt=None):
    for q, n in ((0, 4), (1, 3)):
        A(f"s_add_u32 s33, {s(sm0)}, {q * 4096}\ns_mov_b32 m0, s33\ns_add_u32 s34, {s(sx)}, {q * 4096}")
        for k in range(n):
            t = f"buffer_load_dwordx4 v3, {s(WS, 4)}, s34 offen offset:{k * 1024} sc1 lds"
            cnt.op(t, "x") if cnt else A(t)


def gen_y(A, opts):
    ACC, XOP, PK, XR, T = 4, 32, 48, 76, 78
    sS, sX, sM0, sY, sF = 44, 45, 46, 47, 48
    vm = Cnt(A, "vmcnt", 63)
    A(f"s_mov_b32 {s(sS)}, s31\ns_mul_i32 {s(sM0)}, {s(S_W)}, {7 * KB}")
    A(f"s_mul_i32 {s(sX)}, s31, {28 * KB}\ns_add_u32 {s(sX)}, {s(sX)}, {s(sM0)}\ns_add_u32 {s(sX)}, {s(sX)}, {XF}")
    A(f"s_mul_i32 s35, s30, {FRAG_H}\ns_mul_i32 s36, {s(S_W)}, {7 * 14 * KB}\ns_add_u32 s35, s35, s36\ns_add_u32 s35, s35, {BF}")
    A(f"s_mul_i32 s33, {s(S_W)}, 7\nv_min_u32 v4, 6, v0\nv_add_u32 v4, s33, v4\nv_lshrrev_b32 v4, 2, v4\ns_mul_i32 s33, s30, 7\ns_add_u32 s33, s33, 112\nv_add_u32 v4, s33, v4")
    load_pieces(A, [(14, lambda i=i: frag_loads(A, 35, [((i * 14 + ks) * 4, (i * 14 + ks) * KB) for ks in range(14)])) for i in range(7)], 4, (7, lambda: seg_dma(A, sX, sM0)))
    A(f"s_lshl_b32 s33, s31, 4\ns_add_u32 s33, s33, s30\ns_mul_i32 {s(sY)}, s33, {28 * KB}\ns_add_u32 {s(sY)}, {s(sY)}, {YF}")
    A(f"s_mul_i32 s33, {s(S_W)}, {7 * KB}\ns_add_u32 {s(sY)}, {s(sY)}, s33")
    A(f"s_mul_i32 {s(sF)}, s31, {FL_STEP}\ns_lshl_b32 s33, s30, 7\ns_add_u32 {s(sF)}, {s(sF)}, s33\ns_add_u32 {s(sF)}, {s(sF)}, {FY}")
    paired_addr(A, XR, XR + 1)
    top, nodma, noflag, done = (A.new(x) for x in ("y_top", "y_nodma", "y_nofl", "y_done"))
    A("s_waitcnt vmcnt(0)\ns_barrier")
    mark(A, opts, 1)
    A(f"{top}:")
    A(f"s_add_u32 s33, {s(sS)}, {Y_TEAMS}\ns_cmp_ge_u32 s33, 64\ns_cbranch_scc1 {nodma}\ns_cmp_lt_u32 {s(sS)}, {Y_TEAMS}\ns_cbranch_scc1 {nodma}")
    A(f"s_add_u32 {s(sX)}, {s(sX)}, {Y_TEAMS * 28 * KB}\ns_xor_b32 {s(sM0)}, {s(sM0)}, 0x8000")
    seg_dma(A, sX, sM0)
    A(f"{nodma}:")
    lg = Cnt(A, "lgkmcnt", 15)
    rd = lambda n: lg.op(f"ds_read_b128 {v(XOP + 4 * (n % 4), 4)}, {v(XR + n // 14)} offset:{(n % 14) * KB}", f"x{n}")
    for n in range(3):
        rd(n)
    for tt in range(2):
        for ks in range(14):
            n = tt * 14 + ks
            if n + 3 < 28:
                rd(n + 3)
            lg.wait(f"x{n}")
            for i in range(7):
                c = "0" if ks == 0 else v(ACC + 4 * i, 4)
                A(f"{MF} {v(ACC + 4 * i, 4)}, {v(XOP + 4 * (n % 4), 4)}, {wreg((i * 14 + ks) * 4, 4)}, {c}")
        for i in range(7):
            for b in range(2):
                A(f"v_cvt_pk_bf16_f32 {v(PK + 4 * i + 2 * tt + b)}, {v(ACC + 4 * i + 2 * b)}, {v(ACC + 4 * i + 2 * b + 1)}")
    A(f"s_add_u32 s33, {s(sY)}, 4096")
    for i in range(7):
        A(f"buffer_store_dwordx4 {v(PK + 4 * i, 4)}, v3, {s(WS, 4)}, {s(sY) if i < 4 else 's33'} offen offset:{(i % 4) * 1024} sc1")
    A(f"v_xor_b32 {v(XR)}, 0x8000, {v(XR)}\nv_xor_b32 {v(XR + 1)}, 0x8000, {v(XR + 1)}")
    A("s_waitcnt vmcnt(0)\ns_barrier")
    A(f"s_cmp_eq_u32 {s(S_W)}, 0\ns_cbranch_scc0 {noflag}")
    set_flag(A, sF, T)
    A(f"{noflag}:")
    later = A.new("y_later")
    A(f"s_cmp_lt_u32 {s(sS)}, {Y_TEAMS}\ns_cbranch_scc0 {later}")
    wait_prep(A, False)
    A(f"s_add_u32 {s(sX)}, {s(sX)}, {Y_TEAMS * 28 * KB}\ns_xor_b32 {s(sM0)}, {s(sM0)}, 0x8000")
    seg_dma(A, sX, sM0)
    A(f"s_waitcnt vmcnt(0)\ns_barrier\n{later}:")
    A(f"s_add_u32 {s(sS)}, {s(sS)}, {Y_TEAMS}\ns_cmp_ge_u32 {s(sS)}, 64\ns_cbranch_scc1 {done}")
    A(f"s_add_u32 {s(sY)}, {s(sY)}, {Y_TEAMS * 16 * 28 * KB}\ns_add_u32 {s(sF)}, {s(sF)}, {Y_TEAMS * FL_STEP}\ns_branch {top}")
    A(f"{done}:")
    wait_prep(A, True)
    A(f"s_add_u32 s31, s31, {Z_SPLIT}")
    z_loop(A, opts, "s31", Y_TEAMS, 64, False)


Z_SPLIT = 33


def z_loop(A, opts, first, step, end, lagged):
    from gen_chain import SMF, gather_addr, fetch_mem, idx_reg, zero
    MEM, ACC, G0, PK, IDX, GA0, GA1, ZA, T = 4, 32, 60, 76, 90, 91, 92, 93, 94
    sS, sXM, sZ, sF = 44, 45, 46, 47
    gather_addr(A, GA0, GA1)
    idx_reg(A, IDX)
    A(f"v_lshlrev_b32 {v(ZA)}, 3, v0\ns_mov_b32 {s(sS)}, {first}")
    A(f"s_lshl_b32 {s(sXM)}, {s(sS)}, 13\ns_add_u32 {s(sXM)}, {s(sXM)}, {XM}")
    A(f"s_lshl_b32 s33, {s(sS)}, 4\ns_add_u32 s33, s33, s30\ns_mul_i32 {s(sZ)}, s33, 14336\ns_mul_i32 s33, {s(S_W)}, 3584\ns_add_u32 {s(sZ)}, {s(sZ)}, s33\ns_add_u32 {s(sZ)}, {s(sZ)}, {ZF}")
    A(f"s_mul_i32 {s(sF)}, {s(sS)}, {FL_STEP}\ns_lshl_b32 s33, s30, 7\ns_add_u32 {s(sF)}, {s(sF)}, s33\ns_add_u32 {s(sF)}, {s(sF)}, {FZ - (FL_STEP if lagged else 0)}")
    top, noflag = A.new("z_top"), A.new("z_nofl")
    A(f"{top}:")
    for x in zero(ACC, 28):
        A(x)
    fetch_mem(A, {}, G0, GA0, GA1, sXM, T, 0)
    tmark(A, opts, 2)
    lg = Cnt(A, "lgkmcnt", 15)
    for kk in range(7):
        lg.op(f"ds_read_b128 {v(MEM + 4 * kk, 4)}, v3 offset:{kk * 1024}", f"m{kk}")
    if lagged:
        A(f"s_cmp_eq_u32 {s(S_W)}, 0\ns_cbranch_scc0 {noflag}\ns_cmp_eq_u32 {s(sS)}, 0\ns_cbranch_scc1 {noflag}")
        set_flag(A, sF, T)
        A(f"{noflag}:")
    for i in range(7):
        for kk in range(7):
            if i == 0:
                lg.wait(f"m{kk}")
            A(f"{SMF} {v(ACC + 4 * i, 4)}, {v(MEM + 4 * kk, 4)}, {wreg((i * 7 + kk) * 8, 8)}, {v(IDX)}")
    if lagged:
        A("s_barrier")
    for i in range(7):
        for b in range(2):
            A(f"v_cvt_pk_bf16_f32 {v(PK + 2 * i + b)}, {v(ACC + 4 * i + 2 * b)}, {v(ACC + 4 * i + 2 * b + 1)}")
        if not lagged:
            clean(A, (PK + 2 * i, PK + 2 * i + 1))
        A(f"buffer_store_dwordx2 {v(PK + 2 * i, 2)}, {v(ZA)}, {s(WS, 4)}, {s(sZ)} offen offset:{i * 512} sc1")
    if not lagged:
        tmark(A, opts, 3)
        drain_unless_last(A, opts, sS)
        A(f"s_cmp_eq_u32 {s(S_W)}, 0\ns_barrier\ns_cbranch_scc0 {noflag}")
        tmark(A, opts, 4)
        set_flag(A, sF, T)
        A(f"{noflag}:")
    A(f"s_add_u32 {s(sS)}, {s(sS)}, {step}\ns_add_u32 {s(sXM)}, {s(sXM)}, {step * 8192}\ns_add_u32 {s(sZ)}, {s(sZ)}, {step * 16 * 14336}\ns_add_u32 {s(sF)}, {s(sF)}, {step * FL_STEP}")
    A(f"s_cmp_lt_u32 {s(sS)}, {end}\ns_cbranch_scc1 {top}")
    if lagged:
        A("s_waitcnt vmcnt(0)\ns_barrier")
        set_flag(A, sF, T)
        A("s_mov_b32 s31, 63\ns_cmp_lt_u32 s30, 14\ns_cbranch_scc1 L_x2")
    flush_stamps(A, opts)
    A("s_endpgm")


def gen_z(A, opts):
    after_first_y(A, opts)
    wait_prep(A, True)
    vm = Cnt(A, "vmcnt", 63)
    A(f"s_mul_i32 s35, s30, {FRAG_H}\ns_mul_i32 s36, {s(S_W)}, {7 * 14 * KB}\ns_add_u32 s35, s35, s36\ns_add_u32 s35, s35, {BF}")
    load_weights(A, vm, 3, [(lambda i=i: A(f"s_add_u32 s37, s35, {i * 14 * KB}")) for i in range(7)], 37)
    mark(A, opts, 1)
    z_loop(A, opts, 0, 1, Z_SPLIT, True)


def wait_flags(A, fv, fa, soff, off=0, sleep=None):
    sleep = SLEEP if sleep is None else sleep
    lp, ok = A.new("wf"), A.new("wfok")
    A(f"{lp}:")
    flag_load(A, fv, fa, s(soff))
    poll_guard(A)
    A("s_waitcnt vmcnt(0)")
    flag_missing(A, [fv])
    A(f"s_cbranch_vccz {ok}\ns_sleep {sleep}\ns_branch {lp}\n{ok}:")


def wait_inputs(A, opts, sstep, fv, fa, soff):
    depth = opts.get("tp", 3)
    if not depth or not opts.get("fast63", 1):
        wait_flags(A, fv, fa, soff)
        return
    fast, lp, ok = A.new("wi_fast"), A.new("wi_lp"), A.new("wi_ok")
    A(f"s_cmp_eq_u32 {s(sstep)}, 63\ns_cbranch_scc1 {fast}")
    wait_flags(A, fv, fa, soff)
    A(f"s_branch {ok}\n{fast}:")
    ld = lambda k: A(f"buffer_load_dword {v(fv + k)}, {v(fa)}, {s(WS, 4)}, {s(soff)} offen sc1")
    for k in range(depth - 1):
        ld(k)
    A(f"{lp}:")
    poll_guard(A)
    for k in range(depth):
        ld((k + depth - 1) % depth)
        A(f"s_waitcnt vmcnt({depth - 1})\nv_cmp_ne_u32 vcc, {s(S_NONCE)}, {v(fv + k)}")
        A(f"s_cbranch_vccz {ok}" if k < depth - 1 else f"s_cbranch_vccnz {lp}")
    A(f"{ok}:")


def after_first_y(A, opts):
    if opts.get("nodelay"):
        return
    out = A.new("afy")
    A(f"s_cmp_eq_u32 {s(S_W)}, 0\ns_cbranch_scc0 {out}\nv_lshlrev_b32 v4, 7, v1\ns_mov_b32 s34, {FY + opts.get('afy', 0) * FL_STEP}")
    wait_flags(A, 6, 4, 34, sleep=16)
    A(f"{out}:\ns_barrier")


def unpack(A, dst, src, n, smask):
    for r in range(n):
        A(f"v_lshlrev_b32 {v(dst + 2 * r)}, 16, {v(src + r)}\nv_and_b32 {v(dst + 2 * r + 1)}, {s(smask)}, {v(src + r)}")


def gen_x1(A, opts):
    from gen_chain import gather_addr, mem_loads, check8
    ACC, XOP, TOP, G, ZERO = 4, 32, 48, 80, 88
    GA0, GA1, XR, KX, KX1, KX3, KX31, MK, MK2, MK3, SW, SR, PA, NEG, T = range(89, 104)
    SXB, SMB, XB = 8192, 24576, 32768
    sS, sX, sM0, sXM, sP, sF, sODD, sP0 = 44, 45, 46, 47, 48, 49, 50, 51
    MASK, ODDM = 56, 72
    after_first_y(A, opts)
    wait_prep(A, True)
    vm = Cnt(A, "vmcnt", 63)
    A(f"s_mov_b32 {s(sS)}, s31\ns_mul_i32 s35, {s(S_W)}, {7 * KB}\ns_add_u32 {s(sM0)}, s35, {XB}")
    A(f"s_mul_i32 {s(sX)}, s31, {28 * KB}\ns_add_u32 {s(sX)}, {s(sX)}, s35\ns_add_u32 {s(sX)}, {s(sX)}, {XF}")
    seg_dma(A, sX, sM0, vm)
    A(f"s_and_b32 {s(sODD)}, {s(S_W)}, 1\ns_mul_i32 s33, {s(S_W)}, 7\ns_add_u32 {s(sP0)}, s33, {s(sODD)}\ns_lshr_b32 {s(sP0)}, {s(sP0)}, 1")
    A(f"s_mul_i32 s34, s30, {FRAG_H}\ns_mul_i32 s33, {s(S_W)}, {7 * 14 * KB}\ns_add_u32 s34, s34, s33")
    if AF:
        A(f"s_add_u32 s34, s34, {AF}")
    A(f"s_mul_i32 s35, {s(sODD)}, {14 * KB}\ns_add_u32 s35, s35, s34\ns_add_u32 s36, s34, {6 * 14 * KB}\ns_cmp_eq_u32 {s(sODD)}, 0\ns_cselect_b32 s36, s36, s34")
    A(f"s_cselect_b64 {s(ODDM, 2)}, 0, -1")
    tiles = [(lambda i=i: A(f"s_add_u32 s37, s35, {i * 14 * KB}")) for i in range(6)] + [lambda: A("s_mov_b32 s37, s36")]
    load_weights(A, vm, 3, tiles, 37)
    gather_addr(A, GA0, GA1)
    A(f"v_mov_b32 {v(ZERO)}, 0\nv_mov_b32 {v(NEG)}, {f32(-1.0e9 * math.log2(math.e))}")
    chunk_pos(A, XR, 1, 2, 4)
    paired_addr(A, KX, KX1)
    A(f"v_add_u32 {v(XR)}, {XB}, {v(XR)}")
    A(f"s_lshl_b32 s33, {s(sP0)}, 10\ns_add_u32 s33, s33, {XB}\ns_lshl_b32 s34, {s(sODD)}, 12\ns_sub_u32 s34, 3072, s34")
    for r in (KX, KX1):
        A(f"v_add_u32 {v(r)}, s33, {v(r)}\nv_add_u32 {v(r + 2)}, s34, {v(r)}")
    A(f"v_and_b32 v4, 7, v1\nv_lshlrev_b32 v4, 4, v4\nv_lshrrev_b32 v5, 1, v2\nv_lshl_add_u32 v4, v5, 8, v4\nv_and_b32 v5, 1, v2\nv_lshl_add_u32 v4, v5, 3, v4")
    A(f"s_lshl_b32 s33, {s(sP0)}, 9\nv_add_u32 {v(MK)}, s33, v4\nv_add_u32 {v(MK2)}, 1024, {v(MK)}")
    A(f"s_lshl_b32 s34, {s(sODD)}, 11\ns_sub_u32 s34, 1536, s34\nv_add_u32 {v(MK3)}, s34, {v(MK)}")
    A(f"s_lshl_b32 s33, {s(S_W)}, 10\nv_add_u32 {v(SW)}, s33, v3\ns_lshl_b32 s33, {s(sODD)}, 12\nv_add_u32 {v(SR)}, s33, v3\nv_lshlrev_b32 {v(PA)}, 3, v0")
    A(f"s_lshl_b32 s33, {s(sODD)}, 4\nv_add_u32 v5, s33, v1")
    for kt in range(2):
        for q in range(4):
            A(f"v_lshl_add_u32 v4, v2, 1, {8 * kt + (q >> 1) + 16 * (q & 1)}\nv_cmp_le_u32 {s(MASK + 8 * kt + 2 * q, 2)}, v4, v5")
    A(f"s_lshl_b32 {s(sXM)}, s31, 13\ns_add_u32 {s(sXM)}, {s(sXM)}, {XM}")
    A(f"s_lshl_b32 s33, s31, 4\ns_add_u32 s33, s33, s30\ns_lshl_b32 s33, s33, 1\ns_add_u32 s33, s33, {s(sODD)}\ns_mul_i32 {s(sP)}, s33, 1536\ns_add_u32 {s(sP)}, {s(sP)}, {PF}")
    A(f"s_lshl_b32 s33, s30, 1\ns_add_u32 s33, s33, {s(sODD)}\ns_lshl_b32 s33, s33, 7\ns_mul_i32 {s(sF)}, s31, {FL_STEP}\ns_add_u32 {s(sF)}, {s(sF)}, s33\ns_add_u32 {s(sF)}, {s(sF)}, {FP}")
    top, nodma, nxt, lp, ok = (A.new("x1_" + x) for x in ("top", "nodma", "next", "poll", "ok"))
    A("s_waitcnt vmcnt(0)")
    mark(A, opts, 1)
    A(f"{top}:")
    A("s_barrier")
    A(f"s_add_u32 s33, {s(sS)}, {X1_TEAMS}\ns_cmp_ge_u32 s33, 64\ns_cbranch_scc1 {nodma}")
    A(f"s_add_u32 {s(sX)}, {s(sX)}, {X1_TEAMS * 28 * KB}\ns_xor_b32 {s(sM0)}, {s(sM0)}, 0x18000")
    seg_dma(A, sX, sM0)
    A(f"{nodma}:")
    lg = Cnt(A, "lgkmcnt", 15)
    rd = lambda n: lg.op(f"ds_read_b128 {v(XOP + 4 * (n % 4), 4)}, {v(XR)} offset:{n * KB}", f"x{n}")
    for n in range(3):
        rd(n)
    for tt in range(2):
        for ks in range(14):
            n = tt * 14 + ks
            if n + 3 < 28:
                rd(n + 3)
            lg.wait(f"x{n}")
            for i in range(7):
                c = "0" if ks == 0 else v(ACC + 4 * i, 4)
                A(f"{MF} {v(ACC + 4 * i, 4)}, {wreg((i * 14 + ks) * 4, 4)}, {v(XOP + 4 * (n % 4), 4)}, {c}")
        for i in range(6):
            for b in range(2):
                A(f"v_cvt_pk_bf16_f32 {v(TOP + 16 * tt + 2 * i + b)}, {v(ACC + 4 * i + 2 * b)}, {v(ACC + 4 * i + 2 * b + 1)}")
        for b in range(2):
            A(f"v_cvt_pk_bf16_f32 {v(T + b)}, {v(ACC + 24 + 2 * b)}, {v(ACC + 25 + 2 * b)}")
        for b in range(2):
            A(f"v_cndmask_b32 {v(TOP + 16 * tt + 12 + b)}, {v(T + b)}, {v(ZERO)}, {s(ODDM, 2)}")
            A(f"v_cndmask_b32 {v(TOP + 16 * tt + 14 + b)}, {v(ZERO)}, {v(T + b)}, {s(ODDM, 2)}")
    for half in range(2):
        for b in (2 * half, 2 * half + 1):
            for kt in range(2):
                reg, o = (KX3 + kt, 0) if b == 3 else (KX + kt, b * KB)
                lg.op(f"ds_read_b128 {v(XOP + 8 * (b % 2) + 4 * kt, 4)}, {v(reg)} offset:{o}", f"k{b}")
        for b in (2 * half, 2 * half + 1):
            lg.wait(f"k{b}")
            for j in range(4):
                kt, tt = j % 2, j // 2
                c = "0" if b == 0 else v(ACC + 4 * j, 4)
                A(f"{MF} {v(ACC + 4 * j, 4)}, {v(XOP + 8 * (b % 2) + 4 * kt, 4)}, {v(TOP + 16 * tt + 4 * b, 4)}, {c}")
    for r in (XR, KX, KX1, KX3, KX31):
        A(f"v_xor_b32 {v(r)}, 0x18000, {v(r)}")
    for j in range(4):
        A(f"ds_write_b128 {v(SW)}, {v(ACC + 4 * j, 4)} offset:{SXB + (j % 2) * 8192 + (j // 2) * 4096}")
    A(f"{lp}:")
    mem_loads(A, G, GA0, GA1, sXM)
    poll_guard(A)
    A("s_waitcnt vmcnt(0)")
    A(f"ds_write_b128 {v(GA0)}, {v(G, 4)}\nds_write_b128 {v(GA1)}, {v(G + 4, 4)}")
    check8(A, G, T)
    A(f"s_cbranch_vccz {ok}\ns_sleep 2\ns_branch {lp}\n{ok}:")
    tmark(A, opts, 2)
    A("s_waitcnt lgkmcnt(0)\ns_barrier")
    lg.q = []
    for b in range(4):
        reg, o = [(MK, 0), (MK, 128), (MK2, 0), (MK3, 0)][b]
        for x in range(2):
            lg.op(f"ds_read2_b32 {v(XOP + 4 * b + 2 * x, 2)}, {v(reg)} offset0:{o + x} offset1:{o + x + 32}", f"m{b}")
    for b in range(4):
        lg.wait(f"m{b}")
        for tt in range(2):
            c = "0" if b == 0 else v(ACC + 4 * tt, 4)
            A(f"{MF} {v(ACC + 4 * tt, 4)}, {v(XOP + 4 * b, 4)}, {v(TOP + 16 * tt + 4 * b, 4)}, {c}")
    for tt in range(2):
        A(f"ds_write_b128 {v(SW)}, {v(ACC + 4 * tt, 4)} offset:{SMB + tt * 4096}")
    A(f"s_cmp_ge_u32 {s(S_W)}, 2")
    A(f"s_waitcnt lgkmcnt(0)\ns_barrier\ns_cbranch_scc1 {nxt}")
    R, S = TOP, ACC
    for k, (reg, base) in enumerate(((SR, SMB), (SR, SXB), (SR, SXB + 8192))):
        for w in range(4):
            A(f"ds_read_b128 {v((XOP if k == 2 else R + 16 * k) + 4 * w, 4)}, {v(reg)} offset:{base + w * KB}")
    for k, d in enumerate((8, 0, 4)):
        b = XOP if k == 2 else R + 16 * k
        A(f"s_waitcnt lgkmcnt({8 - 4 * k})")
        for q in range(0, 4, 2):
            A(f"v_pk_add_f32 {v(b + q, 2)}, {v(b + q, 2)}, {v(b + 4 + q, 2)}\nv_pk_add_f32 {v(b + 8 + q, 2)}, {v(b + 8 + q, 2)}, {v(b + 12 + q, 2)}")
        for q in range(0, 4, 2):
            A(f"v_pk_add_f32 {v(S + d + q, 2)}, {v(b + q, 2)}, {v(b + 8 + q, 2)}")
    for r in range(8):
        A(f"v_cndmask_b32 {v(S + r)}, {v(NEG)}, {v(S + r)}, {s(MASK + 2 * r, 2)}")
    mx, sm = T, T + 1
    A(f"v_max3_f32 {v(mx)}, {v(S)}, {v(S + 1)}, {v(S + 2)}")
    for r in range(3, 11, 2):
        A(f"v_max3_f32 {v(mx)}, {v(mx)}, {v(S + r)}, {v(S + r + 1)}")
    A(f"v_max_f32 {v(mx)}, {v(mx)}, {v(S + 11)}")
    xor_reduce(A, "v_max_f32", mx, T + 2)
    for r in range(12):
        A(f"v_sub_f32 {v(S + r)}, {v(S + r)}, {v(mx)}")
    for r in range(12):
        A(f"v_exp_f32 {v(S + r)}, {v(S + r)}")
    A(f"v_add_f32 {v(sm)}, {v(S + 8)}, {v(S + 9)}\nv_add_f32 {v(T + 2)}, {v(S + 10)}, {v(S + 11)}\nv_add_f32 {v(sm)}, {v(sm)}, {v(T + 2)}\nv_mul_f32 {v(sm)}, 0.5, {v(sm)}")
    for r in range(8):
        A(f"v_add_f32 {v(sm)}, {v(sm)}, {v(S + r)}")
    xor_reduce(A, "v_add_f32", sm, T + 2)
    A(f"v_rcp_f32 {v(sm)}, {v(sm)}")
    for r in range(12):
        A(f"v_mul_f32 {v(S + r)}, {v(S + r)}, {v(sm)}")
    for r in range(6):
        A(f"v_cvt_pk_bf16_f32 {v(G + r)}, {v(S + 2 * r)}, {v(S + 2 * r + 1)}")
    clean(A, range(G, G + 6))
    A(f"buffer_store_dwordx4 {v(G, 4)}, v3, {s(WS, 4)}, {s(sP)} offen sc1")
    A(f"buffer_store_dwordx2 {v(G + 4, 2)}, {v(PA)}, {s(WS, 4)}, {s(sP)} offen offset:1024 sc1")
    tmark(A, opts, 3)
    drain_unless_last(A, opts, sS)
    tmark(A, opts, 4)
    set_flag(A, sF, T)
    A(f"{nxt}:")
    A(f"s_add_u32 {s(sS)}, {s(sS)}, {X1_TEAMS}\ns_add_u32 {s(sXM)}, {s(sXM)}, {X1_TEAMS * 8192}\ns_add_u32 {s(sP)}, {s(sP)}, {X1_TEAMS * 32 * 1536}\ns_add_u32 {s(sF)}, {s(sF)}, {X1_TEAMS * FL_STEP}")
    A(f"s_cmp_lt_u32 {s(sS)}, 64\ns_cbranch_scc1 {top}")
    flush_stamps(A, opts)
    A("s_endpgm")


def reduce_tiles(A, R, out, rr, base):
    for vv in range(2):
        for w in range(4):
            A(f"ds_read_b128 {v(R + 16 * vv + 4 * w, 4)}, {v(rr)} offset:{base + w * 4096 + vv * KB}")
    for vv in range(2):
        b = R + 16 * vv
        A(f"s_waitcnt lgkmcnt({4 - 4 * vv})")
        for q in (0, 2):
            A(f"v_pk_add_f32 {v(b + q, 2)}, {v(b + q, 2)}, {v(b + 4 + q, 2)}\nv_pk_add_f32 {v(b + 8 + q, 2)}, {v(b + 8 + q, 2)}, {v(b + 12 + q, 2)}")
        for q in (0, 2):
            A(f"v_pk_add_f32 {v(out + 4 * vv + q, 2)}, {v(b + q, 2)}, {v(b + 8 + q, 2)}")


def gen_x2(A, opts):
    Y, PX, PM, Z, ACC, XV, R, O = 4, 36, 68, 84, 100, 116, 120, 152
    FA1, FA2, _, L8, RW, RR, XA, SA, T = range(160, 169)
    YN, FV = 172, 208
    X_ = 16
    sS, sY, sP, sZ, sFL, sXO, sH, sST, sF, sMASK = range(44, 54)
    b = load_srd(A, X_, "x", 40)
    A(f"s_mov_b32 {s(sS)}, s31\ns_mov_b32 {s(sMASK)}, 0xffff0000\ns_and_b32 s36, {s(S_W)}, 1")
    A(f"v_lshlrev_b32 {v(FA1)}, 7, v1\nv_lshlrev_b32 {v(L8)}, 3, v0")
    A(f"v_and_b32 v4, 31, v0\nv_lshlrev_b32 v4, 7, v4\nv_add_u32 v4, {FP - FL}, v4\nv_add_u32 v5, {FZ - FL}, {v(FA1)}\nv_cmp_gt_u32 vcc, 32, v0\nv_cndmask_b32 {v(FA2)}, v5, v4, vcc")
    A(f"v_add_u32 v4, {X2_TEAMS * FL_STEP}, {v(FA1)}\nv_cmp_gt_u32 vcc, 48, v0\nv_cndmask_b32 {v(T + 2)}, v4, {v(FA2)}, vcc")
    A(f"s_lshl_b32 s33, {s(S_W)}, 12\nv_add_u32 {v(RW)}, s33, v3\ns_lshl_b32 s33, s36, 11\nv_add_u32 {v(RR)}, s33, v3")
    A(f"v_mul_u32_u24 v4, 896, v1\nv_lshl_add_u32 {v(XA)}, v2, 4, v4")
    A(f"v_lshlrev_b32 v4, 3, v1\nv_mov_b32 v5, {OOB}\nv_cmp_gt_u32 vcc, 16, v0\nv_cndmask_b32 {v(SA)}, v5, v4, vcc")
    A(f"s_lshl_b32 s33, s31, 4\ns_lshl_b32 s34, {s(S_W)}, 2\ns_add_u32 s33, s33, s34")
    A(f"s_mul_i32 {s(sY)}, s33, {28 * KB}\ns_lshl_b32 s34, s30, 11\ns_add_u32 {s(sY)}, {s(sY)}, s34\ns_add_u32 {s(sY)}, {s(sY)}, {YF}")
    A(f"s_mul_i32 {s(sP)}, s33, 3072\ns_add_u32 {s(sP)}, {s(sP)}, {PF}")
    A(f"s_mul_i32 {s(sZ)}, s33, 14336\ns_lshl_b32 s34, s30, 10\ns_add_u32 {s(sZ)}, {s(sZ)}, s34\ns_add_u32 {s(sZ)}, {s(sZ)}, {ZF}")
    A(f"s_mul_i32 {s(sFL)}, s31, {FL_STEP}\ns_add_u32 {s(sFL)}, {s(sFL)}, {FL}")
    A(f"s_lshl_b32 s33, s31, 1\ns_add_u32 s33, s33, s36")
    A(f"s_mul_i32 {s(sXO)}, s33, {16 * 896}\ns_lshl_b32 s34, s30, 6\ns_add_u32 {s(sXO)}, {s(sXO)}, s34")
    A(f"s_mul_i32 s33, s33, 14\ns_add_u32 s33, s33, s30\ns_lshl_b32 {s(sH)}, s33, 10\ns_add_u32 {s(sH)}, {s(sH)}, {HF}\ns_lshl_b32 {s(sST)}, s33, 7\ns_add_u32 {s(sST)}, {s(sST)}, {ST}")
    A(f"s_lshl_b32 s33, s30, 1\ns_add_u32 s33, s33, s36\ns_lshl_b32 s33, s33, 7\ns_add_u32 {s(sF)}, {s(sFL)}, s33\ns_add_u32 {s(sF)}, {s(sF)}, {FH - FL}")
    A("s_waitcnt lgkmcnt(0)")
    b()
    top, nxt = A.new("x2_top"), A.new("x2_next")
    mark(A, opts, 1)
    def y_loads(cnt=None):
        for hh in range(4):
            A(f"s_add_u32 s33, {s(sY)}, {hh * 28 * KB}")
            for vv in range(2):
                t = f"buffer_load_dwordx4 {v(YN + 8 * hh + 4 * vv, 4)}, v3, {s(WS, 4)}, s33 offen offset:{vv * KB} sc1"
                cnt.op(t) if cnt else A(t)
        t = f"buffer_load_dwordx4 {v(YN + 32, 4)}, {v(XA)}, {s(X_, 4)}, {s(sXO)} offen nt"
        cnt.op(t) if cnt else A(t)

    wait_flags(A, FV, FA1, sFL)
    y_loads()
    A(f"{top}:")
    A(f"s_cmp_lt_u32 {s(sS)}, {63 - X2_TEAMS}\ns_cselect_b64 vcc, -1, 0\nv_cndmask_b32 {v(T + 3)}, {v(FA2)}, {v(T + 2)}, vcc")
    A(f"s_cselect_b32 s33, {X2_TEAMS * 16 * 28 * KB}, 0\ns_cselect_b32 s34, {X2_TEAMS * 32 * 896}, 0\ns_add_u32 {s(sY)}, {s(sY)}, s33\ns_add_u32 {s(sXO)}, {s(sXO)}, s34\ns_waitcnt vmcnt(0)")
    for r in range(0, 32, 2):
        A(f"v_mov_b64 {v(Y + r, 2)}, {v(YN + r, 2)}")
    A(f"v_mov_b64 {v(XV, 2)}, {v(YN + 32, 2)}\nv_mov_b64 {v(XV + 2, 2)}, {v(YN + 34, 2)}")
    wait_inputs(A, opts, sS, FV, T + 3, sFL)
    tmark(A, opts, 2)
    again = A.new("x2_again")
    A(f"s_barrier\n{again}:")
    vm = Cnt(A, "vmcnt", 63)
    for hh in range(4):
        A(f"s_add_u32 s33, {s(sP)}, {hh * 3072}\ns_add_u32 s34, {s(sZ)}, {hh * 14336}")
        for tt in range(2):
            vm.op(f"buffer_load_dwordx4 {v(PX + 8 * hh + 4 * tt, 4)}, v3, {s(WS, 4)}, s33 offen offset:{tt * 1536} sc1", f"x{hh}")
        for tt in range(2):
            vm.op(f"buffer_load_dwordx2 {v(PM + 8 * (hh // 2) + 4 * tt + 2 * (hh % 2), 2)}, {v(L8)}, {s(WS, 4)}, s33 offen offset:{tt * 1536 + 1024} sc1", f"m{hh // 2}")
        for vv in range(2):
            vm.op(f"buffer_load_dwordx2 {v(Z + 8 * (hh // 2) + 4 * vv + 2 * (hh % 2), 2)}, {v(L8)}, {s(WS, 4)}, s34 offen offset:{vv * 512} sc1", f"m{hh // 2}")
    y_loads(vm)
    for hh in range(4):
        vm.wait(f"x{hh}")
        for tt in range(2):
            for vv in range(2):
                d = v(ACC + 8 * tt + 4 * vv, 4)
                A(f"{MF} {d}, {v(Y + 8 * hh + 4 * vv, 4)}, {v(PX + 8 * hh + 4 * tt, 4)}, {'0' if hh == 0 else d}")
        if hh % 2:
            vm.wait(f"m{hh // 2}")
            for tt in range(2):
                for vv in range(2):
                    d = v(ACC + 8 * tt + 4 * vv, 4)
                    A(f"{MF} {d}, {v(Z + 8 * (hh // 2) + 4 * vv, 4)}, {v(PM + 8 * (hh // 2) + 4 * tt, 4)}, {d}")
    verify_last(A, opts, sS, range(PX, ACC), T, again, 9)
    for k in range(4):
        A(f"ds_write_b128 {v(RW)}, {v(ACC + 4 * k, 4)} offset:{k * KB}")
    A(f"s_cmp_ge_u32 {s(S_W)}, 2\ns_waitcnt lgkmcnt(0)\ns_barrier\ns_cbranch_scc1 {nxt}")
    reduce_tiles(A, R, O, RR, 0)
    tmark(A, opts, 3)
    for r in range(4):
        A(f"v_cvt_pk_bf16_f32 {v(R + r)}, {v(O + 2 * r)}, {v(O + 2 * r + 1)}")
    unpack(A, O, R, 4, sMASK)
    unpack(A, R + 8, XV, 4, sMASK)
    for r in range(8):
        A(f"v_add_f32 {v(O + r)}, {v(O + r)}, {v(R + 8 + r)}")
    for r in range(4):
        A(f"v_cvt_pk_bf16_f32 {v(R + r)}, {v(O + 2 * r)}, {v(O + 2 * r + 1)}")
    clean(A, range(R, R + 4))
    A(f"buffer_store_dwordx4 {v(R, 4)}, v3, {s(WS, 4)}, {s(sH)} offen sc1")
    unpack(A, O, R, 4, sMASK)
    M = R + 8
    A(f"v_add_f32 {v(M)}, {v(O)}, {v(O + 1)}")
    for r in range(2, 8):
        A(f"v_add_f32 {v(M)}, {v(M)}, {v(O + r)}")
    xor_reduce(A, "v_add_f32", M, T)
    A(f"v_mul_f32 {v(M)}, {f32(1.0 / 32)}, {v(M)}")
    for r in range(8):
        A(f"v_sub_f32 {v(O + r)}, {v(O + r)}, {v(M)}")
    A(f"v_mul_f32 {v(M + 1)}, {v(O)}, {v(O)}")
    for r in range(1, 8):
        A(f"v_fmac_f32 {v(M + 1)}, {v(O + r)}, {v(O + r)}")
    xor_reduce(A, "v_add_f32", M + 1, T)
    clean(A, (M, M + 1))
    A(f"buffer_store_dwordx2 {v(M, 2)}, {v(SA)}, {s(WS, 4)}, {s(sST)} offen sc1")
    tmark(A, opts, 5)
    drain_unless_last(A, opts, sS)
    tmark(A, opts, 4)
    set_flag(A, sF, T)
    A(f"{nxt}:")
    for r, step in ((sS, 1), (sP, 16 * 3072), (sZ, 16 * 14336), (sFL, FL_STEP), (sH, 28 * KB), (sST, 28 * 128), (sF, FL_STEP)):
        A(f"s_add_u32 {s(r)}, {s(r)}, {X2_TEAMS * step}")
    A(f"s_cmp_lt_u32 {s(sS)}, 63\ns_cbranch_scc1 {top}")
    flush_stamps(A, opts)
    A("s_endpgm")


def tr_addr(A, dst, sbase):
    A(f"v_lshrrev_b32 v4, 2, v1\nv_lshlrev_b32 v4, 6, v4\nv_and_b32 v5, 3, v0\nv_lshl_add_u32 v4, v5, 4, v4\nv_lshl_add_u32 v4, v2, 9, v4\nv_add_u32 {v(dst)}, {s(sbase)}, v4")


def row_addr(A, dst, stride):
    A(f"v_lshrrev_b32 v4, 2, v0\nv_mov_b32 v6, {stride}\nv_mul_lo_u32 v4, v4, v6\nv_and_b32 v5, 3, v0\nv_lshl_add_u32 {v(dst)}, v5, 4, v4")


def gen_f1(A, opts):
    H, ACC, CS, B1, SV, U, PK = 4, 60, 68, 76, 84, 92, 100
    FA, _, SA, RA, TR, T = range(108, 114)
    FV = 120
    W_, B_ = 16, 20
    sS, sH, sST, sG, sFH, sF, sMASK, sP = range(44, 52)
    after_first_y(A, opts)
    b = [load_srd(A, W_, "w1", 40), load_srd(A, B_, "b1", 42)]
    A(f"s_lshr_b32 s34, {s(S_W)}, 1\ns_and_b32 s35, {s(S_W)}, 1\ns_lshl_b32 {s(sP)}, s30, 1\ns_add_u32 {s(sP)}, {s(sP)}, s34")
    row_addr(A, RA, 3584)
    A(f"s_mul_i32 s36, s34, {28 * KB}")
    tr_addr(A, TR, 36)
    A(f"s_mul_i32 s37, s35, {14 * KB}\ns_add_u32 s36, s36, s37\ns_mul_i32 s37, s35, {224 * 3584}\ns_lshl_b32 s38, {s(sP)}, 6\ns_add_u32 s37, s37, s38")
    A(f"v_lshlrev_b32 v7, 4, v2\ns_mov_b32 {s(sMASK)}, 0xffff0000")
    A("s_waitcnt lgkmcnt(0)")
    for f in b:
        f()
    for j in range(14):
        A(f"s_mov_b32 m0, s36\ns_add_u32 s36, s36, 1024\nbuffer_load_dwordx4 {v(RA)}, {s(W_, 4)}, s37 offen nt lds\ns_add_u32 s37, s37, {16 * 3584}")
    A(f"buffer_load_dwordx4 {v(PK, 4)}, v7, {s(B_, 4)}, s38 offen")
    A(f"s_mov_b32 {s(sS)}, s31\ns_lshl_b32 s33, s31, 1\ns_add_u32 s33, s33, s35")
    A(f"s_mul_i32 {s(sH)}, s33, {14 * KB}\ns_add_u32 {s(sH)}, {s(sH)}, {HF}\ns_mul_i32 {s(sST)}, s33, {14 * 128}\ns_add_u32 {s(sST)}, {s(sST)}, {ST}")
    A(f"s_mul_i32 s34, s33, 56\ns_add_u32 s34, s34, {s(sP)}\ns_lshl_b32 {s(sG)}, s34, 10\ns_add_u32 {s(sG)}, {s(sG)}, {GF}")
    A(f"s_mul_i32 {s(sFH)}, s31, {FL_STEP}\ns_lshl_b32 {s(sF)}, s35, 13\ns_lshl_b32 s34, {s(sP)}, 7\ns_add_u32 {s(sF)}, {s(sF)}, s34\ns_add_u32 {s(sF)}, {s(sF)}, {s(sFH)}\ns_add_u32 {s(sF)}, {s(sF)}, {FG}")
    A(f"s_add_u32 {s(sFH)}, {s(sFH)}, {FH}")
    A(f"v_min_u32 {v(FA)}, 13, v1\nv_lshlrev_b32 {v(FA)}, 8, {v(FA)}\ns_lshl_b32 s34, s35, 7\nv_add_u32 {v(FA)}, s34, {v(FA)}")
    A(f"v_lshlrev_b32 {v(SA)}, 7, v2\nv_lshl_add_u32 {v(SA)}, v1, 3, {v(SA)}\nv_add_u32 v4, 1536, {v(SA)}\nv_mov_b32 v5, {OOB}\nv_cmp_gt_u32 vcc, 32, v0\nv_cndmask_b32 {v(T + 5)}, v5, v4, vcc")
    A("s_waitcnt vmcnt(0)\ns_barrier")
    unpack(A, B1, PK, 4, sMASK)
    lg = Cnt(A, "lgkmcnt", 15)
    for vv in range(2):
        for ks in range(14):
            for x in range(2):
                lg.room(1)
                lg.op(f"ds_read_b64_tr_b16 {a((vv * 14 + ks) * 4 + 2 * x, 2)}, {v(TR)} offset:{ks * 2048 + x * 256 + vv * 8}")
    for r in range(4):
        A(f"v_mov_b32 {v(H + r)}, 0x3f803f80")
    lg.drain()
    for ks in range(14):
        for vv in range(2):
            d = v(CS + 4 * vv, 4)
            A(f"{MF} {d}, {a((vv * 14 + ks) * 4, 4)}, {v(H, 4)}, {'0' if ks == 0 else d}")
    K1 = -2.0 * math.sqrt(2.0 / math.pi) * math.log2(math.e)
    A(f"s_mov_b32 s54, {f32(K1 * 0.044715)}\nv_mov_b32 {v(T + 4)}, {f32(K1)}")
    top = A.new("f1_top")
    mark(A, opts, 1)
    A(f"{top}:")
    wait_inputs(A, opts, sS, FV, FA, sFH)
    tmark(A, opts, 2)
    again = A.new("f1_again")
    A(f"{again}:")
    vm = Cnt(A, "vmcnt", 63)
    for k in range(3):
        vm.op(f"buffer_load_dwordx2 {v(SV + 2 * k, 2)}, {v(SA)}, {s(WS, 4)}, {s(sST)} offen offset:{k * 512} sc1", "s")
    vm.op(f"buffer_load_dwordx2 {v(SV + 6, 2)}, {v(T + 5)}, {s(WS, 4)}, {s(sST)} offen sc1", "s")
    A(f"s_mov_b32 s33, {s(sH)}")
    for ks in range(14):
        vm.op(f"buffer_load_dwordx4 {v(H + 4 * ks, 4)}, v3, {s(WS, 4)}, s33 offen offset:{(ks % 4) * KB} sc1", f"h{ks}")
        if ks % 4 == 3:
            A("s_add_u32 s33, s33, 4096")
    vm.wait("s")
    mu, m2, q2 = T, T + 1, T + 2
    A(f"v_add_f32 {v(mu)}, {v(SV)}, {v(SV + 2)}\nv_add_f32 {v(m2)}, {v(SV + 1)}, {v(SV + 3)}\nv_mul_f32 {v(q2)}, {v(SV)}, {v(SV)}\nv_fmac_f32 {v(q2)}, {v(SV + 2)}, {v(SV + 2)}")
    for k in (4, 6):
        A(f"v_add_f32 {v(mu)}, {v(mu)}, {v(SV + k)}\nv_add_f32 {v(m2)}, {v(m2)}, {v(SV + k + 1)}\nv_fmac_f32 {v(q2)}, {v(SV + k)}, {v(SV + k)}")
    A(f"v_fmac_f32 {v(m2)}, {f32(32.0)}, {v(q2)}")
    xor_reduce(A, "v_add_f32", mu, T + 3)
    xor_reduce(A, "v_add_f32", m2, T + 3)
    A(f"v_mul_f32 {v(mu)}, {f32(1.0 / 14)}, {v(mu)}\nv_mul_f32 {v(q2)}, {v(mu)}, {v(mu)}")
    A(f"v_mul_f32 {v(m2)}, {f32(1.0 / 448)}, {v(m2)}\nv_sub_f32 {v(m2)}, {v(m2)}, {v(q2)}\nv_max_f32 {v(m2)}, 0, {v(m2)}\nv_add_f32 {v(m2)}, {f32(1e-5)}, {v(m2)}\nv_rsq_f32 {v(m2)}, {v(m2)}")
    for ks in range(14):
        vm.wait(f"h{ks}")
        for vv in range(2):
            d = v(ACC + 4 * vv, 4)
            A(f"{MF} {d}, {a((vv * 14 + ks) * 4, 4)}, {v(H + 4 * ks, 4)}, {'0' if ks == 0 else d}")
    verify_last(A, opts, sS, list(range(H, H + 56)) + list(range(SV, SV + 8)), U, again)
    tmark(A, opts, 3)
    for r in range(8):
        A(f"v_fma_f32 {v(U + r)}, -{v(mu)}, {v(CS + r)}, {v(ACC + r)}")
    for r in range(8):
        A(f"v_fma_f32 {v(U + r)}, {v(m2)}, {v(U + r)}, {v(B1 + r)}")
    for r in range(8):
        A(f"v_mul_f32 {v(ACC + r)}, {v(U + r)}, {v(U + r)}")
    for r in range(8):
        A(f"v_fma_f32 {v(ACC + r)}, {v(ACC + r)}, s54, {v(T + 4)}")
    for r in range(8):
        A(f"v_mul_f32 {v(ACC + r)}, {v(ACC + r)}, {v(U + r)}")
    for r in range(8):
        A(f"v_exp_f32 {v(ACC + r)}, {v(ACC + r)}")
    for r in range(8):
        A(f"v_add_f32 {v(ACC + r)}, 1.0, {v(ACC + r)}")
    for r in range(8):
        A(f"v_rcp_f32 {v(ACC + r)}, {v(ACC + r)}")
    for r in range(8):
        A(f"v_mul_f32 {v(U + r)}, {v(U + r)}, {v(ACC + r)}")
    for r in range(4):
        A(f"v_cvt_pk_bf16_f32 {v(PK + r)}, {v(U + 2 * r)}, {v(U + 2 * r + 1)}")
    clean(A, range(PK, PK + 4))
    A(f"buffer_store_dwordx4 {v(PK, 4)}, v3, {s(WS, 4)}, {s(sG)} offen sc1")
    tmark(A, opts, 5)
    drain_unless_last(A, opts, sS)
    tmark(A, opts, 4)
    set_flag(A, sF, SV)
    for r, step in ((sS, 1), (sH, 28 * KB), (sST, 28 * 128), (sG, 112 * KB), (sFH, FL_STEP), (sF, FL_STEP)):
        A(f"s_add_u32 {s(r)}, {s(r)}, {F_TEAMS * step}")
    A(f"s_cmp_lt_u32 {s(sS)}, 64\ns_cbranch_scc1 {top}")
    flush_stamps(A, opts)
    A("s_endpgm")


def gen_f2(A, opts):
    Gr, ACC, HV, B2, R, O = 4, 60, 76, 80, 88, 120
    FA, _, RA, TR, RW, RR, OA, T = range(128, 136)
    FV = 138
    W_, B_, O_ = 16, 20, 24
    sS, sG, sH, sO, sFG, sMASK = range(44, 50)
    after_first_y(A, opts)
    b = [load_srd(A, W_, "w2", 40), load_srd(A, B_, "b2", 42), load_srd(A, O_, "out", 38)]
    A(f"s_lshr_b32 s34, s30, 1\ns_and_b32 s35, s30, 1\ns_and_b32 s29, {s(S_W)}, 1")
    row_addr(A, RA, 896)
    A(f"s_mul_i32 s28, {s(S_W)}, {28 * KB}")
    tr_addr(A, TR, 28)
    A(f"v_lshlrev_b32 v7, 4, v2\ns_mov_b32 {s(sMASK)}, 0xffff0000\ns_lshl_b32 s52, s34, 7\ns_lshl_b32 s53, s29, 6\ns_add_u32 s53, s53, s52")
    A("s_waitcnt lgkmcnt(0)")
    for f in b:
        f()
    A(f"buffer_load_dwordx4 {v(HV, 4)}, v7, {s(B_, 4)}, s53 offen")
    lg = Cnt(A, "lgkmcnt", 15)
    for pa in range(2):
        A(f"s_mul_i32 s37, {s(S_W)}, {448 * 896}\ns_add_u32 s37, s37, s52\ns_add_u32 s37, s37, {pa * 64}\ns_mov_b32 s36, s28")
        for j in range(28):
            A(f"s_mov_b32 m0, s36\ns_add_u32 s36, s36, 1024\nbuffer_load_dwordx4 {v(RA)}, {s(W_, 4)}, s37 offen nt lds\ns_add_u32 s37, s37, {16 * 896}")
        A("s_waitcnt vmcnt(0)")
        for vv in range(2):
            for ks in range(14):
                for x in range(2):
                    lg.room(1)
                    lg.op(f"ds_read_b64_tr_b16 {a(((2 * pa + vv) * 14 + ks) * 4 + 2 * x, 2)}, {v(TR)} offset:{ks * 2048 + x * 256 + vv * 8}")
        lg.drain()
    unpack(A, B2, HV, 4, sMASK)
    A(f"s_mov_b32 {s(sS)}, s31\ns_lshl_b32 s33, s31, 1\ns_add_u32 s33, s33, s35")
    A(f"s_mul_i32 s36, s33, 56\ns_mul_i32 s37, {s(S_W)}, 14\ns_add_u32 s36, s36, s37\ns_lshl_b32 {s(sG)}, s36, 10\ns_add_u32 {s(sG)}, {s(sG)}, {GF}")
    A(f"s_mul_i32 s36, s33, 14\ns_lshl_b32 s37, s34, 1\ns_add_u32 s36, s36, s37\ns_add_u32 s36, s36, s29\ns_lshl_b32 {s(sH)}, s36, 10\ns_add_u32 {s(sH)}, {s(sH)}, {HF}")
    A(f"s_mul_i32 {s(sO)}, s33, {16 * 896}\ns_add_u32 {s(sO)}, {s(sO)}, s53\ns_mul_i32 {s(sFG)}, s31, {FL_STEP}\ns_lshl_b32 s36, s35, 13\ns_add_u32 {s(sFG)}, {s(sFG)}, s36\ns_add_u32 {s(sFG)}, {s(sFG)}, {FG}")
    A(f"v_min_u32 {v(FA)}, 55, v0\nv_lshlrev_b32 {v(FA)}, 7, {v(FA)}")
    A(f"s_lshl_b32 s33, {s(S_W)}, 12\nv_add_u32 {v(RW)}, s33, v3\ns_lshl_b32 s33, s29, 11\nv_add_u32 {v(RR)}, s33, v3")
    A(f"v_mul_u32_u24 v4, 896, v1\nv_lshl_add_u32 {v(OA)}, v2, 4, v4")
    top, nxt = A.new("f2_top"), A.new("f2_next")
    mark(A, opts, 1)
    A(f"{top}:")
    wait_inputs(A, opts, sS, FV, FA, sFG)
    tmark(A, opts, 2)
    again = A.new("f2_again")
    A(f"s_barrier\n{again}:")
    vm = Cnt(A, "vmcnt", 63)
    A(f"s_mov_b32 s33, {s(sG)}")
    for ks in range(14):
        vm.op(f"buffer_load_dwordx4 {v(Gr + 4 * ks, 4)}, v3, {s(WS, 4)}, s33 offen offset:{(ks % 4) * KB} sc1", f"g{ks}")
        if ks % 4 == 3:
            A("s_add_u32 s33, s33, 4096")
    vm.op(f"buffer_load_dwordx4 {v(HV, 4)}, v3, {s(WS, 4)}, {s(sH)} offen sc1", "h")
    for ks in range(14):
        vm.wait(f"g{ks}")
        for t in range(4):
            d = v(ACC + 4 * t, 4)
            A(f"{MF} {d}, {a((t * 14 + ks) * 4, 4)}, {v(Gr + 4 * ks, 4)}, {'0' if ks == 0 else d}")
    verify_last(A, opts, sS, list(range(Gr, Gr + 56)) + list(range(HV, HV + 4)), T, again)
    for k in range(4):
        A(f"ds_write_b128 {v(RW)}, {v(ACC + 4 * k, 4)} offset:{k * KB}")
    A(f"s_cmp_ge_u32 {s(S_W)}, 2\ns_waitcnt vmcnt(0) lgkmcnt(0)\ns_barrier\ns_cbranch_scc1 {nxt}")
    reduce_tiles(A, R, O, RR, 0)
    tmark(A, opts, 3)
    unpack(A, R, HV, 4, sMASK)
    for r in range(8):
        A(f"v_add_f32 {v(O + r)}, {v(O + r)}, {v(B2 + r)}")
    for r in range(8):
        A(f"v_add_f32 {v(O + r)}, {v(O + r)}, {v(R + r)}")
    for r in range(4):
        A(f"v_cvt_pk_bf16_f32 {v(R + 8 + r)}, {v(O + 2 * r)}, {v(O + 2 * r + 1)}")
    A(f"buffer_store_dwordx4 {v(R + 8, 4)}, {v(OA)}, {s(O_, 4)}, {s(sO)} offen{['', ' sc1', ' nt'][opts.get('osc', 0)]}")
    A(f"{nxt}:")
    for r, step in ((sS, 1), (sG, 112 * KB), (sH, 28 * KB), (sO, 32 * 896), (sFG, FL_STEP)):
        A(f"s_add_u32 {s(r)}, {s(r)}, {F_TEAMS * step}")
    A(f"s_cmp_lt_u32 {s(sS)}, 64\ns_cbranch_scc1 {top}")
    dbg_time(A, opts, 7, 206)
    amp_mark(A, opts, 4)
    amp_spin(A, opts, 206, (4,))
    flush_stamps(A, opts)
    A("s_endpgm")
```

```python
import os
import sys
from asmlib import Asm
from layout import *

NAME = "sequential_preLN__memory_aug_recurrent_mem_tr__dense_activation_gelu__prompt"
REF = f"cdna_kernels/{NAME}.s.ref"


def descriptor(name, nv, acc, ns=102):
    return f""".p2align 6
.amdhsa_kernel {name}
  .amdhsa_next_free_vgpr {nv}
  .amdhsa_next_free_sgpr {ns}
  .amdhsa_accum_offset {acc}
  .amdhsa_group_segment_fixed_size 0
  .amdhsa_kernarg_size 120
  .amdhsa_user_sgpr_count 2
  .amdhsa_user_sgpr_kernarg_segment_ptr 1
  .amdhsa_system_sgpr_workgroup_id_x 1
.end_amdhsa_kernel
"""


def jitter(A, seed):
    from asmlib import Ins
    out, started, k = [], False, 0
    for it in A.items:
        if it[0] == "i" and started and (it[1].op == "s_barrier" or "_store_" in it[1].op):
            k += 1
            lab = f"L_jit_{k}"
            for t in ("s_cselect_b32 s100, 1, 0", "s_mul_i32 s101, s101, 1664525", "s_add_u32 s101, s101, 1013904223",
                      f"s_bitcmp1_b32 s101, {24 + k % 6}", f"s_cbranch_scc0 {lab}", f"s_sleep {(1, 3, 7, 20)[k % 4]}"):
                out.append(("i", Ins(t)))
            out.append(("l", lab))
            out.append(("i", Ins("s_cmp_eq_u32 s100, 1")))
        out.append(it)
        if it[0] == "i" and it[1].op == "v_readfirstlane_b32" and not started:
            for t in ("s_nop 3", "s_lshl_b32 s101, s2, 2", "s_add_u32 s101, s101, s3", f"s_mul_i32 s101, s101, {seed * 2654435761 & 0xffffffff}"):
                out.append(("i", Ins(t)))
            started = True
    A.items = out


def build(opts):
    head = [ln for ln in open(REF).read().split("\n") if ln.startswith(";") and "@launch" not in ln
            and "Override launch" not in ln and "grid=ceil" not in ln]
    from gen_main import gen_main, MAIN_LDS
    import common
    common.FNT = [' sc1', ' sc1 nt', ' nt'][opts.get('fnt', 0)]
    kn = NAME + "_kernel"
    if opts.get("list"):
        launches = [f"; @launch kernel={kn} grid=(256,1,1) block=(256,1,1) lds={MAIN_LDS}"]
    else:
        launches = [f"; @launch grid=(256,1,1) block=(256,1,1) lds={MAIN_LDS}"]
    A = Asm()
    A(f".globl {kn}")
    gen_main(A, kn, opts)
    desc = descriptor(kn, 512, 256)
    if opts.get("jit"):
        jitter(A, opts["jit"])
    n = A.fix_hazards()
    txt = "\n".join(head + launches) + '\n.amdgcn_target "amdgcn-amd-amdhsa--gfx950"\n.text\n' + A.text()
    txt += '.section .rodata,"a"\n' + desc
    return txt, n


if __name__ == "__main__":
    out = sys.argv[1]
    opts = dict(lb=2, la=4, nd=4, pfg=-1, ka_tr=3, ndb=0, gfirst=1, tp=0, slp=4, sfirst=5, pnt=3, yah=2)
    for x in sys.argv[2:]:
        k, _, val = x.partition("=")
        opts[k] = int(val) if val else 1
    if "/dev/" in os.path.abspath(out):
        opts["list"] = 1
    txt, n = build(opts)
    open(out, "w").write(txt)
    print(f"wrote {out}: {len(txt)} bytes, {txt.count(chr(10))} lines, {n} hazard pads")
```

```python
from asmlib import v, a, s
from layout import *
from common import *
from gen_prep import chunk_pos

SMF = "v_smfmac_f32_16x16x64_bf16"
MF = "v_mfma_f32_16x16x32_bf16"
N_CHAIN = 32


def chain_mode(A, opts, vm, lab):
    lp = A.new("reg")
    A("v_mov_b32 v5, 68")
    A(f"{lp}:\ns_sleep 16")
    A(f"buffer_load_dword v4, v5, {s(DB, 4)}, 0 offen sc1")
    poll_guard(A)
    vm.drain()
    A(f"v_readfirstlane_b32 s34, v4\ns_and_b32 s35, s34, 0xff\ns_cmp_eq_u32 s35, {N_CHAIN}\ns_cbranch_scc0 {lp}")
    mark(A, opts, 1)
    dbg_time(A, opts, 5, 16)
    if lab:
        A(f"s_waitcnt lgkmcnt(0)\ns_lshr_b32 s34, s34, 8\ns_cmp_eq_u32 s34, 0\ns_cbranch_scc0 {lab}")


def gather_addr(A, ga0, ga1):
    A(f"s_mul_i32 s33, {s(S_W)}, {112 * 16}\nv_add_u32 {v(ga0)}, s33, v3")
    A(f"v_min_u32 {v(ga1)}, 47, v0\nv_lshlrev_b32 {v(ga1)}, 4, {v(ga1)}\ns_add_u32 s33, s33, 1024\nv_add_u32 {v(ga1)}, s33, {v(ga1)}")


def mem_loads(A, G, ga0, ga1, scm):
    A(f"buffer_load_dwordx4 {v(G, 4)}, {v(ga0)}, {s(WS, 4)}, {s(scm)} offen sc1")
    A(f"buffer_load_dwordx4 {v(G + 4, 4)}, {v(ga1)}, {s(WS, 4)}, {s(scm)} offen sc1")


def check8(A, G, t):
    A(f"v_max3_u32 {v(t)}, {v(G)}, {v(G + 1)}, {v(G + 2)}\nv_max3_u32 {v(t + 1)}, {v(G + 3)}, {v(G + 4)}, {v(G + 5)}")
    A(f"v_max3_u32 {v(t)}, {v(t)}, {v(G + 6)}, {v(G + 7)}\nv_max_u32 {v(t)}, {v(t)}, {v(t + 1)}\nv_cmp_eq_u32 vcc, -1, {v(t)}")


def gather_mem(A, opts, G0, G1, ga0, ga1, scm, t, memb, shadow, ka=""):
    lp, ok = A.new("poll"), A.new("ok")
    mem_loads(A, G0, ga0, ga1, scm)
    for x in shadow:
        A(x)
    A(f"{lp}:")
    for cur, other in ((G0, G1), (G1, G0)):
        mem_loads(A, other, ga0, ga1, scm)
        poll_guard(A)
        A(ka)
        A("s_waitcnt vmcnt(2)")
        A(f"ds_write_b128 {v(ga0)}, {v(cur, 4)} offset:{memb}\nds_write_b128 {v(ga1)}, {v(cur + 4, 4)} offset:{memb}")
        check8(A, cur, t)
        if opts.get("solo"):
            A(f"s_cbranch_vccz {ok}\ns_branch {ok}")
        A(f"s_cbranch_vccz {ok}" if cur == G0 else f"s_cbranch_vccnz {lp}")
    A(f"{ok}:")
    stamp(A, opts, 0)
    A("s_waitcnt lgkmcnt(0)\ns_barrier")


def notice_wait(A, opts, F, fa, sreg, off, shadow, sstep=None):
    if opts.get("solo"):
        for x in shadow:
            A(x)
        return
    depth = opts.get("nd", 3)
    lp, ok = A.new("nw"), A.new("nok")
    ld = lambda k: A(f"buffer_load_dword {v(F + k)}, {v(fa)}, {s(WS, 4)}, {s(sreg)} offen offset:{off} sc1")
    for k in range(depth - 1):
        ld(k)
    for x in shadow:
        A(x)
    if sstep is not None:
        A(f"s_cmp_eq_u32 {s(sstep)}, 0\ns_cbranch_scc1 {ok}")
    A(f"{lp}:")
    poll_guard(A)
    for k in range(depth):
        ld((k + depth - 1) % depth)
        A(f"s_waitcnt vmcnt({depth - 1})\nv_cmp_ne_u32 vcc, {s(S_NONCE)}, {v(F + k)}")
        A(f"s_cbranch_vccz {ok}" if k < depth - 1 else f"s_cbranch_vccnz {lp}")
    A(f"{ok}:")


def fetch_mem(A, opts, G, ga0, ga1, scm, t, memb, ka=""):
    lp = A.new("fm")
    A(f"{lp}:")
    mem_loads(A, G, ga0, ga1, scm)
    poll_guard(A)
    A(ka)
    A("s_waitcnt vmcnt(0)")
    A(f"ds_write_b128 {v(ga0)}, {v(G, 4)} offset:{memb}\nds_write_b128 {v(ga1)}, {v(G + 4, 4)} offset:{memb}")
    check8(A, G, t)
    if opts.get("stamps"):
        A("s_add_u32 s53, s53, 1")
    if not opts.get("solo"):
        A(f"s_cbranch_vccnz {lp}")
    stamp(A, opts, 0)
    A("s_waitcnt lgkmcnt(0)\ns_barrier")


def notice(A, val, addr, sreg, off, sc):
    A(f"buffer_store_dword {v(val)}, {v(addr)}, {s(WS, 4)}, {s(sreg)} offen offset:{off}{sc}")


def idx_reg(A, r):
    A(f"v_mov_b32 {v(r)}, 0x44444444\nv_mov_b32 v4, 0xeeeeeeee\nv_cmp_gt_u32 vcc, 8, v1\nv_cndmask_b32 {v(r)}, v4, {v(r)}, vcc")


def zero(r, n):
    return [f"v_mov_b64 {v(r + 2 * k, 2)}, 0" for k in range(n // 2)]


def emit_stream(A, stream, fill):
    for i, m_ in enumerate(stream):
        m_() if callable(m_) else A(m_)
        items = fill.get(i, [])
        for x in items:
            x() if callable(x) else A(x)
        if not items and i + 1 < len(stream):
            A("s_nop 1")


def gen_chain_a(A, opts):
    MEM, ACC, KEY, TSP, SC, PK, IDX = 4, 32, 60, 84, 92, 104, 108
    CK, PFA, SR2, FA, MK, MK3, TW0, TW1, TWS, TR0, TR1 = range(109, 120)
    XR, SW, SR, PX, PM = 0, 1, 2, 106, 107
    T = 104
    REG = 32768
    XK, TB, SB, MEMB = 0, 16384, 20480, 24576
    sS, sCM, sCP, sXA, sXB, sM0, sP0, sODD, sREG, sEF, sYP, sMB, sQ, sEX = 44, 45, 46, 47, 48, 49, 50, 51, 52, 54, 55, 56, 57, 58
    vm = Cnt(A, "vmcnt", 63)
    A(f"s_and_b32 {s(sODD)}, {s(S_W)}, 1\ns_mul_i32 s33, {s(S_W)}, 7\ns_add_u32 {s(sP0)}, s33, {s(sODD)}\ns_lshr_b32 {s(sP0)}, {s(sP0)}, 1")
    A(f"s_lshl_b32 {s(sREG)}, {s(S_W)}, 15\ns_mov_b32 {s(sM0)}, {s(sREG)}")
    A(f"s_lshl_b32 {s(sXA)}, {s(sP0)}, 10\ns_add_u32 {s(sXA)}, {s(sXA)}, {XS}\ns_lshl_b32 s33, {s(sODD)}, 12\ns_sub_u32 {s(sXB)}, {s(sXA)}, s33")

    if opts.get("gemu"):
        A(f"s_mul_i32 {s(sXA)}, {s(S_ID)}, {28 * KB}\ns_mul_i32 s33, {s(S_W)}, {3 * KB}\ns_add_u32 {s(sXA)}, {s(sXA)}, s33\ns_add_u32 {s(sXA)}, {s(sXA)}, {opts['gemu'] << 20}\ns_mov_b32 {s(sXB)}, {s(sXA)}")

    def dma(k):
        aa, b = k // 4, k % 4
        pre = f"s_add_u32 s33, {s(sM0)}, {aa * 4096}\ns_mov_b32 m0, s33\n" if b == 0 else ""
        if b in (0, 3):
            pre += f"s_add_u32 s34, {s(sXB if b == 3 else sXA)}, {aa * 14336}\n"
        return pre + f"buffer_load_dwordx4 v3, {s(WS, 4)}, s34 offen offset:{b * 1024} sc1 lds"

    A(f"s_mul_i32 s34, {s(S_ID)}, {FRAG_H}\ns_mul_i32 s33, {s(S_W)}, {7 * 14 * KB}\ns_add_u32 s34, s34, s33")
    if AF:
        A(f"s_add_u32 s34, s34, {AF}")
    A(f"s_mul_i32 s35, {s(sODD)}, {14 * KB}\ns_add_u32 s35, s35, s34\ns_add_u32 s36, s34, {6 * 14 * KB}\ns_cmp_eq_u32 {s(sODD)}, 0\ns_cselect_b32 s36, s36, s34")
    A(f"s_mul_i32 s33, {s(S_ID)}, 7\nv_min_u32 v4, 6, v0\nv_add_u32 v4, s33, v4")

    def piece(kk):
        frag_loads(A, 35, [((i * 7 + kk) * 8 + 4 * u, i * 14 * KB + (2 * kk + u) * KB) for i in range(6) for u in range(2)])
        frag_loads(A, 36, [((42 + kk) * 8 + 4 * u, (2 * kk + u) * KB) for u in range(2)])

    A(f"s_lshl_b32 {s(sQ)}, {s(S_W)}, 11\ns_add_u32 {s(sMB)}, {s(sQ)}, {MEMB}\ns_add_u32 {s(sQ)}, {s(sQ)}, {CM}")
    A(f"s_cmp_eq_u32 {s(S_W)}, 3\ns_cselect_b64 {s(sEX, 2)}, {opts.get('ex3', 1)}, -1")
    fetch = f"buffer_load_dwordx4 v3, {s(WS, 4)}, {s(sQ)} offen sc1 lds\ns_mov_b64 exec, {s(sEX, 2)}\nbuffer_load_dwordx4 v3, {s(WS, 4)}, {s(sQ)} offen offset:1024 sc1 lds\ns_mov_b64 exec, -1"

    def first_inputs():
        for k in range(8):
            A(dma(k))
        A(f"s_mov_b32 m0, {s(sMB)}\ns_nop 0\n" + fetch)

    if opts.get('late'):
        A('v_mov_b32 v20, v4\ns_mov_b32 s60, s35\ns_mov_b32 s61, s36')
        wait_prep(A, True)
        A('v_mov_b32 v4, v20\ns_mov_b32 s35, s60\ns_mov_b32 s36, s61')
        mark(A, opts, 3)
    load_pieces(A, [(14, lambda kk=kk: piece(kk)) for kk in range(7)], 4, (10, first_inputs))
    mark(A, opts, 2)
    idx_reg(A, IDX)
    A(f"v_and_b32 v4, 7, v1\nv_lshlrev_b32 v4, 4, v4\nv_lshl_add_u32 v4, v2, 7, v4\ns_lshl_b32 s33, {s(sP0)}, 9\nv_add_u32 {v(MK)}, s33, v4")
    A(f"s_lshl_b32 s34, {s(sODD)}, 11\ns_sub_u32 s34, 1536, s34\nv_add_u32 {v(MK3)}, s34, {v(MK)}")
    A(f"v_lshrrev_b32 v4, 1, v2\nv_lshlrev_b32 v4, 3, v4\nv_xor_b32 v4, v4, v1\nv_lshlrev_b32 v4, 3, v4\nv_lshl_add_u32 v4, v2, 7, v4")
    A(f"v_add_u32 {v(TW0)}, {s(sREG)}, v4\nv_xor_b32 {v(TW1)}, 32, {v(TW0)}\nv_add_u32 {v(TW1)}, 512, {v(TW1)}")
    A(f"s_cmp_eq_u32 {s(sODD)}, 0\ns_cselect_b64 vcc, -1, 0\nv_cndmask_b32 {v(TWS)}, {v(TW1)}, {v(TW0)}, vcc")
    A("v_lshrrev_b32 v4, 2, v1\nv_and_b32 v5, 3, v1")
    A("v_lshrrev_b32 v6, 1, v2\nv_lshrrev_b32 v7, 1, v5\nv_xor_b32 v6, v6, v7\nv_lshlrev_b32 v6, 3, v6")
    A("v_and_b32 v7, 1, v2\nv_lshl_add_u32 v6, v7, 1, v6\nv_and_b32 v7, 1, v4\nv_add_u32 v6, v6, v7")
    A("v_lshrrev_b32 v7, 1, v4\nv_lshl_add_u32 v6, v7, 2, v6\nv_lshlrev_b32 v6, 3, v6\nv_lshl_add_u32 v6, v7, 9, v6\nv_lshl_add_u32 v6, v5, 7, v6")
    A(f"v_add_u32 {v(TR0)}, {s(sREG)}, v6\nv_xor_b32 {v(TR1)}, 32, {v(TR0)}")
    A(f"v_add_u32 v12, {s(sREG)}, v3")
    for r in range(4):
        A(f"v_mov_b32 {v(8 + r)}, 0")
    A(f"ds_write_b128 v12, v[8:11] offset:{TB + 3072}")
    A(f"s_lshl_b32 s33, {s(sODD)}, 2\nv_add_u32 v4, s33, v2")
    A("v_bfe_u32 v5, v1, 2, 1\nv_lshlrev_b32 v5, 5, v5\nv_and_b32 v6, 1, v1\nv_lshl_add_u32 v5, v6, 4, v5\nv_bfe_u32 v6, v1, 1, 1\nv_lshl_add_u32 v5, v6, 3, v5\nv_lshrrev_b32 v6, 3, v1\nv_lshl_add_u32 v5, v6, 2, v5")
    A(f"v_lshl_add_u32 {v(PX)}, v4, 6, v5")
    A(f"v_lshlrev_b32 v4, 4, v4\nv_lshl_add_u32 v4, v1, 1, v4\nv_add_u32 v4, 512, v4\nv_and_b32 v5, 9, v1\nv_cmp_eq_u32 vcc, 0, v5\nv_mov_b32 v5, {OOB}\nv_cndmask_b32 {v(PM)}, v5, v4, vcc")
    A(f"v_lshrrev_b32 v4, 1, v2\nv_lshlrev_b32 v4, 5, v4\nv_add_u32 v4, v4, v1\ns_lshl_b32 s33, {s(sODD)}, 4\nv_add_u32 v4, s33, v4\nv_lshlrev_b32 v4, 3, v4")
    A(f"v_and_b32 v5, 1, v2\nv_lshl_add_u32 v4, v5, 2, v4\nv_add_u32 v13, {SB}, v4\nv_lshlrev_b32 v14, 3, v0\nv_add_u32 v14, {s(sREG)}, v14")
    if opts.get("own", 3) & 1:
        A(f"s_lshl_b32 s33, {s(S_W)}, 4\nv_add_u32 {v(FA)}, s33, v1")
    else:
        A(f"v_mov_b32 {v(FA)}, v0")
    A(f"v_min_u32 {v(FA)}, 55, {v(FA)}\nv_lshlrev_b32 {v(FA)}, 2, {v(FA)}\ns_lshl_b32 s33, {s(S_ID)}, 8\nv_add_u32 {v(FA)}, s33, {v(FA)}\ns_mov_b32 {s(sEF)}, {EF}\ns_mov_b32 s53, 0")
    chunk_pos(A, 12, 1, 2, 4)
    A(f"v_add_u32 v12, {s(sREG)}, v12")
    A(f"v_mov_b32 {v(XR)}, v12\nv_mov_b32 {v(SW)}, v14\nv_mov_b32 {v(SR)}, v13\nv_add_u32 {v(SR2)}, {2 * REG}, v13")
    A(f"s_mov_b32 {s(sS)}, 0\ns_mov_b32 {s(sCM)}, {CM}\ns_mul_i32 {s(sCP)}, {s(S_ID)}, 640\ns_add_u32 {s(sCP)}, {s(sCP)}, {CP}")
    A(f"v_lshlrev_b32 {v(PFA)}, 3, v3")
    ahead = opts.get("yah", 1)
    A(f"s_mul_i32 {s(sYP)}, {s(S_ID)}, {28 * KB}\ns_mul_i32 s33, {s(S_W)}, {7 * KB}\ns_add_u32 {s(sYP)}, {s(sYP)}, s33\ns_add_u32 {s(sYP)}, {s(sYP)}, {YF + ahead * 16 * 28 * KB}")
    slow = A.new("a_slow")
    for x in zero(ACC, 28):
        A(x)
    wait_start(A, opts, slow)
    ka = lambda n, r=ACC: "".join(f"{MF} {v(r, 4)}, {v(TSP, 4)}, {v(TSP, 4)}, {v(r, 4)}\n" for _ in range(n))

    def loop(sc):
        top, nxt, done, lp, ok, idle = (A.new(x) for x in ("a_top", "a_next", "a_done", "a_poll", "a_ok", "a_idle"))
        redo = A.new("a_redo")
        G0, G1 = KEY, KEY + 8
        A(f"s_branch {lp}")
        if opts.get("al"):
            A(f".p2align {opts['al']}")
        A(f"{top}:")
        notice_wait(A, opts, G1, FA, sEF, 0, zero(ACC, 28) + [f"s_mov_b32 m0, {s(sMB)}"])
        if opts.get("nst"):
            stamp(A, opts, 1)
        A(fetch)
        A(f"{lp}:")
        if opts.get("stamps"):
            A("s_add_u32 s53, s53, 1")
        A(ka(opts.get("ka_m", 0), SC))
        A("s_waitcnt vmcnt(0)")
        stamp(A, opts, 0)
        A("s_barrier")
        if not opts.get("nst"):
            stamp(A, opts, 1)
        lg = Cnt(A, "lgkmcnt", 15)
        for kk in range(7):
            lg.op(f"ds_read_b128 {v(MEM + 4 * kk, 4)}, v3 offset:{MEMB + kk * 1024}", f"m{kk}")

        def tile(i):
            out = []
            for kk in range(7):
                txt = f"{SMF} {v(ACC + 4 * i, 4)}, {v(MEM + 4 * kk, 4)}, {wreg((i * 7 + kk) * 8, 8)}, {v(IDX)}" if not opts.get("noam") else "s_nop 2"
                out.append((lambda txt=txt, kk=kk: (lg.wait(f"m{kk}"), A(txt))) if i == 0 else txt)
            return out

        def score(b):
            out = []
            for tau in range(3):
                c = "0" if b == 0 else v(SC + 4 * tau, 4)
                txt = f"{MF} {v(SC + 4 * tau, 4)}, {v(TSP + 4 * (b % 2), 4)}, {v(KEY + 12 * (b % 2) + 4 * tau, 4)}, {c}"
                out.append((lambda txt=txt: (lg.wait(f"tr{b}", f"k{b}"), A(txt))) if tau == 0 else txt)
            return out

        def keys(b):
            K = KEY + 12 * (b % 2)
            out = [lambda aa=aa: lg.op(f"ds_read_b128 {v(K + 4 * aa, 4)}, {v(XR)} offset:{XK + aa * 4096 + b * 1024}", f"k{b}") for aa in range(2)]
            reg, o = (MK3, 0) if b == 3 else (MK, b * 512)
            out.append(lambda: lg.op(f"ds_read_b128 {v(K + 8, 4)}, {v(reg)} offset:{MEMB + o}", f"k{b}"))
            return out

        def epi(i):
            D = ACC + 4 * i
            addr, off = (TWS, 3072) if i == 6 else ((TW0, TW1)[i % 2], (i // 2) * 1024)
            return [f"v_cvt_pk_bf16_f32 {v(PK)}, {v(D)}, {v(D + 1)}", f"v_cvt_pk_bf16_f32 {v(PK + 1)}, {v(D + 2)}, {v(D + 3)}",
                    lambda: lg.op(f"ds_write_b64 {v(addr)}, {v(PK, 2)} offset:{TB + off}", f"t{i}")]

        def trs(b):
            return [lambda x=x: lg.op(f"ds_read_b64_tr_b16 {v(TSP + 4 * (b % 2) + 2 * x, 2)}, {v((TR0, TR1)[x])} offset:{TB + b * 1024}", f"tr{b}") for x in range(2)]

        stream = tile(0) + tile(1) + tile(2) + tile(3) + score(0) + tile(4) + tile(5) + score(1) + tile(6) + score(2)
        fill = {}

        def put(g, items):
            for k, it in enumerate(items):
                assert g + k not in fill, g + k
                fill[g + k] = [it]

        for k in range(opts.get("apf", 1)):
            pre = f"s_add_u32 s33, {s(sREG)}, 31744\ns_mov_b32 m0, s33\ns_nop 0\n" if k == 0 else ""
            (put if opts.get("pfg", 1) >= 0 else lambda g, x: A(x[0]))(opts.get("pfg", 1) + 3 * k, [pre + f"buffer_load_dword {v(PFA)}, {s(WS, 4)}, {s(sYP)} offen offset:{128 // opts.get('apf', 1) * k} sc1 lds"])
        put(opts.get('k0g', 4), keys(0))
        put(11, epi(0))
        put(15, keys(1))
        put(18, epi(1))
        put(21, trs(0))
        put(25, epi(2))
        k2 = keys(2)
        put(31, k2[:1])
        put(32, epi(3))
        put(35, trs(1))
        put(38, k2[1:])
        put(41, epi(4))
        put(47, epi(5))
        put(50, trs(2))
        put(52, keys(3))
        br = "s_nop 0" if opts.get("solo") else f"s_cbranch_vccnz {redo}"
        mx = lambda x, y, z: f"v_max3_u32 {v(CK)}, {v(x)}, {v(y)}, {v(z)}"
        cmpi = f"v_cmp_eq_u32 vcc, -1, {v(CK)}"
        for g, x in zip((7, 8, 9, 10) if opts.get('k0g', 4) == 4 else (2, 4, 6, 10), (mx(MEM, MEM + 4, MEM + 8), mx(CK, MEM + 12, MEM + 16), mx(CK, MEM + 20, MEM + 24), cmpi)):
            put(g, [x])
        fill[12].append(br)
        rest = [MEM + r for r in range(28) if r % 4]
        late = [mx(*rest[:3])] + [mx(CK, rest[r], rest[r + 1]) for r in range(3, 21, 2)] + [cmpi]
        for g, x in zip((14, 23, 24, 28, 29, 30, 37, 40, 44, 45, 46), late):
            put(g, [x])
        fill[49].append(br)
        emit_stream(A, stream, fill)
        stamp(A, opts, 2)
        e6 = epi(6)
        if opts.get("w32"):
            e6 = [e6[0], lambda: lg.op(f"ds_write_b32 {v(TWS)}, {v(PK)} offset:{TB + 3072}", "t6"), e6[1], lambda: lg.op(f"ds_write_b32 {v(TWS)}, {v(PK + 1)} offset:{TB + 3076}", "t6")]
        for x in e6 + trs(3):
            x() if callable(x) else A(x)
        if opts.get("ka_tr"):
            A(ka(opts["ka_tr"]))
        for x in score(3):
            x() if callable(x) else A(x)
            A("s_nop 1")
        X = MEM
        A(f"s_cmp_ge_u32 {s(S_W)}, 2")
        for tau in range(3):
            D = SC + 4 * tau
            A(f"v_permlane32_swap_b32 {v(D)}, {v(D + 2)}\nv_permlane32_swap_b32 {v(D + 1)}, {v(D + 3)}")
            if opts.get("pk", 1):
                A(f"v_pk_add_f32 {v(X + 2 * tau, 2)}, {v(D, 2)}, {v(D + 2, 2)}")
            else:
                A(f"v_add_f32 {v(X + 2 * tau)}, {v(D)}, {v(D + 2)}\nv_add_f32 {v(X + 2 * tau + 1)}, {v(D + 1)}, {v(D + 3)}")
            A(f"ds_write_b64 {v(SW)}, {v(X + 2 * tau, 2)} offset:{SB + 512 * tau}")
        if opts.get("ka_x"):
            A(ka(opts["ka_x"]))
        A("s_waitcnt lgkmcnt(0)\ns_barrier")
        stamp(A, opts, 3)
        A(f"s_cbranch_scc1 {idle}")
        R = MEM + 8
        for tau in range(3):
            A(f"ds_read2st64_b32 {v(R + 4 + 4 * tau, 2)}, {v(SR)} offset0:{2 * tau} offset1:{2 * tau + 128}")
            A(f"ds_read2st64_b32 {v(R + 6 + 4 * tau, 2)}, {v(SR2)} offset0:{2 * tau} offset1:{2 * tau + 128}")
        for tau in range(3):
            A(f"s_waitcnt lgkmcnt({4 - 2 * tau})")
            A(f"v_pk_add_f32 {v(R + 4 + 4 * tau, 2)}, {v(R + 4 + 4 * tau, 2)}, {v(R + 6 + 4 * tau, 2)}")
            A(f"v_add_f32 {v(R + tau)}, {v(R + 4 + 4 * tau)}, {v(R + 5 + 4 * tau)}")
        mx, sm = T, T + 1
        A(f"v_max3_f32 {v(mx)}, {v(R)}, {v(R + 1)}, {v(R + 2)}")
        for rot in (8, 4, 2, 1):
            A(f"v_max_f32_dpp {v(mx)}, {v(mx)}, {v(mx)} row_ror:{rot} row_mask:0xf bank_mask:0xf")
        for tau in (2, 0, 1):
            A(f"v_sub_f32 {v(R + tau)}, {v(R + tau)}, {v(mx)}")
        for tau in (2, 0, 1):
            A(f"v_exp_f32 {v(R + tau)}, {v(R + tau)}")
        A(f"v_fma_f32 {v(sm)}, 0.5, {v(R + 2)}, {v(R)}")
        A(f"v_mov_b32_dpp {v(R + 3)}, {v(R + 2)} quad_perm:[1,0,3,2] row_mask:0xf bank_mask:0xf")
        A(f"v_add_f32 {v(sm)}, {v(sm)}, {v(R + 1)}")
        for rot in (8, 4, 2, 1):
            A(f"v_add_f32_dpp {v(sm)}, {v(sm)}, {v(sm)} row_ror:{rot} row_mask:0xf bank_mask:0xf")
        A(f"v_rcp_f32 {v(sm)}, {v(sm)}")
        for k, addr in ((0, PX), (2, PM)):
            A(f"v_mul_f32 {v(R + k)}, {v(R + k)}, {v(sm)}\nv_mul_f32 {v(R + k + 1)}, {v(R + k + 1)}, {v(sm)}")
            A(f"v_cvt_pk_bf16_f32 {v(R + k)}, {v(R + k)}, {v(R + k + 1)}\nv_min_u32 {v(R + k)}, -2, {v(R + k)}")
            A(f"buffer_store_dword {v(R + k)}, {v(addr)}, {s(WS, 4)}, {s(sCP)} offen{sc}")
        A(f"{nxt}:")
        stamp(A, opts, 4)
        collect_lds(A, opts, sREG, 22528, T)
        A(f"s_add_u32 {s(sS)}, {s(sS)}, 1\ns_add_u32 {s(sQ)}, {s(sQ)}, {0 if opts.get('solo') else 8192}\ns_add_u32 {s(sCP)}, {s(sCP)}, {0 if opts.get('solo') else 10240}")
        adv = 0 if opts.get("solo") else EF_STEP
        A(f"s_add_u32 {s(sEF)}, {s(sEF)}, {adv}\ns_add_u32 {s(sXA)}, {s(sXA)}, {28 * KB * (16 if opts.get('gemu') else 1)}\ns_add_u32 {s(sXB)}, {s(sXB)}, {28 * KB * (16 if opts.get('gemu') else 1)}\ns_add_u32 {s(sYP)}, {s(sYP)}, {16 * 28 * KB}")
        A("s_barrier")
        if not opts.get("nodma"):
            for k in range(8):
                A(dma(k))
        if opts.get("asl"):
            A(f"s_sleep {opts['asl']}")
        A(f"s_cmp_eq_u32 {s(sS)}, 63\ns_cbranch_scc0 {top}")
        A("s_waitcnt vmcnt(0)")
        A("s_mov_b32 s84, s53" if opts.get("stamps") else "")
        fetch_lds(A, opts, sREG, 22528, 10)
        flush_stamps(A, opts, 10)
        A("s_endpgm")
        A(f"{redo}:\ns_mov_b32 m0, {s(sMB)}\ns_waitcnt lgkmcnt(0)\ns_barrier")
        A(fetch)
        poll_guard(A)
        for x in zero(ACC, 28):
            A(x)
        A(f"s_branch {lp}")
        A(f"{idle}:")
        A(f"v_lshrrev_b32 {v(T + 1)}, 4, v3\nv_min_u32 {v(T + 1)}, 13, {v(T + 1)}\ns_lshl_b32 s33, {s(S_ID)}, 2\ns_add_u32 s33, s33, {EF_P}")
        A(f"v_lshl_add_u32 {v(T + 1)}, {v(T + 1)}, 7, s33\nv_mov_b32 {v(T)}, {s(S_NONCE)}")
        A("s_nop 3\n" * opts.get("la", 6) if opts.get("lan") else ka(opts.get("la", 6)))
        w3 = A.new("a_w3")
        A(f"s_cmp_eq_u32 {s(S_W)}, 2\ns_cbranch_scc0 {w3}")
        notice(A, T, T + 1, sEF, 0, sc)
        A(f"s_branch {nxt}\n{w3}:")
        A(ka(opts.get("ka_sm", 0)))
        A(f"s_branch {nxt}")

    loop("")
    A(f"{slow}:")
    loop(" sc1")


def gen_chain_b(A, opts):
    MEM, ZACC, ZOP, Y, OACC, IDX = 4, 32, 60, 76, 108, 132
    GA0, GA1, PXA, PMA, RW, RR0, RR1, MO, WR, FA, FV = range(133, 144)
    FM, NZ, NA, FP = 128, 129, 130, 131
    T, WST, V0 = 116, 144, 176
    RED, WL = 8192, 12288
    sS, sCM, sCP, sY, sEF, sC, sFY = 44, 45, 46, 47, 48, 50, 51
    vm = Cnt(A, "vmcnt", 63)
    A(f"s_sub_u32 {s(sC)}, {s(S_ID)}, 16")
    A(f"s_mul_i32 s34, {s(S_W)}, {4 * FRAG_H}\ns_mul_i32 s33, {s(sC)}, {28 * KB}\ns_add_u32 s34, s34, s33\ns_add_u32 s34, s34, {BF}")
    A(f"s_mul_i32 s36, {s(S_W)}, {28 * KB}\ns_add_u32 s36, s36, {WL}\nv_add_u32 {v(WR)}, s36, v3\ns_add_u32 s37, s34, {3 * FRAG_H}")
    A(f"s_mul_i32 s33, {s(S_W)}, 28\ns_lshr_b32 s35, {s(sC)}, 1\ns_add_u32 s33, s33, s35\ns_add_u32 s33, s33, 112\nv_and_b32 v4, 3, v0\nv_mul_u32_u24 v4, 7, v4\nv_add_u32 v4, s33, v4")

    def piece(hh):
        if hh < 3:
            frag_loads(A, 34, [((hh * 28 + k) * 4, hh * FRAG_H + k * KB) for k in range(28)], v0=V0, cap=opts.get('bcap'))
            return
        for q in range(7):
            A("s_mov_b32 m0, s36\ns_add_u32 s36, s36, 4096")
            for k in range(4):
                A(f"buffer_load_dwordx4 v3, {s(WS, 4)}, s37 offen offset:{k * 1024} sc1 lds")
            A("s_add_u32 s37, s37, 4096")

    if opts.get('late'):
        A('v_mov_b32 v20, v4\ns_mov_b32 s60, s34\ns_mov_b32 s61, s36\ns_mov_b32 s62, s37')
        wait_prep(A, True)
        A('v_mov_b32 v4, v20\ns_mov_b32 s34, s60\ns_mov_b32 s36, s61\ns_mov_b32 s37, s62')
        mark(A, opts, 3)
    load_pieces(A, [(28, lambda hh=hh: piece(hh)) for hh in range(4)], 4)
    gather_addr(A, GA0, GA1)
    idx_reg(A, IDX)
    A("v_and_b32 v4, 7, v1\nv_lshrrev_b32 v5, 3, v1\nv_lshrrev_b32 v6, 1, v2\nv_and_b32 v7, 1, v2")
    A(f"s_mul_i32 s33, {s(S_W)}, 2560")
    A(f"v_mul_u32_u24 v8, 640, v6\nv_lshl_add_u32 v8, v4, 6, v8\nv_lshl_add_u32 v8, v7, 5, v8\nv_lshl_add_u32 v8, v5, 4, v8\nv_add_u32 {v(PXA)}, s33, v8")
    A(f"v_lshl_add_u32 v8, v6, 1, v5\nv_mul_u32_u24 v8, 640, v8\nv_lshl_add_u32 v8, v4, 4, v8\ns_add_u32 s33, s33, 512\nv_add_u32 {v(PMA)}, s33, v8")
    A(f"v_lshl_add_u32 v8, v6, 1, v7\nv_xor_b32 v8, v0, v8\nv_lshlrev_b32 v8, 4, v8\ns_lshl_b32 s33, {s(S_W)}, 10\ns_add_u32 s33, s33, {RED}\nv_add_u32 {v(RW)}, s33, v8")
    A("v_lshrrev_b32 v4, 5, v0\nv_bfe_u32 v5, v0, 2, 3\nv_and_b32 v6, 3, v0")
    A("v_and_b32 v7, 1, v6\nv_lshrrev_b32 v8, 2, v5")
    A(f"v_lshlrev_b32 v9, 5, v7\nv_lshl_add_u32 v9, v8, 4, v9\ns_and_b32 s33, {s(S_W)}, 1\ns_lshl_b32 s33, s33, 3\nv_add_u32 v9, s33, v9")
    A("v_lshrrev_b32 v10, 1, v6\nv_lshl_add_u32 v9, v10, 2, v9\nv_lshl_add_u32 v9, v4, 1, v9")
    A("v_lshl_add_u32 v10, v7, 1, v8\nv_xor_b32 v9, v9, v10\nv_lshlrev_b32 v9, 4, v9\nv_and_b32 v10, 3, v5\nv_lshl_add_u32 v9, v10, 2, v9")
    A(f"v_add_u32 {v(RR0)}, {RED}, v9\nv_xor_b32 {v(RR1)}, 16, {v(RR0)}")
    A(f"s_lshl_b32 s33, {s(sC)}, 9\ns_and_b32 s35, {s(S_W)}, 1\ns_lshl_b32 s35, s35, 8\ns_add_u32 s33, s33, s35\nv_lshl_add_u32 {v(MO)}, v0, 2, s33")
    A(f"v_lshlrev_b32 {v(FA)}, 7, v1\nv_mov_b32 {v(FV)}, 0")
    A(f"s_mov_b32 {s(sS)}, 0\ns_mov_b32 {s(sCM)}, {CM}\ns_mov_b32 {s(sCP)}, {CP}")
    A(f"s_mul_i32 s33, {s(S_W)}, {4 * 28 * KB}\ns_lshl_b32 s35, {s(sC)}, 11\ns_add_u32 {s(sY)}, s33, s35\ns_add_u32 {s(sY)}, {s(sY)}, {YF}")
    A(f"s_mov_b32 {s(sFY)}, {FY}\ns_mov_b32 {s(sEF)}, {EF}\ns_mov_b32 s53, 0\ns_mov_b32 s55, 0")
    pw = opts.get("pw", 1)
    A(f"v_min_u32 {v(FM)}, {55 if pw else 13}, v0\nv_lshlrev_b32 {v(FM)}, 2, {v(FM)}\ns_lshl_b32 s33, {s(S_ID)}, 8\nv_add_u32 {v(FM)}, s33, {v(FM)}")
    A(f"s_lshl_b32 s33, {s(sC)}, 7\ns_add_u32 s33, s33, {EF_P}\nv_min_u32 {v(FP)}, 17, v0")
    if opts.get("own", 3) & 2:
        A(f"v_and_b32 v4, 3, v0\ns_lshl_b32 s35, {s(S_W)}, 2\nv_add_u32 v4, s35, v4\nv_and_b32 v5, 1, v0\nv_add_u32 v5, 16, v5\nv_cmp_gt_u32 vcc, 32, v0\nv_cndmask_b32 {v(FP)}, v5, v4, vcc")
    A(f"v_lshl_add_u32 {v(FP)}, {v(FP)}, 2, s33")
    if pw:
        A(f"s_lshl_b32 s33, {s(sC)}, 2\ns_add_u32 s33, s33, {s(S_W)}\ns_lshl_b32 s33, s33, 2")
    else:
        A(f"s_lshl_b32 s33, {s(sC)}, 2")
    A(f"s_add_u32 s33, s33, {EF_STEP}\nv_min_u32 {v(NA)}, {29 if opts.get('ndb') else 15}, v0\nv_lshl_add_u32 {v(NA)}, {v(NA)}, 8, s33\nv_mov_b32 {v(NZ)}, {s(S_NONCE)}")
    if opts.get("gemu"):
        A(f"v_lshlrev_b32 v126, 3, v3\ns_lshl_b32 s57, {s(sC)}, 2\ns_add_u32 s57, s57, {s(S_W)}\ns_lshl_b32 s57, s57, 13\ns_add_u32 s57, s57, {(opts['gemu'] << 20) + (opts.get('gah', 2) - 1) * 16 * 28 * KB}")
    slow = A.new("b_slow")
    wait_start(A, opts, slow, (FA, sFY))
    ka = lambda n: "".join(f"{MF} {v(ZACC + 8, 4)}, {v(ZOP, 4)}, {v(ZOP, 4)}, {v(ZACC + 8, 4)}\n" for _ in range(n))

    def loop(sc):
        top, nxt, last, noy, yok, ypoll, noflag, gm, gp, idle, noz = (A.new("b_" + x) for x in ("top", "next", "last", "noy", "yok", "ypoll", "nofl", "gm", "gp", "idle", "noz"))
        if opts.get("al"):
            A(f"s_branch {top}\n.p2align {opts['al']}")
        A(f"{top}:")
        if opts.get("ndb", 1):
            notice_wait(A, dict(opts, nd=opts.get('ndb', 1)), WST + 8, FM, sEF, 0, zero(ZACC, 28) + zero(OACC, 8), sS)
        else:
            for x in zero(ZACC, 28) + zero(OACC, 8):
                A(x)
        fetch_mem(A, dict(opts, stamps=0) if opts.get('nst') else opts, WST, GA0, GA1, sCM, T, 0)
        lg = Cnt(A, "lgkmcnt", 15)
        for kk in range(7):
            lg.op(f"ds_read_b128 {v(MEM + 4 * kk, 4)}, v3 offset:{kk * 1024}", f"m{kk}")
        bulk = []
        for hh in range(4):
            for vv in range(0 if opts.get("noy") else 2):
                pre = f"s_add_u32 s33, {s(sY)}, {hh * 28 * KB}\n" if vv == 0 else ""
                bulk.append(pre + f"buffer_load_dwordx4 {v(Y + 16 * (hh // 2) + 8 * vv + 4 * (hh % 2), 4)}, v3, {s(WS, 4)}, s33 offen offset:{vv * 1024} {'nt' if opts.get('ynt') == 1 else 'sc1 nt' if opts.get('ynt') else 'sc1'}")
        order = []
        regs = [(t, kk) for t in range(6) for kk in range(7)]
        for n in range(14):
            order += regs[3 * n:3 * n + 3] + [(6 + n // 7, n % 7)]
        accof = lambda t: ZACC + 4 * (t if t < 7 else 0)
        stream, pos, seen = [], {}, set()
        for t, kk in order:
            pos[(t, kk)] = len(stream)
            n = (t - 6) * 7 + kk
            w = wreg((t * 7 + kk) * 8, 8, 256, V0) if t < 6 else v(WST + 8 * (n % 4), 8)
            txt = f"{SMF} {v(accof(t), 4)}, {v(MEM + 4 * kk, 4)}, {w}, {v(IDX)}" if not opts.get("nozm") else "s_nop 2"
            tags = ([f"m{kk}"] if kk not in seen else []) + ([f"w{n}"] if t >= 6 else [])
            seen.add(kk)
            stream.append((lambda txt=txt, tags=tags: (lg.wait(*tags), A(txt))) if tags else txt)

        def wread(n):
            return [lambda u=u: lg.op(f"ds_read_b128 {v(WST + 8 * (n % 4) + 4 * u, 4)}, {v(WR)} offset:{(n // 7) * 14 * KB + (2 * (n % 7) + u) * KB}", f"w{n}") for u in range(2)]

        def epi(t):
            hh, vv = t // 2, t % 2
            D = accof(t)
            out = [f"v_cvt_pk_bf16_f32 {v(ZOP + 8 * vv + 4 * (hh // 2) + 2 * b + hh % 2)}, {v(D + 2 * b)}, {v(D + 2 * b + 1)}" for b in range(2)]
            return out + (zero(D, 4) if t == 0 else [])

        y = bulk + ["s_nop 0"] * (8 - len(bulk))
        for x in wread(0) + wread(1):
            x()
        npre = opts.get("ypre", 2)
        for x in y[:npre]:
            A(x)
        fill = {}
        for n in range(2, 14):
            spread(fill, 4 * (n - 2), wread(n), per=1)
        g = 2
        for x in y[npre:]:
            while g in fill:
                g += 1
            fill[g] = [x]
            g += opts.get("ygap", 1)
        if opts.get("gemu"):
            while g in fill:
                g += 1
            fill[g] = [f"s_mov_b32 m0, 7168\ns_add_u32 s57, s57, {16 * 28 * KB}\nbuffer_load_dword v126, {s(WS, 4)}, s57 offen sc1 lds"]
        late = []
        for t in sorted(range(8), key=lambda t: pos[(t, 6)]):
            g = pos[(t, 6)] + 4
            for x in epi(t):
                while g in fill:
                    g += 1
                if g < len(stream):
                    fill[g] = [x]
                    assert t != 0 or g < pos[(7, 0)] - 1
                else:
                    late.append(x)
        emit_stream(A, stream, fill)
        for x in late:
            A(x)
        if not opts.get("nst"):
            stamp(A, opts, 1)

        def p_loads(P):
            A(f"buffer_load_dwordx4 {v(P, 4)}, {v(PXA)}, {s(WS, 4)}, {s(sCP)} offen sc1")
            A(f"buffer_load_dwordx4 {v(P + 4, 4)}, {v(PXA)}, {s(WS, 4)}, {s(sCP)} offen offset:1280 sc1")
            A(f"buffer_load_dwordx4 {v(P + 8, 4)}, {v(PMA)}, {s(WS, 4)}, {s(sCP)} offen sc1")

        cur = MEM
        ok = A.new("b_ok")
        notice_wait(A, dict(opts, nd=opts.get('ndp', opts['nd'])), MEM + 12, FP, sEF, 0, [])
        if opts.get("nst"):
            stamp(A, opts, 1)
        A(f"{gp}:")
        p_loads(cur)
        poll_guard(A)
        A(ka(opts.get("ka_p", 0)))
        if opts.get("stamps"):
            A("s_add_u32 s55, s55, 1")
        mx3 = lambda d, x, y, z: f"v_max3_u32 {v(d)}, {v(x)}, {v(y)}, {v(z)}"
        chk = ["s_nop 0", mx3(T, cur, cur + 1, cur + 2), mx3(T, T, cur + 3, cur + 4), mx3(T + 1, cur + 5, cur + 6, cur + 7), mx3(T + 2, cur + 8, cur + 9, cur + 10),
               mx3(T, T, T + 1, cur + 11) + f"\nv_max_u32 {v(T)}, {v(T)}, {v(T + 2)}\nv_cmp_eq_u32 vcc, -1, {v(T)}"]
        k = 0
        for kap in range(3):
            A(f"s_waitcnt vmcnt({2 - kap})")
            if kap == 0:
                stamp(A, opts, 2)
            for vv in range(2):
                b = v(Y + 16 * kap + 8 * vv, 8) if kap < 2 else v(ZOP + 8 * vv, 8)
                A(f"{SMF} {v(OACC + 4 * vv, 4)}, {v(cur + 4 * kap, 4)}, {b}, {v(IDX)}")
                if opts.get("lb") == 10 + k:
                    notice(A, NZ, NA, sEF, 0, sc)
                A(chk[k])
                k += 1
        A(f"s_cbranch_vccz {ok}")
        if opts.get("solo"):
            A(f"s_branch {ok}")
        for x in zero(OACC, 8):
            A(x)
        A(f"s_branch {gp}")
        A(f"{ok}:")
        lb = opts.get("lb", 2) if pw else -1
        if lb == 0:
            notice(A, NZ, NA, sEF, 0, sc)
        for q in range(4):
            A(f"v_permlane32_swap_b32 {v(OACC + q)}, {v(OACC + 4 + q)}")
        if lb == 1:
            notice(A, NZ, NA, sEF, 0, sc)
        for q in (0, 2):
            A(f"v_pk_add_f32 {v(OACC + q, 2)}, {v(OACC + q, 2)}, {v(OACC + 4 + q, 2)}")
        A(f"ds_write_b128 {v(RW)}, {v(OACC, 4)}")
        if 2 <= lb < 10:
            A(ka(lb - 2))
            notice(A, NZ, NA, sEF, 0, sc)
            if opts.get("nst"):
                stamp(A, opts, 0)
        A(f"s_add_u32 s33, {s(sCM)}, 8192\ns_cmp_ge_u32 {s(S_W)}, 2\ns_waitcnt lgkmcnt(0)\ns_barrier")
        stamp(A, opts, 3)
        A(f"s_cbranch_scc1 {idle}")
        R = ZACC
        if not pw:
            A(f"s_cmp_eq_u32 {s(S_W)}, 0\ns_cbranch_scc0 {noflag}")
            notice(A, NZ, NA, sEF, 0, sc)
            A(f"{noflag}:")
        A(f"ds_read2st64_b32 {v(R, 2)}, {v(RR0)} offset0:0 offset1:4\nds_read2st64_b32 {v(R + 4, 2)}, {v(RR0)} offset0:8 offset1:12")
        A(f"ds_read2st64_b32 {v(R + 2, 2)}, {v(RR1)} offset0:0 offset1:4\nds_read2st64_b32 {v(R + 6, 2)}, {v(RR1)} offset0:8 offset1:12")
        A("s_waitcnt lgkmcnt(2)")
        A(f"v_pk_add_f32 {v(R, 2)}, {v(R, 2)}, {v(R + 4, 2)}\nv_add_f32 {v(R)}, {v(R)}, {v(R + 1)}")
        A("s_waitcnt lgkmcnt(0)")
        A(f"v_pk_add_f32 {v(R + 2, 2)}, {v(R + 2, 2)}, {v(R + 6, 2)}\nv_add_f32 {v(R + 2)}, {v(R + 2)}, {v(R + 3)}")
        A(f"v_cvt_pk_bf16_f32 {v(R)}, {v(R)}, {v(R + 2)}\nv_min_u32 {v(R)}, -2, {v(R)}")
        A(f"buffer_store_dword {v(R)}, {v(MO)}, {s(WS, 4)}, s33 offen{sc}")
        A(f"{nxt}:")
        stamp(A, opts, 4)
        collect(A, opts, 120)
        A(f"s_add_u32 {s(sS)}, {s(sS)}, 1\ns_add_u32 {s(sCM)}, {s(sCM)}, {0 if opts.get('solo') else 8192}\ns_add_u32 {s(sCP)}, {s(sCP)}, {0 if opts.get('solo') else 10240}")
        A(f"s_add_u32 {s(sY)}, {s(sY)}, {16 * 28 * KB}\ns_add_u32 {s(sEF)}, {s(sEF)}, {0 if opts.get('solo') else EF_STEP}")
        A("s_barrier")
        if opts.get("stamps"):
            m8 = A.new("m8")
            A(f"s_cmp_eq_u32 {s(sS)}, 8\ns_cbranch_scc0 {m8}")
            mark(A, opts, 5)
            A(f"{m8}:")
        A(f"s_cmp_eq_u32 {s(sS)}, 63\ns_cbranch_scc0 {top}")
        if opts.get("fast63", 1):
            A(f"s_cmp_ge_u32 {s(S_W)}, 2\ns_cbranch_scc1 {last}\ns_mov_b32 s33, {XM + 63 * 8192}")
            A(f"buffer_store_dword {v(R)}, {v(MO)}, {s(WS, 4)}, s33 offen sc1\n{last}:")
        A("s_waitcnt vmcnt(0)")
        A("s_mov_b32 s84, s53\ns_mov_b32 s85, s55" if opts.get("stamps") else "")
        dbg_time(A, opts, 6, 16)
        amp_mark(A, opts, 3)
        amp_spin(A, opts, 16, (0, 1, 2, 3))
        flush_stamps(A, opts, 120)
        A("s_endpgm")
        A(f"{idle}:")
        A(ka(opts.get("ka_f", 0)))
        A(f"s_branch {nxt}")

    loop("")
    A(f"{slow}:")
    loop(" sc1")


def gen_chain_f(A, opts):
    G, GA0, GA1, T, WA = 4, 12, 13, 14, 20
    sS, sCM, sXM = 44, 45, 46
    fw = A.new('f_go')
    wait_start(A, {}, fw)
    A(f'{fw}:')
    gather_addr(A, GA0, GA1)
    A(f"s_lshl_b32 s33, {s(S_W)}, 10\nv_add_u32 {v(WA)}, s33, v3")

    def touch(base, stride, nbytes, ahead, last):
        A(f"s_add_u32 s33, {s(sS)}, {ahead}\ns_min_u32 s33, s33, {last}\ns_mul_i32 s33, s33, {stride}\ns_add_u32 s33, s33, {base}")
        for k in range(0, nbytes, 4096):
            A(f"buffer_load_dwordx4 v[16:19], {v(WA)}, {s(WS, 4)}, s33 offen sc1\ns_add_u32 s33, s33, 4096")

    def touch_all():
        if not opts.get("nopf"):
            touch(CP, 10240, 12288, 2, 62)
            touch(CM, 8192, 8192, 2, 63)
            touch(EF, EF_STEP, 12288, 2, 62)
            touch(XS, 28 * KB, 28 * KB, 2, 63)

    for first in (-2, -1, 0):
        A(f"s_mov_b32 {s(sS)}, {first}")
        touch_all()
    A(f"s_mov_b32 {s(sS)}, 1\ns_mov_b32 {s(sCM)}, {CM + 8192}\ns_mov_b32 {s(sXM)}, {XM + 8192}")
    lp = A.new("f_poll")
    A(f"{lp}:")
    mem_loads(A, G, GA0, GA1, sCM)
    poll_guard(A)
    A("s_waitcnt vmcnt(0)")
    check8(A, G, T)
    got = A.new("f_got")
    A(f"s_cbranch_vccz {got}\ns_sleep {opts.get('fsl', 0)}\ns_branch {lp}\n{got}:")
    A(f"buffer_store_dwordx4 {v(G, 4)}, {v(GA0)}, {s(WS, 4)}, {s(sXM)} offen sc1")
    A(f"buffer_store_dwordx4 {v(G + 4, 4)}, {v(GA1)}, {s(WS, 4)}, {s(sXM)} offen sc1")
    touch_all()
    A(f"s_add_u32 {s(sS)}, {s(sS)}, 1\ns_add_u32 {s(sCM)}, {s(sCM)}, 8192\ns_add_u32 {s(sXM)}, {s(sXM)}, 8192")
    A(f"s_cmp_lt_u32 {s(sS)}, {63 if opts.get('fast63', 1) else 64}\ns_cbranch_scc1 {lp}")
    if opts.get("wb"):
        A(f"s_cmp_eq_u32 {s(S_W)}, 0\ns_cbranch_scc0 L_exit\ns_waitcnt vmcnt(0)\nbuffer_wbl2 sc1\ns_waitcnt vmcnt(0)")
    A("s_endpgm")


def gen_chain_g(A, opts):
    sS, sEF, sF = 44, 45, 46
    A(f"s_cmp_eq_u32 {s(S_W)}, 0\ns_cbranch_scc0 L_exit")
    A(f"s_mov_b32 {s(sS)}, 0\ns_mov_b32 {s(sEF)}, {EF + EF_P + 64}\ns_mov_b32 {s(sF)}, {FY + FL_STEP}")
    A(f"v_lshlrev_b32 v6, 7, v1\nv_lshrrev_b32 v7, 1, v0\nv_min_u32 v7, 13, v7\nv_lshlrev_b32 v7, 7, v7\nv_and_b32 v9, 1, v0\nv_lshl_add_u32 v7, v9, 2, v7\nv_mov_b32 v8, {s(S_NONCE)}")
    slow = A.new("g_slow")
    chain_mode(A, {}, Cnt(A, "vmcnt", 63), slow)

    def loop(sc):
        top, ok = A.new("g_top"), A.new("g_ok")
        go = A.new("g_go")
        A(f"{top}:\ns_cmp_eq_u32 {s(sS)}, 2\ns_cbranch_scc0 {go}")
        A("v_mov_b32 v12, v8")
        wait_prep(A, False, False)
        A(f"v_mov_b32 v8, v12\n{go}:")
        top2 = A.new("g_poll")
        A(f"{top2}:")
        flag_load(A, 10, 6, s(sF))
        poll_guard(A)
        A("s_waitcnt vmcnt(0)")
        flag_missing(A, [10])
        A(f"s_cbranch_vccz {ok}\ns_sleep 2\ns_branch {top2}\n{ok}:")
        notice(A, 8, 7, sEF, 0, sc)
        A(f"s_add_u32 {s(sS)}, {s(sS)}, 1\ns_add_u32 {s(sEF)}, {s(sEF)}, {EF_STEP}\ns_add_u32 {s(sF)}, {s(sF)}, {FL_STEP}")
        A(f"s_cmp_lt_u32 {s(sS)}, 63\ns_cbranch_scc1 {top}\ns_endpgm")

    loop("")
    A(f"{slow}:")
    loop(" sc1")
```

```python
from asmlib import v, a, s
from layout import *
from common import *
from gen_prep import *
from gen_chain import gen_chain_a, gen_chain_b, gen_chain_f, gen_chain_g
import gen_work

MAIN_LDS = 132096
LDS_ROLE = 131072


def gen_main(A, name, opts):
    ER = 252
    A(f".p2align 8\n.type {name},@function\n{name}:")
    A("s_cmp_ge_u32 s2, 256\ns_cbranch_scc1 L_exit")
    mark(A, opts, 0)
    amp_mark(A, opts, 0)
    b = [load_srd(A, WS, "ws", 40), load_srd(A, DB, "dbg", 42)]
    A(f"s_load_dwordx4 s[44:47], s[0:1], {KARG['wq']}\ns_load_dwordx4 s[48:51], s[0:1], {KARG['wv']}")
    A(f"v_lshrrev_b32 v1, 6, v0\nv_and_b32 v0, 63, v0\nv_readfirstlane_b32 {s(S_W)}, v1")
    if opts.get("fake"):
        A("s_mul_i32 s29, s2, 43\ns_lshr_b32 s29, s29, 8\ns_mul_i32 s29, s29, 6\ns_sub_u32 s7, s2, s29\ns_add_u32 s7, s7, 1\ns_and_b32 s7, s7, 15\ns_cmp_eq_u32 s2, 0\ns_cselect_b32 s7, 8, s7")
    else:
        A("s_getreg_b32 s7, hwreg(HW_REG_XCC_ID, 0, 4)")
    A(f"s_mov_b32 {s(S_POLL)}, 0\ns_mov_b32 {s(S_FOREIGN)}, 0")
    A("v_and_b32 v1, 15, v0\nv_lshrrev_b32 v2, 4, v0\nv_lshlrev_b32 v3, 4, v0")
    A(f"v_mov_b32 {v(ER)}, 1\nv_mov_b32 {v(ER + 1)}, 0\ns_and_b32 s17, s7, 4\ns_lshl_b32 s17, s17, 5\ns_andn2_b32 s19, s7, 4\ns_lshl_b32 s19, s19, 2\ns_add_u32 s17, s17, s19")
    A("s_waitcnt lgkmcnt(0)")
    for f in b:
        f()
    A(f"s_or_b32 s19, s2, {s(S_W)}\ns_cmp_eq_u32 s19, 0\ns_cbranch_scc0 L_no_nonce")
    A(f"s_memrealtime s[28:29]\ns_waitcnt lgkmcnt(0)\ns_lshl_b32 s28, s28, 4\ns_and_b32 s29, s7, 7\ns_or_b32 s28, s28, s29\ns_or_b32 s28, s28, 8\nv_mov_b32 v4, s28\nbuffer_store_dword v4, {v(ER + 1)}, {s(DB, 4)}, 0 offen offset:{D_NONCE} sc1")
    A("L_no_nonce:")
    dbg_time(A, opts, 0, 0, 2)

    def rank():
        sk = A.new("rank")
        A(f"s_cmp_eq_u32 {s(S_W)}, 0\ns_cbranch_scc0 {sk}\ns_mov_b64 exec, 1")
        A(f"buffer_atomic_add {v(ER)}, {v(ER + 1)}, {s(DB, 4)}, s17 offen sc0 sc1\ns_mov_b64 exec, -1\n{sk}:")

    gen_prep(A, opts, "L_prep_done", rank)
    A("L_prep_done:")
    A(f"v_mov_b32 v6, {LDS_ROLE}")
    A("L_nonce:")
    A(f"buffer_load_dword v7, {v(ER + 1)}, {s(DB, 4)}, 0 offen offset:{D_NONCE} sc1")
    poll_guard(A)
    A(f"s_waitcnt vmcnt(0)\nv_readfirstlane_b32 {s(S_NONCE)}, v7\ns_cmp_eq_u32 {s(S_NONCE)}, 0\ns_cbranch_scc0 L_nonce_ok\ns_sleep 4\ns_branch L_nonce\nL_nonce_ok:")
    mark(A, opts, 6)
    if opts.get('tilem'):
        A('s_mov_b32 s92, s16')
    A(f"s_cmp_eq_u32 {s(S_W)}, 0\ns_cbranch_scc0 L_role_wait")
    A(f"v_readfirstlane_b32 s30, {v(ER)}")
    A(f"s_sub_u32 s31, s7, {s(S_NONCE)}\ns_and_b32 s31, s31, 7\ns_lshl_b32 {s(S_ID)}, s31, 5\ns_add_u32 {s(S_ID)}, {s(S_ID)}, s30")
    A("s_cmp_ge_u32 s7, 8\ns_cbranch_scc1 L_overflow\ns_cmp_ge_u32 s30, 32\ns_cbranch_scc0 L_role_known")
    A("L_overflow:")
    A(f"v_mov_b32 {v(ER)}, 1\ns_mov_b64 exec, 1")
    A(f"buffer_atomic_add {v(ER)}, {v(ER + 1)}, {s(DB, 4)}, 0 offen offset:{D_OVF} sc0 sc1")
    A(f"s_waitcnt vmcnt(0)\nv_readfirstlane_b32 s31, {v(ER)}\ns_mov_b64 exec, -1")
    A("v_and_b32 v4, 4, v1\nv_lshlrev_b32 v4, 5, v4\nv_and_b32 v5, 11, v1\nv_lshl_add_u32 v4, v5, 2, v4")
    A("L_ov_poll:")
    A(f"buffer_load_dword v5, v4, {s(DB, 4)}, 0 offen sc1")
    poll_guard(A)
    A("s_waitcnt vmcnt(0)\ns_mov_b32 s32, 0")
    for k in range(16):
        A(f"v_readlane_b32 {s(44 + k)}, v5, {k}")
    for k in range(16):
        A(f"s_add_u32 s32, s32, {s(44 + k)}")
    A("s_cmp_lt_u32 s32, 256\ns_cbranch_scc1 L_ov_poll")
    A(f"s_mov_b32 {s(S_FOREIGN)}, 1")
    for k in range(8):
        A(f"s_min_u32 s33, {s(44 + k)}, 32\ns_sub_u32 s34, 32, s33")
        A(f"s_sub_u32 s35, {k}, {s(S_NONCE)}\ns_and_b32 s35, s35, 7\ns_lshl_b32 s35, s35, 5\ns_add_u32 {s(S_ID)}, s33, s31\ns_add_u32 {s(S_ID)}, {s(S_ID)}, s35")
        A("s_cmp_lt_u32 s31, s34\ns_cbranch_scc1 L_role_known\ns_sub_u32 s31, s31, s34")
    A(f"s_mov_b32 {s(S_ID)}, 0x2ff")
    A("L_role_known:")
    A(f"s_lshl_b32 s29, {s(S_FOREIGN)}, 8\ns_or_b32 s30, s29, {s(S_ID)}\nv_mov_b32 v4, s30\nds_write_b32 v6, v4\ns_waitcnt lgkmcnt(0)")
    A("L_role_wait:")
    A("s_barrier\nds_read_b32 v4, v6")
    A(f"s_cmp_eq_u32 {s(S_W)}, 0\ns_cbranch_scc0 L_no_reg")
    A("s_cmp_eq_u32 s16, -1\ns_cbranch_scc1 L_no_done")
    A(f"v_mov_b32 {v(ER)}, {s(S_NONCE)}\ns_lshl_b32 s16, s16, 7\ns_add_u32 s16, s16, {DONE}")
    A(f"v_lshrrev_b32 v5, 2, v3\nv_and_b32 v5, 124, v5\nbuffer_store_dword {v(ER)}, v5, {s(WS, 4)}, s16 offen sc1\nL_no_done:\ns_mov_b64 exec, 1")
    A(f"s_cmp_lt_u32 {s(S_ID)}, 32\ns_cbranch_scc0 L_no_reg2")
    A(f"s_add_u32 s29, s29, 1\nv_mov_b32 {v(ER + 2)}, s29\nbuffer_atomic_add {v(ER + 2)}, {v(ER + 1)}, {s(DB, 4)}, 0 offen offset:{D_REG} sc1")
    A("L_no_reg2:\ns_mov_b64 exec, -1")
    A("L_no_reg:")
    A("s_waitcnt lgkmcnt(0)\nv_readfirstlane_b32 s30, v4")
    A(f"s_bitcmp1_b32 s30, 9\ns_cbranch_scc1 L_exit\ns_and_b32 {s(S_ID)}, s30, 0xff")
    dbg_time(A, opts, 4, 16)
    amp_mark(A, opts, 1)
    A(f"s_sub_u32 s36, {s(S_ID)}, 30\ns_cmp_lt_u32 s36, 2\ns_cbranch_scc1 L_ln")
    A(f"s_sub_u32 s36, {s(S_ID)}, 160\ns_cmp_lt_u32 s36, 48\ns_cbranch_scc0 L_no_ln\ns_bitcmp1_b32 s36, 4\ns_cbranch_scc1 L_no_ln\ns_cmp_lt_u32 s36, 2\ns_cbranch_scc1 L_no_ln")
    A("s_lshr_b32 s37, s36, 1\ns_and_b32 s37, s37, 16\ns_and_b32 s36, s36, 15\ns_add_u32 s36, s36, s37\nL_ln:")
    gen_ln(A, opts)
    A("L_no_ln:")
    A(f"s_lshr_b32 s28, {s(S_ID)}, 5\ns_and_b32 s29, {s(S_ID)}, 31")
    far = []

    def go(cond, label):
        hop = A.new("go")
        far.append((hop, label))
        A(f"{cond}\ns_cbranch_scc1 {hop}")

    A("s_cmp_eq_u32 s28, 0\ns_cbranch_scc0 L_not_chain")
    go("s_cmp_lt_u32 s29, 16", "L_chain_a")
    go("s_cmp_lt_u32 s29, 30", "L_chain_b")
    go("s_cmp_eq_u32 s29, 30", "L_chain_f")
    A("s_branch L_chain_g")
    A("L_not_chain:")
    A("s_cmp_lt_u32 s28, 5\ns_cbranch_scc0 L_not_yx")
    A("s_sub_u32 s30, s28, 1\ns_lshl_b32 s30, s30, 2\ns_and_b32 s31, s29, 3\ns_add_u32 s30, s30, s31\ns_lshr_b32 s31, s29, 2")
    go("s_cmp_lt_u32 s29, 12", "L_y")
    A("s_sub_u32 s31, s31, 3")
    go("s_cmp_lt_u32 s29, 24", "L_x1")
    A("s_sub_u32 s30, s28, 1\ns_mul_i32 s30, s30, 7\ns_add_u32 s30, s30, s29\ns_sub_u32 s30, s30, 24\ns_mov_b32 s31, 1")
    go("s_cmp_lt_u32 s29, 31", "L_f1")
    A("s_sub_u32 s30, s28, 1\ns_branch L_go_z")
    A("L_not_yx:")
    A("s_mov_b32 s30, s29\ns_mov_b32 s31, 0")
    A("s_cmp_eq_u32 s28, 7\ns_cbranch_scc0 L_not_f1")
    go("s_cmp_lt_u32 s29, 28", "L_f1")
    A("s_sub_u32 s30, s29, 16\ns_branch L_go_z")
    A("L_not_f1:")
    A("s_sub_u32 s31, s28, 5")
    go("s_cmp_lt_u32 s29, 14", "L_x2")
    A("s_cmp_lt_u32 s29, 28\ns_cbranch_scc0 L_not_f2\ns_sub_u32 s30, s29, 14")
    if opts.get("f2x", 1):
        A("s_sub_u32 s33, s30, 7\ns_cmp_ge_u32 s30, 7\ns_cselect_b32 s30, s33, s30\ns_cselect_b32 s33, 1, 0\ns_lshl_b32 s30, s30, 1\ns_add_u32 s30, s30, s31\ns_mov_b32 s31, s33")
    A("s_branch L_f2\nL_not_f2:")
    A("s_lshl_b32 s30, s31, 2\ns_add_u32 s30, s30, s29\ns_sub_u32 s30, s30, 24")
    A("L_go_z:\ns_branch L_z")
    A("L_exit:")
    A("s_endpgm")
    for hop, label in far:
        A(f"{hop}:\ns_branch {label}")
    A("L_timeout:")
    A(f"s_mov_b64 exec, -1\ns_add_u32 s29, {s(S_ID)}, 0x1000\nv_mov_b32 v1, s29\nv_mov_b32 v2, {D_ERR}")
    A(f"buffer_store_dword v1, v2, {s(DB, 4)}, 0 offen\ns_endpgm")

    gen_work.SLEEP = opts.get("slp", 2)
    gen_work.WNT = " nt" if opts.get("wnt") else ""
    A("L_chain_a:")
    gen_chain_a(A, opts)
    A("L_chain_b:")
    gen_chain_b(A, opts)
    A("L_chain_f:")
    gen_chain_f(A, opts)
    A("L_chain_g:")
    gen_chain_g(A, opts)
    for lab, fn in (("y", gen_work.gen_y), ("z", gen_work.gen_z), ("x1", gen_work.gen_x1), ("x2", gen_work.gen_x2), ("f1", gen_work.gen_f1), ("f2", gen_work.gen_f2)):
        A(f"L_{lab}:")
        if opts.get("no_" + lab):
            A("s_endpgm")
        else:
            fn(A, opts)
```

```python
from asmlib import v, a, s
from layout import *
from common import *
from gen_prep import f32, load_srd, xor_reduce, chunk_pos
import math

MF = "v_mfma_f32_16x16x32_bf16"
SLEEP = 2
Y_TEAMS, X1_TEAMS, X2_TEAMS, F_TEAMS = 3, 3, 2, 2


def tmark(A, opts, k):
    if opts.get("tailm"):
        mark(A, opts, k)


def set_flag(A, soff, t):
    A(f"v_mov_b32 {v(t)}, {s(S_NONCE)}\nv_lshrrev_b32 {v(t + 1)}, 2, v3\nv_and_b32 {v(t + 1)}, 124, {v(t + 1)}")
    A(f"buffer_store_dword {v(t)}, {v(t + 1)}, {s(WS, 4)}, {s(soff)} offen sc1")


def paired_addr(A, d0, d1):
    for vv, d in enumerate((d0, d1)):
        A(f"v_lshrrev_b32 v4, 1, v1\nv_add_u32 v4, {8 * vv}, v4")
        chunk_pos(A, d, 4, 2, 5)
        A(f"v_and_b32 v4, 1, v1\nv_mul_u32_u24 v4, {14 * KB}, v4\nv_add_u32 {v(d)}, {v(d)}, v4")


def drain_unless_last(A, opts, sstep):
    if not opts.get("fast63", 1):
        A("s_waitcnt vmcnt(0)")
        return
    sk = A.new("nd")
    A(f"s_cmp_eq_u32 {s(sstep)}, 63\ns_cbranch_scc1 {sk}\ns_waitcnt vmcnt(0)\n{sk}:")


def clean(A, regs):
    for r in regs:
        A(f"v_min_u32 {v(r)}, -2, {v(r)}")


def verify_last(A, opts, sstep, regs, t, retry, younger=0):
    if not opts.get("fast63", 1):
        return
    sk = A.new("vl")
    A(f"s_cmp_eq_u32 {s(sstep)}, 63\ns_cbranch_scc0 {sk}")
    poll_guard(A)
    A(f"s_waitcnt vmcnt({younger})")
    sentinel_check(A, regs, t, retry)
    A(f"{sk}:")


def seg_dma(A, sx, sm0, cnt=None):
    for q, n in ((0, 4), (1, 3)):
        A(f"s_add_u32 s33, {s(sm0)}, {q * 4096}\ns_mov_b32 m0, s33\ns_add_u32 s34, {s(sx)}, {q * 4096}")
        for k in range(n):
            t = f"buffer_load_dwordx4 v3, {s(WS, 4)}, s34 offen offset:{k * 1024} sc1 lds"
            cnt.op(t, "x") if cnt else A(t)


def gen_y(A, opts):
    ACC, XOP, PK, XR, T = 4, 32, 48, 76, 78
    sS, sX, sM0, sY, sF = 44, 45, 46, 47, 48
    vm = Cnt(A, "vmcnt", 63)
    A(f"s_mov_b32 {s(sS)}, s31\ns_mul_i32 {s(sM0)}, {s(S_W)}, {7 * KB}")
    A(f"s_mul_i32 {s(sX)}, s31, {28 * KB}\ns_add_u32 {s(sX)}, {s(sX)}, {s(sM0)}\ns_add_u32 {s(sX)}, {s(sX)}, {XF}")
    A(f"s_mul_i32 s35, s30, {FRAG_H}\ns_mul_i32 s36, {s(S_W)}, {7 * 14 * KB}\ns_add_u32 s35, s35, s36\ns_add_u32 s35, s35, {BF}")
    A(f"s_mul_i32 s33, {s(S_W)}, 7\nv_min_u32 v4, 6, v0\nv_add_u32 v4, s33, v4\nv_lshrrev_b32 v4, 2, v4\ns_mul_i32 s33, s30, 7\ns_add_u32 s33, s33, 112\nv_add_u32 v4, s33, v4")
    load_pieces(A, [(14, lambda i=i: frag_loads(A, 35, [((i * 14 + ks) * 4, (i * 14 + ks) * KB) for ks in range(14)])) for i in range(7)], 4, (7, lambda: seg_dma(A, sX, sM0)))
    A(f"s_lshl_b32 s33, s31, 4\ns_add_u32 s33, s33, s30\ns_mul_i32 {s(sY)}, s33, {28 * KB}\ns_add_u32 {s(sY)}, {s(sY)}, {YF}")
    A(f"s_mul_i32 s33, {s(S_W)}, {7 * KB}\ns_add_u32 {s(sY)}, {s(sY)}, s33")
    A(f"s_mul_i32 {s(sF)}, s31, {FL_STEP}\ns_lshl_b32 s33, s30, 7\ns_add_u32 {s(sF)}, {s(sF)}, s33\ns_add_u32 {s(sF)}, {s(sF)}, {FY}")
    paired_addr(A, XR, XR + 1)
    top, nodma, noflag, done = (A.new(x) for x in ("y_top", "y_nodma", "y_nofl", "y_done"))
    A("s_waitcnt vmcnt(0)\ns_barrier")
    mark(A, opts, 1)
    A(f"{top}:")
    A(f"s_add_u32 s33, {s(sS)}, {Y_TEAMS}\ns_cmp_ge_u32 s33, 64\ns_cbranch_scc1 {nodma}\ns_cmp_lt_u32 {s(sS)}, {Y_TEAMS}\ns_cbranch_scc1 {nodma}")
    A(f"s_add_u32 {s(sX)}, {s(sX)}, {Y_TEAMS * 28 * KB}\ns_xor_b32 {s(sM0)}, {s(sM0)}, 0x8000")
    seg_dma(A, sX, sM0)
    A(f"{nodma}:")
    if opts.get("ypace"):
        lp, go = A.new("y_pace"), A.new("y_go")
        A(f"s_sub_u32 s33, {s(sS)}, {opts['ypace']}\ns_cbranch_scc1 {go}\ns_lshl_b32 s33, s33, 13\ns_add_u32 s33, s33, {XM}\nv_mov_b32 {v(T + 1)}, 0")
        A(f"{lp}:\nbuffer_load_dword {v(T)}, {v(T + 1)}, {s(WS, 4)}, s33 offen sc1")
        poll_guard(A)
        A(f"s_waitcnt vmcnt(0)\nv_cmp_eq_u32 vcc, -1, {v(T)}\ns_cbranch_vccz {go}\ns_sleep 8\ns_branch {lp}\n{go}:")
    lg = Cnt(A, "lgkmcnt", 15)
    rd = lambda n: lg.op(f"ds_read_b128 {v(XOP + 4 * (n % 4), 4)}, {v(XR + n // 14)} offset:{(n % 14) * KB}", f"x{n}")
    for n in range(3):
        rd(n)
    for tt in range(2):
        for ks in range(14):
            n = tt * 14 + ks
            if n + 3 < 28:
                rd(n + 3)
            lg.wait(f"x{n}")
            for i in range(7):
                c = "0" if ks == 0 else v(ACC + 4 * i, 4)
                A(f"{MF} {v(ACC + 4 * i, 4)}, {v(XOP + 4 * (n % 4), 4)}, {wreg((i * 14 + ks) * 4, 4)}, {c}")
        for i in range(7):
            for b in range(2):
                A(f"v_cvt_pk_bf16_f32 {v(PK + 4 * i + 2 * tt + b)}, {v(ACC + 4 * i + 2 * b)}, {v(ACC + 4 * i + 2 * b + 1)}")
    A(f"s_add_u32 s33, {s(sY)}, 4096")
    for i in range(7):
        A(f"buffer_store_dwordx4 {v(PK + 4 * i, 4)}, v3, {s(WS, 4)}, {s(sY) if i < 4 else 's33'} offen offset:{(i % 4) * 1024} sc1")
    A(f"v_xor_b32 {v(XR)}, 0x8000, {v(XR)}\nv_xor_b32 {v(XR + 1)}, 0x8000, {v(XR + 1)}")
    A("s_waitcnt vmcnt(0)\ns_barrier")
    A(f"s_cmp_eq_u32 {s(S_W)}, 0\ns_cbranch_scc0 {noflag}")
    set_flag(A, sF, T)
    A(f"{noflag}:")
    later = A.new("y_later")
    A(f"s_cmp_lt_u32 {s(sS)}, {Y_TEAMS}\ns_cbranch_scc0 {later}")
    wait_prep(A, False)
    A(f"s_add_u32 {s(sX)}, {s(sX)}, {Y_TEAMS * 28 * KB}\ns_xor_b32 {s(sM0)}, {s(sM0)}, 0x8000")
    seg_dma(A, sX, sM0)
    A(f"s_waitcnt vmcnt(0)\ns_barrier\n{later}:")
    A(f"s_add_u32 {s(sS)}, {s(sS)}, {Y_TEAMS}\ns_cmp_ge_u32 {s(sS)}, 64\ns_cbranch_scc1 {done}")
    A(f"s_add_u32 {s(sY)}, {s(sY)}, {Y_TEAMS * 16 * 28 * KB}\ns_add_u32 {s(sF)}, {s(sF)}, {Y_TEAMS * FL_STEP}\ns_branch {top}")
    A(f"{done}:")
    if opts.get("ypace"):
        flush_stamps(A, opts)
        A("s_endpgm")
        return
    wait_prep(A, True)
    A(f"s_add_u32 s31, s31, {Z_SPLIT}")
    z_loop(A, opts, "s31", Y_TEAMS, 64, False)


Z_SPLIT = 33


def z_loop(A, opts, first, step, end, lagged):
    from gen_chain import SMF, gather_addr, fetch_mem, idx_reg, zero
    MEM, ACC, G0, PK, IDX, GA0, GA1, ZA, T = 4, 32, 60, 76, 90, 91, 92, 93, 94
    sS, sXM, sZ, sF = 44, 45, 46, 47
    gather_addr(A, GA0, GA1)
    idx_reg(A, IDX)
    A(f"v_lshlrev_b32 {v(ZA)}, 3, v0\ns_mov_b32 {s(sS)}, {first}")
    A(f"s_lshl_b32 {s(sXM)}, {s(sS)}, 13\ns_add_u32 {s(sXM)}, {s(sXM)}, {XM}")
    A(f"s_lshl_b32 s33, {s(sS)}, 4\ns_add_u32 s33, s33, s30\ns_mul_i32 {s(sZ)}, s33, 14336\ns_mul_i32 s33, {s(S_W)}, 3584\ns_add_u32 {s(sZ)}, {s(sZ)}, s33\ns_add_u32 {s(sZ)}, {s(sZ)}, {ZF}")
    A(f"s_mul_i32 {s(sF)}, {s(sS)}, {FL_STEP}\ns_lshl_b32 s33, s30, 7\ns_add_u32 {s(sF)}, {s(sF)}, s33\ns_add_u32 {s(sF)}, {s(sF)}, {FZ - (FL_STEP if lagged else 0)}")
    top, noflag = A.new("z_top"), A.new("z_nofl")
    A(f"{top}:")
    for x in zero(ACC, 28):
        A(x)
    fetch_mem(A, {}, G0, GA0, GA1, sXM, T, 0)
    tmark(A, opts, 2)
    lg = Cnt(A, "lgkmcnt", 15)
    for kk in range(7):
        lg.op(f"ds_read_b128 {v(MEM + 4 * kk, 4)}, v3 offset:{kk * 1024}", f"m{kk}")
    if lagged:
        A(f"s_cmp_eq_u32 {s(S_W)}, 0\ns_cbranch_scc0 {noflag}\ns_cmp_eq_u32 {s(sS)}, 0\ns_cbranch_scc1 {noflag}")
        set_flag(A, sF, T)
        A(f"{noflag}:")
    for i in range(7):
        for kk in range(7):
            if i == 0:
                lg.wait(f"m{kk}")
            A(f"{SMF} {v(ACC + 4 * i, 4)}, {v(MEM + 4 * kk, 4)}, {wreg((i * 7 + kk) * 8, 8)}, {v(IDX)}")
    if lagged:
        A("s_barrier")
    for i in range(7):
        for b in range(2):
            A(f"v_cvt_pk_bf16_f32 {v(PK + 2 * i + b)}, {v(ACC + 4 * i + 2 * b)}, {v(ACC + 4 * i + 2 * b + 1)}")
        if not lagged:
            clean(A, (PK + 2 * i, PK + 2 * i + 1))
        A(f"buffer_store_dwordx2 {v(PK + 2 * i, 2)}, {v(ZA)}, {s(WS, 4)}, {s(sZ)} offen offset:{i * 512} sc1")
    if not lagged:
        tmark(A, opts, 3)
        drain_unless_last(A, opts, sS)
        A(f"s_cmp_eq_u32 {s(S_W)}, 0\ns_barrier\ns_cbranch_scc0 {noflag}")
        tmark(A, opts, 4)
        set_flag(A, sF, T)
        A(f"{noflag}:")
    A(f"s_add_u32 {s(sS)}, {s(sS)}, {step}\ns_add_u32 {s(sXM)}, {s(sXM)}, {step * 8192}\ns_add_u32 {s(sZ)}, {s(sZ)}, {step * 16 * 14336}\ns_add_u32 {s(sF)}, {s(sF)}, {step * FL_STEP}")
    A(f"s_cmp_lt_u32 {s(sS)}, {end}\ns_cbranch_scc1 {top}")
    if lagged:
        A("s_waitcnt vmcnt(0)\ns_barrier")
        set_flag(A, sF, T)
        A("s_mov_b32 s31, 63\ns_cmp_lt_u32 s30, 14\ns_cbranch_scc1 L_x2")
    flush_stamps(A, opts)
    A("s_endpgm")


def gen_z(A, opts):
    after_first_y(A, opts)
    wait_prep(A, True)
    vm = Cnt(A, "vmcnt", 63)
    A(f"s_mul_i32 s35, s30, {FRAG_H}\ns_mul_i32 s36, {s(S_W)}, {7 * 14 * KB}\ns_add_u32 s35, s35, s36\ns_add_u32 s35, s35, {BF}")
    load_weights(A, vm, 3, [(lambda i=i: A(f"s_add_u32 s37, s35, {i * 14 * KB}")) for i in range(7)], 37)
    mark(A, opts, 1)
    z_loop(A, opts, 0, 1, 64 if opts.get('ypace') else Z_SPLIT, True)


def wait_flags(A, fv, fa, soff, off=0, sleep=None):
    sleep = SLEEP if sleep is None else sleep
    lp, ok = A.new("wf"), A.new("wfok")
    A(f"{lp}:")
    flag_load(A, fv, fa, s(soff))
    poll_guard(A)
    A("s_waitcnt vmcnt(0)")
    flag_missing(A, [fv])
    A(f"s_cbranch_vccz {ok}\ns_sleep {sleep}\ns_branch {lp}\n{ok}:")


def wait_inputs(A, opts, sstep, fv, fa, soff):
    depth = opts.get("tp", 3)
    if not depth or not opts.get("fast63", 1):
        wait_flags(A, fv, fa, soff)
        return
    fast, lp, ok = A.new("wi_fast"), A.new("wi_lp"), A.new("wi_ok")
    A(f"s_cmp_eq_u32 {s(sstep)}, 63\ns_cbranch_scc1 {fast}")
    wait_flags(A, fv, fa, soff)
    A(f"s_branch {ok}\n{fast}:")
    ld = lambda k: A(f"buffer_load_dword {v(fv + k)}, {v(fa)}, {s(WS, 4)}, {s(soff)} offen sc1")
    for k in range(depth - 1):
        ld(k)
    A(f"{lp}:")
    poll_guard(A)
    for k in range(depth):
        ld((k + depth - 1) % depth)
        A(f"s_waitcnt vmcnt({depth - 1})\nv_cmp_ne_u32 vcc, {s(S_NONCE)}, {v(fv + k)}")
        A(f"s_cbranch_vccz {ok}" if k < depth - 1 else f"s_cbranch_vccnz {lp}")
    A(f"{ok}:")


def after_first_y(A, opts):
    if opts.get("nodelay"):
        return
    out = A.new("afy")
    A(f"s_cmp_eq_u32 {s(S_W)}, 0\ns_cbranch_scc0 {out}\nv_lshlrev_b32 v4, 7, v1\ns_mov_b32 s34, {FY + opts.get('afy', 0) * FL_STEP}")
    wait_flags(A, 6, 4, 34, sleep=16)
    A(f"{out}:\ns_barrier")


def unpack(A, dst, src, n, smask):
    for r in range(n):
        A(f"v_lshlrev_b32 {v(dst + 2 * r)}, 16, {v(src + r)}\nv_and_b32 {v(dst + 2 * r + 1)}, {s(smask)}, {v(src + r)}")


def gen_x1(A, opts):
    from gen_chain import gather_addr, mem_loads, check8
    ACC, XOP, TOP, G, ZERO = 4, 32, 48, 80, 88
    GA0, GA1, XR, KX, KX1, KX3, KX31, MK, MK2, MK3, SW, SR, PA, NEG, T = range(89, 104)
    SXB, SMB, XB = 8192, 24576, 32768
    sS, sX, sM0, sXM, sP, sF, sODD, sP0 = 44, 45, 46, 47, 48, 49, 50, 51
    MASK, ODDM = 56, 72
    after_first_y(A, opts)
    wait_prep(A, True)
    vm = Cnt(A, "vmcnt", 63)
    A(f"s_mov_b32 {s(sS)}, s31\ns_mul_i32 s35, {s(S_W)}, {7 * KB}\ns_add_u32 {s(sM0)}, s35, {XB}")
    A(f"s_mul_i32 {s(sX)}, s31, {28 * KB}\ns_add_u32 {s(sX)}, {s(sX)}, s35\ns_add_u32 {s(sX)}, {s(sX)}, {XF}")
    seg_dma(A, sX, sM0, vm)
    A(f"s_and_b32 {s(sODD)}, {s(S_W)}, 1\ns_mul_i32 s33, {s(S_W)}, 7\ns_add_u32 {s(sP0)}, s33, {s(sODD)}\ns_lshr_b32 {s(sP0)}, {s(sP0)}, 1")
    A(f"s_mul_i32 s34, s30, {FRAG_H}\ns_mul_i32 s33, {s(S_W)}, {7 * 14 * KB}\ns_add_u32 s34, s34, s33")
    if AF:
        A(f"s_add_u32 s34, s34, {AF}")
    A(f"s_mul_i32 s35, {s(sODD)}, {14 * KB}\ns_add_u32 s35, s35, s34\ns_add_u32 s36, s34, {6 * 14 * KB}\ns_cmp_eq_u32 {s(sODD)}, 0\ns_cselect_b32 s36, s36, s34")
    A(f"s_cselect_b64 {s(ODDM, 2)}, 0, -1")
    tiles = [(lambda i=i: A(f"s_add_u32 s37, s35, {i * 14 * KB}")) for i in range(6)] + [lambda: A("s_mov_b32 s37, s36")]
    load_weights(A, vm, 3, tiles, 37)
    gather_addr(A, GA0, GA1)
    A(f"v_mov_b32 {v(ZERO)}, 0\nv_mov_b32 {v(NEG)}, {f32(-1.0e9 * math.log2(math.e))}")
    chunk_pos(A, XR, 1, 2, 4)
    paired_addr(A, KX, KX1)
    A(f"v_add_u32 {v(XR)}, {XB}, {v(XR)}")
    A(f"s_lshl_b32 s33, {s(sP0)}, 10\ns_add_u32 s33, s33, {XB}\ns_lshl_b32 s34, {s(sODD)}, 12\ns_sub_u32 s34, 3072, s34")
    for r in (KX, KX1):
        A(f"v_add_u32 {v(r)}, s33, {v(r)}\nv_add_u32 {v(r + 2)}, s34, {v(r)}")
    A(f"v_and_b32 v4, 7, v1\nv_lshlrev_b32 v4, 4, v4\nv_lshrrev_b32 v5, 1, v2\nv_lshl_add_u32 v4, v5, 8, v4\nv_and_b32 v5, 1, v2\nv_lshl_add_u32 v4, v5, 3, v4")
    A(f"s_lshl_b32 s33, {s(sP0)}, 9\nv_add_u32 {v(MK)}, s33, v4\nv_add_u32 {v(MK2)}, 1024, {v(MK)}")
    A(f"s_lshl_b32 s34, {s(sODD)}, 11\ns_sub_u32 s34, 1536, s34\nv_add_u32 {v(MK3)}, s34, {v(MK)}")
    A(f"s_lshl_b32 s33, {s(S_W)}, 10\nv_add_u32 {v(SW)}, s33, v3\ns_lshl_b32 s33, {s(sODD)}, 12\nv_add_u32 {v(SR)}, s33, v3\nv_lshlrev_b32 {v(PA)}, 3, v0")
    A(f"s_lshl_b32 s33, {s(sODD)}, 4\nv_add_u32 v5, s33, v1")
    for kt in range(2):
        for q in range(4):
            A(f"v_lshl_add_u32 v4, v2, 1, {8 * kt + (q >> 1) + 16 * (q & 1)}\nv_cmp_le_u32 {s(MASK + 8 * kt + 2 * q, 2)}, v4, v5")
    A(f"s_lshl_b32 {s(sXM)}, s31, 13\ns_add_u32 {s(sXM)}, {s(sXM)}, {XM}")
    A(f"s_lshl_b32 s33, s31, 4\ns_add_u32 s33, s33, s30\ns_lshl_b32 s33, s33, 1\ns_add_u32 s33, s33, {s(sODD)}\ns_mul_i32 {s(sP)}, s33, 1536\ns_add_u32 {s(sP)}, {s(sP)}, {PF}")
    A(f"s_lshl_b32 s33, s30, 1\ns_add_u32 s33, s33, {s(sODD)}\ns_lshl_b32 s33, s33, 7\ns_mul_i32 {s(sF)}, s31, {FL_STEP}\ns_add_u32 {s(sF)}, {s(sF)}, s33\ns_add_u32 {s(sF)}, {s(sF)}, {FP}")
    top, nodma, nxt, lp, ok = (A.new("x1_" + x) for x in ("top", "nodma", "next", "poll", "ok"))
    A("s_waitcnt vmcnt(0)")
    mark(A, opts, 1)
    A(f"{top}:")
    A("s_barrier")
    A(f"s_add_u32 s33, {s(sS)}, {X1_TEAMS}\ns_cmp_ge_u32 s33, 64\ns_cbranch_scc1 {nodma}")
    A(f"s_add_u32 {s(sX)}, {s(sX)}, {X1_TEAMS * 28 * KB}\ns_xor_b32 {s(sM0)}, {s(sM0)}, 0x18000")
    seg_dma(A, sX, sM0)
    A(f"{nodma}:")
    lg = Cnt(A, "lgkmcnt", 15)
    rd = lambda n: lg.op(f"ds_read_b128 {v(XOP + 4 * (n % 4), 4)}, {v(XR)} offset:{n * KB}", f"x{n}")
    for n in range(3):
        rd(n)
    for tt in range(2):
        for ks in range(14):
            n = tt * 14 + ks
            if n + 3 < 28:
                rd(n + 3)
            lg.wait(f"x{n}")
            for i in range(7):
                c = "0" if ks == 0 else v(ACC + 4 * i, 4)
                A(f"{MF} {v(ACC + 4 * i, 4)}, {wreg((i * 14 + ks) * 4, 4)}, {v(XOP + 4 * (n % 4), 4)}, {c}")
        for i in range(6):
            for b in range(2):
                A(f"v_cvt_pk_bf16_f32 {v(TOP + 16 * tt + 2 * i + b)}, {v(ACC + 4 * i + 2 * b)}, {v(ACC + 4 * i + 2 * b + 1)}")
        for b in range(2):
            A(f"v_cvt_pk_bf16_f32 {v(T + b)}, {v(ACC + 24 + 2 * b)}, {v(ACC + 25 + 2 * b)}")
        for b in range(2):
            A(f"v_cndmask_b32 {v(TOP + 16 * tt + 12 + b)}, {v(T + b)}, {v(ZERO)}, {s(ODDM, 2)}")
            A(f"v_cndmask_b32 {v(TOP + 16 * tt + 14 + b)}, {v(ZERO)}, {v(T + b)}, {s(ODDM, 2)}")
    for half in range(2):
        for b in (2 * half, 2 * half + 1):
            for kt in range(2):
                reg, o = (KX3 + kt, 0) if b == 3 else (KX + kt, b * KB)
                lg.op(f"ds_read_b128 {v(XOP + 8 * (b % 2) + 4 * kt, 4)}, {v(reg)} offset:{o}", f"k{b}")
        for b in (2 * half, 2 * half + 1):
            lg.wait(f"k{b}")
            for j in range(4):
                kt, tt = j % 2, j // 2
                c = "0" if b == 0 else v(ACC + 4 * j, 4)
                A(f"{MF} {v(ACC + 4 * j, 4)}, {v(XOP + 8 * (b % 2) + 4 * kt, 4)}, {v(TOP + 16 * tt + 4 * b, 4)}, {c}")
    for r in (XR, KX, KX1, KX3, KX31):
        A(f"v_xor_b32 {v(r)}, 0x18000, {v(r)}")
    for j in range(4):
        A(f"ds_write_b128 {v(SW)}, {v(ACC + 4 * j, 4)} offset:{SXB + (j % 2) * 8192 + (j // 2) * 4096}")
    A(f"{lp}:")
    mem_loads(A, G, GA0, GA1, sXM)
    poll_guard(A)
    A("s_waitcnt vmcnt(0)")
    A(f"ds_write_b128 {v(GA0)}, {v(G, 4)}\nds_write_b128 {v(GA1)}, {v(G + 4, 4)}")
    check8(A, G, T)
    A(f"s_cbranch_vccz {ok}\ns_sleep 2\ns_branch {lp}\n{ok}:")
    tmark(A, opts, 2)
    A("s_waitcnt lgkmcnt(0)\ns_barrier")
    lg.q = []
    for b in range(4):
        reg, o = [(MK, 0), (MK, 128), (MK2, 0), (MK3, 0)][b]
        for x in range(2):
            lg.op(f"ds_read2_b32 {v(XOP + 4 * b + 2 * x, 2)}, {v(reg)} offset0:{o + x} offset1:{o + x + 32}", f"m{b}")
    for b in range(4):
        lg.wait(f"m{b}")
        for tt in range(2):
            c = "0" if b == 0 else v(ACC + 4 * tt, 4)
            A(f"{MF} {v(ACC + 4 * tt, 4)}, {v(XOP + 4 * b, 4)}, {v(TOP + 16 * tt + 4 * b, 4)}, {c}")
    for tt in range(2):
        A(f"ds_write_b128 {v(SW)}, {v(ACC + 4 * tt, 4)} offset:{SMB + tt * 4096}")
    A(f"s_cmp_ge_u32 {s(S_W)}, 2")
    A(f"s_waitcnt lgkmcnt(0)\ns_barrier\ns_cbranch_scc1 {nxt}")
    R, S = TOP, ACC
    for k, (reg, base) in enumerate(((SR, SMB), (SR, SXB), (SR, SXB + 8192))):
        for w in range(4):
            A(f"ds_read_b128 {v((XOP if k == 2 else R + 16 * k) + 4 * w, 4)}, {v(reg)} offset:{base + w * KB}")
    for k, d in enumerate((8, 0, 4)):
        b = XOP if k == 2 else R + 16 * k
        A(f"s_waitcnt lgkmcnt({8 - 4 * k})")
        for q in range(0, 4, 2):
            A(f"v_pk_add_f32 {v(b + q, 2)}, {v(b + q, 2)}, {v(b + 4 + q, 2)}\nv_pk_add_f32 {v(b + 8 + q, 2)}, {v(b + 8 + q, 2)}, {v(b + 12 + q, 2)}")
        for q in range(0, 4, 2):
            A(f"v_pk_add_f32 {v(S + d + q, 2)}, {v(b + q, 2)}, {v(b + 8 + q, 2)}")
    for r in range(8):
        A(f"v_cndmask_b32 {v(S + r)}, {v(NEG)}, {v(S + r)}, {s(MASK + 2 * r, 2)}")
    mx, sm = T, T + 1
    A(f"v_max3_f32 {v(mx)}, {v(S)}, {v(S + 1)}, {v(S + 2)}")
    for r in range(3, 11, 2):
        A(f"v_max3_f32 {v(mx)}, {v(mx)}, {v(S + r)}, {v(S + r + 1)}")
    A(f"v_max_f32 {v(mx)}, {v(mx)}, {v(S + 11)}")
    xor_reduce(A, "v_max_f32", mx, T + 2)
    for r in range(12):
        A(f"v_sub_f32 {v(S + r)}, {v(S + r)}, {v(mx)}")
    for r in range(12):
        A(f"v_exp_f32 {v(S + r)}, {v(S + r)}")
    A(f"v_add_f32 {v(sm)}, {v(S + 8)}, {v(S + 9)}\nv_add_f32 {v(T + 2)}, {v(S + 10)}, {v(S + 11)}\nv_add_f32 {v(sm)}, {v(sm)}, {v(T + 2)}\nv_mul_f32 {v(sm)}, 0.5, {v(sm)}")
    for r in range(8):
        A(f"v_add_f32 {v(sm)}, {v(sm)}, {v(S + r)}")
    xor_reduce(A, "v_add_f32", sm, T + 2)
    A(f"v_rcp_f32 {v(sm)}, {v(sm)}")
    for r in range(12):
        A(f"v_mul_f32 {v(S + r)}, {v(S + r)}, {v(sm)}")
    for r in range(6):
        A(f"v_cvt_pk_bf16_f32 {v(G + r)}, {v(S + 2 * r)}, {v(S + 2 * r + 1)}")
    clean(A, range(G, G + 6))
    A(f"buffer_store_dwordx4 {v(G, 4)}, v3, {s(WS, 4)}, {s(sP)} offen sc1")
    A(f"buffer_store_dwordx2 {v(G + 4, 2)}, {v(PA)}, {s(WS, 4)}, {s(sP)} offen offset:1024 sc1")
    tmark(A, opts, 3)
    drain_unless_last(A, opts, sS)
    tmark(A, opts, 4)
    set_flag(A, sF, T)
    A(f"{nxt}:")
    A(f"s_add_u32 {s(sS)}, {s(sS)}, {X1_TEAMS}\ns_add_u32 {s(sXM)}, {s(sXM)}, {X1_TEAMS * 8192}\ns_add_u32 {s(sP)}, {s(sP)}, {X1_TEAMS * 32 * 1536}\ns_add_u32 {s(sF)}, {s(sF)}, {X1_TEAMS * FL_STEP}")
    A(f"s_cmp_lt_u32 {s(sS)}, 64\ns_cbranch_scc1 {top}")
    flush_stamps(A, opts)
    A("s_endpgm")


def reduce_tiles(A, R, out, rr, base):
    for vv in range(2):
        for w in range(4):
            A(f"ds_read_b128 {v(R + 16 * vv + 4 * w, 4)}, {v(rr)} offset:{base + w * 4096 + vv * KB}")
    for vv in range(2):
        b = R + 16 * vv
        A(f"s_waitcnt lgkmcnt({4 - 4 * vv})")
        for q in (0, 2):
            A(f"v_pk_add_f32 {v(b + q, 2)}, {v(b + q, 2)}, {v(b + 4 + q, 2)}\nv_pk_add_f32 {v(b + 8 + q, 2)}, {v(b + 8 + q, 2)}, {v(b + 12 + q, 2)}")
        for q in (0, 2):
            A(f"v_pk_add_f32 {v(out + 4 * vv + q, 2)}, {v(b + q, 2)}, {v(b + 8 + q, 2)}")


def gen_x2(A, opts):
    Y, PX, PM, Z, ACC, XV, R, O = 4, 36, 68, 84, 100, 116, 120, 152
    FA1, FA2, _, L8, RW, RR, XA, SA, T = range(160, 169)
    YN, FV = 172, 208
    X_ = 16
    sS, sY, sP, sZ, sFL, sXO, sH, sST, sF, sMASK = range(44, 54)
    b = load_srd(A, X_, "x", 40)
    A(f"s_mov_b32 {s(sS)}, s31\ns_mov_b32 {s(sMASK)}, 0xffff0000\ns_and_b32 s36, {s(S_W)}, 1")
    A(f"v_lshlrev_b32 {v(FA1)}, 7, v1\nv_lshlrev_b32 {v(L8)}, 3, v0")
    A(f"v_and_b32 v4, 31, v0\nv_lshlrev_b32 v4, 7, v4\nv_add_u32 v4, {FP - FL}, v4\nv_add_u32 v5, {FZ - FL}, {v(FA1)}\nv_cmp_gt_u32 vcc, 32, v0\nv_cndmask_b32 {v(FA2)}, v5, v4, vcc")
    A(f"v_add_u32 v4, {X2_TEAMS * FL_STEP}, {v(FA1)}\nv_cmp_gt_u32 vcc, 48, v0\nv_cndmask_b32 {v(T + 2)}, v4, {v(FA2)}, vcc")
    A(f"s_lshl_b32 s33, {s(S_W)}, 12\nv_add_u32 {v(RW)}, s33, v3\ns_lshl_b32 s33, s36, 11\nv_add_u32 {v(RR)}, s33, v3")
    A(f"v_mul_u32_u24 v4, 896, v1\nv_lshl_add_u32 {v(XA)}, v2, 4, v4")
    A(f"v_lshlrev_b32 v4, 3, v1\nv_mov_b32 v5, {OOB}\nv_cmp_gt_u32 vcc, 16, v0\nv_cndmask_b32 {v(SA)}, v5, v4, vcc")
    A(f"s_lshl_b32 s33, s31, 4\ns_lshl_b32 s34, {s(S_W)}, 2\ns_add_u32 s33, s33, s34")
    A(f"s_mul_i32 {s(sY)}, s33, {28 * KB}\ns_lshl_b32 s34, s30, 11\ns_add_u32 {s(sY)}, {s(sY)}, s34\ns_add_u32 {s(sY)}, {s(sY)}, {YF}")
    A(f"s_mul_i32 {s(sP)}, s33, 3072\ns_add_u32 {s(sP)}, {s(sP)}, {PF}")
    A(f"s_mul_i32 {s(sZ)}, s33, 14336\ns_lshl_b32 s34, s30, 10\ns_add_u32 {s(sZ)}, {s(sZ)}, s34\ns_add_u32 {s(sZ)}, {s(sZ)}, {ZF}")
    A(f"s_mul_i32 {s(sFL)}, s31, {FL_STEP}\ns_add_u32 {s(sFL)}, {s(sFL)}, {FL}")
    A(f"s_lshl_b32 s33, s31, 1\ns_add_u32 s33, s33, s36")
    A(f"s_mul_i32 {s(sXO)}, s33, {16 * 896}\ns_lshl_b32 s34, s30, 6\ns_add_u32 {s(sXO)}, {s(sXO)}, s34")
    A(f"s_mul_i32 s33, s33, 14\ns_add_u32 s33, s33, s30\ns_lshl_b32 {s(sH)}, s33, 10\ns_add_u32 {s(sH)}, {s(sH)}, {HF}\ns_lshl_b32 {s(sST)}, s33, 7\ns_add_u32 {s(sST)}, {s(sST)}, {ST}")
    A(f"s_lshl_b32 s33, s30, 1\ns_add_u32 s33, s33, s36\ns_lshl_b32 s33, s33, 7\ns_add_u32 {s(sF)}, {s(sFL)}, s33\ns_add_u32 {s(sF)}, {s(sF)}, {FH - FL}")
    A("s_waitcnt lgkmcnt(0)")
    b()
    top, nxt = A.new("x2_top"), A.new("x2_next")
    mark(A, opts, 1)
    def y_loads(cnt=None):
        for hh in range(4):
            A(f"s_add_u32 s33, {s(sY)}, {hh * 28 * KB}")
            for vv in range(2):
                t = f"buffer_load_dwordx4 {v(YN + 8 * hh + 4 * vv, 4)}, v3, {s(WS, 4)}, s33 offen offset:{vv * KB} sc1"
                cnt.op(t) if cnt else A(t)
        t = f"buffer_load_dwordx4 {v(YN + 32, 4)}, {v(XA)}, {s(X_, 4)}, {s(sXO)} offen nt"
        cnt.op(t) if cnt else A(t)

    wait_flags(A, FV, FA1, sFL)
    y_loads()
    A(f"{top}:")
    A(f"s_cmp_lt_u32 {s(sS)}, {63 - X2_TEAMS}\ns_cselect_b64 vcc, -1, 0\nv_cndmask_b32 {v(T + 3)}, {v(FA2)}, {v(T + 2)}, vcc")
    A(f"s_cselect_b32 s33, {X2_TEAMS * 16 * 28 * KB}, 0\ns_cselect_b32 s34, {X2_TEAMS * 32 * 896}, 0\ns_add_u32 {s(sY)}, {s(sY)}, s33\ns_add_u32 {s(sXO)}, {s(sXO)}, s34\ns_waitcnt vmcnt(0)")
    for r in range(0, 32, 2):
        A(f"v_mov_b64 {v(Y + r, 2)}, {v(YN + r, 2)}")
    A(f"v_mov_b64 {v(XV, 2)}, {v(YN + 32, 2)}\nv_mov_b64 {v(XV + 2, 2)}, {v(YN + 34, 2)}")
    wait_inputs(A, opts, sS, FV, T + 3, sFL)
    tmark(A, opts, 2)
    again = A.new("x2_again")
    A(f"s_barrier\n{again}:")
    vm = Cnt(A, "vmcnt", 63)
    for hh in range(4):
        A(f"s_add_u32 s33, {s(sP)}, {hh * 3072}\ns_add_u32 s34, {s(sZ)}, {hh * 14336}")
        for tt in range(2):
            vm.op(f"buffer_load_dwordx4 {v(PX + 8 * hh + 4 * tt, 4)}, v3, {s(WS, 4)}, s33 offen offset:{tt * 1536} sc1", f"x{hh}")
        for tt in range(2):
            vm.op(f"buffer_load_dwordx2 {v(PM + 8 * (hh // 2) + 4 * tt + 2 * (hh % 2), 2)}, {v(L8)}, {s(WS, 4)}, s33 offen offset:{tt * 1536 + 1024} sc1", f"m{hh // 2}")
        for vv in range(2):
            vm.op(f"buffer_load_dwordx2 {v(Z + 8 * (hh // 2) + 4 * vv + 2 * (hh % 2), 2)}, {v(L8)}, {s(WS, 4)}, s34 offen offset:{vv * 512} sc1", f"m{hh // 2}")
    y_loads(vm)
    for hh in range(4):
        vm.wait(f"x{hh}")
        for tt in range(2):
            for vv in range(2):
                d = v(ACC + 8 * tt + 4 * vv, 4)
                A(f"{MF} {d}, {v(Y + 8 * hh + 4 * vv, 4)}, {v(PX + 8 * hh + 4 * tt, 4)}, {'0' if hh == 0 else d}")
        if hh % 2:
            vm.wait(f"m{hh // 2}")
            for tt in range(2):
                for vv in range(2):
                    d = v(ACC + 8 * tt + 4 * vv, 4)
                    A(f"{MF} {d}, {v(Z + 8 * (hh // 2) + 4 * vv, 4)}, {v(PM + 8 * (hh // 2) + 4 * tt, 4)}, {d}")
    verify_last(A, opts, sS, range(PX, ACC), T, again, 9)
    for k in range(4):
        A(f"ds_write_b128 {v(RW)}, {v(ACC + 4 * k, 4)} offset:{k * KB}")
    A(f"s_cmp_ge_u32 {s(S_W)}, 2\ns_waitcnt lgkmcnt(0)\ns_barrier\ns_cbranch_scc1 {nxt}")
    reduce_tiles(A, R, O, RR, 0)
    tmark(A, opts, 3)
    for r in range(4):
        A(f"v_cvt_pk_bf16_f32 {v(R + r)}, {v(O + 2 * r)}, {v(O + 2 * r + 1)}")
    unpack(A, O, R, 4, sMASK)
    unpack(A, R + 8, XV, 4, sMASK)
    for r in range(8):
        A(f"v_add_f32 {v(O + r)}, {v(O + r)}, {v(R + 8 + r)}")
    for r in range(4):
        A(f"v_cvt_pk_bf16_f32 {v(R + r)}, {v(O + 2 * r)}, {v(O + 2 * r + 1)}")
    clean(A, range(R, R + 4))
    A(f"buffer_store_dwordx4 {v(R, 4)}, v3, {s(WS, 4)}, {s(sH)} offen sc1")
    unpack(A, O, R, 4, sMASK)
    M = R + 8
    A(f"v_add_f32 {v(M)}, {v(O)}, {v(O + 1)}")
    for r in range(2, 8):
        A(f"v_add_f32 {v(M)}, {v(M)}, {v(O + r)}")
    xor_reduce(A, "v_add_f32", M, T)
    A(f"v_mul_f32 {v(M)}, {f32(1.0 / 32)}, {v(M)}")
    for r in range(8):
        A(f"v_sub_f32 {v(O + r)}, {v(O + r)}, {v(M)}")
    A(f"v_mul_f32 {v(M + 1)}, {v(O)}, {v(O)}")
    for r in range(1, 8):
        A(f"v_fmac_f32 {v(M + 1)}, {v(O + r)}, {v(O + r)}")
    xor_reduce(A, "v_add_f32", M + 1, T)
    clean(A, (M, M + 1))
    A(f"buffer_store_dwordx2 {v(M, 2)}, {v(SA)}, {s(WS, 4)}, {s(sST)} offen sc1")
    tmark(A, opts, 5)
    drain_unless_last(A, opts, sS)
    tmark(A, opts, 4)
    set_flag(A, sF, T)
    A(f"{nxt}:")
    for r, step in ((sS, 1), (sP, 16 * 3072), (sZ, 16 * 14336), (sFL, FL_STEP), (sH, 28 * KB), (sST, 28 * 128), (sF, FL_STEP)):
        A(f"s_add_u32 {s(r)}, {s(r)}, {X2_TEAMS * step}")
    A(f"s_cmp_lt_u32 {s(sS)}, 63\ns_cbranch_scc1 {top}")
    flush_stamps(A, opts)
    A("s_endpgm")


def tr_addr(A, dst, sbase):
    A(f"v_lshrrev_b32 v4, 2, v1\nv_lshlrev_b32 v4, 6, v4\nv_and_b32 v5, 3, v0\nv_lshl_add_u32 v4, v5, 4, v4\nv_lshl_add_u32 v4, v2, 9, v4\nv_add_u32 {v(dst)}, {s(sbase)}, v4")


def row_addr(A, dst, stride):
    A(f"v_lshrrev_b32 v4, 2, v0\nv_mov_b32 v6, {stride}\nv_mul_lo_u32 v4, v4, v6\nv_and_b32 v5, 3, v0\nv_lshl_add_u32 {v(dst)}, v5, 4, v4")


def gen_f1(A, opts):
    H, ACC, CS, B1, SV, U, PK = 4, 60, 68, 76, 84, 92, 100
    FA, _, SA, RA, TR, T = range(108, 114)
    FV = 120
    W_, B_ = 16, 20
    sS, sH, sST, sG, sFH, sF, sMASK, sP = range(44, 52)
    after_first_y(A, opts)
    if opts.get('f1swap'):
        A('s_xor_b32 s31, s31, 1')
    b = [load_srd(A, W_, "w1", 40), load_srd(A, B_, "b1", 42)]
    A(f"s_lshr_b32 s34, {s(S_W)}, 1\ns_and_b32 s35, {s(S_W)}, 1\ns_lshl_b32 {s(sP)}, s30, 1\ns_add_u32 {s(sP)}, {s(sP)}, s34")
    row_addr(A, RA, 3584)
    A(f"s_mul_i32 s36, s34, {28 * KB}")
    tr_addr(A, TR, 36)
    A(f"s_mul_i32 s37, s35, {14 * KB}\ns_add_u32 s36, s36, s37\ns_mul_i32 s37, s35, {224 * 3584}\ns_lshl_b32 s38, {s(sP)}, 6\ns_add_u32 s37, s37, s38")
    A(f"v_lshlrev_b32 v7, 4, v2\ns_mov_b32 {s(sMASK)}, 0xffff0000")
    A("s_waitcnt lgkmcnt(0)")
    for f in b:
        f()
    for j in range(14):
        A(f"s_mov_b32 m0, s36\ns_add_u32 s36, s36, 1024\nbuffer_load_dwordx4 {v(RA)}, {s(W_, 4)}, s37 offen nt lds\ns_add_u32 s37, s37, {16 * 3584}")
    A(f"buffer_load_dwordx4 {v(PK, 4)}, v7, {s(B_, 4)}, s38 offen")
    A(f"s_mov_b32 {s(sS)}, s31\ns_lshl_b32 s33, s31, 1\ns_add_u32 s33, s33, s35")
    A(f"s_mul_i32 {s(sH)}, s33, {14 * KB}\ns_add_u32 {s(sH)}, {s(sH)}, {HF}\ns_mul_i32 {s(sST)}, s33, {14 * 128}\ns_add_u32 {s(sST)}, {s(sST)}, {ST}")
    A(f"s_mul_i32 s34, s33, 56\ns_add_u32 s34, s34, {s(sP)}\ns_lshl_b32 {s(sG)}, s34, 10\ns_add_u32 {s(sG)}, {s(sG)}, {GF}")
    A(f"s_mul_i32 {s(sFH)}, s31, {FL_STEP}\ns_lshl_b32 {s(sF)}, s35, 13\ns_lshl_b32 s34, {s(sP)}, 7\ns_add_u32 {s(sF)}, {s(sF)}, s34\ns_add_u32 {s(sF)}, {s(sF)}, {s(sFH)}\ns_add_u32 {s(sF)}, {s(sF)}, {FG}")
    A(f"s_add_u32 {s(sFH)}, {s(sFH)}, {FH}")
    A(f"v_min_u32 {v(FA)}, 13, v1\nv_lshlrev_b32 {v(FA)}, 8, {v(FA)}\ns_lshl_b32 s34, s35, 7\nv_add_u32 {v(FA)}, s34, {v(FA)}")
    A(f"v_lshlrev_b32 {v(SA)}, 7, v2\nv_lshl_add_u32 {v(SA)}, v1, 3, {v(SA)}\nv_add_u32 v4, 1536, {v(SA)}\nv_mov_b32 v5, {OOB}\nv_cmp_gt_u32 vcc, 32, v0\nv_cndmask_b32 {v(T + 5)}, v5, v4, vcc")
    A("s_waitcnt vmcnt(0)\ns_barrier")
    unpack(A, B1, PK, 4, sMASK)
    lg = Cnt(A, "lgkmcnt", 15)
    for vv in range(2):
        for ks in range(14):
            for x in range(2):
                lg.room(1)
                lg.op(f"ds_read_b64_tr_b16 {a((vv * 14 + ks) * 4 + 2 * x, 2)}, {v(TR)} offset:{ks * 2048 + x * 256 + vv * 8}")
    for r in range(4):
        A(f"v_mov_b32 {v(H + r)}, 0x3f803f80")
    lg.drain()
    for ks in range(14):
        for vv in range(2):
            d = v(CS + 4 * vv, 4)
            A(f"{MF} {d}, {a((vv * 14 + ks) * 4, 4)}, {v(H, 4)}, {'0' if ks == 0 else d}")
    K1 = -2.0 * math.sqrt(2.0 / math.pi) * math.log2(math.e)
    A(f"s_mov_b32 s54, {f32(K1 * 0.044715)}\nv_mov_b32 {v(T + 4)}, {f32(K1)}")
    top = A.new("f1_top")
    mark(A, opts, 1)
    A(f"{top}:")
    wait_inputs(A, opts, sS, FV, FA, sFH)
    tmark(A, opts, 2)
    again = A.new("f1_again")
    A(f"{again}:")
    vm = Cnt(A, "vmcnt", 63)
    for k in range(3):
        vm.op(f"buffer_load_dwordx2 {v(SV + 2 * k, 2)}, {v(SA)}, {s(WS, 4)}, {s(sST)} offen offset:{k * 512} sc1", "s")
    vm.op(f"buffer_load_dwordx2 {v(SV + 6, 2)}, {v(T + 5)}, {s(WS, 4)}, {s(sST)} offen sc1", "s")
    A(f"s_mov_b32 s33, {s(sH)}")
    for ks in range(14):
        vm.op(f"buffer_load_dwordx4 {v(H + 4 * ks, 4)}, v3, {s(WS, 4)}, s33 offen offset:{(ks % 4) * KB} sc1", f"h{ks}")
        if ks % 4 == 3:
            A("s_add_u32 s33, s33, 4096")
    vm.wait("s")
    mu, m2, q2 = T, T + 1, T + 2
    A(f"v_add_f32 {v(mu)}, {v(SV)}, {v(SV + 2)}\nv_add_f32 {v(m2)}, {v(SV + 1)}, {v(SV + 3)}\nv_mul_f32 {v(q2)}, {v(SV)}, {v(SV)}\nv_fmac_f32 {v(q2)}, {v(SV + 2)}, {v(SV + 2)}")
    for k in (4, 6):
        A(f"v_add_f32 {v(mu)}, {v(mu)}, {v(SV + k)}\nv_add_f32 {v(m2)}, {v(m2)}, {v(SV + k + 1)}\nv_fmac_f32 {v(q2)}, {v(SV + k)}, {v(SV + k)}")
    A(f"v_fmac_f32 {v(m2)}, {f32(32.0)}, {v(q2)}")
    xor_reduce(A, "v_add_f32", mu, T + 3)
    xor_reduce(A, "v_add_f32", m2, T + 3)
    A(f"v_mul_f32 {v(mu)}, {f32(1.0 / 14)}, {v(mu)}\nv_mul_f32 {v(q2)}, {v(mu)}, {v(mu)}")
    A(f"v_mul_f32 {v(m2)}, {f32(1.0 / 448)}, {v(m2)}\nv_sub_f32 {v(m2)}, {v(m2)}, {v(q2)}\nv_max_f32 {v(m2)}, 0, {v(m2)}\nv_add_f32 {v(m2)}, {f32(1e-5)}, {v(m2)}\nv_rsq_f32 {v(m2)}, {v(m2)}")
    for ks in range(14):
        vm.wait(f"h{ks}")
        for vv in range(2):
            d = v(ACC + 4 * vv, 4)
            A(f"{MF} {d}, {a((vv * 14 + ks) * 4, 4)}, {v(H + 4 * ks, 4)}, {'0' if ks == 0 else d}")
    verify_last(A, opts, sS, list(range(H, H + 56)) + list(range(SV, SV + 8)), U, again)
    tmark(A, opts, 3)
    for r in range(8):
        A(f"v_fma_f32 {v(U + r)}, -{v(mu)}, {v(CS + r)}, {v(ACC + r)}")
    for r in range(8):
        A(f"v_fma_f32 {v(U + r)}, {v(m2)}, {v(U + r)}, {v(B1 + r)}")
    for r in range(8):
        A(f"v_mul_f32 {v(ACC + r)}, {v(U + r)}, {v(U + r)}")
    for r in range(8):
        A(f"v_fma_f32 {v(ACC + r)}, {v(ACC + r)}, s54, {v(T + 4)}")
    for r in range(8):
        A(f"v_mul_f32 {v(ACC + r)}, {v(ACC + r)}, {v(U + r)}")
    for r in range(8):
        A(f"v_exp_f32 {v(ACC + r)}, {v(ACC + r)}")
    for r in range(8):
        A(f"v_add_f32 {v(ACC + r)}, 1.0, {v(ACC + r)}")
    for r in range(8):
        A(f"v_rcp_f32 {v(ACC + r)}, {v(ACC + r)}")
    for r in range(8):
        A(f"v_mul_f32 {v(U + r)}, {v(U + r)}, {v(ACC + r)}")
    for r in range(4):
        A(f"v_cvt_pk_bf16_f32 {v(PK + r)}, {v(U + 2 * r)}, {v(U + 2 * r + 1)}")
    clean(A, range(PK, PK + 4))
    A(f"buffer_store_dwordx4 {v(PK, 4)}, v3, {s(WS, 4)}, {s(sG)} offen sc1")
    tmark(A, opts, 5)
    drain_unless_last(A, opts, sS)
    tmark(A, opts, 4)
    set_flag(A, sF, SV)
    for r, step in ((sS, 1), (sH, 28 * KB), (sST, 28 * 128), (sG, 112 * KB), (sFH, FL_STEP), (sF, FL_STEP)):
        A(f"s_add_u32 {s(r)}, {s(r)}, {F_TEAMS * step}")
    A(f"s_cmp_lt_u32 {s(sS)}, 64\ns_cbranch_scc1 {top}")
    flush_stamps(A, opts)
    A("s_endpgm")


def gen_f2(A, opts):
    Gr, ACC, HV, B2, R, O = 4, 60, 76, 80, 88, 120
    FA, _, RA, TR, RW, RR, OA, T = range(128, 136)
    FV = 138
    W_, B_, O_ = 16, 20, 24
    sS, sG, sH, sO, sFG, sMASK = range(44, 50)
    after_first_y(A, opts)
    b = [load_srd(A, W_, "w2", 40), load_srd(A, B_, "b2", 42), load_srd(A, O_, "out", 38)]
    A(f"s_lshr_b32 s34, s30, 1\ns_and_b32 s35, s30, 1\ns_and_b32 s29, {s(S_W)}, 1")
    row_addr(A, RA, 896)
    A(f"s_mul_i32 s28, {s(S_W)}, {28 * KB}")
    tr_addr(A, TR, 28)
    A(f"v_lshlrev_b32 v7, 4, v2\ns_mov_b32 {s(sMASK)}, 0xffff0000\ns_lshl_b32 s52, s34, 7\ns_lshl_b32 s53, s29, 6\ns_add_u32 s53, s53, s52")
    A("s_waitcnt lgkmcnt(0)")
    for f in b:
        f()
    A(f"buffer_load_dwordx4 {v(HV, 4)}, v7, {s(B_, 4)}, s53 offen")
    lg = Cnt(A, "lgkmcnt", 15)
    for pa in range(2):
        A(f"s_mul_i32 s37, {s(S_W)}, {448 * 896}\ns_add_u32 s37, s37, s52\ns_add_u32 s37, s37, {pa * 64}\ns_mov_b32 s36, s28")
        for j in range(28):
            A(f"s_mov_b32 m0, s36\ns_add_u32 s36, s36, 1024\nbuffer_load_dwordx4 {v(RA)}, {s(W_, 4)}, s37 offen nt lds\ns_add_u32 s37, s37, {16 * 896}")
        A("s_waitcnt vmcnt(0)")
        for vv in range(2):
            for ks in range(14):
                for x in range(2):
                    lg.room(1)
                    lg.op(f"ds_read_b64_tr_b16 {a(((2 * pa + vv) * 14 + ks) * 4 + 2 * x, 2)}, {v(TR)} offset:{ks * 2048 + x * 256 + vv * 8}")
        lg.drain()
    unpack(A, B2, HV, 4, sMASK)
    A(f"s_mov_b32 {s(sS)}, s31\ns_lshl_b32 s33, s31, 1\ns_add_u32 s33, s33, s35")
    A(f"s_mul_i32 s36, s33, 56\ns_mul_i32 s37, {s(S_W)}, 14\ns_add_u32 s36, s36, s37\ns_lshl_b32 {s(sG)}, s36, 10\ns_add_u32 {s(sG)}, {s(sG)}, {GF}")
    A(f"s_mul_i32 s36, s33, 14\ns_lshl_b32 s37, s34, 1\ns_add_u32 s36, s36, s37\ns_add_u32 s36, s36, s29\ns_lshl_b32 {s(sH)}, s36, 10\ns_add_u32 {s(sH)}, {s(sH)}, {HF}")
    A(f"s_mul_i32 {s(sO)}, s33, {16 * 896}\ns_add_u32 {s(sO)}, {s(sO)}, s53\ns_mul_i32 {s(sFG)}, s31, {FL_STEP}\ns_lshl_b32 s36, s35, 13\ns_add_u32 {s(sFG)}, {s(sFG)}, s36\ns_add_u32 {s(sFG)}, {s(sFG)}, {FG}")
    A(f"v_min_u32 {v(FA)}, 55, v0\nv_lshlrev_b32 {v(FA)}, 7, {v(FA)}")
    A(f"s_lshl_b32 s33, {s(S_W)}, 12\nv_add_u32 {v(RW)}, s33, v3\ns_lshl_b32 s33, s29, 11\nv_add_u32 {v(RR)}, s33, v3")
    A(f"v_mul_u32_u24 v4, 896, v1\nv_lshl_add_u32 {v(OA)}, v2, 4, v4")
    top, nxt = A.new("f2_top"), A.new("f2_next")
    mark(A, opts, 1)
    A(f"{top}:")
    wait_inputs(A, opts, sS, FV, FA, sFG)
    tmark(A, opts, 2)
    again = A.new("f2_again")
    A(f"s_barrier\n{again}:")
    vm = Cnt(A, "vmcnt", 63)
    A(f"s_mov_b32 s33, {s(sG)}")
    for ks in range(14):
        vm.op(f"buffer_load_dwordx4 {v(Gr + 4 * ks, 4)}, v3, {s(WS, 4)}, s33 offen offset:{(ks % 4) * KB} sc1", f"g{ks}")
        if ks % 4 == 3:
            A("s_add_u32 s33, s33, 4096")
    vm.op(f"buffer_load_dwordx4 {v(HV, 4)}, v3, {s(WS, 4)}, {s(sH)} offen sc1", "h")
    for ks in range(14):
        vm.wait(f"g{ks}")
        for t in range(4):
            d = v(ACC + 4 * t, 4)
            A(f"{MF} {d}, {a((t * 14 + ks) * 4, 4)}, {v(Gr + 4 * ks, 4)}, {'0' if ks == 0 else d}")
    verify_last(A, opts, sS, list(range(Gr, Gr + 56)) + list(range(HV, HV + 4)), T, again)
    for k in range(4):
        A(f"ds_write_b128 {v(RW)}, {v(ACC + 4 * k, 4)} offset:{k * KB}")
    A(f"s_cmp_ge_u32 {s(S_W)}, 2\ns_waitcnt vmcnt(0) lgkmcnt(0)\ns_barrier\ns_cbranch_scc1 {nxt}")
    reduce_tiles(A, R, O, RR, 0)
    tmark(A, opts, 3)
    unpack(A, R, HV, 4, sMASK)
    for r in range(8):
        A(f"v_add_f32 {v(O + r)}, {v(O + r)}, {v(B2 + r)}")
    for r in range(8):
        A(f"v_add_f32 {v(O + r)}, {v(O + r)}, {v(R + r)}")
    for r in range(4):
        A(f"v_cvt_pk_bf16_f32 {v(R + 8 + r)}, {v(O + 2 * r)}, {v(O + 2 * r + 1)}")
    A(f"buffer_store_dwordx4 {v(R + 8, 4)}, {v(OA)}, {s(O_, 4)}, {s(sO)} offen{['', ' sc1', ' nt'][opts.get('osc', 0)]}")
    A(f"{nxt}:")
    for r, step in ((sS, 1), (sG, 112 * KB), (sH, 28 * KB), (sO, 32 * 896), (sFG, FL_STEP)):
        A(f"s_add_u32 {s(r)}, {s(r)}, {F_TEAMS * step}")
    A(f"s_cmp_lt_u32 {s(sS)}, 64\ns_cbranch_scc1 {top}")
    dbg_time(A, opts, 7, 213)
    amp_mark(A, opts, 4)
    amp_spin(A, opts, 213, (4,))
    flush_stamps(A, opts)
    A("s_endpgm")
```

```python
import os
import sys
from asmlib import Asm
from layout import *

NAME = "sequential_preLN__memory_aug_recurrent_mem_tr__dense_activation_gelu__prompt"
REF = f"cdna_kernels/{NAME}.s.ref"


NOTES = """
;
"""


def descriptor(name, nv, acc, ns=102):
    return f""".p2align 6
.amdhsa_kernel {name}
  .amdhsa_next_free_vgpr {nv}
  .amdhsa_next_free_sgpr {ns}
  .amdhsa_accum_offset {acc}
  .amdhsa_group_segment_fixed_size 0
  .amdhsa_kernarg_size 120
  .amdhsa_user_sgpr_count 2
  .amdhsa_user_sgpr_kernarg_segment_ptr 1
  .amdhsa_system_sgpr_workgroup_id_x 1
.end_amdhsa_kernel
"""


def jitter(A, seed):
    from asmlib import Ins
    out, started, k = [], False, 0
    for it in A.items:
        if it[0] == "i" and started and (it[1].op == "s_barrier" or "_store_" in it[1].op):
            k += 1
            lab = f"L_jit_{k}"
            for t in ("s_cselect_b32 s100, 1, 0", "s_mul_i32 s101, s101, 1664525", "s_add_u32 s101, s101, 1013904223",
                      f"s_bitcmp1_b32 s101, {24 + k % 6}", f"s_cbranch_scc0 {lab}", f"s_sleep {(1, 3, 7, 20)[k % 4]}"):
                out.append(("i", Ins(t)))
            out.append(("l", lab))
            out.append(("i", Ins("s_cmp_eq_u32 s100, 1")))
        out.append(it)
        if it[0] == "i" and it[1].op == "v_readfirstlane_b32" and not started:
            for t in ("s_nop 3", "s_lshl_b32 s101, s2, 2", "s_add_u32 s101, s101, s3", f"s_mul_i32 s101, s101, {seed * 2654435761 & 0xffffffff}"):
                out.append(("i", Ins(t)))
            started = True
    A.items = out


def build(opts):
    head = [ln for ln in open(REF).read().split("\n") if ln.startswith(";") and "@launch" not in ln
            and "Override launch" not in ln and "grid=ceil" not in ln]
    from gen_main import gen_main, MAIN_LDS
    import common
    common.FNT = [' sc1', ' sc1 nt', ' nt'][opts.get('fnt', 0)]
    kn = NAME + "_kernel"
    if opts.get("list"):
        launches = [f"; @launch kernel={kn} grid=(256,1,1) block=(256,1,1) lds={MAIN_LDS}"]
    else:
        launches = [f"; @launch grid=(256,1,1) block=(256,1,1) lds={MAIN_LDS}"]
    A = Asm()
    A(f".globl {kn}")
    gen_main(A, kn, opts)
    desc = descriptor(kn, 512, 256)
    if opts.get("jit"):
        jitter(A, opts["jit"])
    n = A.fix_hazards()
    txt = "\n".join(head + launches + NOTES.strip().split("\n")) + '\n.amdgcn_target "amdgcn-amd-amdhsa--gfx950"\n.text\n' + A.text()
    txt += '.section .rodata,"a"\n' + desc
    return txt, n


if __name__ == "__main__":
    out = sys.argv[1]
    opts = dict(al=6, sa=2, sb=3, tv=1, wl=1, d0=62, d1=62, direct=7, hsl=40, bdef=0, lb=2, la=4, nd=4, pfg=-1, ka_tr=3, ndb=0, gfirst=1, tp=0, slp=2, sfirst=4, pnt=0, wnt=1, yah=2, t0=0)
    for x in sys.argv[2:]:
        k, _, val = x.partition("=")
        opts[k] = int(val) if val else 1
    if "/dev/" in os.path.abspath(out):
        opts["list"] = 1
    txt, n = build(opts)
    open(out, "w").write(txt)
    print(f"wrote {out}: {len(txt)} bytes, {txt.count(chr(10))} lines, {n} hazard pads")
```

```python
from asmlib import v, a, s
from layout import *
from common import *
from gen_prep import chunk_pos

SMF = "v_smfmac_f32_16x16x64_bf16"
MF = "v_mfma_f32_16x16x32_bf16"
N_CHAIN = 32


def chain_mode(A, opts, vm, lab):
    lp = A.new("reg")
    A("v_mov_b32 v5, 68")
    A(f"{lp}:\ns_sleep 16")
    A(f"buffer_load_dword v4, v5, {s(DB, 4)}, 0 offen sc1")
    poll_guard(A)
    vm.drain()
    A(f"v_readfirstlane_b32 s34, v4\ns_and_b32 s35, s34, 0xff\ns_cmp_eq_u32 s35, {N_CHAIN}\ns_cbranch_scc0 {lp}")
    mark(A, opts, 1)
    dbg_time(A, opts, 5, 16)
    if lab:
        A(f"s_waitcnt lgkmcnt(0)\ns_lshr_b32 s34, s34, 8\ns_cmp_eq_u32 s34, 0\ns_cbranch_scc0 {lab}")


def gather_addr(A, ga0, ga1):
    A(f"s_mul_i32 s33, {s(S_W)}, {112 * 16}\nv_add_u32 {v(ga0)}, s33, v3")
    A(f"v_min_u32 {v(ga1)}, 47, v0\nv_lshlrev_b32 {v(ga1)}, 4, {v(ga1)}\ns_add_u32 s33, s33, 1024\nv_add_u32 {v(ga1)}, s33, {v(ga1)}")


def mem_loads(A, G, ga0, ga1, scm):
    A(f"buffer_load_dwordx4 {v(G, 4)}, {v(ga0)}, {s(WS, 4)}, {s(scm)} offen sc1")
    A(f"buffer_load_dwordx4 {v(G + 4, 4)}, {v(ga1)}, {s(WS, 4)}, {s(scm)} offen sc1")


def check8(A, G, t):
    A(f"v_max3_u32 {v(t)}, {v(G)}, {v(G + 1)}, {v(G + 2)}\nv_max3_u32 {v(t + 1)}, {v(G + 3)}, {v(G + 4)}, {v(G + 5)}")
    A(f"v_max3_u32 {v(t)}, {v(t)}, {v(G + 6)}, {v(G + 7)}\nv_max_u32 {v(t)}, {v(t)}, {v(t + 1)}\nv_cmp_eq_u32 vcc, -1, {v(t)}")


def gather_mem(A, opts, G0, G1, ga0, ga1, scm, t, memb, shadow, ka=""):
    lp, ok = A.new("poll"), A.new("ok")
    mem_loads(A, G0, ga0, ga1, scm)
    for x in shadow:
        A(x)
    A(f"{lp}:")
    for cur, other in ((G0, G1), (G1, G0)):
        mem_loads(A, other, ga0, ga1, scm)
        poll_guard(A)
        A(ka)
        A("s_waitcnt vmcnt(2)")
        A(f"ds_write_b128 {v(ga0)}, {v(cur, 4)} offset:{memb}\nds_write_b128 {v(ga1)}, {v(cur + 4, 4)} offset:{memb}")
        check8(A, cur, t)
        if opts.get("solo"):
            A(f"s_cbranch_vccz {ok}\ns_branch {ok}")
        A(f"s_cbranch_vccz {ok}" if cur == G0 else f"s_cbranch_vccnz {lp}")
    A(f"{ok}:")
    stamp(A, opts, 0)
    A("s_waitcnt lgkmcnt(0)\ns_barrier")


def notice_wait(A, opts, F, fa, sreg, off, shadow, sstep=None):
    if opts.get("solo"):
        for x in shadow:
            A(x)
        return
    depth = opts.get("nd", 3)
    lp, ok = A.new("nw"), A.new("nok")
    ld = lambda k: A(f"buffer_load_dword {v(F + k)}, {v(fa)}, {s(WS, 4)}, {s(sreg)} offen offset:{off} sc1")
    for k in range(depth - 1):
        ld(k)
    for x in shadow:
        A(x)
    if sstep is not None:
        A(f"s_cmp_eq_u32 {s(sstep)}, 0\ns_cbranch_scc1 {ok}")
    A(f"{lp}:")
    poll_guard(A)
    for k in range(depth):
        ld((k + depth - 1) % depth)
        A(f"s_waitcnt vmcnt({depth - 1})\nv_cmp_ne_u32 vcc, {s(S_NONCE)}, {v(F + k)}")
        A(f"s_cbranch_vccz {ok}" if k < depth - 1 else f"s_cbranch_vccnz {lp}")
    A(f"{ok}:")


def fetch_mem(A, opts, G, ga0, ga1, scm, t, memb, ka=""):
    lp = A.new("fm")
    A(f"{lp}:")
    mem_loads(A, G, ga0, ga1, scm)
    poll_guard(A)
    A(ka)
    A("s_waitcnt vmcnt(0)")
    A(f"ds_write_b128 {v(ga0)}, {v(G, 4)} offset:{memb}\nds_write_b128 {v(ga1)}, {v(G + 4, 4)} offset:{memb}")
    check8(A, G, t)
    if opts.get("stamps"):
        A("s_add_u32 s53, s53, 1")
    if not opts.get("solo"):
        A(f"s_cbranch_vccnz {lp}")
    stamp(A, opts, 0)
    A("s_waitcnt lgkmcnt(0)\ns_barrier")


def notice(A, val, addr, sreg, off, sc, lanes=64):
    if lanes < 64:
        A(f"s_mov_b64 exec, {hex((1 << lanes) - 1)}")
    A(f"buffer_store_dword {v(val)}, {v(addr)}, {s(WS, 4)}, {s(sreg)} offen offset:{off}{sc}")
    if lanes < 64:
        A("s_mov_b64 exec, -1")


def idx_reg(A, r):
    A(f"v_mov_b32 {v(r)}, 0x44444444\nv_mov_b32 v4, 0xeeeeeeee\nv_cmp_gt_u32 vcc, 8, v1\nv_cndmask_b32 {v(r)}, v4, {v(r)}, vcc")


def zero(r, n):
    return [f"v_mov_b64 {v(r + 2 * k, 2)}, 0" for k in range(n // 2)]


def emit_stream(A, stream, fill):
    for i, m_ in enumerate(stream):
        m_() if callable(m_) else A(m_)
        items = fill.get(i, [])
        for x in items:
            x() if callable(x) else A(x)
        if not items and i + 1 < len(stream):
            A("s_nop 1")


def gen_chain_a(A, opts):
    MEM, ACC, KEY, TSP, SC, PK, IDX = 4, 32, 60, 84, 92, 104, 108
    CK, TR3B, SPARE, FA, MK, MK3, TW0, TW3A, TW3B, TR0, TR3 = range(109, 120)
    XR, SW, SR, PX, PM = 0, 1, 2, 106, 107
    T = 104
    REG = 32768
    XK, TB, SB, MEMB = 0, 16384, 57344, 24576
    sS, sCM, sCP, sXA, sXB, sM0, sP0, sODD, sREG, sEF, sYP, sMB, sQ, sEX, sNP = 44, 45, 46, 47, 48, 49, 50, 51, 52, 54, 55, 56, 57, 58, 72
    vm = Cnt(A, "vmcnt", 63)
    A(f"s_and_b32 {s(sODD)}, {s(S_W)}, 1\ns_mul_i32 s33, {s(S_W)}, 7\ns_add_u32 {s(sP0)}, s33, {s(sODD)}\ns_lshr_b32 {s(sP0)}, {s(sP0)}, 1")
    A(f"s_lshl_b32 {s(sREG)}, {s(S_W)}, 15\ns_mov_b32 {s(sM0)}, {s(sREG)}")
    A(f"s_lshl_b32 {s(sXA)}, {s(sP0)}, 10\ns_add_u32 {s(sXA)}, {s(sXA)}, {XS}\ns_mul_i32 s33, {s(sODD)}, 4092\ns_sub_u32 {s(sXB)}, {s(sXA)}, s33")

    if opts.get("gemu"):
        A(f"s_mul_i32 {s(sXA)}, {s(S_ID)}, {28 * KB}\ns_mul_i32 s33, {s(S_W)}, {3 * KB}\ns_add_u32 {s(sXA)}, {s(sXA)}, s33\ns_add_u32 {s(sXA)}, {s(sXA)}, {opts['gemu'] << 20}\ns_mov_b32 {s(sXB)}, {s(sXA)}")

    def dma(k):
        aa, b = k // 4, k % 4
        pre = f"s_add_u32 s33, {s(sM0)}, {aa * 4096}\ns_mov_b32 m0, s33\n" if b == 0 else ""
        if b in (0, 3):
            pre += f"s_add_u32 s34, {s(sXB if b == 3 else sXA)}, {aa * 14336}\n"
        return pre + f"buffer_load_dwordx4 v3, {s(WS, 4)}, s34 offen offset:{b * 1024} sc1 lds"

    A(f"s_mul_i32 s34, {s(S_ID)}, {FRAG_H}\ns_mul_i32 s33, {s(S_W)}, {7 * 14 * KB}\ns_add_u32 s34, s34, s33")
    if AF:
        A(f"s_add_u32 s34, s34, {AF}")
    A(f"s_mul_i32 s35, {s(sODD)}, {14 * KB}\ns_add_u32 s35, s35, s34\ns_add_u32 s36, s34, {6 * 14 * KB}\ns_cmp_eq_u32 {s(sODD)}, 0\ns_cselect_b32 s36, s36, s34")
    A(f"s_mul_i32 s33, {s(S_ID)}, 7\nv_min_u32 v4, 6, v0\nv_add_u32 v4, s33, v4")

    def piece(kk):
        frag_loads(A, 35, [((i * 7 + kk) * 8 + 4 * u, i * 14 * KB + (2 * kk + u) * KB) for i in range(6) for u in range(2)])
        frag_loads(A, 36, [((42 + kk) * 8 + 4 * u, (2 * kk + u) * KB) for u in range(2)])

    A(f"s_lshl_b32 {s(sQ)}, {s(S_W)}, 11\ns_add_u32 {s(sMB)}, {s(sQ)}, {MEMB}\ns_add_u32 {s(sQ)}, {s(sQ)}, {CM}")
    A(f"s_cmp_eq_u32 {s(S_W)}, 3\ns_cselect_b64 {s(sEX, 2)}, {opts.get('ex3', 1)}, -1")
    fetch = f"buffer_load_dwordx4 v3, {s(WS, 4)}, {s(sQ)} offen sc1 lds\ns_mov_b64 exec, {s(sEX, 2)}\nbuffer_load_dwordx4 v3, {s(WS, 4)}, {s(sQ)} offen offset:1024 sc1 lds\ns_mov_b64 exec, -1"

    def first_inputs():
        for k in range(8):
            A(dma(k))
        A(f"s_mov_b32 m0, {s(sMB)}\ns_nop 0\n" + fetch)

    if opts.get('late'):
        A('v_mov_b32 v20, v4\ns_mov_b32 s60, s35\ns_mov_b32 s61, s36')
        wait_prep(A, True)
        A('v_mov_b32 v4, v20\ns_mov_b32 s35, s60\ns_mov_b32 s36, s61')
        mark(A, opts, 3)
    load_pieces(A, [(14, lambda kk=kk: piece(kk)) for kk in range(7)], 4, (10, first_inputs))
    mark(A, opts, 2)
    idx_reg(A, IDX)
    A(f"v_and_b32 v4, 7, v1\nv_lshlrev_b32 v4, 4, v4\nv_lshl_add_u32 v4, v2, 7, v4\ns_lshl_b32 s33, {s(sP0)}, 9\nv_add_u32 {v(MK)}, s33, v4")
    A(f"s_mul_i32 s34, {s(sODD)}, 2044\ns_sub_u32 s34, {1536 + MEMB}, s34\nv_add_u32 {v(MK3)}, s34, {v(MK)}")
    A(f"v_lshrrev_b32 v4, 1, v2\nv_lshlrev_b32 v4, 3, v4\nv_xor_b32 v4, v4, v1\nv_lshlrev_b32 v4, 3, v4\nv_lshl_add_u32 v4, v2, 7, v4\nv_add_u32 {v(TW0)}, {s(sREG)}, v4")
    A(f"s_add_u32 s34, {s(sREG)}, {TB + 3072}\nv_lshrrev_b32 v4, 5, v0\nv_lshlrev_b32 v4, 2, v4\nv_xor_b32 v4, v4, v0\nv_lshlrev_b32 v4, 3, v4\nv_add_u32 {v(TW3A)}, s34, v4\nv_xor_b32 {v(TW3B)}, 64, {v(TW3A)}\nv_add_u32 {v(TW3B)}, 512, {v(TW3B)}")
    A("v_lshrrev_b32 v4, 2, v1\nv_and_b32 v5, 3, v1")
    A("v_lshrrev_b32 v6, 1, v2\nv_lshrrev_b32 v8, 1, v5\nv_xor_b32 v6, v6, v8\nv_lshlrev_b32 v6, 3, v6")
    A("v_and_b32 v7, 1, v2\nv_lshl_add_u32 v6, v7, 1, v6\nv_and_b32 v7, 1, v4\nv_add_u32 v6, v6, v7")
    A("v_lshrrev_b32 v7, 1, v4\nv_lshlrev_b32 v6, 3, v6\nv_lshl_add_u32 v6, v7, 9, v6\nv_lshl_add_u32 v6, v5, 7, v6")
    A(f"v_add_u32 {v(TR0)}, {s(sREG)}, v6")
    A("v_lshrrev_b32 v6, 1, v2\nv_xor_b32 v6, v6, v8\nv_lshlrev_b32 v6, 3, v6\nv_and_b32 v7, 1, v2\nv_lshl_add_u32 v6, v7, 1, v6\nv_and_b32 v7, 1, v4\nv_add_u32 v6, v6, v7")
    A("v_lshrrev_b32 v9, 1, v4\nv_lshl_add_u32 v6, v9, 2, v6\nv_lshlrev_b32 v6, 3, v6\nv_lshl_add_u32 v6, v8, 9, v6\nv_lshl_add_u32 v6, v9, 8, v6\nv_and_b32 v7, 1, v5\nv_lshl_add_u32 v6, v7, 7, v6")
    A(f"v_add_u32 {v(TR3)}, s34, v6\nv_xor_b32 {v(TR3B)}, 32, {v(TR3)}")
    A(f"s_lshl_b32 s33, {s(sODD)}, 2\nv_add_u32 v4, s33, v2")
    A(f"v_lshrrev_b32 v5, 2, v1\nv_lshlrev_b32 v5, 7, v5\nv_and_b32 v6, 3, v1\nv_lshl_add_u32 v5, v6, 2, v5\nv_lshl_add_u32 {v(PX)}, v4, 4, v5")
    A(f"v_lshlrev_b32 v4, 4, v4\nv_lshl_add_u32 v4, v1, 1, v4\nv_add_u32 v4, 512, v4\nv_and_b32 v5, 9, v1\nv_cmp_eq_u32 vcc, 0, v5\nv_mov_b32 v5, {OOB}\nv_cndmask_b32 {v(PM)}, v5, v4, vcc")
    A(f"v_lshrrev_b32 v4, 1, v2\nv_lshlrev_b32 v4, 5, v4\nv_add_u32 v4, v4, v1\ns_lshl_b32 s33, {s(sODD)}, 4\nv_add_u32 v4, s33, v4\nv_lshlrev_b32 v4, 3, v4")
    A(f"v_and_b32 v5, 1, v2\nv_lshl_add_u32 v4, v5, 2, v4\nv_add_u32 v13, {SB}, v4\nv_lshlrev_b32 v14, 3, v0\ns_lshl_b32 s33, {s(S_W)}, 11\nv_add_u32 v14, s33, v14")
    A(f"s_cmp_eq_u32 {s(S_W)}, 3\ns_cselect_b32 s34, 7, 15\nv_min_u32 {v(FA)}, s34, v1\nv_lshlrev_b32 {v(FA)}, 2, {v(FA)}")
    if opts.get("wl", 3) & 1:
        A(f"s_lshl_b32 s33, {s(S_ID)}, 2\ns_add_u32 s33, s33, {s(S_W)}\ns_lshl_b32 s33, s33, 7")
    else:
        A(f"s_lshl_b32 s33, {s(S_ID)}, 9\ns_lshl_b32 s34, {s(S_W)}, 6\ns_add_u32 s33, s33, s34")
    A(f"v_add_u32 {v(FA)}, s33, {v(FA)}\ns_mov_b32 {s(sEF)}, {EF}\ns_mov_b32 s53, 0")
    A("v_and_b32 v5, 1, v1\nv_lshlrev_b32 v5, 3, v5\nv_lshrrev_b32 v6, 3, v1\nv_lshl_add_u32 v5, v6, 2, v5\nv_and_b32 v6, 2, v1\nv_add_u32 v5, v5, v6\nv_bfe_u32 v6, v1, 2, 1\nv_add_u32 v5, v5, v6")
    chunk_pos(A, 12, 5, 2, 4)
    A(f"v_add_u32 v12, {s(sREG)}, v12")
    A(f"v_mov_b32 {v(XR)}, v12\nv_mov_b32 {v(SW)}, v14\nv_mov_b32 {v(SR)}, v13")
    A(f"s_mov_b32 {s(sS)}, 0\ns_mov_b32 {s(sCM)}, {CM}\ns_mul_i32 {s(sCP)}, {s(S_ID)}, 640\ns_add_u32 {s(sCP)}, {s(sCP)}, {CP}")
    if opts.get("wl", 3) & 2:
        A(f"s_lshr_b32 s33, {s(S_ID)}, 2\ns_lshl_b32 s33, s33, 7\ns_and_b32 s34, {s(S_ID)}, 3\ns_lshl_b32 s34, s34, 2\ns_add_u32 {s(sNP)}, s33, s34\ns_add_u32 {s(sNP)}, {s(sNP)}, {EF_P}")
    else:
        A(f"s_lshl_b32 {s(sNP)}, {s(S_ID)}, 2\ns_add_u32 {s(sNP)}, {s(sNP)}, {EF_P}")
    ahead = opts.get("yah", 1)
    A(f"s_mul_i32 {s(sYP)}, {s(S_ID)}, {28 * KB}\ns_mul_i32 s33, {s(S_W)}, {7 * KB}\ns_add_u32 {s(sYP)}, {s(sYP)}, s33\ns_add_u32 {s(sYP)}, {s(sYP)}, {YF + ahead * 16 * 28 * KB}")
    slow = A.new("a_slow")
    fresh = zero(ACC, 28) + [f"v_lshlrev_b32 {v(T)}, 3, v3"]
    for x in fresh:
        A(x)
    wait_start(A, opts, slow)
    ka = lambda n, r=ACC: "".join(f"{MF} {v(r, 4)}, {v(TSP, 4)}, {v(TSP, 4)}, {v(r, 4)}\n" for _ in range(n))

    def loop(sc):
        top, nxt, done, lp, ok, idle = (A.new(x) for x in ("a_top", "a_next", "a_done", "a_poll", "a_ok", "a_idle"))
        redo = A.new("a_redo")
        G0, G1 = KEY, KEY + 8
        A(f"s_branch {lp}")
        if opts.get("al"):
            A(f".p2align {opts['al']}")
        A(f"{top}:")
        notice_wait(A, opts, G1, FA, sEF, 0, fresh + [f"s_mov_b32 m0, {s(sMB)}"])
        if opts.get("nst"):
            stamp(A, opts, 1)
        A(fetch)
        A(f"{lp}:")
        if opts.get("stamps"):
            A("s_add_u32 s53, s53, 1")
        A(ka(opts.get("ka_m", 0), SC))
        A("s_waitcnt vmcnt(0)")
        stamp(A, opts, 0)
        A("s_barrier")
        if not opts.get("nst"):
            stamp(A, opts, 1)
        lg = Cnt(A, "lgkmcnt", 15)
        for kk in range(7):
            lg.op(f"ds_read_b128 {v(MEM + 4 * kk, 4)}, v3 offset:{MEMB + kk * 1024}", f"m{kk}")

        def tile(i):
            out = []
            for kk in range(7):
                txt = f"{SMF} {v(ACC + 4 * i, 4)}, {v(MEM + 4 * kk, 4)}, {wreg((i * 7 + kk) * 8, 8)}, {v(IDX)}" if not opts.get("noam") else "s_nop 2"
                out.append((lambda txt=txt, kk=kk: (lg.wait(f"m{kk}"), A(txt))) if i == 0 else txt)
            return out

        def score(b):
            out = []
            for tau in range(3):
                c = "0" if b == 0 else v(SC + 4 * tau, 4)
                txt = f"{MF} {v(SC + 4 * tau, 4)}, {v(TSP + 4 * (b % 2), 4)}, {v(KEY + 12 * (b % 2) + 4 * tau, 4)}, {c}"
                out.append((lambda txt=txt: (lg.wait(f"tr{b}", f"k{b}"), A(txt))) if tau == 0 else txt)
            return out

        def keys(b):
            K = KEY + 12 * (b % 2)
            out = [lambda aa=aa: lg.op(f"ds_read_b128 {v(K + 4 * aa, 4)}, {v(XR)} offset:{XK + aa * 4096 + b * 1024}", f"k{b}") for aa in range(2)]
            if b == 3:
                return out + [lambda x=x: lg.op(f"ds_read2_b32 {v(K + 8 + 2 * x, 2)}, {v(MK3)} offset0:{2 * x} offset1:{2 * x}", "k3") for x in range(2)]
            out.append(lambda: lg.op(f"ds_read_b128 {v(K + 8, 4)}, {v(MK)} offset:{MEMB + b * 512}", f"k{b}"))
            return out

        def epi(i):
            D = ACC + 4 * i
            out = [f"v_cvt_pk_bf16_f32 {v(PK)}, {v(D)}, {v(D + 1)}", f"v_cvt_pk_bf16_f32 {v(PK + 1)}, {v(D + 2)}, {v(D + 3)}"]
            if i < 6:
                return out + [lambda: lg.op(f"ds_write_b64 {v(TW0)}, {v(PK, 2)} offset:{TB + i * 512}", f"t{i}")]
            return out + [lambda: lg.op(f"ds_write_b64 {v(TW3A)}, {v(PK, 2)}", "t6"),
                          lambda: lg.op(f"ds_write2_b32 {v(TW3B)}, {v(PK + 1)}, {v(PK)} offset0:0 offset1:1", "t6")]

        def trs(b):
            if b == 3:
                return [lambda x=x: lg.op(f"ds_read_b64_tr_b16 {v(TSP + 4 + 2 * x, 2)}, {v((TR3, TR3B)[x])}", "tr3") for x in range(2)]
            return [lambda x=x: lg.op(f"ds_read_b64_tr_b16 {v(TSP + 4 * (b % 2) + 2 * x, 2)}, {v(TR0)} offset:{TB + b * 1024 + 32 * x}", f"tr{b}") for x in range(2)]

        stream = tile(0) + tile(1) + tile(2) + tile(3) + score(0) + tile(4) + tile(5) + score(1) + tile(6) + score(2)[:2]
        fill = {}

        def put(g, items):
            for k, it in enumerate(items):
                assert g + k not in fill, g + k
                fill[g + k] = [it]

        for k in range(opts.get("apf", 1)):
            pre = f"s_add_u32 s33, {s(sREG)}, 24320\ns_mov_b32 m0, s33\ns_nop 0\n" if k == 0 else ""
            (put if opts.get("pfg", 1) >= 0 else lambda g, x: A(x[0]))(opts.get("pfg", 1) + 3 * k, [pre + f"buffer_load_dword {v(T)}, {s(WS, 4)}, {s(sYP)} offen offset:{128 // opts.get('apf', 1) * k} sc1 lds"])
        early = opts.get("ek", 1)
        put(1 if early else 4, keys(0))
        put(4 if early else 15, keys(1))
        put(11, epi(0))
        put(18, epi(1))
        put(21, trs(0))
        put(25, epi(2))
        k2 = keys(2)
        put(31, k2[:1])
        put(32, epi(3))
        put(35, trs(1))
        put(38, k2[1:])
        put(41, epi(4))
        put(47, epi(5))
        put(50, trs(2))
        k3 = keys(3)
        dup = [f"v_mov_b32 {v(r + 1)}, {v(r)}" for r in range(KEY + 12, KEY + 20, 2)]
        if early:
            put(45, k3[:2])
            put(52, [lambda x=dup[0]: (lg.wait("k3"), A(x)), dup[1], dup[2], k3[2], k3[3]])
            dup = dup[3:]
        else:
            put(52, k3)
        br = "s_nop 0" if opts.get("solo") else f"s_cbranch_vccnz {redo}"
        mx = lambda x, y, z: f"v_max3_u32 {v(CK)}, {v(x)}, {v(y)}, {v(z)}"
        cmpi = f"v_cmp_eq_u32 vcc, -1, {v(CK)}"
        for g, x in zip((7, 8, 9, 10), (mx(MEM, MEM + 4, MEM + 8), mx(CK, MEM + 12, MEM + 16), mx(CK, MEM + 20, MEM + 24), cmpi)):
            put(g, [x])
        fill[12].append(br)
        rest = [MEM + r for r in range(28) if r % 4]
        late = [mx(*rest[:3])] + [mx(CK, rest[r], rest[r + 1]) for r in range(3, 21, 2)] + [cmpi]
        for g, x in zip((14, 15, 16, 17, 23, 24, 28, 29, 30, 37, 40) if early else (14, 23, 24, 28, 29, 30, 37, 40, 44, 45, 46), late):
            put(g, [x])
        fill[43 if early else 49].append(br)
        emit_stream(A, stream, fill)
        stamp(A, opts, 2)
        sw = []
        for tau in range(3):
            D = SC + 4 * tau
            sw += [f"v_permlane32_swap_b32 {v(D)}, {v(D + 2)}", f"v_permlane32_swap_b32 {v(D + 1)}, {v(D + 3)}", f"v_pk_add_f32 {v(D, 2)}, {v(D, 2)}, {v(D + 2, 2)}"]
        c0, c1, w0, w1 = epi(6)
        t0, t1 = trs(3)
        m2 = score(2)[2]
        seq = {0: [c0, c1, m2, w0, w1, t0, t1] + sw,
               1: [c0, c1, m2, w0, sw[0], w1, sw[1], t0, t1] + sw[2:],
               2: [c0, c1, w0, m2, w1, t0, t1] + sw,
               3: [c0, c1, m2, w0, w1, sw[0], t0, t1] + sw[1:],
               4: [c0, c1, w0, m2, w1, sw[0], t0, sw[1], t1] + sw[2:]}[opts.get("tv", 0)]
        for x in seq:
            x() if callable(x) else A(x)
        if not early:
            lg.wait("k3")
        for x in dup:
            A(x)
        A(f"s_cmp_ge_u32 {s(S_W)}, 2")
        for x in score(3):
            x() if callable(x) else A(x)
            A("s_nop 1")
        for tau in range(3):
            A(f"ds_write_b64 {v(SW)}, {v(SC + 4 * tau, 2)} offset:{SB + 512 * tau}")
        A("s_waitcnt lgkmcnt(0)\ns_barrier")
        stamp(A, opts, 3)
        R = MEM + 8
        nb = opts.get("brp", 0)
        for n in range(6):
            tau, hf = n // 2, n % 2
            if n == nb:
                A(f"s_cbranch_scc1 {idle}")
            A(f"ds_read2st64_b32 {v(R + 4 + 4 * tau + 2 * hf, 2)}, {v(SR)} offset0:{2 * tau + 16 * hf} offset1:{2 * tau + 16 * hf + 8}")
        for tau in range(3):
            A(f"s_waitcnt lgkmcnt({4 - 2 * tau})")
            A(f"v_pk_add_f32 {v(R + 4 + 4 * tau, 2)}, {v(R + 4 + 4 * tau, 2)}, {v(R + 6 + 4 * tau, 2)}")
            A(f"v_add_f32 {v(R + tau)}, {v(R + 4 + 4 * tau)}, {v(R + 5 + 4 * tau)}")
        mx, sm = T, T + 1
        A(f"v_max3_f32 {v(mx)}, {v(R)}, {v(R + 1)}, {v(R + 2)}")
        for rot in (8, 4, 2, 1):
            A(f"v_max_f32_dpp {v(mx)}, {v(mx)}, {v(mx)} row_ror:{rot} row_mask:0xf bank_mask:0xf")
        for tau in (2, 0, 1):
            A(f"v_sub_f32 {v(R + tau)}, {v(R + tau)}, {v(mx)}")
        for tau in (2, 0, 1):
            A(f"v_exp_f32 {v(R + tau)}, {v(R + tau)}")
        A(f"v_fma_f32 {v(sm)}, 0.5, {v(R + 2)}, {v(R)}")
        A(f"v_mov_b32_dpp {v(R + 3)}, {v(R + 2)} quad_perm:[1,0,3,2] row_mask:0xf bank_mask:0xf")
        A(f"v_add_f32 {v(sm)}, {v(sm)}, {v(R + 1)}")
        for rot in (8, 4, 2, 1):
            A(f"v_add_f32_dpp {v(sm)}, {v(sm)}, {v(sm)} row_ror:{rot} row_mask:0xf bank_mask:0xf")
        A(f"v_rcp_f32 {v(sm)}, {v(sm)}")
        for k, addr in ((0, PX), (2, PM)):
            A(f"v_mul_f32 {v(R + k)}, {v(R + k)}, {v(sm)}\nv_mul_f32 {v(R + k + 1)}, {v(R + k + 1)}, {v(sm)}")
            A(f"v_cvt_pk_bf16_f32 {v(R + k)}, {v(R + k)}, {v(R + k + 1)}\nv_min_u32 {v(R + k)}, -2, {v(R + k)}")
            A(f"buffer_store_dword {v(R + k)}, {v(addr)}, {s(WS, 4)}, {s(sCP)} offen{sc}")
        A(f"{nxt}:")
        stamp(A, opts, 4)
        collect_lds(A, opts, sREG, 22528, T)
        A(f"s_add_u32 {s(sS)}, {s(sS)}, 1\ns_add_u32 {s(sQ)}, {s(sQ)}, {0 if opts.get('solo') else 8192}\ns_add_u32 {s(sCP)}, {s(sCP)}, {0 if opts.get('solo') else 10240}")
        adv = 0 if opts.get("solo") else EF_STEP
        A(f"s_add_u32 {s(sEF)}, {s(sEF)}, {adv}\ns_add_u32 {s(sXA)}, {s(sXA)}, {28 * KB * (16 if opts.get('gemu') else 1)}\ns_add_u32 {s(sXB)}, {s(sXB)}, {28 * KB * (16 if opts.get('gemu') else 1)}\ns_add_u32 {s(sYP)}, {s(sYP)}, {16 * 28 * KB}")
        A("s_barrier")
        if not opts.get("nodma"):
            for k in range(8):
                A(dma(k))
        if opts.get("asl"):
            A(f"s_sleep {opts['asl']}")
        A(f"s_cmp_eq_u32 {s(sS)}, 63\ns_cbranch_scc0 {top}")
        A("s_waitcnt vmcnt(0)")
        A("s_mov_b32 s84, s53" if opts.get("stamps") else "")
        fetch_lds(A, opts, sREG, 22528, 10)
        flush_stamps(A, opts, 10)
        A("s_endpgm")
        A(f"{redo}:\ns_mov_b32 m0, {s(sMB)}\ns_waitcnt lgkmcnt(0)\ns_barrier")
        A(fetch)
        poll_guard(A)
        for x in fresh:
            A(x)
        A(f"s_branch {lp}")
        A(f"{idle}:\ns_waitcnt lgkmcnt(0)")
        A(f"v_lshrrev_b32 {v(T + 1)}, 4, v3\nv_min_u32 {v(T + 1)}, 13, {v(T + 1)}\nv_lshl_add_u32 {v(T + 1)}, {v(T + 1)}, 9, {s(sNP)}\nv_mov_b32 {v(T)}, {s(S_NONCE)}")
        A("s_nop 3\n" * opts.get("la", 6) if opts.get("lan") else ka(opts.get("la", 6)))
        w3 = A.new("a_w3")
        A(f"s_cmp_eq_u32 {s(S_W)}, 2\ns_cbranch_scc0 {w3}")
        notice(A, T, T + 1, sEF, 0, sc)
        A(f"s_branch {nxt}\n{w3}:")
        A(ka(opts.get("ka_sm", 0)))
        A(f"s_branch {nxt}")

    loop("")
    A(f"{slow}:")
    loop(" sc1")


def gen_chain_b(A, opts):
    MEM, ZACC, ZOP, Y, OACC, IDX = 4, 32, 60, 76, 108, 132
    GA0, GA1, PXA, PMA, RW, RR0, RR1, MO, WR, FA, FV = range(133, 144)
    FM, NZ, NA, FP = 128, 129, 130, 131
    T, WST, V0 = 116, 144, 176
    RED, WL = 8192, 12288
    sS, sCM, sCP, sY, sEF, sC, sFY = 44, 45, 46, 47, 48, 50, 51
    vm = Cnt(A, "vmcnt", 63)
    A(f"s_sub_u32 {s(sC)}, {s(S_ID)}, 16")
    A(f"s_mul_i32 s34, {s(S_W)}, {4 * FRAG_H}\ns_mul_i32 s33, {s(sC)}, {28 * KB}\ns_add_u32 s34, s34, s33\ns_add_u32 s34, s34, {BF}")
    A(f"s_mul_i32 s36, {s(S_W)}, {28 * KB}\ns_add_u32 s36, s36, {WL}\nv_add_u32 {v(WR)}, s36, v3\ns_add_u32 s37, s34, {3 * FRAG_H}")
    A(f"s_mul_i32 s33, {s(S_W)}, 28\ns_lshr_b32 s35, {s(sC)}, 1\ns_add_u32 s33, s33, s35\ns_add_u32 s33, s33, 112\nv_and_b32 v4, 3, v0\nv_mul_u32_u24 v4, 7, v4\nv_add_u32 v4, s33, v4")

    def piece(hh):
        if hh < 3:
            frag_loads(A, 34, [((hh * 28 + k) * 4, hh * FRAG_H + k * KB) for k in range(28)], v0=V0, cap=opts.get('bcap'))
            return
        for q in range(7):
            A("s_mov_b32 m0, s36\ns_add_u32 s36, s36, 4096")
            for k in range(4):
                A(f"buffer_load_dwordx4 v3, {s(WS, 4)}, s37 offen offset:{k * 1024} sc1 lds")
            A("s_add_u32 s37, s37, 4096")

    if opts.get('late'):
        A('v_mov_b32 v20, v4\ns_mov_b32 s60, s34\ns_mov_b32 s61, s36\ns_mov_b32 s62, s37')
        wait_prep(A, True)
        A('v_mov_b32 v4, v20\ns_mov_b32 s34, s60\ns_mov_b32 s36, s61\ns_mov_b32 s37, s62')
        mark(A, opts, 3)
    load_pieces(A, [(28, lambda hh=hh: piece(hh)) for hh in range(4)], 4)
    gather_addr(A, GA0, GA1)
    idx_reg(A, IDX)
    A("v_and_b32 v4, 7, v1\nv_lshrrev_b32 v5, 3, v1\nv_lshrrev_b32 v6, 1, v2\nv_and_b32 v7, 1, v2")
    A(f"s_mul_i32 s33, {s(S_W)}, 2560")
    A(f"v_mul_u32_u24 v8, 640, v6\nv_lshl_add_u32 v8, v4, 4, v8\nv_lshl_add_u32 v8, v7, 8, v8\nv_lshl_add_u32 v8, v5, 7, v8\nv_add_u32 {v(PXA)}, s33, v8")
    A(f"v_lshl_add_u32 v8, v6, 1, v5\nv_mul_u32_u24 v8, 640, v8\nv_lshl_add_u32 v8, v4, 4, v8\ns_add_u32 s33, s33, 512\nv_add_u32 {v(PMA)}, s33, v8")
    A(f"v_lshl_add_u32 v8, v6, 1, v7\nv_xor_b32 v8, v0, v8\nv_lshlrev_b32 v8, 4, v8\ns_lshl_b32 s33, {s(S_W)}, 10\ns_add_u32 s33, s33, {RED}\nv_add_u32 {v(RW)}, s33, v8")
    A("v_lshrrev_b32 v4, 5, v0\nv_bfe_u32 v5, v0, 2, 3\nv_and_b32 v6, 3, v0")
    A("v_and_b32 v7, 1, v6\nv_lshrrev_b32 v8, 2, v5")
    A(f"v_lshlrev_b32 v9, 5, v7\nv_lshl_add_u32 v9, v8, 4, v9\ns_and_b32 s33, {s(S_W)}, 1\ns_lshl_b32 s33, s33, 3\nv_add_u32 v9, s33, v9")
    A("v_lshrrev_b32 v10, 1, v6\nv_lshl_add_u32 v9, v10, 2, v9\nv_lshl_add_u32 v9, v4, 1, v9")
    A("v_lshl_add_u32 v10, v7, 1, v8\nv_xor_b32 v9, v9, v10\nv_lshlrev_b32 v9, 4, v9\nv_and_b32 v10, 3, v5\nv_lshl_add_u32 v9, v10, 2, v9")
    A(f"v_add_u32 {v(RR0)}, {RED}, v9\nv_xor_b32 {v(RR1)}, 16, {v(RR0)}")
    A(f"s_lshl_b32 s33, {s(sC)}, 9\ns_and_b32 s35, {s(S_W)}, 1\ns_lshl_b32 s35, s35, 8\ns_add_u32 s33, s33, s35\nv_lshl_add_u32 {v(MO)}, v0, 2, s33")
    A(f"v_lshlrev_b32 {v(FA)}, 7, v1\nv_mov_b32 {v(FV)}, 0")
    A(f"s_mov_b32 {s(sS)}, 0\ns_mov_b32 {s(sCM)}, {CM}\ns_mov_b32 {s(sCP)}, {CP}")
    A(f"s_mul_i32 s33, {s(S_W)}, {4 * 28 * KB}\ns_lshl_b32 s35, {s(sC)}, 11\ns_add_u32 {s(sY)}, s33, s35\ns_add_u32 {s(sY)}, {s(sY)}, {YF}")
    A(f"s_mov_b32 {s(sFY)}, {FY}\ns_mov_b32 {s(sEF)}, {EF}\ns_mov_b32 s53, 0\ns_mov_b32 s55, 0")
    pw = 1
    A(f"v_and_b32 v4, 3, v0\nv_and_b32 v5, 1, v0\nv_add_u32 v5, 16, v5\ns_lshl_b32 s33, {s(sC)}, 9\ns_add_u32 s33, s33, {EF_P}")
    if opts.get("wl", 3) & 2:
        A(f"s_lshl_b32 s35, {s(S_W)}, 7\ns_add_u32 s33, s33, s35")
    else:
        A(f"s_lshl_b32 s35, {s(S_W)}, 2\nv_add_u32 v4, s35, v4")
    A(f"v_cmp_gt_u32 vcc, 32, v0\nv_cndmask_b32 {v(FP)}, v5, v4, vcc\nv_lshl_add_u32 {v(FP)}, {v(FP)}, 2, s33")
    A(f"s_and_b32 s33, {s(sC)}, 3\ns_lshl_b32 s33, s33, 2\ns_add_u32 s33, s33, {s(S_W)}\ns_lshl_b32 s33, s33, 2\ns_lshr_b32 s35, {s(sC)}, 2\ns_lshl_b32 s35, s35, {7 if opts.get('wl', 3) & 1 else 6}\ns_add_u32 s33, s33, s35")
    A(f"s_add_u32 s33, s33, {EF_STEP}\nv_min_u32 {v(NA)}, 15, v0\nv_lshl_add_u32 {v(NA)}, {v(NA)}, 9, s33\nv_mov_b32 {v(NZ)}, {s(S_NONCE)}")
    if opts.get("gemu"):
        A(f"v_lshlrev_b32 v126, 3, v3\ns_lshl_b32 s57, {s(sC)}, 2\ns_add_u32 s57, s57, {s(S_W)}\ns_lshl_b32 s57, s57, 13\ns_add_u32 s57, s57, {(opts['gemu'] << 20) + (opts.get('gah', 2) - 1) * 16 * 28 * KB}")
    slow = A.new("b_slow")
    wait_start(A, opts, slow, (FA, sFY))
    ka = lambda n: "".join(f"{MF} {v(ZACC + 8, 4)}, {v(ZOP, 4)}, {v(ZOP, 4)}, {v(ZACC + 8, 4)}\n" for _ in range(n))

    def loop(sc):
        top, nxt, last, noy, yok, ypoll, noflag, gm, gp, idle, noz = (A.new("b_" + x) for x in ("top", "next", "last", "noy", "yok", "ypoll", "nofl", "gm", "gp", "idle", "noz"))
        if opts.get("al"):
            A(f"s_branch {top}\n.p2align {opts['al']}")
        A(f"{top}:")
        if opts.get("ndb", 1):
            notice_wait(A, dict(opts, nd=opts.get('ndb', 1)), WST + 8, FM, sEF, 0, zero(ZACC, 28) + zero(OACC, 8), sS)
        else:
            for x in zero(ZACC, 28) + zero(OACC, 8):
                A(x)
        fetch_mem(A, dict(opts, stamps=0) if opts.get('nst') else opts, WST, GA0, GA1, sCM, T, 0)
        lg = Cnt(A, "lgkmcnt", 15)
        for kk in range(7):
            lg.op(f"ds_read_b128 {v(MEM + 4 * kk, 4)}, v3 offset:{kk * 1024}", f"m{kk}")
        bulk = []
        for hh in range(4):
            for vv in range(0 if opts.get("noy") else 2):
                pre = f"s_add_u32 s33, {s(sY)}, {hh * 28 * KB}\n" if vv == 0 else ""
                bulk.append(pre + f"buffer_load_dwordx4 {v(Y + 16 * (hh // 2) + 8 * vv + 4 * (hh % 2), 4)}, v3, {s(WS, 4)}, s33 offen offset:{vv * 1024} {'nt' if opts.get('ynt') == 1 else 'sc1 nt' if opts.get('ynt') else 'sc1'}")
        order = []
        regs = [(t, kk) for t in range(6) for kk in range(7)]
        for n in range(14):
            order += regs[3 * n:3 * n + 3] + [(6 + n // 7, n % 7)]
        accof = lambda t: ZACC + 4 * (t if t < 7 else 0)
        stream, pos, seen = [], {}, set()
        for t, kk in order:
            pos[(t, kk)] = len(stream)
            n = (t - 6) * 7 + kk
            w = wreg((t * 7 + kk) * 8, 8, 256, V0) if t < 6 else v(WST + 8 * (n % 4), 8)
            txt = f"{SMF} {v(accof(t), 4)}, {v(MEM + 4 * kk, 4)}, {w}, {v(IDX)}" if not opts.get("nozm") else "s_nop 2"
            tags = ([f"m{kk}"] if kk not in seen else []) + ([f"w{n}"] if t >= 6 else [])
            seen.add(kk)
            stream.append((lambda txt=txt, tags=tags: (lg.wait(*tags), A(txt))) if tags else txt)

        def wread(n):
            return [lambda u=u: lg.op(f"ds_read_b128 {v(WST + 8 * (n % 4) + 4 * u, 4)}, {v(WR)} offset:{(n // 7) * 14 * KB + (2 * (n % 7) + u) * KB}", f"w{n}") for u in range(2)]

        def epi(t):
            hh, vv = t // 2, t % 2
            D = accof(t)
            out = [f"v_cvt_pk_bf16_f32 {v(ZOP + 8 * vv + 4 * (hh // 2) + 2 * b + hh % 2)}, {v(D + 2 * b)}, {v(D + 2 * b + 1)}" for b in range(2)]
            return out + (zero(D, 4) if t == 0 else [])

        y = bulk + ["s_nop 0"] * (8 - len(bulk))
        for x in wread(0) + wread(1):
            x()
        npre = opts.get("ypre", 2)
        for x in y[:npre]:
            A(x)
        fill = {}
        for n in range(2, 14):
            spread(fill, 4 * (n - 2), wread(n), per=1)
        g = 2
        for x in y[npre:]:
            while g in fill:
                g += 1
            fill[g] = [x]
            g += opts.get("ygap", 1)
        if opts.get("gemu"):
            while g in fill:
                g += 1
            fill[g] = [f"s_mov_b32 m0, 7168\ns_add_u32 s57, s57, {16 * 28 * KB}\nbuffer_load_dword v126, {s(WS, 4)}, s57 offen sc1 lds"]
        late = []
        for t in sorted(range(8), key=lambda t: pos[(t, 6)]):
            g = pos[(t, 6)] + 4
            for x in epi(t):
                while g in fill:
                    g += 1
                if g < len(stream):
                    fill[g] = [x]
                    assert t != 0 or g < pos[(7, 0)] - 1
                else:
                    late.append(x)
        emit_stream(A, stream, fill)
        for x in late:
            A(x)
        if not opts.get("nst"):
            stamp(A, opts, 1)

        def p_loads(P):
            A(f"buffer_load_dwordx4 {v(P, 4)}, {v(PXA)}, {s(WS, 4)}, {s(sCP)} offen sc1")
            A(f"buffer_load_dwordx4 {v(P + 4, 4)}, {v(PXA)}, {s(WS, 4)}, {s(sCP)} offen offset:1280 sc1")
            A(f"buffer_load_dwordx4 {v(P + 8, 4)}, {v(PMA)}, {s(WS, 4)}, {s(sCP)} offen sc1")

        cur = MEM
        ok = A.new("b_ok")
        notice_wait(A, dict(opts, nd=opts.get('ndp', opts['nd'])), MEM + 12, FP, sEF, 0, [])
        if opts.get("nst"):
            stamp(A, opts, 1)
        A(f"{gp}:")
        p_loads(cur)
        poll_guard(A)
        A(ka(opts.get("ka_p", 0)))
        if opts.get("stamps"):
            A("s_add_u32 s55, s55, 1")
        mx3 = lambda d, x, y, z: f"v_max3_u32 {v(d)}, {v(x)}, {v(y)}, {v(z)}"
        cmpi = f"v_cmp_eq_u32 vcc, -1, {v(T)}"
        if opts.get("bdef", 1):
            chk = ["s_nop 0"] * 4 + [mx3(T, cur, cur + 4, cur + 8), cmpi]
        else:
            chk = ["s_nop 0", mx3(T, cur, cur + 1, cur + 2), mx3(T, T, cur + 3, cur + 4), mx3(T + 1, cur + 5, cur + 6, cur + 7), mx3(T + 2, cur + 8, cur + 9, cur + 10),
                   mx3(T, T, T + 1, cur + 11) + f"\nv_max_u32 {v(T)}, {v(T)}, {v(T + 2)}\n" + cmpi]
        k = 0
        for kap in range(3):
            A(f"s_waitcnt vmcnt({2 - kap})")
            if kap == 0:
                stamp(A, opts, 2)
            for vv in range(2):
                b = v(Y + 16 * kap + 8 * vv, 8) if kap < 2 else v(ZOP + 8 * vv, 8)
                A(f"{SMF} {v(OACC + 4 * vv, 4)}, {v(cur + 4 * kap, 4)}, {b}, {v(IDX)}")
                if opts.get("lb") == 10 + k:
                    notice(A, NZ, NA, sEF, 0, sc)
                A(chk[k])
                k += 1
        if not opts.get("solo"):
            A(f"s_cbranch_vccnz {ok}")
        lb = opts.get("lb", 2) if pw else -1
        if lb == 0:
            notice(A, NZ, NA, sEF, 0, sc)
        for q in range(4):
            A(f"v_permlane32_swap_b32 {v(OACC + q)}, {v(OACC + 4 + q)}")
        if lb == 1:
            notice(A, NZ, NA, sEF, 0, sc)
        for q in (0, 2):
            A(f"v_pk_add_f32 {v(OACC + q, 2)}, {v(OACC + q, 2)}, {v(OACC + 4 + q, 2)}")
        A(f"ds_write_b128 {v(RW)}, {v(OACC, 4)}")
        if 2 <= lb < 9:
            A(ka(lb - 2))
            notice(A, NZ, NA, sEF, 0, sc)
            if opts.get("nst"):
                stamp(A, opts, 0)
        if opts.get("bdef", 1) and not opts.get("solo"):
            A(mx3(T, cur + 1, cur + 2, cur + 3) + "\n" + mx3(T + 1, cur + 5, cur + 6, cur + 7) + "\n" + mx3(T + 2, cur + 9, cur + 10, cur + 11))
            A(mx3(T, T, T + 1, T + 2) + "\n" + cmpi)
            if lb == 9:
                notice(A, NZ, NA, sEF, 0, sc)
            A(f"s_cbranch_vccnz {ok}")
        A(f"s_add_u32 s33, {s(sCM)}, 8192\ns_cmp_ge_u32 {s(S_W)}, 2\ns_waitcnt lgkmcnt(0)\ns_barrier")
        stamp(A, opts, 3)
        A(f"s_cbranch_scc1 {idle}")
        R = ZACC
        if not pw:
            A(f"s_cmp_eq_u32 {s(S_W)}, 0\ns_cbranch_scc0 {noflag}")
            notice(A, NZ, NA, sEF, 0, sc)
            A(f"{noflag}:")
        A(f"ds_read2st64_b32 {v(R, 2)}, {v(RR0)} offset0:0 offset1:4\nds_read2st64_b32 {v(R + 4, 2)}, {v(RR0)} offset0:8 offset1:12")
        A(f"ds_read2st64_b32 {v(R + 2, 2)}, {v(RR1)} offset0:0 offset1:4\nds_read2st64_b32 {v(R + 6, 2)}, {v(RR1)} offset0:8 offset1:12")
        A("s_waitcnt lgkmcnt(2)")
        A(f"v_pk_add_f32 {v(R, 2)}, {v(R, 2)}, {v(R + 4, 2)}\nv_add_f32 {v(R)}, {v(R)}, {v(R + 1)}")
        A("s_waitcnt lgkmcnt(0)")
        A(f"v_pk_add_f32 {v(R + 2, 2)}, {v(R + 2, 2)}, {v(R + 6, 2)}\nv_add_f32 {v(R + 2)}, {v(R + 2)}, {v(R + 3)}")
        A(f"v_cvt_pk_bf16_f32 {v(R)}, {v(R)}, {v(R + 2)}\nv_min_u32 {v(R)}, -2, {v(R)}")
        A(f"buffer_store_dword {v(R)}, {v(MO)}, {s(WS, 4)}, s33 offen{sc}")
        A(f"{nxt}:")
        stamp(A, opts, 4)
        collect(A, opts, 120)
        A(f"s_add_u32 {s(sS)}, {s(sS)}, 1\ns_add_u32 {s(sCM)}, {s(sCM)}, {0 if opts.get('solo') else 8192}\ns_add_u32 {s(sCP)}, {s(sCP)}, {0 if opts.get('solo') else 10240}")
        A(f"s_add_u32 {s(sY)}, {s(sY)}, {16 * 28 * KB}\ns_add_u32 {s(sEF)}, {s(sEF)}, {0 if opts.get('solo') else EF_STEP}")
        A("s_barrier")
        if opts.get("stamps"):
            m8 = A.new("m8")
            A(f"s_cmp_eq_u32 {s(sS)}, 8\ns_cbranch_scc0 {m8}")
            mark(A, opts, 5)
            A(f"{m8}:")
        A(f"s_cmp_eq_u32 {s(sS)}, 63\ns_cbranch_scc0 {top}")
        if opts.get("fast63", 1):
            A(f"s_cmp_ge_u32 {s(S_W)}, 2\ns_cbranch_scc1 {last}\ns_mov_b32 s33, {XM + 63 * 8192}")
            A(f"buffer_store_dword {v(R)}, {v(MO)}, {s(WS, 4)}, s33 offen sc1\n{last}:")
        A("s_waitcnt vmcnt(0)")
        A("s_mov_b32 s84, s53\ns_mov_b32 s85, s55" if opts.get("stamps") else "")
        dbg_time(A, opts, 6, 16)
        amp_mark(A, opts, 3)
        amp_spin(A, opts, 16, (0, 1, 2, 3))
        flush_stamps(A, opts, 120)
        A("s_endpgm")
        A(f"{ok}:")
        for x in zero(OACC, 8):
            A(x)
        A(f"s_branch {gp}")
        A(f"{idle}:")
        A(ka(opts.get("ka_f", 0)))
        A(f"s_branch {nxt}")

    loop("")
    A(f"{slow}:")
    loop(" sc1")


def gen_chain_f(A, opts):
    G, GA0, GA1, T, WA = 4, 12, 13, 14, 20
    sS, sCM, sXM = 44, 45, 46
    fw = A.new('f_go')
    A(f"v_lshlrev_b32 v21, 7, v1\ns_mov_b32 {s(sXM)}, {FY + opts.get('tfy', 0) * FL_STEP}")
    wait_start(A, {}, fw, (21, sXM) if opts.get('tfy', 0) >= 0 else None, opts.get('hsl', 24))
    A(f'{fw}:')
    gather_addr(A, GA0, GA1)
    A(f"s_mul_i32 s33, {s(S_W)}, {7 * KB}\nv_lshlrev_b32 {v(WA)}, 3, v3\nv_add_u32 {v(WA)}, s33, {v(WA)}")

    def touch_all():
        if not opts.get("nopf"):
            A(f"s_add_u32 s33, {s(sS)}, 2\ns_min_u32 s33, s33, 63\ns_mul_i32 s33, s33, {28 * KB}\ns_add_u32 s33, s33, {XS}")
            A(f"buffer_load_dword v16, {v(WA)}, {s(WS, 4)}, s33 offen sc1")

    for first in (-2, -1, 0):
        A(f"s_mov_b32 {s(sS)}, {first}")
        touch_all()
    A(f"s_mov_b32 {s(sS)}, 1\ns_mov_b32 {s(sCM)}, {CM + 8192}\ns_mov_b32 {s(sXM)}, {XM + 8192}")
    lp = A.new("f_poll")
    A(f"{lp}:")
    mem_loads(A, G, GA0, GA1, sCM)
    poll_guard(A)
    A("s_waitcnt vmcnt(0)")
    check8(A, G, T)
    got = A.new("f_got")
    A(f"s_cbranch_vccz {got}\ns_sleep {opts.get('fsl', 0)}\ns_branch {lp}\n{got}:")
    A(f"buffer_store_dwordx4 {v(G, 4)}, {v(GA0)}, {s(WS, 4)}, {s(sXM)} offen sc1")
    A(f"buffer_store_dwordx4 {v(G + 4, 4)}, {v(GA1)}, {s(WS, 4)}, {s(sXM)} offen sc1")
    touch_all()
    A(f"s_add_u32 {s(sS)}, {s(sS)}, 1\ns_add_u32 {s(sCM)}, {s(sCM)}, 8192\ns_add_u32 {s(sXM)}, {s(sXM)}, 8192")
    A(f"s_cmp_lt_u32 {s(sS)}, {63 if opts.get('fast63', 1) else 64}\ns_cbranch_scc1 {lp}")
    if opts.get("wb"):
        A(f"s_cmp_eq_u32 {s(S_W)}, 0\ns_cbranch_scc0 L_exit\ns_waitcnt vmcnt(0)\nbuffer_wbl2 sc1\ns_waitcnt vmcnt(0)")
    A("s_endpgm")


def gen_chain_g(A, opts):
    sS, sEF, sF = 44, 45, 46
    toucher = A.new("g_touch")
    A(f"s_cmp_eq_u32 {s(S_W)}, 1\ns_cbranch_scc1 {toucher}\ns_cmp_eq_u32 {s(S_W)}, 0\ns_cbranch_scc0 L_exit")
    A(f"s_mov_b32 {s(sS)}, 0\ns_mov_b32 {s(sEF)}, {EF + EF_P + 64}\ns_mov_b32 {s(sF)}, {FY + FL_STEP}")
    A(f"v_lshlrev_b32 v6, 7, v1\nv_min_u32 v7, 55, v0\nv_lshlrev_b32 v7, 7, v7\nv_mov_b32 v14, {s(S_NONCE)}\nv_mov_b32 v15, {s(S_NONCE)}")
    slow = A.new("g_slow")
    chain_mode(A, {}, Cnt(A, "vmcnt", 63), slow)

    def loop(sc):
        top, ok = A.new("g_top"), A.new("g_ok")
        go = A.new("g_go")
        A(f"{top}:\ns_cmp_eq_u32 {s(sS)}, 2\ns_cbranch_scc0 {go}")
        wait_prep(A, False, False)
        A(f"{go}:")
        top2 = A.new("g_poll")
        A(f"{top2}:")
        flag_load(A, 10, 6, s(sF))
        poll_guard(A)
        A("s_waitcnt vmcnt(0)")
        flag_missing(A, [10])
        A(f"s_cbranch_vccz {ok}\ns_sleep 2\ns_branch {top2}\n{ok}:")
        A(f"buffer_store_dwordx2 v[14:15], v7, {s(WS, 4)}, {s(sEF)} offen{sc}")
        A(f"s_add_u32 {s(sS)}, {s(sS)}, 1\ns_add_u32 {s(sEF)}, {s(sEF)}, {EF_STEP}\ns_add_u32 {s(sF)}, {s(sF)}, {FL_STEP}")
        A(f"s_cmp_lt_u32 {s(sS)}, 63\ns_cbranch_scc1 {top}\ns_endpgm")

    loop("")
    A(f"{slow}:")
    loop(" sc1")

    A(f"{toucher}:")
    go = A.new("t_go")
    A(f"v_lshlrev_b32 v20, 7, v1\ns_mov_b32 {s(sF)}, {FY + opts.get('tfy', 0) * FL_STEP}")
    wait_start(A, {}, go, (20, sF) if opts.get('tfy', 0) >= 0 else None, opts.get('hsl', 24))
    A(f"{go}:\nv_lshlrev_b32 v6, 3, v3\nv_mov_b32 v7, 0")
    ahead = opts.get("tah", 3)

    def touch():
        for base, stride, n, last in ((EF, EF_STEP, 2, 63), (CP, 10240, 2, 62), (CM, 8192, 1, 63)):
            A(f"s_add_u32 s33, {s(sS)}, {ahead}\ns_min_u32 s33, s33, {last}\ns_mul_i32 s33, s33, {stride}\ns_add_u32 s33, s33, {base}")
            for q in range(n):
                va = 8 if base == CP and q else 6
                A(f"buffer_load_dword v10, {v(va)}, {s(WS, 4)}, s33 offen sc1\ns_add_u32 s33, s33, 8192")

    A("v_min_u32 v8, 1920, v6")
    for first in range(-ahead, 1):
        A(f"s_mov_b32 {s(sS)}, {first}")
        touch()
    lp, got = A.new("t_poll"), A.new("t_got")
    A(f"s_mov_b32 {s(sS)}, 1\ns_mov_b32 {s(sF)}, {CM + 8192}\n{lp}:")
    A(f"buffer_load_dword v9, v7, {s(WS, 4)}, {s(sF)} offen sc1")
    poll_guard(A)
    A(f"s_waitcnt vmcnt(0)\nv_cmp_eq_u32 vcc, -1, v9\ns_cbranch_vccz {got}\ns_sleep 2\ns_branch {lp}\n{got}:")
    touch()
    A(f"s_add_u32 {s(sS)}, {s(sS)}, 1\ns_add_u32 {s(sF)}, {s(sF)}, 8192\ns_cmp_lt_u32 {s(sS)}, {64 - ahead}\ns_cbranch_scc1 {lp}\ns_endpgm")
```

```python
from asmlib import v, a, s
from layout import *

WS, DB = 8, 12
S_W, S_ID, S_FOREIGN, S_POLL, S_NONCE = 3, 4, 5, 6, 98
POLL_MAX = 0x40000
OOB = 0x40000000
FNT = ' sc1'
WV0 = 120


def wreg(idx, n, nacc=256, v0=WV0):
    return a(idx, n) if idx < nacc else v(v0 + idx - nacc, n)


class Cnt:
    def __init__(self, A, name, cap):
        self.A, self.name, self.cap, self.q = A, name, cap, []

    def op(self, text, tag=None):
        self.A(text)
        self.q.append(tag)

    def wait(self, *tags):
        last = -1
        for i, t in enumerate(self.q):
            if t in tags:
                last = i
        if last < 0:
            return
        n = min(len(self.q) - 1 - last, self.cap)
        self.A(f"s_waitcnt {self.name}({n})")
        self.q = self.q[len(self.q) - n:] if n else []

    def drain(self):
        self.A(f"s_waitcnt {self.name}(0)")
        self.q = []

    def room(self, n):
        if len(self.q) + n > self.cap:
            keep = self.cap - n
            self.A(f"s_waitcnt {self.name}({keep})")
            self.q = self.q[len(self.q) - keep:] if keep else []


def poll_guard(A):
    A(f"s_add_u32 {s(S_POLL)}, {s(S_POLL)}, 1\ns_cmp_gt_u32 {s(S_POLL)}, {POLL_MAX}\ns_cbranch_scc1 L_timeout")


def flag_load(A, dst, va, soff):
    A(f"buffer_load_dwordx2 {v(dst, 2)}, {v(va)}, {s(WS, 4)}, {soff} offen sc1")


def flag_missing(A, regs):
    words = [r + k for r in regs for k in range(2)]
    A(f"v_cmp_ne_u32 vcc, {s(S_NONCE)}, {v(words[0])}")
    for r in words[1:]:
        A(f"v_cmp_ne_u32 s[36:37], {s(S_NONCE)}, {v(r)}\ns_or_b64 vcc, vcc, s[36:37]")


def wait_prep(A, everything, barrier=True):
    lp, out = A.new("wp"), A.new("wpd")
    n = 4 if everything else 1
    A(f"s_cmp_eq_u32 {s(S_W)}, 0\ns_cbranch_scc0 {out}")
    if everything:
        A(f"v_lshlrev_b32 v4, 7, v0\ns_mov_b32 s34, {DONE}")
    else:
        A(f"v_and_b32 v4, 31, v0\nv_lshlrev_b32 v4, 7, v4\ns_mov_b32 s34, {DONE + 224 * 128}")
    A(f"{lp}:")
    for k in range(n):
        A(f"s_add_u32 s35, s34, {k * 8192}")
        flag_load(A, 8 + 2 * k, 4, "s35")
    poll_guard(A)
    A("s_waitcnt vmcnt(0)")
    flag_missing(A, [8 + 2 * k for k in range(n)])
    A(f"s_cbranch_vccz {out}\ns_sleep 2\ns_branch {lp}")
    A(f"{out}:\ns_barrier" if barrier else f"{out}:")


def wait_start(A, opts, slow, extra=None, sleep=0):
    lp = A.new("ws")
    A(f"v_lshlrev_b32 v4, 3, v3\nv_mov_b32 v5, 68\nv_min_u32 v7, {33 * 128}, v4")
    A(f"{lp}:")
    if sleep:
        A(f"s_sleep {sleep}")
    for k in range(4):
        A(f"s_mov_b32 s35, {DONE + k * 8192}")
        flag_load(A, 8 + 2 * k, 7 if k == 3 else 4, "s35")
    if extra:
        flag_load(A, 16, extra[0], s(extra[1]))
    A(f"buffer_load_dword v6, v5, {s(DB, 4)}, 0 offen sc1")
    poll_guard(A)
    A("s_waitcnt vmcnt(0)\nv_readfirstlane_b32 s34, v6")
    flag_missing(A, [8 + 2 * k for k in range(5 if extra else 4)])
    A(f"s_cbranch_vccnz {lp}\ns_and_b32 s35, s34, 0xff\ns_cmp_eq_u32 s35, 32\ns_cbranch_scc0 {lp}")
    mark(A, opts, 1)
    dbg_time(A, opts, 5, 16)
    amp_mark(A, opts, 2)
    A(f"s_waitcnt lgkmcnt(0)\ns_lshr_b32 s34, s34, 8\ns_cmp_eq_u32 s34, 0\ns_cbranch_scc0 {slow}")


def load_pieces(A, pieces, task, ln_piece=None, on_y=False):
    lp = A.new("lp")
    A(f"v_lshlrev_b32 {v(task)}, 7, {v(task)}\nv_add_u32 {v(task)}, {DONE - FL}, {v(task)}")
    if ln_piece:
        if on_y:
            A(f"v_and_b32 {v(task + 1)}, 1, v2\nv_mul_u32_u24 {v(task + 1)}, {FL_STEP}, {v(task + 1)}\nv_lshl_add_u32 {v(task + 1)}, v1, 7, {v(task + 1)}")
        else:
            A(f"v_and_b32 {v(task + 1)}, 1, v0\nv_lshlrev_b32 {v(task + 1)}, 7, {v(task + 1)}\nv_add_u32 {v(task + 1)}, {DONE - FL + 224 * 128}, {v(task + 1)}")
        A(f"v_cmp_gt_u32 vcc, 32, v0\nv_cndmask_b32 {v(task)}, {v(task + 1)}, {v(task)}, vcc")
        pieces = pieces + [ln_piece]
    full = (1 << len(pieces)) - 1
    A(f"s_mov_b32 s38, 0\ns_mov_b32 s39, {FL}")
    A(f"{lp}:")
    flag_load(A, task + 2, task, "s39")
    poll_guard(A)
    A(f"s_waitcnt vmcnt(0)\nv_cmp_eq_u32 vcc, {s(S_NONCE)}, {v(task + 2)}\nv_cmp_eq_u32 s[42:43], {s(S_NONCE)}, {v(task + 3)}\ns_and_b64 vcc, vcc, s[42:43]")
    if ln_piece:
        b = 1 << (len(pieces) - 1)
        A(f"s_and_b32 s40, vcc_lo, {b - 1}\ns_cmp_eq_u32 vcc_hi, -1\ns_cselect_b32 s42, {b}, 0\ns_or_b32 s40, s40, s42\ns_andn2_b32 s40, s40, s38")
    else:
        A("s_andn2_b32 s40, vcc_lo, s38")
    for p, (n, emit) in enumerate(pieces):
        sk = A.new("lps")
        A(f"s_bitcmp1_b32 s40, {p}\ns_cbranch_scc0 {sk}\ns_waitcnt vmcnt({63 - n})")
        emit()
        A(f"{sk}:")
    out = A.new("lpo")
    A(f"s_or_b32 s38, s38, s40\ns_and_b32 s38, s38, {full}\ns_cmp_eq_u32 s38, {full}\ns_cbranch_scc1 {out}\ns_sleep 2\ns_branch {lp}\n{out}:")


def frag_loads(A, sreg, items, nacc=256, v0=WV0, cap=None):
    base = None
    for idx, off in items:
        if base is None or not 0 <= off - base < 4096:
            base = off
            A(f"s_add_u32 s41, {s(sreg)}, {off}")
        A(f"buffer_load_dwordx4 {wreg(idx, 4, nacc, v0)}, v3, {s(WS, 4)}, s41 offen offset:{off - base}{FNT}")
        if cap:
            A(f"s_waitcnt vmcnt({cap})")


def interleave(A, stream, fill):
    def em(x):
        if callable(x):
            x()
        else:
            A(x)
    for x in fill.get(-1, []):
        em(x)
    for i, m in enumerate(stream):
        em(m)
        for x in fill.get(i, []):
            em(x)


def spread(fill, start, items, per=2):
    g = start
    for it in items:
        while len(fill.setdefault(g, [])) >= per:
            g += 1
        fill[g].append(it)
    return g


def load_weights(A, vm, vaddr, tiles, sreg, n_ks=14, base_idx=0, nacc=256, v0=WV0, flags=" sc1"):
    idx = base_idx
    for setter in tiles:
        setter()
        for ks in range(n_ks):
            vm.room(1)
            vm.op(f"buffer_load_dwordx4 {wreg(idx, 4, nacc, v0)}, {v(vaddr)}, {s(WS, 4)}, {s(sreg)} offen offset:{(ks % 4) * 1024}{flags}", "w")
            if ks % 4 == 3:
                A(f"s_add_u32 {s(sreg)}, {s(sreg)}, 4096")
            idx += 4


def sentinel_check(A, regs, t, retry):
    regs = list(regs)
    A(f"v_max3_u32 {v(t)}, {v(regs[0])}, {v(regs[1])}, {v(regs[2])}")
    rest = regs[3:]
    while len(rest) >= 2:
        A(f"v_max3_u32 {v(t)}, {v(t)}, {v(rest[0])}, {v(rest[1])}")
        rest = rest[2:]
    if rest:
        A(f"v_max_u32 {v(t)}, {v(t)}, {v(rest[0])}")
    A(f"v_cmp_eq_u32 vcc, -1, {v(t)}\ns_cbranch_vccnz {retry}")


def stamp(A, opts, slot):
    if opts.get("stamps", 0) == 2:
        A(f"s_memtime {s(60 + 2 * slot, 2)}")
        if slot == 0:
            A("s_memrealtime s[74:75]")


def collect(A, opts, vb, sstep=44):
    if opts.get("stamps", 0) == 2:
        A(f"s_waitcnt lgkmcnt(0)\ns_mov_b32 m0, {s(sstep)}")
        for k in range(5):
            A(f"v_writelane_b32 {v(vb + k)}, {s(60 + 2 * k)}, m0")
        A(f"v_writelane_b32 {v(vb + 5)}, s74, m0")


def collect_lds(A, opts, sbase, off, t, sstep=44):
    if opts.get("stamps", 0) == 2:
        A(f"s_waitcnt lgkmcnt(0)\ns_lshl_b32 s78, {s(sstep)}, 2\ns_add_u32 s78, s78, {s(sbase)}\nv_mov_b32 {v(t + 1)}, s78")
        for k, r in enumerate([60, 62, 64, 66, 68, 74]):
            A(f"v_mov_b32 {v(t)}, {s(r)}\nds_write_b32 {v(t + 1)}, {v(t)} offset:{off + 256 * k}")


def fetch_lds(A, opts, sbase, off, vb):
    if opts.get("stamps"):
        A(f"v_lshrrev_b32 v0, 4, v3\nv_lshlrev_b32 v4, 2, v0\nv_add_u32 v4, {s(sbase)}, v4")
        for k in range(6):
            A(f"ds_read_b32 {v(vb + k)}, v4 offset:{off + 256 * k}")
        A("s_waitcnt lgkmcnt(0)")


def mark(A, opts, k):
    if opts.get("stamps"):
        A(f"s_memtime s[78:79]\ns_memrealtime s[76:77]\ns_waitcnt lgkmcnt(0)\ns_mov_b32 {s(80 + 2 * k)}, s78\ns_mov_b32 {s(81 + 2 * k)}, s76")


def flush_stamps(A, opts, vb=114):
    if opts.get("stamps"):
        mark(A, opts, 7)
        A(f"s_lshl_b32 s78, {s(S_ID)}, 2\ns_add_u32 s78, s78, {s(S_W)}\ns_lshl_b32 s78, s78, 11\ns_add_u32 s78, s78, {DBG}")
        A("v_lshlrev_b32 v4, 2, v0")
        for k in range(6):
            A(f"buffer_store_dword {v(vb + k)}, v4, {s(WS, 4)}, s78 offen offset:{256 * k}")
        A("v_mov_b32 v4, 0")
        for k in range(16):
            A(f"v_mov_b32 v5, {s(80 + k)}\nbuffer_store_dword v5, v4, {s(WS, 4)}, s78 offen offset:{1536 + 4 * k}")


def dbg_time(A, opts, slot, who, sreg=S_ID, srd=DB, base=80):
    if opts.get("tl"):
        sk = A.new("tl")
        A(f"s_cmp_eq_u32 {s(sreg)}, {who}\ns_cbranch_scc0 {sk}\ns_cmp_eq_u32 s3, 0\ns_cbranch_scc0 {sk}")
        A("s_memrealtime s[76:77]\ns_waitcnt lgkmcnt(0)")
        A(f"v_mov_b32 v4, s76\nv_mov_b32 v5, {(16 if slot < 4 else 32) + 4 * slot}\nbuffer_store_dword v4, v5, {s(srd, 4)}, 0 offen\n{sk}:")


def amp_mark(A, opts, k):
    if opts.get("amp") is not None and (k == 0 or opts["amp"] == k):
        A(f"s_memrealtime s[76:77]\ns_waitcnt lgkmcnt(0)\ns_mov_b32 {'s97' if k == 0 else 's96'}, s76")
        if k == 0:
            A("s_mov_b32 s96, s76")


def amp_spin(A, opts, who, ks):
    if opts.get("amp") in ks:
        lp, sk = A.new("amp"), A.new("amps")
        A(f"s_cmp_eq_u32 {s(S_ID)}, {who}\ns_cbranch_scc0 {sk}\ns_sub_u32 s96, s96, s97\ns_lshl_b32 s96, s96, 2\ns_add_u32 s96, s96, 20000")
        A(f"{lp}:\ns_memrealtime s[76:77]\ns_waitcnt lgkmcnt(0)\ns_sub_u32 s76, s76, s97\ns_cmp_lt_u32 s76, s96\ns_cbranch_scc1 {lp}\n{sk}:")
```

```python
from asmlib import v, a, s
from layout import *
from common import *
from gen_prep import chunk_pos

SMF = "v_smfmac_f32_16x16x64_bf16"
MF = "v_mfma_f32_16x16x32_bf16"
N_CHAIN = 32


def chain_mode(A, opts, vm, lab):
    lp = A.new("reg")
    A("v_mov_b32 v5, 68")
    A(f"{lp}:\ns_sleep 16")
    A(f"buffer_load_dword v4, v5, {s(DB, 4)}, 0 offen sc1")
    poll_guard(A)
    vm.drain()
    A(f"v_readfirstlane_b32 s34, v4\ns_and_b32 s35, s34, 0xff\ns_cmp_eq_u32 s35, {N_CHAIN}\ns_cbranch_scc0 {lp}")
    mark(A, opts, 1)
    dbg_time(A, opts, 5, 16)
    if lab:
        A(f"s_waitcnt lgkmcnt(0)\ns_lshr_b32 s34, s34, 8\ns_cmp_eq_u32 s34, 0\ns_cbranch_scc0 {lab}")


def gather_addr(A, ga0, ga1):
    A(f"s_mul_i32 s33, {s(S_W)}, {112 * 16}\nv_add_u32 {v(ga0)}, s33, v3")
    A(f"v_min_u32 {v(ga1)}, 47, v0\nv_lshlrev_b32 {v(ga1)}, 4, {v(ga1)}\ns_add_u32 s33, s33, 1024\nv_add_u32 {v(ga1)}, s33, {v(ga1)}")


def mem_loads(A, G, ga0, ga1, scm):
    A(f"buffer_load_dwordx4 {v(G, 4)}, {v(ga0)}, {s(WS, 4)}, {s(scm)} offen sc1")
    A(f"buffer_load_dwordx4 {v(G + 4, 4)}, {v(ga1)}, {s(WS, 4)}, {s(scm)} offen sc1")


def check8(A, G, t):
    A(f"v_max3_u32 {v(t)}, {v(G)}, {v(G + 1)}, {v(G + 2)}\nv_max3_u32 {v(t + 1)}, {v(G + 3)}, {v(G + 4)}, {v(G + 5)}")
    A(f"v_max3_u32 {v(t)}, {v(t)}, {v(G + 6)}, {v(G + 7)}\nv_max_u32 {v(t)}, {v(t)}, {v(t + 1)}\nv_cmp_eq_u32 vcc, -1, {v(t)}")


def gather_mem(A, opts, G0, G1, ga0, ga1, scm, t, memb, shadow, ka=""):
    lp, ok = A.new("poll"), A.new("ok")
    mem_loads(A, G0, ga0, ga1, scm)
    for x in shadow:
        A(x)
    A(f"{lp}:")
    for cur, other in ((G0, G1), (G1, G0)):
        mem_loads(A, other, ga0, ga1, scm)
        poll_guard(A)
        A(ka)
        A("s_waitcnt vmcnt(2)")
        A(f"ds_write_b128 {v(ga0)}, {v(cur, 4)} offset:{memb}\nds_write_b128 {v(ga1)}, {v(cur + 4, 4)} offset:{memb}")
        check8(A, cur, t)
        if opts.get("solo"):
            A(f"s_cbranch_vccz {ok}\ns_branch {ok}")
        A(f"s_cbranch_vccz {ok}" if cur == G0 else f"s_cbranch_vccnz {lp}")
    A(f"{ok}:")
    stamp(A, opts, 0)
    A("s_waitcnt lgkmcnt(0)\ns_barrier")


def notice_wait(A, opts, F, fa, sreg, off, shadow, sstep=None):
    if opts.get("solo"):
        for x in shadow:
            A(x)
        return
    depth = opts.get("nd", 3)
    lp, ok = A.new("nw"), A.new("nok")
    ld = lambda k: A(f"buffer_load_dword {v(F + k)}, {v(fa)}, {s(WS, 4)}, {s(sreg)} offen offset:{off} sc1")
    for k in range(depth - 1):
        ld(k)
    for x in shadow:
        A(x)
    if sstep is not None:
        A(f"s_cmp_eq_u32 {s(sstep)}, 0\ns_cbranch_scc1 {ok}")
    A(f"{lp}:")
    poll_guard(A)
    for k in range(depth):
        ld((k + depth - 1) % depth)
        A(f"s_waitcnt vmcnt({depth - 1})\nv_cmp_ne_u32 vcc, {s(S_NONCE)}, {v(F + k)}")
        A(f"s_cbranch_vccz {ok}" if k < depth - 1 else f"s_cbranch_vccnz {lp}")
    A(f"{ok}:")


def fetch_mem(A, opts, G, ga0, ga1, scm, t, memb, ka=""):
    lp = A.new("fm")
    A(f"{lp}:")
    mem_loads(A, G, ga0, ga1, scm)
    poll_guard(A)
    A(ka)
    A("s_waitcnt vmcnt(0)")
    A(f"ds_write_b128 {v(ga0)}, {v(G, 4)} offset:{memb}\nds_write_b128 {v(ga1)}, {v(G + 4, 4)} offset:{memb}")
    check8(A, G, t)
    if opts.get("stamps"):
        A("s_add_u32 s53, s53, 1")
    if not opts.get("solo"):
        A(f"s_cbranch_vccnz {lp}")
    stamp(A, opts, 0)
    A("s_waitcnt lgkmcnt(0)\ns_barrier")


def notice(A, val, addr, sreg, off, sc, lanes=64):
    if lanes < 64:
        A(f"s_mov_b64 exec, {hex((1 << lanes) - 1)}")
    A(f"buffer_store_dword {v(val)}, {v(addr)}, {s(WS, 4)}, {s(sreg)} offen offset:{off}{sc}")
    if lanes < 64:
        A("s_mov_b64 exec, -1")


def idx_reg(A, r):
    A(f"v_mov_b32 {v(r)}, 0x44444444\nv_mov_b32 v4, 0xeeeeeeee\nv_cmp_gt_u32 vcc, 8, v1\nv_cndmask_b32 {v(r)}, v4, {v(r)}, vcc")


def zero(r, n):
    return [f"v_mov_b64 {v(r + 2 * k, 2)}, 0" for k in range(n // 2)]


def emit_stream(A, stream, fill):
    for i, m_ in enumerate(stream):
        m_() if callable(m_) else A(m_)
        items = fill.get(i, [])
        for x in items:
            x() if callable(x) else A(x)
        if not items and i + 1 < len(stream):
            A("s_nop 1")


def gen_chain_a(A, opts):
    MEM, ACC, KEY, TSP, SC, PK, IDX = 4, 32, 60, 84, 92, 104, 108
    CK, TR3B, SPARE, FA, MK, MK3, TW0, TW3A, TW3B, TR0, TR3 = range(109, 120)
    XR, SW, SR, PX, PM = 0, 1, 2, 106, 107
    T = 104
    REG = 32768
    XK, TB, SB, MEMB = 0, 16384, 57344, 24576
    sS, sCM, sCP, sXA, sXB, sM0, sP0, sODD, sREG, sEF, sYP, sMB, sQ, sEX, sNP = 44, 45, 46, 47, 48, 49, 50, 51, 52, 54, 55, 56, 57, 58, 72
    vm = Cnt(A, "vmcnt", 63)
    A(f"s_and_b32 {s(sODD)}, {s(S_W)}, 1\ns_mul_i32 s33, {s(S_W)}, 7\ns_add_u32 {s(sP0)}, s33, {s(sODD)}\ns_lshr_b32 {s(sP0)}, {s(sP0)}, 1")
    A(f"s_lshl_b32 {s(sREG)}, {s(S_W)}, 15\ns_mov_b32 {s(sM0)}, {s(sREG)}")
    A(f"s_lshl_b32 {s(sXA)}, {s(sP0)}, 10\ns_add_u32 {s(sXA)}, {s(sXA)}, {XS}\ns_mul_i32 s33, {s(sODD)}, 4092\ns_sub_u32 {s(sXB)}, {s(sXA)}, s33")

    if opts.get("gemu"):
        A(f"s_mul_i32 {s(sXA)}, {s(S_ID)}, {28 * KB}\ns_mul_i32 s33, {s(S_W)}, {3 * KB}\ns_add_u32 {s(sXA)}, {s(sXA)}, s33\ns_add_u32 {s(sXA)}, {s(sXA)}, {opts['gemu'] << 20}\ns_mov_b32 {s(sXB)}, {s(sXA)}")

    def dma(k):
        aa, b = k // 4, k % 4
        pre = f"s_add_u32 s33, {s(sM0)}, {aa * 4096}\ns_mov_b32 m0, s33\n" if b == 0 else ""
        if b in (0, 3):
            pre += f"s_add_u32 s34, {s(sXB if b == 3 else sXA)}, {aa * 14336}\n"
        return pre + f"buffer_load_dwordx4 v3, {s(WS, 4)}, s34 offen offset:{b * 1024} sc1 lds"

    A(f"s_mul_i32 s34, {s(S_ID)}, {FRAG_H}\ns_mul_i32 s33, {s(S_W)}, {7 * 14 * KB}\ns_add_u32 s34, s34, s33")
    if AF:
        A(f"s_add_u32 s34, s34, {AF}")
    A(f"s_mul_i32 s35, {s(sODD)}, {14 * KB}\ns_add_u32 s35, s35, s34\ns_add_u32 s36, s34, {6 * 14 * KB}\ns_cmp_eq_u32 {s(sODD)}, 0\ns_cselect_b32 s36, s36, s34")
    A(f"s_mul_i32 s33, {s(S_ID)}, 7\nv_min_u32 v4, 6, v0\nv_add_u32 v4, s33, v4")

    def piece(kk):
        frag_loads(A, 35, [((i * 7 + kk) * 8 + 4 * u, i * 14 * KB + (2 * kk + u) * KB) for i in range(6) for u in range(2)])
        frag_loads(A, 36, [((42 + kk) * 8 + 4 * u, (2 * kk + u) * KB) for u in range(2)])

    A(f"s_lshl_b32 {s(sQ)}, {s(S_W)}, 11\ns_add_u32 {s(sMB)}, {s(sQ)}, {MEMB}\ns_add_u32 {s(sQ)}, {s(sQ)}, {CM}")
    A(f"s_cmp_eq_u32 {s(S_W)}, 3\ns_cselect_b64 {s(sEX, 2)}, {opts.get('ex3', 1)}, -1")
    fetch = f"buffer_load_dwordx4 v3, {s(WS, 4)}, {s(sQ)} offen sc1 lds\ns_mov_b64 exec, {s(sEX, 2)}\nbuffer_load_dwordx4 v3, {s(WS, 4)}, {s(sQ)} offen offset:1024 sc1 lds\ns_mov_b64 exec, -1"

    def first_inputs():
        for k in range(8):
            A(dma(k))
        A(f"s_mov_b32 m0, {s(sMB)}\ns_nop 0\n" + fetch)

    if opts.get('late'):
        A('v_mov_b32 v20, v4\ns_mov_b32 s60, s35\ns_mov_b32 s61, s36')
        wait_prep(A, True)
        A('v_mov_b32 v4, v20\ns_mov_b32 s35, s60\ns_mov_b32 s36, s61')
        mark(A, opts, 3)
    load_pieces(A, [(14, lambda kk=kk: piece(kk)) for kk in range(7)], 4, (10, first_inputs))
    mark(A, opts, 2)
    idx_reg(A, IDX)
    A(f"v_and_b32 v4, 7, v1\nv_lshlrev_b32 v4, 4, v4\nv_lshl_add_u32 v4, v2, 7, v4\ns_lshl_b32 s33, {s(sP0)}, 9\nv_add_u32 {v(MK)}, s33, v4")
    A(f"s_mul_i32 s34, {s(sODD)}, 2044\ns_sub_u32 s34, {1536 + MEMB}, s34\nv_add_u32 {v(MK3)}, s34, {v(MK)}")
    A(f"v_lshrrev_b32 v4, 1, v2\nv_lshlrev_b32 v4, 3, v4\nv_xor_b32 v4, v4, v1\nv_lshlrev_b32 v4, 3, v4\nv_lshl_add_u32 v4, v2, 7, v4\nv_add_u32 {v(TW0)}, {s(sREG)}, v4")
    A(f"s_add_u32 s34, {s(sREG)}, {TB + 3072}\nv_lshrrev_b32 v4, 5, v0\nv_lshlrev_b32 v4, 2, v4\nv_xor_b32 v4, v4, v0\nv_lshlrev_b32 v4, 3, v4\nv_add_u32 {v(TW3A)}, s34, v4\nv_xor_b32 {v(TW3B)}, 64, {v(TW3A)}\nv_add_u32 {v(TW3B)}, 512, {v(TW3B)}")
    A("v_lshrrev_b32 v4, 2, v1\nv_and_b32 v5, 3, v1")
    A("v_lshrrev_b32 v6, 1, v2\nv_lshrrev_b32 v8, 1, v5\nv_xor_b32 v6, v6, v8\nv_lshlrev_b32 v6, 3, v6")
    A("v_and_b32 v7, 1, v2\nv_lshl_add_u32 v6, v7, 1, v6\nv_and_b32 v7, 1, v4\nv_add_u32 v6, v6, v7")
    A("v_lshrrev_b32 v7, 1, v4\nv_lshlrev_b32 v6, 3, v6\nv_lshl_add_u32 v6, v7, 9, v6\nv_lshl_add_u32 v6, v5, 7, v6")
    A(f"v_add_u32 {v(TR0)}, {s(sREG)}, v6")
    A("v_lshrrev_b32 v6, 1, v2\nv_xor_b32 v6, v6, v8\nv_lshlrev_b32 v6, 3, v6\nv_and_b32 v7, 1, v2\nv_lshl_add_u32 v6, v7, 1, v6\nv_and_b32 v7, 1, v4\nv_add_u32 v6, v6, v7")
    A("v_lshrrev_b32 v9, 1, v4\nv_lshl_add_u32 v6, v9, 2, v6\nv_lshlrev_b32 v6, 3, v6\nv_lshl_add_u32 v6, v8, 9, v6\nv_lshl_add_u32 v6, v9, 8, v6\nv_and_b32 v7, 1, v5\nv_lshl_add_u32 v6, v7, 7, v6")
    A(f"v_add_u32 {v(TR3)}, s34, v6\nv_xor_b32 {v(TR3B)}, 32, {v(TR3)}")
    A(f"s_lshl_b32 s33, {s(sODD)}, 2\nv_add_u32 v4, s33, v2")
    A(f"v_lshrrev_b32 v5, 2, v1\nv_lshlrev_b32 v5, 7, v5\nv_and_b32 v6, 3, v1\nv_lshl_add_u32 v5, v6, 2, v5\nv_lshl_add_u32 {v(PX)}, v4, 4, v5")
    A(f"v_lshlrev_b32 v4, 4, v4\nv_lshl_add_u32 v4, v1, 1, v4\nv_add_u32 v4, 512, v4\nv_and_b32 v5, 9, v1\nv_cmp_eq_u32 vcc, 0, v5\nv_mov_b32 v5, {OOB}\nv_cndmask_b32 {v(PM)}, v5, v4, vcc")
    A(f"v_lshrrev_b32 v4, 1, v2\nv_lshlrev_b32 v4, 5, v4\nv_add_u32 v4, v4, v1\ns_lshl_b32 s33, {s(sODD)}, 4\nv_add_u32 v4, s33, v4\nv_lshlrev_b32 v4, 3, v4")
    A(f"v_and_b32 v5, 1, v2\nv_lshl_add_u32 v4, v5, 2, v4\nv_add_u32 v13, {SB}, v4\nv_lshlrev_b32 v14, 3, v0\ns_lshl_b32 s33, {s(S_W)}, 11\nv_add_u32 v14, s33, v14")
    A(f"s_cmp_eq_u32 {s(S_W)}, 3\ns_cselect_b32 s34, 7, 15\nv_min_u32 {v(FA)}, s34, v1\nv_lshlrev_b32 {v(FA)}, 2, {v(FA)}")
    if opts.get("wl", 3) & 1:
        A(f"s_lshl_b32 s33, {s(S_ID)}, 2\ns_add_u32 s33, s33, {s(S_W)}\ns_lshl_b32 s33, s33, 7")
    else:
        A(f"s_lshl_b32 s33, {s(S_ID)}, 9\ns_lshl_b32 s34, {s(S_W)}, 6\ns_add_u32 s33, s33, s34")
    A(f"v_add_u32 {v(FA)}, s33, {v(FA)}\ns_mov_b32 {s(sEF)}, {EF}\ns_mov_b32 s53, 0")
    A("v_and_b32 v5, 1, v1\nv_lshlrev_b32 v5, 3, v5\nv_lshrrev_b32 v6, 3, v1\nv_lshl_add_u32 v5, v6, 2, v5\nv_and_b32 v6, 2, v1\nv_add_u32 v5, v5, v6\nv_bfe_u32 v6, v1, 2, 1\nv_add_u32 v5, v5, v6")
    chunk_pos(A, 12, 5, 2, 4)
    A(f"v_add_u32 v12, {s(sREG)}, v12")
    A(f"v_mov_b32 {v(XR)}, v12\nv_mov_b32 {v(SW)}, v14\nv_mov_b32 {v(SR)}, v13")
    A(f"s_mov_b32 {s(sS)}, 0\ns_mov_b32 {s(sCM)}, {CM}\ns_mul_i32 {s(sCP)}, {s(S_ID)}, 640\ns_add_u32 {s(sCP)}, {s(sCP)}, {CP}")
    if opts.get("wl", 3) & 2:
        A(f"s_lshr_b32 s33, {s(S_ID)}, 2\ns_lshl_b32 s33, s33, 7\ns_and_b32 s34, {s(S_ID)}, 3\ns_lshl_b32 s34, s34, 2\ns_add_u32 {s(sNP)}, s33, s34\ns_add_u32 {s(sNP)}, {s(sNP)}, {EF_P}")
    else:
        A(f"s_lshl_b32 {s(sNP)}, {s(S_ID)}, 2\ns_add_u32 {s(sNP)}, {s(sNP)}, {EF_P}")
    ahead = opts.get("yah", 1)
    A(f"s_mul_i32 {s(sYP)}, {s(S_ID)}, {28 * KB}\ns_mul_i32 s33, {s(S_W)}, {7 * KB}\ns_add_u32 {s(sYP)}, {s(sYP)}, s33\ns_add_u32 {s(sYP)}, {s(sYP)}, {YF + ahead * 16 * 28 * KB}")
    slow = A.new("a_slow")
    fresh = zero(ACC, 28) + [f"v_lshlrev_b32 {v(T)}, 3, v3"]
    for x in fresh:
        A(x)
    for k in range(opts.get("ay", 0)):
        A(f"s_sub_u32 s33, {s(sYP)}, {(ahead - k) * 16 * 28 * KB}\nbuffer_load_dword v20, {v(T)}, {s(WS, 4)}, s33 offen sc1")
    wait_start(A, opts, slow)
    ka = lambda n, r=ACC: "".join(f"{MF} {v(r, 4)}, {v(TSP, 4)}, {v(TSP, 4)}, {v(r, 4)}\n" for _ in range(n))

    def loop(sc):
        top, nxt, done, lp, ok, idle = (A.new(x) for x in ("a_top", "a_next", "a_done", "a_poll", "a_ok", "a_idle"))
        redo = A.new("a_redo")
        G0, G1 = KEY, KEY + 8
        A(f"s_branch {lp}")
        if opts.get("al"):
            A(f".p2align {opts['al']}")
        A(f"{top}:")
        notice_wait(A, opts, G1, FA, sEF, 0, fresh + [f"s_mov_b32 m0, {s(sMB)}"])
        if opts.get("nst"):
            stamp(A, opts, 1)
        A(fetch)
        A(f"{lp}:")
        if opts.get("stamps"):
            A("s_add_u32 s53, s53, 1")
        A(ka(opts.get("ka_m", 0), SC))
        A("s_waitcnt vmcnt(0)")
        stamp(A, opts, 0)
        A("s_barrier")
        if not opts.get("nst"):
            stamp(A, opts, 1)
        lg = Cnt(A, "lgkmcnt", 15)
        for kk in range(7):
            lg.op(f"ds_read_b128 {v(MEM + 4 * kk, 4)}, v3 offset:{MEMB + kk * 1024}", f"m{kk}")

        def tile(i):
            out = []
            for kk in range(7):
                txt = f"{SMF} {v(ACC + 4 * i, 4)}, {v(MEM + 4 * kk, 4)}, {wreg((i * 7 + kk) * 8, 8)}, {v(IDX)}" if not opts.get("noam") else "s_nop 2"
                out.append((lambda txt=txt, kk=kk: (lg.wait(f"m{kk}"), A(txt))) if i == 0 else txt)
            return out

        def score(b):
            out = []
            for tau in range(3):
                c = "0" if b == 0 else v(SC + 4 * tau, 4)
                txt = f"{MF} {v(SC + 4 * tau, 4)}, {v(TSP + 4 * (b % 2), 4)}, {v(KEY + 12 * (b % 2) + 4 * tau, 4)}, {c}"
                out.append((lambda txt=txt: (lg.wait(f"tr{b}", f"k{b}"), A(txt))) if tau == 0 else txt)
            return out

        def keys(b):
            K = KEY + 12 * (b % 2)
            out = [lambda aa=aa: lg.op(f"ds_read_b128 {v(K + 4 * aa, 4)}, {v(XR)} offset:{XK + aa * 4096 + b * 1024}", f"k{b}") for aa in range(2)]
            if b == 3:
                return out + [lambda x=x: lg.op(f"ds_read2_b32 {v(K + 8 + 2 * x, 2)}, {v(MK3)} offset0:{2 * x} offset1:{2 * x}", "k3") for x in range(2)]
            out.append(lambda: lg.op(f"ds_read_b128 {v(K + 8, 4)}, {v(MK)} offset:{MEMB + b * 512}", f"k{b}"))
            return out

        def epi(i):
            D = ACC + 4 * i
            out = [f"v_cvt_pk_bf16_f32 {v(PK)}, {v(D)}, {v(D + 1)}", f"v_cvt_pk_bf16_f32 {v(PK + 1)}, {v(D + 2)}, {v(D + 3)}"]
            if i < 6:
                return out + [lambda: lg.op(f"ds_write_b64 {v(TW0)}, {v(PK, 2)} offset:{TB + i * 512}", f"t{i}")]
            return out + [lambda: lg.op(f"ds_write_b64 {v(TW3A)}, {v(PK, 2)}", "t6"),
                          lambda: lg.op(f"ds_write2_b32 {v(TW3B)}, {v(PK + 1)}, {v(PK)} offset0:0 offset1:1", "t6")]

        def trs(b):
            if b == 3:
                return [lambda x=x: lg.op(f"ds_read_b64_tr_b16 {v(TSP + 4 + 2 * x, 2)}, {v((TR3, TR3B)[x])}", "tr3") for x in range(2)]
            return [lambda x=x: lg.op(f"ds_read_b64_tr_b16 {v(TSP + 4 * (b % 2) + 2 * x, 2)}, {v(TR0)} offset:{TB + b * 1024 + 32 * x}", f"tr{b}") for x in range(2)]

        stream = tile(0) + tile(1) + tile(2) + tile(3) + score(0) + tile(4) + tile(5) + score(1) + tile(6) + score(2)[:2]
        fill = {}

        def put(g, items):
            for k, it in enumerate(items):
                assert g + k not in fill, g + k
                fill[g + k] = [it]

        for k in range(opts.get("apf", 1)):
            pre = f"s_add_u32 s33, {s(sREG)}, 24320\ns_mov_b32 m0, s33\ns_nop 0\n" if k == 0 else ""
            (put if opts.get("pfg", 1) >= 0 else lambda g, x: A(x[0]))(opts.get("pfg", 1) + 3 * k, [pre + f"buffer_load_dword {v(T)}, {s(WS, 4)}, {s(sYP)} offen offset:{128 // opts.get('apf', 1) * k} sc1 lds"])
        early = opts.get("ek", 1)
        put(1 if early else 4, keys(0))
        put(4 if early else 15, keys(1))
        put(11, epi(0))
        put(18, epi(1))
        put(21, trs(0))
        put(25, epi(2))
        k2 = keys(2)
        put(31, k2[:1])
        put(32, epi(3))
        put(35, trs(1))
        put(38, k2[1:])
        put(41, epi(4))
        put(47, epi(5))
        put(50, trs(2))
        k3 = keys(3)
        dup = [f"v_mov_b32 {v(r + 1)}, {v(r)}" for r in range(KEY + 12, KEY + 20, 2)]
        if early:
            put(45, k3[:2])
            put(52, [lambda x=dup[0]: (lg.wait("k3"), A(x)), dup[1], dup[2], k3[2], k3[3]])
            dup = dup[3:]
        else:
            put(52, k3)
        br = "s_nop 0" if opts.get("solo") else f"s_cbranch_vccnz {redo}"
        mx = lambda x, y, z: f"v_max3_u32 {v(CK)}, {v(x)}, {v(y)}, {v(z)}"
        cmpi = f"v_cmp_eq_u32 vcc, -1, {v(CK)}"
        for g, x in zip((7, 8, 9, 10), (mx(MEM, MEM + 4, MEM + 8), mx(CK, MEM + 12, MEM + 16), mx(CK, MEM + 20, MEM + 24), cmpi)):
            put(g, [x])
        fill[12].append(br)
        rest = [MEM + r for r in range(28) if r % 4]
        late = [mx(*rest[:3])] + [mx(CK, rest[r], rest[r + 1]) for r in range(3, 21, 2)] + [cmpi]
        for g, x in zip((14, 15, 16, 17, 23, 24, 28, 29, 30, 37, 40) if early else (14, 23, 24, 28, 29, 30, 37, 40, 44, 45, 46), late):
            put(g, [x])
        fill[43 if early else 49].append(br)
        emit_stream(A, stream, fill)
        stamp(A, opts, 2)
        sw = []
        for tau in range(3):
            D = SC + 4 * tau
            sw += [f"v_permlane32_swap_b32 {v(D)}, {v(D + 2)}", f"v_permlane32_swap_b32 {v(D + 1)}, {v(D + 3)}", f"v_pk_add_f32 {v(D, 2)}, {v(D, 2)}, {v(D + 2, 2)}"]
        c0, c1, w0, w1 = epi(6)
        t0, t1 = trs(3)
        m2 = score(2)[2]
        seq = {0: [c0, c1, m2, w0, w1, t0, t1] + sw,
               1: [c0, c1, m2, w0, sw[0], w1, sw[1], t0, t1] + sw[2:],
               2: [c0, c1, w0, m2, w1, t0, t1] + sw,
               3: [c0, c1, m2, w0, w1, sw[0], t0, t1] + sw[1:],
               4: [c0, c1, w0, m2, w1, sw[0], t0, sw[1], t1] + sw[2:]}[opts.get("tv", 0)]
        for x in seq:
            x() if callable(x) else A(x)
        if not early:
            lg.wait("k3")
        for x in dup:
            A(x)
        A(f"s_cmp_ge_u32 {s(S_W)}, 2")
        for x in score(3):
            x() if callable(x) else A(x)
            A("s_nop 1")
        for tau in range(3):
            A(f"ds_write_b64 {v(SW)}, {v(SC + 4 * tau, 2)} offset:{SB + 512 * tau}")
        A("s_waitcnt lgkmcnt(0)\ns_barrier")
        stamp(A, opts, 3)
        R = MEM + 8
        nb = opts.get("brp", 0)
        for n in range(6):
            tau, hf = n // 2, n % 2
            if n == nb:
                A(f"s_cbranch_scc1 {idle}")
            A(f"ds_read2st64_b32 {v(R + 4 + 4 * tau + 2 * hf, 2)}, {v(SR)} offset0:{2 * tau + 16 * hf} offset1:{2 * tau + 16 * hf + 8}")
        for tau in range(3):
            A(f"s_waitcnt lgkmcnt({4 - 2 * tau})")
            A(f"v_pk_add_f32 {v(R + 4 + 4 * tau, 2)}, {v(R + 4 + 4 * tau, 2)}, {v(R + 6 + 4 * tau, 2)}")
            A(f"v_add_f32 {v(R + tau)}, {v(R + 4 + 4 * tau)}, {v(R + 5 + 4 * tau)}")
        mx, sm = T, T + 1
        A(f"v_max3_f32 {v(mx)}, {v(R)}, {v(R + 1)}, {v(R + 2)}")
        for rot in (8, 4, 2, 1):
            A(f"v_max_f32_dpp {v(mx)}, {v(mx)}, {v(mx)} row_ror:{rot} row_mask:0xf bank_mask:0xf")
        for tau in (2, 0, 1):
            A(f"v_sub_f32 {v(R + tau)}, {v(R + tau)}, {v(mx)}")
        for tau in (2, 0, 1):
            A(f"v_exp_f32 {v(R + tau)}, {v(R + tau)}")
        A(f"v_fma_f32 {v(sm)}, 0.5, {v(R + 2)}, {v(R)}")
        A(f"v_mov_b32_dpp {v(R + 3)}, {v(R + 2)} quad_perm:[1,0,3,2] row_mask:0xf bank_mask:0xf")
        A(f"v_add_f32 {v(sm)}, {v(sm)}, {v(R + 1)}")
        for rot in (8, 4, 2, 1):
            A(f"v_add_f32_dpp {v(sm)}, {v(sm)}, {v(sm)} row_ror:{rot} row_mask:0xf bank_mask:0xf")
        A(f"v_rcp_f32 {v(sm)}, {v(sm)}")
        for k, addr in ((0, PX), (2, PM)):
            A(f"v_mul_f32 {v(R + k)}, {v(R + k)}, {v(sm)}\nv_mul_f32 {v(R + k + 1)}, {v(R + k + 1)}, {v(sm)}")
            A(f"v_cvt_pk_bf16_f32 {v(R + k)}, {v(R + k)}, {v(R + k + 1)}\nv_min_u32 {v(R + k)}, -2, {v(R + k)}")
            A(f"buffer_store_dword {v(R + k)}, {v(addr)}, {s(WS, 4)}, {s(sCP)} offen{sc}")
        A(f"{nxt}:")
        stamp(A, opts, 4)
        collect_lds(A, opts, sREG, 22528, T)
        A(f"s_add_u32 {s(sS)}, {s(sS)}, 1\ns_add_u32 {s(sQ)}, {s(sQ)}, {0 if opts.get('solo') else 8192}\ns_add_u32 {s(sCP)}, {s(sCP)}, {0 if opts.get('solo') else 10240}")
        adv = 0 if opts.get("solo") else EF_STEP
        A(f"s_add_u32 {s(sEF)}, {s(sEF)}, {adv}\ns_add_u32 {s(sXA)}, {s(sXA)}, {28 * KB * (16 if opts.get('gemu') else 1)}\ns_add_u32 {s(sXB)}, {s(sXB)}, {28 * KB * (16 if opts.get('gemu') else 1)}\ns_add_u32 {s(sYP)}, {s(sYP)}, {16 * 28 * KB}")
        A("s_barrier")
        if not opts.get("nodma"):
            for k in range(8):
                A(dma(k))
        if opts.get("asl"):
            A(f"s_sleep {opts['asl']}")
        A(f"s_cmp_eq_u32 {s(sS)}, 63\ns_cbranch_scc0 {top}")
        A("s_waitcnt vmcnt(0)")
        A("s_mov_b32 s84, s53" if opts.get("stamps") else "")
        fetch_lds(A, opts, sREG, 22528, 10)
        flush_stamps(A, opts, 10)
        A("s_endpgm")
        A(f"{redo}:\ns_mov_b32 m0, {s(sMB)}\ns_waitcnt lgkmcnt(0)\ns_barrier")
        A(fetch)
        poll_guard(A)
        for x in fresh:
            A(x)
        A(f"s_branch {lp}")
        A(f"{idle}:\ns_waitcnt lgkmcnt(0)")
        A(f"v_lshrrev_b32 {v(T + 1)}, 4, v3\nv_min_u32 {v(T + 1)}, 13, {v(T + 1)}\nv_lshl_add_u32 {v(T + 1)}, {v(T + 1)}, 9, {s(sNP)}\nv_mov_b32 {v(T)}, {s(S_NONCE)}")
        A("s_nop 3\n" * opts.get("la", 6) if opts.get("lan") else ka(opts.get("la", 6)))
        w3 = A.new("a_w3")
        A(f"s_cmp_eq_u32 {s(S_W)}, 2\ns_cbranch_scc0 {w3}")
        notice(A, T, T + 1, sEF, 0, sc)
        A(f"s_branch {nxt}\n{w3}:")
        A(ka(opts.get("ka_sm", 0)))
        A(f"s_branch {nxt}")

    loop("")
    A(f"{slow}:")
    loop(" sc1")


def gen_chain_b(A, opts):
    MEM, ZACC, ZOP, Y, OACC, IDX = 4, 32, 60, 76, 108, 132
    GA0, GA1, PXA, PMA, RW, RR0, RR1, MO, WR, FA, FV = range(133, 144)
    FM, NZ, NA, FP = 128, 129, 130, 131
    T, WST, V0 = 116, 144, 176
    RED, WL = 8192, 12288
    sS, sCM, sCP, sY, sEF, sC, sFY = 44, 45, 46, 47, 48, 50, 51
    vm = Cnt(A, "vmcnt", 63)
    A(f"s_sub_u32 {s(sC)}, {s(S_ID)}, 16")
    A(f"s_mul_i32 s34, {s(S_W)}, {4 * FRAG_H}\ns_mul_i32 s33, {s(sC)}, {28 * KB}\ns_add_u32 s34, s34, s33\ns_add_u32 s34, s34, {BF}")
    A(f"s_mul_i32 s36, {s(S_W)}, {28 * KB}\ns_add_u32 s36, s36, {WL}\nv_add_u32 {v(WR)}, s36, v3\ns_add_u32 s37, s34, {3 * FRAG_H}")
    A(f"s_mul_i32 s33, {s(S_W)}, 28\ns_lshr_b32 s35, {s(sC)}, 1\ns_add_u32 s33, s33, s35\ns_add_u32 s33, s33, 112\nv_and_b32 v4, 3, v0\nv_mul_u32_u24 v4, 7, v4\nv_add_u32 v4, s33, v4")

    def piece(hh):
        if hh < 3:
            frag_loads(A, 34, [((hh * 28 + k) * 4, hh * FRAG_H + k * KB) for k in range(28)], v0=V0, cap=opts.get('bcap'))
            return
        for q in range(7):
            A("s_mov_b32 m0, s36\ns_add_u32 s36, s36, 4096")
            for k in range(4):
                A(f"buffer_load_dwordx4 v3, {s(WS, 4)}, s37 offen offset:{k * 1024} sc1 lds")
            A("s_add_u32 s37, s37, 4096")

    if opts.get('late'):
        A('v_mov_b32 v20, v4\ns_mov_b32 s60, s34\ns_mov_b32 s61, s36\ns_mov_b32 s62, s37')
        wait_prep(A, True)
        A('v_mov_b32 v4, v20\ns_mov_b32 s34, s60\ns_mov_b32 s36, s61\ns_mov_b32 s37, s62')
        mark(A, opts, 3)
    def touch_y():
        A(f"s_mul_i32 s33, {s(S_W)}, {4 * 28 * KB}\ns_lshl_b32 s35, {s(sC)}, 11\ns_add_u32 s33, s33, s35\ns_add_u32 s33, s33, {YF}")
        A(f"v_mul_u32_u24 v10, {28 * KB}, v2\nv_lshl_add_u32 v10, v1, 7, v10")
        A(f"buffer_load_dword v11, v10, {s(WS, 4)}, s33 offen sc1\ns_add_u32 s33, s33, {16 * 28 * KB}\nbuffer_load_dword v11, v10, {s(WS, 4)}, s33 offen sc1")

    load_pieces(A, [(28, lambda hh=hh: piece(hh)) for hh in range(4)], 4, (2, touch_y) if opts.get("by", 0) else None, True)
    gather_addr(A, GA0, GA1)
    idx_reg(A, IDX)
    A("v_and_b32 v4, 7, v1\nv_lshrrev_b32 v5, 3, v1\nv_lshrrev_b32 v6, 1, v2\nv_and_b32 v7, 1, v2")
    A(f"s_mul_i32 s33, {s(S_W)}, 2560")
    A(f"v_mul_u32_u24 v8, 640, v6\nv_lshl_add_u32 v8, v4, 4, v8\nv_lshl_add_u32 v8, v7, 8, v8\nv_lshl_add_u32 v8, v5, 7, v8\nv_add_u32 {v(PXA)}, s33, v8")
    A(f"v_lshl_add_u32 v8, v6, 1, v5\nv_mul_u32_u24 v8, 640, v8\nv_lshl_add_u32 v8, v4, 4, v8\ns_add_u32 s33, s33, 512\nv_add_u32 {v(PMA)}, s33, v8")
    A(f"v_lshl_add_u32 v8, v6, 1, v7\nv_xor_b32 v8, v0, v8\nv_lshlrev_b32 v8, 4, v8\ns_lshl_b32 s33, {s(S_W)}, 10\ns_add_u32 s33, s33, {RED}\nv_add_u32 {v(RW)}, s33, v8")
    A("v_lshrrev_b32 v4, 5, v0\nv_bfe_u32 v5, v0, 2, 3\nv_and_b32 v6, 3, v0")
    A("v_and_b32 v7, 1, v6\nv_lshrrev_b32 v8, 2, v5")
    A(f"v_lshlrev_b32 v9, 5, v7\nv_lshl_add_u32 v9, v8, 4, v9\ns_and_b32 s33, {s(S_W)}, 1\ns_lshl_b32 s33, s33, 3\nv_add_u32 v9, s33, v9")
    A("v_lshrrev_b32 v10, 1, v6\nv_lshl_add_u32 v9, v10, 2, v9\nv_lshl_add_u32 v9, v4, 1, v9")
    A("v_lshl_add_u32 v10, v7, 1, v8\nv_xor_b32 v9, v9, v10\nv_lshlrev_b32 v9, 4, v9\nv_and_b32 v10, 3, v5\nv_lshl_add_u32 v9, v10, 2, v9")
    A(f"v_add_u32 {v(RR0)}, {RED}, v9\nv_xor_b32 {v(RR1)}, 16, {v(RR0)}")
    A(f"s_lshl_b32 s33, {s(sC)}, 9\ns_and_b32 s35, {s(S_W)}, 1\ns_lshl_b32 s35, s35, 8\ns_add_u32 s33, s33, s35\nv_lshl_add_u32 {v(MO)}, v0, 2, s33")
    A(f"v_lshlrev_b32 {v(FA)}, 7, v1\nv_mov_b32 {v(FV)}, 0")
    A(f"s_mov_b32 {s(sS)}, 0\ns_mov_b32 {s(sCM)}, {CM}\ns_mov_b32 {s(sCP)}, {CP}")
    A(f"s_mul_i32 s33, {s(S_W)}, {4 * 28 * KB}\ns_lshl_b32 s35, {s(sC)}, 11\ns_add_u32 {s(sY)}, s33, s35\ns_add_u32 {s(sY)}, {s(sY)}, {YF}")
    A(f"s_mov_b32 {s(sFY)}, {FY}\ns_mov_b32 {s(sEF)}, {EF}\ns_mov_b32 s53, 0\ns_mov_b32 s55, 0")
    pw = 1
    A(f"v_and_b32 v4, 3, v0\nv_and_b32 v5, 1, v0\nv_add_u32 v5, 16, v5\ns_lshl_b32 s33, {s(sC)}, 9\ns_add_u32 s33, s33, {EF_P}")
    if opts.get("wl", 3) & 2:
        A(f"s_lshl_b32 s35, {s(S_W)}, 7\ns_add_u32 s33, s33, s35")
    else:
        A(f"s_lshl_b32 s35, {s(S_W)}, 2\nv_add_u32 v4, s35, v4")
    A(f"v_cmp_gt_u32 vcc, 32, v0\nv_cndmask_b32 {v(FP)}, v5, v4, vcc\nv_lshl_add_u32 {v(FP)}, {v(FP)}, 2, s33")
    A(f"s_and_b32 s33, {s(sC)}, 3\ns_lshl_b32 s33, s33, 2\ns_add_u32 s33, s33, {s(S_W)}\ns_lshl_b32 s33, s33, 2\ns_lshr_b32 s35, {s(sC)}, 2\ns_lshl_b32 s35, s35, {7 if opts.get('wl', 3) & 1 else 6}\ns_add_u32 s33, s33, s35")
    A(f"s_add_u32 s33, s33, {EF_STEP}\nv_min_u32 {v(NA)}, 15, v0\nv_lshl_add_u32 {v(NA)}, {v(NA)}, 9, s33\nv_mov_b32 {v(NZ)}, {s(S_NONCE)}")
    if opts.get("gemu"):
        A(f"v_lshlrev_b32 v126, 3, v3\ns_lshl_b32 s57, {s(sC)}, 2\ns_add_u32 s57, s57, {s(S_W)}\ns_lshl_b32 s57, s57, 13\ns_add_u32 s57, s57, {(opts['gemu'] << 20) + (opts.get('gah', 2) - 1) * 16 * 28 * KB}")
    slow = A.new("b_slow")
    wait_start(A, opts, slow, (FA, sFY))
    ka = lambda n: "".join(f"{MF} {v(ZACC + 8, 4)}, {v(ZOP, 4)}, {v(ZOP, 4)}, {v(ZACC + 8, 4)}\n" for _ in range(n))

    def loop(sc):
        top, nxt, last, noy, yok, ypoll, noflag, gm, gp, idle, noz = (A.new("b_" + x) for x in ("top", "next", "last", "noy", "yok", "ypoll", "nofl", "gm", "gp", "idle", "noz"))
        if opts.get("al"):
            A(f"s_branch {top}\n.p2align {opts['al']}")
        A(f"{top}:")
        if opts.get("ndb", 1):
            notice_wait(A, dict(opts, nd=opts.get('ndb', 1)), WST + 8, FM, sEF, 0, zero(ZACC, 28) + zero(OACC, 8), sS)
        else:
            for x in zero(ZACC, 28) + zero(OACC, 8):
                A(x)
        fetch_mem(A, dict(opts, stamps=0) if opts.get('nst') else opts, WST, GA0, GA1, sCM, T, 0)
        lg = Cnt(A, "lgkmcnt", 15)
        for kk in range(7):
            lg.op(f"ds_read_b128 {v(MEM + 4 * kk, 4)}, v3 offset:{kk * 1024}", f"m{kk}")
        bulk = []
        for hh in range(4):
            for vv in range(0 if opts.get("noy") else 2):
                pre = f"s_add_u32 s33, {s(sY)}, {hh * 28 * KB}\n" if vv == 0 else ""
                bulk.append(pre + f"buffer_load_dwordx4 {v(Y + 16 * (hh // 2) + 8 * vv + 4 * (hh % 2), 4)}, v3, {s(WS, 4)}, s33 offen offset:{vv * 1024} {'nt' if opts.get('ynt') == 1 else 'sc1 nt' if opts.get('ynt') else 'sc1'}")
        order = []
        regs = [(t, kk) for t in range(6) for kk in range(7)]
        for n in range(14):
            order += regs[3 * n:3 * n + 3] + [(6 + n // 7, n % 7)]
        accof = lambda t: ZACC + 4 * (t if t < 7 else 0)
        stream, pos, seen = [], {}, set()
        for t, kk in order:
            pos[(t, kk)] = len(stream)
            n = (t - 6) * 7 + kk
            w = wreg((t * 7 + kk) * 8, 8, 256, V0) if t < 6 else v(WST + 8 * (n % 4), 8)
            txt = f"{SMF} {v(accof(t), 4)}, {v(MEM + 4 * kk, 4)}, {w}, {v(IDX)}" if not opts.get("nozm") else "s_nop 2"
            tags = ([f"m{kk}"] if kk not in seen else []) + ([f"w{n}"] if t >= 6 else [])
            seen.add(kk)
            stream.append((lambda txt=txt, tags=tags: (lg.wait(*tags), A(txt))) if tags else txt)

        def wread(n):
            return [lambda u=u: lg.op(f"ds_read_b128 {v(WST + 8 * (n % 4) + 4 * u, 4)}, {v(WR)} offset:{(n // 7) * 14 * KB + (2 * (n % 7) + u) * KB}", f"w{n}") for u in range(2)]

        def epi(t):
            hh, vv = t // 2, t % 2
            D = accof(t)
            out = [f"v_cvt_pk_bf16_f32 {v(ZOP + 8 * vv + 4 * (hh // 2) + 2 * b + hh % 2)}, {v(D + 2 * b)}, {v(D + 2 * b + 1)}" for b in range(2)]
            return out + (zero(D, 4) if t == 0 else [])

        y = bulk + ["s_nop 0"] * (8 - len(bulk))
        for x in wread(0) + wread(1):
            x()
        npre = opts.get("ypre", 2)
        for x in y[:npre]:
            A(x)
        fill = {}
        for n in range(2, 14):
            spread(fill, 4 * (n - 2), wread(n), per=1)
        g = 2
        for x in y[npre:]:
            while g in fill:
                g += 1
            fill[g] = [x]
            g += opts.get("ygap", 1)
        if opts.get("gemu"):
            while g in fill:
                g += 1
            fill[g] = [f"s_mov_b32 m0, 7168\ns_add_u32 s57, s57, {16 * 28 * KB}\nbuffer_load_dword v126, {s(WS, 4)}, s57 offen sc1 lds"]
        late = []
        for t in sorted(range(8), key=lambda t: pos[(t, 6)]):
            g = pos[(t, 6)] + 4
            for x in epi(t):
                while g in fill:
                    g += 1
                if g < len(stream):
                    fill[g] = [x]
                    assert t != 0 or g < pos[(7, 0)] - 1
                else:
                    late.append(x)
        emit_stream(A, stream, fill)
        for x in late:
            A(x)
        if not opts.get("nst"):
            stamp(A, opts, 1)

        def p_loads(P):
            A(f"buffer_load_dwordx4 {v(P, 4)}, {v(PXA)}, {s(WS, 4)}, {s(sCP)} offen sc1")
            A(f"buffer_load_dwordx4 {v(P + 4, 4)}, {v(PXA)}, {s(WS, 4)}, {s(sCP)} offen offset:1280 sc1")
            A(f"buffer_load_dwordx4 {v(P + 8, 4)}, {v(PMA)}, {s(WS, 4)}, {s(sCP)} offen sc1")

        cur = MEM
        ok = A.new("b_ok")
        notice_wait(A, dict(opts, nd=opts.get('ndp', opts['nd'])), MEM + 12, FP, sEF, 0, [])
        if opts.get("nst"):
            stamp(A, opts, 1)
        A(f"{gp}:")
        p_loads(cur)
        poll_guard(A)
        A(ka(opts.get("ka_p", 0)))
        if opts.get("stamps"):
            A("s_add_u32 s55, s55, 1")
        mx3 = lambda d, x, y, z: f"v_max3_u32 {v(d)}, {v(x)}, {v(y)}, {v(z)}"
        cmpi = f"v_cmp_eq_u32 vcc, -1, {v(T)}"
        if opts.get("bdef", 1):
            chk = ["s_nop 0"] * 4 + [mx3(T, cur, cur + 4, cur + 8), cmpi]
        else:
            chk = ["s_nop 0", mx3(T, cur, cur + 1, cur + 2), mx3(T, T, cur + 3, cur + 4), mx3(T + 1, cur + 5, cur + 6, cur + 7), mx3(T + 2, cur + 8, cur + 9, cur + 10),
                   mx3(T, T, T + 1, cur + 11) + f"\nv_max_u32 {v(T)}, {v(T)}, {v(T + 2)}\n" + cmpi]
        k = 0
        for kap in range(3):
            A(f"s_waitcnt vmcnt({2 - kap})")
            if kap == 0:
                stamp(A, opts, 2)
            for vv in range(2):
                b = v(Y + 16 * kap + 8 * vv, 8) if kap < 2 else v(ZOP + 8 * vv, 8)
                A(f"{SMF} {v(OACC + 4 * vv, 4)}, {v(cur + 4 * kap, 4)}, {b}, {v(IDX)}")
                if opts.get("lb") == 10 + k:
                    notice(A, NZ, NA, sEF, 0, sc)
                A(chk[k])
                k += 1
        if not opts.get("solo"):
            A(f"s_cbranch_vccnz {ok}")
        lb = opts.get("lb", 2) if pw else -1
        if lb == 0:
            notice(A, NZ, NA, sEF, 0, sc)
        for q in range(4):
            A(f"v_permlane32_swap_b32 {v(OACC + q)}, {v(OACC + 4 + q)}")
        if lb == 1:
            notice(A, NZ, NA, sEF, 0, sc)
        for q in (0, 2):
            A(f"v_pk_add_f32 {v(OACC + q, 2)}, {v(OACC + q, 2)}, {v(OACC + 4 + q, 2)}")
        A(f"ds_write_b128 {v(RW)}, {v(OACC, 4)}")
        if 2 <= lb < 9:
            A(ka(lb - 2))
            notice(A, NZ, NA, sEF, 0, sc)
            if opts.get("nst"):
                stamp(A, opts, 0)
        if opts.get("bdef", 1) and not opts.get("solo"):
            A(mx3(T, cur + 1, cur + 2, cur + 3) + "\n" + mx3(T + 1, cur + 5, cur + 6, cur + 7) + "\n" + mx3(T + 2, cur + 9, cur + 10, cur + 11))
            A(mx3(T, T, T + 1, T + 2) + "\n" + cmpi)
            if lb == 9:
                notice(A, NZ, NA, sEF, 0, sc)
            A(f"s_cbranch_vccnz {ok}")
        A(f"s_add_u32 s33, {s(sCM)}, 8192\ns_cmp_ge_u32 {s(S_W)}, 2\ns_waitcnt lgkmcnt(0)\ns_barrier")
        stamp(A, opts, 3)
        A(f"s_cbranch_scc1 {idle}")
        R = ZACC
        if not pw:
            A(f"s_cmp_eq_u32 {s(S_W)}, 0\ns_cbranch_scc0 {noflag}")
            notice(A, NZ, NA, sEF, 0, sc)
            A(f"{noflag}:")
        A(f"ds_read2st64_b32 {v(R, 2)}, {v(RR0)} offset0:0 offset1:4\nds_read2st64_b32 {v(R + 4, 2)}, {v(RR0)} offset0:8 offset1:12")
        A(f"ds_read2st64_b32 {v(R + 2, 2)}, {v(RR1)} offset0:0 offset1:4\nds_read2st64_b32 {v(R + 6, 2)}, {v(RR1)} offset0:8 offset1:12")
        A("s_waitcnt lgkmcnt(2)")
        A(f"v_pk_add_f32 {v(R, 2)}, {v(R, 2)}, {v(R + 4, 2)}\nv_add_f32 {v(R)}, {v(R)}, {v(R + 1)}")
        A("s_waitcnt lgkmcnt(0)")
        A(f"v_pk_add_f32 {v(R + 2, 2)}, {v(R + 2, 2)}, {v(R + 6, 2)}\nv_add_f32 {v(R + 2)}, {v(R + 2)}, {v(R + 3)}")
        A(f"v_cvt_pk_bf16_f32 {v(R)}, {v(R)}, {v(R + 2)}\nv_min_u32 {v(R)}, -2, {v(R)}")
        A(f"buffer_store_dword {v(R)}, {v(MO)}, {s(WS, 4)}, s33 offen{sc}")
        A(f"{nxt}:")
        stamp(A, opts, 4)
        collect(A, opts, 120)
        A(f"s_add_u32 {s(sS)}, {s(sS)}, 1\ns_add_u32 {s(sCM)}, {s(sCM)}, {0 if opts.get('solo') else 8192}\ns_add_u32 {s(sCP)}, {s(sCP)}, {0 if opts.get('solo') else 10240}")
        A(f"s_add_u32 {s(sY)}, {s(sY)}, {16 * 28 * KB}\ns_add_u32 {s(sEF)}, {s(sEF)}, {0 if opts.get('solo') else EF_STEP}")
        A("s_barrier")
        if opts.get("stamps"):
            m8 = A.new("m8")
            A(f"s_cmp_eq_u32 {s(sS)}, 8\ns_cbranch_scc0 {m8}")
            mark(A, opts, 5)
            A(f"{m8}:")
        A(f"s_cmp_eq_u32 {s(sS)}, 63\ns_cbranch_scc0 {top}")
        if opts.get("fast63", 1):
            A(f"s_cmp_ge_u32 {s(S_W)}, 2\ns_cbranch_scc1 {last}\ns_mov_b32 s33, {XM + 63 * 8192}")
            A(f"buffer_store_dword {v(R)}, {v(MO)}, {s(WS, 4)}, s33 offen sc1\n{last}:")
        A("s_waitcnt vmcnt(0)")
        A("s_mov_b32 s84, s53\ns_mov_b32 s85, s55" if opts.get("stamps") else "")
        dbg_time(A, opts, 6, 16)
        amp_mark(A, opts, 3)
        amp_spin(A, opts, 16, (0, 1, 2, 3))
        flush_stamps(A, opts, 120)
        A("s_endpgm")
        A(f"{ok}:")
        for x in zero(OACC, 8):
            A(x)
        A(f"s_branch {gp}")
        A(f"{idle}:")
        A(ka(opts.get("ka_f", 0)))
        A(f"s_branch {nxt}")

    loop("")
    A(f"{slow}:")
    loop(" sc1")


def gen_chain_f(A, opts):
    G, GA0, GA1, T, WA = 4, 12, 13, 14, 20
    sS, sCM, sXM = 44, 45, 46
    fw = A.new('f_go')
    A(f"v_lshlrev_b32 v21, 7, v1\ns_mov_b32 {s(sXM)}, {FY + opts.get('tfy', 0) * FL_STEP}")
    wait_start(A, {}, fw, (21, sXM) if opts.get('tfy', 0) >= 0 else None, opts.get('hsl', 24))
    A(f'{fw}:')
    gather_addr(A, GA0, GA1)
    A(f"s_mul_i32 s33, {s(S_W)}, {7 * KB}\nv_lshlrev_b32 {v(WA)}, 3, v3\nv_add_u32 {v(WA)}, s33, {v(WA)}")

    def touch_all():
        if not opts.get("nopf"):
            A(f"s_add_u32 s33, {s(sS)}, 2\ns_min_u32 s33, s33, 63\ns_mul_i32 s33, s33, {28 * KB}\ns_add_u32 s33, s33, {XS}")
            A(f"buffer_load_dword v16, {v(WA)}, {s(WS, 4)}, s33 offen sc1")

    for first in (-2, -1, 0):
        A(f"s_mov_b32 {s(sS)}, {first}")
        touch_all()
    A(f"s_mov_b32 {s(sS)}, 1\ns_mov_b32 {s(sCM)}, {CM + 8192}\ns_mov_b32 {s(sXM)}, {XM + 8192}")
    lp = A.new("f_poll")
    A(f"{lp}:")
    mem_loads(A, G, GA0, GA1, sCM)
    poll_guard(A)
    A("s_waitcnt vmcnt(0)")
    check8(A, G, T)
    got = A.new("f_got")
    A(f"s_cbranch_vccz {got}\ns_sleep {opts.get('fsl', 0)}\ns_branch {lp}\n{got}:")
    A(f"buffer_store_dwordx4 {v(G, 4)}, {v(GA0)}, {s(WS, 4)}, {s(sXM)} offen sc1")
    A(f"buffer_store_dwordx4 {v(G + 4, 4)}, {v(GA1)}, {s(WS, 4)}, {s(sXM)} offen sc1")
    touch_all()
    A(f"s_add_u32 {s(sS)}, {s(sS)}, 1\ns_add_u32 {s(sCM)}, {s(sCM)}, 8192\ns_add_u32 {s(sXM)}, {s(sXM)}, 8192")
    A(f"s_cmp_lt_u32 {s(sS)}, {63 if opts.get('fast63', 1) else 64}\ns_cbranch_scc1 {lp}")
    if opts.get("wb"):
        A(f"s_cmp_eq_u32 {s(S_W)}, 0\ns_cbranch_scc0 L_exit\ns_waitcnt vmcnt(0)\nbuffer_wbl2 sc1\ns_waitcnt vmcnt(0)")
    A("s_endpgm")


def gen_chain_g(A, opts):
    sS, sEF, sF = 44, 45, 46
    toucher = A.new("g_touch")
    A(f"s_cmp_eq_u32 {s(S_W)}, 1\ns_cbranch_scc1 {toucher}\ns_cmp_eq_u32 {s(S_W)}, 0\ns_cbranch_scc0 L_exit")
    A(f"s_mov_b32 {s(sS)}, 0\ns_mov_b32 {s(sEF)}, {EF + EF_P + 64}\ns_mov_b32 {s(sF)}, {FY + FL_STEP}")
    A(f"v_lshlrev_b32 v6, 7, v1\nv_min_u32 v7, 55, v0\nv_lshlrev_b32 v7, 7, v7\nv_mov_b32 v14, {s(S_NONCE)}\nv_mov_b32 v15, {s(S_NONCE)}")
    slow = A.new("g_slow")
    chain_mode(A, {}, Cnt(A, "vmcnt", 63), slow)

    def loop(sc):
        top, ok = A.new("g_top"), A.new("g_ok")
        go = A.new("g_go")
        A(f"{top}:\ns_cmp_eq_u32 {s(sS)}, 2\ns_cbranch_scc0 {go}")
        wait_prep(A, False, False)
        A(f"{go}:")
        top2 = A.new("g_poll")
        A(f"{top2}:")
        flag_load(A, 10, 6, s(sF))
        poll_guard(A)
        A("s_waitcnt vmcnt(0)")
        flag_missing(A, [10])
        A(f"s_cbranch_vccz {ok}\ns_sleep 2\ns_branch {top2}\n{ok}:")
        A(f"buffer_store_dwordx2 v[14:15], v7, {s(WS, 4)}, {s(sEF)} offen{sc}")
        A(f"s_add_u32 {s(sS)}, {s(sS)}, 1\ns_add_u32 {s(sEF)}, {s(sEF)}, {EF_STEP}\ns_add_u32 {s(sF)}, {s(sF)}, {FL_STEP}")
        A(f"s_cmp_lt_u32 {s(sS)}, 63\ns_cbranch_scc1 {top}\ns_endpgm")

    loop("")
    A(f"{slow}:")
    loop(" sc1")

    A(f"{toucher}:")
    go = A.new("t_go")
    A(f"v_lshlrev_b32 v20, 7, v1\ns_mov_b32 {s(sF)}, {FY + opts.get('tfy', 0) * FL_STEP}")
    wait_start(A, {}, go, (20, sF) if opts.get('tfy', 0) >= 0 else None, opts.get('hsl', 24))
    A(f"{go}:\nv_lshlrev_b32 v6, 3, v3\nv_mov_b32 v7, 0")
    ahead = opts.get("tah", 3)

    def touch():
        for base, stride, n, last in ((EF, EF_STEP, 2, 63), (CP, 10240, 2, 62), (CM, 8192, 1, 63)):
            A(f"s_add_u32 s33, {s(sS)}, {ahead}\ns_min_u32 s33, s33, {last}\ns_mul_i32 s33, s33, {stride}\ns_add_u32 s33, s33, {base}")
            for q in range(n):
                va = 8 if base == CP and q else 6
                A(f"buffer_load_dword v10, {v(va)}, {s(WS, 4)}, s33 offen sc1\ns_add_u32 s33, s33, 8192")

    A("v_min_u32 v8, 1920, v6")
    for first in range(-ahead, 1):
        A(f"s_mov_b32 {s(sS)}, {first}")
        touch()
    lp, got = A.new("t_poll"), A.new("t_got")
    A(f"s_mov_b32 {s(sS)}, 1\ns_mov_b32 {s(sF)}, {CM + 8192}\n{lp}:")
    A(f"buffer_load_dword v9, v7, {s(WS, 4)}, {s(sF)} offen sc1")
    poll_guard(A)
    A(f"s_waitcnt vmcnt(0)\nv_cmp_eq_u32 vcc, -1, v9\ns_cbranch_vccz {got}\ns_sleep 2\ns_branch {lp}\n{got}:")
    touch()
    A(f"s_add_u32 {s(sS)}, {s(sS)}, 1\ns_add_u32 {s(sF)}, {s(sF)}, 8192\ns_cmp_lt_u32 {s(sS)}, {64 - ahead}\ns_cbranch_scc1 {lp}\ns_endpgm")
```

```python
from asmlib import v, a, s
from layout import *
from common import *
from gen_prep import f32, load_srd, xor_reduce, chunk_pos
import math

MF = "v_mfma_f32_16x16x32_bf16"
SLEEP = 2
Y_TEAMS, X1_TEAMS, X2_TEAMS, F_TEAMS = 3, 3, 2, 2


def tmark(A, opts, k):
    if opts.get("tailm"):
        mark(A, opts, k)


def set_flag(A, soff, t):
    A(f"v_mov_b32 {v(t)}, {s(S_NONCE)}\nv_lshrrev_b32 {v(t + 1)}, 2, v3\nv_and_b32 {v(t + 1)}, 124, {v(t + 1)}")
    A(f"buffer_store_dword {v(t)}, {v(t + 1)}, {s(WS, 4)}, {s(soff)} offen sc1")


def paired_addr(A, d0, d1):
    for vv, d in enumerate((d0, d1)):
        A(f"v_lshrrev_b32 v4, 1, v1\nv_add_u32 v4, {8 * vv}, v4")
        chunk_pos(A, d, 4, 2, 5)
        A(f"v_and_b32 v4, 1, v1\nv_mul_u32_u24 v4, {14 * KB}, v4\nv_add_u32 {v(d)}, {v(d)}, v4")


def drain_unless_last(A, opts, sstep):
    if not opts.get("fast63", 1):
        A("s_waitcnt vmcnt(0)")
        return
    sk = A.new("nd")
    A(f"s_cmp_eq_u32 {s(sstep)}, 63\ns_cbranch_scc1 {sk}\ns_waitcnt vmcnt(0)\n{sk}:")


def clean(A, regs):
    for r in regs:
        A(f"v_min_u32 {v(r)}, -2, {v(r)}")


def verify_last(A, opts, sstep, regs, t, retry, younger=0):
    if not opts.get("fast63", 1):
        return
    sk = A.new("vl")
    A(f"s_cmp_eq_u32 {s(sstep)}, 63\ns_cbranch_scc0 {sk}")
    poll_guard(A)
    A(f"s_waitcnt vmcnt({younger})")
    sentinel_check(A, regs, t, retry)
    A(f"{sk}:")


def seg_dma(A, sx, sm0, cnt=None):
    for q, n in ((0, 4), (1, 3)):
        A(f"s_add_u32 s33, {s(sm0)}, {q * 4096}\ns_mov_b32 m0, s33\ns_add_u32 s34, {s(sx)}, {q * 4096}")
        for k in range(n):
            t = f"buffer_load_dwordx4 v3, {s(WS, 4)}, s34 offen offset:{k * 1024} sc1 lds"
            cnt.op(t, "x") if cnt else A(t)


def gen_y(A, opts):
    ACC, XOP, PK, XR, T = 4, 32, 48, 76, 78
    sS, sX, sM0, sY, sF = 44, 45, 46, 47, 48
    vm = Cnt(A, "vmcnt", 63)
    A(f"s_mov_b32 {s(sS)}, s31\ns_mul_i32 {s(sM0)}, {s(S_W)}, {7 * KB}")
    A(f"s_mul_i32 {s(sX)}, s31, {28 * KB}\ns_add_u32 {s(sX)}, {s(sX)}, {s(sM0)}\ns_add_u32 {s(sX)}, {s(sX)}, {XF}")
    A(f"s_mul_i32 s35, s30, {FRAG_H}\ns_mul_i32 s36, {s(S_W)}, {7 * 14 * KB}\ns_add_u32 s35, s35, s36\ns_add_u32 s35, s35, {BF}")
    A(f"s_mul_i32 s33, {s(S_W)}, 7\nv_min_u32 v4, 6, v0\nv_add_u32 v4, s33, v4\nv_lshrrev_b32 v4, 2, v4\ns_mul_i32 s33, s30, 7\ns_add_u32 s33, s33, 112\nv_add_u32 v4, s33, v4")
    load_pieces(A, [(14, lambda i=i: frag_loads(A, 35, [((i * 14 + ks) * 4, (i * 14 + ks) * KB) for ks in range(14)])) for i in range(7)], 4, (7, lambda: seg_dma(A, sX, sM0)))
    A(f"s_lshl_b32 s33, s31, 4\ns_add_u32 s33, s33, s30\ns_mul_i32 {s(sY)}, s33, {28 * KB}\ns_add_u32 {s(sY)}, {s(sY)}, {YF}")
    A(f"s_mul_i32 s33, {s(S_W)}, {7 * KB}\ns_add_u32 {s(sY)}, {s(sY)}, s33")
    A(f"s_mul_i32 {s(sF)}, s31, {FL_STEP}\ns_lshl_b32 s33, s30, 7\ns_add_u32 {s(sF)}, {s(sF)}, s33\ns_add_u32 {s(sF)}, {s(sF)}, {FY}")
    paired_addr(A, XR, XR + 1)
    top, nodma, noflag, done = (A.new(x) for x in ("y_top", "y_nodma", "y_nofl", "y_done"))
    A("s_waitcnt vmcnt(0)\ns_barrier")
    mark(A, opts, 1)
    A(f"{top}:")
    A(f"s_add_u32 s33, {s(sS)}, {Y_TEAMS}\ns_cmp_ge_u32 s33, 64\ns_cbranch_scc1 {nodma}\ns_cmp_lt_u32 {s(sS)}, {Y_TEAMS}\ns_cbranch_scc1 {nodma}")
    A(f"s_add_u32 {s(sX)}, {s(sX)}, {Y_TEAMS * 28 * KB}\ns_xor_b32 {s(sM0)}, {s(sM0)}, 0x8000")
    seg_dma(A, sX, sM0)
    A(f"{nodma}:")
    if opts.get("ypace"):
        lp, go = A.new("y_pace"), A.new("y_go")
        A(f"s_sub_u32 s33, {s(sS)}, {opts['ypace']}\ns_cbranch_scc1 {go}\ns_lshl_b32 s33, s33, 13\ns_add_u32 s33, s33, {XM}\nv_mov_b32 {v(T + 1)}, 0")
        A(f"{lp}:\nbuffer_load_dword {v(T)}, {v(T + 1)}, {s(WS, 4)}, s33 offen sc1")
        poll_guard(A)
        A(f"s_waitcnt vmcnt(0)\nv_cmp_eq_u32 vcc, -1, {v(T)}\ns_cbranch_vccz {go}\ns_sleep 8\ns_branch {lp}\n{go}:")
    lg = Cnt(A, "lgkmcnt", 15)
    rd = lambda n: lg.op(f"ds_read_b128 {v(XOP + 4 * (n % 4), 4)}, {v(XR + n // 14)} offset:{(n % 14) * KB}", f"x{n}")
    for n in range(3):
        rd(n)
    for tt in range(2):
        for ks in range(14):
            n = tt * 14 + ks
            if n + 3 < 28:
                rd(n + 3)
            lg.wait(f"x{n}")
            for i in range(7):
                c = "0" if ks == 0 else v(ACC + 4 * i, 4)
                A(f"{MF} {v(ACC + 4 * i, 4)}, {v(XOP + 4 * (n % 4), 4)}, {wreg((i * 14 + ks) * 4, 4)}, {c}")
        for i in range(7):
            for b in range(2):
                A(f"v_cvt_pk_bf16_f32 {v(PK + 4 * i + 2 * tt + b)}, {v(ACC + 4 * i + 2 * b)}, {v(ACC + 4 * i + 2 * b + 1)}")
    A(f"s_add_u32 s33, {s(sY)}, 4096")
    for i in range(7):
        A(f"buffer_store_dwordx4 {v(PK + 4 * i, 4)}, v3, {s(WS, 4)}, {s(sY) if i < 4 else 's33'} offen offset:{(i % 4) * 1024} sc1")
    A(f"v_xor_b32 {v(XR)}, 0x8000, {v(XR)}\nv_xor_b32 {v(XR + 1)}, 0x8000, {v(XR + 1)}")
    A("s_waitcnt vmcnt(0)\ns_barrier")
    A(f"s_cmp_eq_u32 {s(S_W)}, 0\ns_cbranch_scc0 {noflag}")
    set_flag(A, sF, T)
    A(f"{noflag}:")
    later = A.new("y_later")
    A(f"s_cmp_lt_u32 {s(sS)}, {Y_TEAMS}\ns_cbranch_scc0 {later}")
    wait_prep(A, False)
    A(f"s_add_u32 {s(sX)}, {s(sX)}, {Y_TEAMS * 28 * KB}\ns_xor_b32 {s(sM0)}, {s(sM0)}, 0x8000")
    seg_dma(A, sX, sM0)
    A(f"s_waitcnt vmcnt(0)\ns_barrier\n{later}:")
    A(f"s_add_u32 {s(sS)}, {s(sS)}, {Y_TEAMS}\ns_cmp_ge_u32 {s(sS)}, 64\ns_cbranch_scc1 {done}")
    A(f"s_add_u32 {s(sY)}, {s(sY)}, {Y_TEAMS * 16 * 28 * KB}\ns_add_u32 {s(sF)}, {s(sF)}, {Y_TEAMS * FL_STEP}\ns_branch {top}")
    A(f"{done}:")
    if opts.get("ypace"):
        flush_stamps(A, opts)
        A("s_endpgm")
        return
    wait_prep(A, True)
    A(f"s_add_u32 s31, s31, {Z_SPLIT}")
    z_loop(A, opts, "s31", Y_TEAMS, 64, False)


Z_SPLIT = 33


def z_loop(A, opts, first, step, end, lagged):
    from gen_chain import SMF, gather_addr, fetch_mem, idx_reg, zero
    MEM, ACC, G0, PK, IDX, GA0, GA1, ZA, T = 4, 32, 60, 76, 90, 91, 92, 93, 94
    sS, sXM, sZ, sF = 44, 45, 46, 47
    gather_addr(A, GA0, GA1)
    idx_reg(A, IDX)
    A(f"v_lshlrev_b32 {v(ZA)}, 3, v0\ns_mov_b32 {s(sS)}, {first}")
    A(f"s_lshl_b32 {s(sXM)}, {s(sS)}, 13\ns_add_u32 {s(sXM)}, {s(sXM)}, {XM}")
    A(f"s_lshl_b32 s33, {s(sS)}, 4\ns_add_u32 s33, s33, s30\ns_mul_i32 {s(sZ)}, s33, 14336\ns_mul_i32 s33, {s(S_W)}, 3584\ns_add_u32 {s(sZ)}, {s(sZ)}, s33\ns_add_u32 {s(sZ)}, {s(sZ)}, {ZF}")
    A(f"s_mul_i32 {s(sF)}, {s(sS)}, {FL_STEP}\ns_lshl_b32 s33, s30, 7\ns_add_u32 {s(sF)}, {s(sF)}, s33\ns_add_u32 {s(sF)}, {s(sF)}, {FZ - (FL_STEP if lagged else 0)}")
    top, noflag = A.new("z_top"), A.new("z_nofl")
    A(f"{top}:")
    for x in zero(ACC, 28):
        A(x)
    fetch_mem(A, {}, G0, GA0, GA1, sXM, T, 0)
    tmark(A, opts, 2)
    lg = Cnt(A, "lgkmcnt", 15)
    for kk in range(7):
        lg.op(f"ds_read_b128 {v(MEM + 4 * kk, 4)}, v3 offset:{kk * 1024}", f"m{kk}")
    if lagged:
        A(f"s_cmp_eq_u32 {s(S_W)}, 0\ns_cbranch_scc0 {noflag}\ns_cmp_eq_u32 {s(sS)}, 0\ns_cbranch_scc1 {noflag}")
        set_flag(A, sF, T)
        A(f"{noflag}:")
    for i in range(7):
        for kk in range(7):
            if i == 0:
                lg.wait(f"m{kk}")
            A(f"{SMF} {v(ACC + 4 * i, 4)}, {v(MEM + 4 * kk, 4)}, {wreg((i * 7 + kk) * 8, 8)}, {v(IDX)}")
    if lagged:
        A("s_barrier")
    for i in range(7):
        for b in range(2):
            A(f"v_cvt_pk_bf16_f32 {v(PK + 2 * i + b)}, {v(ACC + 4 * i + 2 * b)}, {v(ACC + 4 * i + 2 * b + 1)}")
        if not lagged:
            clean(A, (PK + 2 * i, PK + 2 * i + 1))
        A(f"buffer_store_dwordx2 {v(PK + 2 * i, 2)}, {v(ZA)}, {s(WS, 4)}, {s(sZ)} offen offset:{i * 512} sc1")
    if not lagged:
        tmark(A, opts, 3)
        drain_unless_last(A, opts, sS)
        A(f"s_cmp_eq_u32 {s(S_W)}, 0\ns_barrier\ns_cbranch_scc0 {noflag}")
        tmark(A, opts, 4)
        set_flag(A, sF, T)
        A(f"{noflag}:")
    A(f"s_add_u32 {s(sS)}, {s(sS)}, {step}\ns_add_u32 {s(sXM)}, {s(sXM)}, {step * 8192}\ns_add_u32 {s(sZ)}, {s(sZ)}, {step * 16 * 14336}\ns_add_u32 {s(sF)}, {s(sF)}, {step * FL_STEP}")
    A(f"s_cmp_lt_u32 {s(sS)}, {end}\ns_cbranch_scc1 {top}")
    if lagged:
        A("s_waitcnt vmcnt(0)\ns_barrier")
        set_flag(A, sF, T)
        A("s_mov_b32 s31, 63\ns_cmp_lt_u32 s30, 14\ns_cbranch_scc1 L_x2")
    flush_stamps(A, opts)
    A("s_endpgm")


def gen_z(A, opts):
    after_first_y(A, opts)
    wait_prep(A, True)
    vm = Cnt(A, "vmcnt", 63)
    A(f"s_mul_i32 s35, s30, {FRAG_H}\ns_mul_i32 s36, {s(S_W)}, {7 * 14 * KB}\ns_add_u32 s35, s35, s36\ns_add_u32 s35, s35, {BF}")
    load_weights(A, vm, 3, [(lambda i=i: A(f"s_add_u32 s37, s35, {i * 14 * KB}")) for i in range(7)], 37)
    mark(A, opts, 1)
    z_loop(A, opts, 0, 1, 64 if opts.get('ypace') else Z_SPLIT, True)


def wait_flags(A, fv, fa, soff, off=0, sleep=None):
    sleep = SLEEP if sleep is None else sleep
    lp, ok = A.new("wf"), A.new("wfok")
    A(f"{lp}:")
    flag_load(A, fv, fa, s(soff))
    poll_guard(A)
    A("s_waitcnt vmcnt(0)")
    flag_missing(A, [fv])
    A(f"s_cbranch_vccz {ok}\ns_sleep {sleep}\ns_branch {lp}\n{ok}:")


def wait_inputs(A, opts, sstep, fv, fa, soff, which):
    if opts.get("direct", 0) & which:
        go = A.new("wi_go")
        if which == 1:
            lp, norm = A.new("wi_xm"), A.new("wi_norm")
            A(f"s_cmp_eq_u32 {s(sstep)}, 63\ns_cbranch_scc0 {norm}\ns_mov_b32 s33, {XM + 63 * 8192}\nv_mov_b32 {v(fv + 1)}, 0\n{lp}:")
            A(f"buffer_load_dword {v(fv)}, {v(fv + 1)}, {s(WS, 4)}, s33 offen sc1")
            poll_guard(A)
            A(f"s_waitcnt vmcnt(0)\nv_cmp_eq_u32 vcc, -1, {v(fv)}\ns_cbranch_vccz {go}\ns_sleep 2\ns_branch {lp}\n{norm}:")
        else:
            A(f"s_cmp_eq_u32 {s(sstep)}, 63\ns_cbranch_scc1 {go}")
        wait_flags(A, fv, fa, soff)
        A(f"{go}:")
        return
    depth = opts.get("tp", 3)
    if not depth or not opts.get("fast63", 1):
        wait_flags(A, fv, fa, soff)
        return
    fast, lp, ok = A.new("wi_fast"), A.new("wi_lp"), A.new("wi_ok")
    A(f"s_cmp_eq_u32 {s(sstep)}, 63\ns_cbranch_scc1 {fast}")
    wait_flags(A, fv, fa, soff)
    A(f"s_branch {ok}\n{fast}:")
    ld = lambda k: A(f"buffer_load_dword {v(fv + k)}, {v(fa)}, {s(WS, 4)}, {s(soff)} offen sc1")
    for k in range(depth - 1):
        ld(k)
    A(f"{lp}:")
    poll_guard(A)
    for k in range(depth):
        ld((k + depth - 1) % depth)
        A(f"s_waitcnt vmcnt({depth - 1})\nv_cmp_ne_u32 vcc, {s(S_NONCE)}, {v(fv + k)}")
        A(f"s_cbranch_vccz {ok}" if k < depth - 1 else f"s_cbranch_vccnz {lp}")
    A(f"{ok}:")


def after_first_y(A, opts):
    if opts.get("nodelay"):
        return
    out = A.new("afy")
    A(f"s_cmp_eq_u32 {s(S_W)}, 0\ns_cbranch_scc0 {out}\nv_lshlrev_b32 v4, 7, v1\ns_mov_b32 s34, {FY + opts.get('afy', 0) * FL_STEP}")
    wait_flags(A, 6, 4, 34, sleep=16)
    A(f"{out}:\ns_barrier")


def unpack(A, dst, src, n, smask):
    for r in range(n):
        A(f"v_lshlrev_b32 {v(dst + 2 * r)}, 16, {v(src + r)}\nv_and_b32 {v(dst + 2 * r + 1)}, {s(smask)}, {v(src + r)}")


def gen_x1(A, opts):
    from gen_chain import gather_addr, mem_loads, check8
    ACC, XOP, TOP, G, ZERO = 4, 32, 48, 80, 88
    GA0, GA1, XR, KX, KX1, KX3, KX31, MK, MK2, MK3, SW, SR, PA, NEG, T = range(89, 104)
    SXB, SMB, XB = 8192, 24576, 32768
    sS, sX, sM0, sXM, sP, sF, sODD, sP0 = 44, 45, 46, 47, 48, 49, 50, 51
    MASK, ODDM = 56, 72
    after_first_y(A, opts)
    wait_prep(A, True)
    vm = Cnt(A, "vmcnt", 63)
    A(f"s_mov_b32 {s(sS)}, s31\ns_mul_i32 s35, {s(S_W)}, {7 * KB}\ns_add_u32 {s(sM0)}, s35, {XB}")
    A(f"s_mul_i32 {s(sX)}, s31, {28 * KB}\ns_add_u32 {s(sX)}, {s(sX)}, s35\ns_add_u32 {s(sX)}, {s(sX)}, {XF}")
    seg_dma(A, sX, sM0, vm)
    A(f"s_and_b32 {s(sODD)}, {s(S_W)}, 1\ns_mul_i32 s33, {s(S_W)}, 7\ns_add_u32 {s(sP0)}, s33, {s(sODD)}\ns_lshr_b32 {s(sP0)}, {s(sP0)}, 1")
    A(f"s_mul_i32 s34, s30, {FRAG_H}\ns_mul_i32 s33, {s(S_W)}, {7 * 14 * KB}\ns_add_u32 s34, s34, s33")
    if AF:
        A(f"s_add_u32 s34, s34, {AF}")
    A(f"s_mul_i32 s35, {s(sODD)}, {14 * KB}\ns_add_u32 s35, s35, s34\ns_add_u32 s36, s34, {6 * 14 * KB}\ns_cmp_eq_u32 {s(sODD)}, 0\ns_cselect_b32 s36, s36, s34")
    A(f"s_cselect_b64 {s(ODDM, 2)}, 0, -1")
    tiles = [(lambda i=i: A(f"s_add_u32 s37, s35, {i * 14 * KB}")) for i in range(6)] + [lambda: A("s_mov_b32 s37, s36")]
    load_weights(A, vm, 3, tiles, 37)
    gather_addr(A, GA0, GA1)
    A(f"v_mov_b32 {v(ZERO)}, 0\nv_mov_b32 {v(NEG)}, {f32(-1.0e9 * math.log2(math.e))}")
    chunk_pos(A, XR, 1, 2, 4)
    paired_addr(A, KX, KX1)
    A(f"v_add_u32 {v(XR)}, {XB}, {v(XR)}")
    A(f"s_lshl_b32 s33, {s(sP0)}, 10\ns_add_u32 s33, s33, {XB}\ns_lshl_b32 s34, {s(sODD)}, 12\ns_sub_u32 s34, 3072, s34")
    for r in (KX, KX1):
        A(f"v_add_u32 {v(r)}, s33, {v(r)}\nv_add_u32 {v(r + 2)}, s34, {v(r)}")
    A(f"v_and_b32 v4, 7, v1\nv_lshlrev_b32 v4, 4, v4\nv_lshrrev_b32 v5, 1, v2\nv_lshl_add_u32 v4, v5, 8, v4\nv_and_b32 v5, 1, v2\nv_lshl_add_u32 v4, v5, 3, v4")
    A(f"s_lshl_b32 s33, {s(sP0)}, 9\nv_add_u32 {v(MK)}, s33, v4\nv_add_u32 {v(MK2)}, 1024, {v(MK)}")
    A(f"s_lshl_b32 s34, {s(sODD)}, 11\ns_sub_u32 s34, 1536, s34\nv_add_u32 {v(MK3)}, s34, {v(MK)}")
    A(f"s_lshl_b32 s33, {s(S_W)}, 10\nv_add_u32 {v(SW)}, s33, v3\ns_lshl_b32 s33, {s(sODD)}, 12\nv_add_u32 {v(SR)}, s33, v3\nv_lshlrev_b32 {v(PA)}, 3, v0")
    A(f"s_lshl_b32 s33, {s(sODD)}, 4\nv_add_u32 v5, s33, v1")
    for kt in range(2):
        for q in range(4):
            A(f"v_lshl_add_u32 v4, v2, 1, {8 * kt + (q >> 1) + 16 * (q & 1)}\nv_cmp_le_u32 {s(MASK + 8 * kt + 2 * q, 2)}, v4, v5")
    A(f"s_lshl_b32 {s(sXM)}, s31, 13\ns_add_u32 {s(sXM)}, {s(sXM)}, {XM}")
    A(f"s_lshl_b32 s33, s31, 4\ns_add_u32 s33, s33, s30\ns_lshl_b32 s33, s33, 1\ns_add_u32 s33, s33, {s(sODD)}\ns_mul_i32 {s(sP)}, s33, 1536\ns_add_u32 {s(sP)}, {s(sP)}, {PF}")
    A(f"s_lshl_b32 s33, s30, 1\ns_add_u32 s33, s33, {s(sODD)}\ns_lshl_b32 s33, s33, 7\ns_mul_i32 {s(sF)}, s31, {FL_STEP}\ns_add_u32 {s(sF)}, {s(sF)}, s33\ns_add_u32 {s(sF)}, {s(sF)}, {FP}")
    top, nodma, nxt, lp, ok = (A.new("x1_" + x) for x in ("top", "nodma", "next", "poll", "ok"))
    A("s_waitcnt vmcnt(0)")
    mark(A, opts, 1)
    A(f"{top}:")
    A("s_barrier")
    A(f"s_add_u32 s33, {s(sS)}, {X1_TEAMS}\ns_cmp_ge_u32 s33, 64\ns_cbranch_scc1 {nodma}")
    A(f"s_add_u32 {s(sX)}, {s(sX)}, {X1_TEAMS * 28 * KB}\ns_xor_b32 {s(sM0)}, {s(sM0)}, 0x18000")
    seg_dma(A, sX, sM0)
    A(f"{nodma}:")
    lg = Cnt(A, "lgkmcnt", 15)
    rd = lambda n: lg.op(f"ds_read_b128 {v(XOP + 4 * (n % 4), 4)}, {v(XR)} offset:{n * KB}", f"x{n}")
    for n in range(3):
        rd(n)
    for tt in range(2):
        for ks in range(14):
            n = tt * 14 + ks
            if n + 3 < 28:
                rd(n + 3)
            lg.wait(f"x{n}")
            for i in range(7):
                c = "0" if ks == 0 else v(ACC + 4 * i, 4)
                A(f"{MF} {v(ACC + 4 * i, 4)}, {wreg((i * 14 + ks) * 4, 4)}, {v(XOP + 4 * (n % 4), 4)}, {c}")
        for i in range(6):
            for b in range(2):
                A(f"v_cvt_pk_bf16_f32 {v(TOP + 16 * tt + 2 * i + b)}, {v(ACC + 4 * i + 2 * b)}, {v(ACC + 4 * i + 2 * b + 1)}")
        for b in range(2):
            A(f"v_cvt_pk_bf16_f32 {v(T + b)}, {v(ACC + 24 + 2 * b)}, {v(ACC + 25 + 2 * b)}")
        for b in range(2):
            A(f"v_cndmask_b32 {v(TOP + 16 * tt + 12 + b)}, {v(T + b)}, {v(ZERO)}, {s(ODDM, 2)}")
            A(f"v_cndmask_b32 {v(TOP + 16 * tt + 14 + b)}, {v(ZERO)}, {v(T + b)}, {s(ODDM, 2)}")
    for half in range(2):
        for b in (2 * half, 2 * half + 1):
            for kt in range(2):
                reg, o = (KX3 + kt, 0) if b == 3 else (KX + kt, b * KB)
                lg.op(f"ds_read_b128 {v(XOP + 8 * (b % 2) + 4 * kt, 4)}, {v(reg)} offset:{o}", f"k{b}")
        for b in (2 * half, 2 * half + 1):
            lg.wait(f"k{b}")
            for j in range(4):
                kt, tt = j % 2, j // 2
                c = "0" if b == 0 else v(ACC + 4 * j, 4)
                A(f"{MF} {v(ACC + 4 * j, 4)}, {v(XOP + 8 * (b % 2) + 4 * kt, 4)}, {v(TOP + 16 * tt + 4 * b, 4)}, {c}")
    for r in (XR, KX, KX1, KX3, KX31):
        A(f"v_xor_b32 {v(r)}, 0x18000, {v(r)}")
    for j in range(4):
        A(f"ds_write_b128 {v(SW)}, {v(ACC + 4 * j, 4)} offset:{SXB + (j % 2) * 8192 + (j // 2) * 4096}")
    A(f"{lp}:")
    mem_loads(A, G, GA0, GA1, sXM)
    poll_guard(A)
    A("s_waitcnt vmcnt(0)")
    A(f"ds_write_b128 {v(GA0)}, {v(G, 4)}\nds_write_b128 {v(GA1)}, {v(G + 4, 4)}")
    check8(A, G, T)
    A(f"s_cbranch_vccz {ok}\ns_sleep 2\ns_branch {lp}\n{ok}:")
    tmark(A, opts, 2)
    A("s_waitcnt lgkmcnt(0)\ns_barrier")
    lg.q = []
    for b in range(4):
        reg, o = [(MK, 0), (MK, 128), (MK2, 0), (MK3, 0)][b]
        for x in range(2):
            lg.op(f"ds_read2_b32 {v(XOP + 4 * b + 2 * x, 2)}, {v(reg)} offset0:{o + x} offset1:{o + x + 32}", f"m{b}")
    for b in range(4):
        lg.wait(f"m{b}")
        for tt in range(2):
            c = "0" if b == 0 else v(ACC + 4 * tt, 4)
            A(f"{MF} {v(ACC + 4 * tt, 4)}, {v(XOP + 4 * b, 4)}, {v(TOP + 16 * tt + 4 * b, 4)}, {c}")
    for tt in range(2):
        A(f"ds_write_b128 {v(SW)}, {v(ACC + 4 * tt, 4)} offset:{SMB + tt * 4096}")
    A(f"s_cmp_ge_u32 {s(S_W)}, 2")
    A(f"s_waitcnt lgkmcnt(0)\ns_barrier\ns_cbranch_scc1 {nxt}")
    R, S = TOP, ACC
    for k, (reg, base) in enumerate(((SR, SMB), (SR, SXB), (SR, SXB + 8192))):
        for w in range(4):
            A(f"ds_read_b128 {v((XOP if k == 2 else R + 16 * k) + 4 * w, 4)}, {v(reg)} offset:{base + w * KB}")
    for k, d in enumerate((8, 0, 4)):
        b = XOP if k == 2 else R + 16 * k
        A(f"s_waitcnt lgkmcnt({8 - 4 * k})")
        for q in range(0, 4, 2):
            A(f"v_pk_add_f32 {v(b + q, 2)}, {v(b + q, 2)}, {v(b + 4 + q, 2)}\nv_pk_add_f32 {v(b + 8 + q, 2)}, {v(b + 8 + q, 2)}, {v(b + 12 + q, 2)}")
        for q in range(0, 4, 2):
            A(f"v_pk_add_f32 {v(S + d + q, 2)}, {v(b + q, 2)}, {v(b + 8 + q, 2)}")
    for r in range(8):
        A(f"v_cndmask_b32 {v(S + r)}, {v(NEG)}, {v(S + r)}, {s(MASK + 2 * r, 2)}")
    mx, sm = T, T + 1
    A(f"v_max3_f32 {v(mx)}, {v(S)}, {v(S + 1)}, {v(S + 2)}")
    for r in range(3, 11, 2):
        A(f"v_max3_f32 {v(mx)}, {v(mx)}, {v(S + r)}, {v(S + r + 1)}")
    A(f"v_max_f32 {v(mx)}, {v(mx)}, {v(S + 11)}")
    xor_reduce(A, "v_max_f32", mx, T + 2)
    for r in range(12):
        A(f"v_sub_f32 {v(S + r)}, {v(S + r)}, {v(mx)}")
    for r in range(12):
        A(f"v_exp_f32 {v(S + r)}, {v(S + r)}")
    A(f"v_add_f32 {v(sm)}, {v(S + 8)}, {v(S + 9)}\nv_add_f32 {v(T + 2)}, {v(S + 10)}, {v(S + 11)}\nv_add_f32 {v(sm)}, {v(sm)}, {v(T + 2)}\nv_mul_f32 {v(sm)}, 0.5, {v(sm)}")
    for r in range(8):
        A(f"v_add_f32 {v(sm)}, {v(sm)}, {v(S + r)}")
    xor_reduce(A, "v_add_f32", sm, T + 2)
    A(f"v_rcp_f32 {v(sm)}, {v(sm)}")
    for r in range(12):
        A(f"v_mul_f32 {v(S + r)}, {v(S + r)}, {v(sm)}")
    for r in range(6):
        A(f"v_cvt_pk_bf16_f32 {v(G + r)}, {v(S + 2 * r)}, {v(S + 2 * r + 1)}")
    clean(A, range(G, G + 6))
    A(f"buffer_store_dwordx4 {v(G, 4)}, v3, {s(WS, 4)}, {s(sP)} offen sc1")
    A(f"buffer_store_dwordx2 {v(G + 4, 2)}, {v(PA)}, {s(WS, 4)}, {s(sP)} offen offset:1024 sc1")
    tmark(A, opts, 3)
    drain_unless_last(A, opts, sS)
    tmark(A, opts, 4)
    set_flag(A, sF, T)
    A(f"{nxt}:")
    A(f"s_add_u32 {s(sS)}, {s(sS)}, {X1_TEAMS}\ns_add_u32 {s(sXM)}, {s(sXM)}, {X1_TEAMS * 8192}\ns_add_u32 {s(sP)}, {s(sP)}, {X1_TEAMS * 32 * 1536}\ns_add_u32 {s(sF)}, {s(sF)}, {X1_TEAMS * FL_STEP}")
    A(f"s_cmp_lt_u32 {s(sS)}, 64\ns_cbranch_scc1 {top}")
    flush_stamps(A, opts)
    A("s_endpgm")


def reduce_tiles(A, R, out, rr, base):
    for vv in range(2):
        for w in range(4):
            A(f"ds_read_b128 {v(R + 16 * vv + 4 * w, 4)}, {v(rr)} offset:{base + w * 4096 + vv * KB}")
    for vv in range(2):
        b = R + 16 * vv
        A(f"s_waitcnt lgkmcnt({4 - 4 * vv})")
        for q in (0, 2):
            A(f"v_pk_add_f32 {v(b + q, 2)}, {v(b + q, 2)}, {v(b + 4 + q, 2)}\nv_pk_add_f32 {v(b + 8 + q, 2)}, {v(b + 8 + q, 2)}, {v(b + 12 + q, 2)}")
        for q in (0, 2):
            A(f"v_pk_add_f32 {v(out + 4 * vv + q, 2)}, {v(b + q, 2)}, {v(b + 8 + q, 2)}")


def gen_x2(A, opts):
    Y, PX, PM, Z, ACC, XV, R, O = 4, 36, 68, 84, 100, 116, 120, 152
    FA1, FA2, _, L8, RW, RR, XA, SA, T = range(160, 169)
    YN, FV = 172, 208
    X_ = 16
    sS, sY, sP, sZ, sFL, sXO, sH, sST, sF, sMASK = range(44, 54)
    b = load_srd(A, X_, "x", 40)
    A(f"s_mov_b32 {s(sS)}, s31\ns_mov_b32 {s(sMASK)}, 0xffff0000\ns_and_b32 s36, {s(S_W)}, 1")
    A(f"v_lshlrev_b32 {v(FA1)}, 7, v1\nv_lshlrev_b32 {v(L8)}, 3, v0")
    A(f"v_and_b32 v4, 31, v0\nv_lshlrev_b32 v4, 7, v4\nv_add_u32 v4, {FP - FL}, v4\nv_add_u32 v5, {FZ - FL}, {v(FA1)}\nv_cmp_gt_u32 vcc, 32, v0\nv_cndmask_b32 {v(FA2)}, v5, v4, vcc")
    A(f"v_add_u32 v4, {X2_TEAMS * FL_STEP}, {v(FA1)}\nv_cmp_gt_u32 vcc, 48, v0\nv_cndmask_b32 {v(T + 2)}, v4, {v(FA2)}, vcc")
    A(f"s_lshl_b32 s33, {s(S_W)}, 12\nv_add_u32 {v(RW)}, s33, v3\ns_lshl_b32 s33, s36, 11\nv_add_u32 {v(RR)}, s33, v3")
    A(f"v_mul_u32_u24 v4, 896, v1\nv_lshl_add_u32 {v(XA)}, v2, 4, v4")
    A(f"v_lshlrev_b32 v4, 3, v1\nv_mov_b32 v5, {OOB}\nv_cmp_gt_u32 vcc, 16, v0\nv_cndmask_b32 {v(SA)}, v5, v4, vcc")
    A(f"s_lshl_b32 s33, s31, 4\ns_lshl_b32 s34, {s(S_W)}, 2\ns_add_u32 s33, s33, s34")
    A(f"s_mul_i32 {s(sY)}, s33, {28 * KB}\ns_lshl_b32 s34, s30, 11\ns_add_u32 {s(sY)}, {s(sY)}, s34\ns_add_u32 {s(sY)}, {s(sY)}, {YF}")
    A(f"s_mul_i32 {s(sP)}, s33, 3072\ns_add_u32 {s(sP)}, {s(sP)}, {PF}")
    A(f"s_mul_i32 {s(sZ)}, s33, 14336\ns_lshl_b32 s34, s30, 10\ns_add_u32 {s(sZ)}, {s(sZ)}, s34\ns_add_u32 {s(sZ)}, {s(sZ)}, {ZF}")
    A(f"s_mul_i32 {s(sFL)}, s31, {FL_STEP}\ns_add_u32 {s(sFL)}, {s(sFL)}, {FL}")
    A(f"s_lshl_b32 s33, s31, 1\ns_add_u32 s33, s33, s36")
    A(f"s_mul_i32 {s(sXO)}, s33, {16 * 896}\ns_lshl_b32 s34, s30, 6\ns_add_u32 {s(sXO)}, {s(sXO)}, s34")
    A(f"s_mul_i32 s33, s33, 14\ns_add_u32 s33, s33, s30\ns_lshl_b32 {s(sH)}, s33, 10\ns_add_u32 {s(sH)}, {s(sH)}, {HF}\ns_lshl_b32 {s(sST)}, s33, 7\ns_add_u32 {s(sST)}, {s(sST)}, {ST}")
    A(f"s_lshl_b32 s33, s30, 1\ns_add_u32 s33, s33, s36\ns_lshl_b32 s33, s33, 7\ns_add_u32 {s(sF)}, {s(sFL)}, s33\ns_add_u32 {s(sF)}, {s(sF)}, {FH - FL}")
    A("s_waitcnt lgkmcnt(0)")
    b()
    top, nxt = A.new("x2_top"), A.new("x2_next")
    mark(A, opts, 1)
    def y_loads(cnt=None):
        for hh in range(4):
            A(f"s_add_u32 s33, {s(sY)}, {hh * 28 * KB}")
            for vv in range(2):
                t = f"buffer_load_dwordx4 {v(YN + 8 * hh + 4 * vv, 4)}, v3, {s(WS, 4)}, s33 offen offset:{vv * KB} sc1"
                cnt.op(t) if cnt else A(t)
        t = f"buffer_load_dwordx4 {v(YN + 32, 4)}, {v(XA)}, {s(X_, 4)}, {s(sXO)} offen nt"
        cnt.op(t) if cnt else A(t)

    wait_flags(A, FV, FA1, sFL)
    y_loads()
    A(f"{top}:")
    A(f"s_cmp_lt_u32 {s(sS)}, {63 - X2_TEAMS}\ns_cselect_b64 vcc, -1, 0\nv_cndmask_b32 {v(T + 3)}, {v(FA2)}, {v(T + 2)}, vcc")
    A(f"s_cselect_b32 s33, {X2_TEAMS * 16 * 28 * KB}, 0\ns_cselect_b32 s34, {X2_TEAMS * 32 * 896}, 0\ns_add_u32 {s(sY)}, {s(sY)}, s33\ns_add_u32 {s(sXO)}, {s(sXO)}, s34\ns_waitcnt vmcnt(0)")
    for r in range(0, 32, 2):
        A(f"v_mov_b64 {v(Y + r, 2)}, {v(YN + r, 2)}")
    A(f"v_mov_b64 {v(XV, 2)}, {v(YN + 32, 2)}\nv_mov_b64 {v(XV + 2, 2)}, {v(YN + 34, 2)}")
    wait_inputs(A, opts, sS, FV, T + 3, sFL, 1)
    tmark(A, opts, 2)
    again = A.new("x2_again")
    A(f"s_barrier\n{again}:")
    vm = Cnt(A, "vmcnt", 63)
    for hh in range(4):
        A(f"s_add_u32 s33, {s(sP)}, {hh * 3072}\ns_add_u32 s34, {s(sZ)}, {hh * 14336}")
        for tt in range(2):
            vm.op(f"buffer_load_dwordx4 {v(PX + 8 * hh + 4 * tt, 4)}, v3, {s(WS, 4)}, s33 offen offset:{tt * 1536} sc1", f"x{hh}")
        for tt in range(2):
            vm.op(f"buffer_load_dwordx2 {v(PM + 8 * (hh // 2) + 4 * tt + 2 * (hh % 2), 2)}, {v(L8)}, {s(WS, 4)}, s33 offen offset:{tt * 1536 + 1024} sc1", f"m{hh // 2}")
        for vv in range(2):
            vm.op(f"buffer_load_dwordx2 {v(Z + 8 * (hh // 2) + 4 * vv + 2 * (hh % 2), 2)}, {v(L8)}, {s(WS, 4)}, s34 offen offset:{vv * 512} sc1", f"m{hh // 2}")
    y_loads(vm)
    for hh in range(4):
        vm.wait(f"x{hh}")
        for tt in range(2):
            for vv in range(2):
                d = v(ACC + 8 * tt + 4 * vv, 4)
                A(f"{MF} {d}, {v(Y + 8 * hh + 4 * vv, 4)}, {v(PX + 8 * hh + 4 * tt, 4)}, {'0' if hh == 0 else d}")
        if hh % 2:
            vm.wait(f"m{hh // 2}")
            for tt in range(2):
                for vv in range(2):
                    d = v(ACC + 8 * tt + 4 * vv, 4)
                    A(f"{MF} {d}, {v(Z + 8 * (hh // 2) + 4 * vv, 4)}, {v(PM + 8 * (hh // 2) + 4 * tt, 4)}, {d}")
    verify_last(A, opts, sS, range(PX, ACC), T, again, 9)
    for k in range(4):
        A(f"ds_write_b128 {v(RW)}, {v(ACC + 4 * k, 4)} offset:{k * KB}")
    A(f"s_cmp_ge_u32 {s(S_W)}, 2\ns_waitcnt lgkmcnt(0)\ns_barrier\ns_cbranch_scc1 {nxt}")
    reduce_tiles(A, R, O, RR, 0)
    tmark(A, opts, 3)
    for r in range(4):
        A(f"v_cvt_pk_bf16_f32 {v(R + r)}, {v(O + 2 * r)}, {v(O + 2 * r + 1)}")
    unpack(A, O, R, 4, sMASK)
    unpack(A, R + 8, XV, 4, sMASK)
    for r in range(8):
        A(f"v_add_f32 {v(O + r)}, {v(O + r)}, {v(R + 8 + r)}")
    for r in range(4):
        A(f"v_cvt_pk_bf16_f32 {v(R + r)}, {v(O + 2 * r)}, {v(O + 2 * r + 1)}")
    clean(A, range(R, R + 4))
    A(f"buffer_store_dwordx4 {v(R, 4)}, v3, {s(WS, 4)}, {s(sH)} offen sc1")
    unpack(A, O, R, 4, sMASK)
    M = R + 8
    A(f"v_add_f32 {v(M)}, {v(O)}, {v(O + 1)}")
    for r in range(2, 8):
        A(f"v_add_f32 {v(M)}, {v(M)}, {v(O + r)}")
    xor_reduce(A, "v_add_f32", M, T)
    A(f"v_mul_f32 {v(M)}, {f32(1.0 / 32)}, {v(M)}")
    for r in range(8):
        A(f"v_sub_f32 {v(O + r)}, {v(O + r)}, {v(M)}")
    A(f"v_mul_f32 {v(M + 1)}, {v(O)}, {v(O)}")
    for r in range(1, 8):
        A(f"v_fmac_f32 {v(M + 1)}, {v(O + r)}, {v(O + r)}")
    xor_reduce(A, "v_add_f32", M + 1, T)
    clean(A, (M, M + 1))
    A(f"buffer_store_dwordx2 {v(M, 2)}, {v(SA)}, {s(WS, 4)}, {s(sST)} offen sc1")
    tmark(A, opts, 5)
    drain_unless_last(A, opts, sS)
    tmark(A, opts, 4)
    set_flag(A, sF, T)
    A(f"{nxt}:")
    for r, step in ((sS, 1), (sP, 16 * 3072), (sZ, 16 * 14336), (sFL, FL_STEP), (sH, 28 * KB), (sST, 28 * 128), (sF, FL_STEP)):
        A(f"s_add_u32 {s(r)}, {s(r)}, {X2_TEAMS * step}")
    A(f"s_cmp_lt_u32 {s(sS)}, 63\ns_cbranch_scc1 {top}")
    flush_stamps(A, opts)
    A("s_endpgm")


def tr_addr(A, dst, sbase):
    A(f"v_lshrrev_b32 v4, 2, v1\nv_lshlrev_b32 v4, 6, v4\nv_and_b32 v5, 3, v0\nv_lshl_add_u32 v4, v5, 4, v4\nv_lshl_add_u32 v4, v2, 9, v4\nv_add_u32 {v(dst)}, {s(sbase)}, v4")


def row_addr(A, dst, stride):
    A(f"v_lshrrev_b32 v4, 2, v0\nv_mov_b32 v6, {stride}\nv_mul_lo_u32 v4, v4, v6\nv_and_b32 v5, 3, v0\nv_lshl_add_u32 {v(dst)}, v5, 4, v4")


def gen_f1(A, opts):
    H, ACC, CS, B1, SV, U, PK = 4, 60, 68, 76, 84, 92, 100
    FA, _, SA, RA, TR, T = range(108, 114)
    FV = 120
    W_, B_ = 16, 20
    sS, sH, sST, sG, sFH, sF, sMASK, sP = range(44, 52)
    after_first_y(A, opts)
    if opts.get('f1swap'):
        A('s_xor_b32 s31, s31, 1')
    b = [load_srd(A, W_, "w1", 40), load_srd(A, B_, "b1", 42)]
    A(f"s_lshr_b32 s34, {s(S_W)}, 1\ns_and_b32 s35, {s(S_W)}, 1\ns_lshl_b32 {s(sP)}, s30, 1\ns_add_u32 {s(sP)}, {s(sP)}, s34")
    row_addr(A, RA, 3584)
    A(f"s_mul_i32 s36, s34, {28 * KB}")
    tr_addr(A, TR, 36)
    A(f"s_mul_i32 s37, s35, {14 * KB}\ns_add_u32 s36, s36, s37\ns_mul_i32 s37, s35, {224 * 3584}\ns_lshl_b32 s38, {s(sP)}, 6\ns_add_u32 s37, s37, s38")
    A(f"v_lshlrev_b32 v7, 4, v2\ns_mov_b32 {s(sMASK)}, 0xffff0000")
    A("s_waitcnt lgkmcnt(0)")
    for f in b:
        f()
    for j in range(14):
        A(f"s_mov_b32 m0, s36\ns_add_u32 s36, s36, 1024\nbuffer_load_dwordx4 {v(RA)}, {s(W_, 4)}, s37 offen nt lds\ns_add_u32 s37, s37, {16 * 3584}")
    A(f"buffer_load_dwordx4 {v(PK, 4)}, v7, {s(B_, 4)}, s38 offen")
    A(f"s_mov_b32 {s(sS)}, s31\ns_lshl_b32 s33, s31, 1\ns_add_u32 s33, s33, s35")
    A(f"s_mul_i32 {s(sH)}, s33, {14 * KB}\ns_add_u32 {s(sH)}, {s(sH)}, {HF}\ns_mul_i32 {s(sST)}, s33, {14 * 128}\ns_add_u32 {s(sST)}, {s(sST)}, {ST}")
    A(f"s_mul_i32 s34, s33, 56\ns_add_u32 s34, s34, {s(sP)}\ns_lshl_b32 {s(sG)}, s34, 10\ns_add_u32 {s(sG)}, {s(sG)}, {GF}")
    A(f"s_mul_i32 {s(sFH)}, s31, {FL_STEP}\ns_lshl_b32 {s(sF)}, s35, 13\ns_lshl_b32 s34, {s(sP)}, 7\ns_add_u32 {s(sF)}, {s(sF)}, s34\ns_add_u32 {s(sF)}, {s(sF)}, {s(sFH)}\ns_add_u32 {s(sF)}, {s(sF)}, {FG}")
    A(f"s_add_u32 {s(sFH)}, {s(sFH)}, {FH}")
    A(f"v_min_u32 {v(FA)}, 13, v1\nv_lshlrev_b32 {v(FA)}, 8, {v(FA)}\ns_lshl_b32 s34, s35, 7\nv_add_u32 {v(FA)}, s34, {v(FA)}")
    A(f"v_lshlrev_b32 {v(SA)}, 7, v2\nv_lshl_add_u32 {v(SA)}, v1, 3, {v(SA)}\nv_add_u32 v4, 1536, {v(SA)}\nv_mov_b32 v5, {OOB}\nv_cmp_gt_u32 vcc, 32, v0\nv_cndmask_b32 {v(T + 5)}, v5, v4, vcc")
    A("s_waitcnt vmcnt(0)\ns_barrier")
    unpack(A, B1, PK, 4, sMASK)
    lg = Cnt(A, "lgkmcnt", 15)
    for vv in range(2):
        for ks in range(14):
            for x in range(2):
                lg.room(1)
                lg.op(f"ds_read_b64_tr_b16 {a((vv * 14 + ks) * 4 + 2 * x, 2)}, {v(TR)} offset:{ks * 2048 + x * 256 + vv * 8}")
    for r in range(4):
        A(f"v_mov_b32 {v(H + r)}, 0x3f803f80")
    lg.drain()
    for ks in range(14):
        for vv in range(2):
            d = v(CS + 4 * vv, 4)
            A(f"{MF} {d}, {a((vv * 14 + ks) * 4, 4)}, {v(H, 4)}, {'0' if ks == 0 else d}")
    K1 = -2.0 * math.sqrt(2.0 / math.pi) * math.log2(math.e)
    A(f"s_mov_b32 s54, {f32(K1 * 0.044715)}\nv_mov_b32 {v(T + 4)}, {f32(K1)}")
    top = A.new("f1_top")
    mark(A, opts, 1)
    A(f"{top}:")
    wait_inputs(A, opts, sS, FV, FA, sFH, 2)
    tmark(A, opts, 2)
    again = A.new("f1_again")
    A(f"{again}:")
    vm = Cnt(A, "vmcnt", 63)
    for k in range(3):
        vm.op(f"buffer_load_dwordx2 {v(SV + 2 * k, 2)}, {v(SA)}, {s(WS, 4)}, {s(sST)} offen offset:{k * 512} sc1", "s")
    vm.op(f"buffer_load_dwordx2 {v(SV + 6, 2)}, {v(T + 5)}, {s(WS, 4)}, {s(sST)} offen sc1", "s")
    A(f"s_mov_b32 s33, {s(sH)}")
    for ks in range(14):
        vm.op(f"buffer_load_dwordx4 {v(H + 4 * ks, 4)}, v3, {s(WS, 4)}, s33 offen offset:{(ks % 4) * KB} sc1", f"h{ks}")
        if ks % 4 == 3:
            A("s_add_u32 s33, s33, 4096")
    vm.wait("s")
    mu, m2, q2 = T, T + 1, T + 2
    A(f"v_add_f32 {v(mu)}, {v(SV)}, {v(SV + 2)}\nv_add_f32 {v(m2)}, {v(SV + 1)}, {v(SV + 3)}\nv_mul_f32 {v(q2)}, {v(SV)}, {v(SV)}\nv_fmac_f32 {v(q2)}, {v(SV + 2)}, {v(SV + 2)}")
    for k in (4, 6):
        A(f"v_add_f32 {v(mu)}, {v(mu)}, {v(SV + k)}\nv_add_f32 {v(m2)}, {v(m2)}, {v(SV + k + 1)}\nv_fmac_f32 {v(q2)}, {v(SV + k)}, {v(SV + k)}")
    A(f"v_fmac_f32 {v(m2)}, {f32(32.0)}, {v(q2)}")
    xor_reduce(A, "v_add_f32", mu, T + 3)
    xor_reduce(A, "v_add_f32", m2, T + 3)
    A(f"v_mul_f32 {v(mu)}, {f32(1.0 / 14)}, {v(mu)}\nv_mul_f32 {v(q2)}, {v(mu)}, {v(mu)}")
    A(f"v_mul_f32 {v(m2)}, {f32(1.0 / 448)}, {v(m2)}\nv_sub_f32 {v(m2)}, {v(m2)}, {v(q2)}\nv_max_f32 {v(m2)}, 0, {v(m2)}\nv_add_f32 {v(m2)}, {f32(1e-5)}, {v(m2)}\nv_rsq_f32 {v(m2)}, {v(m2)}")
    for ks in range(14):
        vm.wait(f"h{ks}")
        for vv in range(2):
            d = v(ACC + 4 * vv, 4)
            A(f"{MF} {d}, {a((vv * 14 + ks) * 4, 4)}, {v(H + 4 * ks, 4)}, {'0' if ks == 0 else d}")
    verify_last(A, opts, sS, list(range(H, H + 56)) + list(range(SV, SV + 8)), U, again)
    tmark(A, opts, 3)
    for r in range(8):
        A(f"v_fma_f32 {v(U + r)}, -{v(mu)}, {v(CS + r)}, {v(ACC + r)}")
    for r in range(8):
        A(f"v_fma_f32 {v(U + r)}, {v(m2)}, {v(U + r)}, {v(B1 + r)}")
    for r in range(8):
        A(f"v_mul_f32 {v(ACC + r)}, {v(U + r)}, {v(U + r)}")
    for r in range(8):
        A(f"v_fma_f32 {v(ACC + r)}, {v(ACC + r)}, s54, {v(T + 4)}")
    for r in range(8):
        A(f"v_mul_f32 {v(ACC + r)}, {v(ACC + r)}, {v(U + r)}")
    for r in range(8):
        A(f"v_exp_f32 {v(ACC + r)}, {v(ACC + r)}")
    for r in range(8):
        A(f"v_add_f32 {v(ACC + r)}, 1.0, {v(ACC + r)}")
    for r in range(8):
        A(f"v_rcp_f32 {v(ACC + r)}, {v(ACC + r)}")
    for r in range(8):
        A(f"v_mul_f32 {v(U + r)}, {v(U + r)}, {v(ACC + r)}")
    for r in range(4):
        A(f"v_cvt_pk_bf16_f32 {v(PK + r)}, {v(U + 2 * r)}, {v(U + 2 * r + 1)}")
    clean(A, range(PK, PK + 4))
    A(f"buffer_store_dwordx4 {v(PK, 4)}, v3, {s(WS, 4)}, {s(sG)} offen sc1")
    tmark(A, opts, 5)
    drain_unless_last(A, opts, sS)
    tmark(A, opts, 4)
    set_flag(A, sF, SV)
    for r, step in ((sS, 1), (sH, 28 * KB), (sST, 28 * 128), (sG, 112 * KB), (sFH, FL_STEP), (sF, FL_STEP)):
        A(f"s_add_u32 {s(r)}, {s(r)}, {F_TEAMS * step}")
    A(f"s_cmp_lt_u32 {s(sS)}, 64\ns_cbranch_scc1 {top}")
    flush_stamps(A, opts)
    A("s_endpgm")


def gen_f2(A, opts):
    Gr, ACC, HV, B2, R, O = 4, 60, 76, 80, 88, 120
    FA, _, RA, TR, RW, RR, OA, T = range(128, 136)
    FV = 138
    W_, B_, O_ = 16, 20, 24
    sS, sG, sH, sO, sFG, sMASK = range(44, 50)
    after_first_y(A, opts)
    b = [load_srd(A, W_, "w2", 40), load_srd(A, B_, "b2", 42), load_srd(A, O_, "out", 38)]
    A(f"s_lshr_b32 s34, s30, 1\ns_and_b32 s35, s30, 1\ns_and_b32 s29, {s(S_W)}, 1")
    row_addr(A, RA, 896)
    A(f"s_mul_i32 s28, {s(S_W)}, {28 * KB}")
    tr_addr(A, TR, 28)
    A(f"v_lshlrev_b32 v7, 4, v2\ns_mov_b32 {s(sMASK)}, 0xffff0000\ns_lshl_b32 s52, s34, 7\ns_lshl_b32 s53, s29, 6\ns_add_u32 s53, s53, s52")
    A("s_waitcnt lgkmcnt(0)")
    for f in b:
        f()
    A(f"buffer_load_dwordx4 {v(HV, 4)}, v7, {s(B_, 4)}, s53 offen")
    lg = Cnt(A, "lgkmcnt", 15)
    for pa in range(2):
        A(f"s_mul_i32 s37, {s(S_W)}, {448 * 896}\ns_add_u32 s37, s37, s52\ns_add_u32 s37, s37, {pa * 64}\ns_mov_b32 s36, s28")
        for j in range(28):
            A(f"s_mov_b32 m0, s36\ns_add_u32 s36, s36, 1024\nbuffer_load_dwordx4 {v(RA)}, {s(W_, 4)}, s37 offen nt lds\ns_add_u32 s37, s37, {16 * 896}")
        A("s_waitcnt vmcnt(0)")
        for vv in range(2):
            for ks in range(14):
                for x in range(2):
                    lg.room(1)
                    lg.op(f"ds_read_b64_tr_b16 {a(((2 * pa + vv) * 14 + ks) * 4 + 2 * x, 2)}, {v(TR)} offset:{ks * 2048 + x * 256 + vv * 8}")
        lg.drain()
    unpack(A, B2, HV, 4, sMASK)
    A(f"s_mov_b32 {s(sS)}, s31\ns_lshl_b32 s33, s31, 1\ns_add_u32 s33, s33, s35")
    A(f"s_mul_i32 s36, s33, 56\ns_mul_i32 s37, {s(S_W)}, 14\ns_add_u32 s36, s36, s37\ns_lshl_b32 {s(sG)}, s36, 10\ns_add_u32 {s(sG)}, {s(sG)}, {GF}")
    A(f"s_mul_i32 s36, s33, 14\ns_lshl_b32 s37, s34, 1\ns_add_u32 s36, s36, s37\ns_add_u32 s36, s36, s29\ns_lshl_b32 {s(sH)}, s36, 10\ns_add_u32 {s(sH)}, {s(sH)}, {HF}")
    A(f"s_mul_i32 {s(sO)}, s33, {16 * 896}\ns_add_u32 {s(sO)}, {s(sO)}, s53\ns_mul_i32 {s(sFG)}, s31, {FL_STEP}\ns_lshl_b32 s36, s35, 13\ns_add_u32 {s(sFG)}, {s(sFG)}, s36\ns_add_u32 {s(sFG)}, {s(sFG)}, {FG}")
    A(f"v_min_u32 {v(FA)}, 55, v0\nv_lshlrev_b32 {v(FA)}, 7, {v(FA)}")
    A(f"s_lshl_b32 s33, {s(S_W)}, 12\nv_add_u32 {v(RW)}, s33, v3\ns_lshl_b32 s33, s29, 11\nv_add_u32 {v(RR)}, s33, v3")
    A(f"v_mul_u32_u24 v4, 896, v1\nv_lshl_add_u32 {v(OA)}, v2, 4, v4")
    top, nxt = A.new("f2_top"), A.new("f2_next")
    mark(A, opts, 1)
    A(f"{top}:")
    wait_inputs(A, opts, sS, FV, FA, sFG, 4)
    tmark(A, opts, 2)
    again = A.new("f2_again")
    A(f"s_barrier\n{again}:")
    vm = Cnt(A, "vmcnt", 63)
    A(f"s_mov_b32 s33, {s(sG)}")
    for ks in range(14):
        vm.op(f"buffer_load_dwordx4 {v(Gr + 4 * ks, 4)}, v3, {s(WS, 4)}, s33 offen offset:{(ks % 4) * KB} sc1", f"g{ks}")
        if ks % 4 == 3:
            A("s_add_u32 s33, s33, 4096")
    vm.op(f"buffer_load_dwordx4 {v(HV, 4)}, v3, {s(WS, 4)}, {s(sH)} offen sc1", "h")
    for ks in range(14):
        vm.wait(f"g{ks}")
        for t in range(4):
            d = v(ACC + 4 * t, 4)
            A(f"{MF} {d}, {a((t * 14 + ks) * 4, 4)}, {v(Gr + 4 * ks, 4)}, {'0' if ks == 0 else d}")
    verify_last(A, opts, sS, list(range(Gr, Gr + 56)) + list(range(HV, HV + 4)), T, again)
    for k in range(4):
        A(f"ds_write_b128 {v(RW)}, {v(ACC + 4 * k, 4)} offset:{k * KB}")
    A(f"s_cmp_ge_u32 {s(S_W)}, 2\ns_waitcnt vmcnt(0) lgkmcnt(0)\ns_barrier\ns_cbranch_scc1 {nxt}")
    reduce_tiles(A, R, O, RR, 0)
    tmark(A, opts, 3)
    unpack(A, R, HV, 4, sMASK)
    for r in range(8):
        A(f"v_add_f32 {v(O + r)}, {v(O + r)}, {v(B2 + r)}")
    for r in range(8):
        A(f"v_add_f32 {v(O + r)}, {v(O + r)}, {v(R + r)}")
    for r in range(4):
        A(f"v_cvt_pk_bf16_f32 {v(R + 8 + r)}, {v(O + 2 * r)}, {v(O + 2 * r + 1)}")
    A(f"buffer_store_dwordx4 {v(R + 8, 4)}, {v(OA)}, {s(O_, 4)}, {s(sO)} offen{['', ' sc1', ' nt'][opts.get('osc', 0)]}")
    A(f"{nxt}:")
    for r, step in ((sS, 1), (sG, 112 * KB), (sH, 28 * KB), (sO, 32 * 896), (sFG, FL_STEP)):
        A(f"s_add_u32 {s(r)}, {s(r)}, {F_TEAMS * step}")
    A(f"s_cmp_lt_u32 {s(sS)}, 64\ns_cbranch_scc1 {top}")
    dbg_time(A, opts, 7, 213)
    amp_mark(A, opts, 4)
    amp_spin(A, opts, 213, (4,))
    flush_stamps(A, opts)
    A("s_endpgm")
```

```python
from asmlib import v, a, s
from layout import *
from common import *
from gen_prep import chunk_pos

SMF = "v_smfmac_f32_16x16x64_bf16"
MF = "v_mfma_f32_16x16x32_bf16"
N_CHAIN = 32


def chain_mode(A, opts, vm, lab):
    lp = A.new("reg")
    A("v_mov_b32 v5, 68")
    A(f"{lp}:\ns_sleep 16")
    A(f"buffer_load_dword v4, v5, {s(DB, 4)}, 0 offen sc1")
    poll_guard(A)
    vm.drain()
    A(f"v_readfirstlane_b32 s34, v4\ns_and_b32 s35, s34, 0xff\ns_cmp_eq_u32 s35, {N_CHAIN}\ns_cbranch_scc0 {lp}")
    mark(A, opts, 1)
    dbg_time(A, opts, 5, 16)
    if lab:
        A(f"s_waitcnt lgkmcnt(0)\ns_lshr_b32 s34, s34, 8\ns_cmp_eq_u32 s34, 0\ns_cbranch_scc0 {lab}")


def gather_addr(A, ga0, ga1):
    A(f"s_mul_i32 s33, {s(S_W)}, {112 * 16}\nv_add_u32 {v(ga0)}, s33, v3")
    A(f"v_min_u32 {v(ga1)}, 47, v0\nv_lshlrev_b32 {v(ga1)}, 4, {v(ga1)}\ns_add_u32 s33, s33, 1024\nv_add_u32 {v(ga1)}, s33, {v(ga1)}")


def mem_loads(A, G, ga0, ga1, scm):
    A(f"buffer_load_dwordx4 {v(G, 4)}, {v(ga0)}, {s(WS, 4)}, {s(scm)} offen sc1")
    A(f"buffer_load_dwordx4 {v(G + 4, 4)}, {v(ga1)}, {s(WS, 4)}, {s(scm)} offen sc1")


def check8(A, G, t):
    A(f"v_max3_u32 {v(t)}, {v(G)}, {v(G + 1)}, {v(G + 2)}\nv_max3_u32 {v(t + 1)}, {v(G + 3)}, {v(G + 4)}, {v(G + 5)}")
    A(f"v_max3_u32 {v(t)}, {v(t)}, {v(G + 6)}, {v(G + 7)}\nv_max_u32 {v(t)}, {v(t)}, {v(t + 1)}\nv_cmp_eq_u32 vcc, -1, {v(t)}")


def gather_mem(A, opts, G0, G1, ga0, ga1, scm, t, memb, shadow, ka=""):
    lp, ok = A.new("poll"), A.new("ok")
    mem_loads(A, G0, ga0, ga1, scm)
    for x in shadow:
        A(x)
    A(f"{lp}:")
    for cur, other in ((G0, G1), (G1, G0)):
        mem_loads(A, other, ga0, ga1, scm)
        poll_guard(A)
        A(ka)
        A("s_waitcnt vmcnt(2)")
        A(f"ds_write_b128 {v(ga0)}, {v(cur, 4)} offset:{memb}\nds_write_b128 {v(ga1)}, {v(cur + 4, 4)} offset:{memb}")
        check8(A, cur, t)
        if opts.get("solo"):
            A(f"s_cbranch_vccz {ok}\ns_branch {ok}")
        A(f"s_cbranch_vccz {ok}" if cur == G0 else f"s_cbranch_vccnz {lp}")
    A(f"{ok}:")
    stamp(A, opts, 0)
    A("s_waitcnt lgkmcnt(0)\ns_barrier")


def notice_wait(A, opts, F, fa, sreg, off, shadow, sstep=None):
    if opts.get("solo"):
        for x in shadow:
            A(x)
        return
    depth = opts.get("nd", 3)
    lp, ok = A.new("nw"), A.new("nok")
    ld = lambda k: A(f"buffer_load_dword {v(F + k)}, {v(fa)}, {s(WS, 4)}, {s(sreg)} offen offset:{off} sc1")
    for k in range(depth - 1):
        ld(k)
    for x in shadow:
        A(x)
    if sstep is not None:
        A(f"s_cmp_eq_u32 {s(sstep)}, 0\ns_cbranch_scc1 {ok}")
    A(f"{lp}:")
    poll_guard(A)
    for k in range(depth):
        ld((k + depth - 1) % depth)
        A(f"s_waitcnt vmcnt({depth - 1})\nv_cmp_ne_u32 vcc, {s(S_NONCE)}, {v(F + k)}")
        A(f"s_cbranch_vccz {ok}" if k < depth - 1 else f"s_cbranch_vccnz {lp}")
    A(f"{ok}:")


def fetch_mem(A, opts, G, ga0, ga1, scm, t, memb, ka=""):
    lp = A.new("fm")
    A(f"{lp}:")
    mem_loads(A, G, ga0, ga1, scm)
    poll_guard(A)
    A(ka)
    A("s_waitcnt vmcnt(0)")
    A(f"ds_write_b128 {v(ga0)}, {v(G, 4)} offset:{memb}\nds_write_b128 {v(ga1)}, {v(G + 4, 4)} offset:{memb}")
    check8(A, G, t)
    if opts.get("stamps"):
        A("s_add_u32 s53, s53, 1")
    if not opts.get("solo"):
        A(f"s_cbranch_vccnz {lp}")
    stamp(A, opts, 0)
    A("s_waitcnt lgkmcnt(0)\ns_barrier")


def notice(A, val, addr, sreg, off, sc, lanes=64):
    if lanes < 64:
        A(f"s_mov_b64 exec, {hex((1 << lanes) - 1)}")
    A(f"buffer_store_dword {v(val)}, {v(addr)}, {s(WS, 4)}, {s(sreg)} offen offset:{off}{sc}")
    if lanes < 64:
        A("s_mov_b64 exec, -1")


def idx_reg(A, r):
    A(f"v_mov_b32 {v(r)}, 0x44444444\nv_mov_b32 v4, 0xeeeeeeee\nv_cmp_gt_u32 vcc, 8, v1\nv_cndmask_b32 {v(r)}, v4, {v(r)}, vcc")


def zero(r, n):
    return [f"v_mov_b64 {v(r + 2 * k, 2)}, 0" for k in range(n // 2)]


def emit_stream(A, stream, fill):
    for i, m_ in enumerate(stream):
        m_() if callable(m_) else A(m_)
        items = fill.get(i, [])
        for x in items:
            x() if callable(x) else A(x)
        if not items and i + 1 < len(stream):
            A("s_nop 1")


def gen_chain_a(A, opts):
    MEM, ACC, KEY, TSP, SC, PK, IDX = 4, 32, 60, 84, 92, 104, 108
    CK, TR3B, SPARE, FA, MK, MK3, TW0, TW3A, TW3B, TR0, TR3 = range(109, 120)
    XR, SW, SR, PX, PM = 0, 1, 2, 106, 107
    T = 104
    REG = 32768
    XK, TB, SB, MEMB = 0, 16384, 57344, 24576
    sS, sCM, sCP, sXA, sXB, sM0, sP0, sODD, sREG, sEF, sYP, sMB, sQ, sEX, sNP = 44, 45, 46, 47, 48, 49, 50, 51, 52, 54, 55, 56, 57, 58, 72
    vm = Cnt(A, "vmcnt", 63)
    A(f"s_and_b32 {s(sODD)}, {s(S_W)}, 1\ns_mul_i32 s33, {s(S_W)}, 7\ns_add_u32 {s(sP0)}, s33, {s(sODD)}\ns_lshr_b32 {s(sP0)}, {s(sP0)}, 1")
    A(f"s_lshl_b32 {s(sREG)}, {s(S_W)}, 15\ns_mov_b32 {s(sM0)}, {s(sREG)}")
    A(f"s_lshl_b32 {s(sXA)}, {s(sP0)}, 10\ns_add_u32 {s(sXA)}, {s(sXA)}, {XS}\ns_mul_i32 s33, {s(sODD)}, 4092\ns_sub_u32 {s(sXB)}, {s(sXA)}, s33")

    if opts.get("gemu"):
        A(f"s_mul_i32 {s(sXA)}, {s(S_ID)}, {28 * KB}\ns_mul_i32 s33, {s(S_W)}, {3 * KB}\ns_add_u32 {s(sXA)}, {s(sXA)}, s33\ns_add_u32 {s(sXA)}, {s(sXA)}, {opts['gemu'] << 20}\ns_mov_b32 {s(sXB)}, {s(sXA)}")

    def dma(k):
        aa, b = k // 4, k % 4
        pre = f"s_add_u32 s33, {s(sM0)}, {aa * 4096}\ns_mov_b32 m0, s33\n" if b == 0 else ""
        if b in (0, 3):
            pre += f"s_add_u32 s34, {s(sXB if b == 3 else sXA)}, {aa * 14336}\n"
        return pre + f"buffer_load_dwordx4 v3, {s(WS, 4)}, s34 offen offset:{b * 1024} sc1 lds"

    A(f"s_mul_i32 s34, {s(S_ID)}, {FRAG_H}\ns_mul_i32 s33, {s(S_W)}, {7 * 14 * KB}\ns_add_u32 s34, s34, s33")
    if AF:
        A(f"s_add_u32 s34, s34, {AF}")
    A(f"s_mul_i32 s35, {s(sODD)}, {14 * KB}\ns_add_u32 s35, s35, s34\ns_add_u32 s36, s34, {6 * 14 * KB}\ns_cmp_eq_u32 {s(sODD)}, 0\ns_cselect_b32 s36, s36, s34")
    A(f"s_mul_i32 s33, {s(S_ID)}, 7\nv_min_u32 v4, 6, v0\nv_add_u32 v4, s33, v4")

    def piece(kk):
        frag_loads(A, 35, [((i * 7 + kk) * 8 + 4 * u, i * 14 * KB + (2 * kk + u) * KB) for i in range(6) for u in range(2)])
        frag_loads(A, 36, [((42 + kk) * 8 + 4 * u, (2 * kk + u) * KB) for u in range(2)])

    A(f"s_lshl_b32 {s(sQ)}, {s(S_W)}, 11\ns_add_u32 {s(sMB)}, {s(sQ)}, {MEMB}\ns_add_u32 {s(sQ)}, {s(sQ)}, {CM}")

    def fetch():
        A(f"buffer_load_dwordx4 v3, {s(WS, 4)}, {s(sQ)} offen sc1 lds")
        if opts.get("sk3", 1):
            sk = A.new("f3")
            A(f"s_cmp_eq_u32 {s(S_W)}, 3\ns_cbranch_scc1 {sk}\nbuffer_load_dwordx4 v3, {s(WS, 4)}, {s(sQ)} offen offset:1024 sc1 lds\n{sk}:")
        else:
            A(f"buffer_load_dwordx4 v3, {s(WS, 4)}, {s(sQ)} offen offset:1024 sc1 lds")

    def first_inputs():
        for k in range(8):
            A(dma(k))
        A(f"s_mov_b32 m0, {s(sMB)}")
        fetch()

    if opts.get('late'):
        A('v_mov_b32 v20, v4\ns_mov_b32 s60, s35\ns_mov_b32 s61, s36')
        wait_prep(A, True)
        A('v_mov_b32 v4, v20\ns_mov_b32 s35, s60\ns_mov_b32 s36, s61')
        mark(A, opts, 3)
    load_pieces(A, [(14, lambda kk=kk: piece(kk)) for kk in range(7)], 4, (10, first_inputs))
    mark(A, opts, 2)
    idx_reg(A, IDX)
    A(f"v_and_b32 v4, 7, v1\nv_lshlrev_b32 v4, 4, v4\nv_lshl_add_u32 v4, v2, 7, v4\ns_lshl_b32 s33, {s(sP0)}, 9\nv_add_u32 {v(MK)}, s33, v4")
    A(f"s_mul_i32 s34, {s(sODD)}, 2044\ns_sub_u32 s34, {1536 + MEMB}, s34\nv_add_u32 {v(MK3)}, s34, {v(MK)}")
    A(f"v_lshrrev_b32 v4, 1, v2\nv_lshlrev_b32 v4, 3, v4\nv_xor_b32 v4, v4, v1\nv_lshlrev_b32 v4, 3, v4\nv_lshl_add_u32 v4, v2, 7, v4\nv_add_u32 {v(TW0)}, {s(sREG)}, v4")
    A(f"s_add_u32 s34, {s(sREG)}, {TB + 3072}\nv_lshrrev_b32 v4, 5, v0\nv_lshlrev_b32 v4, 2, v4\nv_xor_b32 v4, v4, v0\nv_lshlrev_b32 v4, 3, v4\nv_add_u32 {v(TW3A)}, s34, v4\nv_xor_b32 {v(TW3B)}, 64, {v(TW3A)}\nv_add_u32 {v(TW3B)}, 512, {v(TW3B)}")
    A("v_lshrrev_b32 v4, 2, v1\nv_and_b32 v5, 3, v1")
    A("v_lshrrev_b32 v6, 1, v2\nv_lshrrev_b32 v8, 1, v5\nv_xor_b32 v6, v6, v8\nv_lshlrev_b32 v6, 3, v6")
    A("v_and_b32 v7, 1, v2\nv_lshl_add_u32 v6, v7, 1, v6\nv_and_b32 v7, 1, v4\nv_add_u32 v6, v6, v7")
    A("v_lshrrev_b32 v7, 1, v4\nv_lshlrev_b32 v6, 3, v6\nv_lshl_add_u32 v6, v7, 9, v6\nv_lshl_add_u32 v6, v5, 7, v6")
    A(f"v_add_u32 {v(TR0)}, {s(sREG)}, v6")
    A("v_lshrrev_b32 v6, 1, v2\nv_xor_b32 v6, v6, v8\nv_lshlrev_b32 v6, 3, v6\nv_and_b32 v7, 1, v2\nv_lshl_add_u32 v6, v7, 1, v6\nv_and_b32 v7, 1, v4\nv_add_u32 v6, v6, v7")
    A("v_lshrrev_b32 v9, 1, v4\nv_lshl_add_u32 v6, v9, 2, v6\nv_lshlrev_b32 v6, 3, v6\nv_lshl_add_u32 v6, v8, 9, v6\nv_lshl_add_u32 v6, v9, 8, v6\nv_and_b32 v7, 1, v5\nv_lshl_add_u32 v6, v7, 7, v6")
    A(f"v_add_u32 {v(TR3)}, s34, v6\nv_xor_b32 {v(TR3B)}, 32, {v(TR3)}")
    A(f"s_lshl_b32 s33, {s(sODD)}, 2\nv_add_u32 v4, s33, v2")
    A(f"v_lshrrev_b32 v5, 2, v1\nv_lshlrev_b32 v5, 7, v5\nv_and_b32 v6, 3, v1\nv_lshl_add_u32 v5, v6, 2, v5\nv_lshl_add_u32 {v(PX)}, v4, 4, v5")
    A(f"v_lshlrev_b32 v4, 4, v4\nv_lshl_add_u32 v4, v1, 1, v4\nv_add_u32 v4, 512, v4\nv_and_b32 v5, 9, v1\nv_cmp_eq_u32 vcc, 0, v5\nv_mov_b32 v5, {OOB}\nv_cndmask_b32 {v(PM)}, v5, v4, vcc")
    A(f"v_lshrrev_b32 v4, 1, v2\nv_lshlrev_b32 v4, 5, v4\nv_add_u32 v4, v4, v1\ns_lshl_b32 s33, {s(sODD)}, 4\nv_add_u32 v4, s33, v4\nv_lshlrev_b32 v4, 3, v4")
    A(f"v_and_b32 v5, 1, v2\nv_lshl_add_u32 v4, v5, 2, v4\nv_add_u32 v13, {SB}, v4\nv_lshlrev_b32 v14, 3, v0\ns_lshl_b32 s33, {s(S_W)}, 11\nv_add_u32 v14, s33, v14")
    A(f"s_cmp_eq_u32 {s(S_W)}, 3\ns_cselect_b32 s34, 7, 15\nv_min_u32 {v(FA)}, s34, v1\nv_lshlrev_b32 {v(FA)}, 2, {v(FA)}")
    if opts.get("wl", 3) & 1:
        A(f"s_lshl_b32 s33, {s(S_ID)}, 2\ns_add_u32 s33, s33, {s(S_W)}\ns_lshl_b32 s33, s33, 7")
    else:
        A(f"s_lshl_b32 s33, {s(S_ID)}, 9\ns_lshl_b32 s34, {s(S_W)}, 6\ns_add_u32 s33, s33, s34")
    A(f"v_add_u32 {v(FA)}, s33, {v(FA)}\ns_mov_b32 {s(sEF)}, {EF}\ns_mov_b32 s53, 0")
    A("v_and_b32 v5, 1, v1\nv_lshlrev_b32 v5, 3, v5\nv_lshrrev_b32 v6, 3, v1\nv_lshl_add_u32 v5, v6, 2, v5\nv_and_b32 v6, 2, v1\nv_add_u32 v5, v5, v6\nv_bfe_u32 v6, v1, 2, 1\nv_add_u32 v5, v5, v6")
    chunk_pos(A, 12, 5, 2, 4)
    A(f"v_add_u32 v12, {s(sREG)}, v12")
    A(f"v_mov_b32 {v(XR)}, v12\nv_mov_b32 {v(SW)}, v14\nv_mov_b32 {v(SR)}, v13")
    A(f"s_mov_b32 {s(sS)}, 0\ns_mov_b32 {s(sCM)}, {CM}\ns_mul_i32 {s(sCP)}, {s(S_ID)}, 640\ns_add_u32 {s(sCP)}, {s(sCP)}, {CP}")
    if opts.get("wl", 3) & 2:
        A(f"s_lshr_b32 s33, {s(S_ID)}, 2\ns_lshl_b32 s33, s33, 7\ns_and_b32 s34, {s(S_ID)}, 3\ns_lshl_b32 s34, s34, 2\ns_add_u32 {s(sNP)}, s33, s34\ns_add_u32 {s(sNP)}, {s(sNP)}, {EF_P}")
    else:
        A(f"s_lshl_b32 {s(sNP)}, {s(S_ID)}, 2\ns_add_u32 {s(sNP)}, {s(sNP)}, {EF_P}")
    ahead = opts.get("yah", 1)
    A(f"s_mul_i32 {s(sYP)}, {s(S_ID)}, {28 * KB}\ns_mul_i32 s33, {s(S_W)}, {7 * KB}\ns_add_u32 {s(sYP)}, {s(sYP)}, s33\ns_add_u32 {s(sYP)}, {s(sYP)}, {YF + ahead * 16 * 28 * KB}")
    slow = A.new("a_slow")
    fresh = zero(ACC, 28) + [f"v_lshlrev_b32 {v(T)}, 3, v3"]
    for x in fresh:
        A(x)
    for k in range(opts.get("ay", 0)):
        A(f"s_sub_u32 s33, {s(sYP)}, {(ahead - k) * 16 * 28 * KB}\nbuffer_load_dword v20, {v(T)}, {s(WS, 4)}, s33 offen sc1")
    wait_start(A, opts, slow)
    ka = lambda n, r=ACC: "".join(f"{MF} {v(r, 4)}, {v(TSP, 4)}, {v(TSP, 4)}, {v(r, 4)}\n" for _ in range(n))

    def loop(sc):
        top, nxt, done, lp, ok, idle = (A.new(x) for x in ("a_top", "a_next", "a_done", "a_poll", "a_ok", "a_idle"))
        redo = A.new("a_redo")
        G0, G1 = KEY, KEY + 8
        A(f"s_branch {lp}")
        if opts.get("al"):
            A(f".p2align {opts['al']}")
        A(f"{top}:")
        notice_wait(A, opts, G1, FA, sEF, 0, fresh + [f"s_mov_b32 m0, {s(sMB)}"])
        if opts.get("nst"):
            stamp(A, opts, 1)
        fetch()
        A(f"{lp}:")
        if opts.get("stamps"):
            A("s_add_u32 s53, s53, 1")
        A(ka(opts.get("ka_m", 0), SC))
        A("s_waitcnt vmcnt(0)")
        stamp(A, opts, 0)
        A("s_barrier")
        if not opts.get("nst"):
            stamp(A, opts, 1)
        lg = Cnt(A, "lgkmcnt", 15)
        for kk in range(7):
            lg.op(f"ds_read_b128 {v(MEM + 4 * kk, 4)}, v3 offset:{MEMB + kk * 1024}", f"m{kk}")

        def tile(i):
            out = []
            for kk in range(7):
                txt = f"{SMF} {v(ACC + 4 * i, 4)}, {v(MEM + 4 * kk, 4)}, {wreg((i * 7 + kk) * 8, 8)}, {v(IDX)}" if not opts.get("noam") else "s_nop 2"
                out.append((lambda txt=txt, kk=kk: (lg.wait(f"m{kk}"), A(txt))) if i == 0 else txt)
            return out

        def score(b):
            out = []
            for tau in range(3):
                c = "0" if b == 0 else v(SC + 4 * tau, 4)
                txt = f"{MF} {v(SC + 4 * tau, 4)}, {v(TSP + 4 * (b % 2), 4)}, {v(KEY + 12 * (b % 2) + 4 * tau, 4)}, {c}"
                out.append((lambda txt=txt: (lg.wait(f"tr{b}", f"k{b}"), A(txt))) if tau == 0 else txt)
            return out

        def keys(b):
            K = KEY + 12 * (b % 2)
            out = [lambda aa=aa: lg.op(f"ds_read_b128 {v(K + 4 * aa, 4)}, {v(XR)} offset:{XK + aa * 4096 + b * 1024}", f"k{b}") for aa in range(2)]
            if b == 3:
                return out + [lambda x=x: lg.op(f"ds_read2_b32 {v(K + 8 + 2 * x, 2)}, {v(MK3)} offset0:{2 * x} offset1:{2 * x}", "k3") for x in range(2)]
            out.append(lambda: lg.op(f"ds_read_b128 {v(K + 8, 4)}, {v(MK)} offset:{MEMB + b * 512}", f"k{b}"))
            return out

        def epi(i):
            D = ACC + 4 * i
            out = [f"v_cvt_pk_bf16_f32 {v(PK)}, {v(D)}, {v(D + 1)}", f"v_cvt_pk_bf16_f32 {v(PK + 1)}, {v(D + 2)}, {v(D + 3)}"]
            if i < 6:
                return out + [lambda: lg.op(f"ds_write_b64 {v(TW0)}, {v(PK, 2)} offset:{TB + i * 512}", f"t{i}")]
            return out + [lambda: lg.op(f"ds_write_b64 {v(TW3A)}, {v(PK, 2)}", "t6"),
                          lambda: lg.op(f"ds_write2_b32 {v(TW3B)}, {v(PK + 1)}, {v(PK)} offset0:0 offset1:1", "t6")]

        def trs(b):
            if b == 3:
                return [lambda x=x: lg.op(f"ds_read_b64_tr_b16 {v(TSP + 4 + 2 * x, 2)}, {v((TR3, TR3B)[x])}", "tr3") for x in range(2)]
            return [lambda x=x: lg.op(f"ds_read_b64_tr_b16 {v(TSP + 4 * (b % 2) + 2 * x, 2)}, {v(TR0)} offset:{TB + b * 1024 + 32 * x}", f"tr{b}") for x in range(2)]

        stream = tile(0) + tile(1) + tile(2) + tile(3) + score(0) + tile(4) + tile(5) + score(1) + tile(6) + score(2)[:2]
        fill = {}

        def put(g, items):
            for k, it in enumerate(items):
                assert g + k not in fill, g + k
                fill[g + k] = [it]

        for k in range(0 if opts.get("pfx") else opts.get("apf", 1)):
            pre = f"s_add_u32 s33, {s(sREG)}, 24320\ns_mov_b32 m0, s33\ns_nop 0\n" if k == 0 else ""
            (put if opts.get("pfg", 1) >= 0 else lambda g, x: A(x[0]))(opts.get("pfg", 1) + 3 * k, [pre + f"buffer_load_dword {v(T)}, {s(WS, 4)}, {s(sYP)} offen offset:{128 // opts.get('apf', 1) * k} sc1 lds"])
        early = opts.get("ek", 1)
        put(1 if early else 4, keys(0))
        put(4 if early else 15, keys(1))
        put(11, epi(0))
        put(18, epi(1))
        put(21, trs(0))
        put(25, epi(2))
        k2 = keys(2)
        put(31, k2[:1])
        put(32, epi(3))
        put(35, trs(1))
        put(38, k2[1:])
        put(41, epi(4))
        put(47, epi(5))
        put(50, trs(2))
        k3 = keys(3)
        dup = [f"v_mov_b32 {v(r + 1)}, {v(r)}" for r in range(KEY + 12, KEY + 20, 2)]
        if early:
            put(45, k3[:2])
            put(52, [lambda x=dup[0]: (lg.wait("k3"), A(x)), dup[1], dup[2], k3[2], k3[3]])
            dup = dup[3:]
        else:
            put(52, k3)
        br = "s_nop 0" if opts.get("solo") else f"s_cbranch_vccnz {redo}"
        mx = lambda x, y, z: f"v_max3_u32 {v(CK)}, {v(x)}, {v(y)}, {v(z)}"
        cmpi = f"v_cmp_eq_u32 vcc, -1, {v(CK)}"
        for g, x in zip((7, 8, 9, 10), (mx(MEM, MEM + 4, MEM + 8), mx(CK, MEM + 12, MEM + 16), mx(CK, MEM + 20, MEM + 24), cmpi)):
            put(g, [x])
        fill[12].append(br)
        rest = [MEM + r for r in range(28) if r % 4]
        late = [mx(*rest[:3])] + [mx(CK, rest[r], rest[r + 1]) for r in range(3, 21, 2)] + [cmpi]
        lt = opts.get("lt", 1)
        if not lt:
            for g, x in zip((14, 15, 16, 17, 23, 24, 28, 29, 30, 37, 40) if early else (14, 23, 24, 28, 29, 30, 37, 40, 44, 45, 46), late):
                put(g, [x])
            fill[43 if early else 49].append(br)
        emit_stream(A, stream, fill)
        stamp(A, opts, 2)
        sw = []
        for tau in range(3):
            D = SC + 4 * tau
            sw += [f"v_permlane32_swap_b32 {v(D)}, {v(D + 2)}", f"v_permlane32_swap_b32 {v(D + 1)}, {v(D + 3)}", f"v_pk_add_f32 {v(D, 2)}, {v(D, 2)}, {v(D + 2, 2)}"]
        c0, c1, w0, w1 = epi(6)
        t0, t1 = trs(3)
        m2 = score(2)[2]
        seq = {0: [c0, c1, m2, w0, w1, t0, t1] + sw,
               1: [c0, c1, m2, w0, sw[0], w1, sw[1], t0, t1] + sw[2:],
               2: [c0, c1, w0, m2, w1, t0, t1] + sw,
               3: [c0, c1, m2, w0, w1, sw[0], t0, t1] + sw[1:],
               4: [c0, c1, w0, m2, w1, sw[0], t0, sw[1], t1] + sw[2:]}[opts.get("tv", 0)]
        for x in seq:
            x() if callable(x) else A(x)
        if not early:
            lg.wait("k3")
        for x in dup:
            A(x)
        A(f"s_cmp_ge_u32 {s(S_W)}, 2")
        pad = (lambda n: "\n".join(late[2 * n:2 * n + 2])) if lt else (lambda n: "s_nop 1")
        for n, x in enumerate(score(3)):
            x() if callable(x) else A(x)
            A(pad(n))
        for tau in range(3):
            A(f"ds_write_b64 {v(SW)}, {v(SC + 4 * tau, 2)} offset:{SB + 512 * tau}")
            if tau < 2:
                A(pad(3 + tau))
        if opts.get("pfx"):
            A(f"s_add_u32 s33, {s(sREG)}, 24320\ns_mov_b32 m0, s33\nv_lshlrev_b32 {v(T)}, 3, v3\nbuffer_load_dword {v(T)}, {s(WS, 4)}, {s(sYP)} offen sc1 lds\ns_cmp_ge_u32 {s(S_W)}, 2")
        if lt:
            A(late[10] + "\n" + br)
        A("s_waitcnt lgkmcnt(0)\ns_barrier")
        stamp(A, opts, 3)
        R = MEM + 8
        nb = opts.get("brp", 0)
        for n in range(6):
            tau, hf = n // 2, n % 2
            if n == nb:
                A(f"s_cbranch_scc1 {idle}")
            A(f"ds_read2st64_b32 {v(R + 4 + 4 * tau + 2 * hf, 2)}, {v(SR)} offset0:{2 * tau + 16 * hf} offset1:{2 * tau + 16 * hf + 8}")
        for tau in range(3):
            A(f"s_waitcnt lgkmcnt({4 - 2 * tau})")
            A(f"v_pk_add_f32 {v(R + 4 + 4 * tau, 2)}, {v(R + 4 + 4 * tau, 2)}, {v(R + 6 + 4 * tau, 2)}")
            A(f"v_add_f32 {v(R + tau)}, {v(R + 4 + 4 * tau)}, {v(R + 5 + 4 * tau)}")
        mx, sm = T, T + 1
        A(f"v_max3_f32 {v(mx)}, {v(R)}, {v(R + 1)}, {v(R + 2)}")
        for rot in (8, 4, 2, 1):
            A(f"v_max_f32_dpp {v(mx)}, {v(mx)}, {v(mx)} row_ror:{rot} row_mask:0xf bank_mask:0xf")
        for tau in (2, 0, 1):
            A(f"v_sub_f32 {v(R + tau)}, {v(R + tau)}, {v(mx)}")
        for tau in (2, 0, 1):
            A(f"v_exp_f32 {v(R + tau)}, {v(R + tau)}")
        A(f"v_fma_f32 {v(sm)}, 0.5, {v(R + 2)}, {v(R)}")
        A(f"v_mov_b32_dpp {v(R + 3)}, {v(R + 2)} quad_perm:[1,0,3,2] row_mask:0xf bank_mask:0xf")
        A(f"v_add_f32 {v(sm)}, {v(sm)}, {v(R + 1)}")
        for rot in (8, 4, 2, 1):
            A(f"v_add_f32_dpp {v(sm)}, {v(sm)}, {v(sm)} row_ror:{rot} row_mask:0xf bank_mask:0xf")
        A(f"v_rcp_f32 {v(sm)}, {v(sm)}")
        for k, addr in ((0, PX), (2, PM)):
            A(f"v_mul_f32 {v(R + k)}, {v(R + k)}, {v(sm)}\nv_mul_f32 {v(R + k + 1)}, {v(R + k + 1)}, {v(sm)}")
            A(f"v_cvt_pk_bf16_f32 {v(R + k)}, {v(R + k)}, {v(R + k + 1)}\nv_min_u32 {v(R + k)}, -2, {v(R + k)}")
            A(f"buffer_store_dword {v(R + k)}, {v(addr)}, {s(WS, 4)}, {s(sCP)} offen{sc}")
        A(f"{nxt}:")
        stamp(A, opts, 4)
        collect_lds(A, opts, sREG, 22528, T)
        A(f"s_add_u32 {s(sS)}, {s(sS)}, 1\ns_add_u32 {s(sQ)}, {s(sQ)}, {0 if opts.get('solo') else 8192}\ns_add_u32 {s(sCP)}, {s(sCP)}, {0 if opts.get('solo') else 10240}")
        adv = 0 if opts.get("solo") else EF_STEP
        A(f"s_add_u32 {s(sEF)}, {s(sEF)}, {adv}\ns_add_u32 {s(sXA)}, {s(sXA)}, {28 * KB * (16 if opts.get('gemu') else 1)}\ns_add_u32 {s(sXB)}, {s(sXB)}, {28 * KB * (16 if opts.get('gemu') else 1)}\ns_add_u32 {s(sYP)}, {s(sYP)}, {16 * 28 * KB}")
        A("s_barrier")
        if not opts.get("nodma"):
            for k in range(8):
                A(dma(k))
        if opts.get("asl"):
            A(f"s_sleep {opts['asl']}")
        A(f"s_cmp_eq_u32 {s(sS)}, 63\ns_cbranch_scc0 {top}")
        A("s_waitcnt vmcnt(0)")
        A("s_mov_b32 s84, s53" if opts.get("stamps") else "")
        fetch_lds(A, opts, sREG, 22528, 10)
        flush_stamps(A, opts, 10)
        A("s_endpgm")
        A(f"{redo}:\ns_mov_b32 m0, {s(sMB)}\ns_waitcnt lgkmcnt(0)\ns_barrier")
        fetch()
        poll_guard(A)
        for x in fresh:
            A(x)
        A(f"s_branch {lp}")
        A(f"{idle}:\ns_waitcnt lgkmcnt(0)")
        A(f"v_lshrrev_b32 {v(T + 1)}, 4, v3\nv_min_u32 {v(T + 1)}, 13, {v(T + 1)}\nv_lshl_add_u32 {v(T + 1)}, {v(T + 1)}, 9, {s(sNP)}\nv_mov_b32 {v(T)}, {s(S_NONCE)}")
        A("s_nop 3\n" * opts.get("la", 6) if opts.get("lan") else ka(opts.get("la", 6)))
        w3 = A.new("a_w3")
        A(f"s_cmp_eq_u32 {s(S_W)}, 2\ns_cbranch_scc0 {w3}")
        notice(A, T, T + 1, sEF, 0, sc)
        A(f"s_branch {nxt}\n{w3}:")
        A(ka(opts.get("ka_sm", 0)))
        A(f"s_branch {nxt}")

    loop("")
    A(f"{slow}:")
    loop(" sc1")


def gen_chain_b(A, opts):
    MEM, ZACC, ZOP, Y, OACC, IDX = 4, 32, 60, 76, 108, 132
    GA0, GA1, PXA, PMA, RW, RR0, RR1, MO, WR, FA, FV = range(133, 144)
    FM, NZ, NA, FP = 128, 129, 130, 131
    T, WST, V0 = 116, 144, 176
    RED, WL = 8192, 12288
    sS, sCM, sCP, sY, sEF, sC, sFY = 44, 45, 46, 47, 48, 50, 51
    vm = Cnt(A, "vmcnt", 63)
    A(f"s_sub_u32 {s(sC)}, {s(S_ID)}, 16")
    A(f"s_mul_i32 s34, {s(S_W)}, {4 * FRAG_H}\ns_mul_i32 s33, {s(sC)}, {28 * KB}\ns_add_u32 s34, s34, s33\ns_add_u32 s34, s34, {BF}")
    A(f"s_mul_i32 s36, {s(S_W)}, {28 * KB}\ns_add_u32 s36, s36, {WL}\nv_add_u32 {v(WR)}, s36, v3\ns_add_u32 s37, s34, {3 * FRAG_H}")
    A(f"s_mul_i32 s33, {s(S_W)}, 28\ns_lshr_b32 s35, {s(sC)}, 1\ns_add_u32 s33, s33, s35\ns_add_u32 s33, s33, 112\nv_and_b32 v4, 3, v0\nv_mul_u32_u24 v4, 7, v4\nv_add_u32 v4, s33, v4")

    def piece(hh):
        if hh < 3:
            frag_loads(A, 34, [((hh * 28 + k) * 4, hh * FRAG_H + k * KB) for k in range(28)], v0=V0, cap=opts.get('bcap'))
            return
        for q in range(7):
            A("s_mov_b32 m0, s36\ns_add_u32 s36, s36, 4096")
            for k in range(4):
                A(f"buffer_load_dwordx4 v3, {s(WS, 4)}, s37 offen offset:{k * 1024} sc1 lds")
            A("s_add_u32 s37, s37, 4096")

    if opts.get('late'):
        A('v_mov_b32 v20, v4\ns_mov_b32 s60, s34\ns_mov_b32 s61, s36\ns_mov_b32 s62, s37')
        wait_prep(A, True)
        A('v_mov_b32 v4, v20\ns_mov_b32 s34, s60\ns_mov_b32 s36, s61\ns_mov_b32 s37, s62')
        mark(A, opts, 3)
    def touch_y():
        A(f"s_mul_i32 s33, {s(S_W)}, {4 * 28 * KB}\ns_lshl_b32 s35, {s(sC)}, 11\ns_add_u32 s33, s33, s35\ns_add_u32 s33, s33, {YF}")
        A(f"v_mul_u32_u24 v10, {28 * KB}, v2\nv_lshl_add_u32 v10, v1, 7, v10")
        A(f"buffer_load_dword v11, v10, {s(WS, 4)}, s33 offen sc1\ns_add_u32 s33, s33, {16 * 28 * KB}\nbuffer_load_dword v11, v10, {s(WS, 4)}, s33 offen sc1")

    load_pieces(A, [(28, lambda hh=hh: piece(hh)) for hh in range(4)], 4, (2, touch_y) if opts.get("by", 0) else None, True)
    gather_addr(A, GA0, GA1)
    idx_reg(A, IDX)
    A("v_and_b32 v4, 7, v1\nv_lshrrev_b32 v5, 3, v1\nv_lshrrev_b32 v6, 1, v2\nv_and_b32 v7, 1, v2")
    A(f"s_mul_i32 s33, {s(S_W)}, 2560")
    A(f"v_mul_u32_u24 v8, 640, v6\nv_lshl_add_u32 v8, v4, 4, v8\nv_lshl_add_u32 v8, v7, 8, v8\nv_lshl_add_u32 v8, v5, 7, v8\nv_add_u32 {v(PXA)}, s33, v8")
    A(f"v_lshl_add_u32 v8, v6, 1, v5\nv_mul_u32_u24 v8, 640, v8\nv_lshl_add_u32 v8, v4, 4, v8\ns_add_u32 s33, s33, 512\nv_add_u32 {v(PMA)}, s33, v8")
    A(f"v_lshl_add_u32 v8, v6, 1, v7\nv_xor_b32 v8, v0, v8\nv_lshlrev_b32 v8, 4, v8\ns_lshl_b32 s33, {s(S_W)}, 10\ns_add_u32 s33, s33, {RED}\nv_add_u32 {v(RW)}, s33, v8")
    A("v_lshrrev_b32 v4, 5, v0\nv_bfe_u32 v5, v0, 2, 3\nv_and_b32 v6, 3, v0")
    A("v_and_b32 v7, 1, v6\nv_lshrrev_b32 v8, 2, v5")
    A(f"v_lshlrev_b32 v9, 5, v7\nv_lshl_add_u32 v9, v8, 4, v9\ns_and_b32 s33, {s(S_W)}, 1\ns_lshl_b32 s33, s33, 3\nv_add_u32 v9, s33, v9")
    A("v_lshrrev_b32 v10, 1, v6\nv_lshl_add_u32 v9, v10, 2, v9\nv_lshl_add_u32 v9, v4, 1, v9")
    A("v_lshl_add_u32 v10, v7, 1, v8\nv_xor_b32 v9, v9, v10\nv_lshlrev_b32 v9, 4, v9\nv_and_b32 v10, 3, v5\nv_lshl_add_u32 v9, v10, 2, v9")
    A(f"v_add_u32 {v(RR0)}, {RED}, v9\nv_xor_b32 {v(RR1)}, 16, {v(RR0)}")
    A(f"s_lshl_b32 s33, {s(sC)}, 9\ns_and_b32 s35, {s(S_W)}, 1\ns_lshl_b32 s35, s35, 8\ns_add_u32 s33, s33, s35\nv_lshl_add_u32 {v(MO)}, v0, 2, s33")
    A(f"v_lshlrev_b32 {v(FA)}, 7, v1\nv_mov_b32 {v(FV)}, 0")
    A(f"s_mov_b32 {s(sS)}, 0\ns_mov_b32 {s(sCM)}, {CM}\ns_mov_b32 {s(sCP)}, {CP}")
    A(f"s_mul_i32 s33, {s(S_W)}, {4 * 28 * KB}\ns_lshl_b32 s35, {s(sC)}, 11\ns_add_u32 {s(sY)}, s33, s35\ns_add_u32 {s(sY)}, {s(sY)}, {YF}")
    A(f"s_mov_b32 {s(sFY)}, {FY}\ns_mov_b32 {s(sEF)}, {EF}\ns_mov_b32 s53, 0\ns_mov_b32 s55, 0")
    pw = 1
    A(f"v_and_b32 v4, 3, v0\nv_and_b32 v5, 1, v0\nv_add_u32 v5, 16, v5\ns_lshl_b32 s33, {s(sC)}, 9\ns_add_u32 s33, s33, {EF_P}")
    if opts.get("wl", 3) & 2:
        A(f"s_lshl_b32 s35, {s(S_W)}, 7\ns_add_u32 s33, s33, s35")
    else:
        A(f"s_lshl_b32 s35, {s(S_W)}, 2\nv_add_u32 v4, s35, v4")
    A(f"v_cmp_gt_u32 vcc, 32, v0\nv_cndmask_b32 {v(FP)}, v5, v4, vcc\nv_lshl_add_u32 {v(FP)}, {v(FP)}, 2, s33")
    A(f"s_and_b32 s33, {s(sC)}, 3\ns_lshl_b32 s33, s33, 2\ns_add_u32 s33, s33, {s(S_W)}\ns_lshl_b32 s33, s33, 2\ns_lshr_b32 s35, {s(sC)}, 2\ns_lshl_b32 s35, s35, {7 if opts.get('wl', 3) & 1 else 6}\ns_add_u32 s33, s33, s35")
    A(f"s_add_u32 s33, s33, {EF_STEP}\nv_min_u32 {v(NA)}, 15, v0\nv_lshl_add_u32 {v(NA)}, {v(NA)}, 9, s33\nv_mov_b32 {v(NZ)}, {s(S_NONCE)}")
    if opts.get("gemu"):
        A(f"v_lshlrev_b32 v126, 3, v3\ns_lshl_b32 s57, {s(sC)}, 2\ns_add_u32 s57, s57, {s(S_W)}\ns_lshl_b32 s57, s57, 13\ns_add_u32 s57, s57, {(opts['gemu'] << 20) + (opts.get('gah', 2) - 1) * 16 * 28 * KB}")
    slow = A.new("b_slow")
    wait_start(A, opts, slow, (FA, sFY))
    ka = lambda n: "".join(f"{MF} {v(ZACC + 8, 4)}, {v(ZOP, 4)}, {v(ZOP, 4)}, {v(ZACC + 8, 4)}\n" for _ in range(n))

    def loop(sc):
        top, nxt, last, noy, yok, ypoll, noflag, gm, gp, idle, noz = (A.new("b_" + x) for x in ("top", "next", "last", "noy", "yok", "ypoll", "nofl", "gm", "gp", "idle", "noz"))
        if opts.get("al"):
            A(f"s_branch {top}\n.p2align {opts['al']}")
        A(f"{top}:")
        if opts.get("ndb", 1):
            notice_wait(A, dict(opts, nd=opts.get('ndb', 1)), WST + 8, FM, sEF, 0, zero(ZACC, 28) + zero(OACC, 8), sS)
        else:
            for x in zero(ZACC, 28) + zero(OACC, 8):
                A(x)
        fetch_mem(A, dict(opts, stamps=0) if opts.get('nst') else opts, WST, GA0, GA1, sCM, T, 0)
        lg = Cnt(A, "lgkmcnt", 15)
        for kk in range(7):
            lg.op(f"ds_read_b128 {v(MEM + 4 * kk, 4)}, v3 offset:{kk * 1024}", f"m{kk}")
        bulk = []
        for hh in range(4):
            for vv in range(0 if opts.get("noy") else 2):
                pre = f"s_add_u32 s33, {s(sY)}, {hh * 28 * KB}\n" if vv == 0 else ""
                bulk.append(pre + f"buffer_load_dwordx4 {v(Y + 16 * (hh // 2) + 8 * vv + 4 * (hh % 2), 4)}, v3, {s(WS, 4)}, s33 offen offset:{vv * 1024} {'nt' if opts.get('ynt') == 1 else 'sc1 nt' if opts.get('ynt') else 'sc1'}")
        order = []
        regs = [(t, kk) for t in range(6) for kk in range(7)]
        for n in range(14):
            order += regs[3 * n:3 * n + 3] + [(6 + n // 7, n % 7)]
        accof = lambda t: ZACC + 4 * (t if t < 7 else 0)
        stream, pos, seen = [], {}, set()
        for t, kk in order:
            pos[(t, kk)] = len(stream)
            n = (t - 6) * 7 + kk
            w = wreg((t * 7 + kk) * 8, 8, 256, V0) if t < 6 else v(WST + 8 * (n % 4), 8)
            txt = f"{SMF} {v(accof(t), 4)}, {v(MEM + 4 * kk, 4)}, {w}, {v(IDX)}" if not opts.get("nozm") else "s_nop 2"
            tags = ([f"m{kk}"] if kk not in seen else []) + ([f"w{n}"] if t >= 6 else [])
            seen.add(kk)
            stream.append((lambda txt=txt, tags=tags: (lg.wait(*tags), A(txt))) if tags else txt)

        def wread(n):
            return [lambda u=u: lg.op(f"ds_read_b128 {v(WST + 8 * (n % 4) + 4 * u, 4)}, {v(WR)} offset:{(n // 7) * 14 * KB + (2 * (n % 7) + u) * KB}", f"w{n}") for u in range(2)]

        def epi(t):
            hh, vv = t // 2, t % 2
            D = accof(t)
            out = [f"v_cvt_pk_bf16_f32 {v(ZOP + 8 * vv + 4 * (hh // 2) + 2 * b + hh % 2)}, {v(D + 2 * b)}, {v(D + 2 * b + 1)}" for b in range(2)]
            return out + (zero(D, 4) if t == 0 else [])

        y = bulk + ["s_nop 0"] * (8 - len(bulk))
        for x in wread(0) + wread(1):
            x()
        npre = opts.get("ypre", 2)
        for x in y[:npre]:
            A(x)
        fill = {}
        for n in range(2, 14):
            spread(fill, 4 * (n - 2), wread(n), per=1)
        g = 2
        for x in y[npre:]:
            while g in fill:
                g += 1
            fill[g] = [x]
            g += opts.get("ygap", 1)
        if opts.get("gemu"):
            while g in fill:
                g += 1
            fill[g] = [f"s_mov_b32 m0, 7168\ns_add_u32 s57, s57, {16 * 28 * KB}\nbuffer_load_dword v126, {s(WS, 4)}, s57 offen sc1 lds"]
        late = []
        for t in sorted(range(8), key=lambda t: pos[(t, 6)]):
            g = pos[(t, 6)] + 4
            for x in epi(t):
                while g in fill:
                    g += 1
                if g < len(stream):
                    fill[g] = [x]
                    assert t != 0 or g < pos[(7, 0)] - 1
                else:
                    late.append(x)
        emit_stream(A, stream, fill)
        for x in late:
            A(x)
        if not opts.get("nst"):
            stamp(A, opts, 1)

        def p_loads(P):
            A(f"buffer_load_dwordx4 {v(P, 4)}, {v(PXA)}, {s(WS, 4)}, {s(sCP)} offen sc1")
            A(f"buffer_load_dwordx4 {v(P + 4, 4)}, {v(PXA)}, {s(WS, 4)}, {s(sCP)} offen offset:1280 sc1")
            A(f"buffer_load_dwordx4 {v(P + 8, 4)}, {v(PMA)}, {s(WS, 4)}, {s(sCP)} offen sc1")

        cur = MEM
        ok = A.new("b_ok")
        notice_wait(A, dict(opts, nd=opts.get('ndp', opts['nd'])), MEM + 12, FP, sEF, 0, [])
        if opts.get("nst"):
            stamp(A, opts, 1)
        A(f"{gp}:")
        p_loads(cur)
        poll_guard(A)
        A(ka(opts.get("ka_p", 0)))
        if opts.get("stamps"):
            A("s_add_u32 s55, s55, 1")
        mx3 = lambda d, x, y, z: f"v_max3_u32 {v(d)}, {v(x)}, {v(y)}, {v(z)}"
        cmpi = f"v_cmp_eq_u32 vcc, -1, {v(T)}"
        if opts.get("bdef", 1):
            chk = ["s_nop 0"] * 4 + [mx3(T, cur, cur + 4, cur + 8), cmpi]
        else:
            chk = ["s_nop 0", mx3(T, cur, cur + 1, cur + 2), mx3(T, T, cur + 3, cur + 4), mx3(T + 1, cur + 5, cur + 6, cur + 7), mx3(T + 2, cur + 8, cur + 9, cur + 10),
                   mx3(T, T, T + 1, cur + 11) + f"\nv_max_u32 {v(T)}, {v(T)}, {v(T + 2)}\n" + cmpi]
        k = 0
        for kap in range(3):
            A(f"s_waitcnt vmcnt({2 - kap})")
            if kap == 0:
                stamp(A, opts, 2)
            for vv in range(2):
                b = v(Y + 16 * kap + 8 * vv, 8) if kap < 2 else v(ZOP + 8 * vv, 8)
                A(f"{SMF} {v(OACC + 4 * vv, 4)}, {v(cur + 4 * kap, 4)}, {b}, {v(IDX)}")
                if opts.get("lb") == 10 + k:
                    notice(A, NZ, NA, sEF, 0, sc)
                A(chk[k])
                k += 1
        if not opts.get("solo"):
            A(f"s_cbranch_vccnz {ok}")
        lb = opts.get("lb", 2) if pw else -1
        if lb == 0:
            notice(A, NZ, NA, sEF, 0, sc)
        for q in range(4):
            A(f"v_permlane32_swap_b32 {v(OACC + q)}, {v(OACC + 4 + q)}")
        if lb == 1:
            notice(A, NZ, NA, sEF, 0, sc)
        for q in (0, 2):
            A(f"v_pk_add_f32 {v(OACC + q, 2)}, {v(OACC + q, 2)}, {v(OACC + 4 + q, 2)}")
        A(f"ds_write_b128 {v(RW)}, {v(OACC, 4)}")
        if 2 <= lb < 9:
            A(ka(lb - 2))
            notice(A, NZ, NA, sEF, 0, sc)
            if opts.get("nst"):
                stamp(A, opts, 0)
        if opts.get("bdef", 1) and not opts.get("solo"):
            A(mx3(T, cur + 1, cur + 2, cur + 3) + "\n" + mx3(T + 1, cur + 5, cur + 6, cur + 7) + "\n" + mx3(T + 2, cur + 9, cur + 10, cur + 11))
            A(mx3(T, T, T + 1, T + 2) + "\n" + cmpi)
            if lb == 9:
                notice(A, NZ, NA, sEF, 0, sc)
            A(f"s_cbranch_vccnz {ok}")
        A(f"s_add_u32 s33, {s(sCM)}, 8192\ns_cmp_ge_u32 {s(S_W)}, 2\ns_waitcnt lgkmcnt(0)\ns_barrier")
        stamp(A, opts, 3)
        A(f"s_cbranch_scc1 {idle}")
        R = ZACC
        if not pw:
            A(f"s_cmp_eq_u32 {s(S_W)}, 0\ns_cbranch_scc0 {noflag}")
            notice(A, NZ, NA, sEF, 0, sc)
            A(f"{noflag}:")
        A(f"ds_read2st64_b32 {v(R, 2)}, {v(RR0)} offset0:0 offset1:4\nds_read2st64_b32 {v(R + 4, 2)}, {v(RR0)} offset0:8 offset1:12")
        A(f"ds_read2st64_b32 {v(R + 2, 2)}, {v(RR1)} offset0:0 offset1:4\nds_read2st64_b32 {v(R + 6, 2)}, {v(RR1)} offset0:8 offset1:12")
        A("s_waitcnt lgkmcnt(2)")
        A(f"v_pk_add_f32 {v(R, 2)}, {v(R, 2)}, {v(R + 4, 2)}\nv_add_f32 {v(R)}, {v(R)}, {v(R + 1)}")
        A("s_waitcnt lgkmcnt(0)")
        A(f"v_pk_add_f32 {v(R + 2, 2)}, {v(R + 2, 2)}, {v(R + 6, 2)}\nv_add_f32 {v(R + 2)}, {v(R + 2)}, {v(R + 3)}")
        A(f"v_cvt_pk_bf16_f32 {v(R)}, {v(R)}, {v(R + 2)}\nv_min_u32 {v(R)}, -2, {v(R)}")
        A(f"buffer_store_dword {v(R)}, {v(MO)}, {s(WS, 4)}, s33 offen{sc}")
        A(f"{nxt}:")
        stamp(A, opts, 4)
        collect(A, opts, 120)
        A(f"s_add_u32 {s(sS)}, {s(sS)}, 1\ns_add_u32 {s(sCM)}, {s(sCM)}, {0 if opts.get('solo') else 8192}\ns_add_u32 {s(sCP)}, {s(sCP)}, {0 if opts.get('solo') else 10240}")
        A(f"s_add_u32 {s(sY)}, {s(sY)}, {16 * 28 * KB}\ns_add_u32 {s(sEF)}, {s(sEF)}, {0 if opts.get('solo') else EF_STEP}")
        A("s_barrier")
        if opts.get("stamps"):
            m8 = A.new("m8")
            A(f"s_cmp_eq_u32 {s(sS)}, 8\ns_cbranch_scc0 {m8}")
            mark(A, opts, 5)
            A(f"{m8}:")
        A(f"s_cmp_eq_u32 {s(sS)}, 63\ns_cbranch_scc0 {top}")
        if opts.get("fast63", 1):
            A(f"s_cmp_ge_u32 {s(S_W)}, 2\ns_cbranch_scc1 {last}\ns_mov_b32 s33, {XM + 63 * 8192}")
            A(f"buffer_store_dword {v(R)}, {v(MO)}, {s(WS, 4)}, s33 offen sc1\n{last}:")
        A("s_waitcnt vmcnt(0)")
        A("s_mov_b32 s84, s53\ns_mov_b32 s85, s55" if opts.get("stamps") else "")
        dbg_time(A, opts, 6, 16)
        amp_mark(A, opts, 3)
        amp_spin(A, opts, 16, (0, 1, 2, 3))
        flush_stamps(A, opts, 120)
        A("s_endpgm")
        A(f"{ok}:")
        for x in zero(OACC, 8):
            A(x)
        A(f"s_branch {gp}")
        A(f"{idle}:")
        A(ka(opts.get("ka_f", 0)))
        A(f"s_branch {nxt}")

    loop("")
    A(f"{slow}:")
    loop(" sc1")


def gen_chain_f(A, opts):
    G, GA0, GA1, T, WA = 4, 12, 13, 14, 20
    sS, sCM, sXM = 44, 45, 46
    fw = A.new('f_go')
    A(f"v_lshlrev_b32 v21, 7, v1\ns_mov_b32 {s(sXM)}, {FY + opts.get('tfy', 0) * FL_STEP}")
    wait_start(A, {}, fw, (21, sXM) if opts.get('tfy', 0) >= 0 else None, opts.get('hsl', 24))
    A(f'{fw}:')
    gather_addr(A, GA0, GA1)
    A(f"s_mul_i32 s33, {s(S_W)}, {7 * KB}\nv_lshlrev_b32 {v(WA)}, 3, v3\nv_add_u32 {v(WA)}, s33, {v(WA)}")

    def touch_all():
        if not opts.get("nopf"):
            A(f"s_add_u32 s33, {s(sS)}, 2\ns_min_u32 s33, s33, 63\ns_mul_i32 s33, s33, {28 * KB}\ns_add_u32 s33, s33, {XS}")
            A(f"buffer_load_dword v16, {v(WA)}, {s(WS, 4)}, s33 offen sc1")

    for first in (-2, -1, 0):
        A(f"s_mov_b32 {s(sS)}, {first}")
        touch_all()
    A(f"s_mov_b32 {s(sS)}, 1\ns_mov_b32 {s(sCM)}, {CM + 8192}\ns_mov_b32 {s(sXM)}, {XM + 8192}")
    lp = A.new("f_poll")
    A(f"{lp}:")
    mem_loads(A, G, GA0, GA1, sCM)
    poll_guard(A)
    A("s_waitcnt vmcnt(0)")
    check8(A, G, T)
    got = A.new("f_got")
    A(f"s_cbranch_vccz {got}\ns_sleep {opts.get('fsl', 0)}\ns_branch {lp}\n{got}:")
    A(f"buffer_store_dwordx4 {v(G, 4)}, {v(GA0)}, {s(WS, 4)}, {s(sXM)} offen sc1")
    A(f"buffer_store_dwordx4 {v(G + 4, 4)}, {v(GA1)}, {s(WS, 4)}, {s(sXM)} offen sc1")
    touch_all()
    A(f"s_add_u32 {s(sS)}, {s(sS)}, 1\ns_add_u32 {s(sCM)}, {s(sCM)}, 8192\ns_add_u32 {s(sXM)}, {s(sXM)}, 8192")
    A(f"s_cmp_lt_u32 {s(sS)}, {63 if opts.get('fast63', 1) else 64}\ns_cbranch_scc1 {lp}")
    if opts.get("wb"):
        A(f"s_cmp_eq_u32 {s(S_W)}, 0\ns_cbranch_scc0 L_exit\ns_waitcnt vmcnt(0)\nbuffer_wbl2 sc1\ns_waitcnt vmcnt(0)")
    A("s_endpgm")


def gen_chain_g(A, opts):
    sS, sEF, sF = 44, 45, 46
    toucher = A.new("g_touch")
    A(f"s_cmp_eq_u32 {s(S_W)}, 1\ns_cbranch_scc1 {toucher}\ns_cmp_eq_u32 {s(S_W)}, 0\ns_cbranch_scc0 L_exit")
    A(f"s_mov_b32 {s(sS)}, 0\ns_mov_b32 {s(sEF)}, {EF + EF_P + 64}\ns_mov_b32 {s(sF)}, {FY + FL_STEP}")
    A(f"v_lshlrev_b32 v6, 7, v1\nv_min_u32 v7, 55, v0\nv_lshlrev_b32 v7, 7, v7\nv_mov_b32 v14, {s(S_NONCE)}\nv_mov_b32 v15, {s(S_NONCE)}")
    slow = A.new("g_slow")
    chain_mode(A, {}, Cnt(A, "vmcnt", 63), slow)

    def loop(sc):
        top, ok = A.new("g_top"), A.new("g_ok")
        go = A.new("g_go")
        A(f"{top}:\ns_cmp_eq_u32 {s(sS)}, 2\ns_cbranch_scc0 {go}")
        wait_prep(A, False, False)
        A(f"{go}:")
        top2 = A.new("g_poll")
        A(f"{top2}:")
        flag_load(A, 10, 6, s(sF))
        poll_guard(A)
        A("s_waitcnt vmcnt(0)")
        flag_missing(A, [10])
        A(f"s_cbranch_vccz {ok}\ns_sleep 2\ns_branch {top2}\n{ok}:")
        A(f"buffer_store_dwordx2 v[14:15], v7, {s(WS, 4)}, {s(sEF)} offen{sc}")
        A(f"s_add_u32 {s(sS)}, {s(sS)}, 1\ns_add_u32 {s(sEF)}, {s(sEF)}, {EF_STEP}\ns_add_u32 {s(sF)}, {s(sF)}, {FL_STEP}")
        A(f"s_cmp_lt_u32 {s(sS)}, 63\ns_cbranch_scc1 {top}\ns_endpgm")

    loop("")
    A(f"{slow}:")
    loop(" sc1")

    A(f"{toucher}:")
    go = A.new("t_go")
    A(f"v_lshlrev_b32 v20, 7, v1\ns_mov_b32 {s(sF)}, {FY + opts.get('tfy', 0) * FL_STEP}")
    wait_start(A, {}, go, (20, sF) if opts.get('tfy', 0) >= 0 else None, opts.get('hsl', 24))
    A(f"{go}:\nv_lshlrev_b32 v6, 3, v3\nv_mov_b32 v7, 0")
    ahead = opts.get("tah", 3)

    def touch():
        for base, stride, n, last in ((EF, EF_STEP, 2, 63), (CP, 10240, 2, 62), (CM, 8192, 1, 63)):
            A(f"s_add_u32 s33, {s(sS)}, {ahead}\ns_min_u32 s33, s33, {last}\ns_mul_i32 s33, s33, {stride}\ns_add_u32 s33, s33, {base}")
            for q in range(n):
                va = 8 if base == CP and q else 6
                A(f"buffer_load_dword v10, {v(va)}, {s(WS, 4)}, s33 offen sc1\ns_add_u32 s33, s33, 8192")

    A("v_min_u32 v8, 1920, v6")
    for first in range(-ahead, 1):
        A(f"s_mov_b32 {s(sS)}, {first}")
        touch()
    lp, got = A.new("t_poll"), A.new("t_got")
    A(f"s_mov_b32 {s(sS)}, 1\ns_mov_b32 {s(sF)}, {CM + 8192}\n{lp}:")
    A(f"buffer_load_dword v9, v7, {s(WS, 4)}, {s(sF)} offen sc1")
    poll_guard(A)
    A(f"s_waitcnt vmcnt(0)\nv_cmp_eq_u32 vcc, -1, v9\ns_cbranch_vccz {got}\ns_sleep 2\ns_branch {lp}\n{got}:")
    touch()
    A(f"s_add_u32 {s(sS)}, {s(sS)}, 1\ns_add_u32 {s(sF)}, {s(sF)}, 8192\ns_cmp_lt_u32 {s(sS)}, {64 - ahead}\ns_cbranch_scc1 {lp}\ns_endpgm")
```

```python
import math
import struct
from asmlib import Asm, v, a, s
from layout import *
from common import *

MF = "v_mfma_f32_16x16x32_bf16"
D_OVF, D_REG, D_ERR, D_NONCE = 64, 68, 72, 192


def f32(x):
    return hex(struct.unpack("<I", struct.pack("<f", x))[0])


def load_srd(A, dst, name, tmp):
    A(f"s_load_dwordx2 {s(tmp, 2)}, s[0:1], {KARG[name]}")

    def build():
        A(f"s_mov_b32 {s(dst)}, {s(tmp)}")
        A(f"s_and_b32 {s(dst + 1)}, {s(tmp + 1)}, 0xffff")
        A(f"s_mov_b32 {s(dst + 2)}, {SIZE[name]}")
        A(f"s_mov_b32 {s(dst + 3)}, 0x20000")
    return build


def xor_reduce(A, op, x, t):
    for sw in ("v_permlane16_swap_b32", "v_permlane32_swap_b32"):
        A(f"v_mov_b32 {v(t)}, {v(x)}")
        A(f"{sw} {v(x)}, {v(t)}")
        A(f"{op} {v(x)}, {v(x)}, {v(t)}")


def quad_sum(A, x):
    for p in ("[1,0,3,2]", "[2,3,0,1]"):
        A(f"v_add_f32_dpp {v(x)}, {v(x)}, {v(x)} quad_perm:{p} row_mask:0xf bank_mask:0xf")


def chunk_pos(A, dst, tok, g, t):
    A(f"v_lshrrev_b32 {v(t)}, 3, {v(tok)}\nv_lshlrev_b32 {v(t)}, 1, {v(t)}\nv_xor_b32 {v(t)}, {v(t)}, {v(g)}")
    A(f"v_lshl_add_u32 {v(t)}, {v(tok)}, 2, {v(t)}\nv_lshlrev_b32 {v(dst)}, 4, {v(t)}")


def poison_blocks(A, ranges, workers, sidx, val, addr):
    total = sum(n for _, n in ranges)
    for i in range(-(-total // workers)):
        sk = A.new("pz")
        A(f"s_add_u32 s59, {s(sidx)}, {workers * i}\ns_cmp_ge_u32 s59, {total}\ns_cbranch_scc1 {sk}")
        first = 0
        for base, n in ranges:
            if first + n > workers * i and first < workers * (i + 1):
                off = (base - first * 4096) & 0xffffffff
                if first <= workers * i:
                    A(f"s_mov_b32 s73, {off}")
                else:
                    A(f"s_cmp_ge_u32 s59, {first}\ns_cselect_b32 s73, {off}, s73")
            first += n
        A(f"s_lshl_b32 s59, s59, 12\ns_add_u32 s59, s59, s73")
        A(f"buffer_store_dwordx4 {v(val, 4)}, {v(addr)}, {s(WS, 4)}, s59 offen sc1\n{sk}:")


def gen_prep(A, opts, done, rank):
    S_, G_ = 20, 24
    A("s_and_b32 s28, s2, 7\ns_lshr_b32 s29, s2, 3")
    A("s_cmp_eq_u32 s28, 0\ns_cbranch_scc1 L_prep_none")
    A("s_sub_u32 s34, s28, 1\ns_lshl_b32 s28, s34, 5\ns_add_u32 s28, s28, s29")
    A("s_cmp_ge_u32 s29, 28\ns_cbranch_scc1 L_prep_rest")
    A("s_mul_i32 s30, s29, 37\ns_lshr_b32 s30, s30, 8\ns_mul_i32 s31, s30, 7\ns_sub_u32 s31, s29, s31")
    A("s_lshl_b32 s35, s34, 2\ns_add_u32 s30, s30, s35\ns_mul_i32 s35, s30, 37\ns_lshr_b32 s35, s35, 8\ns_mul_i32 s32, s35, 7\ns_sub_u32 s30, s30, s32")
    A("s_lshl_b32 s32, s35, 2\ns_add_u32 s32, s32, s30\ns_mul_i32 s35, s35, 3\ns_add_u32 s35, s35, s30\ns_sub_u32 s35, s35, 4")
    A("s_cmp_lt_u32 s30, 4\ns_cselect_b32 s32, s32, s35\ns_cselect_b32 s33, 1, 0\ns_branch L_prep_task")
    A("L_prep_rest:")
    A("s_sub_u32 s30, s29, 28\ns_lshr_b32 s35, s34, 1\ns_add_u32 s32, s35, 12\ns_and_b32 s33, s34, 1\ns_lshl_b32 s31, s33, 2\ns_add_u32 s31, s31, s30")
    A("s_add_u32 s35, s35, 4\ns_cmp_eq_u32 s31, 7\ns_cselect_b32 s32, 15, s32\ns_cselect_b32 s31, s35, s31\ns_mov_b32 s33, 0")
    A("L_prep_task:")
    A("s_lshl_b32 s16, s33, 4\ns_add_u32 s16, s16, s32\ns_mul_i32 s16, s16, 7\ns_add_u32 s16, s16, s31")
    A("s_cmp_eq_u32 s33, 0")
    A(f"s_cselect_b32 {s(S_)}, s44, s50\ns_cselect_b32 {s(S_ + 1)}, s45, s51\ns_cselect_b32 {s(G_)}, s46, s48\ns_cselect_b32 {s(G_ + 1)}, s47, s49")
    for r in (S_, G_):
        A(f"s_and_b32 {s(r + 1)}, {s(r + 1)}, 0xffff\ns_mov_b32 {s(r + 2)}, {SIZE['wq']}\ns_mov_b32 {s(r + 3)}, 0x20000")
    DA, RA = 208, 216
    A("v_lshrrev_b32 v4, 5, v0\nv_and_b32 v5, 31, v0\ns_lshl_b32 s34, s32, 9\nv_and_b32 v7, 3, v1")
    for j in range(8):
        pm = 8 * (2 * j // 4) + (2 * j) % 4
        A(f"v_add_u32 v6, {2 * j}, v4\nv_xor_b32 v6, v6, v5\nv_lshlrev_b32 v6, 4, v6\nv_lshl_add_u32 v6, v4, 13, v6\ns_add_u32 s35, s34, {pm * 8192}\nv_add_u32 {v(DA + j)}, s35, v6")
    for k in range(4):
        A(f"v_add_u32 v6, {4 * k}, v2\nv_xor_b32 v6, v6, v1\nv_lshlrev_b32 v6, 4, v6\nv_lshl_add_u32 {v(RA + k)}, v1, 9, v6")
    A(f"s_mul_i32 s61, {s(S_W)}, 24576\ns_add_u32 s61, s61, 32768")
    for k in range(4):
        A(f"v_add_u32 {v(RA + 4 + k)}, s61, {v(RA + k)}")
    SS, ACC = 16, 144
    A(f"s_mul_i32 s36, s32, {FRAG_H}\ns_mul_i32 s37, s33, {BF - AF}\ns_add_u32 s36, s36, s37")
    if AF:
        A(f"s_add_u32 s36, s36, {AF}")
    A(f"s_mul_i32 s39, {s(S_W)}, 7\ns_lshl_b32 s58, {s(S_W)}, 13")

    def tile_ids(typ):
        if typ == 0:
            for j in range(7):
                A(f"s_add_u32 s56, s31, {j}\ns_sub_u32 s57, s56, 7\ns_cmp_ge_u32 s56, 7\ns_cselect_b32 s56, s57, s56\ns_add_u32 {s(64 + j)}, s56, s39")
            return
        A(f"s_mul_i32 s59, {s(S_W)}, 3\ns_min_u32 s60, {s(S_W)}, 2\ns_add_u32 s59, s59, s60")
        A(f"s_cmp_lt_u32 {s(S_W)}, 2\ns_cselect_b32 s73, 4, 3")
        A("s_sub_u32 s56, s31, s73\ns_cmp_ge_u32 s31, s73\ns_cselect_b32 s60, s56, s31\ns_sub_u32 s56, s60, s73\ns_cmp_ge_u32 s60, s73\ns_cselect_b32 s60, s56, s60")
        for jp in range(4):
            A(f"s_add_u32 s56, s60, {jp}\ns_sub_u32 s57, s56, s73\ns_cmp_ge_u32 s56, s73\ns_cselect_b32 s56, s57, s56\ns_add_u32 s56, s56, s59")
            A(f"s_lshl_b32 {s(64 + 2 * jp)}, s56, 1\ns_add_u32 {s(65 + 2 * jp)}, {s(64 + 2 * jp)}, 1")

    def tile_dma(vm, srd, tag, k, sbase):
        A(f"s_add_u32 s62, {s(sbase)}, {k * 1024}\ns_mov_b32 m0, s62\ns_nop 0")
        nt = " nt" if opts.get("pnt", 0) & (1 if tag == "s" else 2) else ""
        vm.op(f"buffer_load_dwordx4 {v(DA + k)}, {s(srd, 4)}, s56 offen{nt} lds", tag)

    def load_G(vm, j):
        out = []
        for k in range(8):
            def one(k=k):
                if k == 0:
                    A(f"s_lshr_b32 s57, {s(64 + j)}, 1\ns_lshl_b32 s57, s57, 18\ns_and_b32 s56, {s(64 + j)}, 1\ns_lshl_b32 s56, s56, 15\ns_add_u32 s56, s56, s57")
                    A(f"s_add_u32 s63, s61, {(j % 3) * 8192}")
                tile_dma(vm, G_, f"g{j}", k, 63)
            out.append(one)
        return out

    def body(typ):
        vm = Cnt(A, "vmcnt", 63)
        mark(A, opts, 5)
        tile_ids(typ)
        NT = 7 + typ
        if typ == 0:
            A(f"s_lshr_b32 s56, {s(S_W)}, 1\ns_lshl_b32 s56, s56, 18\ns_and_b32 s57, {s(S_W)}, 1\ns_lshl_b32 s57, s57, 15\ns_add_u32 s56, s56, s57\ns_lshl_b32 s57, s31, 19\ns_add_u32 s56, s56, s57")
            for k in range(8):
                tile_dma(vm, S_, "s", k, 58)
        else:
            A("v_lshrrev_b32 v6, 2, v0\nv_mul_u32_u24 v6, 896, v6\nv_lshl_add_u32 v6, v7, 4, v6")
            A("v_lshrrev_b32 v8, 2, v1\nv_lshlrev_b32 v8, 6, v8\nv_lshl_add_u32 v8, v7, 4, v8\nv_lshl_add_u32 v8, v2, 9, v8")
            A(f"s_mul_i32 s56, s32, 229376\ns_lshl_b32 s57, s31, 7\ns_add_u32 s56, s56, s57\ns_lshr_b32 s57, {s(S_W)}, 1\ns_lshl_b32 s57, s57, 6\ns_add_u32 s56, s56, s57")
            A(f"s_and_b32 s57, {s(S_W)}, 1\ns_mul_i32 s57, s57, {128 * 896}\ns_add_u32 s56, s56, s57\ns_mov_b32 s57, s58")
            for j in range(8):
                A("s_mov_b32 m0, s57\ns_add_u32 s57, s57, 1024")
                vm.op(f"buffer_load_dwordx4 v6, {s(S_, 4)}, s56 offen{' nt' if opts.get('pnt', 0) & 1 else ''} lds", "s")
                A(f"s_add_u32 s56, s56, {16 * 896}")
        first = opts.get("gfirst", 1)
        for j in range(first):
            for x in load_G(vm, j):
                x()
        if not opts.get("laterank"):
            rank()
        vm.wait("s")
        mark(A, opts, 2)
        A("s_barrier")
        lg = Cnt(A, "lgkmcnt", 15)
        for es in range(8):
            for t in range(4):
                if typ == 0:
                    lg.room(1)
                    lg.op(f"ds_read_b128 {v(SS + (t * 8 + es) * 4, 4)}, {v(RA + es % 4)} offset:{t * 8192 + (es // 4) * 256}")
                else:
                    for x in range(2):
                        lg.room(1)
                        lg.op(f"ds_read_b64_tr_b16 {v(SS + (t * 8 + es) * 4 + 2 * x, 2)}, v8 offset:{(t // 2) * 16384 + es * 2048 + x * 256 + (t % 2) * 8}")
        if typ == 0:
            A(f"s_mov_b32 s38, {f32(math.log2(math.e) / 16.0)}\ns_lshl_b32 s57, s31, 11\ns_add_u32 s36, s36, s57")
        else:
            A(f"s_mul_i32 s57, s31, {4 * 14 * KB}\ns_add_u32 s36, s36, s57")
        lg.drain()

        def epilogue(j):
            accb = ACC + (j % 2) * 16
            out = []
            if typ == 0:
                out += [f"v_pk_mul_f32 {v(accb + r, 2)}, {v(accb + r, 2)}, v[12:13]" for r in range(0, 16, 2)]
                out += [f"v_cvt_pk_bf16_f32 {pk(j, r)}, {v(accb + 2 * r)}, {v(accb + 2 * r + 1)}" for r in range(8)]
            else:
                out += [f"v_cvt_pk_bf16_f32 {pk(j // 2 * 2 + r // 4, 4 * (r // 2 % 2) + 2 * (j % 2) + r % 2)}, {v(accb + 2 * r)}, {v(accb + 2 * r + 1)}" for r in range(8)]
            return out

        def pk(j, r, n=1):
            return v((176 + 8 * j if j < 4 else 224 + 8 * (j - 4) if j < 7 else 4) + r, n)

        def stores(j):
            if typ == 0:
                A(f"s_mul_i32 s59, {s(64 + j)}, {14 * KB}\ns_add_u32 s59, s59, s36")
                for k in range(2):
                    A(f"buffer_store_dwordx4 {pk(j, 4 * k, 4)}, v3, {s(WS, 4)}, s59 offen offset:{k * 1024} sc1{' nt' if opts.get('snt') else ''}")
            elif j % 2:
                A(f"s_lshl_b32 s59, {s(63 + j)}, 9\ns_add_u32 s59, s59, s36")
                for t in range(4):
                    A(f"buffer_store_dwordx4 {pk(j - 1 + t // 2, 4 * (t % 2), 4)}, v3, {s(WS, 4)}, s59 offen sc1{' nt' if opts.get('snt') else ''}\ns_add_u32 s59, s59, {14 * KB}")

        if typ == 0:
            A("v_mov_b32 v12, s38\nv_mov_b32 v13, s38")
        def poison():
            A(f"s_lshl_b32 s59, {s(S_W)}, 10\nv_add_u32 v9, s59, v3")
            for r in range(4):
                A(f"v_mov_b32 {v(248 + r)}, -1")
            poison_blocks(A, [(P1_BASE, P1_BLOCKS), (P2_BASE, P2_BLOCKS)], 224, 28, 248, 9)

        def g_reads(j):
            return [lambda es=es: lg.op(f"ds_read_b128 {a((j % 2) * 32 + es * 4, 4)}, {v(RA + 4 + es % 4)} offset:{(j % 3) * 8192 + (es // 4) * 256}", f"r{j}") for es in range(8)]

        vm.wait("g0")
        mark(A, opts, 3)
        for x in g_reads(0):
            x()
        for j in range(first, 2):
            for x in load_G(vm, j):
                x()
        pend = []
        short = A.new("short")
        sfirst = opts.get("sfirst", 4)
        for j in range(NT):
            accb = ACC + (j % 2) * 16
            fill = {}
            if typ == 1 and j == 6:
                A(f"s_cmp_ge_u32 {s(S_W)}, 2\ns_cbranch_scc1 {short}")
                pend6 = list(pend)
            if j + 2 < NT:
                for k, x in enumerate(load_G(vm, j + 2)):
                    fill[3 * k] = [x]
            if j < NT - 1:
                r = g_reads(j + 1)
                fill[23] = [lambda: vm.wait(f"g{j + 1}"), r[0]]
                for k in range(1, 8):
                    fill[23 + k] = [r[k]]
            g = 4
            for x in pend:
                while g in fill and g < 23:
                    g += 1
                fill.setdefault(g, []).insert(0, x)
                g += 1
            if j == sfirst:
                fill.setdefault(2, []).append(poison)
                for k in range(j - 1):
                    fill.setdefault(6 + 6 * k, []).append(lambda k=k: (stores(k), vm.q.extend(["o"] * (2 if typ == 0 else 4 * (k % 2)))))
            if j >= sfirst:
                fill.setdefault(31, []).append(lambda j=j: (stores(j - 1), vm.q.extend(["o"] * (2 if typ == 0 else 4 * ((j - 1) % 2)))))
            lg.wait(f"r{j}")
            if opts.get("tilem") and j in (1, 3, 5):
                mark(A, opts, {1: 2, 3: 5, 5: 4}[j])
            elif j == 5:
                mark(A, opts, 4)
            k = 0
            for es in range(8):
                for t in range(4):
                    c = "0" if es == 0 else v(accb + t * 4, 4)
                    sop, gop = v(SS + (t * 8 + es) * 4, 4), a((j % 2) * 32 + es * 4, 4)
                    A(f"{MF} {v(accb + t * 4, 4)}, {sop if typ == 0 else gop}, {gop if typ == 0 else sop}, {c}")
                    for x in fill.get(k, []):
                        x() if callable(x) else A(x)
                    k += 1
            pend = epilogue(j)
        for x in pend:
            x() if callable(x) else A(x)
        stores(NT - 1)
        if typ == 1:
            A(f"s_branch {done}\n{short}:")
            for x in pend6:
                A(x)
            stores(5)
        dbg_time(A, opts, 1 + typ, 1 + 56 * typ, 2)
        A(f"s_branch {done}")

    A("s_cmp_eq_u32 s33, 0\ns_cbranch_scc0 L_prep_b")
    body(0)
    A("L_prep_b:")
    body(1)

    A("L_prep_none:\ns_mov_b32 s16, -1")
    rank()


def gen_ln(A, opts):
    X_, M0_ = 20, 24
    A(f"s_load_dwordx4 s[52:55], s[0:1], {KARG['x']}\ns_waitcnt lgkmcnt(0)")
    for dst, src, name in ((X_, 52, "x"), (M0_, 54, "mem0")):
        A(f"s_mov_b32 {s(dst)}, {s(src)}\ns_and_b32 {s(dst + 1)}, {s(src + 1)}, 0xffff\ns_mov_b32 {s(dst + 2)}, {SIZE[name]}\ns_mov_b32 {s(dst + 3)}, 0x20000")
    A(f"s_lshl_b32 s37, s36, 2\ns_add_u32 s37, s37, {s(S_W)}")
    A("v_lshrrev_b32 v61, 2, v0\nv_and_b32 v62, 3, v0\nv_mul_u32_u24 v63, 896, v61\nv_lshl_add_u32 v63, v62, 4, v63")
    A(f"s_mul_i32 s28, s37, {16 * 896}")
    RAW, F = 4, 64
    for ks in range(14):
        A(f"buffer_load_dwordx4 {v(RAW + ks * 4, 4)}, v63, {s(X_, 4)}, s28 offen offset:{ks * 64}{' nt' if opts.get('pnt', 0) & 1 else ''}")
    A("s_cmp_eq_u32 s36, 1\ns_cbranch_scc1 L_prep_mem\ns_waitcnt vmcnt(0)\ns_branch L_prep_nomem\nL_prep_mem:")
    A("v_and_b32 v214, 7, v1\nv_mul_u32_u24 v214, 896, v214\nv_lshrrev_b32 v215, 3, v1\nv_lshl_add_u32 v214, v215, 2, v214\nv_lshl_add_u32 v214, v2, 5, v214")
    for rep in range(2):
        A(f"s_add_u32 s31, {s(S_W)}, {4 * rep}\ns_min_u32 s31, s31, 6\ns_lshl_b32 s32, s31, 7\ns_lshl_b32 {s(33 + rep)}, s31, 10")
        for j in range(4):
            A(f"buffer_load_dword {v(188 + 4 * rep + j)}, v214, {s(M0_, 4)}, s32 offen offset:{j * 8}")
    A("s_waitcnt vmcnt(0)")
    for rep in range(2):
        for j in range(4):
            A(f"v_min_u32 {v(188 + 4 * rep + j)}, -2, {v(188 + 4 * rep + j)}")
        for base in (CM, XM):
            A(f"s_add_u32 s35, {s(33 + rep)}, {base}\nbuffer_store_dwordx4 {v(188 + 4 * rep, 4)}, v3, {s(WS, 4)}, s35 offen sc1{' nt' if opts.get('snt') else ''}")
    A("L_prep_nomem:")
    A("s_waitcnt vmcnt(4)")
    A("s_mov_b32 s29, 0xffff0000")
    for r in range(56):
        A(f"v_lshlrev_b32 {v(F + 2 * r)}, 16, {v(RAW + r)}")
        A(f"v_and_b32 {v(F + 2 * r + 1)}, s29, {v(RAW + r)}")
    S0 = 192
    pk = lambda op, d, x, y: A(f"{op} {v(d, 2)}, {v(x, 2)}, {v(y, 2)}")
    pk("v_pk_add_f32", S0, F, F + 2)
    pk("v_pk_add_f32", S0 + 2, F + 4, F + 6)
    for r in range(8, 112, 2):
        pk("v_pk_add_f32", S0 + r % 4, S0 + r % 4, F + r)
    pk("v_pk_add_f32", S0, S0, S0 + 2)
    A(f"v_add_f32 {v(S0)}, {v(S0)}, {v(S0 + 1)}")
    quad_sum(A, S0)
    A(f"v_mul_f32 {v(S0)}, {f32(-1.0 / 448)}, {v(S0)}\nv_mov_b32 {v(S0 + 1)}, {v(S0)}")
    for r in range(0, 112, 2):
        pk("v_pk_add_f32", F + r, F + r, S0)
    pk("v_pk_mul_f32", S0 + 4, F, F)
    pk("v_pk_mul_f32", S0 + 6, F + 2, F + 2)
    for r in range(4, 112, 2):
        A(f"v_pk_fma_f32 {v(S0 + 4 + r % 4, 2)}, {v(F + r, 2)}, {v(F + r, 2)}, {v(S0 + 4 + r % 4, 2)}")
    pk("v_pk_add_f32", S0 + 4, S0 + 4, S0 + 6)
    A(f"v_add_f32 {v(S0 + 4)}, {v(S0 + 4)}, {v(S0 + 5)}")
    quad_sum(A, S0 + 4)
    A(f"v_mov_b32 {v(S0 + 6)}, {f32(1e-5)}")
    A(f"v_fmac_f32 {v(S0 + 6)}, {f32(1.0 / 448)}, {v(S0 + 4)}")
    A(f"v_rsq_f32 {v(S0 + 6)}, {v(S0 + 6)}\nv_mov_b32 {v(S0 + 7)}, {v(S0 + 6)}")
    A(f"s_mul_i32 s28, s37, {14 * KB}\ns_add_u32 s28, s28, {XF}")
    chunk_pos(A, 208, 61, 62, 63)
    A(f"v_and_b32 v63, 1, v62\nv_cmp_eq_u32 s[56:57], 1, v63\ns_add_u32 s30, s28, {XS - XF}")
    for ks in range(14):
        for r in range(0, 8, 2):
            pk("v_pk_mul_f32", F + ks * 8 + r, F + ks * 8 + r, S0 + 6)
        for r in range(4):
            A(f"v_cvt_pk_bf16_f32 {v(RAW + ks * 4 + r)}, {v(F + ks * 8 + 2 * r)}, {v(F + ks * 8 + 2 * r + 1)}")
        A(f"buffer_store_dwordx4 {v(RAW + ks * 4, 4)}, v208, {s(WS, 4)}, s28 offen offset:{(ks % 4) * 1024} sc1{' nt' if opts.get('snt') else ''}")
        Q, D = 200 + 4 * (ks % 2), RAW + ks * 4
        A(f"v_cndmask_b32 v210, {v(D + 1)}, {v(D)}, s[56:57]\nv_cndmask_b32 v211, {v(D + 3)}, {v(D + 2)}, s[56:57]")
        for r in range(2):
            A(f"v_mov_b32_dpp {v(212 + r)}, {v(210 + r)} quad_perm:[1,0,3,2] row_mask:0xf bank_mask:0xf")
        for r, (ev, od) in enumerate(((D, 212), (D + 2, 213), (212, D + 1), (213, D + 3))):
            A(f"v_cndmask_b32 {v(Q + r)}, {v(ev)}, {v(od)}, s[56:57]")
        A(f"buffer_store_dwordx4 {v(Q, 4)}, v208, {s(WS, 4)}, s30 offen offset:{(ks % 4) * 1024} sc1{' nt' if opts.get('snt') else ''}")
        if ks % 4 == 3:
            A("s_add_u32 s28, s28, 4096\ns_add_u32 s30, s30, 4096\ns_waitcnt vmcnt(40)")
    A(f"s_cmp_lt_u32 s36, 2\ns_cbranch_scc1 L_ln_nopz\ns_sub_u32 s38, s36, 2\ns_lshl_b32 s59, {s(S_W)}, 10\nv_add_u32 v60, s59, v3\ns_waitcnt vmcnt(24)")
    for r in range(4):
        A(f"v_mov_b32 {v(216 + r)}, -1")
    poison_blocks(A, P_LAST, 30, 38, 216, 60)
    A("L_ln_nopz:")
    A(f"s_add_u32 s16, s36, 224\ns_lshl_b32 s16, s16, 7\ns_add_u32 s16, s16, {DONE}\nv_mov_b32 v4, {s(S_NONCE)}\nv_lshrrev_b32 v5, 2, v3\nv_and_b32 v5, 124, v5")
    A(f"s_cmp_eq_u32 {s(S_W)}, 0\ns_waitcnt vmcnt(0)\ns_barrier\ns_cbranch_scc0 L_ln_noflag")
    A(f"buffer_store_dword v4, v5, {s(WS, 4)}, s16 offen sc1\nL_ln_noflag:")
    dbg_time(A, opts, 3, 160)
```

```python
from asmlib import v, a, s
from layout import *
from common import *
from gen_prep import f32, load_srd, xor_reduce, chunk_pos
import math

MF = "v_mfma_f32_16x16x32_bf16"
SLEEP = 2
Y_TEAMS, X1_TEAMS, X2_TEAMS, F_TEAMS = 3, 3, 2, 2


def tmark(A, opts, k):
    if opts.get("tailm"):
        mark(A, opts, k)


def set_flag(A, soff, t):
    A(f"v_mov_b32 {v(t)}, {s(S_NONCE)}\nv_lshrrev_b32 {v(t + 1)}, 2, v3\nv_and_b32 {v(t + 1)}, 124, {v(t + 1)}")
    A(f"buffer_store_dword {v(t)}, {v(t + 1)}, {s(WS, 4)}, {s(soff)} offen sc1")


def paired_addr(A, d0, d1):
    for vv, d in enumerate((d0, d1)):
        A(f"v_lshrrev_b32 v4, 1, v1\nv_add_u32 v4, {8 * vv}, v4")
        chunk_pos(A, d, 4, 2, 5)
        A(f"v_and_b32 v4, 1, v1\nv_mul_u32_u24 v4, {14 * KB}, v4\nv_add_u32 {v(d)}, {v(d)}, v4")


def drain_unless_last(A, opts, sstep):
    if not opts.get("fast63", 1):
        A("s_waitcnt vmcnt(0)")
        return
    sk = A.new("nd")
    A(f"s_cmp_ge_u32 {s(sstep)}, {opts.get('f0', FAST0)}\ns_cbranch_scc1 {sk}\ns_waitcnt vmcnt(0)\n{sk}:")


def clean(A, regs):
    for r in regs:
        A(f"v_min_u32 {v(r)}, -2, {v(r)}")


def verify_last(A, opts, sstep, regs, t, retry, younger=0):
    if not opts.get("fast63", 1):
        return
    sk = A.new("vl")
    A(f"s_cmp_ge_u32 {s(sstep)}, {opts.get('f0', FAST0)}\ns_cbranch_scc0 {sk}")
    poll_guard(A)
    A(f"s_waitcnt vmcnt({younger})")
    sentinel_check(A, regs, t, retry)
    A(f"{sk}:")


def seg_dma(A, sx, sm0, cnt=None):
    for q, n in ((0, 4), (1, 3)):
        A(f"s_add_u32 s33, {s(sm0)}, {q * 4096}\ns_mov_b32 m0, s33\ns_add_u32 s34, {s(sx)}, {q * 4096}")
        for k in range(n):
            t = f"buffer_load_dwordx4 v3, {s(WS, 4)}, s34 offen offset:{k * 1024} sc1 lds"
            cnt.op(t, "x") if cnt else A(t)


def gen_y(A, opts):
    ACC, XOP, PK, XR, T = 4, 32, 48, 76, 78
    sS, sX, sM0, sY, sF = 44, 45, 46, 47, 48
    vm = Cnt(A, "vmcnt", 63)
    A(f"s_mov_b32 {s(sS)}, s31\ns_mul_i32 {s(sM0)}, {s(S_W)}, {7 * KB}")
    A(f"s_mul_i32 {s(sX)}, s31, {28 * KB}\ns_add_u32 {s(sX)}, {s(sX)}, {s(sM0)}\ns_add_u32 {s(sX)}, {s(sX)}, {XF}")
    A(f"s_mul_i32 s35, s30, {FRAG_H}\ns_mul_i32 s36, {s(S_W)}, {7 * 14 * KB}\ns_add_u32 s35, s35, s36\ns_add_u32 s35, s35, {BF}")
    A(f"s_mul_i32 s33, {s(S_W)}, 7\nv_min_u32 v4, 6, v0\nv_add_u32 v4, s33, v4\nv_lshrrev_b32 v4, 2, v4\ns_mul_i32 s33, s30, 7\ns_add_u32 s33, s33, 112\nv_add_u32 v4, s33, v4")
    load_pieces(A, [(14, lambda i=i: frag_loads(A, 35, [((i * 14 + ks) * 4, (i * 14 + ks) * KB) for ks in range(14)])) for i in range(7)], 4, (7, lambda: seg_dma(A, sX, sM0)))
    A(f"s_lshl_b32 s33, s31, 4\ns_add_u32 s33, s33, s30\ns_mul_i32 {s(sY)}, s33, {28 * KB}\ns_add_u32 {s(sY)}, {s(sY)}, {YF}")
    A(f"s_mul_i32 s33, {s(S_W)}, {7 * KB}\ns_add_u32 {s(sY)}, {s(sY)}, s33")
    A(f"s_mul_i32 {s(sF)}, s31, {FL_STEP}\ns_lshl_b32 s33, s30, 7\ns_add_u32 {s(sF)}, {s(sF)}, s33\ns_add_u32 {s(sF)}, {s(sF)}, {FY}")
    paired_addr(A, XR, XR + 1)
    top, nodma, noflag, done = (A.new(x) for x in ("y_top", "y_nodma", "y_nofl", "y_done"))
    A("s_waitcnt vmcnt(0)\ns_barrier")
    mark(A, opts, 1)
    A(f"{top}:")
    A(f"s_add_u32 s33, {s(sS)}, {Y_TEAMS}\ns_cmp_ge_u32 s33, 64\ns_cbranch_scc1 {nodma}\ns_cmp_lt_u32 {s(sS)}, {Y_TEAMS}\ns_cbranch_scc1 {nodma}")
    A(f"s_add_u32 {s(sX)}, {s(sX)}, {Y_TEAMS * 28 * KB}\ns_xor_b32 {s(sM0)}, {s(sM0)}, 0x8000")
    seg_dma(A, sX, sM0)
    A(f"{nodma}:")
    if opts.get("ypace"):
        lp, go = A.new("y_pace"), A.new("y_go")
        A(f"s_sub_u32 s33, {s(sS)}, {opts['ypace']}\ns_cbranch_scc1 {go}\ns_lshl_b32 s33, s33, 13\ns_add_u32 s33, s33, {XM}\nv_mov_b32 {v(T + 1)}, 0")
        A(f"{lp}:\nbuffer_load_dword {v(T)}, {v(T + 1)}, {s(WS, 4)}, s33 offen sc1")
        poll_guard(A)
        A(f"s_waitcnt vmcnt(0)\nv_cmp_eq_u32 vcc, -1, {v(T)}\ns_cbranch_vccz {go}\ns_sleep 8\ns_branch {lp}\n{go}:")
    lg = Cnt(A, "lgkmcnt", 15)
    rd = lambda n: lg.op(f"ds_read_b128 {v(XOP + 4 * (n % 4), 4)}, {v(XR + n // 14)} offset:{(n % 14) * KB}", f"x{n}")
    for n in range(3):
        rd(n)
    for tt in range(2):
        for ks in range(14):
            n = tt * 14 + ks
            if n + 3 < 28:
                rd(n + 3)
            lg.wait(f"x{n}")
            for i in range(7):
                c = "0" if ks == 0 else v(ACC + 4 * i, 4)
                A(f"{MF} {v(ACC + 4 * i, 4)}, {v(XOP + 4 * (n % 4), 4)}, {wreg((i * 14 + ks) * 4, 4)}, {c}")
        for i in range(7):
            for b in range(2):
                A(f"v_cvt_pk_bf16_f32 {v(PK + 4 * i + 2 * tt + b)}, {v(ACC + 4 * i + 2 * b)}, {v(ACC + 4 * i + 2 * b + 1)}")
    A(f"s_add_u32 s33, {s(sY)}, 4096")
    for i in range(7):
        A(f"buffer_store_dwordx4 {v(PK + 4 * i, 4)}, v3, {s(WS, 4)}, {s(sY) if i < 4 else 's33'} offen offset:{(i % 4) * 1024} sc1")
    A(f"v_xor_b32 {v(XR)}, 0x8000, {v(XR)}\nv_xor_b32 {v(XR + 1)}, 0x8000, {v(XR + 1)}")
    A("s_waitcnt vmcnt(0)\ns_barrier")
    A(f"s_cmp_eq_u32 {s(S_W)}, 0\ns_cbranch_scc0 {noflag}")
    set_flag(A, sF, T)
    A(f"{noflag}:")
    later = A.new("y_later")
    A(f"s_cmp_lt_u32 {s(sS)}, {Y_TEAMS}\ns_cbranch_scc0 {later}")
    wait_prep(A, False)
    A(f"s_add_u32 {s(sX)}, {s(sX)}, {Y_TEAMS * 28 * KB}\ns_xor_b32 {s(sM0)}, {s(sM0)}, 0x8000")
    seg_dma(A, sX, sM0)
    A(f"s_waitcnt vmcnt(0)\ns_barrier\n{later}:")
    A(f"s_add_u32 {s(sS)}, {s(sS)}, {Y_TEAMS}\ns_cmp_ge_u32 {s(sS)}, 64\ns_cbranch_scc1 {done}")
    A(f"s_add_u32 {s(sY)}, {s(sY)}, {Y_TEAMS * 16 * 28 * KB}\ns_add_u32 {s(sF)}, {s(sF)}, {Y_TEAMS * FL_STEP}\ns_branch {top}")
    A(f"{done}:")
    if opts.get("ypace"):
        flush_stamps(A, opts)
        A("s_endpgm")
        return
    wait_prep(A, True)
    A(f"s_add_u32 s31, s31, {Z_SPLIT}")
    z_loop(A, opts, "s31", Y_TEAMS, 64, False)


Z_SPLIT = 33


def z_loop(A, opts, first, step, end, lagged):
    from gen_chain import SMF, gather_addr, fetch_mem, idx_reg, zero
    MEM, ACC, G0, PK, IDX, GA0, GA1, ZA, T = 4, 32, 60, 76, 90, 91, 92, 93, 94
    sS, sXM, sZ, sF = 44, 45, 46, 47
    gather_addr(A, GA0, GA1)
    idx_reg(A, IDX)
    A(f"v_lshlrev_b32 {v(ZA)}, 3, v0\ns_mov_b32 {s(sS)}, {first}")
    A(f"s_lshl_b32 {s(sXM)}, {s(sS)}, 13\ns_add_u32 {s(sXM)}, {s(sXM)}, {XM}")
    A(f"s_lshl_b32 s33, {s(sS)}, 4\ns_add_u32 s33, s33, s30\ns_mul_i32 {s(sZ)}, s33, 14336\ns_mul_i32 s33, {s(S_W)}, 3584\ns_add_u32 {s(sZ)}, {s(sZ)}, s33\ns_add_u32 {s(sZ)}, {s(sZ)}, {ZF}")
    A(f"s_mul_i32 {s(sF)}, {s(sS)}, {FL_STEP}\ns_lshl_b32 s33, s30, 7\ns_add_u32 {s(sF)}, {s(sF)}, s33\ns_add_u32 {s(sF)}, {s(sF)}, {FZ - (FL_STEP if lagged else 0)}")
    top, noflag = A.new("z_top"), A.new("z_nofl")
    A(f"{top}:")
    for x in zero(ACC, 28):
        A(x)
    fetch_mem(A, {}, G0, GA0, GA1, sXM, T, 0)
    tmark(A, opts, 2)
    lg = Cnt(A, "lgkmcnt", 15)
    for kk in range(7):
        lg.op(f"ds_read_b128 {v(MEM + 4 * kk, 4)}, v3 offset:{kk * 1024}", f"m{kk}")
    if lagged:
        A(f"s_cmp_eq_u32 {s(S_W)}, 0\ns_cbranch_scc0 {noflag}\ns_cmp_eq_u32 {s(sS)}, 0\ns_cbranch_scc1 {noflag}")
        set_flag(A, sF, T)
        A(f"{noflag}:")
    for i in range(7):
        for kk in range(7):
            if i == 0:
                lg.wait(f"m{kk}")
            A(f"{SMF} {v(ACC + 4 * i, 4)}, {v(MEM + 4 * kk, 4)}, {wreg((i * 7 + kk) * 8, 8)}, {v(IDX)}")
    if lagged:
        A("s_barrier")
    for i in range(7):
        for b in range(2):
            A(f"v_cvt_pk_bf16_f32 {v(PK + 2 * i + b)}, {v(ACC + 4 * i + 2 * b)}, {v(ACC + 4 * i + 2 * b + 1)}")
        if not lagged:
            clean(A, (PK + 2 * i, PK + 2 * i + 1))
        A(f"buffer_store_dwordx2 {v(PK + 2 * i, 2)}, {v(ZA)}, {s(WS, 4)}, {s(sZ)} offen offset:{i * 512} sc1")
    if not lagged:
        tmark(A, opts, 3)
        drain_unless_last(A, opts, sS)
        A(f"s_cmp_eq_u32 {s(S_W)}, 0\ns_barrier\ns_cbranch_scc0 {noflag}")
        tmark(A, opts, 4)
        set_flag(A, sF, T)
        A(f"{noflag}:")
    A(f"s_add_u32 {s(sS)}, {s(sS)}, {step}\ns_add_u32 {s(sXM)}, {s(sXM)}, {step * 8192}\ns_add_u32 {s(sZ)}, {s(sZ)}, {step * 16 * 14336}\ns_add_u32 {s(sF)}, {s(sF)}, {step * FL_STEP}")
    A(f"s_cmp_lt_u32 {s(sS)}, {end}\ns_cbranch_scc1 {top}")
    if lagged:
        A("s_waitcnt vmcnt(0)\ns_barrier")
        set_flag(A, sF, T)
        A("s_mov_b32 s31, 63\ns_cmp_lt_u32 s30, 14\ns_cbranch_scc1 L_x2")
    flush_stamps(A, opts)
    A("s_endpgm")


def gen_z(A, opts):
    after_first_y(A, opts)
    wait_prep(A, True)
    vm = Cnt(A, "vmcnt", 63)
    A(f"s_mul_i32 s35, s30, {FRAG_H}\ns_mul_i32 s36, {s(S_W)}, {7 * 14 * KB}\ns_add_u32 s35, s35, s36\ns_add_u32 s35, s35, {BF}")
    load_weights(A, vm, 3, [(lambda i=i: A(f"s_add_u32 s37, s35, {i * 14 * KB}")) for i in range(7)], 37)
    mark(A, opts, 1)
    z_loop(A, opts, 0, 1, 64 if opts.get('ypace') else Z_SPLIT, True)


def wait_flags(A, fv, fa, soff, off=0, sleep=None):
    sleep = SLEEP if sleep is None else sleep
    lp, ok = A.new("wf"), A.new("wfok")
    A(f"{lp}:")
    flag_load(A, fv, fa, s(soff))
    poll_guard(A)
    A("s_waitcnt vmcnt(0)")
    flag_missing(A, [fv])
    A(f"s_cbranch_vccz {ok}\ns_sleep {sleep}\ns_branch {lp}\n{ok}:")


def wait_inputs(A, opts, sstep, fv, fa, soff, which):
    if opts.get("direct", 0) & which:
        go = A.new("wi_go")
        d0 = opts.get("d1" if which == 1 else "d0", FAST0)
        if which == 1:
            lp, norm, gate = A.new("wi_xm"), A.new("wi_norm"), A.new("wi_gate")
            A(f"s_cmp_ge_u32 {s(sstep)}, {d0}\ns_cbranch_scc0 {norm}\ns_cmp_eq_u32 {s(sstep)}, 63\ns_cbranch_scc0 {gate}\ns_cmp_eq_u32 s31, 63\ns_cbranch_scc0 {go}")
            A(f"{gate}:\ns_lshl_b32 s33, {s(sstep)}, 13\ns_add_u32 s33, s33, {XM}\nv_mov_b32 {v(fv + 1)}, 0\n{lp}:")
            A(f"buffer_load_dword {v(fv)}, {v(fv + 1)}, {s(WS, 4)}, s33 offen sc1")
            poll_guard(A)
            A(f"s_waitcnt vmcnt(0)\nv_cmp_eq_u32 vcc, -1, {v(fv)}\ns_cbranch_vccz {go}\ns_sleep 2\ns_branch {lp}\n{norm}:")
        else:
            A(f"s_cmp_ge_u32 {s(sstep)}, {d0}\ns_cbranch_scc1 {go}")
        wait_flags(A, fv, fa, soff)
        A(f"{go}:")
        return
    depth = opts.get("tp", 3)
    if not depth or not opts.get("fast63", 1):
        wait_flags(A, fv, fa, soff)
        return
    fast, lp, ok = A.new("wi_fast"), A.new("wi_lp"), A.new("wi_ok")
    A(f"s_cmp_eq_u32 {s(sstep)}, 63\ns_cbranch_scc1 {fast}")
    wait_flags(A, fv, fa, soff)
    A(f"s_branch {ok}\n{fast}:")
    ld = lambda k: A(f"buffer_load_dword {v(fv + k)}, {v(fa)}, {s(WS, 4)}, {s(soff)} offen sc1")
    for k in range(depth - 1):
        ld(k)
    A(f"{lp}:")
    poll_guard(A)
    for k in range(depth):
        ld((k + depth - 1) % depth)
        A(f"s_waitcnt vmcnt({depth - 1})\nv_cmp_ne_u32 vcc, {s(S_NONCE)}, {v(fv + k)}")
        A(f"s_cbranch_vccz {ok}" if k < depth - 1 else f"s_cbranch_vccnz {lp}")
    A(f"{ok}:")


def after_first_y(A, opts):
    if opts.get("nodelay"):
        return
    out = A.new("afy")
    A(f"s_cmp_eq_u32 {s(S_W)}, 0\ns_cbranch_scc0 {out}\nv_lshlrev_b32 v4, 7, v1\ns_mov_b32 s34, {FY + opts.get('afy', 0) * FL_STEP}")
    wait_flags(A, 6, 4, 34, sleep=16)
    A(f"{out}:\ns_barrier")


def unpack(A, dst, src, n, smask):
    for r in range(n):
        A(f"v_lshlrev_b32 {v(dst + 2 * r)}, 16, {v(src + r)}\nv_and_b32 {v(dst + 2 * r + 1)}, {s(smask)}, {v(src + r)}")


def gen_x1(A, opts):
    from gen_chain import gather_addr, mem_loads, check8
    ACC, XOP, TOP, G, ZERO = 4, 32, 48, 80, 88
    GA0, GA1, XR, KX, KX1, KX3, KX31, MK, MK2, MK3, SW, SR, PA, NEG, T = range(89, 104)
    SXB, SMB, XB = 8192, 24576, 32768
    sS, sX, sM0, sXM, sP, sF, sODD, sP0 = 44, 45, 46, 47, 48, 49, 50, 51
    MASK, ODDM = 56, 72
    after_first_y(A, opts)
    wait_prep(A, True)
    vm = Cnt(A, "vmcnt", 63)
    A(f"s_mov_b32 {s(sS)}, s31\ns_mul_i32 s35, {s(S_W)}, {7 * KB}\ns_add_u32 {s(sM0)}, s35, {XB}")
    A(f"s_mul_i32 {s(sX)}, s31, {28 * KB}\ns_add_u32 {s(sX)}, {s(sX)}, s35\ns_add_u32 {s(sX)}, {s(sX)}, {XF}")
    seg_dma(A, sX, sM0, vm)
    A(f"s_and_b32 {s(sODD)}, {s(S_W)}, 1\ns_mul_i32 s33, {s(S_W)}, 7\ns_add_u32 {s(sP0)}, s33, {s(sODD)}\ns_lshr_b32 {s(sP0)}, {s(sP0)}, 1")
    A(f"s_mul_i32 s34, s30, {FRAG_H}\ns_mul_i32 s33, {s(S_W)}, {7 * 14 * KB}\ns_add_u32 s34, s34, s33")
    if AF:
        A(f"s_add_u32 s34, s34, {AF}")
    A(f"s_mul_i32 s35, {s(sODD)}, {14 * KB}\ns_add_u32 s35, s35, s34\ns_add_u32 s36, s34, {6 * 14 * KB}\ns_cmp_eq_u32 {s(sODD)}, 0\ns_cselect_b32 s36, s36, s34")
    A(f"s_cselect_b64 {s(ODDM, 2)}, 0, -1")
    tiles = [(lambda i=i: A(f"s_add_u32 s37, s35, {i * 14 * KB}")) for i in range(6)] + [lambda: A("s_mov_b32 s37, s36")]
    load_weights(A, vm, 3, tiles, 37)
    gather_addr(A, GA0, GA1)
    A(f"v_mov_b32 {v(ZERO)}, 0\nv_mov_b32 {v(NEG)}, {f32(-1.0e9 * math.log2(math.e))}")
    chunk_pos(A, XR, 1, 2, 4)
    paired_addr(A, KX, KX1)
    A(f"v_add_u32 {v(XR)}, {XB}, {v(XR)}")
    A(f"s_lshl_b32 s33, {s(sP0)}, 10\ns_add_u32 s33, s33, {XB}\ns_lshl_b32 s34, {s(sODD)}, 12\ns_sub_u32 s34, 3072, s34")
    for r in (KX, KX1):
        A(f"v_add_u32 {v(r)}, s33, {v(r)}\nv_add_u32 {v(r + 2)}, s34, {v(r)}")
    A(f"v_and_b32 v4, 7, v1\nv_lshlrev_b32 v4, 4, v4\nv_lshrrev_b32 v5, 1, v2\nv_lshl_add_u32 v4, v5, 8, v4\nv_and_b32 v5, 1, v2\nv_lshl_add_u32 v4, v5, 3, v4")
    A(f"s_lshl_b32 s33, {s(sP0)}, 9\nv_add_u32 {v(MK)}, s33, v4\nv_add_u32 {v(MK2)}, 1024, {v(MK)}")
    A(f"s_lshl_b32 s34, {s(sODD)}, 11\ns_sub_u32 s34, 1536, s34\nv_add_u32 {v(MK3)}, s34, {v(MK)}")
    A(f"s_lshl_b32 s33, {s(S_W)}, 10\nv_add_u32 {v(SW)}, s33, v3\ns_lshl_b32 s33, {s(sODD)}, 12\nv_add_u32 {v(SR)}, s33, v3\nv_lshlrev_b32 {v(PA)}, 3, v0")
    A(f"s_lshl_b32 s33, {s(sODD)}, 4\nv_add_u32 v5, s33, v1")
    for kt in range(2):
        for q in range(4):
            A(f"v_lshl_add_u32 v4, v2, 1, {8 * kt + (q >> 1) + 16 * (q & 1)}\nv_cmp_le_u32 {s(MASK + 8 * kt + 2 * q, 2)}, v4, v5")
    A(f"s_lshl_b32 {s(sXM)}, s31, 13\ns_add_u32 {s(sXM)}, {s(sXM)}, {XM}")
    A(f"s_lshl_b32 s33, s31, 4\ns_add_u32 s33, s33, s30\ns_lshl_b32 s33, s33, 1\ns_add_u32 s33, s33, {s(sODD)}\ns_mul_i32 {s(sP)}, s33, 1536\ns_add_u32 {s(sP)}, {s(sP)}, {PF}")
    A(f"s_lshl_b32 s33, s30, 1\ns_add_u32 s33, s33, {s(sODD)}\ns_lshl_b32 s33, s33, 7\ns_mul_i32 {s(sF)}, s31, {FL_STEP}\ns_add_u32 {s(sF)}, {s(sF)}, s33\ns_add_u32 {s(sF)}, {s(sF)}, {FP}")
    top, nodma, nxt, lp, ok = (A.new("x1_" + x) for x in ("top", "nodma", "next", "poll", "ok"))
    A("s_waitcnt vmcnt(0)")
    mark(A, opts, 1)
    A(f"{top}:")
    A("s_barrier")
    A(f"s_add_u32 s33, {s(sS)}, {X1_TEAMS}\ns_cmp_ge_u32 s33, 64\ns_cbranch_scc1 {nodma}")
    A(f"s_add_u32 {s(sX)}, {s(sX)}, {X1_TEAMS * 28 * KB}\ns_xor_b32 {s(sM0)}, {s(sM0)}, 0x18000")
    seg_dma(A, sX, sM0)
    A(f"{nodma}:")
    lg = Cnt(A, "lgkmcnt", 15)
    rd = lambda n: lg.op(f"ds_read_b128 {v(XOP + 4 * (n % 4), 4)}, {v(XR)} offset:{n * KB}", f"x{n}")
    for n in range(3):
        rd(n)
    for tt in range(2):
        for ks in range(14):
            n = tt * 14 + ks
            if n + 3 < 28:
                rd(n + 3)
            lg.wait(f"x{n}")
            for i in range(7):
                c = "0" if ks == 0 else v(ACC + 4 * i, 4)
                A(f"{MF} {v(ACC + 4 * i, 4)}, {wreg((i * 14 + ks) * 4, 4)}, {v(XOP + 4 * (n % 4), 4)}, {c}")
        for i in range(6):
            for b in range(2):
                A(f"v_cvt_pk_bf16_f32 {v(TOP + 16 * tt + 2 * i + b)}, {v(ACC + 4 * i + 2 * b)}, {v(ACC + 4 * i + 2 * b + 1)}")
        for b in range(2):
            A(f"v_cvt_pk_bf16_f32 {v(T + b)}, {v(ACC + 24 + 2 * b)}, {v(ACC + 25 + 2 * b)}")
        for b in range(2):
            A(f"v_cndmask_b32 {v(TOP + 16 * tt + 12 + b)}, {v(T + b)}, {v(ZERO)}, {s(ODDM, 2)}")
            A(f"v_cndmask_b32 {v(TOP + 16 * tt + 14 + b)}, {v(ZERO)}, {v(T + b)}, {s(ODDM, 2)}")
    for half in range(2):
        for b in (2 * half, 2 * half + 1):
            for kt in range(2):
                reg, o = (KX3 + kt, 0) if b == 3 else (KX + kt, b * KB)
                lg.op(f"ds_read_b128 {v(XOP + 8 * (b % 2) + 4 * kt, 4)}, {v(reg)} offset:{o}", f"k{b}")
        for b in (2 * half, 2 * half + 1):
            lg.wait(f"k{b}")
            for j in range(4):
                kt, tt = j % 2, j // 2
                c = "0" if b == 0 else v(ACC + 4 * j, 4)
                A(f"{MF} {v(ACC + 4 * j, 4)}, {v(XOP + 8 * (b % 2) + 4 * kt, 4)}, {v(TOP + 16 * tt + 4 * b, 4)}, {c}")
    for r in (XR, KX, KX1, KX3, KX31):
        A(f"v_xor_b32 {v(r)}, 0x18000, {v(r)}")
    for j in range(4):
        A(f"ds_write_b128 {v(SW)}, {v(ACC + 4 * j, 4)} offset:{SXB + (j % 2) * 8192 + (j // 2) * 4096}")
    A(f"{lp}:")
    mem_loads(A, G, GA0, GA1, sXM)
    poll_guard(A)
    A("s_waitcnt vmcnt(0)")
    A(f"ds_write_b128 {v(GA0)}, {v(G, 4)}\nds_write_b128 {v(GA1)}, {v(G + 4, 4)}")
    check8(A, G, T)
    A(f"s_cbranch_vccz {ok}\ns_sleep 2\ns_branch {lp}\n{ok}:")
    tmark(A, opts, 2)
    A("s_waitcnt lgkmcnt(0)\ns_barrier")
    lg.q = []
    for b in range(4):
        reg, o = [(MK, 0), (MK, 128), (MK2, 0), (MK3, 0)][b]
        for x in range(2):
            lg.op(f"ds_read2_b32 {v(XOP + 4 * b + 2 * x, 2)}, {v(reg)} offset0:{o + x} offset1:{o + x + 32}", f"m{b}")
    for b in range(4):
        lg.wait(f"m{b}")
        for tt in range(2):
            c = "0" if b == 0 else v(ACC + 4 * tt, 4)
            A(f"{MF} {v(ACC + 4 * tt, 4)}, {v(XOP + 4 * b, 4)}, {v(TOP + 16 * tt + 4 * b, 4)}, {c}")
    for tt in range(2):
        A(f"ds_write_b128 {v(SW)}, {v(ACC + 4 * tt, 4)} offset:{SMB + tt * 4096}")
    A(f"s_cmp_ge_u32 {s(S_W)}, 2")
    A(f"s_waitcnt lgkmcnt(0)\ns_barrier\ns_cbranch_scc1 {nxt}")
    R, S = TOP, ACC
    for k, (reg, base) in enumerate(((SR, SMB), (SR, SXB), (SR, SXB + 8192))):
        for w in range(4):
            A(f"ds_read_b128 {v((XOP if k == 2 else R + 16 * k) + 4 * w, 4)}, {v(reg)} offset:{base + w * KB}")
    for k, d in enumerate((8, 0, 4)):
        b = XOP if k == 2 else R + 16 * k
        A(f"s_waitcnt lgkmcnt({8 - 4 * k})")
        for q in range(0, 4, 2):
            A(f"v_pk_add_f32 {v(b + q, 2)}, {v(b + q, 2)}, {v(b + 4 + q, 2)}\nv_pk_add_f32 {v(b + 8 + q, 2)}, {v(b + 8 + q, 2)}, {v(b + 12 + q, 2)}")
        for q in range(0, 4, 2):
            A(f"v_pk_add_f32 {v(S + d + q, 2)}, {v(b + q, 2)}, {v(b + 8 + q, 2)}")
    for r in range(8):
        A(f"v_cndmask_b32 {v(S + r)}, {v(NEG)}, {v(S + r)}, {s(MASK + 2 * r, 2)}")
    mx, sm = T, T + 1
    A(f"v_max3_f32 {v(mx)}, {v(S)}, {v(S + 1)}, {v(S + 2)}")
    for r in range(3, 11, 2):
        A(f"v_max3_f32 {v(mx)}, {v(mx)}, {v(S + r)}, {v(S + r + 1)}")
    A(f"v_max_f32 {v(mx)}, {v(mx)}, {v(S + 11)}")
    xor_reduce(A, "v_max_f32", mx, T + 2)
    for r in range(12):
        A(f"v_sub_f32 {v(S + r)}, {v(S + r)}, {v(mx)}")
    for r in range(12):
        A(f"v_exp_f32 {v(S + r)}, {v(S + r)}")
    A(f"v_add_f32 {v(sm)}, {v(S + 8)}, {v(S + 9)}\nv_add_f32 {v(T + 2)}, {v(S + 10)}, {v(S + 11)}\nv_add_f32 {v(sm)}, {v(sm)}, {v(T + 2)}\nv_mul_f32 {v(sm)}, 0.5, {v(sm)}")
    for r in range(8):
        A(f"v_add_f32 {v(sm)}, {v(sm)}, {v(S + r)}")
    xor_reduce(A, "v_add_f32", sm, T + 2)
    A(f"v_rcp_f32 {v(sm)}, {v(sm)}")
    for r in range(12):
        A(f"v_mul_f32 {v(S + r)}, {v(S + r)}, {v(sm)}")
    for r in range(6):
        A(f"v_cvt_pk_bf16_f32 {v(G + r)}, {v(S + 2 * r)}, {v(S + 2 * r + 1)}")
    clean(A, range(G, G + 6))
    A(f"buffer_store_dwordx4 {v(G, 4)}, v3, {s(WS, 4)}, {s(sP)} offen sc1")
    A(f"buffer_store_dwordx2 {v(G + 4, 2)}, {v(PA)}, {s(WS, 4)}, {s(sP)} offen offset:1024 sc1")
    tmark(A, opts, 3)
    drain_unless_last(A, opts, sS)
    tmark(A, opts, 4)
    set_flag(A, sF, T)
    A(f"{nxt}:")
    A(f"s_add_u32 {s(sS)}, {s(sS)}, {X1_TEAMS}\ns_add_u32 {s(sXM)}, {s(sXM)}, {X1_TEAMS * 8192}\ns_add_u32 {s(sP)}, {s(sP)}, {X1_TEAMS * 32 * 1536}\ns_add_u32 {s(sF)}, {s(sF)}, {X1_TEAMS * FL_STEP}")
    A(f"s_cmp_lt_u32 {s(sS)}, 64\ns_cbranch_scc1 {top}")
    flush_stamps(A, opts)
    A("s_endpgm")


def reduce_tiles(A, R, out, rr, base):
    for vv in range(2):
        for w in range(4):
            A(f"ds_read_b128 {v(R + 16 * vv + 4 * w, 4)}, {v(rr)} offset:{base + w * 4096 + vv * KB}")
    for vv in range(2):
        b = R + 16 * vv
        A(f"s_waitcnt lgkmcnt({4 - 4 * vv})")
        for q in (0, 2):
            A(f"v_pk_add_f32 {v(b + q, 2)}, {v(b + q, 2)}, {v(b + 4 + q, 2)}\nv_pk_add_f32 {v(b + 8 + q, 2)}, {v(b + 8 + q, 2)}, {v(b + 12 + q, 2)}")
        for q in (0, 2):
            A(f"v_pk_add_f32 {v(out + 4 * vv + q, 2)}, {v(b + q, 2)}, {v(b + 8 + q, 2)}")


def gen_x2(A, opts):
    Y, PX, PM, Z, ACC, XV, R, O = 4, 36, 68, 84, 100, 116, 120, 152
    FA1, FA2, _, L8, RW, RR, XA, SA, T = range(160, 169)
    YN, FV = 172, 208
    X_ = 16
    sS, sY, sP, sZ, sFL, sXO, sH, sST, sF, sMASK, sTT = range(44, 55)
    half = opts.get('half', 1)
    END = 64 if half else 63
    b = load_srd(A, X_, "x", 40)
    A(f"s_cmp_eq_u32 s31, 63\ns_cselect_b32 {s(sTT)}, 0, 1")
    A(f"s_mov_b32 {s(sS)}, s31\ns_mov_b32 {s(sMASK)}, 0xffff0000\ns_and_b32 s36, {s(S_W)}, 1")
    A(f"v_lshlrev_b32 {v(FA1)}, 7, v1\nv_lshlrev_b32 {v(L8)}, 3, v0")
    A(f"v_and_b32 v4, 31, v0\nv_lshlrev_b32 v4, 7, v4\nv_add_u32 v4, {FP - FL}, v4\nv_add_u32 v5, {FZ - FL}, {v(FA1)}\nv_cmp_gt_u32 vcc, 32, v0\nv_cndmask_b32 {v(FA2)}, v5, v4, vcc")
    A(f"v_add_u32 v4, {X2_TEAMS * FL_STEP}, {v(FA1)}\nv_cmp_gt_u32 vcc, 48, v0\nv_cndmask_b32 {v(T + 2)}, v4, {v(FA2)}, vcc")
    A(f"s_lshl_b32 s33, {s(S_W)}, 12\nv_add_u32 {v(RW)}, s33, v3\ns_lshl_b32 s33, s36, 11\nv_add_u32 {v(RR)}, s33, v3")
    A(f"v_mul_u32_u24 v4, 896, v1\nv_lshl_add_u32 {v(XA)}, v2, 4, v4")
    A(f"v_lshlrev_b32 v4, 3, v1\nv_mov_b32 v5, {OOB}\nv_cmp_gt_u32 vcc, 16, v0\nv_cndmask_b32 {v(SA)}, v5, v4, vcc")
    A(f"s_lshl_b32 s33, s31, 4\ns_lshl_b32 s34, {s(S_W)}, 2\ns_add_u32 s33, s33, s34")
    A(f"s_mul_i32 {s(sY)}, s33, {28 * KB}\ns_lshl_b32 s34, s30, 11\ns_add_u32 {s(sY)}, {s(sY)}, s34\ns_add_u32 {s(sY)}, {s(sY)}, {YF}")
    A(f"s_mul_i32 {s(sP)}, s33, 3072\ns_add_u32 {s(sP)}, {s(sP)}, {PF}")
    A(f"s_mul_i32 {s(sZ)}, s33, 14336\ns_lshl_b32 s34, s30, 10\ns_add_u32 {s(sZ)}, {s(sZ)}, s34\ns_add_u32 {s(sZ)}, {s(sZ)}, {ZF}")
    A(f"s_mul_i32 {s(sFL)}, s31, {FL_STEP}\ns_add_u32 {s(sFL)}, {s(sFL)}, {FL}")
    A(f"s_lshl_b32 s33, s31, 1\ns_add_u32 s33, s33, s36")
    A(f"s_mul_i32 {s(sXO)}, s33, {16 * 896}\ns_lshl_b32 s34, s30, 6\ns_add_u32 {s(sXO)}, {s(sXO)}, s34")
    A(f"s_mul_i32 s33, s33, 14\ns_add_u32 s33, s33, s30\ns_lshl_b32 {s(sH)}, s33, 10\ns_add_u32 {s(sH)}, {s(sH)}, {HF}\ns_lshl_b32 {s(sST)}, s33, 7\ns_add_u32 {s(sST)}, {s(sST)}, {ST}")
    A(f"s_lshl_b32 s33, s30, 1\ns_add_u32 s33, s33, s36\ns_lshl_b32 s33, s33, 7\ns_add_u32 {s(sF)}, {s(sFL)}, s33\ns_add_u32 {s(sF)}, {s(sF)}, {FH - FL}")
    A("s_waitcnt lgkmcnt(0)")
    b()
    top, nxt = A.new("x2_top"), A.new("x2_next")
    mark(A, opts, 1)
    def y_loads(cnt=None):
        for hh in range(4):
            A(f"s_add_u32 s33, {s(sY)}, {hh * 28 * KB}")
            for vv in range(2):
                t = f"buffer_load_dwordx4 {v(YN + 8 * hh + 4 * vv, 4)}, v3, {s(WS, 4)}, s33 offen offset:{vv * KB} sc1"
                cnt.op(t) if cnt else A(t)
        t = f"buffer_load_dwordx4 {v(YN + 32, 4)}, {v(XA)}, {s(X_, 4)}, {s(sXO)} offen nt"
        cnt.op(t) if cnt else A(t)

    wait_flags(A, FV, FA1, sFL)
    y_loads()
    A(f"s_waitcnt vmcnt(0)\n{top}:")
    A(f"s_cmp_lt_u32 {s(sS)}, {END - X2_TEAMS}\ns_cselect_b64 vcc, -1, 0\nv_cndmask_b32 {v(T + 3)}, {v(FA2)}, {v(T + 2)}, vcc")
    A(f"s_cselect_b32 s33, {X2_TEAMS * 16 * 28 * KB}, 0\ns_cselect_b32 s34, {X2_TEAMS * 32 * 896}, 0\ns_add_u32 {s(sY)}, {s(sY)}, s33\ns_add_u32 {s(sXO)}, {s(sXO)}, s34")
    for r in range(0, 32, 2):
        A(f"v_mov_b64 {v(Y + r, 2)}, {v(YN + r, 2)}")
    A(f"v_mov_b64 {v(XV, 2)}, {v(YN + 32, 2)}\nv_mov_b64 {v(XV + 2, 2)}, {v(YN + 34, 2)}")
    wait_inputs(A, opts, sS, FV, T + 3, sFL, 1)
    tmark(A, opts, 2)
    again = A.new("x2_again")
    last, sums, other = A.new("x2_last"), A.new("x2_sums"), A.new("x2_other")
    A("s_barrier")
    if half:
        A(f"s_cmp_eq_u32 {s(sS)}, 63\ns_cbranch_scc1 {last}")
    A(f"{again}:")
    vm = Cnt(A, "vmcnt", 63)
    for hh in range(4):
        A(f"s_add_u32 s33, {s(sP)}, {hh * 3072}\ns_add_u32 s34, {s(sZ)}, {hh * 14336}")
        for tt in range(2):
            vm.op(f"buffer_load_dwordx4 {v(PX + 8 * hh + 4 * tt, 4)}, v3, {s(WS, 4)}, s33 offen offset:{tt * 1536} sc1", f"x{hh}")
        for tt in range(2):
            vm.op(f"buffer_load_dwordx2 {v(PM + 8 * (hh // 2) + 4 * tt + 2 * (hh % 2), 2)}, {v(L8)}, {s(WS, 4)}, s33 offen offset:{tt * 1536 + 1024} sc1", f"m{hh // 2}")
        for vv in range(2):
            vm.op(f"buffer_load_dwordx2 {v(Z + 8 * (hh // 2) + 4 * vv + 2 * (hh % 2), 2)}, {v(L8)}, {s(WS, 4)}, s34 offen offset:{vv * 512} sc1", f"m{hh // 2}")
    y_loads(vm)
    for hh in range(4):
        vm.wait(f"x{hh}")
        for tt in range(2):
            for vv in range(2):
                d = v(ACC + 8 * tt + 4 * vv, 4)
                A(f"{MF} {d}, {v(Y + 8 * hh + 4 * vv, 4)}, {v(PX + 8 * hh + 4 * tt, 4)}, {'0' if hh == 0 else d}")
        if hh % 2:
            vm.wait(f"m{hh // 2}")
            for tt in range(2):
                for vv in range(2):
                    d = v(ACC + 8 * tt + 4 * vv, 4)
                    A(f"{MF} {d}, {v(Z + 8 * (hh // 2) + 4 * vv, 4)}, {v(PM + 8 * (hh // 2) + 4 * tt, 4)}, {d}")
    verify_last(A, opts, sS, range(PX, ACC), T, again, 9)
    for k in range(4):
        A(f"ds_write_b128 {v(RW)}, {v(ACC + 4 * k, 4)} offset:{k * KB}")
    A(f"s_cmp_ge_u32 {s(S_W)}, 2\n{sums}:\ns_waitcnt lgkmcnt(0)\ns_barrier\ns_cbranch_scc1 {other}")
    reduce_tiles(A, R, O, RR, 0)
    tmark(A, opts, 3)
    for r in range(4):
        A(f"v_cvt_pk_bf16_f32 {v(R + r)}, {v(O + 2 * r)}, {v(O + 2 * r + 1)}")
    unpack(A, O, R, 4, sMASK)
    unpack(A, R + 8, XV, 4, sMASK)
    for r in range(8):
        A(f"v_add_f32 {v(O + r)}, {v(O + r)}, {v(R + 8 + r)}")
    for r in range(4):
        A(f"v_cvt_pk_bf16_f32 {v(R + r)}, {v(O + 2 * r)}, {v(O + 2 * r + 1)}")
    clean(A, range(R, R + 4))
    A(f"buffer_store_dwordx4 {v(R, 4)}, v3, {s(WS, 4)}, {s(sH)} offen sc1")
    unpack(A, O, R, 4, sMASK)
    M = R + 8
    A(f"v_add_f32 {v(M)}, {v(O)}, {v(O + 1)}")
    for r in range(2, 8):
        A(f"v_add_f32 {v(M)}, {v(M)}, {v(O + r)}")
    xor_reduce(A, "v_add_f32", M, T)
    A(f"v_mul_f32 {v(M)}, {f32(1.0 / 32)}, {v(M)}")
    for r in range(8):
        A(f"v_sub_f32 {v(O + r)}, {v(O + r)}, {v(M)}")
    A(f"v_mul_f32 {v(M + 1)}, {v(O)}, {v(O)}")
    for r in range(1, 8):
        A(f"v_fmac_f32 {v(M + 1)}, {v(O + r)}, {v(O + r)}")
    xor_reduce(A, "v_add_f32", M + 1, T)
    clean(A, (M, M + 1))
    A(f"buffer_store_dwordx2 {v(M, 2)}, {v(SA)}, {s(WS, 4)}, {s(sST)} offen sc1")
    tmark(A, opts, 5)
    drain_unless_last(A, opts, sS)
    tmark(A, opts, 4)
    set_flag(A, sF, T)
    A(f"s_waitcnt vmcnt(3)\n{nxt}:")
    for r, step in ((sS, 1), (sP, 16 * 3072), (sZ, 16 * 14336), (sFL, FL_STEP), (sH, 28 * KB), (sST, 28 * 128), (sF, FL_STEP)):
        A(f"s_add_u32 {s(r)}, {s(r)}, {X2_TEAMS * step}")
    A(f"s_cmp_lt_u32 {s(sS)}, {END}\ns_cbranch_scc1 {top}")
    flush_stamps(A, opts)
    A("s_endpgm")
    A(f"{other}:\ns_waitcnt vmcnt(0)\ns_branch {nxt}")
    if half:
        A(f"{last}:\ns_mul_i32 s35, {s(sTT)}, 1536\ns_add_u32 {s(sP)}, {s(sP)}, s35\ns_lshl_b32 s35, {s(sTT)}, 11\nv_add_u32 {v(RW)}, s35, {v(RW)}")
        rep = A.new("x2_rep")
        A(f"{rep}:")
        vm = Cnt(A, "vmcnt", 63)
        regs = []
        for hh in range(4):
            q = 8 * (hh // 2) + 2 * (hh % 2)
            A(f"s_add_u32 s33, {s(sP)}, {hh * 3072}\ns_add_u32 s34, {s(sZ)}, {hh * 14336}")
            vm.op(f"buffer_load_dwordx4 {v(PX + 8 * hh, 4)}, v3, {s(WS, 4)}, s33 offen sc1", f"x{hh}")
            vm.op(f"buffer_load_dwordx2 {v(PM + q, 2)}, {v(L8)}, {s(WS, 4)}, s33 offen offset:1024 sc1", f"m{hh // 2}")
            for vv in range(2):
                vm.op(f"buffer_load_dwordx2 {v(Z + q + 4 * vv, 2)}, {v(L8)}, {s(WS, 4)}, s34 offen offset:{vv * 512} sc1", f"m{hh // 2}")
            regs += list(range(PX + 8 * hh, PX + 8 * hh + 4)) + [PM + q, PM + q + 1]
        for hh in range(4):
            vm.wait(f"x{hh}")
            for vv in range(2):
                d = v(ACC + 4 * vv, 4)
                A(f"{MF} {d}, {v(Y + 8 * hh + 4 * vv, 4)}, {v(PX + 8 * hh, 4)}, {'0' if hh == 0 else d}")
            if hh % 2:
                vm.wait(f"m{hh // 2}")
                for vv in range(2):
                    d = v(ACC + 4 * vv, 4)
                    A(f"{MF} {d}, {v(Z + 8 * (hh // 2) + 4 * vv, 4)}, {v(PM + 8 * (hh // 2), 4)}, {d}")
        poll_guard(A)
        sentinel_check(A, regs + list(range(Z, Z + 16)), T, rep)
        for k in range(2):
            A(f"ds_write_b128 {v(RW)}, {v(ACC + 4 * k, 4)} offset:{k * KB}")
        A(f"s_cmp_lg_u32 {s(S_W)}, {s(sTT)}\ns_branch {sums}")


def tr_addr(A, dst, sbase):
    A(f"v_lshrrev_b32 v4, 2, v1\nv_lshlrev_b32 v4, 6, v4\nv_and_b32 v5, 3, v0\nv_lshl_add_u32 v4, v5, 4, v4\nv_lshl_add_u32 v4, v2, 9, v4\nv_add_u32 {v(dst)}, {s(sbase)}, v4")


def row_addr(A, dst, stride):
    A(f"v_lshrrev_b32 v4, 2, v0\nv_mov_b32 v6, {stride}\nv_mul_lo_u32 v4, v4, v6\nv_and_b32 v5, 3, v0\nv_lshl_add_u32 {v(dst)}, v5, 4, v4")


def gen_f1(A, opts):
    H, ACC, CS, B1, SV, U, PK = 4, 60, 68, 76, 84, 92, 100
    FA, _, SA, RA, TR, T = range(108, 114)
    FV = 120
    W_, B_ = 16, 20
    sS, sH, sST, sG, sFH, sF, sMASK, sP = range(44, 52)
    after_first_y(A, opts)
    if opts.get('f1swap'):
        A('s_xor_b32 s31, s31, 1')
    b = [load_srd(A, W_, "w1", 40), load_srd(A, B_, "b1", 42)]
    A(f"s_lshr_b32 s34, {s(S_W)}, 1\ns_and_b32 s35, {s(S_W)}, 1\ns_lshl_b32 {s(sP)}, s30, 1\ns_add_u32 {s(sP)}, {s(sP)}, s34")
    row_addr(A, RA, 3584)
    A(f"s_mul_i32 s36, s34, {28 * KB}")
    tr_addr(A, TR, 36)
    A(f"s_mul_i32 s37, s35, {14 * KB}\ns_add_u32 s36, s36, s37\ns_mul_i32 s37, s35, {224 * 3584}\ns_lshl_b32 s38, {s(sP)}, 6\ns_add_u32 s37, s37, s38")
    A(f"v_lshlrev_b32 v7, 4, v2\ns_mov_b32 {s(sMASK)}, 0xffff0000")
    A("s_waitcnt lgkmcnt(0)")
    for f in b:
        f()
    for j in range(14):
        A(f"s_mov_b32 m0, s36\ns_add_u32 s36, s36, 1024\nbuffer_load_dwordx4 {v(RA)}, {s(W_, 4)}, s37 offen nt lds\ns_add_u32 s37, s37, {16 * 3584}")
    A(f"buffer_load_dwordx4 {v(PK, 4)}, v7, {s(B_, 4)}, s38 offen")
    A(f"s_mov_b32 {s(sS)}, s31\ns_lshl_b32 s33, s31, 1\ns_add_u32 s33, s33, s35")
    A(f"s_mul_i32 {s(sH)}, s33, {14 * KB}\ns_add_u32 {s(sH)}, {s(sH)}, {HF}\ns_mul_i32 {s(sST)}, s33, {14 * 128}\ns_add_u32 {s(sST)}, {s(sST)}, {ST}")
    A(f"s_mul_i32 s34, s33, 56\ns_add_u32 s34, s34, {s(sP)}\ns_lshl_b32 {s(sG)}, s34, 10\ns_add_u32 {s(sG)}, {s(sG)}, {GF}")
    A(f"s_mul_i32 {s(sFH)}, s31, {FL_STEP}\ns_lshl_b32 {s(sF)}, s35, 13\ns_lshl_b32 s34, {s(sP)}, 7\ns_add_u32 {s(sF)}, {s(sF)}, s34\ns_add_u32 {s(sF)}, {s(sF)}, {s(sFH)}\ns_add_u32 {s(sF)}, {s(sF)}, {FG}")
    A(f"s_add_u32 {s(sFH)}, {s(sFH)}, {FH}")
    A(f"v_min_u32 {v(FA)}, 13, v1\nv_lshlrev_b32 {v(FA)}, 8, {v(FA)}\ns_lshl_b32 s34, s35, 7\nv_add_u32 {v(FA)}, s34, {v(FA)}")
    A(f"v_lshlrev_b32 {v(SA)}, 7, v2\nv_lshl_add_u32 {v(SA)}, v1, 3, {v(SA)}\nv_add_u32 v4, 1536, {v(SA)}\nv_mov_b32 v5, {OOB}\nv_cmp_gt_u32 vcc, 32, v0\nv_cndmask_b32 {v(T + 5)}, v5, v4, vcc")
    A("s_waitcnt vmcnt(0)\ns_barrier")
    unpack(A, B1, PK, 4, sMASK)
    lg = Cnt(A, "lgkmcnt", 15)
    for vv in range(2):
        for ks in range(14):
            for x in range(2):
                lg.room(1)
                lg.op(f"ds_read_b64_tr_b16 {a((vv * 14 + ks) * 4 + 2 * x, 2)}, {v(TR)} offset:{ks * 2048 + x * 256 + vv * 8}")
    for r in range(4):
        A(f"v_mov_b32 {v(H + r)}, 0x3f803f80")
    lg.drain()
    for ks in range(14):
        for vv in range(2):
            d = v(CS + 4 * vv, 4)
            A(f"{MF} {d}, {a((vv * 14 + ks) * 4, 4)}, {v(H, 4)}, {'0' if ks == 0 else d}")
    K1 = -2.0 * math.sqrt(2.0 / math.pi) * math.log2(math.e)
    A(f"s_mov_b32 s54, {f32(K1 * 0.044715)}\nv_mov_b32 {v(T + 4)}, {f32(K1)}")
    top = A.new("f1_top")
    mark(A, opts, 1)
    A(f"{top}:")
    wait_inputs(A, opts, sS, FV, FA, sFH, 2)
    tmark(A, opts, 2)
    again = A.new("f1_again")
    A(f"{again}:")
    vm = Cnt(A, "vmcnt", 63)
    for k in range(3):
        vm.op(f"buffer_load_dwordx2 {v(SV + 2 * k, 2)}, {v(SA)}, {s(WS, 4)}, {s(sST)} offen offset:{k * 512} sc1", "s")
    vm.op(f"buffer_load_dwordx2 {v(SV + 6, 2)}, {v(T + 5)}, {s(WS, 4)}, {s(sST)} offen sc1", "s")
    A(f"s_mov_b32 s33, {s(sH)}")
    for ks in range(14):
        vm.op(f"buffer_load_dwordx4 {v(H + 4 * ks, 4)}, v3, {s(WS, 4)}, s33 offen offset:{(ks % 4) * KB} sc1", f"h{ks}")
        if ks % 4 == 3:
            A("s_add_u32 s33, s33, 4096")
    vm.wait("s")
    mu, m2, q2 = T, T + 1, T + 2
    A(f"v_add_f32 {v(mu)}, {v(SV)}, {v(SV + 2)}\nv_add_f32 {v(m2)}, {v(SV + 1)}, {v(SV + 3)}\nv_mul_f32 {v(q2)}, {v(SV)}, {v(SV)}\nv_fmac_f32 {v(q2)}, {v(SV + 2)}, {v(SV + 2)}")
    for k in (4, 6):
        A(f"v_add_f32 {v(mu)}, {v(mu)}, {v(SV + k)}\nv_add_f32 {v(m2)}, {v(m2)}, {v(SV + k + 1)}\nv_fmac_f32 {v(q2)}, {v(SV + k)}, {v(SV + k)}")
    A(f"v_fmac_f32 {v(m2)}, {f32(32.0)}, {v(q2)}")
    xor_reduce(A, "v_add_f32", mu, T + 3)
    xor_reduce(A, "v_add_f32", m2, T + 3)
    A(f"v_mul_f32 {v(mu)}, {f32(1.0 / 14)}, {v(mu)}\nv_mul_f32 {v(q2)}, {v(mu)}, {v(mu)}")
    A(f"v_mul_f32 {v(m2)}, {f32(1.0 / 448)}, {v(m2)}\nv_sub_f32 {v(m2)}, {v(m2)}, {v(q2)}\nv_max_f32 {v(m2)}, 0, {v(m2)}\nv_add_f32 {v(m2)}, {f32(1e-5)}, {v(m2)}\nv_rsq_f32 {v(m2)}, {v(m2)}")
    for ks in range(14):
        vm.wait(f"h{ks}")
        for vv in range(2):
            d = v(ACC + 4 * vv, 4)
            A(f"{MF} {d}, {a((vv * 14 + ks) * 4, 4)}, {v(H + 4 * ks, 4)}, {'0' if ks == 0 else d}")
    verify_last(A, opts, sS, list(range(H, H + 56)) + list(range(SV, SV + 8)), U, again)
    tmark(A, opts, 3)
    for r in range(8):
        A(f"v_fma_f32 {v(U + r)}, -{v(mu)}, {v(CS + r)}, {v(ACC + r)}")
    for r in range(8):
        A(f"v_fma_f32 {v(U + r)}, {v(m2)}, {v(U + r)}, {v(B1 + r)}")
    for r in range(8):
        A(f"v_mul_f32 {v(ACC + r)}, {v(U + r)}, {v(U + r)}")
    for r in range(8):
        A(f"v_fma_f32 {v(ACC + r)}, {v(ACC + r)}, s54, {v(T + 4)}")
    for r in range(8):
        A(f"v_mul_f32 {v(ACC + r)}, {v(ACC + r)}, {v(U + r)}")
    for r in range(8):
        A(f"v_exp_f32 {v(ACC + r)}, {v(ACC + r)}")
    for r in range(8):
        A(f"v_add_f32 {v(ACC + r)}, 1.0, {v(ACC + r)}")
    for r in range(8):
        A(f"v_rcp_f32 {v(ACC + r)}, {v(ACC + r)}")
    for r in range(8):
        A(f"v_mul_f32 {v(U + r)}, {v(U + r)}, {v(ACC + r)}")
    for r in range(4):
        A(f"v_cvt_pk_bf16_f32 {v(PK + r)}, {v(U + 2 * r)}, {v(U + 2 * r + 1)}")
    clean(A, range(PK, PK + 4))
    A(f"buffer_store_dwordx4 {v(PK, 4)}, v3, {s(WS, 4)}, {s(sG)} offen sc1")
    tmark(A, opts, 5)
    drain_unless_last(A, opts, sS)
    tmark(A, opts, 4)
    set_flag(A, sF, SV)
    for r, step in ((sS, 1), (sH, 28 * KB), (sST, 28 * 128), (sG, 112 * KB), (sFH, FL_STEP), (sF, FL_STEP)):
        A(f"s_add_u32 {s(r)}, {s(r)}, {F_TEAMS * step}")
    A(f"s_cmp_lt_u32 {s(sS)}, 64\ns_cbranch_scc1 {top}")
    flush_stamps(A, opts)
    A("s_endpgm")


def gen_f2(A, opts):
    Gr, ACC, HV, B2, R, O = 4, 60, 76, 80, 88, 120
    FA, _, RA, TR, RW, RR, OA, T = range(128, 136)
    FV = 138
    W_, B_, O_ = 16, 20, 24
    sS, sG, sH, sO, sFG, sMASK = range(44, 50)
    after_first_y(A, opts)
    b = [load_srd(A, W_, "w2", 40), load_srd(A, B_, "b2", 42), load_srd(A, O_, "out", 38)]
    A(f"s_lshr_b32 s34, s30, 1\ns_and_b32 s35, s30, 1\ns_and_b32 s29, {s(S_W)}, 1")
    row_addr(A, RA, 896)
    A(f"s_mul_i32 s28, {s(S_W)}, {28 * KB}")
    tr_addr(A, TR, 28)
    A(f"v_lshlrev_b32 v7, 4, v2\ns_mov_b32 {s(sMASK)}, 0xffff0000\ns_lshl_b32 s52, s34, 7\ns_lshl_b32 s53, s29, 6\ns_add_u32 s53, s53, s52")
    A("s_waitcnt lgkmcnt(0)")
    for f in b:
        f()
    A(f"buffer_load_dwordx4 {v(HV, 4)}, v7, {s(B_, 4)}, s53 offen")
    lg = Cnt(A, "lgkmcnt", 15)
    for pa in range(2):
        A(f"s_mul_i32 s37, {s(S_W)}, {448 * 896}\ns_add_u32 s37, s37, s52\ns_add_u32 s37, s37, {pa * 64}\ns_mov_b32 s36, s28")
        for j in range(28):
            A(f"s_mov_b32 m0, s36\ns_add_u32 s36, s36, 1024\nbuffer_load_dwordx4 {v(RA)}, {s(W_, 4)}, s37 offen nt lds\ns_add_u32 s37, s37, {16 * 896}")
        A("s_waitcnt vmcnt(0)")
        for vv in range(2):
            for ks in range(14):
                for x in range(2):
                    lg.room(1)
                    lg.op(f"ds_read_b64_tr_b16 {a(((2 * pa + vv) * 14 + ks) * 4 + 2 * x, 2)}, {v(TR)} offset:{ks * 2048 + x * 256 + vv * 8}")
        lg.drain()
    unpack(A, B2, HV, 4, sMASK)
    A(f"s_mov_b32 {s(sS)}, s31\ns_lshl_b32 s33, s31, 1\ns_add_u32 s33, s33, s35")
    A(f"s_mul_i32 s36, s33, 56\ns_mul_i32 s37, {s(S_W)}, 14\ns_add_u32 s36, s36, s37\ns_lshl_b32 {s(sG)}, s36, 10\ns_add_u32 {s(sG)}, {s(sG)}, {GF}")
    A(f"s_mul_i32 s36, s33, 14\ns_lshl_b32 s37, s34, 1\ns_add_u32 s36, s36, s37\ns_add_u32 s36, s36, s29\ns_lshl_b32 {s(sH)}, s36, 10\ns_add_u32 {s(sH)}, {s(sH)}, {HF}")
    A(f"s_mul_i32 {s(sO)}, s33, {16 * 896}\ns_add_u32 {s(sO)}, {s(sO)}, s53\ns_mul_i32 {s(sFG)}, s31, {FL_STEP}\ns_lshl_b32 s36, s35, 13\ns_add_u32 {s(sFG)}, {s(sFG)}, s36\ns_add_u32 {s(sFG)}, {s(sFG)}, {FG}")
    A(f"v_min_u32 {v(FA)}, 55, v0\nv_lshlrev_b32 {v(FA)}, 7, {v(FA)}")
    A(f"s_lshl_b32 s33, {s(S_W)}, 12\nv_add_u32 {v(RW)}, s33, v3\ns_lshl_b32 s33, s29, 11\nv_add_u32 {v(RR)}, s33, v3")
    A(f"v_mul_u32_u24 v4, 896, v1\nv_lshl_add_u32 {v(OA)}, v2, 4, v4")
    top, nxt = A.new("f2_top"), A.new("f2_next")
    mark(A, opts, 1)
    A(f"{top}:")
    wait_inputs(A, opts, sS, FV, FA, sFG, 4)
    tmark(A, opts, 2)
    again = A.new("f2_again")
    A(f"s_barrier\n{again}:")
    vm = Cnt(A, "vmcnt", 63)
    A(f"s_mov_b32 s33, {s(sG)}")
    for ks in range(14):
        vm.op(f"buffer_load_dwordx4 {v(Gr + 4 * ks, 4)}, v3, {s(WS, 4)}, s33 offen offset:{(ks % 4) * KB} sc1", f"g{ks}")
        if ks % 4 == 3:
            A("s_add_u32 s33, s33, 4096")
    vm.op(f"buffer_load_dwordx4 {v(HV, 4)}, v3, {s(WS, 4)}, {s(sH)} offen sc1", "h")
    for ks in range(14):
        vm.wait(f"g{ks}")
        for t in range(4):
            d = v(ACC + 4 * t, 4)
            A(f"{MF} {d}, {a((t * 14 + ks) * 4, 4)}, {v(Gr + 4 * ks, 4)}, {'0' if ks == 0 else d}")
    verify_last(A, opts, sS, list(range(Gr, Gr + 56)) + list(range(HV, HV + 4)), T, again)
    for k in range(4):
        A(f"ds_write_b128 {v(RW)}, {v(ACC + 4 * k, 4)} offset:{k * KB}")
    A(f"s_cmp_ge_u32 {s(S_W)}, 2\ns_waitcnt vmcnt(0) lgkmcnt(0)\ns_barrier\ns_cbranch_scc1 {nxt}")
    reduce_tiles(A, R, O, RR, 0)
    tmark(A, opts, 3)
    unpack(A, R, HV, 4, sMASK)
    for r in range(8):
        A(f"v_add_f32 {v(O + r)}, {v(O + r)}, {v(B2 + r)}")
    for r in range(8):
        A(f"v_add_f32 {v(O + r)}, {v(O + r)}, {v(R + r)}")
    for r in range(4):
        A(f"v_cvt_pk_bf16_f32 {v(R + 8 + r)}, {v(O + 2 * r)}, {v(O + 2 * r + 1)}")
    A(f"buffer_store_dwordx4 {v(R + 8, 4)}, {v(OA)}, {s(O_, 4)}, {s(sO)} offen{['', ' sc1', ' nt'][opts.get('osc', 0)]}")
    A(f"{nxt}:")
    for r, step in ((sS, 1), (sG, 112 * KB), (sH, 28 * KB), (sO, 32 * 896), (sFG, FL_STEP)):
        A(f"s_add_u32 {s(r)}, {s(r)}, {F_TEAMS * step}")
    A(f"s_cmp_lt_u32 {s(sS)}, 64\ns_cbranch_scc1 {top}")
    dbg_time(A, opts, 7, 213)
    amp_mark(A, opts, 4)
    amp_spin(A, opts, 213, (4,))
    flush_stamps(A, opts)
    A("s_endpgm")
```

```python
KB = 1024
FRAG_H = 28 * 14 * KB
AF = 0
BF = AF + 16 * FRAG_H
XF = BF + 16 * FRAG_H
XS = XF + 128 * 14 * KB
YF = XS + 128 * 14 * KB
XM = YF + 64 * 16 * 28 * KB
CM = XM + 64 * 8192
CP = CM + 64 * 8192
EF = CP + 64 * 10240
EF_STEP = 16384
EF_P = 8192
ZF = EF + 64 * EF_STEP
PF = ZF + 64 * 14 * 16384
HF = PF + 64 * 16 * 2 * 1536
ST = HF + 128 * 14 * KB
GF = ST + 128 * 14 * 128
FL = GF + 128 * 56 * KB
FL_STEP = 28672
FY, FZ, FP, FH, FG = FL, FL + 2048, FL + 4096, FL + 8192, FL + 12288
DONE = FL + 65 * FL_STEP
DBG = DONE + 256 * 128
DBG_BYTES = 256 * 4 * 2048
WS_USED = DBG + DBG_BYTES
WS_BYTES = 268435456

P1_BASE, P1_BLOCKS = XM + 8192, 126
P2_BASE, P2_BLOCKS = CM + 8192, 284
FAST0 = 61
NF = 64 - FAST0
P_LAST = [(PF + FAST0 * 32 * 1536, 12 * NF), (ZF + FAST0 * 16 * 14336, 56 * NF), (HF + FAST0 * 28 * KB, 7 * NF),
          (ST + FAST0 * 28 * 128, NF), (GF + FAST0 * 112 * KB, 28 * NF)]

KARG = dict(x=0, mem0=8, wq=16, wk=24, wv=32, wo=40, w1=64, b1=72, w2=80, b2=88, out=96, dbg=104, ws=112)
SIZE = dict(x=1835008, mem0=7168, wq=3670016, wk=3670016, wv=3670016, wo=3670016, w1=1605632, b1=3584,
            w2=1605632, b2=896, out=1835008, dbg=256, ws=WS_BYTES)
```

```python
from asmlib import v, a, s
from layout import *
from common import *
from gen_prep import chunk_pos

SMF = "v_smfmac_f32_16x16x64_bf16"
MF = "v_mfma_f32_16x16x32_bf16"
N_CHAIN = 32


def chain_mode(A, opts, vm, lab):
    lp = A.new("reg")
    A("v_mov_b32 v5, 68")
    A(f"{lp}:\ns_sleep 16")
    A(f"buffer_load_dword v4, v5, {s(DB, 4)}, 0 offen sc1")
    poll_guard(A)
    vm.drain()
    A(f"v_readfirstlane_b32 s34, v4\ns_and_b32 s35, s34, 0xff\ns_cmp_eq_u32 s35, {N_CHAIN}\ns_cbranch_scc0 {lp}")
    mark(A, opts, 1)
    dbg_time(A, opts, 5, 16)
    if lab:
        A(f"s_waitcnt lgkmcnt(0)\ns_lshr_b32 s34, s34, 8\ns_cmp_eq_u32 s34, 0\ns_cbranch_scc0 {lab}")


def gather_addr(A, ga0, ga1):
    A(f"s_mul_i32 s33, {s(S_W)}, {112 * 16}\nv_add_u32 {v(ga0)}, s33, v3")
    A(f"v_min_u32 {v(ga1)}, 47, v0\nv_lshlrev_b32 {v(ga1)}, 4, {v(ga1)}\ns_add_u32 s33, s33, 1024\nv_add_u32 {v(ga1)}, s33, {v(ga1)}")


def mem_loads(A, G, ga0, ga1, scm):
    A(f"buffer_load_dwordx4 {v(G, 4)}, {v(ga0)}, {s(WS, 4)}, {s(scm)} offen sc1")
    A(f"buffer_load_dwordx4 {v(G + 4, 4)}, {v(ga1)}, {s(WS, 4)}, {s(scm)} offen sc1")


def check8(A, G, t):
    A(f"v_max3_u32 {v(t)}, {v(G)}, {v(G + 1)}, {v(G + 2)}\nv_max3_u32 {v(t + 1)}, {v(G + 3)}, {v(G + 4)}, {v(G + 5)}")
    A(f"v_max3_u32 {v(t)}, {v(t)}, {v(G + 6)}, {v(G + 7)}\nv_max_u32 {v(t)}, {v(t)}, {v(t + 1)}\nv_cmp_eq_u32 vcc, -1, {v(t)}")


def gather_mem(A, opts, G0, G1, ga0, ga1, scm, t, memb, shadow, ka=""):
    lp, ok = A.new("poll"), A.new("ok")
    mem_loads(A, G0, ga0, ga1, scm)
    for x in shadow:
        A(x)
    A(f"{lp}:")
    for cur, other in ((G0, G1), (G1, G0)):
        mem_loads(A, other, ga0, ga1, scm)
        poll_guard(A)
        A(ka)
        A("s_waitcnt vmcnt(2)")
        A(f"ds_write_b128 {v(ga0)}, {v(cur, 4)} offset:{memb}\nds_write_b128 {v(ga1)}, {v(cur + 4, 4)} offset:{memb}")
        check8(A, cur, t)
        if opts.get("solo"):
            A(f"s_cbranch_vccz {ok}\ns_branch {ok}")
        A(f"s_cbranch_vccz {ok}" if cur == G0 else f"s_cbranch_vccnz {lp}")
    A(f"{ok}:")
    stamp(A, opts, 0)
    A("s_waitcnt lgkmcnt(0)\ns_barrier")


def notice_wait(A, opts, F, fa, sreg, off, shadow, sstep=None):
    if opts.get("solo"):
        for x in shadow:
            A(x)
        return
    depth = opts.get("nd", 3)
    lp, ok = A.new("nw"), A.new("nok")
    ld = lambda k: A(f"buffer_load_dword {v(F + k)}, {v(fa)}, {s(WS, 4)}, {s(sreg)} offen offset:{off} sc1")
    for k in range(depth - 1):
        ld(k)
    for x in shadow:
        A(x)
    if sstep is not None:
        A(f"s_cmp_eq_u32 {s(sstep)}, 0\ns_cbranch_scc1 {ok}")
    A(f"{lp}:")
    poll_guard(A)
    for k in range(depth):
        ld((k + depth - 1) % depth)
        A(f"s_waitcnt vmcnt({depth - 1})\nv_cmp_ne_u32 vcc, {s(S_NONCE)}, {v(F + k)}")
        A(f"s_cbranch_vccz {ok}" if k < depth - 1 else f"s_cbranch_vccnz {lp}")
    A(f"{ok}:")


def fetch_mem(A, opts, G, ga0, ga1, scm, t, memb, ka=""):
    lp = A.new("fm")
    A(f"{lp}:")
    mem_loads(A, G, ga0, ga1, scm)
    poll_guard(A)
    A(ka)
    A("s_waitcnt vmcnt(0)")
    A(f"ds_write_b128 {v(ga0)}, {v(G, 4)} offset:{memb}\nds_write_b128 {v(ga1)}, {v(G + 4, 4)} offset:{memb}")
    check8(A, G, t)
    if opts.get("stamps"):
        A("s_add_u32 s53, s53, 1")
    if not opts.get("solo"):
        A(f"s_cbranch_vccnz {lp}")
    stamp(A, opts, 0)
    A("s_waitcnt lgkmcnt(0)\ns_barrier")


def notice(A, val, addr, sreg, off, sc, lanes=64):
    if lanes < 64:
        A(f"s_mov_b64 exec, {hex((1 << lanes) - 1)}")
    A(f"buffer_store_dword {v(val)}, {v(addr)}, {s(WS, 4)}, {s(sreg)} offen offset:{off}{sc}")
    if lanes < 64:
        A("s_mov_b64 exec, -1")


def idx_reg(A, r):
    A(f"v_mov_b32 {v(r)}, 0x44444444\nv_mov_b32 v4, 0xeeeeeeee\nv_cmp_gt_u32 vcc, 8, v1\nv_cndmask_b32 {v(r)}, v4, {v(r)}, vcc")


def zero(r, n):
    return [f"v_mov_b64 {v(r + 2 * k, 2)}, 0" for k in range(n // 2)]


def emit_stream(A, stream, fill):
    for i, m_ in enumerate(stream):
        m_() if callable(m_) else A(m_)
        items = fill.get(i, [])
        for x in items:
            x() if callable(x) else A(x)
        if not items and i + 1 < len(stream):
            A("s_nop 1")


def gen_chain_a(A, opts):
    MEM, ACC, KEY, TSP, SC, PK, IDX = 4, 32, 60, 84, 92, 104, 108
    CK, TR3B, SPARE, FA, MK, MK3, TW0, TW3A, TW3B, TR0, TR3 = range(109, 120)
    XR, SW, SR, PX, PM = 0, 1, 2, 106, 107
    T = 104
    REG = 32768
    XK, TB, SB, MEMB = 0, 16384, 57344, 24576
    sS, sCM, sCP, sXA, sXB, sM0, sP0, sODD, sREG, sEF, sYP, sMB, sQ, sEX, sNP = 44, 45, 46, 47, 48, 49, 50, 51, 52, 54, 55, 56, 57, 58, 72
    vm = Cnt(A, "vmcnt", 63)
    A(f"s_and_b32 {s(sODD)}, {s(S_W)}, 1\ns_mul_i32 s33, {s(S_W)}, 7\ns_add_u32 {s(sP0)}, s33, {s(sODD)}\ns_lshr_b32 {s(sP0)}, {s(sP0)}, 1")
    A(f"s_lshl_b32 {s(sREG)}, {s(S_W)}, 15\ns_mov_b32 {s(sM0)}, {s(sREG)}")
    A(f"s_lshl_b32 {s(sXA)}, {s(sP0)}, 10\ns_add_u32 {s(sXA)}, {s(sXA)}, {XS}\ns_mul_i32 s33, {s(sODD)}, 4092\ns_sub_u32 {s(sXB)}, {s(sXA)}, s33")

    if opts.get("gemu"):
        A(f"s_mul_i32 {s(sXA)}, {s(S_ID)}, {28 * KB}\ns_mul_i32 s33, {s(S_W)}, {3 * KB}\ns_add_u32 {s(sXA)}, {s(sXA)}, s33\ns_add_u32 {s(sXA)}, {s(sXA)}, {opts['gemu'] << 20}\ns_mov_b32 {s(sXB)}, {s(sXA)}")

    def dma(k):
        aa, b = k // 4, k % 4
        pre = f"s_add_u32 s33, {s(sM0)}, {aa * 4096}\ns_mov_b32 m0, s33\n" if b == 0 else ""
        if b in (0, 3):
            pre += f"s_add_u32 s34, {s(sXB if b == 3 else sXA)}, {aa * 14336}\n"
        return pre + f"buffer_load_dwordx4 v3, {s(WS, 4)}, s34 offen offset:{b * 1024} sc1 lds"

    A(f"s_mul_i32 s34, {s(S_ID)}, {FRAG_H}\ns_mul_i32 s33, {s(S_W)}, {7 * 14 * KB}\ns_add_u32 s34, s34, s33")
    if AF:
        A(f"s_add_u32 s34, s34, {AF}")
    A(f"s_mul_i32 s35, {s(sODD)}, {14 * KB}\ns_add_u32 s35, s35, s34\ns_add_u32 s36, s34, {6 * 14 * KB}\ns_cmp_eq_u32 {s(sODD)}, 0\ns_cselect_b32 s36, s36, s34")
    A(f"s_mul_i32 s33, {s(S_ID)}, 7\nv_min_u32 v4, 6, v0\nv_add_u32 v4, s33, v4")

    def piece(kk):
        frag_loads(A, 35, [((i * 7 + kk) * 8 + 4 * u, i * 14 * KB + (2 * kk + u) * KB) for i in range(6) for u in range(2)])
        frag_loads(A, 36, [((42 + kk) * 8 + 4 * u, (2 * kk + u) * KB) for u in range(2)])

    A(f"s_lshl_b32 {s(sQ)}, {s(S_W)}, 11\ns_add_u32 {s(sMB)}, {s(sQ)}, {MEMB}\ns_add_u32 {s(sQ)}, {s(sQ)}, {CM}")

    def fetch():
        A(f"buffer_load_dwordx4 v3, {s(WS, 4)}, {s(sQ)} offen sc1 lds")
        if opts.get("sk3", 1):
            sk = A.new("f3")
            A(f"s_cmp_eq_u32 {s(S_W)}, 3\ns_cbranch_scc1 {sk}\nbuffer_load_dwordx4 v3, {s(WS, 4)}, {s(sQ)} offen offset:1024 sc1 lds\n{sk}:")
        else:
            A(f"buffer_load_dwordx4 v3, {s(WS, 4)}, {s(sQ)} offen offset:1024 sc1 lds")

    def first_inputs():
        for k in range(8):
            A(dma(k))
        A(f"s_mov_b32 m0, {s(sMB)}")
        fetch()

    if opts.get('late'):
        A('v_mov_b32 v20, v4\ns_mov_b32 s60, s35\ns_mov_b32 s61, s36')
        wait_prep(A, True)
        A('v_mov_b32 v4, v20\ns_mov_b32 s35, s60\ns_mov_b32 s36, s61')
        mark(A, opts, 3)
    load_pieces(A, [(14, lambda kk=kk: piece(kk)) for kk in range(7)], 4, (10, first_inputs))
    mark(A, opts, 2)
    idx_reg(A, IDX)
    A(f"v_and_b32 v4, 7, v1\nv_lshlrev_b32 v4, 4, v4\nv_lshl_add_u32 v4, v2, 7, v4\ns_lshl_b32 s33, {s(sP0)}, 9\nv_add_u32 {v(MK)}, s33, v4")
    A(f"s_mul_i32 s34, {s(sODD)}, 2044\ns_sub_u32 s34, {1536 + MEMB}, s34\nv_add_u32 {v(MK3)}, s34, {v(MK)}")
    A(f"v_lshrrev_b32 v4, 1, v2\nv_lshlrev_b32 v4, 3, v4\nv_xor_b32 v4, v4, v1\nv_lshlrev_b32 v4, 3, v4\nv_lshl_add_u32 v4, v2, 7, v4\nv_add_u32 {v(TW0)}, {s(sREG)}, v4")
    A(f"s_add_u32 s34, {s(sREG)}, {TB + 3072}\nv_lshrrev_b32 v4, 5, v0\nv_lshlrev_b32 v4, 2, v4\nv_xor_b32 v4, v4, v0\nv_lshlrev_b32 v4, 3, v4\nv_add_u32 {v(TW3A)}, s34, v4\nv_xor_b32 {v(TW3B)}, 64, {v(TW3A)}\nv_add_u32 {v(TW3B)}, 512, {v(TW3B)}")
    A("v_lshrrev_b32 v4, 2, v1\nv_and_b32 v5, 3, v1")
    A("v_lshrrev_b32 v6, 1, v2\nv_lshrrev_b32 v8, 1, v5\nv_xor_b32 v6, v6, v8\nv_lshlrev_b32 v6, 3, v6")
    A("v_and_b32 v7, 1, v2\nv_lshl_add_u32 v6, v7, 1, v6\nv_and_b32 v7, 1, v4\nv_add_u32 v6, v6, v7")
    A("v_lshrrev_b32 v7, 1, v4\nv_lshlrev_b32 v6, 3, v6\nv_lshl_add_u32 v6, v7, 9, v6\nv_lshl_add_u32 v6, v5, 7, v6")
    A(f"v_add_u32 {v(TR0)}, {s(sREG)}, v6")
    A("v_lshrrev_b32 v6, 1, v2\nv_xor_b32 v6, v6, v8\nv_lshlrev_b32 v6, 3, v6\nv_and_b32 v7, 1, v2\nv_lshl_add_u32 v6, v7, 1, v6\nv_and_b32 v7, 1, v4\nv_add_u32 v6, v6, v7")
    A("v_lshrrev_b32 v9, 1, v4\nv_lshl_add_u32 v6, v9, 2, v6\nv_lshlrev_b32 v6, 3, v6\nv_lshl_add_u32 v6, v8, 9, v6\nv_lshl_add_u32 v6, v9, 8, v6\nv_and_b32 v7, 1, v5\nv_lshl_add_u32 v6, v7, 7, v6")
    A(f"v_add_u32 {v(TR3)}, s34, v6\nv_xor_b32 {v(TR3B)}, 32, {v(TR3)}")
    A(f"s_lshl_b32 s33, {s(sODD)}, 2\nv_add_u32 v4, s33, v2")
    A(f"v_lshrrev_b32 v5, 2, v1\nv_lshlrev_b32 v5, 7, v5\nv_and_b32 v6, 3, v1\nv_lshl_add_u32 v5, v6, 2, v5\nv_lshl_add_u32 {v(PX)}, v4, 4, v5")
    A(f"v_lshlrev_b32 v4, 4, v4\nv_lshl_add_u32 v4, v1, 1, v4\nv_add_u32 v4, 512, v4\nv_and_b32 v5, 9, v1\nv_cmp_eq_u32 vcc, 0, v5\nv_mov_b32 v5, {OOB}\nv_cndmask_b32 {v(PM)}, v5, v4, vcc")
    A(f"v_lshrrev_b32 v4, 1, v2\nv_lshlrev_b32 v4, 5, v4\nv_add_u32 v4, v4, v1\ns_lshl_b32 s33, {s(sODD)}, 4\nv_add_u32 v4, s33, v4\nv_lshlrev_b32 v4, 3, v4")
    A(f"v_and_b32 v5, 1, v2\nv_lshl_add_u32 v4, v5, 2, v4\nv_add_u32 v13, {SB}, v4\nv_lshlrev_b32 v14, 3, v0\ns_lshl_b32 s33, {s(S_W)}, 11\nv_add_u32 v14, s33, v14")
    A(f"s_cmp_eq_u32 {s(S_W)}, 3\ns_cselect_b32 s34, 7, 15\nv_min_u32 {v(FA)}, s34, v1\nv_lshlrev_b32 {v(FA)}, 2, {v(FA)}")
    if opts.get("wl", 3) & 1:
        A(f"s_lshl_b32 s33, {s(S_ID)}, 2\ns_add_u32 s33, s33, {s(S_W)}\ns_lshl_b32 s33, s33, 7")
    else:
        A(f"s_lshl_b32 s33, {s(S_ID)}, 9\ns_lshl_b32 s34, {s(S_W)}, 6\ns_add_u32 s33, s33, s34")
    A(f"v_add_u32 {v(FA)}, s33, {v(FA)}\ns_mov_b32 {s(sEF)}, {EF}\ns_mov_b32 s53, 0")
    A("v_and_b32 v5, 1, v1\nv_lshlrev_b32 v5, 3, v5\nv_lshrrev_b32 v6, 3, v1\nv_lshl_add_u32 v5, v6, 2, v5\nv_and_b32 v6, 2, v1\nv_add_u32 v5, v5, v6\nv_bfe_u32 v6, v1, 2, 1\nv_add_u32 v5, v5, v6")
    chunk_pos(A, 12, 5, 2, 4)
    A(f"v_add_u32 v12, {s(sREG)}, v12")
    A(f"v_mov_b32 {v(XR)}, v12\nv_mov_b32 {v(SW)}, v14\nv_mov_b32 {v(SR)}, v13")
    A(f"s_mov_b32 {s(sS)}, 0\ns_mov_b32 {s(sCM)}, {CM}\ns_mul_i32 {s(sCP)}, {s(S_ID)}, 640\ns_add_u32 {s(sCP)}, {s(sCP)}, {CP}")
    if opts.get("wl", 3) & 2:
        A(f"s_lshr_b32 s33, {s(S_ID)}, 2\ns_lshl_b32 s33, s33, 7\ns_and_b32 s34, {s(S_ID)}, 3\ns_lshl_b32 s34, s34, 2\ns_add_u32 {s(sNP)}, s33, s34\ns_add_u32 {s(sNP)}, {s(sNP)}, {EF_P}")
    else:
        A(f"s_lshl_b32 {s(sNP)}, {s(S_ID)}, 2\ns_add_u32 {s(sNP)}, {s(sNP)}, {EF_P}")
    ahead = opts.get("yah", 1)
    A(f"s_mul_i32 {s(sYP)}, {s(S_ID)}, {28 * KB}\ns_mul_i32 s33, {s(S_W)}, {7 * KB}\ns_add_u32 {s(sYP)}, {s(sYP)}, s33\ns_add_u32 {s(sYP)}, {s(sYP)}, {YF + ahead * 16 * 28 * KB}")
    slow = A.new("a_slow")
    fresh = zero(ACC, 28) + [f"v_lshlrev_b32 {v(T)}, 3, v3"]
    for x in fresh:
        A(x)
    for k in range(opts.get("ay", 0)):
        A(f"s_sub_u32 s33, {s(sYP)}, {(ahead - k) * 16 * 28 * KB}\nbuffer_load_dword v20, {v(T)}, {s(WS, 4)}, s33 offen sc1")
    wait_start(A, opts, slow)
    ka = lambda n, r=ACC: "".join(f"{MF} {v(r, 4)}, {v(TSP, 4)}, {v(TSP, 4)}, {v(r, 4)}\n" for _ in range(n))

    def loop(sc):
        top, nxt, done, lp, ok, idle = (A.new(x) for x in ("a_top", "a_next", "a_done", "a_poll", "a_ok", "a_idle"))
        redo = A.new("a_redo")
        G0, G1 = KEY, KEY + 8
        A(f"s_branch {lp}")
        if opts.get("al"):
            A(f".p2align {opts['al']}")
        A(f"{top}:")
        notice_wait(A, opts, G1, FA, sEF, 0, fresh + [f"s_mov_b32 m0, {s(sMB)}"])
        if opts.get("nst"):
            stamp(A, opts, 1)
        fetch()
        A(f"{lp}:")
        if opts.get("stamps"):
            A("s_add_u32 s53, s53, 1")
        A(ka(opts.get("ka_m", 0), SC))
        A("s_waitcnt vmcnt(0)")
        stamp(A, opts, 0)
        A("s_barrier")
        if not opts.get("nst"):
            stamp(A, opts, 1)
        lg = Cnt(A, "lgkmcnt", 15)
        for kk in range(7):
            lg.op(f"ds_read_b128 {v(MEM + 4 * kk, 4)}, v3 offset:{MEMB + kk * 1024}", f"m{kk}")

        def tile(i):
            out = []
            for kk in range(7):
                txt = f"{SMF} {v(ACC + 4 * i, 4)}, {v(MEM + 4 * kk, 4)}, {wreg((i * 7 + kk) * 8, 8)}, {v(IDX)}" if not opts.get("noam") else "s_nop 2"
                out.append((lambda txt=txt, kk=kk: (lg.wait(f"m{kk}"), A(txt))) if i == 0 else txt)
            return out

        def score(b):
            out = []
            for tau in range(3):
                c = "0" if b == 0 else v(SC + 4 * tau, 4)
                txt = f"{MF} {v(SC + 4 * tau, 4)}, {v(TSP + 4 * (b % 2), 4)}, {v(KEY + 12 * (b % 2) + 4 * tau, 4)}, {c}"
                out.append((lambda txt=txt: (lg.wait(f"tr{b}", f"k{b}"), A(txt))) if tau == 0 else txt)
            return out

        def keys(b):
            K = KEY + 12 * (b % 2)
            out = [lambda aa=aa: lg.op(f"ds_read_b128 {v(K + 4 * aa, 4)}, {v(XR)} offset:{XK + aa * 4096 + b * 1024}", f"k{b}") for aa in range(2)]
            if b == 3:
                return out + [lambda x=x: lg.op(f"ds_read2_b32 {v(K + 8 + 2 * x, 2)}, {v(MK3)} offset0:{2 * x} offset1:{2 * x}", "k3") for x in range(2)]
            out.append(lambda: lg.op(f"ds_read_b128 {v(K + 8, 4)}, {v(MK)} offset:{MEMB + b * 512}", f"k{b}"))
            return out

        def epi(i):
            D = ACC + 4 * i
            out = [f"v_cvt_pk_bf16_f32 {v(PK)}, {v(D)}, {v(D + 1)}", f"v_cvt_pk_bf16_f32 {v(PK + 1)}, {v(D + 2)}, {v(D + 3)}"]
            if i < 6:
                return out + [lambda: lg.op(f"ds_write_b64 {v(TW0)}, {v(PK, 2)} offset:{TB + i * 512}", f"t{i}")]
            return out + [lambda: lg.op(f"ds_write_b64 {v(TW3A)}, {v(PK, 2)}", "t6"),
                          lambda: lg.op(f"ds_write2_b32 {v(TW3B)}, {v(PK + 1)}, {v(PK)} offset0:0 offset1:1", "t6")]

        def trs(b):
            if b == 3:
                return [lambda x=x: lg.op(f"ds_read_b64_tr_b16 {v(TSP + 4 + 2 * x, 2)}, {v((TR3, TR3B)[x])}", "tr3") for x in range(2)]
            return [lambda x=x: lg.op(f"ds_read_b64_tr_b16 {v(TSP + 4 * (b % 2) + 2 * x, 2)}, {v(TR0)} offset:{TB + b * 1024 + 32 * x}", f"tr{b}") for x in range(2)]

        stream = tile(0) + tile(1) + tile(2) + tile(3) + score(0) + tile(4) + tile(5) + score(1) + tile(6) + score(2)[:2]
        fill = {}

        def put(g, items):
            for k, it in enumerate(items):
                assert g + k not in fill, g + k
                fill[g + k] = [it]

        for k in range(0 if opts.get("pfx") else opts.get("apf", 1)):
            pre = f"s_add_u32 s33, {s(sREG)}, 24320\ns_mov_b32 m0, s33\ns_nop 0\n" if k == 0 else ""
            (put if opts.get("pfg", 1) >= 0 else lambda g, x: A(x[0]))(opts.get("pfg", 1) + 3 * k, [pre + f"buffer_load_dword {v(T)}, {s(WS, 4)}, {s(sYP)} offen offset:{128 // opts.get('apf', 1) * k} sc1 lds"])
        early = opts.get("ek", 1)
        put(1 if early else 4, keys(0))
        put(4 if early else 15, keys(1))
        put(11, epi(0))
        put(18, epi(1))
        put(21, trs(0))
        put(25, epi(2))
        k2 = keys(2)
        put(31, k2[:1])
        put(32, epi(3))
        put(35, trs(1))
        put(38, k2[1:])
        put(41, epi(4))
        put(47, epi(5))
        put(50, trs(2))
        k3 = keys(3)
        dup = [f"v_mov_b32 {v(r + 1)}, {v(r)}" for r in range(KEY + 12, KEY + 20, 2)]
        if early:
            put(45, k3[:2])
            put(52, [lambda x=dup[0]: (lg.wait("k3"), A(x)), dup[1], dup[2], k3[2], k3[3]])
            dup = dup[3:]
        else:
            put(52, k3)
        br = "s_nop 0" if opts.get("solo") else f"s_cbranch_vccnz {redo}"
        mx = lambda x, y, z: f"v_max3_u32 {v(CK)}, {v(x)}, {v(y)}, {v(z)}"
        cmpi = f"v_cmp_eq_u32 vcc, -1, {v(CK)}"
        for g, x in zip((7, 8, 9, 10), (mx(MEM, MEM + 4, MEM + 8), mx(CK, MEM + 12, MEM + 16), mx(CK, MEM + 20, MEM + 24), cmpi)):
            put(g, [x])
        fill[12].append(br)
        rest = [MEM + r for r in range(28) if r % 4]
        late = [mx(*rest[:3])] + [mx(CK, rest[r], rest[r + 1]) for r in range(3, 21, 2)] + [cmpi]
        lt = opts.get("lt", 1)
        if not lt:
            for g, x in zip((14, 15, 16, 17, 23, 24, 28, 29, 30, 37, 40) if early else (14, 23, 24, 28, 29, 30, 37, 40, 44, 45, 46), late):
                put(g, [x])
            fill[43 if early else 49].append(br)
        emit_stream(A, stream, fill)
        stamp(A, opts, 2)
        sw = []
        for tau in range(3):
            D = SC + 4 * tau
            sw += [f"v_permlane32_swap_b32 {v(D)}, {v(D + 2)}", f"v_permlane32_swap_b32 {v(D + 1)}, {v(D + 3)}", f"v_pk_add_f32 {v(D, 2)}, {v(D, 2)}, {v(D + 2, 2)}"]
        c0, c1, w0, w1 = epi(6)
        t0, t1 = trs(3)
        m2 = score(2)[2]
        seq = {0: [c0, c1, m2, w0, w1, t0, t1] + sw,
               1: [c0, c1, m2, w0, sw[0], w1, sw[1], t0, t1] + sw[2:],
               2: [c0, c1, w0, m2, w1, t0, t1] + sw,
               3: [c0, c1, m2, w0, w1, sw[0], t0, t1] + sw[1:],
               4: [c0, c1, w0, m2, w1, sw[0], t0, sw[1], t1] + sw[2:]}[opts.get("tv", 0)]
        for x in seq:
            x() if callable(x) else A(x)
        if not early:
            lg.wait("k3")
        for x in dup:
            A(x)
        A(f"s_cmp_ge_u32 {s(S_W)}, 2")
        pad = (lambda n: "\n".join(late[2 * n:2 * n + 2])) if lt else (lambda n: "s_nop 1")
        for n, x in enumerate(score(3)):
            x() if callable(x) else A(x)
            A(pad(n))
        for tau in range(3):
            A(f"ds_write_b64 {v(SW)}, {v(SC + 4 * tau, 2)} offset:{SB + 512 * tau}")
            if tau < 2:
                A(pad(3 + tau))
        if opts.get("pfx"):
            A(f"s_add_u32 s33, {s(sREG)}, 24320\ns_mov_b32 m0, s33\nv_lshlrev_b32 {v(T)}, 3, v3\nbuffer_load_dword {v(T)}, {s(WS, 4)}, {s(sYP)} offen sc1 lds\ns_cmp_ge_u32 {s(S_W)}, 2")
        if lt:
            A(late[10] + "\n" + br)
        A("s_waitcnt lgkmcnt(0)\ns_barrier")
        stamp(A, opts, 3)
        R = MEM + 8
        nb = opts.get("brp", 0)
        for n in range(6):
            tau, hf = n // 2, n % 2
            if n == nb:
                A(f"s_cbranch_scc1 {idle}")
            A(f"ds_read2st64_b32 {v(R + 4 + 4 * tau + 2 * hf, 2)}, {v(SR)} offset0:{2 * tau + 16 * hf} offset1:{2 * tau + 16 * hf + 8}")
        for tau in range(3):
            A(f"s_waitcnt lgkmcnt({4 - 2 * tau})")
            A(f"v_pk_add_f32 {v(R + 4 + 4 * tau, 2)}, {v(R + 4 + 4 * tau, 2)}, {v(R + 6 + 4 * tau, 2)}")
            A(f"v_add_f32 {v(R + tau)}, {v(R + 4 + 4 * tau)}, {v(R + 5 + 4 * tau)}")
        mx, sm = T, T + 1
        A(f"v_max3_f32 {v(mx)}, {v(R)}, {v(R + 1)}, {v(R + 2)}")
        for rot in (8, 4, 2, 1):
            A(f"v_max_f32_dpp {v(mx)}, {v(mx)}, {v(mx)} row_ror:{rot} row_mask:0xf bank_mask:0xf")
        for tau in (2, 0, 1):
            A(f"v_sub_f32 {v(R + tau)}, {v(R + tau)}, {v(mx)}")
        for tau in (2, 0, 1):
            A(f"v_exp_f32 {v(R + tau)}, {v(R + tau)}")
        A(f"v_fma_f32 {v(sm)}, 0.5, {v(R + 2)}, {v(R)}")
        A(f"v_mov_b32_dpp {v(R + 3)}, {v(R + 2)} quad_perm:[1,0,3,2] row_mask:0xf bank_mask:0xf")
        A(f"v_add_f32 {v(sm)}, {v(sm)}, {v(R + 1)}")
        for rot in (8, 4, 2, 1):
            A(f"v_add_f32_dpp {v(sm)}, {v(sm)}, {v(sm)} row_ror:{rot} row_mask:0xf bank_mask:0xf")
        A(f"v_rcp_f32 {v(sm)}, {v(sm)}")
        for k, addr in ((0, PX), (2, PM)):
            A(f"v_mul_f32 {v(R + k)}, {v(R + k)}, {v(sm)}\nv_mul_f32 {v(R + k + 1)}, {v(R + k + 1)}, {v(sm)}")
            A(f"v_cvt_pk_bf16_f32 {v(R + k)}, {v(R + k)}, {v(R + k + 1)}\nv_min_u32 {v(R + k)}, -2, {v(R + k)}")
            A(f"buffer_store_dword {v(R + k)}, {v(addr)}, {s(WS, 4)}, {s(sCP)} offen{sc}")
        A(f"{nxt}:")
        stamp(A, opts, 4)
        collect_lds(A, opts, sREG, 22528, T)
        A(f"s_add_u32 {s(sS)}, {s(sS)}, 1\ns_add_u32 {s(sQ)}, {s(sQ)}, {0 if opts.get('solo') else 8192}\ns_add_u32 {s(sCP)}, {s(sCP)}, {0 if opts.get('solo') else 10240}")
        adv = 0 if opts.get("solo") else EF_STEP
        A(f"s_add_u32 {s(sEF)}, {s(sEF)}, {adv}\ns_add_u32 {s(sXA)}, {s(sXA)}, {28 * KB * (16 if opts.get('gemu') else 1)}\ns_add_u32 {s(sXB)}, {s(sXB)}, {28 * KB * (16 if opts.get('gemu') else 1)}\ns_add_u32 {s(sYP)}, {s(sYP)}, {16 * 28 * KB}")
        A("s_barrier")
        if not opts.get("nodma"):
            for k in range(8):
                A(dma(k))
        if opts.get("asl"):
            A(f"s_sleep {opts['asl']}")
        A(f"s_cmp_eq_u32 {s(sS)}, 63\ns_cbranch_scc0 {top}")
        A("s_waitcnt vmcnt(0)")
        A("s_mov_b32 s84, s53" if opts.get("stamps") else "")
        fetch_lds(A, opts, sREG, 22528, 10)
        flush_stamps(A, opts, 10)
        A("s_endpgm")
        A(f"{redo}:\ns_mov_b32 m0, {s(sMB)}\ns_waitcnt lgkmcnt(0)\ns_barrier")
        fetch()
        poll_guard(A)
        for x in fresh:
            A(x)
        A(f"s_branch {lp}")
        A(f"{idle}:\ns_waitcnt lgkmcnt(0)")
        A(f"v_lshrrev_b32 {v(T + 1)}, 4, v3\nv_min_u32 {v(T + 1)}, 13, {v(T + 1)}\nv_lshl_add_u32 {v(T + 1)}, {v(T + 1)}, 9, {s(sNP)}\nv_mov_b32 {v(T)}, {s(S_NONCE)}")
        A("s_nop 3\n" * opts.get("la", 6) if opts.get("lan") else ka(opts.get("la", 6)))
        w3 = A.new("a_w3")
        A(f"s_cmp_eq_u32 {s(S_W)}, 2\ns_cbranch_scc0 {w3}")
        notice(A, T, T + 1, sEF, 0, sc)
        A(f"s_branch {nxt}\n{w3}:")
        A(ka(opts.get("ka_sm", 0)))
        A(f"s_branch {nxt}")

    loop("")
    A(f"{slow}:")
    loop(" sc1")


def gen_chain_b(A, opts):
    MEM, ZACC, ZOP, Y, OACC, IDX = 4, 32, 60, 76, 108, 132
    GA0, GA1, PXA, PMA, RW, RR0, RR1, MO, WR, FA, FV = range(133, 144)
    FM, NZ, NA, FP = 128, 129, 130, 131
    T, WST, V0 = 116, 144, 176
    RED, WL = 8192, 12288
    sS, sCM, sCP, sY, sEF, sC, sFY = 44, 45, 46, 47, 48, 50, 51
    vm = Cnt(A, "vmcnt", 63)
    A(f"s_sub_u32 {s(sC)}, {s(S_ID)}, 16")
    A(f"s_mul_i32 s34, {s(S_W)}, {4 * FRAG_H}\ns_mul_i32 s33, {s(sC)}, {28 * KB}\ns_add_u32 s34, s34, s33\ns_add_u32 s34, s34, {BF}")
    A(f"s_mul_i32 s36, {s(S_W)}, {28 * KB}\ns_add_u32 s36, s36, {WL}\nv_add_u32 {v(WR)}, s36, v3\ns_add_u32 s37, s34, {3 * FRAG_H}")
    A(f"s_mul_i32 s33, {s(S_W)}, 28\ns_lshr_b32 s35, {s(sC)}, 1\ns_add_u32 s33, s33, s35\ns_add_u32 s33, s33, 112\nv_and_b32 v4, 3, v0\nv_mul_u32_u24 v4, 7, v4\nv_add_u32 v4, s33, v4")

    def piece(hh):
        if hh < 3:
            frag_loads(A, 34, [((hh * 28 + k) * 4, hh * FRAG_H + k * KB) for k in range(28)], v0=V0, cap=opts.get('bcap'))
            return
        for q in range(7):
            A("s_mov_b32 m0, s36\ns_add_u32 s36, s36, 4096")
            for k in range(4):
                A(f"buffer_load_dwordx4 v3, {s(WS, 4)}, s37 offen offset:{k * 1024} sc1 lds")
            A("s_add_u32 s37, s37, 4096")

    if opts.get('late'):
        A('v_mov_b32 v20, v4\ns_mov_b32 s60, s34\ns_mov_b32 s61, s36\ns_mov_b32 s62, s37')
        wait_prep(A, True)
        A('v_mov_b32 v4, v20\ns_mov_b32 s34, s60\ns_mov_b32 s36, s61\ns_mov_b32 s37, s62')
        mark(A, opts, 3)
    def touch_y():
        A(f"s_mul_i32 s33, {s(S_W)}, {4 * 28 * KB}\ns_lshl_b32 s35, {s(sC)}, 11\ns_add_u32 s33, s33, s35\ns_add_u32 s33, s33, {YF}")
        A(f"v_mul_u32_u24 v10, {28 * KB}, v2\nv_lshl_add_u32 v10, v1, 7, v10")
        A(f"buffer_load_dword v11, v10, {s(WS, 4)}, s33 offen sc1\ns_add_u32 s33, s33, {16 * 28 * KB}\nbuffer_load_dword v11, v10, {s(WS, 4)}, s33 offen sc1")

    load_pieces(A, [(28, lambda hh=hh: piece(hh)) for hh in range(4)], 4, (2, touch_y) if opts.get("by", 0) else None, True)
    gather_addr(A, GA0, GA1)
    idx_reg(A, IDX)
    A("v_and_b32 v4, 7, v1\nv_lshrrev_b32 v5, 3, v1\nv_lshrrev_b32 v6, 1, v2\nv_and_b32 v7, 1, v2")
    A(f"s_mul_i32 s33, {s(S_W)}, 2560")
    A(f"v_mul_u32_u24 v8, 640, v6\nv_lshl_add_u32 v8, v4, 4, v8\nv_lshl_add_u32 v8, v7, 8, v8\nv_lshl_add_u32 v8, v5, 7, v8\nv_add_u32 {v(PXA)}, s33, v8")
    A(f"v_lshl_add_u32 v8, v6, 1, v5\nv_mul_u32_u24 v8, 640, v8\nv_lshl_add_u32 v8, v4, 4, v8\ns_add_u32 s33, s33, 512\nv_add_u32 {v(PMA)}, s33, v8")
    A(f"v_lshl_add_u32 v8, v6, 1, v7\nv_xor_b32 v8, v0, v8\nv_lshlrev_b32 v8, 4, v8\ns_lshl_b32 s33, {s(S_W)}, 10\ns_add_u32 s33, s33, {RED}\nv_add_u32 {v(RW)}, s33, v8")
    A("v_lshrrev_b32 v4, 5, v0\nv_bfe_u32 v5, v0, 2, 3\nv_and_b32 v6, 3, v0")
    A("v_and_b32 v7, 1, v6\nv_lshrrev_b32 v8, 2, v5")
    A(f"v_lshlrev_b32 v9, 5, v7\nv_lshl_add_u32 v9, v8, 4, v9\ns_and_b32 s33, {s(S_W)}, 1\ns_lshl_b32 s33, s33, 3\nv_add_u32 v9, s33, v9")
    A("v_lshrrev_b32 v10, 1, v6\nv_lshl_add_u32 v9, v10, 2, v9\nv_lshl_add_u32 v9, v4, 1, v9")
    A("v_lshl_add_u32 v10, v7, 1, v8\nv_xor_b32 v9, v9, v10\nv_lshlrev_b32 v9, 4, v9\nv_and_b32 v10, 3, v5\nv_lshl_add_u32 v9, v10, 2, v9")
    A(f"v_add_u32 {v(RR0)}, {RED}, v9\nv_xor_b32 {v(RR1)}, 16, {v(RR0)}")
    A(f"s_lshl_b32 s33, {s(sC)}, 9\ns_and_b32 s35, {s(S_W)}, 1\ns_lshl_b32 s35, s35, 8\ns_add_u32 s33, s33, s35\nv_lshl_add_u32 {v(MO)}, v0, 2, s33")
    A(f"v_lshlrev_b32 {v(FA)}, 7, v1\nv_mov_b32 {v(FV)}, 0")
    A(f"s_mov_b32 {s(sS)}, 0\ns_mov_b32 {s(sCM)}, {CM}\ns_mov_b32 {s(sCP)}, {CP}")
    A(f"s_mul_i32 s33, {s(S_W)}, {4 * 28 * KB}\ns_lshl_b32 s35, {s(sC)}, 11\ns_add_u32 {s(sY)}, s33, s35\ns_add_u32 {s(sY)}, {s(sY)}, {YF}")
    A(f"s_mov_b32 {s(sFY)}, {FY}\ns_mov_b32 {s(sEF)}, {EF}\ns_mov_b32 s53, 0\ns_mov_b32 s55, 0")
    pw = 1
    A(f"v_and_b32 v4, 3, v0\nv_and_b32 v5, 1, v0\nv_add_u32 v5, 16, v5\ns_lshl_b32 s33, {s(sC)}, 9\ns_add_u32 s33, s33, {EF_P}")
    if opts.get("wl", 3) & 2:
        A(f"s_lshl_b32 s35, {s(S_W)}, 7\ns_add_u32 s33, s33, s35")
    else:
        A(f"s_lshl_b32 s35, {s(S_W)}, 2\nv_add_u32 v4, s35, v4")
    A(f"v_cmp_gt_u32 vcc, 32, v0\nv_cndmask_b32 {v(FP)}, v5, v4, vcc\nv_lshl_add_u32 {v(FP)}, {v(FP)}, 2, s33")
    A(f"s_and_b32 s33, {s(sC)}, 3\ns_lshl_b32 s33, s33, 2\ns_add_u32 s33, s33, {s(S_W)}\ns_lshl_b32 s33, s33, 2\ns_lshr_b32 s35, {s(sC)}, 2\ns_lshl_b32 s35, s35, {7 if opts.get('wl', 3) & 1 else 6}\ns_add_u32 s33, s33, s35")
    A(f"s_add_u32 s33, s33, {EF_STEP}\nv_min_u32 {v(NA)}, 15, v0\nv_lshl_add_u32 {v(NA)}, {v(NA)}, 9, s33\nv_mov_b32 {v(NZ)}, {s(S_NONCE)}")
    if opts.get("gemu"):
        A(f"v_lshlrev_b32 v126, 3, v3\ns_lshl_b32 s57, {s(sC)}, 2\ns_add_u32 s57, s57, {s(S_W)}\ns_lshl_b32 s57, s57, 13\ns_add_u32 s57, s57, {(opts['gemu'] << 20) + (opts.get('gah', 2) - 1) * 16 * 28 * KB}")
    slow = A.new("b_slow")
    wait_start(A, opts, slow, (FA, sFY))
    ka = lambda n: "".join(f"{MF} {v(ZACC + 8, 4)}, {v(ZOP, 4)}, {v(ZOP, 4)}, {v(ZACC + 8, 4)}\n" for _ in range(n))

    def loop(sc):
        top, nxt, last, noy, yok, ypoll, noflag, gm, gp, idle, noz = (A.new("b_" + x) for x in ("top", "next", "last", "noy", "yok", "ypoll", "nofl", "gm", "gp", "idle", "noz"))
        if opts.get("al"):
            A(f"s_branch {top}\n.p2align {opts['al']}")
        A(f"{top}:")
        if opts.get("ndb", 1):
            notice_wait(A, dict(opts, nd=opts.get('ndb', 1)), WST + 8, FM, sEF, 0, zero(ZACC, 28) + zero(OACC, 8), sS)
        else:
            for x in (zero(ZACC, 28) + zero(OACC, 8))[:opts.get("bz", 18)]:
                A(x)
        fetch_mem(A, dict(opts, stamps=0) if opts.get('nst') else opts, WST, GA0, GA1, sCM, T, 0, '\n'.join((zero(ZACC, 28) + zero(OACC, 8))[opts.get('bz', 18):]))
        lg = Cnt(A, "lgkmcnt", 15)
        for kk in range(7):
            lg.op(f"ds_read_b128 {v(MEM + 4 * kk, 4)}, v3 offset:{kk * 1024}", f"m{kk}")
        bulk = []
        for hh in range(4):
            for vv in range(0 if opts.get("noy") else 2):
                pre = f"s_add_u32 s33, {s(sY)}, {hh * 28 * KB}\n" if vv == 0 else ""
                bulk.append(pre + f"buffer_load_dwordx4 {v(Y + 16 * (hh // 2) + 8 * vv + 4 * (hh % 2), 4)}, v3, {s(WS, 4)}, s33 offen offset:{vv * 1024} {'nt' if opts.get('ynt') == 1 else 'sc1 nt' if opts.get('ynt') else 'sc1'}")
        order = []
        regs = [(t, kk) for t in range(6) for kk in range(7)]
        for n in range(14):
            order += regs[3 * n:3 * n + 3] + [(6 + n // 7, n % 7)]
        accof = lambda t: ZACC + 4 * (t if t < 7 else 0)
        stream, pos, seen = [], {}, set()
        for t, kk in order:
            pos[(t, kk)] = len(stream)
            n = (t - 6) * 7 + kk
            w = wreg((t * 7 + kk) * 8, 8, 256, V0) if t < 6 else v(WST + 8 * (n % 4), 8)
            txt = f"{SMF} {v(accof(t), 4)}, {v(MEM + 4 * kk, 4)}, {w}, {v(IDX)}" if not opts.get("nozm") else "s_nop 2"
            tags = ([f"m{kk}"] if kk not in seen else []) + ([f"w{n}"] if t >= 6 else [])
            seen.add(kk)
            stream.append((lambda txt=txt, tags=tags: (lg.wait(*tags), A(txt))) if tags else txt)

        def wread(n):
            return [lambda u=u: lg.op(f"ds_read_b128 {v(WST + 8 * (n % 4) + 4 * u, 4)}, {v(WR)} offset:{(n // 7) * 14 * KB + (2 * (n % 7) + u) * KB}", f"w{n}") for u in range(2)]

        def epi(t):
            hh, vv = t // 2, t % 2
            D = accof(t)
            out = [f"v_cvt_pk_bf16_f32 {v(ZOP + 8 * vv + 4 * (hh // 2) + 2 * b + hh % 2)}, {v(D + 2 * b)}, {v(D + 2 * b + 1)}" for b in range(2)]
            return out + (zero(D, 4) if t == 0 else [])

        y = bulk + ["s_nop 0"] * (8 - len(bulk))
        for x in wread(0) + wread(1):
            x()
        npre = opts.get("ypre", 2)
        for x in y[:npre]:
            A(x)
        if opts.get("bsl"):
            A(f"s_sleep {opts['bsl']}")
        fill = {}
        for n in range(2, 14):
            spread(fill, 4 * (n - 2), wread(n), per=1)
        g = 2
        for x in y[npre:]:
            while g in fill:
                g += 1
            fill[g] = [x]
            g += opts.get("ygap", 1)
        if opts.get("gemu"):
            while g in fill:
                g += 1
            fill[g] = [f"s_mov_b32 m0, 7168\ns_add_u32 s57, s57, {16 * 28 * KB}\nbuffer_load_dword v126, {s(WS, 4)}, s57 offen sc1 lds"]
        late = []
        for t in sorted(range(8), key=lambda t: pos[(t, 6)]):
            g = pos[(t, 6)] + 4
            for x in epi(t):
                while g in fill:
                    g += 1
                if g < len(stream):
                    fill[g] = [x]
                    assert t != 0 or g < pos[(7, 0)] - 1
                else:
                    late.append(x)
        emit_stream(A, stream, fill)
        for x in late:
            A(x)
        if not opts.get("nst"):
            stamp(A, opts, 1)

        def p_loads(P):
            A(f"buffer_load_dwordx4 {v(P, 4)}, {v(PXA)}, {s(WS, 4)}, {s(sCP)} offen sc1")
            A(f"buffer_load_dwordx4 {v(P + 4, 4)}, {v(PXA)}, {s(WS, 4)}, {s(sCP)} offen offset:1280 sc1")
            A(f"buffer_load_dwordx4 {v(P + 8, 4)}, {v(PMA)}, {s(WS, 4)}, {s(sCP)} offen sc1")

        cur = MEM
        ok = A.new("b_ok")
        notice_wait(A, dict(opts, nd=opts.get('ndp', opts['nd'])), MEM + 12, FP, sEF, 0, [])
        if opts.get("nst"):
            stamp(A, opts, 1)
        A(f"{gp}:")
        p_loads(cur)
        poll_guard(A)
        A(ka(opts.get("ka_p", 0)))
        if opts.get("stamps"):
            A("s_add_u32 s55, s55, 1")
        mx3 = lambda d, x, y, z: f"v_max3_u32 {v(d)}, {v(x)}, {v(y)}, {v(z)}"
        cmpi = f"v_cmp_eq_u32 vcc, -1, {v(T)}"
        if opts.get("bdef", 1):
            chk = ["s_nop 0"] * 4 + [mx3(T, cur, cur + 4, cur + 8), cmpi]
        else:
            chk = ["s_nop 0", mx3(T, cur, cur + 1, cur + 2), mx3(T, T, cur + 3, cur + 4), mx3(T + 1, cur + 5, cur + 6, cur + 7), mx3(T + 2, cur + 8, cur + 9, cur + 10),
                   mx3(T, T, T + 1, cur + 11) + f"\nv_max_u32 {v(T)}, {v(T)}, {v(T + 2)}\n" + cmpi]
        k = 0
        for kap in range(3):
            A(f"s_waitcnt vmcnt({2 - kap})")
            if kap == 0:
                stamp(A, opts, 2)
            for vv in range(2):
                b = v(Y + 16 * kap + 8 * vv, 8) if kap < 2 else v(ZOP + 8 * vv, 8)
                A(f"{SMF} {v(OACC + 4 * vv, 4)}, {v(cur + 4 * kap, 4)}, {b}, {v(IDX)}")
                if opts.get("lb") == 10 + k:
                    notice(A, NZ, NA, sEF, 0, sc)
                A(chk[k])
                k += 1
        if not opts.get("solo"):
            A(f"s_cbranch_vccnz {ok}")
        lb = opts.get("lb", 2) if pw else -1
        if lb == 0:
            notice(A, NZ, NA, sEF, 0, sc)
        for q in range(4):
            A(f"v_permlane32_swap_b32 {v(OACC + q)}, {v(OACC + 4 + q)}")
        if lb == 1:
            notice(A, NZ, NA, sEF, 0, sc)
        for q in (0, 2):
            A(f"v_pk_add_f32 {v(OACC + q, 2)}, {v(OACC + q, 2)}, {v(OACC + 4 + q, 2)}")
        A(f"ds_write_b128 {v(RW)}, {v(OACC, 4)}")
        if 2 <= lb < 9:
            A(ka(lb - 2))
            notice(A, NZ, NA, sEF, 0, sc)
            if opts.get("nst"):
                stamp(A, opts, 0)
        if opts.get("bdef", 1) and not opts.get("solo"):
            A(mx3(T, cur + 1, cur + 2, cur + 3) + "\n" + mx3(T + 1, cur + 5, cur + 6, cur + 7) + "\n" + mx3(T + 2, cur + 9, cur + 10, cur + 11))
            A(mx3(T, T, T + 1, T + 2) + "\n" + cmpi)
            if lb == 9:
                notice(A, NZ, NA, sEF, 0, sc)
            A(f"s_cbranch_vccnz {ok}")
        A(f"s_add_u32 s33, {s(sCM)}, 8192\ns_cmp_ge_u32 {s(S_W)}, 2\ns_waitcnt lgkmcnt(0)\ns_barrier")
        stamp(A, opts, 3)
        A(f"s_cbranch_scc1 {idle}")
        R = ZACC
        if not pw:
            A(f"s_cmp_eq_u32 {s(S_W)}, 0\ns_cbranch_scc0 {noflag}")
            notice(A, NZ, NA, sEF, 0, sc)
            A(f"{noflag}:")
        A(f"ds_read2st64_b32 {v(R, 2)}, {v(RR0)} offset0:0 offset1:4\nds_read2st64_b32 {v(R + 4, 2)}, {v(RR0)} offset0:8 offset1:12")
        A(f"ds_read2st64_b32 {v(R + 2, 2)}, {v(RR1)} offset0:0 offset1:4\nds_read2st64_b32 {v(R + 6, 2)}, {v(RR1)} offset0:8 offset1:12")
        A("s_waitcnt lgkmcnt(2)")
        A(f"v_pk_add_f32 {v(R, 2)}, {v(R, 2)}, {v(R + 4, 2)}\nv_add_f32 {v(R)}, {v(R)}, {v(R + 1)}")
        A("s_waitcnt lgkmcnt(0)")
        A(f"v_pk_add_f32 {v(R + 2, 2)}, {v(R + 2, 2)}, {v(R + 6, 2)}\nv_add_f32 {v(R + 2)}, {v(R + 2)}, {v(R + 3)}")
        A(f"v_cvt_pk_bf16_f32 {v(R)}, {v(R)}, {v(R + 2)}\nv_min_u32 {v(R)}, -2, {v(R)}")
        A(f"buffer_store_dword {v(R)}, {v(MO)}, {s(WS, 4)}, s33 offen{sc}")
        A(f"{nxt}:")
        stamp(A, opts, 4)
        collect(A, opts, 120)
        A(f"s_add_u32 {s(sS)}, {s(sS)}, 1\ns_add_u32 {s(sCM)}, {s(sCM)}, {0 if opts.get('solo') else 8192}\ns_add_u32 {s(sCP)}, {s(sCP)}, {0 if opts.get('solo') else 10240}")
        A(f"s_add_u32 {s(sY)}, {s(sY)}, {16 * 28 * KB}\ns_add_u32 {s(sEF)}, {s(sEF)}, {0 if opts.get('solo') else EF_STEP}")
        A("s_barrier")
        if opts.get("stamps"):
            m8 = A.new("m8")
            A(f"s_cmp_eq_u32 {s(sS)}, 8\ns_cbranch_scc0 {m8}")
            mark(A, opts, 5)
            A(f"{m8}:")
        A(f"s_cmp_eq_u32 {s(sS)}, 63\ns_cbranch_scc0 {top}")
        if opts.get("fast63", 1):
            A(f"s_cmp_ge_u32 {s(S_W)}, 2\ns_cbranch_scc1 {last}\ns_mov_b32 s33, {XM + 63 * 8192}")
            A(f"buffer_store_dword {v(R)}, {v(MO)}, {s(WS, 4)}, s33 offen sc1\n{last}:")
        A("s_waitcnt vmcnt(0)")
        A("s_mov_b32 s84, s53\ns_mov_b32 s85, s55" if opts.get("stamps") else "")
        dbg_time(A, opts, 6, 16)
        amp_mark(A, opts, 3)
        amp_spin(A, opts, 16, (0, 1, 2, 3))
        flush_stamps(A, opts, 120)
        A("s_endpgm")
        A(f"{ok}:")
        for x in zero(OACC, 8):
            A(x)
        A(f"s_branch {gp}")
        A(f"{idle}:")
        A(ka(opts.get("ka_f", 0)))
        A(f"s_branch {nxt}")

    loop("")
    A(f"{slow}:")
    loop(" sc1")


def touch_slots(A, sstep, ahead, which=(0, 1, 2)):
    for base, stride, n, last in [((EF, EF_STEP, 2, 63), (CP, 10240, 2, 62), (CM, 8192, 1, 63))[k] for k in which]:
        A(f"s_add_u32 s33, {s(sstep)}, {ahead}\ns_min_u32 s33, s33, {last}\ns_mul_i32 s33, s33, {stride}\ns_add_u32 s33, s33, {base}")
        for q in range(n):
            va = 8 if base == CP and q else 6
            A(f"buffer_load_dword v10, {v(va)}, {s(WS, 4)}, s33 offen sc1\ns_add_u32 s33, s33, 8192")


def gen_chain_f(A, opts):
    G, GA0, GA1, T, WA = 4, 12, 13, 14, 20
    sS, sCM, sXM = 44, 45, 46
    t0 = opts.get("t0", 1)
    if t0:
        A("v_lshlrev_b32 v6, 3, v3")
        touch_slots(A, S_W, 0, (0,))
    fw = A.new('f_go')
    A(f"v_lshlrev_b32 v21, 7, v1\ns_mov_b32 {s(sXM)}, {FY + opts.get('tfy', 0) * FL_STEP}")
    wait_start(A, {}, fw, (21, sXM) if opts.get('tfy', 0) >= 0 else None, opts.get('hsl', 24))
    A(f'{fw}:')
    if t0:
        A("v_lshlrev_b32 v6, 3, v3\nv_min_u32 v8, 1920, v6")
        touch_slots(A, S_W, 0)
    gather_addr(A, GA0, GA1)
    A(f"s_mul_i32 s33, {s(S_W)}, {7 * KB}\nv_lshlrev_b32 {v(WA)}, 3, v3\nv_add_u32 {v(WA)}, s33, {v(WA)}")

    def touch_all():
        if not opts.get("nopf"):
            A(f"s_add_u32 s33, {s(sS)}, 2\ns_min_u32 s33, s33, 63\ns_mul_i32 s33, s33, {28 * KB}\ns_add_u32 s33, s33, {XS}")
            A(f"buffer_load_dword v16, {v(WA)}, {s(WS, 4)}, s33 offen sc1")

    for first in (-2, -1, 0):
        A(f"s_mov_b32 {s(sS)}, {first}")
        touch_all()
    A(f"s_mov_b32 {s(sS)}, 1\ns_mov_b32 {s(sCM)}, {CM + 8192}\ns_mov_b32 {s(sXM)}, {XM + 8192}")
    lp = A.new("f_poll")
    A(f"{lp}:")
    mem_loads(A, G, GA0, GA1, sCM)
    poll_guard(A)
    A("s_waitcnt vmcnt(0)")
    check8(A, G, T)
    got = A.new("f_got")
    A(f"s_cbranch_vccz {got}\ns_sleep {opts.get('fsl', 0)}\ns_branch {lp}\n{got}:")
    A(f"buffer_store_dwordx4 {v(G, 4)}, {v(GA0)}, {s(WS, 4)}, {s(sXM)} offen sc1")
    A(f"buffer_store_dwordx4 {v(G + 4, 4)}, {v(GA1)}, {s(WS, 4)}, {s(sXM)} offen sc1")
    touch_all()
    A(f"s_add_u32 {s(sS)}, {s(sS)}, 1\ns_add_u32 {s(sCM)}, {s(sCM)}, 8192\ns_add_u32 {s(sXM)}, {s(sXM)}, 8192")
    A(f"s_cmp_lt_u32 {s(sS)}, {63 if opts.get('fast63', 1) else 64}\ns_cbranch_scc1 {lp}")
    if opts.get("wb"):
        A(f"s_cmp_eq_u32 {s(S_W)}, 0\ns_cbranch_scc0 L_exit\ns_waitcnt vmcnt(0)\nbuffer_wbl2 sc1\ns_waitcnt vmcnt(0)")
    A("s_endpgm")


def gen_chain_g(A, opts):
    sS, sEF, sF = 44, 45, 46
    toucher = A.new("g_touch")
    A(f"s_cmp_eq_u32 {s(S_W)}, 1\ns_cbranch_scc1 {toucher}\ns_cmp_eq_u32 {s(S_W)}, 0\ns_cbranch_scc0 L_exit")
    A(f"s_mov_b32 {s(sS)}, 0\ns_mov_b32 {s(sEF)}, {EF + EF_P + 64}\ns_mov_b32 {s(sF)}, {FY + FL_STEP}")
    A(f"v_lshlrev_b32 v6, 7, v1\nv_min_u32 v7, 55, v0\nv_lshlrev_b32 v7, 7, v7\nv_mov_b32 v14, {s(S_NONCE)}\nv_mov_b32 v15, {s(S_NONCE)}")
    slow = A.new("g_slow")
    chain_mode(A, {}, Cnt(A, "vmcnt", 63), slow)

    def loop(sc):
        top, ok = A.new("g_top"), A.new("g_ok")
        go = A.new("g_go")
        A(f"{top}:\ns_cmp_eq_u32 {s(sS)}, 2\ns_cbranch_scc0 {go}")
        wait_prep(A, False, False)
        A(f"{go}:")
        top2 = A.new("g_poll")
        A(f"{top2}:")
        flag_load(A, 10, 6, s(sF))
        poll_guard(A)
        A("s_waitcnt vmcnt(0)")
        flag_missing(A, [10])
        A(f"s_cbranch_vccz {ok}\ns_sleep 2\ns_branch {top2}\n{ok}:")
        A(f"buffer_store_dwordx2 v[14:15], v7, {s(WS, 4)}, {s(sEF)} offen{sc}")
        A(f"s_add_u32 {s(sS)}, {s(sS)}, 1\ns_add_u32 {s(sEF)}, {s(sEF)}, {EF_STEP}\ns_add_u32 {s(sF)}, {s(sF)}, {FL_STEP}")
        A(f"s_cmp_lt_u32 {s(sS)}, 63\ns_cbranch_scc1 {top}\ns_endpgm")

    loop("")
    A(f"{slow}:")
    loop(" sc1")

    A(f"{toucher}:")
    go = A.new("t_go")
    A(f"v_lshlrev_b32 v20, 7, v1\ns_mov_b32 {s(sF)}, {FY + opts.get('tfy', 0) * FL_STEP}")
    wait_start(A, {}, go, (20, sF) if opts.get('tfy', 0) >= 0 else None, opts.get('hsl', 24))
    A(f"{go}:\nv_lshlrev_b32 v6, 3, v3\nv_mov_b32 v7, 0")
    ahead = opts.get("tah", 3)

    touch = lambda: touch_slots(A, sS, ahead)
    A("v_min_u32 v8, 1920, v6")
    for first in range(-ahead, 1):
        if not opts.get("t0", 1):
            A(f"s_mov_b32 {s(sS)}, {first}")
            touch()
    lp, got = A.new("t_poll"), A.new("t_got")
    A(f"s_mov_b32 {s(sS)}, 1\ns_mov_b32 {s(sF)}, {CM + 8192}\n{lp}:")
    A(f"buffer_load_dword v9, v7, {s(WS, 4)}, {s(sF)} offen sc1")
    poll_guard(A)
    A(f"s_waitcnt vmcnt(0)\nv_cmp_eq_u32 vcc, -1, v9\ns_cbranch_vccz {got}\ns_sleep 2\ns_branch {lp}\n{got}:")
    touch()
    A(f"s_add_u32 {s(sS)}, {s(sS)}, 1\ns_add_u32 {s(sF)}, {s(sF)}, 8192\ns_cmp_lt_u32 {s(sS)}, {64 - ahead}\ns_cbranch_scc1 {lp}\ns_endpgm")
```

```python
import math
import struct
from asmlib import Asm, v, a, s
from layout import *
from common import *

MF = "v_mfma_f32_16x16x32_bf16"
D_OVF, D_REG, D_ERR, D_NONCE = 64, 68, 72, 192


def f32(x):
    return hex(struct.unpack("<I", struct.pack("<f", x))[0])


def load_srd(A, dst, name, tmp):
    A(f"s_load_dwordx2 {s(tmp, 2)}, s[0:1], {KARG[name]}")

    def build():
        A(f"s_mov_b32 {s(dst)}, {s(tmp)}")
        A(f"s_and_b32 {s(dst + 1)}, {s(tmp + 1)}, 0xffff")
        A(f"s_mov_b32 {s(dst + 2)}, {SIZE[name]}")
        A(f"s_mov_b32 {s(dst + 3)}, 0x20000")
    return build


def xor_reduce(A, op, x, t):
    for sw in ("v_permlane16_swap_b32", "v_permlane32_swap_b32"):
        A(f"v_mov_b32 {v(t)}, {v(x)}")
        A(f"{sw} {v(x)}, {v(t)}")
        A(f"{op} {v(x)}, {v(x)}, {v(t)}")


def quad_sum(A, x):
    for p in ("[1,0,3,2]", "[2,3,0,1]"):
        A(f"v_add_f32_dpp {v(x)}, {v(x)}, {v(x)} quad_perm:{p} row_mask:0xf bank_mask:0xf")


def chunk_pos(A, dst, tok, g, t):
    A(f"v_lshrrev_b32 {v(t)}, 3, {v(tok)}\nv_lshlrev_b32 {v(t)}, 1, {v(t)}\nv_xor_b32 {v(t)}, {v(t)}, {v(g)}")
    A(f"v_lshl_add_u32 {v(t)}, {v(tok)}, 2, {v(t)}\nv_lshlrev_b32 {v(dst)}, 4, {v(t)}")


def poison_blocks(A, ranges, workers, sidx, val, addr):
    total = sum(n for _, n in ranges)
    for i in range(-(-total // workers)):
        sk = A.new("pz")
        A(f"s_add_u32 s59, {s(sidx)}, {workers * i}\ns_cmp_ge_u32 s59, {total}\ns_cbranch_scc1 {sk}")
        first = 0
        for base, n in ranges:
            if first + n > workers * i and first < workers * (i + 1):
                off = (base - first * 4096) & 0xffffffff
                if first <= workers * i:
                    A(f"s_mov_b32 s73, {off}")
                else:
                    A(f"s_cmp_ge_u32 s59, {first}\ns_cselect_b32 s73, {off}, s73")
            first += n
        A(f"s_lshl_b32 s59, s59, 12\ns_add_u32 s59, s59, s73")
        A(f"buffer_store_dwordx4 {v(val, 4)}, {v(addr)}, {s(WS, 4)}, s59 offen sc1\n{sk}:")


def gen_prep(A, opts, done, rank):
    S_, G_ = 20, 24
    A("s_and_b32 s28, s2, 7\ns_lshr_b32 s29, s2, 3")
    A("s_cmp_eq_u32 s28, 0\ns_cbranch_scc1 L_prep_none")
    A("s_sub_u32 s34, s28, 1\ns_lshl_b32 s28, s34, 5\ns_add_u32 s28, s28, s29")
    A("s_cmp_ge_u32 s29, 28\ns_cbranch_scc1 L_prep_rest")
    A("s_mul_i32 s30, s29, 37\ns_lshr_b32 s30, s30, 8\ns_mul_i32 s31, s30, 7\ns_sub_u32 s31, s29, s31")
    A("s_lshl_b32 s35, s34, 2\ns_add_u32 s30, s30, s35\ns_mul_i32 s35, s30, 37\ns_lshr_b32 s35, s35, 8\ns_mul_i32 s32, s35, 7\ns_sub_u32 s30, s30, s32")
    A("s_lshl_b32 s32, s35, 2\ns_add_u32 s32, s32, s30\ns_mul_i32 s35, s35, 3\ns_add_u32 s35, s35, s30\ns_sub_u32 s35, s35, 4")
    A("s_cmp_lt_u32 s30, 4\ns_cselect_b32 s32, s32, s35\ns_cselect_b32 s33, 1, 0\ns_branch L_prep_task")
    A("L_prep_rest:")
    A("s_sub_u32 s30, s29, 28\ns_lshr_b32 s35, s34, 1\ns_add_u32 s32, s35, 12\ns_and_b32 s33, s34, 1\ns_lshl_b32 s31, s33, 2\ns_add_u32 s31, s31, s30")
    A("s_add_u32 s35, s35, 4\ns_cmp_eq_u32 s31, 7\ns_cselect_b32 s32, 15, s32\ns_cselect_b32 s31, s35, s31\ns_mov_b32 s33, 0")
    A("L_prep_task:")
    A("s_lshl_b32 s16, s33, 4\ns_add_u32 s16, s16, s32\ns_mul_i32 s16, s16, 7\ns_add_u32 s16, s16, s31")
    A("s_cmp_eq_u32 s33, 0")
    A(f"s_cselect_b32 {s(S_)}, s44, s50\ns_cselect_b32 {s(S_ + 1)}, s45, s51\ns_cselect_b32 {s(G_)}, s46, s48\ns_cselect_b32 {s(G_ + 1)}, s47, s49")
    for r in (S_, G_):
        A(f"s_and_b32 {s(r + 1)}, {s(r + 1)}, 0xffff\ns_mov_b32 {s(r + 2)}, {SIZE['wq']}\ns_mov_b32 {s(r + 3)}, 0x20000")
    DA, RA = 208, 216
    A("v_lshrrev_b32 v4, 5, v0\nv_and_b32 v5, 31, v0\ns_lshl_b32 s34, s32, 9\nv_and_b32 v7, 3, v1")
    for j in range(8):
        pm = 8 * (2 * j // 4) + (2 * j) % 4
        A(f"v_add_u32 v6, {2 * j}, v4\nv_xor_b32 v6, v6, v5\nv_lshlrev_b32 v6, 4, v6\nv_lshl_add_u32 v6, v4, 13, v6\ns_add_u32 s35, s34, {pm * 8192}\nv_add_u32 {v(DA + j)}, s35, v6")
    for k in range(4):
        A(f"v_add_u32 v6, {4 * k}, v2\nv_xor_b32 v6, v6, v1\nv_lshlrev_b32 v6, 4, v6\nv_lshl_add_u32 {v(RA + k)}, v1, 9, v6")
    A(f"s_mul_i32 s61, {s(S_W)}, 24576\ns_add_u32 s61, s61, 32768")
    for k in range(4):
        A(f"v_add_u32 {v(RA + 4 + k)}, s61, {v(RA + k)}")
    SS, ACC = 16, 144
    A(f"s_mul_i32 s36, s32, {FRAG_H}\ns_mul_i32 s37, s33, {BF - AF}\ns_add_u32 s36, s36, s37")
    if AF:
        A(f"s_add_u32 s36, s36, {AF}")
    A(f"s_mul_i32 s39, {s(S_W)}, 7\ns_lshl_b32 s58, {s(S_W)}, 13")

    def tile_ids(typ):
        if typ == 0:
            for j in range(7):
                A(f"s_add_u32 s56, s31, {j}\ns_sub_u32 s57, s56, 7\ns_cmp_ge_u32 s56, 7\ns_cselect_b32 s56, s57, s56\ns_add_u32 {s(64 + j)}, s56, s39")
            return
        A(f"s_mul_i32 s59, {s(S_W)}, 3\ns_min_u32 s60, {s(S_W)}, 2\ns_add_u32 s59, s59, s60")
        A(f"s_cmp_lt_u32 {s(S_W)}, 2\ns_cselect_b32 s73, 4, 3")
        A("s_sub_u32 s56, s31, s73\ns_cmp_ge_u32 s31, s73\ns_cselect_b32 s60, s56, s31\ns_sub_u32 s56, s60, s73\ns_cmp_ge_u32 s60, s73\ns_cselect_b32 s60, s56, s60")
        for jp in range(4):
            A(f"s_add_u32 s56, s60, {jp}\ns_sub_u32 s57, s56, s73\ns_cmp_ge_u32 s56, s73\ns_cselect_b32 s56, s57, s56\ns_add_u32 s56, s56, s59")
            A(f"s_lshl_b32 {s(64 + 2 * jp)}, s56, 1\ns_add_u32 {s(65 + 2 * jp)}, {s(64 + 2 * jp)}, 1")

    def tile_dma(vm, srd, tag, k, sbase):
        A(f"s_add_u32 s62, {s(sbase)}, {k * 1024}\ns_mov_b32 m0, s62\ns_nop 0")
        nt = " nt" if opts.get("pnt", 0) & (1 if tag == "s" else 2) else ""
        vm.op(f"buffer_load_dwordx4 {v(DA + k)}, {s(srd, 4)}, s56 offen{nt} lds", tag)

    def load_G(vm, j):
        out = []
        for k in range(8):
            def one(k=k):
                if k == 0:
                    A(f"s_lshr_b32 s57, {s(64 + j)}, 1\ns_lshl_b32 s57, s57, 18\ns_and_b32 s56, {s(64 + j)}, 1\ns_lshl_b32 s56, s56, 15\ns_add_u32 s56, s56, s57")
                    A(f"s_add_u32 s63, s61, {(j % 3) * 8192}")
                tile_dma(vm, G_, f"g{j}", k, 63)
            out.append(one)
        return out

    def body(typ):
        vm = Cnt(A, "vmcnt", 63)
        mark(A, opts, 5)
        tile_ids(typ)
        if typ == 1 and opts.get("bwait", 0) > 1:
            A(f"s_sleep {opts['bwait']}")
        NT = 7 + typ
        if typ == 0:
            A(f"s_lshr_b32 s56, {s(S_W)}, 1\ns_lshl_b32 s56, s56, 18\ns_and_b32 s57, {s(S_W)}, 1\ns_lshl_b32 s57, s57, 15\ns_add_u32 s56, s56, s57\ns_lshl_b32 s57, s31, 19\ns_add_u32 s56, s56, s57")
            for k in range(8):
                tile_dma(vm, S_, "s", k, 58)
        else:
            A("v_lshrrev_b32 v6, 2, v0\nv_mul_u32_u24 v6, 896, v6\nv_lshl_add_u32 v6, v7, 4, v6")
            A("v_lshrrev_b32 v8, 2, v1\nv_lshlrev_b32 v8, 6, v8\nv_lshl_add_u32 v8, v7, 4, v8\nv_lshl_add_u32 v8, v2, 9, v8")
            A(f"s_mul_i32 s56, s32, 229376\ns_lshl_b32 s57, s31, 7\ns_add_u32 s56, s56, s57\ns_lshr_b32 s57, {s(S_W)}, 1\ns_lshl_b32 s57, s57, 6\ns_add_u32 s56, s56, s57")
            A(f"s_and_b32 s57, {s(S_W)}, 1\ns_mul_i32 s57, s57, {128 * 896}\ns_add_u32 s56, s56, s57\ns_mov_b32 s57, s58")
            for j in range(8):
                A("s_mov_b32 m0, s57\ns_add_u32 s57, s57, 1024")
                vm.op(f"buffer_load_dwordx4 v6, {s(S_, 4)}, s56 offen{' nt' if opts.get('pnt', 0) & 1 else ''} lds", "s")
                A(f"s_add_u32 s56, s56, {16 * 896}")
        first = opts.get("gfirst", 1)
        if typ == 1 and opts.get("bwait") == 1:
            vm.wait("s")
        for j in range(first):
            for x in load_G(vm, j):
                x()
        if not opts.get("laterank"):
            rank()
        vm.wait("s")
        mark(A, opts, 2)
        A("s_barrier")
        lg = Cnt(A, "lgkmcnt", 15)
        for es in range(8):
            for t in range(4):
                if typ == 0:
                    lg.room(1)
                    lg.op(f"ds_read_b128 {v(SS + (t * 8 + es) * 4, 4)}, {v(RA + es % 4)} offset:{t * 8192 + (es // 4) * 256}")
                else:
                    for x in range(2):
                        lg.room(1)
                        lg.op(f"ds_read_b64_tr_b16 {v(SS + (t * 8 + es) * 4 + 2 * x, 2)}, v8 offset:{(t // 2) * 16384 + es * 2048 + x * 256 + (t % 2) * 8}")
        if typ == 0:
            A(f"s_mov_b32 s38, {f32(math.log2(math.e) / 16.0)}\ns_lshl_b32 s57, s31, 11\ns_add_u32 s36, s36, s57")
        else:
            A(f"s_mul_i32 s57, s31, {4 * 14 * KB}\ns_add_u32 s36, s36, s57")
        lg.drain()

        def epilogue(j):
            accb = ACC + (j % 2) * 16
            out = []
            if typ == 0:
                out += [f"v_pk_mul_f32 {v(accb + r, 2)}, {v(accb + r, 2)}, v[12:13]" for r in range(0, 16, 2)]
                out += [f"v_cvt_pk_bf16_f32 {pk(j, r)}, {v(accb + 2 * r)}, {v(accb + 2 * r + 1)}" for r in range(8)]
            else:
                out += [f"v_cvt_pk_bf16_f32 {pk(j // 2 * 2 + r // 4, 4 * (r // 2 % 2) + 2 * (j % 2) + r % 2)}, {v(accb + 2 * r)}, {v(accb + 2 * r + 1)}" for r in range(8)]
            return out

        def pk(j, r, n=1):
            return v((176 + 8 * j if j < 4 else 224 + 8 * (j - 4) if j < 7 else 4) + r, n)

        def stores(j):
            if typ == 0:
                A(f"s_mul_i32 s59, {s(64 + j)}, {14 * KB}\ns_add_u32 s59, s59, s36")
                for k in range(2):
                    A(f"buffer_store_dwordx4 {pk(j, 4 * k, 4)}, v3, {s(WS, 4)}, s59 offen offset:{k * 1024} sc1{' nt' if opts.get('snt') else ''}")
            elif j % 2:
                A(f"s_lshl_b32 s59, {s(63 + j)}, 9\ns_add_u32 s59, s59, s36")
                for t in range(4):
                    A(f"buffer_store_dwordx4 {pk(j - 1 + t // 2, 4 * (t % 2), 4)}, v3, {s(WS, 4)}, s59 offen sc1{' nt' if opts.get('snt') else ''}\ns_add_u32 s59, s59, {14 * KB}")

        if typ == 0:
            A("v_mov_b32 v12, s38\nv_mov_b32 v13, s38")
        def poison():
            A(f"s_lshl_b32 s59, {s(S_W)}, 10\nv_add_u32 v9, s59, v3")
            for r in range(4):
                A(f"v_mov_b32 {v(248 + r)}, -1")
            poison_blocks(A, [(P1_BASE, P1_BLOCKS), (P2_BASE, P2_BLOCKS)], 224, 28, 248, 9)

        def g_reads(j):
            return [lambda es=es: lg.op(f"ds_read_b128 {a((j % 2) * 32 + es * 4, 4)}, {v(RA + 4 + es % 4)} offset:{(j % 3) * 8192 + (es // 4) * 256}", f"r{j}") for es in range(8)]

        vm.wait("g0")
        mark(A, opts, 3)
        for x in g_reads(0):
            x()
        for j in range(first, 2):
            for x in load_G(vm, j):
                x()
        pend = []
        short = A.new("short")
        sfirst = opts.get("sfirst", 4)
        for j in range(NT):
            accb = ACC + (j % 2) * 16
            fill = {}
            if typ == 1 and j == 6:
                A(f"s_cmp_ge_u32 {s(S_W)}, 2\ns_cbranch_scc1 {short}")
                pend6 = list(pend)
            if j + 2 < NT:
                for k, x in enumerate(load_G(vm, j + 2)):
                    fill[3 * k] = [x]
            if j < NT - 1:
                r = g_reads(j + 1)
                fill[23] = [lambda: vm.wait(f"g{j + 1}"), r[0]]
                for k in range(1, 8):
                    fill[23 + k] = [r[k]]
            g = 4
            for x in pend:
                while g in fill and g < 23:
                    g += 1
                fill.setdefault(g, []).insert(0, x)
                g += 1
            if j == sfirst:
                fill.setdefault(2, []).append(poison)
                for k in range(j - 1):
                    fill.setdefault(6 + 6 * k, []).append(lambda k=k: (stores(k), vm.q.extend(["o"] * (2 if typ == 0 else 4 * (k % 2)))))
            if j >= sfirst:
                fill.setdefault(31, []).append(lambda j=j: (stores(j - 1), vm.q.extend(["o"] * (2 if typ == 0 else 4 * ((j - 1) % 2)))))
            lg.wait(f"r{j}")
            if opts.get("tilem") and j in (1, 3, 5):
                mark(A, opts, {1: 2, 3: 5, 5: 4}[j])
            elif j == 5:
                mark(A, opts, 4)
            k = 0
            for es in range(8):
                for t in range(4):
                    c = "0" if es == 0 else v(accb + t * 4, 4)
                    sop, gop = v(SS + (t * 8 + es) * 4, 4), a((j % 2) * 32 + es * 4, 4)
                    A(f"{MF} {v(accb + t * 4, 4)}, {sop if typ == 0 else gop}, {gop if typ == 0 else sop}, {c}")
                    for x in fill.get(k, []):
                        x() if callable(x) else A(x)
                    k += 1
            pend = epilogue(j)
        for x in pend:
            x() if callable(x) else A(x)
        stores(NT - 1)
        if typ == 1:
            A(f"s_branch {done}\n{short}:")
            for x in pend6:
                A(x)
            stores(5)
        dbg_time(A, opts, 1 + typ, 1 + 56 * typ, 2)
        A(f"s_branch {done}")

    A("s_cmp_eq_u32 s33, 0\ns_cbranch_scc0 L_prep_b")
    body(0)
    A("L_prep_b:")
    body(1)

    A("L_prep_none:\ns_mov_b32 s16, -1")
    rank()


def gen_ln(A, opts):
    X_, M0_ = 20, 24
    A(f"s_load_dwordx4 s[52:55], s[0:1], {KARG['x']}\ns_waitcnt lgkmcnt(0)")
    for dst, src, name in ((X_, 52, "x"), (M0_, 54, "mem0")):
        A(f"s_mov_b32 {s(dst)}, {s(src)}\ns_and_b32 {s(dst + 1)}, {s(src + 1)}, 0xffff\ns_mov_b32 {s(dst + 2)}, {SIZE[name]}\ns_mov_b32 {s(dst + 3)}, 0x20000")
    A(f"s_lshl_b32 s37, s36, 2\ns_add_u32 s37, s37, {s(S_W)}")
    A("v_lshrrev_b32 v61, 2, v0\nv_and_b32 v62, 3, v0\nv_mul_u32_u24 v63, 896, v61\nv_lshl_add_u32 v63, v62, 4, v63")
    A(f"s_mul_i32 s28, s37, {16 * 896}")
    RAW, F = 4, 64
    for ks in range(14):
        A(f"buffer_load_dwordx4 {v(RAW + ks * 4, 4)}, v63, {s(X_, 4)}, s28 offen offset:{ks * 64}{' nt' if opts.get('pnt', 0) & 1 else ''}")
    A("s_cmp_eq_u32 s36, 1\ns_cbranch_scc1 L_prep_mem\ns_waitcnt vmcnt(0)\ns_branch L_prep_nomem\nL_prep_mem:")
    A("v_and_b32 v214, 7, v1\nv_mul_u32_u24 v214, 896, v214\nv_lshrrev_b32 v215, 3, v1\nv_lshl_add_u32 v214, v215, 2, v214\nv_lshl_add_u32 v214, v2, 5, v214")
    for rep in range(2):
        A(f"s_add_u32 s31, {s(S_W)}, {4 * rep}\ns_min_u32 s31, s31, 6\ns_lshl_b32 s32, s31, 7\ns_lshl_b32 {s(33 + rep)}, s31, 10")
        for j in range(4):
            A(f"buffer_load_dword {v(188 + 4 * rep + j)}, v214, {s(M0_, 4)}, s32 offen offset:{j * 8}")
    A("s_waitcnt vmcnt(0)")
    for rep in range(2):
        for j in range(4):
            A(f"v_min_u32 {v(188 + 4 * rep + j)}, -2, {v(188 + 4 * rep + j)}")
        for base in (CM, XM):
            A(f"s_add_u32 s35, {s(33 + rep)}, {base}\nbuffer_store_dwordx4 {v(188 + 4 * rep, 4)}, v3, {s(WS, 4)}, s35 offen sc1{' nt' if opts.get('snt') else ''}")
    A("L_prep_nomem:")
    A("s_waitcnt vmcnt(4)")
    A("s_mov_b32 s29, 0xffff0000")
    for r in range(56):
        A(f"v_lshlrev_b32 {v(F + 2 * r)}, 16, {v(RAW + r)}")
        A(f"v_and_b32 {v(F + 2 * r + 1)}, s29, {v(RAW + r)}")
    S0 = 192
    pk = lambda op, d, x, y: A(f"{op} {v(d, 2)}, {v(x, 2)}, {v(y, 2)}")
    pk("v_pk_add_f32", S0, F, F + 2)
    pk("v_pk_add_f32", S0 + 2, F + 4, F + 6)
    for r in range(8, 112, 2):
        pk("v_pk_add_f32", S0 + r % 4, S0 + r % 4, F + r)
    pk("v_pk_add_f32", S0, S0, S0 + 2)
    A(f"v_add_f32 {v(S0)}, {v(S0)}, {v(S0 + 1)}")
    quad_sum(A, S0)
    A(f"v_mul_f32 {v(S0)}, {f32(-1.0 / 448)}, {v(S0)}\nv_mov_b32 {v(S0 + 1)}, {v(S0)}")
    for r in range(0, 112, 2):
        pk("v_pk_add_f32", F + r, F + r, S0)
    pk("v_pk_mul_f32", S0 + 4, F, F)
    pk("v_pk_mul_f32", S0 + 6, F + 2, F + 2)
    for r in range(4, 112, 2):
        A(f"v_pk_fma_f32 {v(S0 + 4 + r % 4, 2)}, {v(F + r, 2)}, {v(F + r, 2)}, {v(S0 + 4 + r % 4, 2)}")
    pk("v_pk_add_f32", S0 + 4, S0 + 4, S0 + 6)
    A(f"v_add_f32 {v(S0 + 4)}, {v(S0 + 4)}, {v(S0 + 5)}")
    quad_sum(A, S0 + 4)
    A(f"v_mov_b32 {v(S0 + 6)}, {f32(1e-5)}")
    A(f"v_fmac_f32 {v(S0 + 6)}, {f32(1.0 / 448)}, {v(S0 + 4)}")
    A(f"v_rsq_f32 {v(S0 + 6)}, {v(S0 + 6)}\nv_mov_b32 {v(S0 + 7)}, {v(S0 + 6)}")
    A(f"s_mul_i32 s28, s37, {14 * KB}\ns_add_u32 s28, s28, {XF}")
    chunk_pos(A, 208, 61, 62, 63)
    A(f"v_and_b32 v63, 1, v62\nv_cmp_eq_u32 s[56:57], 1, v63\ns_add_u32 s30, s28, {XS - XF}")
    for ks in range(14):
        for r in range(0, 8, 2):
            pk("v_pk_mul_f32", F + ks * 8 + r, F + ks * 8 + r, S0 + 6)
        for r in range(4):
            A(f"v_cvt_pk_bf16_f32 {v(RAW + ks * 4 + r)}, {v(F + ks * 8 + 2 * r)}, {v(F + ks * 8 + 2 * r + 1)}")
        A(f"buffer_store_dwordx4 {v(RAW + ks * 4, 4)}, v208, {s(WS, 4)}, s28 offen offset:{(ks % 4) * 1024} sc1{' nt' if opts.get('snt') else ''}")
        Q, D = 200 + 4 * (ks % 2), RAW + ks * 4
        A(f"v_cndmask_b32 v210, {v(D + 1)}, {v(D)}, s[56:57]\nv_cndmask_b32 v211, {v(D + 3)}, {v(D + 2)}, s[56:57]")
        for r in range(2):
            A(f"v_mov_b32_dpp {v(212 + r)}, {v(210 + r)} quad_perm:[1,0,3,2] row_mask:0xf bank_mask:0xf")
        for r, (ev, od) in enumerate(((D, 212), (D + 2, 213), (212, D + 1), (213, D + 3))):
            A(f"v_cndmask_b32 {v(Q + r)}, {v(ev)}, {v(od)}, s[56:57]")
        A(f"buffer_store_dwordx4 {v(Q, 4)}, v208, {s(WS, 4)}, s30 offen offset:{(ks % 4) * 1024} sc1{' nt' if opts.get('snt') else ''}")
        if ks % 4 == 3:
            A("s_add_u32 s28, s28, 4096\ns_add_u32 s30, s30, 4096\ns_waitcnt vmcnt(40)")
    A(f"s_cmp_lt_u32 s36, 2\ns_cbranch_scc1 L_ln_nopz\ns_sub_u32 s38, s36, 2\ns_lshl_b32 s59, {s(S_W)}, 10\nv_add_u32 v60, s59, v3\ns_waitcnt vmcnt(24)")
    for r in range(4):
        A(f"v_mov_b32 {v(216 + r)}, -1")
    poison_blocks(A, P_LAST, 30, 38, 216, 60)
    A("L_ln_nopz:")
    A(f"s_add_u32 s16, s36, 224\ns_lshl_b32 s16, s16, 7\ns_add_u32 s16, s16, {DONE}\nv_mov_b32 v4, {s(S_NONCE)}\nv_lshrrev_b32 v5, 2, v3\nv_and_b32 v5, 124, v5")
    A(f"s_cmp_eq_u32 {s(S_W)}, 0\ns_waitcnt vmcnt(0)\ns_barrier\ns_cbranch_scc0 L_ln_noflag")
    A(f"buffer_store_dword v4, v5, {s(WS, 4)}, s16 offen sc1\nL_ln_noflag:")
    mark(A, opts, 2)
    dbg_time(A, opts, 3, 160)
```

```python
from asmlib import v, a, s
from layout import *
from common import *
from gen_prep import f32, load_srd, xor_reduce, chunk_pos
import math

MF = "v_mfma_f32_16x16x32_bf16"
SLEEP = 2
WNT = ''
Y_TEAMS, X1_TEAMS, X2_TEAMS, F_TEAMS = 3, 3, 2, 2


def tmark(A, opts, k):
    if opts.get("tailm"):
        mark(A, opts, k)


def set_flag(A, soff, t):
    A(f"v_mov_b32 {v(t)}, {s(S_NONCE)}\nv_lshrrev_b32 {v(t + 1)}, 2, v3\nv_and_b32 {v(t + 1)}, 124, {v(t + 1)}")
    A(f"buffer_store_dword {v(t)}, {v(t + 1)}, {s(WS, 4)}, {s(soff)} offen sc1")


def paired_addr(A, d0, d1):
    for vv, d in enumerate((d0, d1)):
        A(f"v_lshrrev_b32 v4, 1, v1\nv_add_u32 v4, {8 * vv}, v4")
        chunk_pos(A, d, 4, 2, 5)
        A(f"v_and_b32 v4, 1, v1\nv_mul_u32_u24 v4, {14 * KB}, v4\nv_add_u32 {v(d)}, {v(d)}, v4")


def drain_unless_last(A, opts, sstep):
    if not opts.get("fast63", 1):
        A("s_waitcnt vmcnt(0)")
        return
    sk = A.new("nd")
    A(f"s_cmp_ge_u32 {s(sstep)}, {opts.get('f0', FAST0)}\ns_cbranch_scc1 {sk}\ns_waitcnt vmcnt(0)\n{sk}:")


def clean(A, regs):
    for r in regs:
        A(f"v_min_u32 {v(r)}, -2, {v(r)}")


def verify_last(A, opts, sstep, regs, t, retry, younger=0):
    if not opts.get("fast63", 1):
        return
    sk = A.new("vl")
    A(f"s_cmp_ge_u32 {s(sstep)}, {opts.get('f0', FAST0)}\ns_cbranch_scc0 {sk}")
    poll_guard(A)
    A(f"s_waitcnt vmcnt({younger})")
    sentinel_check(A, regs, t, retry)
    A(f"{sk}:")


def seg_dma(A, sx, sm0, cnt=None):
    for q, n in ((0, 4), (1, 3)):
        A(f"s_add_u32 s33, {s(sm0)}, {q * 4096}\ns_mov_b32 m0, s33\ns_add_u32 s34, {s(sx)}, {q * 4096}")
        for k in range(n):
            t = f"buffer_load_dwordx4 v3, {s(WS, 4)}, s34 offen offset:{k * 1024} sc1 lds"
            cnt.op(t, "x") if cnt else A(t)


def gen_y(A, opts):
    ACC, XOP, PK, XR, T = 4, 32, 48, 76, 78
    sS, sX, sM0, sY, sF = 44, 45, 46, 47, 48
    vm = Cnt(A, "vmcnt", 63)
    A(f"s_mov_b32 {s(sS)}, s31\ns_mul_i32 {s(sM0)}, {s(S_W)}, {7 * KB}")
    A(f"s_mul_i32 {s(sX)}, s31, {28 * KB}\ns_add_u32 {s(sX)}, {s(sX)}, {s(sM0)}\ns_add_u32 {s(sX)}, {s(sX)}, {XF}")
    A(f"s_mul_i32 s35, s30, {FRAG_H}\ns_mul_i32 s36, {s(S_W)}, {7 * 14 * KB}\ns_add_u32 s35, s35, s36\ns_add_u32 s35, s35, {BF}")
    A(f"s_mul_i32 s33, {s(S_W)}, 7\nv_min_u32 v4, 6, v0\nv_add_u32 v4, s33, v4\nv_lshrrev_b32 v4, 2, v4\ns_mul_i32 s33, s30, 7\ns_add_u32 s33, s33, 112\nv_add_u32 v4, s33, v4")
    load_pieces(A, [(14, lambda i=i: frag_loads(A, 35, [((i * 14 + ks) * 4, (i * 14 + ks) * KB) for ks in range(14)])) for i in range(7)], 4, (7, lambda: seg_dma(A, sX, sM0)))
    A(f"s_lshl_b32 s33, s31, 4\ns_add_u32 s33, s33, s30\ns_mul_i32 {s(sY)}, s33, {28 * KB}\ns_add_u32 {s(sY)}, {s(sY)}, {YF}")
    A(f"s_mul_i32 s33, {s(S_W)}, {7 * KB}\ns_add_u32 {s(sY)}, {s(sY)}, s33")
    A(f"s_mul_i32 {s(sF)}, s31, {FL_STEP}\ns_lshl_b32 s33, s30, 7\ns_add_u32 {s(sF)}, {s(sF)}, s33\ns_add_u32 {s(sF)}, {s(sF)}, {FY}")
    paired_addr(A, XR, XR + 1)
    top, nodma, noflag, done = (A.new(x) for x in ("y_top", "y_nodma", "y_nofl", "y_done"))
    A("s_waitcnt vmcnt(0)\ns_barrier")
    mark(A, opts, 1)
    A(f"{top}:")
    A(f"s_add_u32 s33, {s(sS)}, {Y_TEAMS}\ns_cmp_ge_u32 s33, 64\ns_cbranch_scc1 {nodma}\ns_cmp_lt_u32 {s(sS)}, {Y_TEAMS}\ns_cbranch_scc1 {nodma}")
    A(f"s_add_u32 {s(sX)}, {s(sX)}, {Y_TEAMS * 28 * KB}\ns_xor_b32 {s(sM0)}, {s(sM0)}, 0x8000")
    seg_dma(A, sX, sM0)
    A(f"{nodma}:")
    if opts.get("ypace"):
        lp, go = A.new("y_pace"), A.new("y_go")
        A(f"s_sub_u32 s33, {s(sS)}, {opts['ypace']}\ns_cbranch_scc1 {go}\ns_lshl_b32 s33, s33, 13\ns_add_u32 s33, s33, {XM}\nv_mov_b32 {v(T + 1)}, 0")
        A(f"{lp}:\nbuffer_load_dword {v(T)}, {v(T + 1)}, {s(WS, 4)}, s33 offen sc1")
        poll_guard(A)
        A(f"s_waitcnt vmcnt(0)\nv_cmp_eq_u32 vcc, -1, {v(T)}\ns_cbranch_vccz {go}\ns_sleep 8\ns_branch {lp}\n{go}:")
    lg = Cnt(A, "lgkmcnt", 15)
    rd = lambda n: lg.op(f"ds_read_b128 {v(XOP + 4 * (n % 4), 4)}, {v(XR + n // 14)} offset:{(n % 14) * KB}", f"x{n}")
    for n in range(3):
        rd(n)
    for tt in range(2):
        for ks in range(14):
            n = tt * 14 + ks
            if n + 3 < 28:
                rd(n + 3)
            lg.wait(f"x{n}")
            for i in range(7):
                c = "0" if ks == 0 else v(ACC + 4 * i, 4)
                A(f"{MF} {v(ACC + 4 * i, 4)}, {v(XOP + 4 * (n % 4), 4)}, {wreg((i * 14 + ks) * 4, 4)}, {c}")
        for i in range(7):
            for b in range(2):
                A(f"v_cvt_pk_bf16_f32 {v(PK + 4 * i + 2 * tt + b)}, {v(ACC + 4 * i + 2 * b)}, {v(ACC + 4 * i + 2 * b + 1)}")
    A(f"s_add_u32 s33, {s(sY)}, 4096")
    for i in range(7):
        A(f"buffer_store_dwordx4 {v(PK + 4 * i, 4)}, v3, {s(WS, 4)}, {s(sY) if i < 4 else 's33'} offen offset:{(i % 4) * 1024} sc1")
    A(f"v_xor_b32 {v(XR)}, 0x8000, {v(XR)}\nv_xor_b32 {v(XR + 1)}, 0x8000, {v(XR + 1)}")
    A("s_waitcnt vmcnt(0)\ns_barrier")
    A(f"s_cmp_eq_u32 {s(S_W)}, 0\ns_cbranch_scc0 {noflag}")
    set_flag(A, sF, T)
    A(f"{noflag}:")
    later = A.new("y_later")
    A(f"s_cmp_lt_u32 {s(sS)}, {Y_TEAMS}\ns_cbranch_scc0 {later}")
    wait_prep(A, False)
    A(f"s_add_u32 {s(sX)}, {s(sX)}, {Y_TEAMS * 28 * KB}\ns_xor_b32 {s(sM0)}, {s(sM0)}, 0x8000")
    seg_dma(A, sX, sM0)
    A(f"s_waitcnt vmcnt(0)\ns_barrier\n{later}:")
    A(f"s_add_u32 {s(sS)}, {s(sS)}, {Y_TEAMS}\ns_cmp_ge_u32 {s(sS)}, 64\ns_cbranch_scc1 {done}")
    A(f"s_add_u32 {s(sY)}, {s(sY)}, {Y_TEAMS * 16 * 28 * KB}\ns_add_u32 {s(sF)}, {s(sF)}, {Y_TEAMS * FL_STEP}\ns_branch {top}")
    A(f"{done}:")
    if opts.get("ypace"):
        flush_stamps(A, opts)
        A("s_endpgm")
        return
    wait_prep(A, True)
    A(f"s_add_u32 s31, s31, {Z_SPLIT}")
    z_loop(A, opts, "s31", Y_TEAMS, 64, False)


Z_SPLIT = 33


def z_loop(A, opts, first, step, end, lagged):
    from gen_chain import SMF, gather_addr, fetch_mem, idx_reg, zero
    MEM, ACC, G0, PK, IDX, GA0, GA1, ZA, T = 4, 32, 60, 76, 90, 91, 92, 93, 94
    sS, sXM, sZ, sF = 44, 45, 46, 47
    gather_addr(A, GA0, GA1)
    idx_reg(A, IDX)
    A(f"v_lshlrev_b32 {v(ZA)}, 3, v0\ns_mov_b32 {s(sS)}, {first}")
    A(f"s_lshl_b32 {s(sXM)}, {s(sS)}, 13\ns_add_u32 {s(sXM)}, {s(sXM)}, {XM}")
    A(f"s_lshl_b32 s33, {s(sS)}, 4\ns_add_u32 s33, s33, s30\ns_mul_i32 {s(sZ)}, s33, 14336\ns_mul_i32 s33, {s(S_W)}, 3584\ns_add_u32 {s(sZ)}, {s(sZ)}, s33\ns_add_u32 {s(sZ)}, {s(sZ)}, {ZF}")
    A(f"s_mul_i32 {s(sF)}, {s(sS)}, {FL_STEP}\ns_lshl_b32 s33, s30, 7\ns_add_u32 {s(sF)}, {s(sF)}, s33\ns_add_u32 {s(sF)}, {s(sF)}, {FZ - (FL_STEP if lagged else 0)}")
    top, noflag = A.new("z_top"), A.new("z_nofl")
    A(f"{top}:")
    for x in zero(ACC, 28):
        A(x)
    fetch_mem(A, {}, G0, GA0, GA1, sXM, T, 0)
    tmark(A, opts, 2)
    lg = Cnt(A, "lgkmcnt", 15)
    for kk in range(7):
        lg.op(f"ds_read_b128 {v(MEM + 4 * kk, 4)}, v3 offset:{kk * 1024}", f"m{kk}")
    if lagged:
        A(f"s_cmp_eq_u32 {s(S_W)}, 0\ns_cbranch_scc0 {noflag}\ns_cmp_eq_u32 {s(sS)}, 0\ns_cbranch_scc1 {noflag}")
        set_flag(A, sF, T)
        A(f"{noflag}:")
    for i in range(7):
        for kk in range(7):
            if i == 0:
                lg.wait(f"m{kk}")
            A(f"{SMF} {v(ACC + 4 * i, 4)}, {v(MEM + 4 * kk, 4)}, {wreg((i * 7 + kk) * 8, 8)}, {v(IDX)}")
    if lagged:
        A("s_barrier")
    for i in range(7):
        for b in range(2):
            A(f"v_cvt_pk_bf16_f32 {v(PK + 2 * i + b)}, {v(ACC + 4 * i + 2 * b)}, {v(ACC + 4 * i + 2 * b + 1)}")
        if not lagged:
            clean(A, (PK + 2 * i, PK + 2 * i + 1))
        A(f"buffer_store_dwordx2 {v(PK + 2 * i, 2)}, {v(ZA)}, {s(WS, 4)}, {s(sZ)} offen offset:{i * 512} sc1")
    if not lagged:
        tmark(A, opts, 3)
        drain_unless_last(A, opts, sS)
        A(f"s_cmp_eq_u32 {s(S_W)}, 0\ns_barrier\ns_cbranch_scc0 {noflag}")
        tmark(A, opts, 4)
        set_flag(A, sF, T)
        A(f"{noflag}:")
    A(f"s_add_u32 {s(sS)}, {s(sS)}, {step}\ns_add_u32 {s(sXM)}, {s(sXM)}, {step * 8192}\ns_add_u32 {s(sZ)}, {s(sZ)}, {step * 16 * 14336}\ns_add_u32 {s(sF)}, {s(sF)}, {step * FL_STEP}")
    A(f"s_cmp_lt_u32 {s(sS)}, {end}\ns_cbranch_scc1 {top}")
    if lagged:
        A("s_waitcnt vmcnt(0)\ns_barrier")
        set_flag(A, sF, T)
        A("s_mov_b32 s31, 63\ns_cmp_lt_u32 s30, 14\ns_cbranch_scc1 L_x2")
    flush_stamps(A, opts)
    A("s_endpgm")


def gen_z(A, opts):
    after_first_y(A, opts)
    wait_prep(A, True)
    vm = Cnt(A, "vmcnt", 63)
    A(f"s_mul_i32 s35, s30, {FRAG_H}\ns_mul_i32 s36, {s(S_W)}, {7 * 14 * KB}\ns_add_u32 s35, s35, s36\ns_add_u32 s35, s35, {BF}")
    load_weights(A, vm, 3, [(lambda i=i: A(f"s_add_u32 s37, s35, {i * 14 * KB}")) for i in range(7)], 37)
    mark(A, opts, 1)
    z_loop(A, opts, 0, 1, 64 if opts.get('ypace') else Z_SPLIT, True)


def wait_flags(A, fv, fa, soff, off=0, sleep=None):
    sleep = SLEEP if sleep is None else sleep
    lp, ok = A.new("wf"), A.new("wfok")
    A(f"{lp}:")
    flag_load(A, fv, fa, s(soff))
    poll_guard(A)
    A("s_waitcnt vmcnt(0)")
    flag_missing(A, [fv])
    A(f"s_cbranch_vccz {ok}\ns_sleep {sleep}\ns_branch {lp}\n{ok}:")


def wait_inputs(A, opts, sstep, fv, fa, soff, which):
    if opts.get("direct", 0) & which:
        go = A.new("wi_go")
        d0 = opts.get("d1" if which == 1 else "d0", FAST0)
        if which == 1:
            lp, norm, gate = A.new("wi_xm"), A.new("wi_norm"), A.new("wi_gate")
            A(f"s_cmp_ge_u32 {s(sstep)}, {d0}\ns_cbranch_scc0 {norm}\ns_cmp_eq_u32 {s(sstep)}, 63\ns_cbranch_scc0 {gate}\ns_cmp_eq_u32 s31, 63\ns_cbranch_scc0 {go}")
            A(f"{gate}:\ns_lshl_b32 s33, {s(sstep)}, 13\ns_add_u32 s33, s33, {XM}\nv_mov_b32 {v(fv + 1)}, 0\n{lp}:")
            A(f"buffer_load_dword {v(fv)}, {v(fv + 1)}, {s(WS, 4)}, s33 offen sc1")
            poll_guard(A)
            A(f"s_waitcnt vmcnt(0)\nv_cmp_eq_u32 vcc, -1, {v(fv)}\ns_cbranch_vccz {go}\ns_sleep 2\ns_branch {lp}\n{norm}:")
        else:
            A(f"s_cmp_ge_u32 {s(sstep)}, {d0}\ns_cbranch_scc1 {go}")
        wait_flags(A, fv, fa, soff)
        A(f"{go}:")
        return
    depth = opts.get("tp", 3)
    if not depth or not opts.get("fast63", 1):
        wait_flags(A, fv, fa, soff)
        return
    fast, lp, ok = A.new("wi_fast"), A.new("wi_lp"), A.new("wi_ok")
    A(f"s_cmp_eq_u32 {s(sstep)}, 63\ns_cbranch_scc1 {fast}")
    wait_flags(A, fv, fa, soff)
    A(f"s_branch {ok}\n{fast}:")
    ld = lambda k: A(f"buffer_load_dword {v(fv + k)}, {v(fa)}, {s(WS, 4)}, {s(soff)} offen sc1")
    for k in range(depth - 1):
        ld(k)
    A(f"{lp}:")
    poll_guard(A)
    for k in range(depth):
        ld((k + depth - 1) % depth)
        A(f"s_waitcnt vmcnt({depth - 1})\nv_cmp_ne_u32 vcc, {s(S_NONCE)}, {v(fv + k)}")
        A(f"s_cbranch_vccz {ok}" if k < depth - 1 else f"s_cbranch_vccnz {lp}")
    A(f"{ok}:")


def after_first_y(A, opts):
    if opts.get("nodelay"):
        return
    out = A.new("afy")
    A(f"s_cmp_eq_u32 {s(S_W)}, 0\ns_cbranch_scc0 {out}\nv_lshlrev_b32 v4, 7, v1\ns_mov_b32 s34, {FY + opts.get('afy', 0) * FL_STEP}")
    wait_flags(A, 6, 4, 34, sleep=16)
    A(f"{out}:\ns_barrier")


def unpack(A, dst, src, n, smask):
    for r in range(n):
        A(f"v_lshlrev_b32 {v(dst + 2 * r)}, 16, {v(src + r)}\nv_and_b32 {v(dst + 2 * r + 1)}, {s(smask)}, {v(src + r)}")


def gen_x1(A, opts):
    from gen_chain import gather_addr, mem_loads, check8
    ACC, XOP, TOP, G, ZERO = 4, 32, 48, 80, 88
    GA0, GA1, XR, KX, KX1, KX3, KX31, MK, MK2, MK3, SW, SR, PA, NEG, T = range(89, 104)
    SXB, SMB, XB = 8192, 24576, 32768
    sS, sX, sM0, sXM, sP, sF, sODD, sP0 = 44, 45, 46, 47, 48, 49, 50, 51
    MASK, ODDM = 56, 72
    after_first_y(A, opts)
    wait_prep(A, True)
    vm = Cnt(A, "vmcnt", 63)
    A(f"s_mov_b32 {s(sS)}, s31\ns_mul_i32 s35, {s(S_W)}, {7 * KB}\ns_add_u32 {s(sM0)}, s35, {XB}")
    A(f"s_mul_i32 {s(sX)}, s31, {28 * KB}\ns_add_u32 {s(sX)}, {s(sX)}, s35\ns_add_u32 {s(sX)}, {s(sX)}, {XF}")
    seg_dma(A, sX, sM0, vm)
    A(f"s_and_b32 {s(sODD)}, {s(S_W)}, 1\ns_mul_i32 s33, {s(S_W)}, 7\ns_add_u32 {s(sP0)}, s33, {s(sODD)}\ns_lshr_b32 {s(sP0)}, {s(sP0)}, 1")
    A(f"s_mul_i32 s34, s30, {FRAG_H}\ns_mul_i32 s33, {s(S_W)}, {7 * 14 * KB}\ns_add_u32 s34, s34, s33")
    if AF:
        A(f"s_add_u32 s34, s34, {AF}")
    A(f"s_mul_i32 s35, {s(sODD)}, {14 * KB}\ns_add_u32 s35, s35, s34\ns_add_u32 s36, s34, {6 * 14 * KB}\ns_cmp_eq_u32 {s(sODD)}, 0\ns_cselect_b32 s36, s36, s34")
    A(f"s_cselect_b64 {s(ODDM, 2)}, 0, -1")
    tiles = [(lambda i=i: A(f"s_add_u32 s37, s35, {i * 14 * KB}")) for i in range(6)] + [lambda: A("s_mov_b32 s37, s36")]
    load_weights(A, vm, 3, tiles, 37)
    gather_addr(A, GA0, GA1)
    A(f"v_mov_b32 {v(ZERO)}, 0\nv_mov_b32 {v(NEG)}, {f32(-1.0e9 * math.log2(math.e))}")
    chunk_pos(A, XR, 1, 2, 4)
    paired_addr(A, KX, KX1)
    A(f"v_add_u32 {v(XR)}, {XB}, {v(XR)}")
    A(f"s_lshl_b32 s33, {s(sP0)}, 10\ns_add_u32 s33, s33, {XB}\ns_lshl_b32 s34, {s(sODD)}, 12\ns_sub_u32 s34, 3072, s34")
    for r in (KX, KX1):
        A(f"v_add_u32 {v(r)}, s33, {v(r)}\nv_add_u32 {v(r + 2)}, s34, {v(r)}")
    A(f"v_and_b32 v4, 7, v1\nv_lshlrev_b32 v4, 4, v4\nv_lshrrev_b32 v5, 1, v2\nv_lshl_add_u32 v4, v5, 8, v4\nv_and_b32 v5, 1, v2\nv_lshl_add_u32 v4, v5, 3, v4")
    A(f"s_lshl_b32 s33, {s(sP0)}, 9\nv_add_u32 {v(MK)}, s33, v4\nv_add_u32 {v(MK2)}, 1024, {v(MK)}")
    A(f"s_lshl_b32 s34, {s(sODD)}, 11\ns_sub_u32 s34, 1536, s34\nv_add_u32 {v(MK3)}, s34, {v(MK)}")
    A(f"s_lshl_b32 s33, {s(S_W)}, 10\nv_add_u32 {v(SW)}, s33, v3\ns_lshl_b32 s33, {s(sODD)}, 12\nv_add_u32 {v(SR)}, s33, v3\nv_lshlrev_b32 {v(PA)}, 3, v0")
    A(f"s_lshl_b32 s33, {s(sODD)}, 4\nv_add_u32 v5, s33, v1")
    for kt in range(2):
        for q in range(4):
            A(f"v_lshl_add_u32 v4, v2, 1, {8 * kt + (q >> 1) + 16 * (q & 1)}\nv_cmp_le_u32 {s(MASK + 8 * kt + 2 * q, 2)}, v4, v5")
    A(f"s_lshl_b32 {s(sXM)}, s31, 13\ns_add_u32 {s(sXM)}, {s(sXM)}, {XM}")
    A(f"s_lshl_b32 s33, s31, 4\ns_add_u32 s33, s33, s30\ns_lshl_b32 s33, s33, 1\ns_add_u32 s33, s33, {s(sODD)}\ns_mul_i32 {s(sP)}, s33, 1536\ns_add_u32 {s(sP)}, {s(sP)}, {PF}")
    A(f"s_lshl_b32 s33, s30, 1\ns_add_u32 s33, s33, {s(sODD)}\ns_lshl_b32 s33, s33, 7\ns_mul_i32 {s(sF)}, s31, {FL_STEP}\ns_add_u32 {s(sF)}, {s(sF)}, s33\ns_add_u32 {s(sF)}, {s(sF)}, {FP}")
    top, nodma, nxt, lp, ok = (A.new("x1_" + x) for x in ("top", "nodma", "next", "poll", "ok"))
    A("s_waitcnt vmcnt(0)")
    mark(A, opts, 1)
    A(f"{top}:")
    A("s_barrier")
    A(f"s_add_u32 s33, {s(sS)}, {X1_TEAMS}\ns_cmp_ge_u32 s33, 64\ns_cbranch_scc1 {nodma}")
    A(f"s_add_u32 {s(sX)}, {s(sX)}, {X1_TEAMS * 28 * KB}\ns_xor_b32 {s(sM0)}, {s(sM0)}, 0x18000")
    seg_dma(A, sX, sM0)
    A(f"{nodma}:")
    lg = Cnt(A, "lgkmcnt", 15)
    rd = lambda n: lg.op(f"ds_read_b128 {v(XOP + 4 * (n % 4), 4)}, {v(XR)} offset:{n * KB}", f"x{n}")
    for n in range(3):
        rd(n)
    for tt in range(2):
        for ks in range(14):
            n = tt * 14 + ks
            if n + 3 < 28:
                rd(n + 3)
            lg.wait(f"x{n}")
            for i in range(7):
                c = "0" if ks == 0 else v(ACC + 4 * i, 4)
                A(f"{MF} {v(ACC + 4 * i, 4)}, {wreg((i * 14 + ks) * 4, 4)}, {v(XOP + 4 * (n % 4), 4)}, {c}")
        for i in range(6):
            for b in range(2):
                A(f"v_cvt_pk_bf16_f32 {v(TOP + 16 * tt + 2 * i + b)}, {v(ACC + 4 * i + 2 * b)}, {v(ACC + 4 * i + 2 * b + 1)}")
        for b in range(2):
            A(f"v_cvt_pk_bf16_f32 {v(T + b)}, {v(ACC + 24 + 2 * b)}, {v(ACC + 25 + 2 * b)}")
        for b in range(2):
            A(f"v_cndmask_b32 {v(TOP + 16 * tt + 12 + b)}, {v(T + b)}, {v(ZERO)}, {s(ODDM, 2)}")
            A(f"v_cndmask_b32 {v(TOP + 16 * tt + 14 + b)}, {v(ZERO)}, {v(T + b)}, {s(ODDM, 2)}")
    for half in range(2):
        for b in (2 * half, 2 * half + 1):
            for kt in range(2):
                reg, o = (KX3 + kt, 0) if b == 3 else (KX + kt, b * KB)
                lg.op(f"ds_read_b128 {v(XOP + 8 * (b % 2) + 4 * kt, 4)}, {v(reg)} offset:{o}", f"k{b}")
        for b in (2 * half, 2 * half + 1):
            lg.wait(f"k{b}")
            for j in range(4):
                kt, tt = j % 2, j // 2
                c = "0" if b == 0 else v(ACC + 4 * j, 4)
                A(f"{MF} {v(ACC + 4 * j, 4)}, {v(XOP + 8 * (b % 2) + 4 * kt, 4)}, {v(TOP + 16 * tt + 4 * b, 4)}, {c}")
    for r in (XR, KX, KX1, KX3, KX31):
        A(f"v_xor_b32 {v(r)}, 0x18000, {v(r)}")
    for j in range(4):
        A(f"ds_write_b128 {v(SW)}, {v(ACC + 4 * j, 4)} offset:{SXB + (j % 2) * 8192 + (j // 2) * 4096}")
    A(f"{lp}:")
    mem_loads(A, G, GA0, GA1, sXM)
    poll_guard(A)
    A("s_waitcnt vmcnt(0)")
    A(f"ds_write_b128 {v(GA0)}, {v(G, 4)}\nds_write_b128 {v(GA1)}, {v(G + 4, 4)}")
    check8(A, G, T)
    A(f"s_cbranch_vccz {ok}\ns_sleep 2\ns_branch {lp}\n{ok}:")
    tmark(A, opts, 2)
    A("s_waitcnt lgkmcnt(0)\ns_barrier")
    lg.q = []
    for b in range(4):
        reg, o = [(MK, 0), (MK, 128), (MK2, 0), (MK3, 0)][b]
        for x in range(2):
            lg.op(f"ds_read2_b32 {v(XOP + 4 * b + 2 * x, 2)}, {v(reg)} offset0:{o + x} offset1:{o + x + 32}", f"m{b}")
    for b in range(4):
        lg.wait(f"m{b}")
        for tt in range(2):
            c = "0" if b == 0 else v(ACC + 4 * tt, 4)
            A(f"{MF} {v(ACC + 4 * tt, 4)}, {v(XOP + 4 * b, 4)}, {v(TOP + 16 * tt + 4 * b, 4)}, {c}")
    for tt in range(2):
        A(f"ds_write_b128 {v(SW)}, {v(ACC + 4 * tt, 4)} offset:{SMB + tt * 4096}")
    A(f"s_cmp_ge_u32 {s(S_W)}, 2")
    A(f"s_waitcnt lgkmcnt(0)\ns_barrier\ns_cbranch_scc1 {nxt}")
    R, S = TOP, ACC
    for k, (reg, base) in enumerate(((SR, SMB), (SR, SXB), (SR, SXB + 8192))):
        for w in range(4):
            A(f"ds_read_b128 {v((XOP if k == 2 else R + 16 * k) + 4 * w, 4)}, {v(reg)} offset:{base + w * KB}")
    for k, d in enumerate((8, 0, 4)):
        b = XOP if k == 2 else R + 16 * k
        A(f"s_waitcnt lgkmcnt({8 - 4 * k})")
        for q in range(0, 4, 2):
            A(f"v_pk_add_f32 {v(b + q, 2)}, {v(b + q, 2)}, {v(b + 4 + q, 2)}\nv_pk_add_f32 {v(b + 8 + q, 2)}, {v(b + 8 + q, 2)}, {v(b + 12 + q, 2)}")
        for q in range(0, 4, 2):
            A(f"v_pk_add_f32 {v(S + d + q, 2)}, {v(b + q, 2)}, {v(b + 8 + q, 2)}")
    for r in range(8):
        A(f"v_cndmask_b32 {v(S + r)}, {v(NEG)}, {v(S + r)}, {s(MASK + 2 * r, 2)}")
    mx, sm = T, T + 1
    A(f"v_max3_f32 {v(mx)}, {v(S)}, {v(S + 1)}, {v(S + 2)}")
    for r in range(3, 11, 2):
        A(f"v_max3_f32 {v(mx)}, {v(mx)}, {v(S + r)}, {v(S + r + 1)}")
    A(f"v_max_f32 {v(mx)}, {v(mx)}, {v(S + 11)}")
    xor_reduce(A, "v_max_f32", mx, T + 2)
    for r in range(12):
        A(f"v_sub_f32 {v(S + r)}, {v(S + r)}, {v(mx)}")
    for r in range(12):
        A(f"v_exp_f32 {v(S + r)}, {v(S + r)}")
    A(f"v_add_f32 {v(sm)}, {v(S + 8)}, {v(S + 9)}\nv_add_f32 {v(T + 2)}, {v(S + 10)}, {v(S + 11)}\nv_add_f32 {v(sm)}, {v(sm)}, {v(T + 2)}\nv_mul_f32 {v(sm)}, 0.5, {v(sm)}")
    for r in range(8):
        A(f"v_add_f32 {v(sm)}, {v(sm)}, {v(S + r)}")
    xor_reduce(A, "v_add_f32", sm, T + 2)
    A(f"v_rcp_f32 {v(sm)}, {v(sm)}")
    for r in range(12):
        A(f"v_mul_f32 {v(S + r)}, {v(S + r)}, {v(sm)}")
    for r in range(6):
        A(f"v_cvt_pk_bf16_f32 {v(G + r)}, {v(S + 2 * r)}, {v(S + 2 * r + 1)}")
    clean(A, range(G, G + 6))
    A(f"buffer_store_dwordx4 {v(G, 4)}, v3, {s(WS, 4)}, {s(sP)} offen sc1")
    A(f"buffer_store_dwordx2 {v(G + 4, 2)}, {v(PA)}, {s(WS, 4)}, {s(sP)} offen offset:1024 sc1")
    tmark(A, opts, 3)
    drain_unless_last(A, opts, sS)
    tmark(A, opts, 4)
    set_flag(A, sF, T)
    A(f"{nxt}:")
    A(f"s_add_u32 {s(sS)}, {s(sS)}, {X1_TEAMS}\ns_add_u32 {s(sXM)}, {s(sXM)}, {X1_TEAMS * 8192}\ns_add_u32 {s(sP)}, {s(sP)}, {X1_TEAMS * 32 * 1536}\ns_add_u32 {s(sF)}, {s(sF)}, {X1_TEAMS * FL_STEP}")
    A(f"s_cmp_lt_u32 {s(sS)}, 64\ns_cbranch_scc1 {top}")
    flush_stamps(A, opts)
    A("s_endpgm")


def reduce_tiles(A, R, out, rr, base):
    for vv in range(2):
        for w in range(4):
            A(f"ds_read_b128 {v(R + 16 * vv + 4 * w, 4)}, {v(rr)} offset:{base + w * 4096 + vv * KB}")
    for vv in range(2):
        b = R + 16 * vv
        A(f"s_waitcnt lgkmcnt({4 - 4 * vv})")
        for q in (0, 2):
            A(f"v_pk_add_f32 {v(b + q, 2)}, {v(b + q, 2)}, {v(b + 4 + q, 2)}\nv_pk_add_f32 {v(b + 8 + q, 2)}, {v(b + 8 + q, 2)}, {v(b + 12 + q, 2)}")
        for q in (0, 2):
            A(f"v_pk_add_f32 {v(out + 4 * vv + q, 2)}, {v(b + q, 2)}, {v(b + 8 + q, 2)}")


def gen_x2(A, opts):
    Y, PX, PM, Z, ACC, XV, R, O = 4, 36, 68, 84, 100, 116, 120, 152
    FA1, FA2, _, L8, RW, RR, XA, SA, T = range(160, 169)
    YN, FV = 172, 208
    X_ = 16
    sS, sY, sP, sZ, sFL, sXO, sH, sST, sF, sMASK, sTT = range(44, 55)
    half = opts.get('half', 1)
    END = 64 if half else 63
    b = load_srd(A, X_, "x", 40)
    A(f"s_cmp_eq_u32 s31, 63\ns_cselect_b32 {s(sTT)}, 0, 1")
    A(f"s_mov_b32 {s(sS)}, s31\ns_mov_b32 {s(sMASK)}, 0xffff0000\ns_and_b32 s36, {s(S_W)}, 1")
    A(f"v_lshlrev_b32 {v(FA1)}, 7, v1\nv_lshlrev_b32 {v(L8)}, 3, v0")
    A(f"v_and_b32 v4, 31, v0\nv_lshlrev_b32 v4, 7, v4\nv_add_u32 v4, {FP - FL}, v4\nv_add_u32 v5, {FZ - FL}, {v(FA1)}\nv_cmp_gt_u32 vcc, 32, v0\nv_cndmask_b32 {v(FA2)}, v5, v4, vcc")
    A(f"v_add_u32 v4, {X2_TEAMS * FL_STEP}, {v(FA1)}\nv_cmp_gt_u32 vcc, 48, v0\nv_cndmask_b32 {v(T + 2)}, v4, {v(FA2)}, vcc")
    A(f"s_lshl_b32 s33, {s(S_W)}, 12\nv_add_u32 {v(RW)}, s33, v3\ns_lshl_b32 s33, s36, 11\nv_add_u32 {v(RR)}, s33, v3")
    A(f"v_mul_u32_u24 v4, 896, v1\nv_lshl_add_u32 {v(XA)}, v2, 4, v4")
    A(f"v_lshlrev_b32 v4, 3, v1\nv_mov_b32 v5, {OOB}\nv_cmp_gt_u32 vcc, 16, v0\nv_cndmask_b32 {v(SA)}, v5, v4, vcc")
    A(f"s_lshl_b32 s33, s31, 4\ns_lshl_b32 s34, {s(S_W)}, 2\ns_add_u32 s33, s33, s34")
    A(f"s_mul_i32 {s(sY)}, s33, {28 * KB}\ns_lshl_b32 s34, s30, 11\ns_add_u32 {s(sY)}, {s(sY)}, s34\ns_add_u32 {s(sY)}, {s(sY)}, {YF}")
    A(f"s_mul_i32 {s(sP)}, s33, 3072\ns_add_u32 {s(sP)}, {s(sP)}, {PF}")
    A(f"s_mul_i32 {s(sZ)}, s33, 14336\ns_lshl_b32 s34, s30, 10\ns_add_u32 {s(sZ)}, {s(sZ)}, s34\ns_add_u32 {s(sZ)}, {s(sZ)}, {ZF}")
    A(f"s_mul_i32 {s(sFL)}, s31, {FL_STEP}\ns_add_u32 {s(sFL)}, {s(sFL)}, {FL}")
    A(f"s_lshl_b32 s33, s31, 1\ns_add_u32 s33, s33, s36")
    A(f"s_mul_i32 {s(sXO)}, s33, {16 * 896}\ns_lshl_b32 s34, s30, 6\ns_add_u32 {s(sXO)}, {s(sXO)}, s34")
    A(f"s_mul_i32 s33, s33, 14\ns_add_u32 s33, s33, s30\ns_lshl_b32 {s(sH)}, s33, 10\ns_add_u32 {s(sH)}, {s(sH)}, {HF}\ns_lshl_b32 {s(sST)}, s33, 7\ns_add_u32 {s(sST)}, {s(sST)}, {ST}")
    A(f"s_lshl_b32 s33, s30, 1\ns_add_u32 s33, s33, s36\ns_lshl_b32 s33, s33, 7\ns_add_u32 {s(sF)}, {s(sFL)}, s33\ns_add_u32 {s(sF)}, {s(sF)}, {FH - FL}")
    A("s_waitcnt lgkmcnt(0)")
    b()
    top, nxt = A.new("x2_top"), A.new("x2_next")
    mark(A, opts, 1)
    def y_loads(cnt=None):
        for hh in range(4):
            A(f"s_add_u32 s33, {s(sY)}, {hh * 28 * KB}")
            for vv in range(2):
                t = f"buffer_load_dwordx4 {v(YN + 8 * hh + 4 * vv, 4)}, v3, {s(WS, 4)}, s33 offen offset:{vv * KB} sc1"
                cnt.op(t) if cnt else A(t)
        t = f"buffer_load_dwordx4 {v(YN + 32, 4)}, {v(XA)}, {s(X_, 4)}, {s(sXO)} offen{WNT}"
        cnt.op(t) if cnt else A(t)

    wait_flags(A, FV, FA1, sFL)
    y_loads()
    A(f"s_waitcnt vmcnt(0)\n{top}:")
    A(f"s_cmp_lt_u32 {s(sS)}, {END - X2_TEAMS}\ns_cselect_b64 vcc, -1, 0\nv_cndmask_b32 {v(T + 3)}, {v(FA2)}, {v(T + 2)}, vcc")
    A(f"s_cselect_b32 s33, {X2_TEAMS * 16 * 28 * KB}, 0\ns_cselect_b32 s34, {X2_TEAMS * 32 * 896}, 0\ns_add_u32 {s(sY)}, {s(sY)}, s33\ns_add_u32 {s(sXO)}, {s(sXO)}, s34")
    for r in range(0, 32, 2):
        A(f"v_mov_b64 {v(Y + r, 2)}, {v(YN + r, 2)}")
    A(f"v_mov_b64 {v(XV, 2)}, {v(YN + 32, 2)}\nv_mov_b64 {v(XV + 2, 2)}, {v(YN + 34, 2)}")
    wait_inputs(A, opts, sS, FV, T + 3, sFL, 1)
    tmark(A, opts, 2)
    again = A.new("x2_again")
    last, sums, other = A.new("x2_last"), A.new("x2_sums"), A.new("x2_other")
    A("s_barrier")
    if half:
        A(f"s_cmp_eq_u32 {s(sS)}, 63\ns_cbranch_scc1 {last}")
    A(f"{again}:")
    vm = Cnt(A, "vmcnt", 63)
    for hh in range(4):
        A(f"s_add_u32 s33, {s(sP)}, {hh * 3072}\ns_add_u32 s34, {s(sZ)}, {hh * 14336}")
        for tt in range(2):
            vm.op(f"buffer_load_dwordx4 {v(PX + 8 * hh + 4 * tt, 4)}, v3, {s(WS, 4)}, s33 offen offset:{tt * 1536} sc1", f"x{hh}")
        for tt in range(2):
            vm.op(f"buffer_load_dwordx2 {v(PM + 8 * (hh // 2) + 4 * tt + 2 * (hh % 2), 2)}, {v(L8)}, {s(WS, 4)}, s33 offen offset:{tt * 1536 + 1024} sc1", f"m{hh // 2}")
        for vv in range(2):
            vm.op(f"buffer_load_dwordx2 {v(Z + 8 * (hh // 2) + 4 * vv + 2 * (hh % 2), 2)}, {v(L8)}, {s(WS, 4)}, s34 offen offset:{vv * 512} sc1", f"m{hh // 2}")
    y_loads(vm)
    for hh in range(4):
        vm.wait(f"x{hh}")
        for tt in range(2):
            for vv in range(2):
                d = v(ACC + 8 * tt + 4 * vv, 4)
                A(f"{MF} {d}, {v(Y + 8 * hh + 4 * vv, 4)}, {v(PX + 8 * hh + 4 * tt, 4)}, {'0' if hh == 0 else d}")
        if hh % 2:
            vm.wait(f"m{hh // 2}")
            for tt in range(2):
                for vv in range(2):
                    d = v(ACC + 8 * tt + 4 * vv, 4)
                    A(f"{MF} {d}, {v(Z + 8 * (hh // 2) + 4 * vv, 4)}, {v(PM + 8 * (hh // 2) + 4 * tt, 4)}, {d}")
    verify_last(A, opts, sS, range(PX, ACC), T, again, 9)
    for k in range(4):
        A(f"ds_write_b128 {v(RW)}, {v(ACC + 4 * k, 4)} offset:{k * KB}")
    A(f"s_cmp_ge_u32 {s(S_W)}, 2\n{sums}:\ns_waitcnt lgkmcnt(0)\ns_barrier\ns_cbranch_scc1 {other}")
    reduce_tiles(A, R, O, RR, 0)
    tmark(A, opts, 3)
    for r in range(4):
        A(f"v_cvt_pk_bf16_f32 {v(R + r)}, {v(O + 2 * r)}, {v(O + 2 * r + 1)}")
    unpack(A, O, R, 4, sMASK)
    unpack(A, R + 8, XV, 4, sMASK)
    for r in range(8):
        A(f"v_add_f32 {v(O + r)}, {v(O + r)}, {v(R + 8 + r)}")
    for r in range(4):
        A(f"v_cvt_pk_bf16_f32 {v(R + r)}, {v(O + 2 * r)}, {v(O + 2 * r + 1)}")
    clean(A, range(R, R + 4))
    A(f"buffer_store_dwordx4 {v(R, 4)}, v3, {s(WS, 4)}, {s(sH)} offen sc1")
    unpack(A, O, R, 4, sMASK)
    M = R + 8
    A(f"v_add_f32 {v(M)}, {v(O)}, {v(O + 1)}")
    for r in range(2, 8):
        A(f"v_add_f32 {v(M)}, {v(M)}, {v(O + r)}")
    xor_reduce(A, "v_add_f32", M, T)
    A(f"v_mul_f32 {v(M)}, {f32(1.0 / 32)}, {v(M)}")
    for r in range(8):
        A(f"v_sub_f32 {v(O + r)}, {v(O + r)}, {v(M)}")
    A(f"v_mul_f32 {v(M + 1)}, {v(O)}, {v(O)}")
    for r in range(1, 8):
        A(f"v_fmac_f32 {v(M + 1)}, {v(O + r)}, {v(O + r)}")
    xor_reduce(A, "v_add_f32", M + 1, T)
    clean(A, (M, M + 1))
    A(f"buffer_store_dwordx2 {v(M, 2)}, {v(SA)}, {s(WS, 4)}, {s(sST)} offen sc1")
    tmark(A, opts, 5)
    drain_unless_last(A, opts, sS)
    tmark(A, opts, 4)
    set_flag(A, sF, T)
    A(f"s_waitcnt vmcnt(3)\n{nxt}:")
    for r, step in ((sS, 1), (sP, 16 * 3072), (sZ, 16 * 14336), (sFL, FL_STEP), (sH, 28 * KB), (sST, 28 * 128), (sF, FL_STEP)):
        A(f"s_add_u32 {s(r)}, {s(r)}, {X2_TEAMS * step}")
    A(f"s_cmp_lt_u32 {s(sS)}, {END}\ns_cbranch_scc1 {top}")
    flush_stamps(A, opts)
    A("s_endpgm")
    A(f"{other}:\ns_waitcnt vmcnt(0)\ns_branch {nxt}")
    if half:
        A(f"{last}:\ns_mul_i32 s35, {s(sTT)}, 1536\ns_add_u32 {s(sP)}, {s(sP)}, s35\ns_lshl_b32 s35, {s(sTT)}, 11\nv_add_u32 {v(RW)}, s35, {v(RW)}")
        rep = A.new("x2_rep")
        A(f"{rep}:")
        vm = Cnt(A, "vmcnt", 63)
        regs = []
        for hh in range(4):
            q = 8 * (hh // 2) + 2 * (hh % 2)
            A(f"s_add_u32 s33, {s(sP)}, {hh * 3072}\ns_add_u32 s34, {s(sZ)}, {hh * 14336}")
            vm.op(f"buffer_load_dwordx4 {v(PX + 8 * hh, 4)}, v3, {s(WS, 4)}, s33 offen sc1", f"x{hh}")
            vm.op(f"buffer_load_dwordx2 {v(PM + q, 2)}, {v(L8)}, {s(WS, 4)}, s33 offen offset:1024 sc1", f"m{hh // 2}")
            for vv in range(2):
                vm.op(f"buffer_load_dwordx2 {v(Z + q + 4 * vv, 2)}, {v(L8)}, {s(WS, 4)}, s34 offen offset:{vv * 512} sc1", f"m{hh // 2}")
            regs += list(range(PX + 8 * hh, PX + 8 * hh + 4)) + [PM + q, PM + q + 1]
        for hh in range(4):
            vm.wait(f"x{hh}")
            for vv in range(2):
                d = v(ACC + 4 * vv, 4)
                A(f"{MF} {d}, {v(Y + 8 * hh + 4 * vv, 4)}, {v(PX + 8 * hh, 4)}, {'0' if hh == 0 else d}")
            if hh % 2:
                vm.wait(f"m{hh // 2}")
                for vv in range(2):
                    d = v(ACC + 4 * vv, 4)
                    A(f"{MF} {d}, {v(Z + 8 * (hh // 2) + 4 * vv, 4)}, {v(PM + 8 * (hh // 2), 4)}, {d}")
        poll_guard(A)
        sentinel_check(A, regs + list(range(Z, Z + 16)), T, rep)
        for k in range(2):
            A(f"ds_write_b128 {v(RW)}, {v(ACC + 4 * k, 4)} offset:{k * KB}")
        A(f"s_cmp_lg_u32 {s(S_W)}, {s(sTT)}\ns_branch {sums}")


def tr_addr(A, dst, sbase):
    A(f"v_lshrrev_b32 v4, 2, v1\nv_lshlrev_b32 v4, 6, v4\nv_and_b32 v5, 3, v0\nv_lshl_add_u32 v4, v5, 4, v4\nv_lshl_add_u32 v4, v2, 9, v4\nv_add_u32 {v(dst)}, {s(sbase)}, v4")


def row_addr(A, dst, stride):
    A(f"v_lshrrev_b32 v4, 2, v0\nv_mov_b32 v6, {stride}\nv_mul_lo_u32 v4, v4, v6\nv_and_b32 v5, 3, v0\nv_lshl_add_u32 {v(dst)}, v5, 4, v4")


def gen_f1(A, opts):
    H, ACC, CS, B1, SV, U, PK = 4, 60, 68, 76, 84, 92, 100
    FA, _, SA, RA, TR, T = range(108, 114)
    FV = 120
    W_, B_ = 16, 20
    sS, sH, sST, sG, sFH, sF, sMASK, sP = range(44, 52)
    after_first_y(A, opts)
    if opts.get('f1swap'):
        A('s_xor_b32 s31, s31, 1')
    b = [load_srd(A, W_, "w1", 40), load_srd(A, B_, "b1", 42)]
    A(f"s_lshr_b32 s34, {s(S_W)}, 1\ns_and_b32 s35, {s(S_W)}, 1\ns_lshl_b32 {s(sP)}, s30, 1\ns_add_u32 {s(sP)}, {s(sP)}, s34")
    row_addr(A, RA, 3584)
    A(f"s_mul_i32 s36, s34, {28 * KB}")
    tr_addr(A, TR, 36)
    A(f"s_mul_i32 s37, s35, {14 * KB}\ns_add_u32 s36, s36, s37\ns_mul_i32 s37, s35, {224 * 3584}\ns_lshl_b32 s38, {s(sP)}, 6\ns_add_u32 s37, s37, s38")
    A(f"v_lshlrev_b32 v7, 4, v2\ns_mov_b32 {s(sMASK)}, 0xffff0000")
    A("s_waitcnt lgkmcnt(0)")
    for f in b:
        f()
    for j in range(14):
        A(f"s_mov_b32 m0, s36\ns_add_u32 s36, s36, 1024\nbuffer_load_dwordx4 {v(RA)}, {s(W_, 4)}, s37 offen{WNT} lds\ns_add_u32 s37, s37, {16 * 3584}")
    A(f"buffer_load_dwordx4 {v(PK, 4)}, v7, {s(B_, 4)}, s38 offen")
    A(f"s_mov_b32 {s(sS)}, s31\ns_lshl_b32 s33, s31, 1\ns_add_u32 s33, s33, s35")
    A(f"s_mul_i32 {s(sH)}, s33, {14 * KB}\ns_add_u32 {s(sH)}, {s(sH)}, {HF}\ns_mul_i32 {s(sST)}, s33, {14 * 128}\ns_add_u32 {s(sST)}, {s(sST)}, {ST}")
    A(f"s_mul_i32 s34, s33, 56\ns_add_u32 s34, s34, {s(sP)}\ns_lshl_b32 {s(sG)}, s34, 10\ns_add_u32 {s(sG)}, {s(sG)}, {GF}")
    A(f"s_mul_i32 {s(sFH)}, s31, {FL_STEP}\ns_lshl_b32 {s(sF)}, s35, 13\ns_lshl_b32 s34, {s(sP)}, 7\ns_add_u32 {s(sF)}, {s(sF)}, s34\ns_add_u32 {s(sF)}, {s(sF)}, {s(sFH)}\ns_add_u32 {s(sF)}, {s(sF)}, {FG}")
    A(f"s_add_u32 {s(sFH)}, {s(sFH)}, {FH}")
    A(f"v_min_u32 {v(FA)}, 13, v1\nv_lshlrev_b32 {v(FA)}, 8, {v(FA)}\ns_lshl_b32 s34, s35, 7\nv_add_u32 {v(FA)}, s34, {v(FA)}")
    A(f"v_lshlrev_b32 {v(SA)}, 7, v2\nv_lshl_add_u32 {v(SA)}, v1, 3, {v(SA)}\nv_add_u32 v4, 1536, {v(SA)}\nv_mov_b32 v5, {OOB}\nv_cmp_gt_u32 vcc, 32, v0\nv_cndmask_b32 {v(T + 5)}, v5, v4, vcc")
    A("s_waitcnt vmcnt(0)\ns_barrier")
    unpack(A, B1, PK, 4, sMASK)
    lg = Cnt(A, "lgkmcnt", 15)
    for vv in range(2):
        for ks in range(14):
            for x in range(2):
                lg.room(1)
                lg.op(f"ds_read_b64_tr_b16 {a((vv * 14 + ks) * 4 + 2 * x, 2)}, {v(TR)} offset:{ks * 2048 + x * 256 + vv * 8}")
    for r in range(4):
        A(f"v_mov_b32 {v(H + r)}, 0x3f803f80")
    lg.drain()
    for ks in range(14):
        for vv in range(2):
            d = v(CS + 4 * vv, 4)
            A(f"{MF} {d}, {a((vv * 14 + ks) * 4, 4)}, {v(H, 4)}, {'0' if ks == 0 else d}")
    K1 = -2.0 * math.sqrt(2.0 / math.pi) * math.log2(math.e)
    A(f"s_mov_b32 s54, {f32(K1 * 0.044715)}\nv_mov_b32 {v(T + 4)}, {f32(K1)}")
    top = A.new("f1_top")
    mark(A, opts, 1)
    A(f"{top}:")
    wait_inputs(A, opts, sS, FV, FA, sFH, 2)
    tmark(A, opts, 2)
    again = A.new("f1_again")
    A(f"{again}:")
    vm = Cnt(A, "vmcnt", 63)
    for k in range(3):
        vm.op(f"buffer_load_dwordx2 {v(SV + 2 * k, 2)}, {v(SA)}, {s(WS, 4)}, {s(sST)} offen offset:{k * 512} sc1", "s")
    vm.op(f"buffer_load_dwordx2 {v(SV + 6, 2)}, {v(T + 5)}, {s(WS, 4)}, {s(sST)} offen sc1", "s")
    A(f"s_mov_b32 s33, {s(sH)}")
    for ks in range(14):
        vm.op(f"buffer_load_dwordx4 {v(H + 4 * ks, 4)}, v3, {s(WS, 4)}, s33 offen offset:{(ks % 4) * KB} sc1", f"h{ks}")
        if ks % 4 == 3:
            A("s_add_u32 s33, s33, 4096")
    vm.wait("s")
    mu, m2, q2 = T, T + 1, T + 2
    A(f"v_add_f32 {v(mu)}, {v(SV)}, {v(SV + 2)}\nv_add_f32 {v(m2)}, {v(SV + 1)}, {v(SV + 3)}\nv_mul_f32 {v(q2)}, {v(SV)}, {v(SV)}\nv_fmac_f32 {v(q2)}, {v(SV + 2)}, {v(SV + 2)}")
    for k in (4, 6):
        A(f"v_add_f32 {v(mu)}, {v(mu)}, {v(SV + k)}\nv_add_f32 {v(m2)}, {v(m2)}, {v(SV + k + 1)}\nv_fmac_f32 {v(q2)}, {v(SV + k)}, {v(SV + k)}")
    A(f"v_fmac_f32 {v(m2)}, {f32(32.0)}, {v(q2)}")
    xor_reduce(A, "v_add_f32", mu, T + 3)
    xor_reduce(A, "v_add_f32", m2, T + 3)
    A(f"v_mul_f32 {v(mu)}, {f32(1.0 / 14)}, {v(mu)}\nv_mul_f32 {v(q2)}, {v(mu)}, {v(mu)}")
    A(f"v_mul_f32 {v(m2)}, {f32(1.0 / 448)}, {v(m2)}\nv_sub_f32 {v(m2)}, {v(m2)}, {v(q2)}\nv_max_f32 {v(m2)}, 0, {v(m2)}\nv_add_f32 {v(m2)}, {f32(1e-5)}, {v(m2)}\nv_rsq_f32 {v(m2)}, {v(m2)}")
    for ks in range(14):
        vm.wait(f"h{ks}")
        for vv in range(2):
            d = v(ACC + 4 * vv, 4)
            A(f"{MF} {d}, {a((vv * 14 + ks) * 4, 4)}, {v(H + 4 * ks, 4)}, {'0' if ks == 0 else d}")
    verify_last(A, opts, sS, list(range(H, H + 56)) + list(range(SV, SV + 8)), U, again)
    tmark(A, opts, 3)
    for r in range(8):
        A(f"v_fma_f32 {v(U + r)}, -{v(mu)}, {v(CS + r)}, {v(ACC + r)}")
    for r in range(8):
        A(f"v_fma_f32 {v(U + r)}, {v(m2)}, {v(U + r)}, {v(B1 + r)}")
    for r in range(8):
        A(f"v_mul_f32 {v(ACC + r)}, {v(U + r)}, {v(U + r)}")
    for r in range(8):
        A(f"v_fma_f32 {v(ACC + r)}, {v(ACC + r)}, s54, {v(T + 4)}")
    for r in range(8):
        A(f"v_mul_f32 {v(ACC + r)}, {v(ACC + r)}, {v(U + r)}")
    for r in range(8):
        A(f"v_exp_f32 {v(ACC + r)}, {v(ACC + r)}")
    for r in range(8):
        A(f"v_add_f32 {v(ACC + r)}, 1.0, {v(ACC + r)}")
    for r in range(8):
        A(f"v_rcp_f32 {v(ACC + r)}, {v(ACC + r)}")
    for r in range(8):
        A(f"v_mul_f32 {v(U + r)}, {v(U + r)}, {v(ACC + r)}")
    for r in range(4):
        A(f"v_cvt_pk_bf16_f32 {v(PK + r)}, {v(U + 2 * r)}, {v(U + 2 * r + 1)}")
    clean(A, range(PK, PK + 4))
    A(f"buffer_store_dwordx4 {v(PK, 4)}, v3, {s(WS, 4)}, {s(sG)} offen sc1")
    tmark(A, opts, 5)
    drain_unless_last(A, opts, sS)
    tmark(A, opts, 4)
    set_flag(A, sF, SV)
    for r, step in ((sS, 1), (sH, 28 * KB), (sST, 28 * 128), (sG, 112 * KB), (sFH, FL_STEP), (sF, FL_STEP)):
        A(f"s_add_u32 {s(r)}, {s(r)}, {F_TEAMS * step}")
    A(f"s_cmp_lt_u32 {s(sS)}, 64\ns_cbranch_scc1 {top}")
    flush_stamps(A, opts)
    A("s_endpgm")


def gen_f2(A, opts):
    Gr, ACC, HV, B2, R, O = 4, 60, 76, 80, 88, 120
    FA, _, RA, TR, RW, RR, OA, T = range(128, 136)
    FV = 138
    W_, B_, O_ = 16, 20, 24
    sS, sG, sH, sO, sFG, sMASK = range(44, 50)
    after_first_y(A, opts)
    b = [load_srd(A, W_, "w2", 40), load_srd(A, B_, "b2", 42), load_srd(A, O_, "out", 38)]
    A(f"s_lshr_b32 s34, s30, 1\ns_and_b32 s35, s30, 1\ns_and_b32 s29, {s(S_W)}, 1")
    row_addr(A, RA, 896)
    A(f"s_mul_i32 s28, {s(S_W)}, {28 * KB}")
    tr_addr(A, TR, 28)
    A(f"v_lshlrev_b32 v7, 4, v2\ns_mov_b32 {s(sMASK)}, 0xffff0000\ns_lshl_b32 s52, s34, 7\ns_lshl_b32 s53, s29, 6\ns_add_u32 s53, s53, s52")
    A("s_waitcnt lgkmcnt(0)")
    for f in b:
        f()
    A(f"buffer_load_dwordx4 {v(HV, 4)}, v7, {s(B_, 4)}, s53 offen")
    lg = Cnt(A, "lgkmcnt", 15)
    for pa in range(2):
        A(f"s_mul_i32 s37, {s(S_W)}, {448 * 896}\ns_add_u32 s37, s37, s52\ns_add_u32 s37, s37, {pa * 64}\ns_mov_b32 s36, s28")
        for j in range(28):
            A(f"s_mov_b32 m0, s36\ns_add_u32 s36, s36, 1024\nbuffer_load_dwordx4 {v(RA)}, {s(W_, 4)}, s37 offen{WNT} lds\ns_add_u32 s37, s37, {16 * 896}")
        A("s_waitcnt vmcnt(0)")
        for vv in range(2):
            for ks in range(14):
                for x in range(2):
                    lg.room(1)
                    lg.op(f"ds_read_b64_tr_b16 {a(((2 * pa + vv) * 14 + ks) * 4 + 2 * x, 2)}, {v(TR)} offset:{ks * 2048 + x * 256 + vv * 8}")
        lg.drain()
    unpack(A, B2, HV, 4, sMASK)
    A(f"s_mov_b32 {s(sS)}, s31\ns_lshl_b32 s33, s31, 1\ns_add_u32 s33, s33, s35")
    A(f"s_mul_i32 s36, s33, 56\ns_mul_i32 s37, {s(S_W)}, 14\ns_add_u32 s36, s36, s37\ns_lshl_b32 {s(sG)}, s36, 10\ns_add_u32 {s(sG)}, {s(sG)}, {GF}")
    A(f"s_mul_i32 s36, s33, 14\ns_lshl_b32 s37, s34, 1\ns_add_u32 s36, s36, s37\ns_add_u32 s36, s36, s29\ns_lshl_b32 {s(sH)}, s36, 10\ns_add_u32 {s(sH)}, {s(sH)}, {HF}")
    A(f"s_mul_i32 {s(sO)}, s33, {16 * 896}\ns_add_u32 {s(sO)}, {s(sO)}, s53\ns_mul_i32 {s(sFG)}, s31, {FL_STEP}\ns_lshl_b32 s36, s35, 13\ns_add_u32 {s(sFG)}, {s(sFG)}, s36\ns_add_u32 {s(sFG)}, {s(sFG)}, {FG}")
    A(f"v_min_u32 {v(FA)}, 55, v0\nv_lshlrev_b32 {v(FA)}, 7, {v(FA)}")
    A(f"s_lshl_b32 s33, {s(S_W)}, 12\nv_add_u32 {v(RW)}, s33, v3\ns_lshl_b32 s33, s29, 11\nv_add_u32 {v(RR)}, s33, v3")
    A(f"v_mul_u32_u24 v4, 896, v1\nv_lshl_add_u32 {v(OA)}, v2, 4, v4")
    top, nxt = A.new("f2_top"), A.new("f2_next")
    mark(A, opts, 1)
    A(f"{top}:")
    wait_inputs(A, opts, sS, FV, FA, sFG, 4)
    tmark(A, opts, 2)
    again = A.new("f2_again")
    A(f"s_barrier\n{again}:")
    vm = Cnt(A, "vmcnt", 63)
    A(f"s_mov_b32 s33, {s(sG)}")
    for ks in range(14):
        vm.op(f"buffer_load_dwordx4 {v(Gr + 4 * ks, 4)}, v3, {s(WS, 4)}, s33 offen offset:{(ks % 4) * KB} sc1", f"g{ks}")
        if ks % 4 == 3:
            A("s_add_u32 s33, s33, 4096")
    vm.op(f"buffer_load_dwordx4 {v(HV, 4)}, v3, {s(WS, 4)}, {s(sH)} offen sc1", "h")
    for ks in range(14):
        vm.wait(f"g{ks}")
        for t in range(4):
            d = v(ACC + 4 * t, 4)
            A(f"{MF} {d}, {a((t * 14 + ks) * 4, 4)}, {v(Gr + 4 * ks, 4)}, {'0' if ks == 0 else d}")
    verify_last(A, opts, sS, list(range(Gr, Gr + 56)) + list(range(HV, HV + 4)), T, again)
    for k in range(4):
        A(f"ds_write_b128 {v(RW)}, {v(ACC + 4 * k, 4)} offset:{k * KB}")
    A(f"s_cmp_ge_u32 {s(S_W)}, 2\ns_waitcnt vmcnt(0) lgkmcnt(0)\ns_barrier\ns_cbranch_scc1 {nxt}")
    reduce_tiles(A, R, O, RR, 0)
    tmark(A, opts, 3)
    unpack(A, R, HV, 4, sMASK)
    for r in range(8):
        A(f"v_add_f32 {v(O + r)}, {v(O + r)}, {v(B2 + r)}")
    for r in range(8):
        A(f"v_add_f32 {v(O + r)}, {v(O + r)}, {v(R + r)}")
    for r in range(4):
        A(f"v_cvt_pk_bf16_f32 {v(R + 8 + r)}, {v(O + 2 * r)}, {v(O + 2 * r + 1)}")
    A(f"buffer_store_dwordx4 {v(R + 8, 4)}, {v(OA)}, {s(O_, 4)}, {s(sO)} offen{['', ' sc1', ' nt'][opts.get('osc', 0)]}")
    A(f"{nxt}:")
    for r, step in ((sS, 1), (sG, 112 * KB), (sH, 28 * KB), (sO, 32 * 896), (sFG, FL_STEP)):
        A(f"s_add_u32 {s(r)}, {s(r)}, {F_TEAMS * step}")
    A(f"s_cmp_lt_u32 {s(sS)}, 64\ns_cbranch_scc1 {top}")
    dbg_time(A, opts, 7, 213)
    amp_mark(A, opts, 4)
    amp_spin(A, opts, 213, (4,))
    flush_stamps(A, opts)
    A("s_endpgm")
```

```python
from asmlib import v, a, s
from layout import *
from common import *
from gen_prep import chunk_pos

SMF = "v_smfmac_f32_16x16x64_bf16"
MF = "v_mfma_f32_16x16x32_bf16"
N_CHAIN = 32


def chain_mode(A, opts, vm, lab):
    lp = A.new("reg")
    A("v_mov_b32 v5, 68")
    A(f"{lp}:\ns_sleep 16")
    A(f"buffer_load_dword v4, v5, {s(DB, 4)}, 0 offen sc1")
    poll_guard(A)
    vm.drain()
    A(f"v_readfirstlane_b32 s34, v4\ns_and_b32 s35, s34, 0xff\ns_cmp_eq_u32 s35, {N_CHAIN}\ns_cbranch_scc0 {lp}")
    mark(A, opts, 1)
    dbg_time(A, opts, 5, 16)
    if lab:
        A(f"s_waitcnt lgkmcnt(0)\ns_lshr_b32 s34, s34, 8\ns_cmp_eq_u32 s34, 0\ns_cbranch_scc0 {lab}")


def gather_addr(A, ga0, ga1):
    A(f"s_mul_i32 s33, {s(S_W)}, {112 * 16}\nv_add_u32 {v(ga0)}, s33, v3")
    A(f"v_min_u32 {v(ga1)}, 47, v0\nv_lshlrev_b32 {v(ga1)}, 4, {v(ga1)}\ns_add_u32 s33, s33, 1024\nv_add_u32 {v(ga1)}, s33, {v(ga1)}")


def mem_loads(A, G, ga0, ga1, scm):
    A(f"buffer_load_dwordx4 {v(G, 4)}, {v(ga0)}, {s(WS, 4)}, {s(scm)} offen sc1")
    A(f"buffer_load_dwordx4 {v(G + 4, 4)}, {v(ga1)}, {s(WS, 4)}, {s(scm)} offen sc1")


def check8(A, G, t):
    A(f"v_max3_u32 {v(t)}, {v(G)}, {v(G + 1)}, {v(G + 2)}\nv_max3_u32 {v(t + 1)}, {v(G + 3)}, {v(G + 4)}, {v(G + 5)}")
    A(f"v_max3_u32 {v(t)}, {v(t)}, {v(G + 6)}, {v(G + 7)}\nv_max_u32 {v(t)}, {v(t)}, {v(t + 1)}\nv_cmp_eq_u32 vcc, -1, {v(t)}")


def gather_mem(A, opts, G0, G1, ga0, ga1, scm, t, memb, shadow, ka=""):
    lp, ok = A.new("poll"), A.new("ok")
    mem_loads(A, G0, ga0, ga1, scm)
    for x in shadow:
        A(x)
    A(f"{lp}:")
    for cur, other in ((G0, G1), (G1, G0)):
        mem_loads(A, other, ga0, ga1, scm)
        poll_guard(A)
        A(ka)
        A("s_waitcnt vmcnt(2)")
        A(f"ds_write_b128 {v(ga0)}, {v(cur, 4)} offset:{memb}\nds_write_b128 {v(ga1)}, {v(cur + 4, 4)} offset:{memb}")
        check8(A, cur, t)
        if opts.get("solo"):
            A(f"s_cbranch_vccz {ok}\ns_branch {ok}")
        A(f"s_cbranch_vccz {ok}" if cur == G0 else f"s_cbranch_vccnz {lp}")
    A(f"{ok}:")
    stamp(A, opts, 0)
    A("s_waitcnt lgkmcnt(0)\ns_barrier")


def notice_wait(A, opts, F, fa, sreg, off, shadow, sstep=None):
    if opts.get("solo"):
        for x in shadow:
            A(x)
        return
    depth = opts.get("nd", 3)
    lp, ok = A.new("nw"), A.new("nok")
    ld = lambda k: A(f"buffer_load_dword {v(F + k)}, {v(fa)}, {s(WS, 4)}, {s(sreg)} offen offset:{off} sc1")
    for k in range(depth - 1):
        ld(k)
    for x in shadow:
        A(x)
    if sstep is not None:
        A(f"s_cmp_eq_u32 {s(sstep)}, 0\ns_cbranch_scc1 {ok}")
    A(f"{lp}:")
    poll_guard(A)
    for k in range(depth):
        ld((k + depth - 1) % depth)
        A(f"s_waitcnt vmcnt({depth - 1})\nv_cmp_ne_u32 vcc, {s(S_NONCE)}, {v(F + k)}")
        A(f"s_cbranch_vccz {ok}" if k < depth - 1 else f"s_cbranch_vccnz {lp}")
    A(f"{ok}:")


def fetch_mem(A, opts, G, ga0, ga1, scm, t, memb, ka=""):
    lp = A.new("fm")
    A(f"{lp}:")
    mem_loads(A, G, ga0, ga1, scm)
    poll_guard(A)
    A(ka)
    A("s_waitcnt vmcnt(0)")
    A(f"ds_write_b128 {v(ga0)}, {v(G, 4)} offset:{memb}\nds_write_b128 {v(ga1)}, {v(G + 4, 4)} offset:{memb}")
    check8(A, G, t)
    if opts.get("cnt"):
        A("s_add_u32 s53, s53, 1")
    if not opts.get("solo"):
        A(f"s_cbranch_vccnz {lp}")
    stamp(A, opts, 0)
    A("s_waitcnt lgkmcnt(0)\ns_barrier")


def notice(A, val, addr, sreg, off, sc, lanes=64):
    if lanes < 64:
        A(f"s_mov_b64 exec, {hex((1 << lanes) - 1)}")
    A(f"buffer_store_dword {v(val)}, {v(addr)}, {s(WS, 4)}, {s(sreg)} offen offset:{off}{sc}")
    if lanes < 64:
        A("s_mov_b64 exec, -1")


def place(A, opts, key, absolute=True):
    k = opts.get(key)
    if k is not None:
        if absolute:
            A(".p2align 5")
        A("s_nop 0\n" * k)


def idx_reg(A, r):
    A(f"v_mov_b32 {v(r)}, 0x44444444\nv_mov_b32 v4, 0xeeeeeeee\nv_cmp_gt_u32 vcc, 8, v1\nv_cndmask_b32 {v(r)}, v4, {v(r)}, vcc")


def zero(r, n):
    return [f"v_mov_b64 {v(r + 2 * k, 2)}, 0" for k in range(n // 2)]


def emit_stream(A, stream, fill):
    for i, m_ in enumerate(stream):
        m_() if callable(m_) else A(m_)
        items = fill.get(i, [])
        for x in items:
            x() if callable(x) else A(x)
        if not items and i + 1 < len(stream):
            A("s_nop 1")


def gen_chain_a(A, opts):
    MEM, ACC, KEY, TSP, SC, PK, IDX = 4, 32, 60, 84, 92, 104, 108
    CK, TR3B, SPARE, FA, MK, MK3, TW0, TW3A, TW3B, TR0, TR3 = range(109, 120)
    XR, SW, SR, PX, PM = 0, 1, 2, 106, 107
    T = 104
    REG = 32768
    XK, TB, SB, MEMB = 0, 16384, 57344, 24576
    sS, sCM, sCP, sXA, sXB, sM0, sP0, sODD, sREG, sEF, sYP, sMB, sQ, sEX, sNP = 44, 45, 46, 47, 48, 49, 50, 51, 52, 54, 55, 56, 57, 58, 72
    vm = Cnt(A, "vmcnt", 63)
    A(f"s_and_b32 {s(sODD)}, {s(S_W)}, 1\ns_mul_i32 s33, {s(S_W)}, 7\ns_add_u32 {s(sP0)}, s33, {s(sODD)}\ns_lshr_b32 {s(sP0)}, {s(sP0)}, 1")
    A(f"s_lshl_b32 {s(sREG)}, {s(S_W)}, 15\ns_mov_b32 {s(sM0)}, {s(sREG)}")
    A(f"s_lshl_b32 {s(sXA)}, {s(sP0)}, 10\ns_add_u32 {s(sXA)}, {s(sXA)}, {XS}\ns_mul_i32 s33, {s(sODD)}, 4092\ns_sub_u32 {s(sXB)}, {s(sXA)}, s33")

    if opts.get("gemu"):
        A(f"s_mul_i32 {s(sXA)}, {s(S_ID)}, {28 * KB}\ns_mul_i32 s33, {s(S_W)}, {3 * KB}\ns_add_u32 {s(sXA)}, {s(sXA)}, s33\ns_add_u32 {s(sXA)}, {s(sXA)}, {opts['gemu'] << 20}\ns_mov_b32 {s(sXB)}, {s(sXA)}")

    def dma(k):
        aa, b = k // 4, k % 4
        pre = f"s_add_u32 s33, {s(sM0)}, {aa * 4096}\ns_mov_b32 m0, s33\n" if b == 0 else ""
        if b in (0, 3):
            pre += f"s_add_u32 s34, {s(sXB if b == 3 else sXA)}, {aa * 14336}\n"
        return pre + f"buffer_load_dwordx4 v3, {s(WS, 4)}, s34 offen offset:{b * 1024} sc1 lds"

    A(f"s_mul_i32 s34, {s(S_ID)}, {FRAG_H}\ns_mul_i32 s33, {s(S_W)}, {7 * 14 * KB}\ns_add_u32 s34, s34, s33")
    if AF:
        A(f"s_add_u32 s34, s34, {AF}")
    A(f"s_mul_i32 s35, {s(sODD)}, {14 * KB}\ns_add_u32 s35, s35, s34\ns_add_u32 s36, s34, {6 * 14 * KB}\ns_cmp_eq_u32 {s(sODD)}, 0\ns_cselect_b32 s36, s36, s34")
    A(f"s_mul_i32 s33, {s(S_ID)}, 7\nv_min_u32 v4, 6, v0\nv_add_u32 v4, s33, v4")

    def piece(kk):
        frag_loads(A, 35, [((i * 7 + kk) * 8 + 4 * u, i * 14 * KB + (2 * kk + u) * KB) for i in range(6) for u in range(2)])
        frag_loads(A, 36, [((42 + kk) * 8 + 4 * u, (2 * kk + u) * KB) for u in range(2)])

    A(f"s_lshl_b32 {s(sQ)}, {s(S_W)}, 11\ns_add_u32 {s(sMB)}, {s(sQ)}, {MEMB}\ns_add_u32 {s(sQ)}, {s(sQ)}, {CM}")

    def fetch():
        A(f"buffer_load_dwordx4 v3, {s(WS, 4)}, {s(sQ)} offen sc1 lds")
        if opts.get("sk3", 1):
            sk = A.new("f3")
            A(f"s_cmp_eq_u32 {s(S_W)}, 3\ns_cbranch_scc1 {sk}\nbuffer_load_dwordx4 v3, {s(WS, 4)}, {s(sQ)} offen offset:1024 sc1 lds\n{sk}:")
        else:
            A(f"buffer_load_dwordx4 v3, {s(WS, 4)}, {s(sQ)} offen offset:1024 sc1 lds")

    def first_inputs():
        for k in range(8):
            A(dma(k))
        A(f"s_mov_b32 m0, {s(sMB)}")
        fetch()

    if opts.get('late'):
        A('v_mov_b32 v20, v4\ns_mov_b32 s60, s35\ns_mov_b32 s61, s36')
        wait_prep(A, True)
        A('v_mov_b32 v4, v20\ns_mov_b32 s35, s60\ns_mov_b32 s36, s61')
        mark(A, opts, 3)
    load_pieces(A, [(14, lambda kk=kk: piece(kk)) for kk in range(7)], 4, (10, first_inputs))
    mark(A, opts, 2)
    idx_reg(A, IDX)
    A(f"v_and_b32 v4, 7, v1\nv_lshlrev_b32 v4, 4, v4\nv_lshl_add_u32 v4, v2, 7, v4\ns_lshl_b32 s33, {s(sP0)}, 9\nv_add_u32 {v(MK)}, s33, v4")
    A(f"s_mul_i32 s34, {s(sODD)}, 2044\ns_sub_u32 s34, {1536 + MEMB}, s34\nv_add_u32 {v(MK3)}, s34, {v(MK)}")
    A(f"v_lshrrev_b32 v4, 1, v2\nv_lshlrev_b32 v4, 3, v4\nv_xor_b32 v4, v4, v1\nv_lshlrev_b32 v4, 3, v4\nv_lshl_add_u32 v4, v2, 7, v4\nv_add_u32 {v(TW0)}, {s(sREG)}, v4")
    A(f"s_add_u32 s34, {s(sREG)}, {TB + 3072}\nv_lshrrev_b32 v4, 5, v0\nv_lshlrev_b32 v4, 2, v4\nv_xor_b32 v4, v4, v0\nv_lshlrev_b32 v4, 3, v4\nv_add_u32 {v(TW3A)}, s34, v4\nv_xor_b32 {v(TW3B)}, 64, {v(TW3A)}\nv_add_u32 {v(TW3B)}, 512, {v(TW3B)}")
    A("v_lshrrev_b32 v4, 2, v1\nv_and_b32 v5, 3, v1")
    A("v_lshrrev_b32 v6, 1, v2\nv_lshrrev_b32 v8, 1, v5\nv_xor_b32 v6, v6, v8\nv_lshlrev_b32 v6, 3, v6")
    A("v_and_b32 v7, 1, v2\nv_lshl_add_u32 v6, v7, 1, v6\nv_and_b32 v7, 1, v4\nv_add_u32 v6, v6, v7")
    A("v_lshrrev_b32 v7, 1, v4\nv_lshlrev_b32 v6, 3, v6\nv_lshl_add_u32 v6, v7, 9, v6\nv_lshl_add_u32 v6, v5, 7, v6")
    A(f"v_add_u32 {v(TR0)}, {s(sREG)}, v6")
    A("v_lshrrev_b32 v6, 1, v2\nv_xor_b32 v6, v6, v8\nv_lshlrev_b32 v6, 3, v6\nv_and_b32 v7, 1, v2\nv_lshl_add_u32 v6, v7, 1, v6\nv_and_b32 v7, 1, v4\nv_add_u32 v6, v6, v7")
    A("v_lshrrev_b32 v9, 1, v4\nv_lshl_add_u32 v6, v9, 2, v6\nv_lshlrev_b32 v6, 3, v6\nv_lshl_add_u32 v6, v8, 9, v6\nv_lshl_add_u32 v6, v9, 8, v6\nv_and_b32 v7, 1, v5\nv_lshl_add_u32 v6, v7, 7, v6")
    A(f"v_add_u32 {v(TR3)}, s34, v6\nv_xor_b32 {v(TR3B)}, 32, {v(TR3)}")
    A(f"s_lshl_b32 s33, {s(sODD)}, 2\nv_add_u32 v4, s33, v2")
    A(f"v_lshrrev_b32 v5, 2, v1\nv_lshlrev_b32 v5, 7, v5\nv_and_b32 v6, 3, v1\nv_lshl_add_u32 v5, v6, 2, v5\nv_lshl_add_u32 {v(PX)}, v4, 4, v5")
    A(f"v_lshlrev_b32 v4, 4, v4\nv_lshl_add_u32 v4, v1, 1, v4\nv_add_u32 v4, 512, v4\nv_and_b32 v5, 9, v1\nv_cmp_eq_u32 vcc, 0, v5\nv_mov_b32 v5, {OOB}\nv_cndmask_b32 {v(PM)}, v5, v4, vcc")
    A(f"v_lshrrev_b32 v4, 1, v2\nv_lshlrev_b32 v4, 5, v4\nv_add_u32 v4, v4, v1\ns_lshl_b32 s33, {s(sODD)}, 4\nv_add_u32 v4, s33, v4\nv_lshlrev_b32 v4, 3, v4")
    A(f"v_and_b32 v5, 1, v2\nv_lshl_add_u32 v4, v5, 2, v4\nv_add_u32 v13, {SB}, v4\nv_lshlrev_b32 v14, 3, v0\ns_lshl_b32 s33, {s(S_W)}, 11\nv_add_u32 v14, s33, v14")
    A(f"s_cmp_eq_u32 {s(S_W)}, 3\ns_cselect_b32 s34, 7, 15\nv_min_u32 {v(FA)}, s34, v1\nv_lshlrev_b32 {v(FA)}, 2, {v(FA)}")
    if opts.get("wl", 3) & 1:
        A(f"s_lshl_b32 s33, {s(S_ID)}, 2\ns_add_u32 s33, s33, {s(S_W)}\ns_lshl_b32 s33, s33, 7")
    else:
        A(f"s_lshl_b32 s33, {s(S_ID)}, 9\ns_lshl_b32 s34, {s(S_W)}, 6\ns_add_u32 s33, s33, s34")
    A(f"v_add_u32 {v(FA)}, s33, {v(FA)}\ns_mov_b32 {s(sEF)}, {EF}\ns_mov_b32 s53, 0")
    A("v_and_b32 v5, 1, v1\nv_lshlrev_b32 v5, 3, v5\nv_lshrrev_b32 v6, 3, v1\nv_lshl_add_u32 v5, v6, 2, v5\nv_and_b32 v6, 2, v1\nv_add_u32 v5, v5, v6\nv_bfe_u32 v6, v1, 2, 1\nv_add_u32 v5, v5, v6")
    chunk_pos(A, 12, 5, 2, 4)
    A(f"v_add_u32 v12, {s(sREG)}, v12")
    A(f"v_mov_b32 {v(XR)}, v12\nv_mov_b32 {v(SW)}, v14\nv_mov_b32 {v(SR)}, v13")
    A(f"s_mov_b32 {s(sS)}, 0\ns_mov_b32 {s(sCM)}, {CM}\ns_mul_i32 {s(sCP)}, {s(S_ID)}, 640\ns_add_u32 {s(sCP)}, {s(sCP)}, {CP}")
    if opts.get("wl", 3) & 2:
        A(f"s_lshr_b32 s33, {s(S_ID)}, 2\ns_lshl_b32 s33, s33, 7\ns_and_b32 s34, {s(S_ID)}, 3\ns_lshl_b32 s34, s34, 2\ns_add_u32 {s(sNP)}, s33, s34\ns_add_u32 {s(sNP)}, {s(sNP)}, {EF_P}")
    else:
        A(f"s_lshl_b32 {s(sNP)}, {s(S_ID)}, 2\ns_add_u32 {s(sNP)}, {s(sNP)}, {EF_P}")
    ahead = opts.get("yah", 1)
    A(f"s_mul_i32 {s(sYP)}, {s(S_ID)}, {28 * KB}\ns_mul_i32 s33, {s(S_W)}, {7 * KB}\ns_add_u32 {s(sYP)}, {s(sYP)}, s33\ns_add_u32 {s(sYP)}, {s(sYP)}, {YF + ahead * 16 * 28 * KB}")
    slow = A.new("a_slow")
    fresh = zero(ACC, 28) + [f"v_lshlrev_b32 {v(T)}, 3, v3"]
    for x in fresh:
        A(x)
    for k in range(opts.get("ay", 0)):
        A(f"s_sub_u32 s33, {s(sYP)}, {(ahead - k) * 16 * 28 * KB}\nbuffer_load_dword v20, {v(T)}, {s(WS, 4)}, s33 offen sc1")
    wait_start(A, opts, slow)
    ka = lambda n, r=ACC: "".join(f"{MF} {v(r, 4)}, {v(TSP, 4)}, {v(TSP, 4)}, {v(r, 4)}\n" for _ in range(n))

    def loop(sc):
        top, nxt, done, lp, ok, idle = (A.new(x) for x in ("a_top", "a_next", "a_done", "a_poll", "a_ok", "a_idle"))
        redo = A.new("a_redo")
        G0, G1 = KEY, KEY + 8
        A(f"s_branch {lp}")
        if opts.get("al"):
            A(f".p2align {opts['al']}")
            A("s_nop 0\n" * opts.get("sa", 0))
        A(f"{top}:")
        notice_wait(A, opts, G1, FA, sEF, 0, fresh + [f"s_mov_b32 m0, {s(sMB)}"])
        if opts.get("nst"):
            stamp(A, opts, 1)
        fetch()
        A(f"{lp}:")
        if opts.get("cnt"):
            A("s_add_u32 s53, s53, 1")
        A(ka(opts.get("ka_m", 0), SC))
        place(A, opts, "a2")
        A("s_waitcnt vmcnt(0)")
        stamp(A, opts, 0)
        A("s_barrier")
        if not opts.get("nst"):
            stamp(A, opts, 1)
        lg = Cnt(A, "lgkmcnt", 15)
        for kk in range(7):
            lg.op(f"ds_read_b128 {v(MEM + 4 * kk, 4)}, v3 offset:{MEMB + kk * 1024}", f"m{kk}")

        def tile(i):
            out = []
            for kk in range(7):
                txt = f"{SMF} {v(ACC + 4 * i, 4)}, {v(MEM + 4 * kk, 4)}, {wreg((i * 7 + kk) * 8, 8)}, {v(IDX)}" if not opts.get("noam") else "s_nop 2"
                out.append((lambda txt=txt, kk=kk: (lg.wait(f"m{kk}"), A(txt))) if i == 0 else txt)
            return out

        def score(b):
            out = []
            for tau in range(3):
                c = "0" if b == 0 else v(SC + 4 * tau, 4)
                txt = f"{MF} {v(SC + 4 * tau, 4)}, {v(TSP + 4 * (b % 2), 4)}, {v(KEY + 12 * (b % 2) + 4 * tau, 4)}, {c}"
                out.append((lambda txt=txt: (lg.wait(f"tr{b}", f"k{b}"), A(txt))) if tau == 0 else txt)
            return out

        def keys(b):
            K = KEY + 12 * (b % 2)
            out = [lambda aa=aa: lg.op(f"ds_read_b128 {v(K + 4 * aa, 4)}, {v(XR)} offset:{XK + aa * 4096 + b * 1024}", f"k{b}") for aa in range(2)]
            if b == 3:
                return out + [lambda x=x: lg.op(f"ds_read2_b32 {v(K + 8 + 2 * x, 2)}, {v(MK3)} offset0:{2 * x} offset1:{2 * x}", "k3") for x in range(2)]
            out.append(lambda: lg.op(f"ds_read_b128 {v(K + 8, 4)}, {v(MK)} offset:{MEMB + b * 512}", f"k{b}"))
            return out

        def epi(i):
            D = ACC + 4 * i
            out = [f"v_cvt_pk_bf16_f32 {v(PK)}, {v(D)}, {v(D + 1)}", f"v_cvt_pk_bf16_f32 {v(PK + 1)}, {v(D + 2)}, {v(D + 3)}"]
            if i < 6:
                return out + [lambda: lg.op(f"ds_write_b64 {v(TW0)}, {v(PK, 2)} offset:{TB + i * 512}", f"t{i}")]
            return out + [lambda: lg.op(f"ds_write_b64 {v(TW3A)}, {v(PK, 2)}", "t6"),
                          lambda: lg.op(f"ds_write2_b32 {v(TW3B)}, {v(PK + 1)}, {v(PK)} offset0:0 offset1:1", "t6")]

        def trs(b):
            if b == 3:
                return [lambda x=x: lg.op(f"ds_read_b64_tr_b16 {v(TSP + 4 + 2 * x, 2)}, {v((TR3, TR3B)[x])}", "tr3") for x in range(2)]
            return [lambda x=x: lg.op(f"ds_read_b64_tr_b16 {v(TSP + 4 * (b % 2) + 2 * x, 2)}, {v(TR0)} offset:{TB + b * 1024 + 32 * x}", f"tr{b}") for x in range(2)]

        stream = tile(0) + tile(1) + tile(2) + tile(3) + score(0) + tile(4) + tile(5) + score(1) + tile(6) + score(2)[:2]
        fill = {}

        def put(g, items):
            for k, it in enumerate(items):
                assert g + k not in fill, g + k
                fill[g + k] = [it]

        for k in range(0 if opts.get("pfx") else opts.get("apf", 1)):
            pre = f"s_add_u32 s33, {s(sREG)}, 24320\ns_mov_b32 m0, s33\ns_nop 0\n" if k == 0 else ""
            (put if opts.get("pfg", 1) >= 0 else lambda g, x: A(x[0]))(opts.get("pfg", 1) + 3 * k, [pre + f"buffer_load_dword {v(T)}, {s(WS, 4)}, {s(sYP)} offen offset:{128 // opts.get('apf', 1) * k} sc1 lds"])
        early = opts.get("ek", 1)
        put(1 if early else 4, keys(0))
        put(4 if early else 15, keys(1))
        put(11, epi(0))
        put(18, epi(1))
        put(21, trs(0))
        put(25, epi(2))
        k2 = keys(2)
        put(31, k2[:1])
        put(32, epi(3))
        put(35, trs(1))
        put(38, k2[1:])
        put(41, epi(4))
        put(47, epi(5))
        put(50, trs(2))
        k3 = keys(3)
        dup = [f"v_mov_b32 {v(r + 1)}, {v(r)}" for r in range(KEY + 12, KEY + 20, 2)]
        if early:
            put(45, k3[:2])
            put(52, [lambda x=dup[0]: (lg.wait("k3"), A(x)), dup[1], dup[2], k3[2], k3[3]])
            dup = dup[3:]
        else:
            put(52, k3)
        br = "s_nop 0" if opts.get("solo") else f"s_cbranch_vccnz {redo}"
        mx = lambda x, y, z: f"v_max3_u32 {v(CK)}, {v(x)}, {v(y)}, {v(z)}"
        cmpi = f"v_cmp_eq_u32 vcc, -1, {v(CK)}"
        for g, x in zip((7, 8, 9, 10), (mx(MEM, MEM + 4, MEM + 8), mx(CK, MEM + 12, MEM + 16), mx(CK, MEM + 20, MEM + 24), cmpi)):
            put(g, [x])
        fill[12].append(br)
        rest = [MEM + r for r in range(28) if r % 4]
        late = [mx(*rest[:3])] + [mx(CK, rest[r], rest[r + 1]) for r in range(3, 21, 2)] + [cmpi]
        lt = opts.get("lt", 1)
        if not lt:
            for g, x in zip((14, 15, 16, 17, 23, 24, 28, 29, 30, 37, 40) if early else (14, 23, 24, 28, 29, 30, 37, 40, 44, 45, 46), late):
                put(g, [x])
            fill[43 if early else 49].append(br)
        emit_stream(A, stream, fill)
        stamp(A, opts, 2)
        sw = []
        for tau in range(3):
            D = SC + 4 * tau
            sw += [f"v_permlane32_swap_b32 {v(D)}, {v(D + 2)}", f"v_permlane32_swap_b32 {v(D + 1)}, {v(D + 3)}", f"v_pk_add_f32 {v(D, 2)}, {v(D, 2)}, {v(D + 2, 2)}"]
        c0, c1, w0, w1 = epi(6)
        t0, t1 = trs(3)
        m2 = score(2)[2]
        seq = {0: [c0, c1, m2, w0, w1, t0, t1] + sw,
               1: [c0, c1, m2, w0, sw[0], w1, sw[1], t0, t1] + sw[2:],
               2: [c0, c1, w0, m2, w1, t0, t1] + sw,
               3: [c0, c1, m2, w0, w1, sw[0], t0, t1] + sw[1:],
               4: [c0, c1, w0, m2, w1, sw[0], t0, sw[1], t1] + sw[2:]}[opts.get("tv", 0)]
        for x in seq:
            x() if callable(x) else A(x)
        if not early:
            lg.wait("k3")
        for x in dup:
            A(x)
        A(f"s_cmp_ge_u32 {s(S_W)}, 2")
        pad = (lambda n: "\n".join(late[2 * n:2 * n + 2])) if lt else (lambda n: "s_nop 1")
        for n, x in enumerate(score(3)):
            x() if callable(x) else A(x)
            A(pad(n))
        for tau in range(3):
            A(f"ds_write_b64 {v(SW)}, {v(SC + 4 * tau, 2)} offset:{SB + 512 * tau}")
            if tau < 2:
                A(pad(3 + tau))
        if opts.get("pfx"):
            A(f"s_add_u32 s33, {s(sREG)}, 24320\ns_mov_b32 m0, s33\nv_lshlrev_b32 {v(T)}, 3, v3\nbuffer_load_dword {v(T)}, {s(WS, 4)}, {s(sYP)} offen sc1 lds\ns_cmp_ge_u32 {s(S_W)}, 2")
        if lt:
            A(late[10] + "\n" + br)
        place(A, opts, "a3", False)
        A("s_waitcnt lgkmcnt(0)\ns_barrier")
        stamp(A, opts, 3)
        R = MEM + 8
        nb = opts.get("brp", 0)
        for n in range(6):
            tau, hf = n // 2, n % 2
            if n == nb:
                A(f"s_cbranch_scc1 {idle}")
            A(f"ds_read2st64_b32 {v(R + 4 + 4 * tau + 2 * hf, 2)}, {v(SR)} offset0:{2 * tau + 16 * hf} offset1:{2 * tau + 16 * hf + 8}")
        for tau in range(3):
            A(f"s_waitcnt lgkmcnt({4 - 2 * tau})")
            A(f"v_pk_add_f32 {v(R + 4 + 4 * tau, 2)}, {v(R + 4 + 4 * tau, 2)}, {v(R + 6 + 4 * tau, 2)}")
            A(f"v_add_f32 {v(R + tau)}, {v(R + 4 + 4 * tau)}, {v(R + 5 + 4 * tau)}")
        mx, sm = T, T + 1
        A(f"v_max3_f32 {v(mx)}, {v(R)}, {v(R + 1)}, {v(R + 2)}")
        for rot in (8, 4, 2, 1):
            A(f"v_max_f32_dpp {v(mx)}, {v(mx)}, {v(mx)} row_ror:{rot} row_mask:0xf bank_mask:0xf")
        for tau in (2, 0, 1):
            A(f"v_sub_f32 {v(R + tau)}, {v(R + tau)}, {v(mx)}")
        for tau in (2, 0, 1):
            A(f"v_exp_f32 {v(R + tau)}, {v(R + tau)}")
        A(f"v_fma_f32 {v(sm)}, 0.5, {v(R + 2)}, {v(R)}")
        A(f"v_mov_b32_dpp {v(R + 3)}, {v(R + 2)} quad_perm:[1,0,3,2] row_mask:0xf bank_mask:0xf")
        A(f"v_add_f32 {v(sm)}, {v(sm)}, {v(R + 1)}")
        for rot in (8, 4, 2, 1):
            A(f"v_add_f32_dpp {v(sm)}, {v(sm)}, {v(sm)} row_ror:{rot} row_mask:0xf bank_mask:0xf")
        A(f"v_rcp_f32 {v(sm)}, {v(sm)}")
        for k, addr in ((0, PX), (2, PM)):
            A(f"v_mul_f32 {v(R + k)}, {v(R + k)}, {v(sm)}\nv_mul_f32 {v(R + k + 1)}, {v(R + k + 1)}, {v(sm)}")
            A(f"v_cvt_pk_bf16_f32 {v(R + k)}, {v(R + k)}, {v(R + k + 1)}\nv_min_u32 {v(R + k)}, -2, {v(R + k)}")
            A(f"buffer_store_dword {v(R + k)}, {v(addr)}, {s(WS, 4)}, {s(sCP)} offen{sc}")
        A(f"{nxt}:")
        stamp(A, opts, 4)
        collect_lds(A, opts, sREG, 22528, T)
        A(f"s_add_u32 {s(sS)}, {s(sS)}, 1\ns_add_u32 {s(sQ)}, {s(sQ)}, {0 if opts.get('solo') else 8192}\ns_add_u32 {s(sCP)}, {s(sCP)}, {0 if opts.get('solo') else 10240}")
        adv = 0 if opts.get("solo") else EF_STEP
        A(f"s_add_u32 {s(sEF)}, {s(sEF)}, {adv}\ns_add_u32 {s(sXA)}, {s(sXA)}, {28 * KB * (16 if opts.get('gemu') else 1)}\ns_add_u32 {s(sXB)}, {s(sXB)}, {28 * KB * (16 if opts.get('gemu') else 1)}\ns_add_u32 {s(sYP)}, {s(sYP)}, {16 * 28 * KB}")
        A("s_barrier")
        if not opts.get("nodma"):
            for k in range(8):
                A(dma(k))
        if opts.get("asl"):
            A(f"s_sleep {opts['asl']}")
        A(f"s_cmp_eq_u32 {s(sS)}, 63\ns_cbranch_scc0 {top}")
        A("s_waitcnt vmcnt(0)")
        A("s_mov_b32 s84, s53" if opts.get("stamps") else "")
        fetch_lds(A, opts, sREG, 22528, 10)
        flush_stamps(A, opts, 10)
        A("s_endpgm")
        A(f"{redo}:\ns_mov_b32 m0, {s(sMB)}\ns_waitcnt lgkmcnt(0)\ns_barrier")
        fetch()
        poll_guard(A)
        for x in fresh:
            A(x)
        A(f"s_branch {lp}")
        A(f"{idle}:\ns_waitcnt lgkmcnt(0)")
        A(f"v_lshrrev_b32 {v(T + 1)}, 4, v3\nv_min_u32 {v(T + 1)}, 13, {v(T + 1)}\nv_lshl_add_u32 {v(T + 1)}, {v(T + 1)}, 9, {s(sNP)}\nv_mov_b32 {v(T)}, {s(S_NONCE)}")
        A("s_nop 3\n" * opts.get("la", 6) if opts.get("lan") else ka(opts.get("la", 6)))
        w3 = A.new("a_w3")
        A(f"s_cmp_eq_u32 {s(S_W)}, 2\ns_cbranch_scc0 {w3}")
        notice(A, T, T + 1, sEF, 0, sc)
        A(f"s_branch {nxt}\n{w3}:")
        A(ka(opts.get("ka_sm", 0)))
        A(f"s_branch {nxt}")

    loop("")
    A(f"{slow}:")
    loop(" sc1")


def gen_chain_b(A, opts):
    MEM, ZACC, ZOP, Y, OACC, IDX = 4, 32, 60, 76, 108, 132
    GA0, GA1, PXA, PMA, RW, RR0, RR1, MO, WR, FA, FV = range(133, 144)
    FM, NZ, NA, FP = 128, 129, 130, 131
    T, WST, V0 = 116, 144, 176
    RED, WL = 8192, 12288
    sS, sCM, sCP, sY, sEF, sC, sFY = 44, 45, 46, 47, 48, 50, 51
    vm = Cnt(A, "vmcnt", 63)
    A(f"s_sub_u32 {s(sC)}, {s(S_ID)}, 16")
    A(f"s_mul_i32 s34, {s(S_W)}, {4 * FRAG_H}\ns_mul_i32 s33, {s(sC)}, {28 * KB}\ns_add_u32 s34, s34, s33\ns_add_u32 s34, s34, {BF}")
    A(f"s_mul_i32 s36, {s(S_W)}, {28 * KB}\ns_add_u32 s36, s36, {WL}\nv_add_u32 {v(WR)}, s36, v3\ns_add_u32 s37, s34, {3 * FRAG_H}")
    A(f"s_mul_i32 s33, {s(S_W)}, 28\ns_lshr_b32 s35, {s(sC)}, 1\ns_add_u32 s33, s33, s35\ns_add_u32 s33, s33, 112\nv_and_b32 v4, 3, v0\nv_mul_u32_u24 v4, 7, v4\nv_add_u32 v4, s33, v4")

    def piece(hh):
        if hh < 3:
            frag_loads(A, 34, [((hh * 28 + k) * 4, hh * FRAG_H + k * KB) for k in range(28)], v0=V0, cap=opts.get('bcap'))
            return
        for q in range(7):
            A("s_mov_b32 m0, s36\ns_add_u32 s36, s36, 4096")
            for k in range(4):
                A(f"buffer_load_dwordx4 v3, {s(WS, 4)}, s37 offen offset:{k * 1024} sc1 lds")
            A("s_add_u32 s37, s37, 4096")

    if opts.get('late'):
        A('v_mov_b32 v20, v4\ns_mov_b32 s60, s34\ns_mov_b32 s61, s36\ns_mov_b32 s62, s37')
        wait_prep(A, True)
        A('v_mov_b32 v4, v20\ns_mov_b32 s34, s60\ns_mov_b32 s36, s61\ns_mov_b32 s37, s62')
        mark(A, opts, 3)
    def touch_y():
        A(f"s_mul_i32 s33, {s(S_W)}, {4 * 28 * KB}\ns_lshl_b32 s35, {s(sC)}, 11\ns_add_u32 s33, s33, s35\ns_add_u32 s33, s33, {YF}")
        A(f"v_mul_u32_u24 v10, {28 * KB}, v2\nv_lshl_add_u32 v10, v1, 7, v10")
        A(f"buffer_load_dword v11, v10, {s(WS, 4)}, s33 offen sc1\ns_add_u32 s33, s33, {16 * 28 * KB}\nbuffer_load_dword v11, v10, {s(WS, 4)}, s33 offen sc1")

    load_pieces(A, [(28, lambda hh=hh: piece(hh)) for hh in range(4)], 4, (2, touch_y) if opts.get("by", 0) else None, True)
    gather_addr(A, GA0, GA1)
    idx_reg(A, IDX)
    A("v_and_b32 v4, 7, v1\nv_lshrrev_b32 v5, 3, v1\nv_lshrrev_b32 v6, 1, v2\nv_and_b32 v7, 1, v2")
    A(f"s_mul_i32 s33, {s(S_W)}, 2560")
    A(f"v_mul_u32_u24 v8, 640, v6\nv_lshl_add_u32 v8, v4, 4, v8\nv_lshl_add_u32 v8, v7, 8, v8\nv_lshl_add_u32 v8, v5, 7, v8\nv_add_u32 {v(PXA)}, s33, v8")
    A(f"v_lshl_add_u32 v8, v6, 1, v5\nv_mul_u32_u24 v8, 640, v8\nv_lshl_add_u32 v8, v4, 4, v8\ns_add_u32 s33, s33, 512\nv_add_u32 {v(PMA)}, s33, v8")
    A(f"v_lshl_add_u32 v8, v6, 1, v7\nv_xor_b32 v8, v0, v8\nv_lshlrev_b32 v8, 4, v8\ns_lshl_b32 s33, {s(S_W)}, 10\ns_add_u32 s33, s33, {RED}\nv_add_u32 {v(RW)}, s33, v8")
    A("v_lshrrev_b32 v4, 5, v0\nv_bfe_u32 v5, v0, 2, 3\nv_and_b32 v6, 3, v0")
    A("v_and_b32 v7, 1, v6\nv_lshrrev_b32 v8, 2, v5")
    A(f"v_lshlrev_b32 v9, 5, v7\nv_lshl_add_u32 v9, v8, 4, v9\ns_and_b32 s33, {s(S_W)}, 1\ns_lshl_b32 s33, s33, 3\nv_add_u32 v9, s33, v9")
    A("v_lshrrev_b32 v10, 1, v6\nv_lshl_add_u32 v9, v10, 2, v9\nv_lshl_add_u32 v9, v4, 1, v9")
    A("v_lshl_add_u32 v10, v7, 1, v8\nv_xor_b32 v9, v9, v10\nv_lshlrev_b32 v9, 4, v9\nv_and_b32 v10, 3, v5\nv_lshl_add_u32 v9, v10, 2, v9")
    A(f"v_add_u32 {v(RR0)}, {RED}, v9\nv_xor_b32 {v(RR1)}, 16, {v(RR0)}")
    A(f"s_lshl_b32 s33, {s(sC)}, 9\ns_and_b32 s35, {s(S_W)}, 1\ns_lshl_b32 s35, s35, 8\ns_add_u32 s33, s33, s35\nv_lshl_add_u32 {v(MO)}, v0, 2, s33")
    A(f"v_lshlrev_b32 {v(FA)}, 7, v1\nv_mov_b32 {v(FV)}, 0")
    A(f"s_mov_b32 {s(sS)}, 0\ns_mov_b32 {s(sCM)}, {CM}\ns_mov_b32 {s(sCP)}, {CP}")
    A(f"s_mul_i32 s33, {s(S_W)}, {4 * 28 * KB}\ns_lshl_b32 s35, {s(sC)}, 11\ns_add_u32 {s(sY)}, s33, s35\ns_add_u32 {s(sY)}, {s(sY)}, {YF}")
    A(f"s_mov_b32 {s(sFY)}, {FY}\ns_mov_b32 {s(sEF)}, {EF}\ns_mov_b32 s53, 0\ns_mov_b32 s55, 0")
    pw = 1
    A(f"v_and_b32 v4, 3, v0\nv_and_b32 v5, 1, v0\nv_add_u32 v5, 16, v5\ns_lshl_b32 s33, {s(sC)}, 9\ns_add_u32 s33, s33, {EF_P}")
    if opts.get("wl", 3) & 2:
        A(f"s_lshl_b32 s35, {s(S_W)}, 7\ns_add_u32 s33, s33, s35")
    else:
        A(f"s_lshl_b32 s35, {s(S_W)}, 2\nv_add_u32 v4, s35, v4")
    A(f"v_cmp_gt_u32 vcc, 32, v0\nv_cndmask_b32 {v(FP)}, v5, v4, vcc\nv_lshl_add_u32 {v(FP)}, {v(FP)}, 2, s33")
    A(f"s_and_b32 s33, {s(sC)}, 3\ns_lshl_b32 s33, s33, 2\ns_add_u32 s33, s33, {s(S_W)}\ns_lshl_b32 s33, s33, 2\ns_lshr_b32 s35, {s(sC)}, 2\ns_lshl_b32 s35, s35, {7 if opts.get('wl', 3) & 1 else 6}\ns_add_u32 s33, s33, s35")
    A(f"s_add_u32 s33, s33, {EF_STEP}\nv_min_u32 {v(NA)}, 15, v0\nv_lshl_add_u32 {v(NA)}, {v(NA)}, 9, s33\nv_mov_b32 {v(NZ)}, {s(S_NONCE)}")
    if opts.get("gemu"):
        A(f"v_lshlrev_b32 v126, 3, v3\ns_lshl_b32 s57, {s(sC)}, 2\ns_add_u32 s57, s57, {s(S_W)}\ns_lshl_b32 s57, s57, 13\ns_add_u32 s57, s57, {(opts['gemu'] << 20) + (opts.get('gah', 2) - 1) * 16 * 28 * KB}")
    slow = A.new("b_slow")
    wait_start(A, opts, slow, (FA, sFY))
    ka = lambda n: "".join(f"{MF} {v(ZACC + 8, 4)}, {v(ZOP, 4)}, {v(ZOP, 4)}, {v(ZACC + 8, 4)}\n" for _ in range(n))

    def loop(sc):
        top, nxt, last, noy, yok, ypoll, noflag, gm, gp, idle, noz = (A.new("b_" + x) for x in ("top", "next", "last", "noy", "yok", "ypoll", "nofl", "gm", "gp", "idle", "noz"))
        if opts.get("al"):
            A(f"s_branch {top}\n.p2align {opts['al']}")
            A("s_nop 0\n" * opts.get("sb", 0))
        A(f"{top}:")
        if opts.get("ndb", 1):
            notice_wait(A, dict(opts, nd=opts.get('ndb', 1)), WST + 8, FM, sEF, 0, zero(ZACC, 28) + zero(OACC, 8), sS)
        else:
            for x in (zero(ZACC, 28) + zero(OACC, 8))[:opts.get("bz", 18)]:
                A(x)
        fetch_mem(A, dict(opts, stamps=0) if opts.get('nst') else opts, WST, GA0, GA1, sCM, T, 0, '\n'.join((zero(ZACC, 28) + zero(OACC, 8))[opts.get('bz', 18):]))
        lg = Cnt(A, "lgkmcnt", 15)
        for kk in range(7):
            lg.op(f"ds_read_b128 {v(MEM + 4 * kk, 4)}, v3 offset:{kk * 1024}", f"m{kk}")
        bulk = []
        for hh in range(4):
            for vv in range(0 if opts.get("noy") else 2):
                pre = f"s_add_u32 s33, {s(sY)}, {hh * 28 * KB}\n" if vv == 0 else ""
                bulk.append(pre + f"buffer_load_dwordx4 {v(Y + 16 * (hh // 2) + 8 * vv + 4 * (hh % 2), 4)}, v3, {s(WS, 4)}, s33 offen offset:{vv * 1024} {'nt' if opts.get('ynt') == 1 else 'sc1 nt' if opts.get('ynt') else 'sc1'}")
        order = []
        regs = [(t, kk) for t in range(6) for kk in range(7)]
        for n in range(14):
            order += regs[3 * n:3 * n + 3] + [(6 + n // 7, n % 7)]
        accof = lambda t: ZACC + 4 * (t if t < 7 else 0)
        stream, pos, seen = [], {}, set()
        for t, kk in order:
            pos[(t, kk)] = len(stream)
            n = (t - 6) * 7 + kk
            w = wreg((t * 7 + kk) * 8, 8, 256, V0) if t < 6 else v(WST + 8 * (n % 4), 8)
            txt = f"{SMF} {v(accof(t), 4)}, {v(MEM + 4 * kk, 4)}, {w}, {v(IDX)}" if not opts.get("nozm") else "s_nop 2"
            tags = ([f"m{kk}"] if kk not in seen else []) + ([f"w{n}"] if t >= 6 else [])
            seen.add(kk)
            stream.append((lambda txt=txt, tags=tags: (lg.wait(*tags), A(txt))) if tags else txt)

        def wread(n):
            return [lambda u=u: lg.op(f"ds_read_b128 {v(WST + 8 * (n % 4) + 4 * u, 4)}, {v(WR)} offset:{(n // 7) * 14 * KB + (2 * (n % 7) + u) * KB}", f"w{n}") for u in range(2)]

        def epi(t):
            hh, vv = t // 2, t % 2
            D = accof(t)
            out = [f"v_cvt_pk_bf16_f32 {v(ZOP + 8 * vv + 4 * (hh // 2) + 2 * b + hh % 2)}, {v(D + 2 * b)}, {v(D + 2 * b + 1)}" for b in range(2)]
            return out + (zero(D, 4) if t == 0 else [])

        y = bulk + ["s_nop 0"] * (8 - len(bulk))
        for x in wread(0) + wread(1):
            x()
        npre = opts.get("ypre", 2)
        for x in y[:npre]:
            A(x)
        if opts.get("bsl"):
            A(f"s_sleep {opts['bsl']}")
        fill = {}
        for n in range(2, 14):
            spread(fill, 4 * (n - 2), wread(n), per=1)
        g = 2
        for x in y[npre:]:
            while g in fill:
                g += 1
            fill[g] = [x]
            g += opts.get("ygap", 1)
        if opts.get("gemu"):
            while g in fill:
                g += 1
            fill[g] = [f"s_mov_b32 m0, 7168\ns_add_u32 s57, s57, {16 * 28 * KB}\nbuffer_load_dword v126, {s(WS, 4)}, s57 offen sc1 lds"]
        late = []
        for t in sorted(range(8), key=lambda t: pos[(t, 6)]):
            g = pos[(t, 6)] + 4
            for x in epi(t):
                while g in fill:
                    g += 1
                if g < len(stream):
                    fill[g] = [x]
                    assert t != 0 or g < pos[(7, 0)] - 1
                else:
                    late.append(x)
        emit_stream(A, stream, fill)
        for x in late:
            A(x)
        if not opts.get("nst"):
            stamp(A, opts, 1)

        def p_loads(P):
            A(f"buffer_load_dwordx4 {v(P, 4)}, {v(PXA)}, {s(WS, 4)}, {s(sCP)} offen sc1")
            A(f"buffer_load_dwordx4 {v(P + 4, 4)}, {v(PXA)}, {s(WS, 4)}, {s(sCP)} offen offset:1280 sc1")
            A(f"buffer_load_dwordx4 {v(P + 8, 4)}, {v(PMA)}, {s(WS, 4)}, {s(sCP)} offen sc1")

        cur = MEM
        ok = A.new("b_ok")
        place(A, opts, "b2")
        notice_wait(A, dict(opts, nd=opts.get('ndp', opts['nd'])), MEM + 12, FP, sEF, 0, [])
        if opts.get("nst"):
            stamp(A, opts, 1)
        A(f"{gp}:")
        p_loads(cur)
        poll_guard(A)
        A(ka(opts.get("ka_p", 0)))
        place(A, opts, "b3")
        if opts.get("cnt"):
            A("s_add_u32 s55, s55, 1")
        mx3 = lambda d, x, y, z: f"v_max3_u32 {v(d)}, {v(x)}, {v(y)}, {v(z)}"
        cmpi = f"v_cmp_eq_u32 vcc, -1, {v(T)}"
        if opts.get("bdef", 1):
            chk = ["s_nop 0"] * 4 + [mx3(T, cur, cur + 4, cur + 8), cmpi]
        else:
            chk = ["s_nop 0", mx3(T, cur, cur + 1, cur + 2), mx3(T, T, cur + 3, cur + 4), mx3(T + 1, cur + 5, cur + 6, cur + 7), mx3(T + 2, cur + 8, cur + 9, cur + 10),
                   mx3(T, T, T + 1, cur + 11) + f"\nv_max_u32 {v(T)}, {v(T)}, {v(T + 2)}\n" + cmpi]
        k = 0
        for kap in range(3):
            A(f"s_waitcnt vmcnt({2 - kap})")
            if kap == 0:
                stamp(A, opts, 2)
            for vv in range(2):
                b = v(Y + 16 * kap + 8 * vv, 8) if kap < 2 else v(ZOP + 8 * vv, 8)
                A(f"{SMF} {v(OACC + 4 * vv, 4)}, {v(cur + 4 * kap, 4)}, {b}, {v(IDX)}")
                if opts.get("lb") == 10 + k:
                    notice(A, NZ, NA, sEF, 0, sc)
                A(chk[k])
                k += 1
        if not opts.get("solo"):
            A(f"s_cbranch_vccnz {ok}")
        lb = opts.get("lb", 2) if pw else -1
        if lb == 0:
            notice(A, NZ, NA, sEF, 0, sc)
        for q in range(4):
            A(f"v_permlane32_swap_b32 {v(OACC + q)}, {v(OACC + 4 + q)}")
        if lb == 1:
            notice(A, NZ, NA, sEF, 0, sc)
        for q in (0, 2):
            A(f"v_pk_add_f32 {v(OACC + q, 2)}, {v(OACC + q, 2)}, {v(OACC + 4 + q, 2)}")
        A(f"ds_write_b128 {v(RW)}, {v(OACC, 4)}")
        if 2 <= lb < 9:
            A(ka(lb - 2))
            notice(A, NZ, NA, sEF, 0, sc)
            if opts.get("nst"):
                stamp(A, opts, 0)
        if opts.get("bdef", 1) and not opts.get("solo"):
            A(mx3(T, cur + 1, cur + 2, cur + 3) + "\n" + mx3(T + 1, cur + 5, cur + 6, cur + 7) + "\n" + mx3(T + 2, cur + 9, cur + 10, cur + 11))
            A(mx3(T, T, T + 1, T + 2) + "\n" + cmpi)
            if lb == 9:
                notice(A, NZ, NA, sEF, 0, sc)
            A(f"s_cbranch_vccnz {ok}")
        place(A, opts, "b4", False)
        A(f"s_add_u32 s33, {s(sCM)}, 8192\ns_cmp_ge_u32 {s(S_W)}, 2\ns_waitcnt lgkmcnt(0)\ns_barrier")
        stamp(A, opts, 3)
        A(f"s_cbranch_scc1 {idle}")
        R = ZACC
        if not pw:
            A(f"s_cmp_eq_u32 {s(S_W)}, 0\ns_cbranch_scc0 {noflag}")
            notice(A, NZ, NA, sEF, 0, sc)
            A(f"{noflag}:")
        A(f"ds_read2st64_b32 {v(R, 2)}, {v(RR0)} offset0:0 offset1:4\nds_read2st64_b32 {v(R + 4, 2)}, {v(RR0)} offset0:8 offset1:12")
        A(f"ds_read2st64_b32 {v(R + 2, 2)}, {v(RR1)} offset0:0 offset1:4\nds_read2st64_b32 {v(R + 6, 2)}, {v(RR1)} offset0:8 offset1:12")
        A("s_waitcnt lgkmcnt(2)")
        A(f"v_pk_add_f32 {v(R, 2)}, {v(R, 2)}, {v(R + 4, 2)}\nv_add_f32 {v(R)}, {v(R)}, {v(R + 1)}")
        A("s_waitcnt lgkmcnt(0)")
        A(f"v_pk_add_f32 {v(R + 2, 2)}, {v(R + 2, 2)}, {v(R + 6, 2)}\nv_add_f32 {v(R + 2)}, {v(R + 2)}, {v(R + 3)}")
        A(f"v_cvt_pk_bf16_f32 {v(R)}, {v(R)}, {v(R + 2)}\nv_min_u32 {v(R)}, -2, {v(R)}")
        A(f"buffer_store_dword {v(R)}, {v(MO)}, {s(WS, 4)}, s33 offen{sc}")
        A(f"{nxt}:")
        stamp(A, opts, 4)
        collect(A, opts, 120)
        A(f"s_add_u32 {s(sS)}, {s(sS)}, 1\ns_add_u32 {s(sCM)}, {s(sCM)}, {0 if opts.get('solo') else 8192}\ns_add_u32 {s(sCP)}, {s(sCP)}, {0 if opts.get('solo') else 10240}")
        A(f"s_add_u32 {s(sY)}, {s(sY)}, {16 * 28 * KB}\ns_add_u32 {s(sEF)}, {s(sEF)}, {0 if opts.get('solo') else EF_STEP}")
        A("s_barrier")
        if opts.get("stamps"):
            m8 = A.new("m8")
            A(f"s_cmp_eq_u32 {s(sS)}, 8\ns_cbranch_scc0 {m8}")
            mark(A, opts, 5)
            A(f"{m8}:")
        A(f"s_cmp_eq_u32 {s(sS)}, 63\ns_cbranch_scc0 {top}")
        if opts.get("fast63", 1):
            A(f"s_cmp_ge_u32 {s(S_W)}, 2\ns_cbranch_scc1 {last}\ns_mov_b32 s33, {XM + 63 * 8192}")
            A(f"buffer_store_dword {v(R)}, {v(MO)}, {s(WS, 4)}, s33 offen sc1\n{last}:")
        A("s_waitcnt vmcnt(0)")
        A("s_mov_b32 s84, s53\ns_mov_b32 s85, s55" if opts.get("stamps") else "")
        dbg_time(A, opts, 6, 16)
        amp_mark(A, opts, 3)
        amp_spin(A, opts, 16, (0, 1, 2, 3))
        flush_stamps(A, opts, 120)
        A("s_endpgm")
        A(f"{ok}:")
        for x in zero(OACC, 8):
            A(x)
        A(f"s_branch {gp}")
        A(f"{idle}:")
        A(ka(opts.get("ka_f", 0)))
        A(f"s_branch {nxt}")

    loop("")
    A(f"{slow}:")
    loop(" sc1")


def touch_slots(A, sstep, ahead, which=(0, 1, 2)):
    for base, stride, n, last in [((EF, EF_STEP, 2, 63), (CP, 10240, 2, 62), (CM, 8192, 1, 63))[k] for k in which]:
        A(f"s_add_u32 s33, {s(sstep)}, {ahead}\ns_min_u32 s33, s33, {last}\ns_mul_i32 s33, s33, {stride}\ns_add_u32 s33, s33, {base}")
        for q in range(n):
            va = 8 if base == CP and q else 6
            A(f"buffer_load_dword v10, {v(va)}, {s(WS, 4)}, s33 offen sc1\ns_add_u32 s33, s33, 8192")


def gen_chain_f(A, opts):
    G, GA0, GA1, T, WA = 4, 12, 13, 14, 20
    sS, sCM, sXM = 44, 45, 46
    t0 = opts.get("t0", 1)
    if t0:
        A("v_lshlrev_b32 v6, 3, v3")
        touch_slots(A, S_W, 0, (0,))
    fw = A.new('f_go')
    A(f"v_lshlrev_b32 v21, 7, v1\ns_mov_b32 {s(sXM)}, {FY + opts.get('tfy', 0) * FL_STEP}")
    wait_start(A, {}, fw, (21, sXM) if opts.get('tfy', 0) >= 0 else None, opts.get('hsl', 24))
    A(f'{fw}:')
    if t0:
        A("v_lshlrev_b32 v6, 3, v3\nv_min_u32 v8, 1920, v6")
        touch_slots(A, S_W, 0)
    gather_addr(A, GA0, GA1)
    A(f"s_mul_i32 s33, {s(S_W)}, {7 * KB}\nv_lshlrev_b32 {v(WA)}, 3, v3\nv_add_u32 {v(WA)}, s33, {v(WA)}")

    def touch_all():
        if not opts.get("nopf"):
            A(f"s_add_u32 s33, {s(sS)}, 2\ns_min_u32 s33, s33, 63\ns_mul_i32 s33, s33, {28 * KB}\ns_add_u32 s33, s33, {XS}")
            A(f"buffer_load_dword v16, {v(WA)}, {s(WS, 4)}, s33 offen sc1")

    for first in (-2, -1, 0):
        A(f"s_mov_b32 {s(sS)}, {first}")
        touch_all()
    A(f"s_mov_b32 {s(sS)}, 1\ns_mov_b32 {s(sCM)}, {CM + 8192}\ns_mov_b32 {s(sXM)}, {XM + 8192}")
    lp = A.new("f_poll")
    A(f"{lp}:")
    mem_loads(A, G, GA0, GA1, sCM)
    poll_guard(A)
    A("s_waitcnt vmcnt(0)")
    check8(A, G, T)
    got = A.new("f_got")
    A(f"s_cbranch_vccz {got}\ns_sleep {opts.get('fsl', 0)}\ns_branch {lp}\n{got}:")
    A(f"buffer_store_dwordx4 {v(G, 4)}, {v(GA0)}, {s(WS, 4)}, {s(sXM)} offen sc1")
    A(f"buffer_store_dwordx4 {v(G + 4, 4)}, {v(GA1)}, {s(WS, 4)}, {s(sXM)} offen sc1")
    touch_all()
    A(f"s_add_u32 {s(sS)}, {s(sS)}, 1\ns_add_u32 {s(sCM)}, {s(sCM)}, 8192\ns_add_u32 {s(sXM)}, {s(sXM)}, 8192")
    A(f"s_cmp_lt_u32 {s(sS)}, {63 if opts.get('fast63', 1) else 64}\ns_cbranch_scc1 {lp}")
    if opts.get("wb"):
        A(f"s_cmp_eq_u32 {s(S_W)}, 0\ns_cbranch_scc0 L_exit\ns_waitcnt vmcnt(0)\nbuffer_wbl2 sc1\ns_waitcnt vmcnt(0)")
    A("s_endpgm")


def gen_chain_g(A, opts):
    sS, sEF, sF = 44, 45, 46
    toucher = A.new("g_touch")
    A(f"s_cmp_eq_u32 {s(S_W)}, 1\ns_cbranch_scc1 {toucher}\ns_cmp_eq_u32 {s(S_W)}, 0\ns_cbranch_scc0 L_exit")
    A(f"s_mov_b32 {s(sS)}, 0\ns_mov_b32 {s(sEF)}, {EF + EF_P + 64}\ns_mov_b32 {s(sF)}, {FY + FL_STEP}")
    A(f"v_lshlrev_b32 v6, 7, v1\nv_min_u32 v7, 55, v0\nv_lshlrev_b32 v7, 7, v7\nv_mov_b32 v14, {s(S_NONCE)}\nv_mov_b32 v15, {s(S_NONCE)}")
    slow = A.new("g_slow")
    chain_mode(A, {}, Cnt(A, "vmcnt", 63), slow)

    def loop(sc):
        top, ok = A.new("g_top"), A.new("g_ok")
        go = A.new("g_go")
        A(f"{top}:\ns_cmp_eq_u32 {s(sS)}, 2\ns_cbranch_scc0 {go}")
        wait_prep(A, False, False)
        A(f"{go}:")
        top2 = A.new("g_poll")
        A(f"{top2}:")
        flag_load(A, 10, 6, s(sF))
        poll_guard(A)
        A("s_waitcnt vmcnt(0)")
        flag_missing(A, [10])
        A(f"s_cbranch_vccz {ok}\ns_sleep 2\ns_branch {top2}\n{ok}:")
        A(f"buffer_store_dwordx2 v[14:15], v7, {s(WS, 4)}, {s(sEF)} offen{sc}")
        A(f"s_add_u32 {s(sS)}, {s(sS)}, 1\ns_add_u32 {s(sEF)}, {s(sEF)}, {EF_STEP}\ns_add_u32 {s(sF)}, {s(sF)}, {FL_STEP}")
        A(f"s_cmp_lt_u32 {s(sS)}, 63\ns_cbranch_scc1 {top}\ns_endpgm")

    loop("")
    A(f"{slow}:")
    loop(" sc1")

    A(f"{toucher}:")
    go = A.new("t_go")
    A(f"v_lshlrev_b32 v20, 7, v1\ns_mov_b32 {s(sF)}, {FY + opts.get('tfy', 0) * FL_STEP}")
    wait_start(A, {}, go, (20, sF) if opts.get('tfy', 0) >= 0 else None, opts.get('hsl', 24))
    A(f"{go}:\nv_lshlrev_b32 v6, 3, v3\nv_mov_b32 v7, 0")
    ahead = opts.get("tah", 3)

    touch = lambda: touch_slots(A, sS, ahead)
    A("v_min_u32 v8, 1920, v6")
    for first in range(-ahead, 1):
        if not opts.get("t0", 1):
            A(f"s_mov_b32 {s(sS)}, {first}")
            touch()
    lp, got = A.new("t_poll"), A.new("t_got")
    A(f"s_mov_b32 {s(sS)}, 1\ns_mov_b32 {s(sF)}, {CM + 8192}\n{lp}:")
    A(f"buffer_load_dword v9, v7, {s(WS, 4)}, {s(sF)} offen sc1")
    poll_guard(A)
    A(f"s_waitcnt vmcnt(0)\nv_cmp_eq_u32 vcc, -1, v9\ns_cbranch_vccz {got}\ns_sleep 2\ns_branch {lp}\n{got}:")
    touch()
    A(f"s_add_u32 {s(sS)}, {s(sS)}, 1\ns_add_u32 {s(sF)}, {s(sF)}, 8192\ns_cmp_lt_u32 {s(sS)}, {64 - ahead}\ns_cbranch_scc1 {lp}\ns_endpgm")
```

```python
from asmlib import v, a, s
from layout import *
from common import *
from gen_prep import *
from gen_chain import gen_chain_a, gen_chain_b, gen_chain_f, gen_chain_g
import gen_work

MAIN_LDS = 132096
LDS_ROLE = 131072


def gen_main(A, name, opts):
    ER = 252
    A(f".p2align 8\n.type {name},@function\n{name}:")
    A("s_cmp_ge_u32 s2, 256\ns_cbranch_scc1 L_exit")
    mark(A, opts, 0)
    amp_mark(A, opts, 0)
    b = [load_srd(A, WS, "ws", 40), load_srd(A, DB, "dbg", 42)]
    A(f"s_load_dwordx4 s[44:47], s[0:1], {KARG['wq']}\ns_load_dwordx4 s[48:51], s[0:1], {KARG['wv']}")
    A(f"v_lshrrev_b32 v1, 6, v0\nv_and_b32 v0, 63, v0\nv_readfirstlane_b32 {s(S_W)}, v1")
    if opts.get("fake"):
        A("s_mul_i32 s29, s2, 43\ns_lshr_b32 s29, s29, 8\ns_mul_i32 s29, s29, 6\ns_sub_u32 s7, s2, s29\ns_add_u32 s7, s7, 1\ns_and_b32 s7, s7, 15\ns_cmp_eq_u32 s2, 0\ns_cselect_b32 s7, 8, s7")
    else:
        A("s_getreg_b32 s7, hwreg(HW_REG_XCC_ID, 0, 4)")
    A(f"s_mov_b32 {s(S_POLL)}, 0\ns_mov_b32 {s(S_FOREIGN)}, 0")
    A("v_and_b32 v1, 15, v0\nv_lshrrev_b32 v2, 4, v0\nv_lshlrev_b32 v3, 4, v0")
    A(f"v_mov_b32 {v(ER)}, 1\nv_mov_b32 {v(ER + 1)}, 0\ns_and_b32 s17, s7, 4\ns_lshl_b32 s17, s17, 5\ns_andn2_b32 s19, s7, 4\ns_lshl_b32 s19, s19, 2\ns_add_u32 s17, s17, s19")

    def pointers():
        A("s_waitcnt lgkmcnt(0)")
        for f in b:
            f()
        sk = A.new("nonce")
        A(f"s_or_b32 s19, s2, {s(S_W)}\ns_cmp_eq_u32 s19, 0\ns_cbranch_scc0 {sk}")
        A(f"s_memrealtime s[74:75]\ns_waitcnt lgkmcnt(0)\ns_lshl_b32 s74, s74, 4\ns_and_b32 s75, s7, 7\ns_or_b32 s74, s74, s75\ns_or_b32 s74, s74, 8\nv_mov_b32 v10, s74\nbuffer_store_dword v10, {v(ER + 1)}, {s(DB, 4)}, 0 offen offset:{D_NONCE} sc1")
        A(f"{sk}:")
        dbg_time(A, opts, 0, 0, 2)

    def rank():
        sk = A.new("rank")
        A(f"s_cmp_eq_u32 {s(S_W)}, 0\ns_cbranch_scc0 {sk}\ns_mov_b64 exec, 1")
        A(f"buffer_atomic_add {v(ER)}, {v(ER + 1)}, {s(DB, 4)}, s17 offen sc0 sc1\ns_mov_b64 exec, -1\n{sk}:")

    gen_prep(A, opts, "L_prep_done", rank, pointers)
    A("L_prep_done:")
    A(f"v_mov_b32 v6, {LDS_ROLE}")
    A("L_nonce:")
    A(f"buffer_load_dword v7, {v(ER + 1)}, {s(DB, 4)}, 0 offen offset:{D_NONCE} sc1")
    poll_guard(A)
    A(f"s_waitcnt vmcnt(0)\nv_readfirstlane_b32 {s(S_NONCE)}, v7\ns_cmp_eq_u32 {s(S_NONCE)}, 0\ns_cbranch_scc0 L_nonce_ok\ns_sleep 4\ns_branch L_nonce\nL_nonce_ok:")
    mark(A, opts, 6)
    if opts.get('tilem'):
        A('s_mov_b32 s92, s16')
    A(f"s_cmp_eq_u32 {s(S_W)}, 0\ns_cbranch_scc0 L_role_wait")
    A(f"v_readfirstlane_b32 s30, {v(ER)}")
    A(f"s_sub_u32 s31, s7, {s(S_NONCE)}\ns_and_b32 s31, s31, 7\ns_lshl_b32 {s(S_ID)}, s31, 5\ns_add_u32 {s(S_ID)}, {s(S_ID)}, s30")
    A("s_cmp_ge_u32 s7, 8\ns_cbranch_scc1 L_overflow\ns_cmp_ge_u32 s30, 32\ns_cbranch_scc0 L_role_known")
    A("L_overflow:")
    A(f"v_mov_b32 {v(ER)}, 1\ns_mov_b64 exec, 1")
    A(f"buffer_atomic_add {v(ER)}, {v(ER + 1)}, {s(DB, 4)}, 0 offen offset:{D_OVF} sc0 sc1")
    A(f"s_waitcnt vmcnt(0)\nv_readfirstlane_b32 s31, {v(ER)}\ns_mov_b64 exec, -1")
    A("v_and_b32 v4, 4, v1\nv_lshlrev_b32 v4, 5, v4\nv_and_b32 v5, 11, v1\nv_lshl_add_u32 v4, v5, 2, v4")
    A("L_ov_poll:")
    A(f"buffer_load_dword v5, v4, {s(DB, 4)}, 0 offen sc1")
    poll_guard(A)
    A("s_waitcnt vmcnt(0)\ns_mov_b32 s32, 0")
    for k in range(16):
        A(f"v_readlane_b32 {s(44 + k)}, v5, {k}")
    for k in range(16):
        A(f"s_add_u32 s32, s32, {s(44 + k)}")
    A("s_cmp_lt_u32 s32, 256\ns_cbranch_scc1 L_ov_poll")
    A(f"s_mov_b32 {s(S_FOREIGN)}, 1")
    for k in range(8):
        A(f"s_min_u32 s33, {s(44 + k)}, 32\ns_sub_u32 s34, 32, s33")
        A(f"s_sub_u32 s35, {k}, {s(S_NONCE)}\ns_and_b32 s35, s35, 7\ns_lshl_b32 s35, s35, 5\ns_add_u32 {s(S_ID)}, s33, s31\ns_add_u32 {s(S_ID)}, {s(S_ID)}, s35")
        A("s_cmp_lt_u32 s31, s34\ns_cbranch_scc1 L_role_known\ns_sub_u32 s31, s31, s34")
    A(f"s_mov_b32 {s(S_ID)}, 0x2ff")
    A("L_role_known:")
    A(f"s_lshl_b32 s29, {s(S_FOREIGN)}, 8\ns_or_b32 s30, s29, {s(S_ID)}\nv_mov_b32 v4, s30\nds_write_b32 v6, v4\ns_waitcnt lgkmcnt(0)")
    A("L_role_wait:")
    A("s_barrier\nds_read_b32 v4, v6")
    A(f"s_cmp_eq_u32 {s(S_W)}, 0\ns_cbranch_scc0 L_no_reg")
    A("s_cmp_eq_u32 s16, -1\ns_cbranch_scc1 L_no_done")
    A(f"v_mov_b32 {v(ER)}, {s(S_NONCE)}\ns_lshl_b32 s16, s16, 7\ns_add_u32 s16, s16, {DONE}")
    A(f"v_lshrrev_b32 v5, 2, v3\nv_and_b32 v5, 124, v5\nbuffer_store_dword {v(ER)}, v5, {s(WS, 4)}, s16 offen sc1\nL_no_done:\ns_mov_b64 exec, 1")
    A(f"s_cmp_lt_u32 {s(S_ID)}, 32\ns_cbranch_scc0 L_no_reg2")
    A(f"s_add_u32 s29, s29, 1\nv_mov_b32 {v(ER + 2)}, s29\nbuffer_atomic_add {v(ER + 2)}, {v(ER + 1)}, {s(DB, 4)}, 0 offen offset:{D_REG} sc1")
    A("L_no_reg2:\ns_mov_b64 exec, -1")
    A("L_no_reg:")
    A("s_waitcnt lgkmcnt(0)\nv_readfirstlane_b32 s30, v4")
    A(f"s_bitcmp1_b32 s30, 9\ns_cbranch_scc1 L_exit\ns_and_b32 {s(S_ID)}, s30, 0xff")
    dbg_time(A, opts, 4, 16)
    amp_mark(A, opts, 1)
    A(f"s_sub_u32 s36, {s(S_ID)}, 30\ns_cmp_lt_u32 s36, 2\ns_cbranch_scc1 L_ln")
    A(f"s_sub_u32 s36, {s(S_ID)}, 160\ns_cmp_lt_u32 s36, 48\ns_cbranch_scc0 L_no_ln\ns_bitcmp1_b32 s36, 4\ns_cbranch_scc1 L_no_ln\ns_cmp_lt_u32 s36, 2\ns_cbranch_scc1 L_no_ln")
    A("s_lshr_b32 s37, s36, 1\ns_and_b32 s37, s37, 16\ns_and_b32 s36, s36, 15\ns_add_u32 s36, s36, s37\nL_ln:")
    gen_ln(A, opts)
    A("L_no_ln:")
    A(f"s_lshr_b32 s28, {s(S_ID)}, 5\ns_and_b32 s29, {s(S_ID)}, 31")
    far = []

    def go(cond, label):
        hop = A.new("go")
        far.append((hop, label))
        A(f"{cond}\ns_cbranch_scc1 {hop}")

    A("s_cmp_eq_u32 s28, 0\ns_cbranch_scc0 L_not_chain")
    go("s_cmp_lt_u32 s29, 16", "L_chain_a")
    go("s_cmp_lt_u32 s29, 30", "L_chain_b")
    go("s_cmp_eq_u32 s29, 30", "L_chain_f")
    A("s_branch L_chain_g")
    A("L_not_chain:")
    A("s_cmp_lt_u32 s28, 5\ns_cbranch_scc0 L_not_yx")
    A("s_sub_u32 s30, s28, 1\ns_lshl_b32 s30, s30, 2\ns_and_b32 s31, s29, 3\ns_add_u32 s30, s30, s31\ns_lshr_b32 s31, s29, 2")
    go("s_cmp_lt_u32 s29, 12", "L_y")
    A("s_sub_u32 s31, s31, 3")
    go("s_cmp_lt_u32 s29, 24", "L_x1")
    A("s_sub_u32 s30, s28, 1\ns_mul_i32 s30, s30, 7\ns_add_u32 s30, s30, s29\ns_sub_u32 s30, s30, 24\ns_mov_b32 s31, 1")
    go("s_cmp_lt_u32 s29, 31", "L_f1")
    A("s_sub_u32 s30, s28, 1\ns_branch L_go_z")
    A("L_not_yx:")
    A("s_mov_b32 s30, s29\ns_mov_b32 s31, 0")
    A("s_cmp_eq_u32 s28, 7\ns_cbranch_scc0 L_not_f1")
    go("s_cmp_lt_u32 s29, 28", "L_f1")
    A("s_sub_u32 s30, s29, 16\ns_branch L_go_z")
    A("L_not_f1:")
    A("s_sub_u32 s31, s28, 5")
    go("s_cmp_lt_u32 s29, 14", "L_x2")
    A("s_cmp_lt_u32 s29, 28\ns_cbranch_scc0 L_not_f2\ns_sub_u32 s30, s29, 14")
    if opts.get("f2x", 1):
        A("s_sub_u32 s33, s30, 7\ns_cmp_ge_u32 s30, 7\ns_cselect_b32 s30, s33, s30\ns_cselect_b32 s33, 1, 0\ns_lshl_b32 s30, s30, 1\ns_add_u32 s30, s30, s31\ns_mov_b32 s31, s33")
    A("s_branch L_f2\nL_not_f2:")
    A("s_lshl_b32 s30, s31, 2\ns_add_u32 s30, s30, s29\ns_sub_u32 s30, s30, 24")
    A("L_go_z:\ns_branch L_z")
    A("L_exit:")
    A("s_endpgm")
    for hop, label in far:
        A(f"{hop}:\ns_branch {label}")
    A("L_timeout:")
    A(f"s_mov_b64 exec, -1\ns_add_u32 s29, {s(S_ID)}, 0x1000\nv_mov_b32 v1, s29\nv_mov_b32 v2, {D_ERR}")
    A(f"buffer_store_dword v1, v2, {s(DB, 4)}, 0 offen\ns_endpgm")

    gen_work.SLEEP = opts.get("slp", 2)
    gen_work.WNT = " nt" if opts.get("wnt") else ""
    A("L_chain_a:")
    gen_chain_a(A, opts)
    A("L_chain_b:")
    gen_chain_b(A, opts)
    A("L_chain_f:")
    gen_chain_f(A, opts)
    A("L_chain_g:")
    gen_chain_g(A, opts)
    for lab, fn in (("y", gen_work.gen_y), ("z", gen_work.gen_z), ("x1", gen_work.gen_x1), ("x2", gen_work.gen_x2), ("f1", gen_work.gen_f1), ("f2", gen_work.gen_f2)):
        A(f"L_{lab}:")
        if opts.get("no_" + lab):
            A("s_endpgm")
        else:
            fn(A, opts)
```

```python
import math
import struct
from asmlib import Asm, v, a, s
from layout import *
from common import *

MF = "v_mfma_f32_16x16x32_bf16"
D_OVF, D_REG, D_ERR, D_NONCE = 64, 68, 72, 192


def f32(x):
    return hex(struct.unpack("<I", struct.pack("<f", x))[0])


def load_srd(A, dst, name, tmp):
    A(f"s_load_dwordx2 {s(tmp, 2)}, s[0:1], {KARG[name]}")

    def build():
        A(f"s_mov_b32 {s(dst)}, {s(tmp)}")
        A(f"s_and_b32 {s(dst + 1)}, {s(tmp + 1)}, 0xffff")
        A(f"s_mov_b32 {s(dst + 2)}, {SIZE[name]}")
        A(f"s_mov_b32 {s(dst + 3)}, 0x20000")
    return build


def xor_reduce(A, op, x, t):
    for sw in ("v_permlane16_swap_b32", "v_permlane32_swap_b32"):
        A(f"v_mov_b32 {v(t)}, {v(x)}")
        A(f"{sw} {v(x)}, {v(t)}")
        A(f"{op} {v(x)}, {v(x)}, {v(t)}")


def quad_sum(A, x):
    for p in ("[1,0,3,2]", "[2,3,0,1]"):
        A(f"v_add_f32_dpp {v(x)}, {v(x)}, {v(x)} quad_perm:{p} row_mask:0xf bank_mask:0xf")


def chunk_pos(A, dst, tok, g, t):
    A(f"v_lshrrev_b32 {v(t)}, 3, {v(tok)}\nv_lshlrev_b32 {v(t)}, 1, {v(t)}\nv_xor_b32 {v(t)}, {v(t)}, {v(g)}")
    A(f"v_lshl_add_u32 {v(t)}, {v(tok)}, 2, {v(t)}\nv_lshlrev_b32 {v(dst)}, 4, {v(t)}")


def poison_blocks(A, ranges, workers, sidx, val, addr):
    total = sum(n for _, n in ranges)
    for i in range(-(-total // workers)):
        sk = A.new("pz")
        A(f"s_add_u32 s59, {s(sidx)}, {workers * i}\ns_cmp_ge_u32 s59, {total}\ns_cbranch_scc1 {sk}")
        first = 0
        for base, n in ranges:
            if first + n > workers * i and first < workers * (i + 1):
                off = (base - first * 4096) & 0xffffffff
                if first <= workers * i:
                    A(f"s_mov_b32 s73, {off}")
                else:
                    A(f"s_cmp_ge_u32 s59, {first}\ns_cselect_b32 s73, {off}, s73")
            first += n
        A(f"s_lshl_b32 s59, s59, 12\ns_add_u32 s59, s59, s73")
        A(f"buffer_store_dwordx4 {v(val, 4)}, {v(addr)}, {s(WS, 4)}, s59 offen sc1\n{sk}:")


def gen_prep(A, opts, done, rank, pointers):
    S_, G_ = 20, 24
    A("s_and_b32 s28, s2, 7\ns_lshr_b32 s29, s2, 3")
    A("s_cmp_eq_u32 s28, 0\ns_cbranch_scc1 L_prep_none")
    A("s_sub_u32 s34, s28, 1\ns_lshl_b32 s28, s34, 5\ns_add_u32 s28, s28, s29")
    A("s_cmp_ge_u32 s29, 28\ns_cbranch_scc1 L_prep_rest")
    A("s_mul_i32 s30, s29, 37\ns_lshr_b32 s30, s30, 8\ns_mul_i32 s31, s30, 7\ns_sub_u32 s31, s29, s31")
    A("s_lshl_b32 s35, s34, 2\ns_add_u32 s30, s30, s35\ns_mul_i32 s35, s30, 37\ns_lshr_b32 s35, s35, 8\ns_mul_i32 s32, s35, 7\ns_sub_u32 s30, s30, s32")
    A("s_lshl_b32 s32, s35, 2\ns_add_u32 s32, s32, s30\ns_mul_i32 s35, s35, 3\ns_add_u32 s35, s35, s30\ns_sub_u32 s35, s35, 4")
    A("s_cmp_lt_u32 s30, 4\ns_cselect_b32 s32, s32, s35\ns_cselect_b32 s33, 1, 0\ns_branch L_prep_task")
    A("L_prep_rest:")
    A("s_sub_u32 s30, s29, 28\ns_lshr_b32 s35, s34, 1\ns_add_u32 s32, s35, 12\ns_and_b32 s33, s34, 1\ns_lshl_b32 s31, s33, 2\ns_add_u32 s31, s31, s30")
    A("s_add_u32 s35, s35, 4\ns_cmp_eq_u32 s31, 7\ns_cselect_b32 s32, 15, s32\ns_cselect_b32 s31, s35, s31\ns_mov_b32 s33, 0")
    A("L_prep_task:")
    A("s_lshl_b32 s16, s33, 4\ns_add_u32 s16, s16, s32\ns_mul_i32 s16, s16, 7\ns_add_u32 s16, s16, s31")
    DA, RA = 208, 216
    A("v_lshrrev_b32 v4, 5, v0\nv_and_b32 v5, 31, v0\ns_lshl_b32 s34, s32, 9\nv_and_b32 v7, 3, v1")
    for j in range(8):
        pm = 8 * (2 * j // 4) + (2 * j) % 4
        A(f"v_add_u32 v6, {2 * j}, v4\nv_xor_b32 v6, v6, v5\nv_lshlrev_b32 v6, 4, v6\nv_lshl_add_u32 v6, v4, 13, v6\ns_add_u32 s35, s34, {pm * 8192}\nv_add_u32 {v(DA + j)}, s35, v6")
    for k in range(4):
        A(f"v_add_u32 v6, {4 * k}, v2\nv_xor_b32 v6, v6, v1\nv_lshlrev_b32 v6, 4, v6\nv_lshl_add_u32 {v(RA + k)}, v1, 9, v6")
    A(f"s_mul_i32 s61, {s(S_W)}, 24576\ns_add_u32 s61, s61, 32768")
    for k in range(4):
        A(f"v_add_u32 {v(RA + 4 + k)}, s61, {v(RA + k)}")
    SS, ACC = 16, 144
    A(f"s_mul_i32 s36, s32, {FRAG_H}\ns_mul_i32 s37, s33, {BF - AF}\ns_add_u32 s36, s36, s37")
    if AF:
        A(f"s_add_u32 s36, s36, {AF}")
    A(f"s_mul_i32 s39, {s(S_W)}, 7\ns_lshl_b32 s58, {s(S_W)}, 13")

    def tile_ids(typ):
        if typ == 0:
            for j in range(7):
                A(f"s_add_u32 s56, s31, {j}\ns_sub_u32 s57, s56, 7\ns_cmp_ge_u32 s56, 7\ns_cselect_b32 s56, s57, s56\ns_add_u32 {s(64 + j)}, s56, s39")
            return
        A(f"s_mul_i32 s59, {s(S_W)}, 3\ns_min_u32 s60, {s(S_W)}, 2\ns_add_u32 s59, s59, s60")
        A(f"s_cmp_lt_u32 {s(S_W)}, 2\ns_cselect_b32 s73, 4, 3")
        A("s_sub_u32 s56, s31, s73\ns_cmp_ge_u32 s31, s73\ns_cselect_b32 s60, s56, s31\ns_sub_u32 s56, s60, s73\ns_cmp_ge_u32 s60, s73\ns_cselect_b32 s60, s56, s60")
        for jp in range(4):
            A(f"s_add_u32 s56, s60, {jp}\ns_sub_u32 s57, s56, s73\ns_cmp_ge_u32 s56, s73\ns_cselect_b32 s56, s57, s56\ns_add_u32 s56, s56, s59")
            A(f"s_lshl_b32 {s(64 + 2 * jp)}, s56, 1\ns_add_u32 {s(65 + 2 * jp)}, {s(64 + 2 * jp)}, 1")

    def tile_dma(vm, srd, tag, k, sbase):
        A(f"s_add_u32 s62, {s(sbase)}, {k * 1024}\ns_mov_b32 m0, s62\ns_nop 0")
        nt = " nt" if opts.get("pnt", 0) & (1 if tag == "s" else 2) else ""
        vm.op(f"buffer_load_dwordx4 {v(DA + k)}, {s(srd, 4)}, s56 offen{nt} lds", tag)

    def load_G(vm, j):
        out = []
        for k in range(8):
            def one(k=k):
                if k == 0:
                    A(f"s_lshr_b32 s57, {s(64 + j)}, 1\ns_lshl_b32 s57, s57, 18\ns_and_b32 s56, {s(64 + j)}, 1\ns_lshl_b32 s56, s56, 15\ns_add_u32 s56, s56, s57")
                    A(f"s_add_u32 s63, s61, {(j % 3) * 8192}")
                tile_dma(vm, G_, f"g{j}", k, 63)
            out.append(one)
        return out

    def body(typ):
        vm = Cnt(A, "vmcnt", 63)
        mark(A, opts, 5)
        tile_ids(typ)
        if typ == 1 and opts.get("bwait", 0) > 1:
            A(f"s_sleep {opts['bwait']}")
        NT = 7 + typ
        if typ == 1:
            A("v_lshrrev_b32 v6, 2, v0\nv_mul_u32_u24 v6, 896, v6\nv_lshl_add_u32 v6, v7, 4, v6")
        pointers()
        for r, p in ((S_, (44, 50)[typ]), (G_, (46, 48)[typ])):
            A(f"s_mov_b32 {s(r)}, {s(p)}\ns_and_b32 {s(r + 1)}, {s(p + 1)}, 0xffff\ns_mov_b32 {s(r + 2)}, {SIZE['wq']}\ns_mov_b32 {s(r + 3)}, 0x20000")
        if typ == 0:
            A(f"s_lshr_b32 s56, {s(S_W)}, 1\ns_lshl_b32 s56, s56, 18\ns_and_b32 s57, {s(S_W)}, 1\ns_lshl_b32 s57, s57, 15\ns_add_u32 s56, s56, s57\ns_lshl_b32 s57, s31, 19\ns_add_u32 s56, s56, s57")
            for k in range(8):
                tile_dma(vm, S_, "s", k, 58)
        else:
            A("v_lshrrev_b32 v8, 2, v1\nv_lshlrev_b32 v8, 6, v8\nv_lshl_add_u32 v8, v7, 4, v8\nv_lshl_add_u32 v8, v2, 9, v8")
            A(f"s_mul_i32 s56, s32, 229376\ns_lshl_b32 s57, s31, 7\ns_add_u32 s56, s56, s57\ns_lshr_b32 s57, {s(S_W)}, 1\ns_lshl_b32 s57, s57, 6\ns_add_u32 s56, s56, s57")
            A(f"s_and_b32 s57, {s(S_W)}, 1\ns_mul_i32 s57, s57, {128 * 896}\ns_add_u32 s56, s56, s57\ns_mov_b32 s57, s58")
            for j in range(8):
                A("s_mov_b32 m0, s57\ns_add_u32 s57, s57, 1024")
                vm.op(f"buffer_load_dwordx4 v6, {s(S_, 4)}, s56 offen{' nt' if opts.get('pnt', 0) & 1 else ''} lds", "s")
                A(f"s_add_u32 s56, s56, {16 * 896}")
        first = opts.get("gfirst", 1)
        if typ == 1 and opts.get("bwait") == 1:
            vm.wait("s")
        for j in range(first):
            for x in load_G(vm, j):
                x()
        if not opts.get("laterank"):
            rank()
        vm.wait("s")
        mark(A, opts, 2)
        A("s_barrier")
        lg = Cnt(A, "lgkmcnt", 15)
        for es in range(8):
            for t in range(4):
                if typ == 0:
                    lg.room(1)
                    lg.op(f"ds_read_b128 {v(SS + (t * 8 + es) * 4, 4)}, {v(RA + es % 4)} offset:{t * 8192 + (es // 4) * 256}")
                else:
                    for x in range(2):
                        lg.room(1)
                        lg.op(f"ds_read_b64_tr_b16 {v(SS + (t * 8 + es) * 4 + 2 * x, 2)}, v8 offset:{(t // 2) * 16384 + es * 2048 + x * 256 + (t % 2) * 8}")
        if typ == 0:
            A(f"s_mov_b32 s38, {f32(math.log2(math.e) / 16.0)}\ns_lshl_b32 s57, s31, 11\ns_add_u32 s36, s36, s57")
        else:
            A(f"s_mul_i32 s57, s31, {4 * 14 * KB}\ns_add_u32 s36, s36, s57")
        lg.drain()

        def epilogue(j):
            accb = ACC + (j % 2) * 16
            out = []
            if typ == 0:
                out += [f"v_pk_mul_f32 {v(accb + r, 2)}, {v(accb + r, 2)}, v[12:13]" for r in range(0, 16, 2)]
                out += [f"v_cvt_pk_bf16_f32 {pk(j, r)}, {v(accb + 2 * r)}, {v(accb + 2 * r + 1)}" for r in range(8)]
            else:
                out += [f"v_cvt_pk_bf16_f32 {pk(j // 2 * 2 + r // 4, 4 * (r // 2 % 2) + 2 * (j % 2) + r % 2)}, {v(accb + 2 * r)}, {v(accb + 2 * r + 1)}" for r in range(8)]
            return out

        def pk(j, r, n=1):
            return v((176 + 8 * j if j < 4 else 224 + 8 * (j - 4) if j < 7 else 4) + r, n)

        def stores(j):
            if typ == 0:
                A(f"s_mul_i32 s59, {s(64 + j)}, {14 * KB}\ns_add_u32 s59, s59, s36")
                for k in range(2):
                    A(f"buffer_store_dwordx4 {pk(j, 4 * k, 4)}, v3, {s(WS, 4)}, s59 offen offset:{k * 1024} sc1{' nt' if opts.get('snt') else ''}")
            elif j % 2:
                A(f"s_lshl_b32 s59, {s(63 + j)}, 9\ns_add_u32 s59, s59, s36")
                for t in range(4):
                    A(f"buffer_store_dwordx4 {pk(j - 1 + t // 2, 4 * (t % 2), 4)}, v3, {s(WS, 4)}, s59 offen sc1{' nt' if opts.get('snt') else ''}\ns_add_u32 s59, s59, {14 * KB}")

        if typ == 0:
            A("v_mov_b32 v12, s38\nv_mov_b32 v13, s38")
        def poison():
            A(f"s_lshl_b32 s59, {s(S_W)}, 10\nv_add_u32 v9, s59, v3")
            for r in range(4):
                A(f"v_mov_b32 {v(248 + r)}, -1")
            poison_blocks(A, [(P1_BASE, P1_BLOCKS), (P2_BASE, P2_BLOCKS)], 224, 28, 248, 9)

        def g_reads(j):
            return [lambda es=es: lg.op(f"ds_read_b128 {a((j % 2) * 32 + es * 4, 4)}, {v(RA + 4 + es % 4)} offset:{(j % 3) * 8192 + (es // 4) * 256}", f"r{j}") for es in range(8)]

        vm.wait("g0")
        mark(A, opts, 3)
        for x in g_reads(0):
            x()
        for j in range(first, 2):
            for x in load_G(vm, j):
                x()
        pend = []
        short = A.new("short")
        sfirst = opts.get("sfirst", 4)
        for j in range(NT):
            accb = ACC + (j % 2) * 16
            fill = {}
            if typ == 1 and j == 6:
                A(f"s_cmp_ge_u32 {s(S_W)}, 2\ns_cbranch_scc1 {short}")
                pend6 = list(pend)
            if j + 2 < NT:
                for k, x in enumerate(load_G(vm, j + 2)):
                    fill[3 * k] = [x]
            if j < NT - 1:
                r = g_reads(j + 1)
                fill[23] = [lambda: vm.wait(f"g{j + 1}"), r[0]]
                for k in range(1, 8):
                    fill[23 + k] = [r[k]]
            g = 4
            for x in pend:
                while g in fill and g < 23:
                    g += 1
                fill.setdefault(g, []).insert(0, x)
                g += 1
            if j == sfirst:
                fill.setdefault(2, []).append(poison)
                for k in range(j - 1):
                    fill.setdefault(6 + 6 * k, []).append(lambda k=k: (stores(k), vm.q.extend(["o"] * (2 if typ == 0 else 4 * (k % 2)))))
            if j >= sfirst:
                fill.setdefault(31, []).append(lambda j=j: (stores(j - 1), vm.q.extend(["o"] * (2 if typ == 0 else 4 * ((j - 1) % 2)))))
            lg.wait(f"r{j}")
            if opts.get("tilem") and j in (1, 3, 5):
                mark(A, opts, {1: 2, 3: 5, 5: 4}[j])
            elif j == 5:
                mark(A, opts, 4)
            k = 0
            for es in range(8):
                for t in range(4):
                    c = "0" if es == 0 else v(accb + t * 4, 4)
                    sop, gop = v(SS + (t * 8 + es) * 4, 4), a((j % 2) * 32 + es * 4, 4)
                    A(f"{MF} {v(accb + t * 4, 4)}, {sop if typ == 0 else gop}, {gop if typ == 0 else sop}, {c}")
                    for x in fill.get(k, []):
                        x() if callable(x) else A(x)
                    k += 1
            pend = epilogue(j)
        for x in pend:
            x() if callable(x) else A(x)
        stores(NT - 1)
        if typ == 1:
            A(f"s_branch {done}\n{short}:")
            for x in pend6:
                A(x)
            stores(5)
        dbg_time(A, opts, 1 + typ, 1 + 56 * typ, 2)
        A(f"s_branch {done}")

    A("s_cmp_eq_u32 s33, 0\ns_cbranch_scc0 L_prep_b")
    body(0)
    A("L_prep_b:")
    body(1)

    A("L_prep_none:\ns_mov_b32 s16, -1")
    pointers()
    rank()


def gen_ln(A, opts):
    X_, M0_ = 20, 24
    A(f"s_load_dwordx4 s[52:55], s[0:1], {KARG['x']}\ns_waitcnt lgkmcnt(0)")
    for dst, src, name in ((X_, 52, "x"), (M0_, 54, "mem0")):
        A(f"s_mov_b32 {s(dst)}, {s(src)}\ns_and_b32 {s(dst + 1)}, {s(src + 1)}, 0xffff\ns_mov_b32 {s(dst + 2)}, {SIZE[name]}\ns_mov_b32 {s(dst + 3)}, 0x20000")
    A(f"s_lshl_b32 s37, s36, 2\ns_add_u32 s37, s37, {s(S_W)}")
    A("v_lshrrev_b32 v61, 2, v0\nv_and_b32 v62, 3, v0\nv_mul_u32_u24 v63, 896, v61\nv_lshl_add_u32 v63, v62, 4, v63")
    A(f"s_mul_i32 s28, s37, {16 * 896}")
    RAW, F = 4, 64
    for ks in range(14):
        A(f"buffer_load_dwordx4 {v(RAW + ks * 4, 4)}, v63, {s(X_, 4)}, s28 offen offset:{ks * 64}{' nt' if opts.get('pnt', 0) & 1 else ''}")
    A("s_cmp_eq_u32 s36, 1\ns_cbranch_scc1 L_prep_mem\ns_waitcnt vmcnt(0)\ns_branch L_prep_nomem\nL_prep_mem:")
    A("v_and_b32 v214, 7, v1\nv_mul_u32_u24 v214, 896, v214\nv_lshrrev_b32 v215, 3, v1\nv_lshl_add_u32 v214, v215, 2, v214\nv_lshl_add_u32 v214, v2, 5, v214")
    for rep in range(2):
        A(f"s_add_u32 s31, {s(S_W)}, {4 * rep}\ns_min_u32 s31, s31, 6\ns_lshl_b32 s32, s31, 7\ns_lshl_b32 {s(33 + rep)}, s31, 10")
        for j in range(4):
            A(f"buffer_load_dword {v(188 + 4 * rep + j)}, v214, {s(M0_, 4)}, s32 offen offset:{j * 8}")
    A("s_waitcnt vmcnt(0)")
    for rep in range(2):
        for j in range(4):
            A(f"v_min_u32 {v(188 + 4 * rep + j)}, -2, {v(188 + 4 * rep + j)}")
        for base in (CM, XM):
            A(f"s_add_u32 s35, {s(33 + rep)}, {base}\nbuffer_store_dwordx4 {v(188 + 4 * rep, 4)}, v3, {s(WS, 4)}, s35 offen sc1{' nt' if opts.get('snt') else ''}")
    A("L_prep_nomem:")
    A("s_waitcnt vmcnt(4)")
    A("s_mov_b32 s29, 0xffff0000")
    for r in range(56):
        A(f"v_lshlrev_b32 {v(F + 2 * r)}, 16, {v(RAW + r)}")
        A(f"v_and_b32 {v(F + 2 * r + 1)}, s29, {v(RAW + r)}")
    S0 = 192
    pk = lambda op, d, x, y: A(f"{op} {v(d, 2)}, {v(x, 2)}, {v(y, 2)}")
    pk("v_pk_add_f32", S0, F, F + 2)
    pk("v_pk_add_f32", S0 + 2, F + 4, F + 6)
    for r in range(8, 112, 2):
        pk("v_pk_add_f32", S0 + r % 4, S0 + r % 4, F + r)
    pk("v_pk_add_f32", S0, S0, S0 + 2)
    A(f"v_add_f32 {v(S0)}, {v(S0)}, {v(S0 + 1)}")
    quad_sum(A, S0)
    A(f"v_mul_f32 {v(S0)}, {f32(-1.0 / 448)}, {v(S0)}\nv_mov_b32 {v(S0 + 1)}, {v(S0)}")
    for r in range(0, 112, 2):
        pk("v_pk_add_f32", F + r, F + r, S0)
    pk("v_pk_mul_f32", S0 + 4, F, F)
    pk("v_pk_mul_f32", S0 + 6, F + 2, F + 2)
    for r in range(4, 112, 2):
        A(f"v_pk_fma_f32 {v(S0 + 4 + r % 4, 2)}, {v(F + r, 2)}, {v(F + r, 2)}, {v(S0 + 4 + r % 4, 2)}")
    pk("v_pk_add_f32", S0 + 4, S0 + 4, S0 + 6)
    A(f"v_add_f32 {v(S0 + 4)}, {v(S0 + 4)}, {v(S0 + 5)}")
    quad_sum(A, S0 + 4)
    A(f"v_mov_b32 {v(S0 + 6)}, {f32(1e-5)}")
    A(f"v_fmac_f32 {v(S0 + 6)}, {f32(1.0 / 448)}, {v(S0 + 4)}")
    A(f"v_rsq_f32 {v(S0 + 6)}, {v(S0 + 6)}\nv_mov_b32 {v(S0 + 7)}, {v(S0 + 6)}")
    A(f"s_mul_i32 s28, s37, {14 * KB}\ns_add_u32 s28, s28, {XF}")
    chunk_pos(A, 208, 61, 62, 63)
    A(f"v_and_b32 v63, 1, v62\nv_cmp_eq_u32 s[56:57], 1, v63\ns_add_u32 s30, s28, {XS - XF}")
    for ks in range(14):
        for r in range(0, 8, 2):
            pk("v_pk_mul_f32", F + ks * 8 + r, F + ks * 8 + r, S0 + 6)
        for r in range(4):
            A(f"v_cvt_pk_bf16_f32 {v(RAW + ks * 4 + r)}, {v(F + ks * 8 + 2 * r)}, {v(F + ks * 8 + 2 * r + 1)}")
        A(f"buffer_store_dwordx4 {v(RAW + ks * 4, 4)}, v208, {s(WS, 4)}, s28 offen offset:{(ks % 4) * 1024} sc1{' nt' if opts.get('snt') else ''}")
        Q, D = 200 + 4 * (ks % 2), RAW + ks * 4
        A(f"v_cndmask_b32 v210, {v(D + 1)}, {v(D)}, s[56:57]\nv_cndmask_b32 v211, {v(D + 3)}, {v(D + 2)}, s[56:57]")
        for r in range(2):
            A(f"v_mov_b32_dpp {v(212 + r)}, {v(210 + r)} quad_perm:[1,0,3,2] row_mask:0xf bank_mask:0xf")
        for r, (ev, od) in enumerate(((D, 212), (D + 2, 213), (212, D + 1), (213, D + 3))):
            A(f"v_cndmask_b32 {v(Q + r)}, {v(ev)}, {v(od)}, s[56:57]")
        A(f"buffer_store_dwordx4 {v(Q, 4)}, v208, {s(WS, 4)}, s30 offen offset:{(ks % 4) * 1024} sc1{' nt' if opts.get('snt') else ''}")
        if ks % 4 == 3:
            A("s_add_u32 s28, s28, 4096\ns_add_u32 s30, s30, 4096\ns_waitcnt vmcnt(40)")
    A(f"s_cmp_lt_u32 s36, 2\ns_cbranch_scc1 L_ln_nopz\ns_sub_u32 s38, s36, 2\ns_lshl_b32 s59, {s(S_W)}, 10\nv_add_u32 v60, s59, v3\ns_waitcnt vmcnt(24)")
    for r in range(4):
        A(f"v_mov_b32 {v(216 + r)}, -1")
    poison_blocks(A, P_LAST, 30, 38, 216, 60)
    A("L_ln_nopz:")
    A(f"s_add_u32 s16, s36, 224\ns_lshl_b32 s16, s16, 7\ns_add_u32 s16, s16, {DONE}\nv_mov_b32 v4, {s(S_NONCE)}\nv_lshrrev_b32 v5, 2, v3\nv_and_b32 v5, 124, v5")
    A(f"s_cmp_eq_u32 {s(S_W)}, 0\ns_waitcnt vmcnt(0)\ns_barrier\ns_cbranch_scc0 L_ln_noflag")
    A(f"buffer_store_dword v4, v5, {s(WS, 4)}, s16 offen sc1\nL_ln_noflag:")
    mark(A, opts, 2)
    dbg_time(A, opts, 3, 160)
```
